```python
import torch

def _softmax(x, axis=-1):
    return torch.softmax(x, dim=axis)

def _gelu(x):
    return torch.nn.functional.gelu(x, approximate='tanh')

def _silu(x):
    return torch.nn.functional.silu(x)

def _sigmoid(x):
    return torch.sigmoid(x)

def _layernorm(x, axis=-1, eps=1e-05):
    m = x.mean(dim=axis, keepdim=True)
    v = x.var(dim=axis, keepdim=True, unbiased=False)
    return (x - m) / torch.sqrt(v + eps)

def _scatter_add(tgt, idx, src, axis=0):
    return tgt.clone().index_add_(axis, idx, src)

def _segment_sum(src, seg, n):
    out = torch.zeros((n,) + src.shape[1:], dtype=src.dtype)
    return out.index_add_(0, seg, src)

def _pad(x, pw):
    flat = tuple((v for pair in reversed(pw) for v in pair))
    return torch.nn.functional.pad(x, flat)
kernel_name = 'concat_heads__spectral_gfnet__memory_aug_recurrent_mem_tr__prompt'

def setup_inputs():

    _w = lambda a: (lambda t: t.to(torch.bfloat16) if t.is_floating_point() else t)(torch.as_tensor(a))

    def _A_setup():
        B, S, D = (1, 2048, 576)
        Df = D // 2 + 1
        return {'x': _w((lambda *s: torch.randn(*s, dtype=torch.bfloat16) * 0.05)(B, S, D)), 'w_r': _w((lambda *s: torch.randn(*s, dtype=torch.bfloat16) * 3.2)(S, Df) * 0.02), 'w_i': _w((lambda *s: torch.randn(*s, dtype=torch.bfloat16) * 3.2)(S, Df) * 0.02)}
    _A_in = _A_setup()

    def _B_setup():
        B, S, Dm = (1, 2048, 576)
        H, Dh = (32, 128)
        M, seg = (8, 32)
        seg = min(seg, S)
        S = S // seg * seg
        return {'x': _w((lambda *s: torch.randn(*s, dtype=torch.bfloat16) * 0.05)(B, S, Dm)), 'mem0': _w((lambda *s: torch.randn(*s, dtype=torch.bfloat16) * 0.4)(B, M, Dm)), 'Wq': _w((lambda *s: torch.randn(*s, dtype=torch.bfloat16) * 6.4)(Dm, H, Dh) * Dm ** (-0.5)), 'Wk': _w((lambda *s: torch.randn(*s, dtype=torch.bfloat16) * 6.4)(Dm, H, Dh) * Dm ** (-0.5)), 'Wv': _w((lambda *s: torch.randn(*s, dtype=torch.bfloat16) * 0.4)(Dm, H, Dh) * Dm ** (-0.5)), 'Wo': _w((lambda *s: torch.randn(*s, dtype=torch.bfloat16) * 0.4)(H, Dh, Dm) * (H * Dh) ** (-0.5)), 'seg_len': seg}
    _B_in = _B_setup()
    return {'A_x': _A_in['x'], 'A_w_r': _A_in['w_r'], 'A_w_i': _A_in['w_i'], 'B_x': _B_in['x'], 'B_mem0': _B_in['mem0'], 'B_Wq': _B_in['Wq'], 'B_Wk': _B_in['Wk'], 'B_Wv': _B_in['Wv'], 'B_Wo': _B_in['Wo'], 'B_seg_len': _B_in['seg_len']}

def reference(A_x, A_w_r, A_w_i, B_x, B_mem0, B_Wq, B_Wk, B_Wv, B_Wo, B_seg_len):

    def _A_ref(x, w_r, w_i):
        B, S, D = x.shape
        X = (lambda x, axes=(-2, -1): torch.fft.rfft2(x.float(), dim=axes))(x, axes=(-2, -1))
        W = w_r + 1j * w_i
        X = X * W
        y = (lambda x, s, axes=(-2, -1): torch.fft.irfft2(x, s=s, dim=axes).to(torch.bfloat16))(X, (S, D), axes=(-2, -1))
        return y

    def _B_ref(x, mem0, Wq, Wk, Wv, Wo, seg_len):
        B, S, Dm = x.shape
        H, Dh = (Wq.shape[1], Wq.shape[2])
        M = mem0.shape[1]
        scale = Dh ** (-0.5)
        n_seg = S // seg_len
        L = M + seg_len
        idx = torch.arange(L)
        mask = (idx[:, None] < M) | (idx[:, None] >= idx[None, :])
        mem = mem0
        outs = []
        for s in range(n_seg):
            xs = x[:, s * seg_len:(s + 1) * seg_len, :].clone()
            h = torch.concatenate([mem, xs], axis=1)
            q = torch.einsum('btd,dhe->bhte', h, Wq)
            k = torch.einsum('btd,dhe->bhte', h, Wk)
            v = torch.einsum('btd,dhe->bhte', h, Wv)
            scores = torch.einsum('bhqe,bhke->bhqk', q, k) * scale
            scores = torch.where(mask[None, None], scores, -1000000000.0)
            p = _softmax(scores, axis=-1)
            o = torch.einsum('bhqk,bhke->bhqe', p, v)
            o = torch.einsum('bhte,hed->btd', o, Wo)
            mem = o[:, :M, :].clone()
            outs.append(o[:, M:, :])
        return torch.concatenate(outs, axis=1)
    a = _A_ref(A_x, A_w_r, A_w_i)
    b = _B_ref(B_x, B_mem0, B_Wq, B_Wk, B_Wv, B_Wo, B_seg_len)
    return torch.concatenate([a, b], axis=-1)
```

```python
class Asm:
    _g = 0
    def __init__(self):
        self.lines = []
        self._lbl = 0
    def __call__(self, s):
        for ln in s.strip().split("\n"):
            ln = ln.strip()
            if ln:
                self.lines.append("    " + ln if not ln.endswith(":") else ln)
    def c(self, s):
        self.lines.append("    ; " + s)
    def label(self, name):
        self.lines.append(name + ":")
    def newlabel(self, base="L"):
        Asm._g += 1
        return "%s_%d" % (base, Asm._g)
    def text(self):
        return "\n".join(self.lines) + "\n"

def v(i, n=1):
    return "v%d" % i if n == 1 else "v[%d:%d]" % (i, i + n - 1)
def a(i, n=1):
    return "a%d" % i if n == 1 else "a[%d:%d]" % (i, i + n - 1)
def s(i, n=1):
    return "s%d" % i if n == 1 else "s[%d:%d]" % (i, i + n - 1)

def kernel_desc(name, vgpr=256, agpr=0, sgpr=102):
    acc = (vgpr + 3) // 4 * 4
    nfv = acc + agpr if agpr else vgpr
    return """.amdhsa_kernel %s
  .amdhsa_next_free_vgpr %d
  .amdhsa_next_free_sgpr %d
  .amdhsa_accum_offset %d
  .amdhsa_group_segment_fixed_size 0
  .amdhsa_kernarg_size 104
  .amdhsa_user_sgpr_count 2
  .amdhsa_user_sgpr_kernarg_segment_ptr 1
  .amdhsa_system_sgpr_workgroup_id_x 1
  .amdhsa_float_denorm_mode_32 3
.end_amdhsa_kernel
""" % (name, nfv, sgpr, acc)

def kernel_head(name):
    return ".globl %s\n.p2align 8\n.type %s,@function\n%s:\n" % (name, name, name)
```

```python
from asmlib import *

NAME = "concat_heads__spectral_gfnet__memory_aug_recurrent_mem_tr__prompt"

MB = 1 << 20
WS_QX   = 0
WS_KX   = 16 * MB
WS_VX   = 32 * MB
WS_OX   = 48 * MB
WS_KM   = 64 * MB
WS_VM   = 68 * MB
WS_PART = 72 * MB
WS_MEMB = 73 * MB
WS_FLAG = 74 * MB
WS_F1   = 75 * MB
WS_F3   = 76 * MB
WS_WT   = 77 * MB
WS_X1   = 80 * MB
WS_Y1   = 83 * MB
WS_SIZE = 256 * MB

S_WG = 2
SRD_AX, SRD_WR, SRD_WI, SRD_BX, SRD_M0, SRD_WQ, SRD_WK, SRD_WV, SRD_WO, SRD_OUT, SRD_DBG, SRD_WS = [8 + 4 * i for i in range(12)]
S_WAVE = 56
S_ROLE = 57
def srd(b): return "s[%d:%d]" % (b, b + 3)

SIZES = {SRD_AX: 2048*576*2, SRD_WR: 2048*289*2, SRD_WI: 2048*289*2, SRD_BX: 2048*576*2, SRD_M0: 8*576*2,
         SRD_WQ: 576*4096*2, SRD_WK: 576*4096*2, SRD_WV: 576*4096*2, SRD_WO: 576*4096*2,
         SRD_OUT: 2048*1152*2, SRD_DBG: 256, SRD_WS: WS_SIZE}
KOFF = {SRD_AX: 0, SRD_WR: 8, SRD_WI: 16, SRD_BX: 24, SRD_M0: 32, SRD_WQ: 40, SRD_WK: 48, SRD_WV: 56, SRD_WO: 64,
        SRD_OUT: 80, SRD_DBG: 88, SRD_WS: 96}

def prologue(A, nwg, endlabel):
    A(f"s_cmp_ge_u32 s2, {nwg}")
    A(f"s_cbranch_scc1 {endlabel}")
    for b, off in KOFF.items():
        A(f"s_load_dwordx2 s[{b}:{b+1}], s[0:1], {off}")
    A("v_lshrrev_b32 v2, 6, v0")
    A("v_and_b32 v1, 63, v0")
    A(f"v_readfirstlane_b32 s{S_WAVE}, v2")
    for b in KOFF:
        A(f"s_mov_b32 s{b+2}, {SIZES[b]}")
        A(f"s_mov_b32 s{b+3}, 0x20000")
    A("s_waitcnt lgkmcnt(0)")

def wreg(i, n):
    if i + n <= 256:
        return a(i, n)
    assert i >= 256
    return v(80 + i - 256, n)

WS_STAMP = 100 * MB
STAMPS = False
def stamp(A, idx, vt=78, s_id=2):
    import common
    if not common.STAMPS: return
    l = A.newlabel("ST")
    A(f"""
    s_cmp_lg_u32 s{S_WAVE}, 0
    s_cbranch_scc1 {l}
    s_memrealtime s[96:97]
    s_lshl_b32 s98, s{s_id}, 8
    s_add_u32 s98, s98, {WS_STAMP + idx*4}
    s_waitcnt lgkmcnt(0)
    v_mov_b32 {v(vt)}, s96
    v_mov_b32 {v(vt+1)}, 0
    s_mov_b64 exec, 1
    buffer_store_dword {v(vt)}, {v(vt+1)}, {srd(SRD_WS)}, s98 offen
    s_mov_b64 exec, -1
{l}:
    """)
DBG_XCD = 0
DBG_TOT = 32
DBG_OVF = 36
DBG_RARM = 40
DBG_INIT = 44
DBG_RPROG = 128
```

```python
from common import *
from mod_r4 import f32bits
from mod_p import xtile_addr_setup, XBUF

WS_FC = WS_WT + 0x2C0000
MAGIC576 = (2**32 + 575) // 576

def F0(A, s_wid, NW, sc=" sc1"):
    L = lambda n: f"F0_{n}"
    T = 8
    A(f"""
    s_lshl_b32 s64, s{s_wid}, 2
    s_add_u32 s64, s64, s{S_WAVE}
    v_lshlrev_b32 v2, 4, v1
    v_and_b32 v3, 31, v1                 ; n
    v_lshrrev_b32 v4, 5, v1
    v_lshlrev_b32 v4, 3, v4              ; 8*hf
    s_mov_b32 s66, {MAGIC576}
    s_mov_b32 s67, {f32bits(1.0/576)}
    s_mov_b32 s65, s64
    """)
    A.label(L("m"))
    A(f"""
    s_cmp_ge_u32 s65, 1296
    s_cbranch_scc1 {L('mdone')}
    s_cmp_ge_u32 s65, 648
    s_cselect_b32 s68, 1, 0
    s_mul_i32 s60, s68, 648
    s_sub_u32 s60, s65, s60              ; tile*36+ks
    s_mul_hi_u32 s61, s60, {(2**32+35)//36}
    s_mul_i32 s62, s61, 36
    s_sub_u32 s62, s60, s62              ; ks
    s_lshl_b32 s61, s61, 5
    s_lshl_b32 s62, s62, 4
    v_add_u32 v5, s61, v3
    v_add_u32 v6, s62, v4
    s_lshl_b32 s63, s68, 20
    s_lshl_b32 s60, s60, 10
    s_add_u32 s63, s63, s60
    s_add_u32 s63, s63, {WS_F1}
    """)
    assert WS_F3 == WS_F1 + MB
    A(f"""
    s_cmp_eq_u32 s68, 0
    s_cselect_b64 s[70:71], -1, 0
    """)
    for j in range(8):
        A(f"""
        v_add_u32 v7, {j}, v6
        v_cndmask_b32 v20, v5, v7, s[70:71]      ; d
        v_cndmask_b32 v21, v7, v5, s[70:71]      ; col
        v_lshrrev_b32 v22, 1, v21                ; kappa
        v_and_b32 v23, 1, v21                    ; rho
        v_cmp_eq_u32 vcc, 1, v21
        v_mul_u32_u24 v23, 144, v23
        v_mov_b32 v24, 288
        v_cndmask_b32 v22, v22, v24, vcc
        v_cndmask_b32 v23, v23, 0, vcc
        v_mad_u32_u24 v22, v20, v22, v23         ; m
        v_mul_hi_u32 v23, v22, s66
        v_mul_u32_u24 v23, 576, v23
        v_sub_u32 v22, v22, v23
        v_cvt_f32_u32 v22, v22
        v_mul_f32 v22, s67, v22
        v_cos_f32 v{T+j}, v22
        """)
    A("s_nop 0")
    for j in range(4):
        A(f"v_cvt_pk_bf16_f32 v{16+j}, v{T+2*j}, v{T+2*j+1}")
    A(f"""
    buffer_store_dwordx4 v[16:19], v2, {srd(SRD_WS)}, s63 offen{sc}
    s_add_u32 s65, s65, {NW*4}
    s_branch {L('m')}
    """)
    A.label(L("mdone"))
    A(f"""
    s_sub_u32 s65, s65, 1296
    s_cmp_ge_u32 s65, 22
    s_cbranch_scc1 {L('cdone')}
    s_cmp_lt_u32 s65, 6
    s_cbranch_scc0 {L('c64')}
    s_and_b32 s60, s65, 1
    s_lshl_b32 s60, s60, 4               ; k base = 16j
    s_mov_b32 s61, 0
    s_lshr_b32 s62, s65, 1
    s_mov_b32 s63, {f32bits(1.0/32)}
    s_branch {L('cgo')}
{L('c64')}:
    s_sub_u32 s68, s65, 6
    s_and_b32 s60, s68, 3
    s_lshl_b32 s60, s60, 4
    s_bfe_u32 s61, s68, 0x10002
    s_lshl_b32 s61, s61, 5               ; 32*tm
    s_lshr_b32 s62, s68, 3
    s_mov_b32 s63, {f32bits(1.0/64)}
{L('cgo')}:
    s_cmp_eq_u32 s62, 1
    s_cselect_b32 s68, {f32bits(-0.25)}, 0
    s_cmp_eq_u32 s62, 2
    s_cselect_b32 s68, {f32bits(0.25)}, s68
    v_add_u32 v5, s61, v3
    v_lshrrev_b32 v6, 1, v4              ; 4*hf
    v_add_u32 v6, s60, v6
    v_mov_b32 v24, s68
    """)
    for j in range(8):
        A(f"""
        v_add_u32 v7, {8*(j>>2) + (j&3)}, v6
        v_mul_u32_u24 v7, v7, v5
        v_and_b32 v7, 63, v7
        v_cvt_f32_u32 v7, v7
        v_fma_f32 v7, v7, s63, v24
        v_cos_f32 v{T+j}, v7
        """)
    A("s_nop 0")
    for j in range(4):
        A(f"v_cvt_pk_bf16_f32 v{16+j}, v{T+2*j}, v{T+2*j+1}")
    A(f"""
    s_lshl_b32 s63, s65, 10
    s_add_u32 s63, s63, {WS_FC}
    buffer_store_dwordx4 v[16:19], v2, {srd(SRD_WS)}, s63 offen{sc}
    """)
    A.label(L("cdone"))
    A(f"""
    v_lshlrev_b32 v5, 1, v1              ; kappa_lo*2
    v_lshlrev_b32 v6, 13, v1             ; kappa_lo*8192
    s_mov_b32 s65, s64
{L('w')}:
    s_cmp_ge_u32 s65, 2560
    s_cbranch_scc1 {L('wdone')}
    s_mul_hi_u32 s60, s65, {(2**32+4)//5}
    s_mul_i32 s61, s60, 5
    s_sub_u32 s61, s65, s61              ; kb
    s_lshr_b32 s62, s60, 5               ; q
    s_and_b32 s63, s60, 31               ; m0
    s_lshl_b32 s62, s62, 7
    s_add_u32 s62, s62, s63              ; m = m0 + 128 q
    s_mul_i32 s62, s62, 578
    s_lshl_b32 s63, s61, 7
    s_add_u32 s62, s62, s63              ; src
    s_lshl_b32 s63, s61, 19
    s_lshl_b32 s60, s60, 4
    s_add_u32 s63, s63, s60
    s_add_u32 s63, s63, {WS_WT}          ; dst
    """)
    for j in range(4):
        A(f"buffer_load_ushort v{8+j}, v5, {srd(SRD_WR)}, s62 offen")
        A(f"buffer_load_ushort v{12+j}, v5, {srd(SRD_WI)}, s62 offen")
        if j < 3: A(f"s_add_u32 s62, s62, {32*578}")
    A("s_waitcnt vmcnt(0)")
    for j in range(4):
        A(f"v_lshl_or_b32 v{16+j}, v{12+j}, 16, v{8+j}")
    A(f"""
    buffer_store_dwordx4 v[16:19], v6, {srd(SRD_WS)}, s63 offen{sc}
    s_add_u32 s65, s65, {NW*4}
    s_branch {L('w')}
    """)
    A.label(L("wdone"))


def FG(A, which, s_cg, s_tg, NTG, sc=" sc1"):
    L = lambda n: f"F{which}_{n}"
    WB = 112
    ACC = 8; XF = [24, 28, 32]; VFR = 36; VDMA = 40; VST = 41; T0, T1 = 42, 43; VL = 44
    A(f"""
    s_lshl_b32 s64, s{s_cg}, 2
    s_add_u32 s64, s64, s{S_WAVE}            ; tile
    s_min_u32 s65, s64, 17
    s_mul_i32 s65, s65, {36*1024}
    s_add_u32 s65, s65, {WS_F1 if which == 1 else WS_F3}
    v_lshlrev_b32 {v(VL)}, 4, v1
    s_lshl_b32 s61, s{S_WAVE}, 10
    """)
    if which == 1:
        xtile_addr_setup(A, VDMA, VFR, 64 * 1152, T0, T1)
        A(f"""
        v_and_b32 {v(T0)}, 31, v1
        v_lshlrev_b32 {v(VST)}, 12, {v(T0)}
        v_lshrrev_b32 {v(T0)}, 5, v1
        v_lshl_add_u32 {v(VST)}, {v(T0)}, 9, {v(VST)}
        """)
    else:
        A(f"""
        v_lshrrev_b32 {v(T0)}, 2, v1
        s_lshl_b32 s60, s{S_WAVE}, 4
        v_add_u32 {v(T0)}, s60, {v(T0)}
        v_lshlrev_b32 {v(VDMA)}, 12, {v(T0)}
        v_and_b32 {v(T0)}, 3, v1
        v_lshl_add_u32 {v(VDMA)}, {v(T0)}, 4, {v(VDMA)}
        v_bfe_u32 {v(T0)}, v1, 2, 2
        v_lshrrev_b32 {v(T1)}, 5, v1
        v_lshl_add_u32 {v(T0)}, {v(T1)}, 3, {v(T0)}
        v_lshlrev_b32 {v(VFR)}, 6, {v(T0)}
        v_bfe_u32 {v(T0)}, v1, 4, 1
        v_lshl_add_u32 {v(VFR)}, {v(T0)}, 5, {v(VFR)}
        v_and_b32 {v(T0)}, 3, v1
        v_lshl_add_u32 {v(VFR)}, {v(T0)}, 3, {v(VFR)}
        v_and_b32 {v(T0)}, 31, v1
        v_mul_u32_u24 {v(VST)}, 2304, {v(T0)}
        v_lshl_add_u32 {v(VST)}, {v(T1)}, 4, {v(VST)}
        """)
    def dma(s_tile, s_buf):
        for n in range(9):
            A(f"s_add_u32 m0, s{s_buf}, {n*4096}")
            if which == 1:
                A(f"s_mul_i32 s62, s{s_tile}, 1152\ns_add_u32 s62, s62, {n*128}")
                A(f"buffer_load_dwordx4 {v(VDMA)}, {srd(SRD_AX)}, s62 offen lds")
            else:
                A(f"s_lshl_b32 s62, s{s_tile}, 6\ns_add_u32 s62, s62, {WS_Y1 + n*64*4096}")
                A(f"buffer_load_dwordx4 {v(VDMA)}, {srd(SRD_WS)}, s62 offen sc1 lds")
    A(f"s_mov_b32 s66, s{s_tg}\ns_mov_b32 s67, s61\ns_barrier")
    dma(66, 67)
    for ks in range(36):
        if ks % 4 == 0 and ks: A("s_add_u32 s65, s65, 4096")
        A(f"buffer_load_dwordx4 {v(WB+4*ks,4)}, {v(VL)}, {srd(SRD_WS)}, s65 offen offset:{(ks&3)*1024} sc1")
    A.label(L("loop"))
    A(f"""
    s_waitcnt vmcnt(0)
    s_barrier
    s_add_u32 s68, s66, {NTG}
    s_xor_b32 s67, s67, 65536
    s_cmp_ge_u32 s68, 64
    s_cbranch_scc1 {L('nopf')}
    """)
    dma(68, 67)
    A.label(L("nopf"))
    def xread(ks):
        if which == 1:
            A(f"ds_read_b128 {v(XF[ks%3],4)}, {v(VFR + (ks&3))} offset:{(ks>>2)*4096}")
        else:
            A(f"ds_read_b64_tr_b16 {v(XF[ks%3],2)}, {v(VFR)} offset:{ks*1024}")
            A(f"ds_read_b64_tr_b16 {v(XF[ks%3]+2,2)}, {v(VFR)} offset:{ks*1024+256}")
    per = 1 if which == 1 else 2
    xread(0); xread(1)
    for ks in range(36):
        A(f"s_waitcnt lgkmcnt({per if ks < 35 else 0})")
        x = v(XF[ks % 3], 4); w = v(WB + 4 * ks, 4); c = "0" if ks == 0 else v(ACC, 16)
        if which == 1: A(f"v_mfma_f32_32x32x16_bf16 {v(ACC,16)}, {x}, {w}, {c}")
        else:          A(f"v_mfma_f32_32x32x16_bf16 {v(ACC,16)}, {w}, {x}, {c}")
        if ks + 2 < 36: xread(ks + 2)
    for k in range(4 if which == 1 else 1):
        A(f"v_xor_b32 {v(VFR+k)}, 0x10000, {v(VFR+k)}")
    if which == 1:
        A(f"""
        s_lshl_b32 s60, s64, 17
        s_lshr_b32 s62, s66, 5
        s_lshl_b32 s62, s62, 11
        s_add_u32 s60, s60, s62
        s_and_b32 s62, s66, 31
        s_lshl_b32 s62, s62, 4
        s_add_u32 s60, s60, s62
        s_add_u32 s60, s60, {WS_X1}
        """)
    else:
        A(f"""
        s_mul_i32 s60, s66, {32*2304}
        s_lshl_b32 s62, s64, 6
        s_add_u32 s60, s60, s62
        s_nop 7
        """)
    A(f"""
    s_cmp_ge_u32 s64, 18
    s_cbranch_scc1 {L('nost')}
    """)
    for i in range(8):
        A(f"v_cvt_pk_bf16_f32 {v(ACC+i)}, {v(ACC+2*i)}, {v(ACC+2*i+1)}")
    if which == 1:
        A(f"buffer_store_dwordx4 {v(ACC,4)}, {v(VST)}, {srd(SRD_WS)}, s60 offen{sc}")
        A(f"buffer_store_dwordx4 {v(ACC+4,4)}, {v(VST)}, {srd(SRD_WS)}, s60 offen offset:1024{sc}")
    else:
        A("s_nop 1")
        for a2 in range(2):
            b = ACC + 4 * a2
            A(f"v_permlane32_swap_b32 {v(b)}, {v(b+2)}\nv_permlane32_swap_b32 {v(b+1)}, {v(b+3)}")
            A(f"buffer_store_dwordx4 {v(b,4)}, {v(VST)}, {srd(SRD_OUT)}, s60 offen offset:{a2*32}")
    A.label(L("nost"))
    A(f"""
    s_mov_b32 s66, s68
    s_cmp_lt_u32 s66, 64
    s_cbranch_scc1 {L('loop')}
    """)


def F2(A, s_kap, sc=" sc1"):
    C32, S32, NS32 = 8, 16, 24
    C64, S64 = 32, 64
    IN = 96
    D = 128
    U = 192
    VL, VM, VB, T0, T1, T2, T3, VST = 2, 3, 4, 240, 241, 242, 243, 5
    L = lambda n: f"F2_{n}"
    A(f"""
    v_lshlrev_b32 {v(VL)}, 4, v1
    s_mov_b32 s60, {WS_FC}
    """)
    for f in range(22):
        if f % 4 == 0 and f: A("s_add_u32 s60, s60, 4096")
        A(f"buffer_load_dwordx4 {v(8+4*f,4)}, {v(VL)}, {srd(SRD_WS)}, s60 offen offset:{(f&3)*1024} sc1")
    A(f"""
    s_lshl_b32 s61, s{s_kap}, 13
    s_cmp_eq_u32 s{s_kap}, 288
    s_cselect_b32 s61, 4096, s61
    s_add_u32 s61, s61, {WS_X1}
    s_add_u32 s62, s61, 4096
    s_cmp_eq_u32 s{s_kap}, 288
    s_cselect_b32 s63, 1, 0
    s_cmp_eq_u32 s{s_kap}, 0
    s_cselect_b32 s63, 1, s63
    """)
    for i in range(4):
        A(f"buffer_load_dwordx4 {v(IN+4*i,4)}, {v(VL)}, {srd(SRD_WS)}, s61 offen offset:{i*1024} sc1")
    A(f"s_cmp_eq_u32 s63, 1\ns_cbranch_scc1 {L('zim')}")
    for i in range(4):
        A(f"buffer_load_dwordx4 {v(IN+16+4*i,4)}, {v(VL)}, {srd(SRD_WS)}, s62 offen offset:{i*1024} sc1")
    A(f"s_branch {L('zim2')}")
    A.label(L('zim'))
    for i in range(16): A(f"v_mov_b32 {v(IN+16+i)}, 0")
    A.label(L('zim2'))
    A(f"""
    v_and_b32 {v(T0)}, 31, v1
    v_cvt_f32_u32 {v(VM)}, {v(T0)}
    v_mul_f32 {v(VM)}, {f32bits(1.0/2048)}, {v(VM)}      ; n/2048
    v_lshrrev_b32 {v(T1)}, 5, v1
    v_lshlrev_b32 {v(T1)}, 2, {v(T1)}
    v_cvt_f32_u32 {v(VB)}, {v(T1)}
    v_lshlrev_b32 {v(VST)}, 7, {v(T0)}
    v_lshl_add_u32 {v(VST)}, {v(T1)}, 2, {v(VST)}
    s_mov_b32 s64, {f32bits(2.0/(2048*576))}
    s_cmp_eq_u32 s63, 1
    s_cselect_b32 s64, {f32bits(1.0/(2048*576))}, s64
    s_waitcnt vmcnt(0)
    """)
    def mm(d, pairs):
        for n, (a_, b_) in enumerate(pairs):
            A(f"v_mfma_f32_32x32x16_bf16 {v(d,16)}, {v(a_,4)}, {v(b_,4)}, {'0' if n == 0 else v(d,16)}")
    XR = lambda ts, j: IN + 8 * ts + 4 * j
    XI = lambda ts, j: IN + 16 + 8 * ts + 4 * j
    DR = lambda t: D + 32 * t
    DI = lambda t: D + 32 * t + 16
    UR = lambda kk: U + 4 * kk
    UI = lambda kk: U + 16 + 4 * kk
    UN = lambda kk: U + 32 + 4 * kk
    for ts in range(2):
        mm(DR(ts), [(XR(ts, j), C32 + 4 * j) for j in range(2)] + [(XI(ts, j), S32 + 4 * j) for j in range(2)])
        mm(DI(ts), [(XI(ts, j), C32 + 4 * j) for j in range(2)] + [(XR(ts, j), NS32 + 4 * j) for j in range(2)])
    A(f"s_lshl_b32 s61, s{s_kap}, 13\ns_add_u32 s61, s61, {WS_WT}")
    for i in range(8):
        if i == 4: A("s_add_u32 s61, s61, 4096")
        A(f"buffer_load_dwordx4 {v(IN+4*i,4)}, {v(VL)}, {srd(SRD_WS)}, s61 offen offset:{(i&3)*1024} sc1")
    A("s_nop 4")
    def cmul_pack(t, sign, ang, neg):
        for i in range(16):
            r, im = DR(t) + i, DI(t) + i
            ang(i)
            A(f"""
            v_cos_f32 {v(T1)}, {v(T0)}
            v_sin_f32 {v(T2)}, {v(T0)}
            v_mul_f32 {v(T3)}, {v(r)}, {v(T1)}
            v_mul_f32 {v(T1)}, {v(im)}, {v(T1)}
            v_fma_f32 {v(T3)}, {'-' if sign > 0 else ''}{v(im)}, {v(T2)}, {v(T3)}
            v_fma_f32 {v(im)}, {'-' if sign < 0 else ''}{v(r)}, {v(T2)}, {v(T1)}
            v_mov_b32 {v(r)}, {v(T3)}
            """)
        pack(t, neg)
    def pack(t, neg):
        for i in range(8):
            kk = 2 * t + i // 4
            A(f"v_cvt_pk_bf16_f32 {v(UR(kk)+i%4)}, {v(DR(t)+2*i)}, {v(DR(t)+2*i+1)}")
            A(f"v_cvt_pk_bf16_f32 {v(UI(kk)+i%4)}, {v(DI(t)+2*i)}, {v(DI(t)+2*i+1)}")
            if neg:
                src = UR(kk) + i % 4 if neg == 'R' else UI(kk) + i % 4
                A(f"v_xor_b32 {v(UN(kk)+i%4)}, 0x80008000, {v(src)}")
    for ts in range(2):
        def ang(i, ts=ts):
            A(f"v_add_f32 {v(T0)}, {f32bits(float(32*ts + 8*(i//4) + i%4))}, {v(VB)}")
            A(f"v_mul_f32 {v(T0)}, {v(T0)}, {v(VM)}")
        cmul_pack(ts, -1, ang, 'R')
    A("s_nop 1")
    for tm in range(2):
        mm(DR(tm), [(C64 + 4 * (4 * tm + kk), UR(kk)) for kk in range(4)] + [(S64 + 4 * (4 * tm + kk), UI(kk)) for kk in range(4)])
        mm(DI(tm), [(C64 + 4 * (4 * tm + kk), UI(kk)) for kk in range(4)] + [(S64 + 4 * (4 * tm + kk), UN(kk)) for kk in range(4)])
    A("s_waitcnt vmcnt(0)\ns_nop 10")
    for tm in range(2):
        for i in range(16):
            r, im, w = DR(tm) + i, DI(tm) + i, IN + 16 * tm + i
            A(f"""
            v_lshlrev_b32 {v(T1)}, 16, {v(w)}
            v_and_b32 {v(T2)}, 0xffff0000, {v(w)}
            v_mul_f32 {v(T1)}, s64, {v(T1)}
            v_mul_f32 {v(T2)}, s64, {v(T2)}
            v_mul_f32 {v(T3)}, {v(r)}, {v(T1)}
            v_mul_f32 {v(T1)}, {v(im)}, {v(T1)}
            v_fma_f32 {v(T3)}, -{v(im)}, {v(T2)}, {v(T3)}
            v_fma_f32 {v(im)}, {v(r)}, {v(T2)}, {v(T1)}
            v_mov_b32 {v(r)}, {v(T3)}
            """)
        pack(tm, 'I')
    A("s_nop 1")
    for ts in range(2):
        mm(DR(ts), [(UR(kk), C64 + 4 * (4 * ts + kk)) for kk in range(4)] + [(UN(kk), S64 + 4 * (4 * ts + kk)) for kk in range(4)])
        mm(DI(ts), [(UI(kk), C64 + 4 * (4 * ts + kk)) for kk in range(4)] + [(UR(kk), S64 + 4 * (4 * ts + kk)) for kk in range(4)])
    A("s_nop 7\ns_nop 3")
    for ts in range(2):
        if ts == 1: A(f"v_add_f32 {v(VM)}, {f32bits(32.0/2048)}, {v(VM)}")
        def ang(i):
            A(f"v_add_f32 {v(T0)}, {f32bits(float(8*(i//4) + i%4))}, {v(VB)}")
            A(f"v_mul_f32 {v(T0)}, {v(T0)}, {v(VM)}")
        cmul_pack(ts, +1, ang, None)
    A("s_nop 1")
    for ts in range(2):
        mm(DR(ts), [(UR(2*ts+j), C32 + 4 * j) for j in range(2)] + [(UI(2*ts+j), NS32 + 4 * j) for j in range(2)])
        mm(DI(ts), [(UI(2*ts+j), C32 + 4 * j) for j in range(2)] + [(UR(2*ts+j), S32 + 4 * j) for j in range(2)])
    A(f"""
    s_lshl_b32 s61, s{s_kap}, 13
    s_cmp_eq_u32 s{s_kap}, 288
    s_cselect_b32 s61, 4096, s61
    s_add_u32 s61, s61, {WS_Y1}
    s_add_u32 s62, s61, 4096
    """)
    def out(d, so, ts):
        for i in range(8): A(f"v_cvt_pk_bf16_f32 {v(d+i)}, {v(d+2*i)}, {v(d+2*i+1)}")
        A("s_nop 1")
        for a2 in range(2):
            b = d + 4 * a2
            A(f"v_permlane32_swap_b32 {v(b)}, {v(b+2)}\nv_permlane32_swap_b32 {v(b+1)}, {v(b+3)}")
            A(f"buffer_store_dwordx4 {v(b,4)}, {v(VST)}, {srd(SRD_WS)}, s{so} offen offset:{ts*64 + a2*32}{sc}")
    out(DR(0), 61, 0); out(DR(1), 61, 1)
    A(f"s_cmp_eq_u32 s63, 1\ns_cbranch_scc1 {L('end')}")
    out(DI(0), 62, 0); out(DI(1), 62, 1)
    A.label(L('end'))
```

```python
from common import *

XBUF = 36864
FLAG_KV = WS_FLAG

def xtile_addr_setup(A, vdma, vfr, rowstride, vt0, vt1):
    A(f"""
    v_lshrrev_b32 {v(vt0)}, 3, v1
    v_and_b32 {v(vt1)}, 6, {v(vt0)}
    s_lshr_b32 s60, s{S_WAVE}, 1
    v_or_b32 {v(vt1)}, s60, {v(vt1)}
    v_and_b32 {v(vdma)}, 7, v1
    v_xor_b32 {v(vdma)}, {v(vdma)}, {v(vt1)}
    v_lshlrev_b32 {v(vdma)}, 4, {v(vdma)}
    s_lshl_b32 s60, s{S_WAVE}, 3
    v_add_u32 {v(vt0)}, s60, {v(vt0)}
    s_mov_b32 s60, {rowstride}
    v_mul_lo_u32 {v(vt0)}, {v(vt0)}, s60
    v_add_u32 {v(vdma)}, {v(vdma)}, {v(vt0)}
    """)
    A(f"""
    v_and_b32 {v(vt0)}, 6, v1
    v_bfe_u32 {v(vt1)}, v1, 4, 1
    v_or_b32 {v(vt0)}, {v(vt0)}, {v(vt1)}        ; h
    v_lshrrev_b32 {v(vt1)}, 5, v1                ; hf
    v_xor_b32 {v(vt0)}, {v(vt0)}, {v(vt1)}       ; h ^ hf
    v_and_b32 {v(vt1)}, 31, v1
    v_lshlrev_b32 {v(vt1)}, 7, {v(vt1)}
    """)
    for k in range(4):
        A(f"""
        v_xor_b32 {v(vfr+k)}, {2*k}, {v(vt0)}
        v_lshlrev_b32 {v(vfr+k)}, 4, {v(vfr+k)}
        v_add_u32 {v(vfr+k)}, {v(vfr+k)}, {v(vt1)}
        """)

def mod_P(A, s_head, s_grp, NG, sc=" sc1", flags=True, nost=0):
    L = lambda n: f"P_{n}"
    ACC = [2, 18, 34]
    XF = [50, 54, 58]
    VFR = 62
    VDMA = 66
    VST = 67
    VW = 68
    VTR = 69
    VT0, VT1 = 72, 73
    VFL = 74
    VONE = 75
    stamp(A, 0)
    A.c("P: weight staging setup")
    A(f"""
    v_lshrrev_b32 {v(VT0)}, 4, v1                 ; l>>4
    v_lshlrev_b32 {v(VT1)}, 2, {v(VT0)}
    v_and_b32 {v(VW)}, 15, v1
    v_xor_b32 {v(VW)}, {v(VW)}, {v(VT1)}
    v_lshlrev_b32 {v(VW)}, 4, {v(VW)}
    s_lshl_b32 s60, s{S_WAVE}, 2
    v_add_u32 {v(VT0)}, s60, {v(VT0)}
    v_lshlrev_b32 {v(VT0)}, 13, {v(VT0)}
    v_add_u32 {v(VW)}, {v(VW)}, {v(VT0)}
    s_lshl_b32 s60, s{s_head}, 8
    v_add_u32 {v(VW)}, s60, {v(VW)}
    v_bfe_u32 {v(VT0)}, v1, 2, 2                  ; r
    v_lshrrev_b32 {v(VT1)}, 5, v1                 ; hf
    v_lshl_add_u32 {v(VT1)}, {v(VT1)}, 3, {v(VT0)} ; 8hf + r
    v_lshlrev_b32 {v(VTR)}, 8, {v(VT1)}           ; *256
    v_bfe_u32 {v(VT1)}, v1, 4, 1                  ; fsub
    v_lshlrev_b32 {v(VT1)}, 1, {v(VT1)}
    v_bfe_u32 {v(VTR+1)}, v1, 1, 1                ; c>>1
    v_add_u32 {v(VT1)}, {v(VT1)}, {v(VTR+1)}
    s_lshl_b32 s60, s{S_WAVE}, 2
    v_add_u32 {v(VT1)}, s60, {v(VT1)}             ; chunk16
    v_lshlrev_b32 {v(VT0)}, 2, {v(VT0)}
    v_xor_b32 {v(VT1)}, {v(VT1)}, {v(VT0)}
    v_lshl_add_u32 {v(VTR)}, {v(VT1)}, 4, {v(VTR)}
    v_and_b32 {v(VT0)}, 1, v1
    v_lshl_add_u32 {v(VTR)}, {v(VT0)}, 3, {v(VTR)}
    v_add_u32 {v(VTR+1)}, 0x10000, {v(VTR)}
    v_add_u32 {v(VTR+2)}, 0x20000, {v(VTR)}
    s_lshl_b32 s61, s{S_WAVE}, 10                 ; w*1024 (lds)
    """)
    xtile_addr_setup(A, VDMA, VFR, 1152, VT0, VT1)
    A(f"""
    v_lshlrev_b32 {v(VST)}, 4, v1
    s_lshl_b32 s60, s{S_WAVE}, 11
    v_add_u32 {v(VST)}, s60, {v(VST)}
    v_mov_b32 {v(VONE)}, 1
    """)
    order = [1, 2, 0]
    srds = {0: SRD_WQ, 1: SRD_WK, 2: SRD_WV}
    def wdma(c):
        m = order[c // 9]; kb = c % 9; slot = c % 9
        for n in range(4):
            A(f"s_add_u32 m0, s61, {slot*16384 + n*4096}")
            A(f"s_mov_b32 s62, {kb*524288 + n*131072}")
            A(f"buffer_load_dwordx4 {v(VW)}, {srd(srds[m])}, s62 offen lds")
    def xdma_one(cg, s_bufbase, s_src):
        A(f"s_add_u32 m0, s{s_bufbase}, {cg*4096}")
        A(f"s_add_u32 s62, s{s_src}, {cg*128}")
        A(f"buffer_load_dwordx4 {v(VDMA)}, {srd(SRD_BX)}, s62 offen lds")
    A(f"""
    s_mov_b32 s63, s{s_grp}
    s_mul_i32 s65, s63, {XBUF}
    s_mov_b32 s64, s61
    """)
    for c in range(9):
        wdma(c)
    pending = [4] * 9
    for c in range(27):
        rest = sum(pending[1:])
        A(f"s_waitcnt vmcnt({rest})")
        pending.pop(0)
        A("s_barrier")
        m = order[c // 9]; kb = c % 9; slot = c % 9
        for ksl in range(4):
            for t in range(2):
                off = slot * 16384 + ksl * 4096 + t * 1024
                A(f"ds_read_b64_tr_b16 {wreg(m*144 + (kb*4+ksl)*4 + 2*t, 2)}, {v(VTR + (off >> 16))} offset:{off & 0xffff}")
        A("s_waitcnt lgkmcnt(0)")
        A("s_barrier")
        pass
        if c + 9 < 27:
            wdma(c + 9); pending.append(4)
        if c == 20 or c == 22:
            for cg in range(9):
                xdma_one(cg, 64, 65)
            pending.append(9)
            A(f"s_add_u32 s64, s64, {XBUF}")
            A(f"s_add_u32 s65, s65, {NG*XBUF}")
    A("s_waitcnt vmcnt(9)")
    A(f"""
    s_mov_b32 s66, 0
    s_mov_b32 s67, -1
    """)
    stamp(A, 1)
    A.label(L("loop"))
    A("s_barrier")
    def xread(ks):
        A(f"ds_read_b128 {v(XF[ks%3],4)}, {v(VFR + (ks&3))} offset:{(ks>>2)*4096}")
    xread(0); xread(1)
    for ks in range(36):
        A(f"s_waitcnt lgkmcnt({1 if ks < 35 else 0})")
        x = v(XF[ks % 3], 4)
        def mf(m):
            w = wreg(m*144 + ks*4, 4)
            c = "0" if ks == 0 else v(ACC[m], 16)
            if m == 2:
                A(f"v_mfma_f32_32x32x16_bf16 {v(ACC[m],16)}, {x}, {w}, {c}")
            else:
                A(f"v_mfma_f32_32x32x16_bf16 {v(ACC[m],16)}, {w}, {x}, {c}")
        mf(1)
        if ks + 2 < 36: xread(ks + 2)
        mf(2)
        if 1 <= ks <= 9:
            xdma_one(ks - 1, 64, 65)
        if ks == 20:
            A("s_waitcnt vmcnt(9)")
            if flags:
                A(f"""
                s_cmp_lt_i32 s67, 0
                s_cbranch_scc1 {L('nofl')}
                s_lshl_b32 s62, s67, 5
                s_add_u32 s62, s62, s{s_head}
                s_lshl_b32 s62, s62, 2
                s_add_u32 s62, s62, {FLAG_KV}
                v_mov_b32 {v(VFL)}, s62
                s_mov_b64 exec, 1
                buffer_atomic_add {v(VONE)}, {v(VFL)}, {srd(SRD_WS)}, 0 offen sc1
                s_mov_b64 exec, -1
                """)
                A.label(L("nofl"))
        mf(0)
    A(f"""
    s_add_u32 s64, s64, {XBUF}
    s_add_u32 s65, s65, {NG*XBUF}
    s_add_u32 s62, s61, {3*XBUF}
    s_cmp_ge_u32 s64, s62
    s_cselect_b32 s64, s61, s64
    s_add_u32 s66, s66, 1
    s_cmp_eq_u32 s66, 3
    s_cselect_b32 s66, 0, s66
    s_mov_b32 s62, {XBUF}
    s_cselect_b32 s62, {(-2*XBUF) & 0xffffffff}, s62
    """)
    for k in range(4):
        A(f"v_add_u32 {v(VFR+k)}, s62, {v(VFR+k)}")
    A(f"""
    s_lshl_b32 s62, s63, 5
    s_add_u32 s62, s62, s{s_head}
    s_lshl_b32 s62, s62, 13
    s_add_u32 s68, s62, {WS_KX}
    s_add_u32 s69, s62, {WS_VX}
    s_add_u32 s70, s62, {WS_QX}
    """)
    for m, so in ((1, 68), (2, 69), (0, 70)):
        if m == 0: A("s_nop 3")
        for i in range(8):
            A(f"v_cvt_pk_bf16_f32 {v(ACC[m]+i)}, {v(ACC[m]+2*i)}, {v(ACC[m]+2*i+1)}")
        s_ = sc if m != 0 else sc
        if nost: continue
        A(f"buffer_store_dwordx4 {v(ACC[m],4)}, {v(VST)}, {srd(SRD_WS)}, s{so} offen{s_}")
        A(f"buffer_store_dwordx4 {v(ACC[m]+4,4)}, {v(VST)}, {srd(SRD_WS)}, s{so} offen offset:1024{s_}")
    A(f"""
    s_mov_b32 s67, s63
    s_add_u32 s63, s63, {NG}
    s_cmp_lt_u32 s63, 64
    s_cbranch_scc1 {L('loop')}
    """)
    stamp(A, 2)
    A("s_waitcnt vmcnt(0)")
    stamp(A, 3)
    if flags:
        A(f"""
        s_lshl_b32 s62, s67, 5
        s_add_u32 s62, s62, s{s_head}
        s_lshl_b32 s62, s62, 2
        s_add_u32 s62, s62, {FLAG_KV}
        v_mov_b32 {v(VFL)}, s62
        s_mov_b64 exec, 1
        buffer_atomic_add {v(VONE)}, {v(VFL)}, {srd(SRD_WS)}, 0 offen sc1
        s_mov_b64 exec, -1
        """)
    A("s_barrier")
```

```python
from common import *
import math

L_WV = 0
L_MEMF = 139264
L_KX = 148480
L_Q = 156672
L_K = 158720
L_O = 160768
HI = 131072
PSLOT = 72 * 4096
MSLOT = 9216
SPIN = 2000000
CEXP = (128 ** -0.5) * math.log2(math.e)
def f32bits(x):
    import struct
    return struct.unpack("<I", struct.pack("<f", x))[0]

def WQ(t, kb): return wreg((t * 9 + kb) * 8, 8)
def WK(t, kb): return wreg(144 + (t * 9 + kb) * 8, 8)
def WO(j, kb2): return wreg(288 + (j * 2 + kb2) * 8, 8)

def mod_R(A, s_head, sc="", pfx="R", flags=False, D1=0, D2=0, abort="R_abort", last=63, dbg_noarm=False):
    L = lambda n: f"{pfx}_{n}"
    W = S_WAVE
    IDX, SELV = 2, 3
    WVR = 4
    vPST, vRED, vPUB, vCON, vHI, vWV0, vWV1, vWV2, vQW, vQR, vKX, vOW, vVX, vKMS, vVMS = range(12, 27)
    D0 = 28
    sSTEP, sPW, sPR, sMW, sMR, sMA, sRED, sSEG = 64, 65, 66, 67, 68, 69, 70, 71
    sLO32, sHI32, sEVEN, sN8, sG2, sL16, sM8 = 72, 74, 76, 78, 80, 82, 84
    sSEL = 86
    sT0, sT1, sT2, sSPIN = 60, 61, 62, 63
    sC = 94
    T0, T1, T2 = D0, D0 + 1, D0 + 2

    stamp(A, 0, s_id=s_head)
    A.c("R setup")
    A(f"""
    s_mov_b32 s{sLO32}, -1
    s_mov_b32 s{sLO32+1}, 0
    s_mov_b32 s{sHI32}, 0
    s_mov_b32 s{sHI32+1}, -1
    s_mov_b32 s{sEVEN}, 0x55555555
    s_mov_b32 s{sEVEN+1}, 0x55555555
    s_mov_b32 s{sN8}, 0xff00ff00
    s_mov_b32 s{sN8+1}, 0xff00ff00
    s_mov_b32 s{sL16}, 0xffff
    s_mov_b32 s{sL16+1}, 0
    s_mov_b32 s{sM8}, 0x00ff00ff
    s_mov_b32 s{sM8+1}, 0x00ff00ff
    s_mov_b32 s{sC}, {f32bits(CEXP)}
    """)
    for r in range(4):
        m = 0x03030303 << (2 * r)
        A(f"s_mov_b32 s{sSEL+2*r}, {m & 0xffffffff}")
        A(f"s_mov_b32 s{sSEL+2*r+1}, {m & 0xffffffff}")
    A(f"""
    v_mov_b32 {v(IDX)}, 0x44444444
    v_mov_b32 {v(T0)}, 0xeeeeeeee
    v_cndmask_b32 {v(IDX)}, {v(IDX)}, {v(T0)}, s[{sN8}:{sN8+1}]
    v_mov_b32 {v(SELV)}, 0x3f800000
    v_mov_b32 {v(T0)}, 0x3f80
    v_cndmask_b32 {v(SELV)}, {v(SELV)}, {v(T0)}, s[{sEVEN}:{sEVEN+1}]
    v_lshlrev_b32 {v(T0)}, 4, v1
    v_add_u32 {v(vHI)}, {HI}, {v(T0)}
    s_lshl_b32 s{sT0}, s{W}, 10
    v_add_u32 {v(vCON)}, s{sT0}, {v(vHI)}
    s_lshl_b32 s{sT0}, s{W}, 11
    v_add_u32 {v(vWV2)}, s{sT0}, {v(vHI)}
    s_lshl_b32 s{sT0}, s{W}, 12
    v_add_u32 {v(vWV0)}, s{sT0}, {v(T0)}
    v_add_u32 {v(vWV1)}, 0x10000, {v(vWV0)}
    s_lshl_b32 s{sT0}, s{W}, 5
    s_add_u32 s{sT0}, s{sT0}, s{s_head}
    s_cmp_lt_u32 s{sT0}, 72
    s_cselect_b32 s{sRED}, 1, 0
    s_lshl_b32 s{sT1}, s{sT0}, 12
    v_add_u32 {v(vRED)}, s{sT1}, {v(T0)}
    s_lshl_b32 s{sT1}, s{sT0}, 7
    v_bfe_u32 {v(T1)}, v1, 4, 1
    v_lshlrev_b32 {v(T1)}, 6, {v(T1)}
    v_bfe_u32 {v(T2)}, v1, 5, 1
    v_lshl_add_u32 {v(T1)}, {v(T2)}, 5, {v(T1)}
    v_bfe_u32 {v(T2)}, v1, 3, 1
    v_lshl_add_u32 {v(T1)}, {v(T2)}, 4, {v(T1)}
    v_bfe_u32 {v(T2)}, v1, 1, 2
    v_lshl_add_u32 {v(T1)}, {v(T2)}, 2, {v(T1)}
    v_add_u32 {v(vPUB)}, s{sT1}, {v(T1)}
    v_bfe_u32 {v(T1)}, v1, 4, 1
    v_lshlrev_b32 {v(T1)}, 1, {v(T1)}
    v_bfe_u32 {v(T2)}, v1, 5, 1
    v_add_u32 {v(T1)}, {v(T1)}, {v(T2)}          ; jj
    v_lshlrev_b32 {v(T1)}, 2, {v(T1)}
    v_add_u32 {v(T1)}, s{W}, {v(T1)}             ; t
    v_lshlrev_b32 {v(T1)}, 1, {v(T1)}
    v_bfe_u32 {v(T2)}, v1, 3, 1
    v_add_u32 {v(T1)}, {v(T1)}, {v(T2)}          ; unit
    v_lshlrev_b32 {v(T1)}, 12, {v(T1)}
    v_and_b32 {v(T2)}, 7, v1
    v_lshl_add_u32 {v(T1)}, {v(T2)}, 4, {v(T1)}
    s_lshl_b32 s{sT1}, s{s_head}, 7
    v_add_u32 {v(vPST)}, s{sT1}, {v(T1)}
    v_and_b32 {v(T1)}, 15, v1
    v_bfe_u32 {v(T2)}, v1, 5, 1
    v_lshl_add_u32 {v(T1)}, {v(T2)}, 4, {v(T1)}
    v_lshlrev_b32 {v(T1)}, 4, {v(T1)}
    v_bfe_u32 {v(T2)}, v1, 4, 1
    v_lshl_add_u32 {v(T1)}, {v(T2)}, 3, {v(T1)}
    s_lshl_b32 s{sT1}, s{W}, 9
    s_add_u32 s{sT1}, s{sT1}, {HI}
    v_add_u32 {v(vQW)}, s{sT1}, {v(T1)}
    v_and_b32 {v(T1)}, 15, v1
    v_bfe_u32 {v(T2)}, v1, 5, 1
    v_lshl_add_u32 {v(T1)}, {v(T2)}, 4, {v(T1)}
    v_lshlrev_b32 {v(T1)}, 3, {v(T1)}
    v_bfe_u32 {v(T2)}, v1, 4, 1
    v_lshl_add_u32 {v(T1)}, {v(T2)}, 8, {v(T1)}
    s_lshl_b32 s{sT1}, s{W}, 9
    v_add_u32 {v(vVMS)}, s{sT1}, {v(T1)}
    v_bfe_u32 {v(T1)}, v1, 2, 2
    v_bfe_u32 {v(T2)}, v1, 4, 1
    v_lshl_add_u32 {v(T1)}, {v(T2)}, 2, {v(T1)}
    v_bfe_u32 {v(T2)}, v1, 5, 1
    v_lshl_add_u32 {v(T1)}, {v(T2)}, 4, {v(T1)}
    v_lshlrev_b32 {v(T1)}, 4, {v(T1)}
    v_and_b32 {v(T2)}, 1, v1
    v_lshl_add_u32 {v(T1)}, {v(T2)}, 3, {v(T1)}
    v_add_u32 {v(vQR)}, {HI}, {v(T1)}
    v_and_b32 {v(T1)}, 7, v1
    v_bfe_u32 {v(T2)}, v1, 3, 1
    v_lshl_add_u32 {v(T1)}, {v(T2)}, 4, {v(T1)}
    v_lshlrev_b32 {v(T1)}, 4, {v(T1)}
    v_lshrrev_b32 {v(T2)}, 4, v1
    v_lshl_add_u32 {v(T1)}, {v(T2)}, 9, {v(T1)}
    v_add_u32 {v(vKX)}, {HI}, {v(T1)}
    v_and_b32 {v(T1)}, 7, v1
    v_bfe_u32 {v(T2)}, v1, 5, 1
    v_lshl_add_u32 {v(T1)}, {v(T2)}, 3, {v(T1)}
    v_lshlrev_b32 {v(T1)}, 4, {v(T1)}
    v_bfe_u32 {v(T2)}, v1, 4, 1
    v_lshl_add_u32 {v(T1)}, {v(T2)}, 3, {v(T1)}
    s_lshl_b32 s{sT1}, s{W}, 9
    s_add_u32 s{sT1}, s{sT1}, {HI}
    v_add_u32 {v(vOW)}, s{sT1}, {v(T1)}
    ; vVX = w*2048 + g*512 + (l&15)*16
    v_and_b32 {v(T1)}, 15, v1
    v_lshlrev_b32 {v(T1)}, 4, {v(T1)}
    v_lshrrev_b32 {v(T2)}, 4, v1
    v_lshl_add_u32 {v(T1)}, {v(T2)}, 9, {v(T1)}
    s_lshl_b32 s{sT1}, s{W}, 11
    v_add_u32 {v(vVX)}, s{sT1}, {v(T1)}
    ; vKMS = w*512 + g*128 + (l&7)*16
    v_and_b32 {v(T1)}, 7, v1
    v_lshlrev_b32 {v(T1)}, 4, {v(T1)}
    v_lshrrev_b32 {v(T2)}, 4, v1
    v_lshl_add_u32 {v(T1)}, {v(T2)}, 7, {v(T1)}
    s_lshl_b32 s{sT1}, s{W}, 9
    v_add_u32 {v(vKMS)}, s{sT1}, {v(T1)}
    """)
    ARM = D0 + 4
    A(f"""
    v_mov_b32 {v(ARM)}, -1
    v_mov_b32 {v(ARM+1)}, -1
    v_mov_b32 {v(ARM+2)}, -1
    v_mov_b32 {v(ARM+3)}, -1
    s_cmp_eq_u32 s{sRED}, 0
    s_cbranch_scc1 {L('noarm')}
    """)
    for sl in range(2):
        A(f"s_mov_b32 s{sT0}, {WS_PART + sl*PSLOT}")
        for i in range(4):
            A(f"buffer_store_dwordx4 {v(ARM,4)}, {v(vRED)}, {srd(SRD_WS)}, s{sT0} offen offset:{i*1024}{sc}")
    A(f"s_mov_b64 exec, s[{sEVEN}:{sEVEN+1}]")
    for sl in range(3):
        A(f"s_mov_b32 s{sT0}, {WS_MEMB + sl*MSLOT}")
        A(f"buffer_store_dword {v(ARM)}, {v(vPUB)}, {srd(SRD_WS)}, s{sT0} offen{sc}")
    A("s_mov_b64 exec, -1")
    A("s_waitcnt vmcnt(0)")
    for sl in range(2):
        A(f"s_mov_b32 s{sT0}, {WS_PART + sl*PSLOT}")
        for i in range(4):
            A(f"buffer_load_dwordx4 {v(D0+8+4*i,4)}, {v(vRED)}, {srd(SRD_WS)}, s{sT0} offen offset:{i*1024} sc1")
    for sl in range(3):
        A(f"s_mov_b32 s{sT0}, {WS_MEMB + sl*MSLOT}")
        A(f"buffer_load_dword {v(D0+24)}, {v(vPUB)}, {srd(SRD_WS)}, s{sT0} offen sc1")
    A("s_waitcnt vmcnt(0)")
    A.label(L('noarm'))
    A(f"""
    s_barrier
    s_cmp_lg_u32 s{W}, 0
    s_cbranch_scc1 {L('armed')}
    v_mov_b32 {v(T0)}, 1
    v_mov_b32 {v(T1)}, {DBG_RARM}
    s_mov_b64 exec, 1
    buffer_atomic_add {v(T0)}, {v(T1)}, {srd(SRD_DBG)}, 0 offen sc1
    s_mov_b64 exec, -1
    """)
    A.label(L('armed'))
    vWA, vWB, vTA, vTB = D0, D0 + 1, D0 + 2, D0 + 5
    X0, X1, X2 = D0 + 8, D0 + 9, D0 + 10
    A.c("R weight load: f(row) = 2*b0 + 4*b2 + 8*b3 ; wave w handles rows 16n + 4w + (l>>4)")
    A(f"""
    v_bfe_u32 {v(X0)}, v1, 4, 1
    v_lshlrev_b32 {v(X0)}, 1, {v(X0)}
    s_lshl_b32 s{sT0}, s{W}, 2
    v_or_b32 {v(X0)}, s{sT0}, {v(X0)}             ; f
    v_and_b32 {v(X1)}, 15, v1
    v_xor_b32 {v(X1)}, {v(X1)}, {v(X0)}
    v_lshlrev_b32 {v(X1)}, 4, {v(X1)}
    v_lshrrev_b32 {v(X0)}, 4, v1
    v_add_u32 {v(X0)}, s{sT0}, {v(X0)}            ; row = 4w + (l>>4)
    v_lshlrev_b32 {v(vWA)}, 13, {v(X0)}
    v_add_u32 {v(vWA)}, {v(vWA)}, {v(X1)}
    s_lshl_b32 s{sT1}, s{s_head}, 8
    v_add_u32 {v(vWA)}, s{sT1}, {v(vWA)}
    v_mul_u32_u24 {v(vWB)}, 1152, {v(X0)}
    v_add_u32 {v(vWB)}, {v(vWB)}, {v(X1)}
    s_mul_i32 s{sT1}, s{s_head}, 147456
    v_add_u32 {v(vWB)}, s{sT1}, {v(vWB)}
    v_bfe_u32 {v(X0)}, v1, 2, 1                   ; r&1
    v_bfe_u32 {v(X1)}, v1, 4, 1                   ; g&1
    v_lshl_add_u32 {v(X2)}, {v(X1)}, 2, {v(X0)}   ; 4(g&1) + (r&1)
    v_lshlrev_b32 {v(X0)}, 1, {v(X0)}
    v_lshl_add_u32 {v(X0)}, {v(X1)}, 2, {v(X0)}
    v_bfe_u32 {v(X1)}, v1, 3, 1                   ; r>>1
    v_lshl_add_u32 {v(X2)}, {v(X1)}, 3, {v(X2)}
    v_lshl_add_u32 {v(X0)}, {v(X1)}, 3, {v(X0)}   ; f
    v_bfe_u32 {v(X1)}, v1, 5, 1
    v_lshl_add_u32 {v(X2)}, {v(X1)}, 4, {v(X2)}   ; row
    v_lshlrev_b32 {v(X2)}, 8, {v(X2)}
    v_and_b32 {v(X1)}, 1, v1
    v_lshl_add_u32 {v(X2)}, {v(X1)}, 3, {v(X2)}   ; row*256 + (c&1)*8
    v_bfe_u32 {v(X1)}, v1, 1, 1                   ; c>>1
    v_xor_b32 {v(X0)}, {v(X0)}, {v(X1)}           ; f ^ (c>>1)
    """)
    def tr_addrs(tileA_expr, tileB_expr):
        for (vt, ex) in ((vTA, tileA_expr), (vTB, tileB_expr)):
            A(ex)
            A(f"""
            v_xor_b32 {v(vt)}, s{sT0}, {v(X0)}
            v_lshl_add_u32 {v(vt)}, {v(vt)}, 4, {v(X2)}
            v_add_u32 {v(vt+1)}, 0x10000, {v(vt)}
            v_add_u32 {v(vt+2)}, 0x20000, {v(vt)}
            """)
    chunks = [("q", kb) for kb in range(9)] + [("k", kb) for kb in range(9)] + \
             [("o", (p, kb2)) for p in range(5) for kb2 in range(2)] + [("v", kb) for kb in range(9)]
    slot_of = lambda c: (c - 28) % 9
    A(f"s_lshl_b32 s{sT2}, s{W}, 10")
    def wdma(c):
        kind, ix = chunks[c]; sl = slot_of(c)
        for n in range(4):
            A(f"s_add_u32 m0, s{sT2}, {sl*16384 + n*4096}")
            if kind == "o":
                p, kb2 = ix
                A(f"s_mov_b32 s{sT1}, {(kb2*64 + n*16)*1152 + p*256}")
                A(f"buffer_load_dwordx4 {v(vWB)}, {srd(SRD_WO)}, s{sT1} offen lds")
            else:
                A(f"s_mov_b32 s{sT1}, {ix*524288 + n*131072}")
                A(f"buffer_load_dwordx4 {v(vWA)}, {srd({'q': SRD_WQ, 'k': SRD_WK, 'v': SRD_WV}[kind])}, s{sT1} offen lds")
    for c in range(9): wdma(c)
    tr_addrs(f"s_lshl_b32 s{sT0}, s{W}, 2", f"s_lshl_b32 s{sT0}, s{W}, 2\ns_add_u32 s{sT0}, s{sT0}, 2")
    def trread(dst_fn, vt, sl):
        for t, ro in enumerate((0, 2, 32, 34)):
            off = sl * 16384 + ro * 256
            A(f"ds_read_b64_tr_b16 {dst_fn(t)}, {v(vt + (off >> 16))} offset:{off & 0xffff}")
    def sub(base, t):
        return wreg(base + 2 * t, 2)
    NCH = len(chunks)
    VS = D0 + 12
    for c in range(NCH):
        kind, ix = chunks[c]; sl = slot_of(c)
        out = min(NCH - 1 - c, 8) * 4
        A(f"s_waitcnt vmcnt({out})")
        A("s_barrier")
        if c == 18:
            tr_addrs(f"s_lshl_b32 s{sT0}, s{W}, 1", f"s_lshl_b32 s{sT0}, s{W}, 1\ns_add_u32 s{sT0}, s{sT0}, 8")
        if c == 28:
            tr_addrs(f"s_lshl_b32 s{sT0}, s{W}, 2", f"s_lshl_b32 s{sT0}, s{W}, 2\ns_add_u32 s{sT0}, s{sT0}, 2")
        if kind in "qk":
            base = 0 if kind == "q" else 144
            trread(lambda t: sub(base + (0 * 9 + ix) * 8, t), vTA, sl)
            trread(lambda t: sub(base + (1 * 9 + ix) * 8, t), vTB, sl)
        elif kind == "o":
            p, kb2 = ix
            trread(lambda t: sub(288 + ((2 * p) * 2 + kb2) * 8, t), vTA, sl)
            if 2 * p + 1 < 9:
                trread(lambda t: sub(288 + ((2 * p + 1) * 2 + kb2) * 8, t), vTB, sl)
        else:
            trread(lambda t: v(VS + 2 * t, 2), vTA, sl)
            if ix < 8: trread(lambda t: v(VS + 8 + 2 * t, 2), vTB, sl)
            else: trread(lambda t: v(WVR + 2 * t, 2), vTB, sl)
        A("s_waitcnt lgkmcnt(0)")
        A("s_barrier")
        if kind == "v":
            if ix < 8:
                vb = vWV0 if ix < 4 else vWV1
                o = (ix & 3) * 16384
                for q in range(4):
                    A(f"ds_write_b128 {v(vb)}, {v(VS+4*q,4)} offset:{o + q*1024}")
            else:
                for q in range(2):
                    A(f"ds_write_b128 {v(vWV2)}, {v(VS+4*q,4)} offset:{q*1024}")
        if c + 9 < NCH: wdma(c + 9)
    stamp(A, 1, s_id=s_head)
    A(f"""
    s_mov_b32 s{sSPIN}, {SPIN}
    v_mov_b32 {v(X1)}, {DBG_RARM}
{L('warm')}:
    buffer_load_dword {v(X0)}, {v(X1)}, {srd(SRD_DBG)}, 0 offen sc1
    s_sub_u32 s{sSPIN}, s{sSPIN}, 1
    s_cbranch_scc1 {abort}
    s_waitcnt vmcnt(0)
    v_cmp_gt_u32 vcc, 32, {v(X0)}
    s_cbranch_vccnz {L('warm')}
    v_and_b32 {v(X0)}, 7, v1
    v_mul_u32_u24 {v(X0)}, 1152, {v(X0)}
    v_lshrrev_b32 {v(X1)}, 3, v1
    v_lshl_add_u32 {v(X0)}, {v(X1)}, 4, {v(X0)}
    s_lshl_b32 s{sT0}, s{W}, 7
    """)
    CA, CB, CC = D0 + 12, D0 + 16, D0 + 20
    A(f"""
    buffer_load_dwordx4 {v(CA,4)}, {v(X0)}, {srd(SRD_M0)}, s{sT0} offen
    buffer_load_dwordx4 {v(CB,4)}, {v(X0)}, {srd(SRD_M0)}, s{sT0} offen offset:512
    buffer_load_dwordx4 {v(CC,4)}, {v(X0)}, {srd(SRD_M0)}, 0 offen offset:1024
    s_mov_b32 s{sSTEP}, 0
    s_mov_b32 s{sPW}, {WS_PART}
    s_mov_b32 s{sPR}, {WS_PART + PSLOT}
    s_mov_b32 s{sMA}, {WS_MEMB}
    s_mov_b32 s{sMW}, {WS_MEMB + MSLOT}
    s_mov_b32 s{sMR}, {WS_MEMB + 2*MSLOT}
    s_lshl_b32 s{sSEG}, s{s_head}, 13
    s_waitcnt vmcnt(0)
    s_branch {L('consok')}
    """)
    ACC = D0
    AS = [D0 + 24, D0 + 28]
    WS_ = [D0 + 32, D0 + 40]
    WS3 = None
    A.label(L('loop'))
    A(f"""
    s_mov_b32 s{sSPIN}, {SPIN}
    s_sub_u32 s{sT0}, s{sMW}, {HI}
    s_add_u32 s{sT1}, s{sT0}, 4096
    s_add_u32 s{sT2}, s{sT0}, 8192
    v_mov_b32 {v(CC)}, 0
    v_mov_b32 {v(CC+1)}, 0
    v_mov_b32 {v(CC+2)}, 0
    v_mov_b32 {v(CC+3)}, 0
{L('cpoll')}:
    buffer_load_dwordx4 {v(CA,4)}, {v(vCON)}, {srd(SRD_WS)}, s{sT0} offen sc1
    buffer_load_dwordx4 {v(CB,4)}, {v(vCON)}, {srd(SRD_WS)}, s{sT1} offen sc1
    s_cmp_lg_u32 s{W}, 3
    s_cbranch_scc1 {L('cp2')}
    buffer_load_dwordx4 {v(CC,4)}, {v(vHI)}, {srd(SRD_WS)}, s{sT2} offen sc1
{L('cp2')}:
    s_sub_u32 s{sSPIN}, s{sSPIN}, 1
    s_cbranch_scc1 {abort}
    s_waitcnt vmcnt(0)
    v_max3_u32 {v(T0)}, {v(CA)}, {v(CA+1)}, {v(CA+2)}
    v_max3_u32 {v(T1)}, {v(CA+3)}, {v(CB)}, {v(CB+1)}
    v_max3_u32 {v(T0)}, {v(T0)}, {v(CB+2)}, {v(CB+3)}
    v_max3_u32 {v(T1)}, {v(T1)}, {v(CC)}, {v(CC+1)}
    v_max3_u32 {v(T0)}, {v(T0)}, {v(CC+2)}, {v(CC+3)}
    v_max_u32 {v(T0)}, {v(T0)}, {v(T1)}
    v_cmp_eq_u32 vcc, -1, {v(T0)}
    s_cbranch_vccnz {L('cpoll')}
    s_mov_b32 s{sT0}, s{sMA}
    s_mov_b32 s{sMA}, s{sMW}
    s_mov_b32 s{sMW}, s{sMR}
    s_mov_b32 s{sMR}, s{sT0}
    s_mov_b32 s{sT0}, s{sPW}
    s_mov_b32 s{sPW}, s{sPR}
    s_mov_b32 s{sPR}, s{sT0}
    """)
    A.label(L('consok'))
    A(f"""
    ds_write_b128 {v(vCON)}, {v(CA,4)} offset:{L_MEMF-HI}
    ds_write_b128 {v(vCON)}, {v(CB,4)} offset:{L_MEMF-HI+4096}
    s_cmp_lg_u32 s{W}, 3
    s_cbranch_scc1 {L('cw2')}
    ds_write_b128 {v(vHI)}, {v(CC,4)} offset:{L_MEMF-HI+8192}
{L('cw2')}:
    """)
    def wvread(kb, tv, dst):
        vb = vWV0 if kb < 4 else (vWV1 if kb < 8 else vWV2)
        o = ((kb & 3) * 16384 if kb < 8 else 0) + tv * 2048
        A(f"ds_read_b128 {v(dst,4)}, {v(vb)} offset:{o}")
        A(f"ds_read_b128 {v(dst+4,4)}, {v(vb)} offset:{o+1024}")
    for i in range(12): A(f"v_mov_b32 {v(ACC+i)}, 0")
    A("s_waitcnt lgkmcnt(0)")
    for i in range(12, 24): A(f"v_mov_b32 {v(ACC+i)}, 0")
    A("s_barrier")
    def aread(kb):
        A(f"ds_read_b128 {v(AS[kb&1],4)}, {v(vHI)} offset:{L_MEMF-HI+kb*1024}")
    aread(0)
    wvread(0, 0, WS_[0])
    aread(1)
    wvread(0, 1, WS_[1])
    A(f"""
    s_lshl_b32 s{sT0}, s{W}, 11
    s_add_u32 m0, s{sT0}, {L_KX}
    s_add_u32 s{sT1}, s{sSEG}, {WS_KX - HI}
    buffer_load_dwordx4 {v(vWV2)}, {srd(SRD_WS)}, s{sT1} offen sc1 lds
    buffer_load_dwordx4 {v(vWV2)}, {srd(SRD_WS)}, s{sT1} offen offset:1024 sc1 lds
    """)
    A(f"""
    s_cmp_eq_u32 s{sRED}, 0
    s_cbranch_scc1 {L('nora')}
    v_mov_b32 {v(D0+48)}, -1
    v_mov_b32 {v(D0+49)}, -1
    v_mov_b32 {v(D0+50)}, -1
    v_mov_b32 {v(D0+51)}, -1
    """)
    for i in range(0 if dbg_noarm else 4):
        A(f"buffer_store_dwordx4 {v(D0+48,4)}, {v(vRED)}, {srd(SRD_WS)}, s{sPR} offen offset:{i*1024}{sc}")
    A.label(L('nora'))
    def sm(acc, a_, b):
        A(f"v_smfmac_f32_16x16x64_bf16 {v(acc,4)}, {a_}, {b}, {v(IDX)}")
    q = ["A0", "W00", "W00", "A1", "W01", "W01"]
    def wait_for(tag):
        if tag not in q: return
        idx = max(i for i, t in enumerate(q) if t == tag)
        rest = len(q) - 1 - idx
        A(f"s_waitcnt lgkmcnt({rest})")
        del q[:idx + 1]
    for kb in range(9):
        a_ = v(AS[kb & 1], 4)
        wait_for(f"A{kb}")
        sm(ACC + 0, a_, WQ(0, kb)); sm(ACC + 4, a_, WQ(1, kb))
        wait_for(f"W{kb}0")
        sm(ACC + 16, a_, v(WS_[0], 8))
        if kb + 1 < 9:
            wvread(kb + 1, 0, WS_[0]); q += [f"W{kb+1}0"] * 2
        sm(ACC + 8, a_, WK(0, kb)); sm(ACC + 12, a_, WK(1, kb))
        if kb < 8:
            wait_for(f"W{kb}1")
            sm(ACC + 20, a_, v(WS_[1], 8))
            if kb + 2 < 9:
                aread(kb + 2); q.append(f"A{kb+2}")
            if kb + 1 < 8:
                wvread(kb + 1, 1, WS_[1]); q += [f"W{kb+1}1"] * 2
        else:
            sm(ACC + 20, a_, v(WVR, 8))
    VXF = D0 + 24
    A(f"""
    s_add_u32 s{sT1}, s{sSEG}, {WS_VX}
    buffer_load_dwordx4 {v(VXF,4)}, {v(vVX)}, {srd(SRD_WS)}, s{sT1} offen sc1
    buffer_load_dwordx4 {v(VXF+4,4)}, {v(vVX)}, {srd(SRD_WS)}, s{sT1} offen offset:256 sc1
    s_lshr_b32 s{sT2}, s{sSEG}, 2
    s_nop 1
    """)
    def swapadd(a0, b0, n=4):
        for r in range(n): A(f"v_permlane32_swap_b32 {v(a0+r)}, {v(b0+r)}")
        for r in range(n): A(f"v_add_f32 {v(a0+r)}, {v(a0+r)}, {v(b0+r)}")
    def pk2(d, s_):
        A(f"v_cvt_pk_bf16_f32 {v(d)}, {v(s_)}, {v(s_+1)}")
        A(f"v_cvt_pk_bf16_f32 {v(d+1)}, {v(s_+2)}, {v(s_+3)}")
    swapadd(ACC + 0, ACC + 4); pk2(ACC + 0, ACC + 0)
    A(f"ds_write_b64 {v(vQW)}, {v(ACC,2)} offset:{L_Q-HI}")
    swapadd(ACC + 8, ACC + 12); pk2(ACC + 8, ACC + 8)
    A(f"ds_write_b64 {v(vQW)}, {v(ACC+8,2)} offset:{L_K-HI}")
    swapadd(ACC + 16, ACC + 20); pk2(ACC + 16, ACC + 16)
    ZP = ACC + 16
    VM0, VM1 = ACC + 18, ACC + 20
    A(f"""
    s_add_u32 s{sT1}, s{sT2}, {WS_VM}
    buffer_store_dwordx2 {v(ZP,2)}, {v(vVMS)}, {srd(SRD_WS)}, s{sT1} offen sc1
    v_cndmask_b32 {v(VM0)}, 0, {v(ZP)}, s[{sLO32}:{sLO32+1}]
    v_cndmask_b32 {v(VM0+1)}, 0, {v(ZP+1)}, s[{sLO32}:{sLO32+1}]
    v_cndmask_b32 {v(VM1)}, 0, {v(ZP)}, s[{sHI32}:{sHI32+1}]
    v_cndmask_b32 {v(VM1+1)}, 0, {v(ZP+1)}, s[{sHI32}:{sHI32+1}]
    s_waitcnt vmcnt(3) lgkmcnt(0)
    s_barrier
    """)
    SB = D0 + 32
    QF = [D0 + 0, D0 + 4]; KF = [D0 + 8, D0 + 12]
    KXF = [D0 + 44]
    def qk_reads(fb):
        b = fb & 1
        for (dst, base) in ((QF[b], L_Q), (KF[b], L_K)):
            A(f"ds_read_b64_tr_b16 {v(dst,2)}, {v(vQR)} offset:{base-HI+fb*512}")
            A(f"ds_read_b64_tr_b16 {v(dst+2,2)}, {v(vQR)} offset:{base-HI+fb*512+128}")
    def kx_read(fb, kt):
        A(f"ds_read_b128 {v(KXF[0]+4*kt,4)}, {v(vKX)} offset:{L_KX-HI+fb*2048+kt*128}")
    q = []
    qk_reads(0); q += ["Q0"] * 2 + ["K0"] * 2
    kx_read(0, 0); q.append("X00"); kx_read(0, 1); q.append("X01")
    qk_reads(1); q += ["Q1"] * 2 + ["K1"] * 2
    def mf(d, a_, b_, first):
        A(f"v_mfma_f32_16x16x32_bf16 {v(d,4)}, {a_}, {b_}, {'0' if first else v(d,4)}")
    for fb in range(4):
        b = fb & 1
        wait_for(f"K{fb}")
        mf(SB + 8, v(KF[b], 4), v(QF[b], 4), fb == 0)
        lab = L(f'nkm{fb}')
        A(f"""
        s_cmp_lg_u32 s{W}, {fb}
        s_cbranch_scc1 {lab}
        s_add_u32 s{sT1}, s{sT2}, {WS_KM}
        s_mov_b64 exec, s[{sM8}:{sM8+1}]
        buffer_store_dwordx4 {v(KF[b],4)}, {v(vKMS)}, {srd(SRD_WS)}, s{sT1} offen sc1
        s_mov_b64 exec, -1
{lab}:
        """)
        wait_for(f"X{fb}0")
        mf(SB + 0, v(KXF[0], 4), v(QF[b], 4), fb == 0)
        if fb < 3: kx_read(fb + 1, 0); q.append(f"X{fb+1}0")
        wait_for(f"X{fb}1")
        mf(SB + 4, v(KXF[0] + 4, 4), v(QF[b], 4), fb == 0)
        if fb < 3: kx_read(fb + 1, 1); q.append(f"X{fb+1}1")
        if fb + 2 < 4:
            qk_reads(fb + 2); q += [f"Q{fb+2}"] * 2 + [f"K{fb+2}"] * 2
    A(f"""
    s_cmp_eq_u32 s{sSTEP}, {last}
    s_cbranch_scc1 {L('done')}
    """)
    ON = D0 + 44
    for i in range(4): A(f"v_mov_b32 {v(ON+i)}, 0x3f803f80")
    for i in range(2): A(f"v_mov_b32 {v(ON+4+i)}, 0x3f003f00")
    M0_, M1_ = D0 + 0, D0 + 1
    A(f"""
    s_nop 1
    v_max3_f32 {v(M0_)}, {v(SB+8)}, {v(SB+9)}, {v(SB+10)}
    v_max3_f32 {v(M1_)}, {v(SB+11)}, {v(SB+0)}, {v(SB+1)}
    v_max3_f32 {v(M0_)}, {v(M0_)}, {v(SB+2)}, {v(SB+3)}
    v_max3_f32 {v(M1_)}, {v(M1_)}, {v(SB+4)}, {v(SB+5)}
    v_max3_f32 {v(M0_)}, {v(M0_)}, {v(SB+6)}, {v(SB+7)}
    v_max_f32 {v(M0_)}, {v(M0_)}, {v(M1_)}
    v_mov_b32 {v(M1_)}, {v(M0_)}
    s_nop 1
    v_permlane32_swap_b32 {v(M0_)}, {v(M1_)}
    v_max_f32 {v(M0_)}, {v(M0_)}, {v(M1_)}
    v_mov_b32 {v(M1_)}, {v(M0_)}
    s_nop 1
    v_permlane16_swap_b32 {v(M0_)}, {v(M1_)}
    v_max_f32 {v(M0_)}, {v(M0_)}, {v(M1_)}
    v_mul_f32 {v(M0_)}, s{sC}, {v(M0_)}
    """)
    for i in range(12):
        A(f"v_fma_f32 {v(SB+i)}, {v(SB+i)}, s{sC}, -{v(M0_)}")
    for i in range(12):
        A(f"v_exp_f32 {v(SB+i)}, {v(SB+i)}")
    PX, PM = D0 + 4, D0 + 8
    A("s_nop 0")
    for i in range(4): A(f"v_cvt_pk_bf16_f32 {v(PX+i)}, {v(SB+2*i)}, {v(SB+2*i+1)}")
    for i in range(2): A(f"v_cvt_pk_bf16_f32 {v(PM+i)}, {v(SB+8+2*i)}, {v(SB+8+2*i+1)}")
    OT, LS = SB, SB + 8
    A(f"""
    s_waitcnt vmcnt(2)
    s_nop 0
    v_mfma_f32_16x16x32_bf16 {v(LS,4)}, {v(ON,4)}, {v(PX,4)}, 0
    v_mfma_f32_16x16x32_bf16 {v(OT,4)}, {v(VXF,4)}, {v(PX,4)}, 0
    v_mfma_f32_16x16x32_bf16 {v(OT+4,4)}, {v(VXF+4,4)}, {v(PX,4)}, 0
    s_nop 7
    v_mfma_f32_16x16x16_bf16 {v(LS,4)}, {v(ON+4,2)}, {v(PM,2)}, {v(LS,4)}
    v_mfma_f32_16x16x16_bf16 {v(OT,4)}, {v(VM0,2)}, {v(PM,2)}, {v(OT,4)}
    v_mfma_f32_16x16x16_bf16 {v(OT+4,4)}, {v(VM1,2)}, {v(PM,2)}, {v(OT+4,4)}
    s_nop 7
    v_rcp_f32 {v(M0_)}, {v(LS)}
    s_nop 1
    """)
    for i in range(4): A(f"v_mul_f32 {v(OT+i)}, {v(OT+i)}, {v(M0_)}")
    pk2(OT, OT)
    A(f"ds_write_b64 {v(vOW)}, {v(OT,2)} offset:{L_O-HI}")
    for i in range(4): A(f"v_mul_f32 {v(OT+4+i)}, {v(OT+4+i)}, {v(M0_)}")
    pk2(OT + 4, OT + 4)
    A(f"ds_write_b64 {v(vOW)}, {v(OT+4,2)} offset:{L_O-HI+256}")
    WA = D0
    OF = D0 + 40
    for i in range(32): A(f"v_mov_b32 {v(WA+i)}, 0")
    A("s_waitcnt lgkmcnt(0)")
    for i in range(32, 36): A(f"v_mov_b32 {v(WA+i)}, 0")
    A(f"""
    s_barrier
    ds_read_b128 {v(OF,4)}, {v(vHI)} offset:{L_O-HI}
    ds_read_b128 {v(OF+4,4)}, {v(vHI)} offset:{L_O-HI+1024}
    """)
    def group_out(j0, n, soff):
        a0 = WA + 4 * j0
        if n == 4:
            swapadd(a0, a0 + 4); swapadd(a0 + 8, a0 + 12)
            pk2(a0, a0); pk2(a0 + 2, a0 + 8)
        else:
            for r in range(4): A(f"v_mov_b32 {v(a0+4+r)}, {v(a0+r)}")
            A("s_nop 1")
            swapadd(a0, a0 + 4)
            pk2(a0, a0); pk2(a0 + 2, a0)
        A("s_nop 1")
        A(f"v_permlane16_swap_b32 {v(a0)}, {v(a0+2)}")
        A(f"v_permlane16_swap_b32 {v(a0+1)}, {v(a0+3)}")
        for r in range(4): A(f"v_min_u32 {v(a0+r)}, -2, {v(a0+r)}")
    A("s_waitcnt lgkmcnt(1)")
    for j in range(9):
        sm(WA + 4 * j, v(OF, 4), WO(j, 0))
        if j == 0: A("s_waitcnt lgkmcnt(0)")
        sm(WA + 4 * j, v(OF + 4, 4), WO(j, 1))
        if j == 5:
            A("s_nop 3")
            group_out(0, 4, None)
            A(f"buffer_store_dwordx4 {v(WA,4)}, {v(vPST)}, {srd(SRD_WS)}, s{sPW} offen{sc}")
    A(f"s_add_u32 s{sT0}, s{sPW}, 131072")
    A(f"s_add_u32 s{sT1}, s{sPW}, 262144")
    A("s_nop 3")
    group_out(4, 4, None)
    A(f"buffer_store_dwordx4 {v(WA+16,4)}, {v(vPST)}, {srd(SRD_WS)}, s{sT0} offen{sc}")
    a0 = WA + 32
    for r in range(4): A(f"v_mov_b32 {v(a0+4+r)}, {v(a0+r)}")
    A("s_nop 1")
    swapadd(a0, a0 + 4)
    A(f"""
    v_cvt_pk_bf16_f32 {v(a0+4)}, {v(a0)}, {v(a0+1)}
    v_cvt_pk_bf16_f32 {v(a0+5)}, {v(a0+2)}, {v(a0+3)}
    v_mov_b32 {v(a0+6)}, {v(a0+4)}
    v_mov_b32 {v(a0+7)}, {v(a0+5)}
    s_nop 1
    v_permlane16_swap_b32 {v(a0+4)}, {v(a0+6)}
    v_permlane16_swap_b32 {v(a0+5)}, {v(a0+7)}
    """)
    for r in range(4): A(f"v_min_u32 {v(a0+4+r)}, -2, {v(a0+4+r)}")
    A(f"""
    s_mov_b64 exec, s[{sL16}:{sL16+1}]
    buffer_store_dwordx4 {v(a0+4,4)}, {v(vPST)}, {srd(SRD_WS)}, s{sT1} offen{sc}
    s_mov_b64 exec, -1
    s_add_u32 s{sSTEP}, s{sSTEP}, 1
    s_add_u32 s{sSEG}, s{sSEG}, {32*8192}
    s_cmp_eq_u32 s{sRED}, 0
    s_cbranch_scc1 {L('loop')}
    """)
    SEL = D0 + 44; RB = D0 + 0; RD = D0 + 16; RT = D0 + 20
    for r in range(4):
        A(f"v_cndmask_b32 {v(SEL+r)}, 0, {v(SELV)}, s[{sSEL+2*r}:{sSEL+2*r+1}]")
    A(f"v_mov_b32 {v(D0+48)}, -1")
    A(f"s_mov_b32 s{sSPIN}, {SPIN}")
    A.label(L('rpoll'))
    for i in range(4):
        A(f"buffer_load_dwordx4 {v(RB+4*i,4)}, {v(vRED)}, {srd(SRD_WS)}, s{sPW} offen offset:{i*1024} sc1")
    A(f"""
    s_sub_u32 s{sSPIN}, s{sSPIN}, 1
    s_cbranch_scc1 {abort}
    """)
    for i in range(4):
        b = RB + 4 * i
        A(f"s_waitcnt vmcnt({3-i})")
        mf(RD, v(SEL, 4), v(b, 4), i == 0)
        if i == 0:
            A(f"v_max3_u32 {v(RT)}, {v(b)}, {v(b+1)}, {v(b+2)}")
            A(f"v_max_u32 {v(RT)}, {v(RT)}, {v(b+3)}")
        else:
            A(f"v_max3_u32 {v(RT)}, {v(RT)}, {v(b)}, {v(b+1)}")
            A(f"v_max3_u32 {v(RT)}, {v(RT)}, {v(b+2)}, {v(b+3)}")
    A(f"""
    v_cmp_eq_u32 vcc, -1, {v(RT)}
    s_cbranch_vccnz {L('rpoll')}
    s_nop 3
    v_cndmask_b32 {v(RT)}, {v(RD)}, {v(RD+2)}, s[{sHI32}:{sHI32+1}]
    v_cndmask_b32 {v(RT+1)}, {v(RD+1)}, {v(RD+3)}, s[{sHI32}:{sHI32+1}]
    v_cndmask_b32 {v(RT+2)}, {v(RT)}, {v(RT+1)}, s[{sN8}:{sN8+1}]
    v_cndmask_b32 {v(RT+3)}, {v(RT+1)}, {v(RT)}, s[{sN8}:{sN8+1}]
    s_nop 1
    v_add_f32_dpp {v(RT+2)}, {v(RT+3)}, {v(RT+2)} row_ror:8 row_mask:0xf bank_mask:0xf
    s_nop 1
    v_mov_b32_dpp {v(RT+3)}, {v(RT+2)} quad_perm:[1,0,3,2] row_mask:0xf bank_mask:0xf
    v_cvt_pk_bf16_f32 {v(RT+2)}, {v(RT+2)}, {v(RT+3)}
    v_min_u32 {v(RT+2)}, -2, {v(RT+2)}
    s_mov_b64 exec, s[{sEVEN}:{sEVEN+1}]
    buffer_store_dword {v(RT+2)}, {v(vPUB)}, {srd(SRD_WS)}, s{sMW} offen{sc}
    buffer_store_dword {v(D0+48)}, {v(vPUB)}, {srd(SRD_WS)}, s{sMA} offen{sc}
    s_mov_b64 exec, -1
    s_branch {L('loop')}
    """)
    A.label(L('done'))
    A("s_waitcnt vmcnt(0)")
    stamp(A, 2, s_id=s_head)
```

```python
from common import *
from mod_r import f32bits, CEXP

NEGBIG = -1.0e9 / (128 ** -0.5)

XV_LANE16, XV_KM, XV_VM, XV_V = 2, 3, 4, 5
def X_setup(A):
    A(f"""
    v_lshlrev_b32 {v(XV_LANE16)}, 4, v1
    v_and_b32 {v(XV_KM)}, 7, v1
    v_lshlrev_b32 {v(XV_KM)}, 4, {v(XV_KM)}
    v_lshrrev_b32 v6, 5, v1
    v_lshl_add_u32 {v(XV_KM)}, v6, 7, {v(XV_KM)}
    v_lshlrev_b32 {v(XV_VM)}, 3, v1
    s_lshl_b32 s60, s{S_WAVE}, 9
    v_add_u32 {v(XV_VM)}, s60, {v(XV_VM)}
    s_lshl_b32 s60, s{S_WAVE}, 11
    v_add_u32 {v(XV_V)}, s60, {v(XV_LANE16)}
    """)

def X_item(A, s_item, sc=" sc1", pre_wait=None):
    Q, K, KM, V_, VM = 8, 40, 72, 104, 112
    SX, SM = 116, 132
    T0, T1 = 148, 149
    P0, P1, PM = 8, 12, 16
    O = 40
    A(f"""
    s_lshl_b32 s60, s{s_item}, 13
    s_add_u32 s61, s60, {WS_QX}
    s_add_u32 s62, s60, {WS_KX}
    s_add_u32 s63, s60, {WS_VX}
    """)
    for i in range(8):
        if i == 4:
            A("s_add_u32 s61, s61, 4096\ns_add_u32 s62, s62, 4096")
        A(f"buffer_load_dwordx4 {v(Q+4*i,4)}, {v(XV_LANE16)}, {srd(SRD_WS)}, s61 offen offset:{(i&3)*1024} sc1")
        A(f"buffer_load_dwordx4 {v(K+4*i,4)}, {v(XV_LANE16)}, {srd(SRD_WS)}, s62 offen offset:{(i&3)*1024} sc1")
    for j in range(2):
        A(f"buffer_load_dwordx4 {v(V_+4*j,4)}, {v(XV_V)}, {srd(SRD_WS)}, s63 offen offset:{j*1024} sc1")
    for i in range(8):
        A(f"s_waitcnt vmcnt({16 - 2*i})")
        A(f"v_mfma_f32_32x32x16_bf16 {v(SX,16)}, {v(K+4*i,4)}, {v(Q+4*i,4)}, {'0' if i == 0 else v(SX,16)}")
    if pre_wait: pre_wait()
    A(f"""
    s_lshl_b32 s60, s{s_item}, 11
    s_add_u32 s61, s60, {WS_KM}
    s_add_u32 s62, s60, {WS_VM}
    """)
    for i in range(8):
        A(f"buffer_load_dwordx4 {v(KM+4*i,4)}, {v(XV_KM)}, {srd(SRD_WS)}, s61 offen offset:{i*256} sc1")
    A(f"buffer_load_dwordx2 {v(VM,2)}, {v(XV_VM)}, {srd(SRD_WS)}, s62 offen sc1")
    A(f"v_mov_b32 {v(VM+2)}, 0\nv_mov_b32 {v(VM+3)}, 0")
    A(f"v_mov_b32 {v(T1)}, {f32bits(NEGBIG)}")
    for i in range(16):
        m = 0
        for l in range(64):
            key = 8 * (i // 4) + 4 * (l >> 5) + i % 4
            if key <= (l & 31): m |= 1 << l
        A(f"s_mov_b32 s60, {m & 0xffffffff}\ns_mov_b32 s61, {m >> 32}")
        A(f"v_cndmask_b32 {v(SX+i)}, {v(T1)}, {v(SX+i)}, s[60:61]")
    A(f"v_max3_f32 {v(T0)}, {v(SX)}, {v(SX+1)}, {v(SX+2)}")
    for i in range(3, 15, 2):
        A(f"v_max3_f32 {v(T0)}, {v(T0)}, {v(SX+i)}, {v(SX+i+1)}")
    A(f"v_max_f32 {v(T0)}, {v(T0)}, {v(SX+15)}")
    for i in range(8):
        A(f"s_waitcnt vmcnt({8 - i})")
        A(f"v_mfma_f32_32x32x16_bf16 {v(SM,16)}, {v(KM+4*i,4)}, {v(Q+4*i,4)}, {'0' if i == 0 else v(SM,16)}")
    A(f"""
    s_mov_b32 s60, {f32bits(CEXP)}
    s_nop 10
    v_max3_f32 {v(T0)}, {v(T0)}, {v(SM)}, {v(SM+1)}
    v_max3_f32 {v(T0)}, {v(T0)}, {v(SM+2)}, {v(SM+3)}
    v_mov_b32 {v(T1)}, {v(T0)}
    s_nop 1
    v_permlane32_swap_b32 {v(T0)}, {v(T1)}
    v_max_f32 {v(T0)}, {v(T0)}, {v(T1)}
    v_mul_f32 {v(T0)}, s60, {v(T0)}
    """)
    regs = [SX + i for i in range(16)] + [SM + i for i in range(4)]
    for r in regs: A(f"v_fma_f32 {v(r)}, {v(r)}, s60, -{v(T0)}")
    for r in regs: A(f"v_exp_f32 {v(r)}, {v(r)}")
    A("s_nop 0")
    A(f"v_add_f32 {v(T0)}, {v(regs[0])}, {v(regs[1])}")
    for r in regs[2:]: A(f"v_add_f32 {v(T0)}, {v(T0)}, {v(r)}")
    A(f"""
    v_mov_b32 {v(T1)}, {v(T0)}
    s_nop 1
    v_permlane32_swap_b32 {v(T0)}, {v(T1)}
    v_add_f32 {v(T0)}, {v(T0)}, {v(T1)}
    v_rcp_f32 {v(T0)}, {v(T0)}
    s_nop 0
    """)
    for r in regs: A(f"v_mul_f32 {v(r)}, {v(r)}, {v(T0)}")
    for i in range(8): A(f"v_cvt_pk_bf16_f32 {v(P0+i)}, {v(SX+2*i)}, {v(SX+2*i+1)}")
    for i in range(2): A(f"v_cvt_pk_bf16_f32 {v(PM+i)}, {v(SM+2*i)}, {v(SM+2*i+1)}")
    A(f"""
    v_mov_b32 {v(PM+2)}, 0
    v_mov_b32 {v(PM+3)}, 0
    s_waitcnt vmcnt(0)
    s_nop 0
    v_mfma_f32_32x32x16_bf16 {v(O,16)}, {v(V_,4)}, {v(P0,4)}, 0
    v_mfma_f32_32x32x16_bf16 {v(O,16)}, {v(V_+4,4)}, {v(P1,4)}, {v(O,16)}
    v_mfma_f32_32x32x16_bf16 {v(O,16)}, {v(VM,4)}, {v(PM,4)}, {v(O,16)}
    s_lshl_b32 s60, s{s_item}, 13
    s_add_u32 s60, s60, {WS_OX}
    s_nop 10
    """)
    for i in range(8): A(f"v_cvt_pk_bf16_f32 {v(O+i)}, {v(O+2*i)}, {v(O+2*i+1)}")
    A(f"buffer_store_dwordx4 {v(O,4)}, {v(XV_V)}, {srd(SRD_WS)}, s60 offen{sc}")
    A(f"buffer_store_dwordx4 {v(O+4,4)}, {v(XV_V)}, {srd(SRD_WS)}, s60 offen offset:1024{sc}")

OV_L16, OV_RD, OV_ST, OV_A = 160, 161, 162, 163
O_RED = 131072
def O_setup(A, s_cb):
    T0, T1, VD, VT = 164, 165, 166, 167
    A(f"""
    v_lshrrev_b32 {v(T0)}, 2, v1
    v_mul_u32_u24 {v(VD)}, 1152, {v(T0)}
    v_and_b32 {v(T0)}, 3, v1
    v_lshl_add_u32 {v(VD)}, {v(T0)}, 4, {v(VD)}
    s_lshl_b32 s60, s{s_cb}, 6
    s_mul_i32 s61, s{S_WAVE}, {1024*1152}
    s_add_u32 s60, s60, s61
    s_lshl_b32 s63, s{S_WAVE}, 15
    v_bfe_u32 {v(T0)}, v1, 2, 2
    v_lshrrev_b32 {v(T1)}, 5, v1
    v_lshl_add_u32 {v(T0)}, {v(T1)}, 2, {v(T0)}
    v_lshlrev_b32 {v(VT)}, 6, {v(T0)}
    v_bfe_u32 {v(T0)}, v1, 4, 1
    v_lshl_add_u32 {v(VT)}, {v(T0)}, 5, {v(VT)}
    v_and_b32 {v(T0)}, 3, v1
    v_lshl_add_u32 {v(VT)}, {v(T0)}, 3, {v(VT)}
    v_add_u32 {v(VT)}, s63, {v(VT)}
    """)
    def dma(hh):
        for n in range(8):
            A(f"s_add_u32 m0, s63, {(hh & 3)*8192 + n*1024}")
            A(f"s_add_u32 s62, s60, {(hh*128 + n*16)*1152}")
            A(f"buffer_load_dwordx4 {v(VD)}, {srd(SRD_WO)}, s62 offen lds")
    for hh in range(4): dma(hh)
    for hh in range(8):
        A(f"s_waitcnt vmcnt({min(3, 7-hh)*8})")
        for ks in range(8):
            for t in range(2):
                off = (hh & 3) * 8192 + (ks * 16 + t * 8) * 64
                A(f"ds_read_b64_tr_b16 {a((hh*8+ks)*4 + 2*t, 2)}, {v(VT)} offset:{off}")
        if hh + 4 < 8:
            A("s_waitcnt lgkmcnt(0)")
            dma(hh + 4)
    A(f"""
    v_lshlrev_b32 {v(OV_A)}, 4, v1
    s_lshl_b32 s60, s{S_WAVE}, 12
    s_add_u32 s60, s60, {O_RED}
    v_add_u32 {v(OV_L16)}, s60, {v(OV_A)}
    s_lshl_b32 s60, s{S_WAVE}, 10
    s_add_u32 s60, s60, {O_RED}
    v_add_u32 {v(OV_RD)}, s60, {v(OV_A)}
    s_lshl_b32 s60, s{S_WAVE}, 16
    v_add_u32 {v(OV_A)}, s60, {v(OV_A)}
    v_and_b32 {v(T0)}, 31, v1
    v_mul_u32_u24 {v(OV_ST)}, 2304, {v(T0)}
    v_lshrrev_b32 {v(T0)}, 5, v1
    v_lshl_add_u32 {v(OV_ST)}, {v(T0)}, 3, {v(OV_ST)}
    s_lshl_b32 s60, s{s_cb}, 6
    s_lshl_b32 s61, s{S_WAVE}, 4
    s_add_u32 s60, s60, s61
    s_add_u32 s60, s60, 1152
    v_add_u32 {v(OV_ST)}, s60, {v(OV_ST)}
    s_waitcnt lgkmcnt(0)
    """)

def O_item(A, s_seg, s_par):
    NR = 32
    F = 8
    ACC = 168
    R = 136
    A(f"""
    s_lshl_b32 s60, s{s_seg}, 18
    s_add_u32 s60, s60, {WS_OX}
    """)
    def ld(i):
        if i % 4 == 0 and i > 0:
            A("s_add_u32 s60, s60, 4096")
        A(f"buffer_load_dwordx4 {v(F+4*(i%NR),4)}, {v(OV_A)}, {srd(SRD_WS)}, s60 offen offset:{(i&3)*1024} sc1")
    for i in range(NR): ld(i)
    for i in range(64):
        A(f"s_waitcnt vmcnt({min(NR-1, 63-i)})")
        A(f"v_mfma_f32_32x32x16_bf16 {v(ACC,16)}, {a(4*i,4)}, {v(F+4*(i%NR),4)}, {'0' if i == 0 else v(ACC,16)}")
        if i + NR < 64: ld(i + NR)
    A(f"""
    v_add_u32 {v(R)}, s{s_par}, {v(OV_L16)}
    v_add_u32 {v(R+1)}, s{s_par}, {v(OV_RD)}
    s_xor_b32 s{s_par}, s{s_par}, 16384
    s_mul_i32 s60, s{s_seg}, {32*2304}
    s_nop 8
    """)
    for q in range(4):
        A(f"ds_write_b128 {v(R)}, {v(ACC+4*q,4)} offset:{q*1024}")
    A("s_waitcnt lgkmcnt(0)\ns_barrier")
    for q in range(4):
        A(f"ds_read_b128 {v(ACC+4*q,4)}, {v(R+1)} offset:{q*4096}")
    A("s_waitcnt lgkmcnt(2)")
    A(f"v_pk_add_f32 {v(ACC,2)}, {v(ACC,2)}, {v(ACC+4,2)}\nv_pk_add_f32 {v(ACC+2,2)}, {v(ACC+2,2)}, {v(ACC+6,2)}")
    A("s_waitcnt lgkmcnt(0)")
    A(f"v_pk_add_f32 {v(ACC+8,2)}, {v(ACC+8,2)}, {v(ACC+12,2)}\nv_pk_add_f32 {v(ACC+10,2)}, {v(ACC+10,2)}, {v(ACC+14,2)}")
    A(f"v_pk_add_f32 {v(ACC,2)}, {v(ACC,2)}, {v(ACC+8,2)}\nv_pk_add_f32 {v(ACC+2,2)}, {v(ACC+2,2)}, {v(ACC+10,2)}")
    A(f"""
    v_cvt_pk_bf16_f32 {v(ACC)}, {v(ACC)}, {v(ACC+1)}
    v_cvt_pk_bf16_f32 {v(ACC+1)}, {v(ACC+2)}, {v(ACC+3)}
    buffer_store_dwordx2 {v(ACC,2)}, {v(OV_ST)}, {srd(SRD_OUT)}, s60 offen
    """)
```

```python
import sys
from common import *
from mod_p import *
from mod_r import *
from mod_xo import *
from mod_f import *

OPT = {}
def kernel(name, body, vgpr=256, agpr=256):
    A = Asm()
    body(A)
    return kernel_head(name) + A.text(), kernel_desc(name, vgpr, agpr)

def k_P(A):
    prologue(A, 256, "KP_end")
    A("""s_lshr_b32 s58, s2, 3
    s_and_b32 s59, s2, 7""")
    A("""s_and_b32 s58, s2, 3
    s_lshl_b32 s58, s58, 3
    s_bfe_u32 s59, s2, 0x30003
    s_add_u32 s58, s58, s59
    s_lshr_b32 s59, s2, 6
    s_and_b32 s60, s2, 4
    s_add_u32 s59, s59, s60""")
    mod_P(A, 58, 59, 8, flags=False, sc=OPT.get('sc', ' sc1'), nost=OPT.get('nost', 0))
    A("KP_end:")
    A("s_endpgm")

def ticket_xcd0(A, endlabel):
    A(f"""
    s_getreg_b32 s59, hwreg(HW_REG_XCC_ID)
    s_and_b32 s59, s59, 15
    s_cmp_lg_u32 s59, 0
    s_cbranch_scc1 {endlabel}
    s_cmp_lg_u32 s{S_WAVE}, 0
    s_cbranch_scc1 TK_1
    v_mov_b32 v3, 1
    v_mov_b32 v4, 0
    s_mov_b64 exec, 1
    buffer_atomic_add v3, v4, {srd(SRD_DBG)}, 0 offen sc0 sc1
    s_waitcnt vmcnt(0)
    ds_write_b32 v4, v3
    s_waitcnt lgkmcnt(0)
    s_mov_b64 exec, -1
TK_1:
    s_barrier
    v_mov_b32 v4, 0
    ds_read_b32 v3, v4
    s_waitcnt lgkmcnt(0)
    v_readfirstlane_b32 s58, v3
    s_barrier
    s_cmp_ge_u32 s58, 32
    s_cbranch_scc1 {endlabel}
    """)

def k_R(A):
    prologue(A, 256, "KR_end")
    ticket_xcd0(A, "KR_end")
    mod_R(A, 58, **OPT.get('R', {}))
    A("s_branch KR_end")
    A(f"""
R_abort:
    v_mov_b32 v3, 0xdead
    v_mov_b32 v4, 60
    buffer_store_dword v3, v4, {srd(SRD_DBG)}, 0 offen
    s_waitcnt vmcnt(0)
KR_end:
    s_endpgm""")

def k_X(A):
    prologue(A, 256, "KX_end")
    X_setup(A)
    A("""s_mov_b32 s58, s2
KX_loop:""")
    X_item(A, 58)
    A("""s_add_u32 s58, s58, 256
    s_cmp_lt_u32 s58, 2048
    s_cbranch_scc1 KX_loop
KX_end:
    s_endpgm""")

def k_O(A):
    prologue(A, 252, "KO_end")
    A("""s_mul_hi_u32 s59, s2, 238609295
    s_mul_i32 s58, s59, 18
    s_sub_u32 s58, s2, s58
    s_mov_b32 s70, 0""")
    O_setup(A, 58)
    A("KO_loop:")
    O_item(A, 59, 70)
    A("""s_add_u32 s59, s59, 14
    s_cmp_lt_u32 s59, 64
    s_cbranch_scc1 KO_loop
KO_end:
    s_endpgm""")

def k_F0(A):
    prologue(A, 256, "KF0_end")
    F0(A, 2, 256)
    A("KF0_end:\ns_endpgm")
def mk_FG(which):
    def f(A):
        prologue(A, 255, f"KF{which}_end")
        A("""s_mul_hi_u32 s59, s2, 858993460
        s_mul_i32 s58, s59, 5
        s_sub_u32 s58, s2, s58""")
        FG(A, which, 58, 59, 51)
        A(f"KF{which}_end:\ns_endpgm")
    return f
def k_F2(A):
    prologue(A, 73, "KF2_end")
    A(f"""s_lshl_b32 s58, s2, 2
    s_add_u32 s58, s58, s{S_WAVE}
    s_cmp_gt_u32 s58, 288
    s_cbranch_scc1 KF2_end""")
    F2(A, 58)
    A("KF2_end:\ns_endpgm")

HEADER = open("cdna_kernels/" + NAME + ".s.ref").read().split("; Override launch")[0]

def build(kernels):
    txt = HEADER
    for (n, f, g, lds) in kernels:
        txt += f"; @launch kernel={n} grid=({g},1,1) block=(256,1,1) lds={lds}\n"
    txt += '.amdgcn_target "amdgcn-amd-amdhsa--gfx950"\n.text\n'
    descs = []
    seen = set()
    for (n, f, g, lds) in kernels:
        if n in seen: continue
        seen.add(n)
        t, d = kernel(n, f)
        txt += t; descs.append(d)
    txt += '.section .rodata,"a"\n'
    for d in descs:
        txt += ".p2align 6\n" + d
    return txt

if __name__ == "__main__":
    import common
    if "stamps" in sys.argv: common.STAMPS = True
    if "nosc" in sys.argv: OPT['sc'] = ''
    if "nt" in sys.argv: OPT['sc'] = ' nt'
    if "rdbg" in sys.argv: OPT['R'] = dict(last=1, dbg_noarm=True)
    if "nost" in sys.argv: OPT['nost'] = 1
    ks = [("p_kernel", k_P, 256, 163840), ("r_kernel", k_R, 256, 163840), ("x_kernel", k_X, 256, 0), ("o_kernel", k_O, 252, 163840)]
    ksA = [("f0_kernel", k_F0, 256, 0), ("f1_kernel", mk_FG(1), 255, 131072), ("f2_kernel", k_F2, 73, 0), ("f3_kernel", mk_FG(3), 255, 131072)]
    if "aonly" in sys.argv: ks = ksA
    if "all" in sys.argv: ks = ksA + ks
    if "ronly" in sys.argv: ks = ks[1:2]
    open(sys.argv[1], "w").write(build(ks))
```

```python
from asmlib import *

NAME = "concat_heads__spectral_gfnet__memory_aug_recurrent_mem_tr__prompt"

MB = 1 << 20
WS_QX   = 0
WS_KX   = 16 * MB
WS_VX   = 32 * MB
WS_OX   = 48 * MB
WS_KM   = 64 * MB
WS_VM   = 68 * MB
WS_PART = 72 * MB
WS_MEMB = 73 * MB
WS_FLAG = 74 * MB
WS_F1   = 75 * MB
WS_F3   = 76 * MB
WS_WT   = 77 * MB
WS_X1   = 80 * MB
WS_Y1   = 83 * MB
WS_SIZE = 256 * MB

S_WG = 2
SRD_AX, SRD_WR, SRD_WI, SRD_BX, SRD_M0, SRD_WQ, SRD_WK, SRD_WV, SRD_WO, SRD_OUT, SRD_DBG, SRD_WS = [8 + 4 * i for i in range(12)]
S_WAVE = 56
S_ROLE = 57
def srd(b): return "s[%d:%d]" % (b, b + 3)

SIZES = {SRD_AX: 2048*576*2, SRD_WR: 2048*289*2, SRD_WI: 2048*289*2, SRD_BX: 2048*576*2, SRD_M0: 8*576*2,
         SRD_WQ: 576*4096*2, SRD_WK: 576*4096*2, SRD_WV: 576*4096*2, SRD_WO: 576*4096*2,
         SRD_OUT: 2048*1152*2, SRD_DBG: 256, SRD_WS: WS_SIZE}
KOFF = {SRD_AX: 0, SRD_WR: 8, SRD_WI: 16, SRD_BX: 24, SRD_M0: 32, SRD_WQ: 40, SRD_WK: 48, SRD_WV: 56, SRD_WO: 64,
        SRD_OUT: 80, SRD_DBG: 88, SRD_WS: 96}

def prologue(A, nwg, endlabel):
    A(f"s_cmp_ge_u32 s2, {nwg}")
    A(f"s_cbranch_scc1 {endlabel}")
    for b, off in KOFF.items():
        A(f"s_load_dwordx2 s[{b}:{b+1}], s[0:1], {off}")
    A("v_lshrrev_b32 v2, 6, v0")
    A("v_and_b32 v1, 63, v0")
    A(f"v_readfirstlane_b32 s{S_WAVE}, v2")
    for b in KOFF:
        A(f"s_mov_b32 s{b+2}, {SIZES[b]}")
        A(f"s_mov_b32 s{b+3}, 0x20000")
    A("s_waitcnt lgkmcnt(0)")

def wreg(i, n):
    if i + n <= 256:
        return a(i, n)
    assert i >= 256
    return v(80 + i - 256, n)

WS_STAMP = 100 * MB
STAMPS = False
STAMP_ID = 2
def stamp(A, idx, vt=78, s_id=None):
    import common
    if not common.STAMPS: return
    if s_id is None: s_id = common.STAMP_ID
    l = A.newlabel("ST")
    A(f"""
    s_cmp_lg_u32 s{S_WAVE}, 0
    s_cbranch_scc1 {l}
    s_memrealtime s[96:97]
    s_lshl_b32 s98, s{s_id}, 8
    s_add_u32 s98, s98, {WS_STAMP + idx*4}
    s_waitcnt lgkmcnt(0)
    v_mov_b32 {v(vt)}, s96
    v_mov_b32 {v(vt+1)}, 0
    s_mov_b64 exec, 1
    buffer_store_dword {v(vt)}, {v(vt+1)}, {srd(SRD_WS)}, s98 offen
    s_mov_b64 exec, -1
{l}:
    """)
DBG_XCD = 0
DBG_TOT = 32
DBG_OVF = 36
DBG_RARM = 40
DBG_INIT = 44
DBG_RPROG = 128
DBG_F0 = 48
DBG_F1 = 52
DBG_F2 = 56
DBG_ABORT = 60
FLAG_KV = WS_FLAG
FLAG_OX = WS_FLAG + 8192
FLAG_RP = WS_FLAG + 16384
```

```python
from common import *
from mod_p import *
from mod_r4 import mod_R, SPIN
from mod_xo import *
from mod_f import *

NW = 224
EV_LDS = 16384
sWID, sHEAD, sGRP, sCB, sOG, sXN, sON, sPAR, sITEM, sCG, sTG, sKAP, sSP = range(76, 89)

def role_assign(A, abort):
    A(f"""
    s_cmp_lg_u32 s{S_WAVE}, 0
    s_cbranch_scc1 RA_bc
    s_getreg_b32 s59, hwreg(HW_REG_XCC_ID)
    s_and_b32 s59, s59, 15
    s_mov_b64 exec, 1
    v_mov_b32 v3, 1
    s_mov_b32 s60, 32
    s_cmp_ge_u32 s59, 8
    s_cbranch_scc1 RA_not
    s_lshl_b32 s61, s59, 2
    v_mov_b32 v4, s61
    buffer_atomic_add v3, v4, {srd(SRD_DBG)}, 0 offen sc0 sc1
    s_waitcnt vmcnt(0)
    v_readfirstlane_b32 s60, v3
RA_not:
    v_mov_b32 v3, 1
    v_mov_b32 v4, {DBG_TOT}
    buffer_atomic_add v3, v4, {srd(SRD_DBG)}, 0 offen sc1
    s_lshl_b32 s58, s59, 5
    s_add_u32 s58, s58, s60
    s_cmp_lt_u32 s60, 32
    s_cbranch_scc1 RA_have
    v_mov_b32 v5, 1
    v_mov_b32 v4, {DBG_OVF}
    buffer_atomic_add v5, v4, {srd(SRD_DBG)}, 0 offen sc0 sc1
    s_waitcnt vmcnt(0)
    v_readfirstlane_b32 s61, v5
    s_mov_b64 exec, -1
    v_and_b32 v4, 15, v1
    v_lshlrev_b32 v4, 2, v4
    s_mov_b32 s63, {SPIN}
RA_poll:
    buffer_load_dword v5, v4, {srd(SRD_DBG)}, 0 offen sc1
    s_sub_u32 s63, s63, 1
    s_cbranch_scc1 {abort}
    s_waitcnt vmcnt(0)
    v_readlane_b32 s62, v5, {DBG_TOT//4}
    s_cmp_lt_u32 s62, 256
    s_cbranch_scc1 RA_poll
    s_mov_b32 s58, 255
    """)
    for x in range(8):
        A(f"""
        v_readlane_b32 s62, v5, {x}
        s_min_u32 s62, s62, 32
        s_sub_u32 s60, 32, s62
        s_cmp_lt_u32 s61, s60
        s_cbranch_scc0 RA_n{x}
        s_add_u32 s58, s62, s61
        s_add_u32 s58, s58, {32*x}
        s_branch RA_have
RA_n{x}:
        s_sub_u32 s61, s61, s60
        """)
    A(f"""
RA_have:
    s_mov_b64 exec, 1
    v_mov_b32 v3, s58
    v_mov_b32 v4, 0
    ds_write_b32 v4, v3
    s_waitcnt lgkmcnt(0)
    s_mov_b64 exec, -1
RA_bc:
    s_barrier
    v_mov_b32 v4, 0
    ds_read_b32 v3, v4
    s_waitcnt lgkmcnt(0)
    v_readfirstlane_b32 s58, v3
    s_barrier
    """)

def wait_ge(A, srd_, off_expr_s, val, abort, vt=250, sleep=8):
    l = A.newlabel("WG")
    A(f"""
    s_mov_b32 s{sSP}, {SPIN}
    v_mov_b32 {v(vt)}, {off_expr_s}
{l}:
    buffer_load_dword {v(vt+1)}, {v(vt)}, {srd(srd_)}, 0 offen sc1
    s_sub_u32 s{sSP}, s{sSP}, 1
    s_cbranch_scc1 {abort}
    s_waitcnt vmcnt(0)
    v_cmp_le_u32 vcc, {val}, {v(vt+1)}
    s_cbranch_vccnz {l}_ok
    s_sleep {sleep}
    s_branch {l}
{l}_ok:
    """)

def signal_wg(A, off, vt=250):
    l = A.newlabel("SG")
    A(f"""
    s_waitcnt vmcnt(0)
    s_barrier
    s_cmp_lg_u32 s{S_WAVE}, 0
    s_cbranch_scc1 {l}
    v_mov_b32 {v(vt)}, {off}
    v_mov_b32 {v(vt+1)}, 1
    s_mov_b64 exec, 1
    buffer_atomic_add {v(vt+1)}, {v(vt)}, {srd(SRD_DBG)}, 0 offen sc1
    s_mov_b64 exec, -1
{l}:
    """)

def acc_t(A, dst):
    import common
    if not common.STAMPS: return
    A(f"s_memrealtime s[96:97]\ns_waitcnt lgkmcnt(0)\ns_sub_u32 s98, s96, s93\ns_add_u32 s{dst}, s{dst}, s98\ns_mov_b32 s93, s96")

def k_merged(A, ropt, EVS=4):
    AB = "M_abort"
    prologue(A, 256, "M_end")
    role_assign(A, AB)
    A("s_cmp_ge_u32 s58, 32\ns_cbranch_scc1 M_worker")
    mod_R(A, 58, abort=AB, merged=True, **ropt)
    A("s_branch M_end")
    A.label("M_worker")
    A(f"""
    s_sub_u32 s{sWID}, s58, 32
    s_lshr_b32 s60, s{sWID}, 3                      ; unit
    s_mul_hi_u32 s61, s60, {(2**32+6)//7}           ; octet
    s_mul_i32 s62, s61, 7
    s_sub_u32 s{sGRP}, s60, s62
    s_lshl_b32 s61, s61, 3
    s_and_b32 s62, s{sWID}, 7
    s_add_u32 s{sHEAD}, s61, s62
    s_mul_hi_u32 s{sOG}, s{sWID}, {(2**32+17)//18}
    s_mul_i32 s60, s{sOG}, 18
    s_sub_u32 s{sCB}, s{sWID}, s60
    s_mul_hi_u32 s{sTG}, s{sWID}, {(2**32+4)//5}
    s_mul_i32 s60, s{sTG}, 5
    s_sub_u32 s{sCG}, s{sWID}, s60
    s_mul_i32 s{sKAP}, s{S_WAVE}, {NW}
    s_add_u32 s{sKAP}, s{sKAP}, s{sWID}
    """)
    stamp(A, 0, s_id=58)
    F0(A, sWID, NW)
    signal_wg(A, DBG_F0, vt=76)
    mod_P(A, sHEAD, sGRP, 7, preloop=lambda: wait_ge(A, SRD_DBG, DBG_RARM, 32, AB, vt=76))
    stamp(A, 4, s_id=58)
    wait_ge(A, SRD_DBG, DBG_F0, NW, AB)
    A(f"s_cmp_ge_u32 s{sTG}, 44\ns_cbranch_scc1 M_nof1")
    FG(A, 1, sCG, sTG, 44)
    A.label("M_nof1")
    signal_wg(A, DBG_F1)
    stamp(A, 5, s_id=58)
    A(f"s_cmp_ge_u32 s{sOG}, 12\ns_cbranch_scc1 M_noos")
    O_setup(A, sCB, keep=True)
    A.label("M_noos")
    stamp(A, 6, s_id=58)
    wait_ge(A, SRD_DBG, DBG_F1, NW, AB)
    A(f"s_cmp_gt_u32 s{sKAP}, 288\ns_cbranch_scc1 M_nof2")
    F2(A, sKAP)
    A.label("M_nof2")
    signal_wg(A, DBG_F2)
    stamp(A, 7, s_id=58)
    wait_ge(A, SRD_DBG, DBG_F2, NW, AB)
    A(f"s_cmp_ge_u32 s{sTG}, 44\ns_cbranch_scc1 M_nof3")
    FG(A, 3, sCG, sTG, 44)
    A.label("M_nof3")
    A("s_waitcnt vmcnt(0)\ns_barrier")
    stamp(A, 11, s_id=58)
    X_setup(A)
    O_addr(A, sCB)
    A(f"""
    s_mov_b32 s{sXN}, s{sGRP}
    s_cmp_lt_u32 s{sOG}, 12
    s_cselect_b32 s{sON}, s{sOG}, 64
    s_mov_b32 s{sPAR}, 0
    s_mov_b32 s90, 0
    s_mov_b32 s91, 0
    s_mov_b32 s92, 0
    s_mov_b32 s93, 0
    """)
    acc_t(A, 92)
    A(f"""
    s_mov_b32 s92, 0
M_ev:
    s_min_u32 s60, s{sXN}, s{sON}
    s_cmp_ge_u32 s60, 64
    s_cbranch_scc1 M_fin
    s_cmp_lg_u32 s{S_WAVE}, 0
    s_cbranch_scc1 M_evb
    s_lshl_b32 s64, s{sHEAD}, 7
    s_add_u32 s64, s64, {FLAG_RP}
    s_min_u32 s65, s{sON}, 63
    s_lshl_b32 s65, s65, 7
    s_add_u32 s65, s65, {FLAG_OX}
    v_mov_b32 v250, s64
    v_mov_b32 v251, s65
    s_mov_b32 s{sSP}, {SPIN}
M_evp:
    buffer_load_dword v252, v250, {srd(SRD_WS)}, 0 offen sc1
    buffer_load_dword v253, v251, {srd(SRD_WS)}, 0 offen sc1
    s_sub_u32 s{sSP}, s{sSP}, 1
    s_cbranch_scc1 {AB}
    s_waitcnt vmcnt(0)
    v_readfirstlane_b32 s60, v252
    v_readfirstlane_b32 s61, v253
    s_mov_b32 s62, 1
    s_cmp_gt_u32 s60, s{sXN}
    s_cbranch_scc1 M_evd
    s_mov_b32 s62, 2
    s_cmp_ge_u32 s{sON}, 64
    s_cbranch_scc1 M_evs
    s_cmp_ge_u32 s61, 128
    s_cbranch_scc1 M_evd
M_evs:
    s_min_u32 s61, s{sXN}, s{sON}
    s_add_u32 s60, s60, 1
    s_cmp_gt_u32 s61, s60
    s_cbranch_scc0 M_evs2
    s_sleep 48
M_evs2:
    s_sleep {EVS}
    s_branch M_evp
M_evd:
    v_mov_b32 v252, s62
    v_mov_b32 v253, {EV_LDS}
    ds_write_b32 v253, v252
    s_waitcnt lgkmcnt(0)
M_evb:
    s_barrier
    v_mov_b32 v253, {EV_LDS}
    ds_read_b32 v252, v253
    s_waitcnt lgkmcnt(0)
    v_readfirstlane_b32 s62, v252
    s_barrier
    """)
    acc_t(A, 92)
    A(f"""
    s_cmp_eq_u32 s62, 2
    s_cbranch_scc1 M_evO
    s_lshl_b32 s{sITEM}, s{sXN}, 5
    s_add_u32 s{sITEM}, s{sITEM}, s{sHEAD}
    """)
    X_item(A, sITEM)
    A(f"""
    s_lshl_b32 s60, s{sXN}, 7
    s_add_u32 s60, s60, {FLAG_OX}
    v_mov_b32 v250, s60
    v_mov_b32 v251, 1
    s_waitcnt vmcnt(0)
    s_mov_b64 exec, 1
    buffer_atomic_add v251, v250, {srd(SRD_WS)}, 0 offen sc1
    s_mov_b64 exec, -1
    s_add_u32 s{sXN}, s{sXN}, 7
    """)
    acc_t(A, 90)
    A(f"""
    s_branch M_ev
M_evO:
    """)
    O_item(A, sON, sPAR)
    acc_t(A, 91)
    A(f"""
    s_add_u32 s{sON}, s{sON}, 12
    s_branch M_ev
M_fin:
    """)
    stamp(A, 12, s_id=58)
    import common
    if common.STAMPS:
        A(f"""
        s_lshl_b32 s98, s58, 8
        s_add_u32 s98, s98, {WS_STAMP + 160}
        v_mov_b32 v76, s90
        v_mov_b32 v77, s91
        v_mov_b32 v78, s92
        v_mov_b32 v79, 0
        s_mov_b64 exec, 1
        buffer_store_dwordx3 v[76:78], v79, {srd(SRD_WS)}, s98 offen
        s_mov_b64 exec, -1
        """)
    A("s_branch M_end")
    A(f"""
{AB}:
    s_mov_b64 exec, -1
    v_mov_b32 v3, 0xdead
    v_mov_b32 v4, {DBG_ABORT}
    buffer_store_dword v3, v4, {srd(SRD_DBG)}, 0 offen
    s_waitcnt vmcnt(0)
M_end:
    s_endpgm""")
```

```python
from common import *

XBUF = 36864

def xtile_addr_setup(A, vdma, vfr, rowstride, vt0, vt1):
    A(f"""
    v_lshrrev_b32 {v(vt0)}, 3, v1
    v_and_b32 {v(vt1)}, 6, {v(vt0)}
    s_lshr_b32 s60, s{S_WAVE}, 1
    v_or_b32 {v(vt1)}, s60, {v(vt1)}
    v_and_b32 {v(vdma)}, 7, v1
    v_xor_b32 {v(vdma)}, {v(vdma)}, {v(vt1)}
    v_lshlrev_b32 {v(vdma)}, 4, {v(vdma)}
    s_lshl_b32 s60, s{S_WAVE}, 3
    v_add_u32 {v(vt0)}, s60, {v(vt0)}
    s_mov_b32 s60, {rowstride}
    v_mul_lo_u32 {v(vt0)}, {v(vt0)}, s60
    v_add_u32 {v(vdma)}, {v(vdma)}, {v(vt0)}
    """)
    A(f"""
    v_and_b32 {v(vt0)}, 6, v1
    v_bfe_u32 {v(vt1)}, v1, 4, 1
    v_or_b32 {v(vt0)}, {v(vt0)}, {v(vt1)}        ; h
    v_lshrrev_b32 {v(vt1)}, 5, v1                ; hf
    v_xor_b32 {v(vt0)}, {v(vt0)}, {v(vt1)}       ; h ^ hf
    v_and_b32 {v(vt1)}, 31, v1
    v_lshlrev_b32 {v(vt1)}, 7, {v(vt1)}
    """)
    for k in range(4):
        A(f"""
        v_xor_b32 {v(vfr+k)}, {2*k}, {v(vt0)}
        v_lshlrev_b32 {v(vfr+k)}, 4, {v(vfr+k)}
        v_add_u32 {v(vfr+k)}, {v(vfr+k)}, {v(vt1)}
        """)

def mod_P(A, s_head, s_grp, NG, sc=" sc1", flags=True, nost=0, preloop=None):
    L = lambda n: f"P_{n}"
    ACC = [2, 18, 34]
    XF = [50, 54, 58]
    VFR = 62
    VDMA = 66
    VST = 67
    VW = 68
    VTR = 69
    VT0, VT1 = 72, 73
    VFL = 74
    VONE = 75
    stamp(A, 0)
    A.c("P: weight staging setup")
    A(f"""
    v_lshrrev_b32 {v(VT0)}, 4, v1                 ; l>>4
    v_lshlrev_b32 {v(VT1)}, 2, {v(VT0)}
    v_and_b32 {v(VW)}, 15, v1
    v_xor_b32 {v(VW)}, {v(VW)}, {v(VT1)}
    v_lshlrev_b32 {v(VW)}, 4, {v(VW)}
    s_lshl_b32 s60, s{S_WAVE}, 2
    v_add_u32 {v(VT0)}, s60, {v(VT0)}
    v_lshlrev_b32 {v(VT0)}, 13, {v(VT0)}
    v_add_u32 {v(VW)}, {v(VW)}, {v(VT0)}
    s_lshl_b32 s60, s{s_head}, 8
    v_add_u32 {v(VW)}, s60, {v(VW)}
    v_bfe_u32 {v(VT0)}, v1, 2, 2                  ; r
    v_lshrrev_b32 {v(VT1)}, 5, v1                 ; hf
    v_lshl_add_u32 {v(VT1)}, {v(VT1)}, 3, {v(VT0)} ; 8hf + r
    v_lshlrev_b32 {v(VTR)}, 8, {v(VT1)}           ; *256
    v_bfe_u32 {v(VT1)}, v1, 4, 1                  ; fsub
    v_lshlrev_b32 {v(VT1)}, 1, {v(VT1)}
    v_bfe_u32 {v(VTR+1)}, v1, 1, 1                ; c>>1
    v_add_u32 {v(VT1)}, {v(VT1)}, {v(VTR+1)}
    s_lshl_b32 s60, s{S_WAVE}, 2
    v_add_u32 {v(VT1)}, s60, {v(VT1)}             ; chunk16
    v_lshlrev_b32 {v(VT0)}, 2, {v(VT0)}
    v_xor_b32 {v(VT1)}, {v(VT1)}, {v(VT0)}
    v_lshl_add_u32 {v(VTR)}, {v(VT1)}, 4, {v(VTR)}
    v_and_b32 {v(VT0)}, 1, v1
    v_lshl_add_u32 {v(VTR)}, {v(VT0)}, 3, {v(VTR)}
    v_add_u32 {v(VTR+1)}, 0x10000, {v(VTR)}
    v_add_u32 {v(VTR+2)}, 0x20000, {v(VTR)}
    s_lshl_b32 s61, s{S_WAVE}, 10                 ; w*1024 (lds)
    """)
    xtile_addr_setup(A, VDMA, VFR, 1152, VT0, VT1)
    A(f"""
    v_lshlrev_b32 {v(VST)}, 4, v1
    s_lshl_b32 s60, s{S_WAVE}, 11
    v_add_u32 {v(VST)}, s60, {v(VST)}
    v_mov_b32 {v(VONE)}, 1
    """)
    order = [1, 2, 0]
    srds = {0: SRD_WQ, 1: SRD_WK, 2: SRD_WV}
    def wdma(c):
        m = order[c // 9]; kb = c % 9; slot = c % 9
        for n in range(4):
            A(f"s_add_u32 m0, s61, {slot*16384 + n*4096}")
            A(f"s_mov_b32 s62, {kb*524288 + n*131072}")
            A(f"buffer_load_dwordx4 {v(VW)}, {srd(srds[m])}, s62 offen lds")
    def xdma_one(cg, s_bufbase, s_src):
        A(f"s_add_u32 m0, s{s_bufbase}, {cg*4096}")
        A(f"s_add_u32 s62, s{s_src}, {cg*128}")
        A(f"buffer_load_dwordx4 {v(VDMA)}, {srd(SRD_BX)}, s62 offen lds")
    A(f"""
    s_mov_b32 s63, s{s_grp}
    s_mul_i32 s65, s63, {XBUF}
    s_mov_b32 s64, s61
    """)
    for c in range(9):
        wdma(c)
    pending = [4] * 9
    for c in range(27):
        rest = sum(pending[1:])
        A(f"s_waitcnt vmcnt({rest})")
        pending.pop(0)
        A("s_barrier")
        m = order[c // 9]; kb = c % 9; slot = c % 9
        for ksl in range(4):
            for t in range(2):
                off = slot * 16384 + ksl * 4096 + t * 1024
                A(f"ds_read_b64_tr_b16 {wreg(m*144 + (kb*4+ksl)*4 + 2*t, 2)}, {v(VTR + (off >> 16))} offset:{off & 0xffff}")
        A("s_waitcnt lgkmcnt(0)")
        A("s_barrier")
        pass
        if c + 9 < 27:
            wdma(c + 9); pending.append(4)
        if c == 20 or c == 22:
            for cg in range(9):
                xdma_one(cg, 64, 65)
            pending.append(9)
            A(f"s_add_u32 s64, s64, {XBUF}")
            A(f"s_add_u32 s65, s65, {NG*XBUF}")
    A("s_waitcnt vmcnt(9)")
    A(f"""
    s_mov_b32 s66, 0
    s_mov_b32 s67, -1
    """)
    stamp(A, 1)
    if preloop: preloop()
    A.label(L("loop"))
    A("s_barrier")
    def xread(ks):
        A(f"ds_read_b128 {v(XF[ks%3],4)}, {v(VFR + (ks&3))} offset:{(ks>>2)*4096}")
    xread(0); xread(1)
    for ks in range(36):
        A(f"s_waitcnt lgkmcnt({1 if ks < 35 else 0})")
        x = v(XF[ks % 3], 4)
        def mf(m):
            w = wreg(m*144 + ks*4, 4)
            c = "0" if ks == 0 else v(ACC[m], 16)
            if m == 2:
                A(f"v_mfma_f32_32x32x16_bf16 {v(ACC[m],16)}, {x}, {w}, {c}")
            else:
                A(f"v_mfma_f32_32x32x16_bf16 {v(ACC[m],16)}, {w}, {x}, {c}")
        mf(1)
        if ks + 2 < 36: xread(ks + 2)
        mf(2)
        if 1 <= ks <= 9:
            xdma_one(ks - 1, 64, 65)
        if ks == 20:
            A("s_waitcnt vmcnt(9)")
            if flags:
                A(f"""
                s_cmp_lt_i32 s67, 0
                s_cbranch_scc1 {L('nofl')}
                s_lshl_b32 s62, s{s_head}, 6
                s_add_u32 s62, s62, s67
                s_lshl_b32 s62, s62, 2
                s_add_u32 s62, s62, {FLAG_KV}
                v_mov_b32 {v(VFL)}, s62
                s_mov_b64 exec, 1
                buffer_atomic_add {v(VONE)}, {v(VFL)}, {srd(SRD_WS)}, 0 offen sc1
                s_mov_b64 exec, -1
                """)
                A.label(L("nofl"))
        mf(0)
    A(f"""
    s_add_u32 s64, s64, {XBUF}
    s_add_u32 s65, s65, {NG*XBUF}
    s_add_u32 s62, s61, {3*XBUF}
    s_cmp_ge_u32 s64, s62
    s_cselect_b32 s64, s61, s64
    s_add_u32 s66, s66, 1
    s_cmp_eq_u32 s66, 3
    s_cselect_b32 s66, 0, s66
    s_mov_b32 s62, {XBUF}
    s_cselect_b32 s62, {(-2*XBUF) & 0xffffffff}, s62
    """)
    for k in range(4):
        A(f"v_add_u32 {v(VFR+k)}, s62, {v(VFR+k)}")
    A(f"""
    s_lshl_b32 s62, s63, 5
    s_add_u32 s62, s62, s{s_head}
    s_lshl_b32 s62, s62, 13
    s_add_u32 s68, s62, {WS_KX}
    s_add_u32 s69, s62, {WS_VX}
    s_add_u32 s70, s62, {WS_QX}
    """)
    for m, so in ((1, 68), (2, 69), (0, 70)):
        if m == 0: A("s_nop 3")
        for i in range(8):
            A(f"v_cvt_pk_bf16_f32 {v(ACC[m]+i)}, {v(ACC[m]+2*i)}, {v(ACC[m]+2*i+1)}")
        s_ = sc if m != 0 else sc
        if nost: continue
        A(f"buffer_store_dwordx4 {v(ACC[m],4)}, {v(VST)}, {srd(SRD_WS)}, s{so} offen{s_}")
        A(f"buffer_store_dwordx4 {v(ACC[m]+4,4)}, {v(VST)}, {srd(SRD_WS)}, s{so} offen offset:1024{s_}")
    A(f"""
    s_mov_b32 s67, s63
    s_add_u32 s63, s63, {NG}
    s_cmp_lt_u32 s63, 64
    s_cbranch_scc1 {L('loop')}
    """)
    stamp(A, 2)
    A("s_waitcnt vmcnt(0)")
    stamp(A, 3)
    if flags:
        A(f"""
        s_lshl_b32 s62, s{s_head}, 6
        s_add_u32 s62, s62, s67
        s_lshl_b32 s62, s62, 2
        s_add_u32 s62, s62, {FLAG_KV}
        v_mov_b32 {v(VFL)}, s62
        s_mov_b64 exec, 1
        buffer_atomic_add {v(VONE)}, {v(VFL)}, {srd(SRD_WS)}, 0 offen sc1
        s_mov_b64 exec, -1
        """)
    A("s_barrier")
```

```python
from common import *
import math, struct

WSTR = 36864
L_Q = 34816
L_K = 34816 + WSTR
L_O = 34816 + 2 * WSTR
L_MEMF = 145408
L_KX = 145408 + 9216
L_V = L_MEMF + 4096
HI = 98304
PSLOT = 72 * 4096
MSLOT = 9216
SPIN = 200000
CEXP = (128 ** -0.5) * math.log2(math.e)
def f32bits(x): return struct.unpack("<I", struct.pack("<f", x))[0]

def WQ(kk): return wreg(kk * 8, 8)
def WK(kk): return wreg(144 + kk * 8, 8)
def WO(p, ks): return wreg(288 + (p * 4 + ks) * 8, 8)
def WO8(ks): return wreg(288 + 128 + ks * 4, 4)

class LQ:
    def __init__(self, A, name): self.A, self.name, self.q = A, name, []
    def push(self, tag, n=1): self.q += [tag] * n; assert len(self.q) <= (15 if self.name == "lgkmcnt" else 63), self.q
    def wait(self, tag):
        if tag not in self.q: return
        idx = max(i for i, t in enumerate(self.q) if t == tag)
        self.A(f"s_waitcnt {self.name}({len(self.q) - 1 - idx})")
        del self.q[:idx + 1]
    def clear(self): self.q = []

def mod_R(A, s_head, sc="", pfx="R", abort="R_abort", last=63, prof=False, RD_=(0, 0, 0, 1, 2), CD=0, hooks=None, WARMD=2, cnt=False,
          CDN=0, fixseg=False, nokm=False, x_nowv=False, trace=False, RGAP=1, CGAP=1, ld=' sc1', tq=None, merged=False, CDN3=0, nowarm=False, R2AT=0, R3AT=6, B2AT=4):
    assert R3AT > B2AT and R2AT + 2 < B2AT
    def TQ(tag):
        if tq and tag in tq: A(f"s_memtime s[{8+2*tq.index(tag)}:{9+2*tq.index(tag)}]")

    def TR(i):
        if trace: A(f"s_memrealtime s[{8+2*i}:{9+2*i}]")

    L = lambda n: f"{pfx}_{n}"
    W = S_WAVE
    hooks = hooks or {}
    def PH(i):
        if not prof: return
        A(f"""
        s_waitcnt lgkmcnt(0)
        s_memtime s[96:97]
        s_waitcnt lgkmcnt(0)
        s_sub_u32 s99, s96, s98
        s_mov_b32 s98, s96
        s_mov_b64 exec, {1 << i}
        v_add_u32 v1, s99, v1
        s_mov_b64 exec, -1
        """)
    TMP = 0
    IDX, SELV, vPST, vRED, vPUB, vCON, vAF, vWV, vQW, vQR, vKX, vOW, vVX, vSP = range(2, 16)
    vC1 = 1
    assert not prof
    WVR = 16
    D0 = 24
    sSTEP, sPW, sPR, sMW, sMR, sMA, sRED, sSEG = 64, 65, 66, 67, 68, 69, 70, 71
    sLO32, sHI32, sEVEN, sN8 = 72, 74, 76, 78
    sU = 80
    sU2 = sU
    sC = 82
    sRDLY, sWB, sB1 = 84, 85, 59
    sB3, sM3, sPRG = 66, 57, 4
    sRDLY2 = 96
    sPM = sEVEN
    sSEL = 86
    sT0, sT1, sT2, sSPIN, sT3, sT4 = 60, 61, 62, 63, 94, 95
    T0, T1, T2 = D0, D0 + 1, D0 + 2
    stamp(A, 8, s_id=s_head)
    A.c("R setup")
    A(f"""
    s_mov_b32 s{sLO32}, -1
    s_mov_b32 s{sLO32+1}, 0
    s_mov_b32 s{sHI32}, 0
    s_mov_b32 s{sHI32+1}, -1
    s_mov_b32 s{sEVEN}, 0x55555555
    s_mov_b32 s{sEVEN+1}, 0x55555555
    s_mov_b32 s{sN8}, 0xff00ff00
    s_mov_b32 s{sN8+1}, 0xff00ff00
    s_mov_b32 s{sC}, {f32bits(CEXP)}
    s_mov_b32 s{sC+1}, {f32bits(CEXP)}
    s_lshl_b32 s{sWB}, s{W}, 10
    s_cmp_eq_u32 s{W}, 0
    s_mov_b32 s{sB1}, -1024
    s_cselect_b32 s{sB1}, 8192, s{sB1}
    s_lshl_b32 s{sPRG}, s{s_head}, 7
    s_add_u32 s{sPRG}, s{sPRG}, {FLAG_RP}
    s_and_b32 s{sM3}, s{sWB}, 1024
    s_sub_u32 s{sB3}, s{sM3}, s{sWB}
    s_add_u32 s{sB3}, s{sB3}, 6144
    s_add_u32 s{sM3}, s{sM3}, {L_MEMF + 7168}
    """)
    for r in range(4):
        m = (0x03030303 << (2 * r)) & 0xffffffff
        A(f"s_mov_b32 s{sSEL+2*r}, {m}\ns_mov_b32 s{sSEL+2*r+1}, {m}")
    def bits(dst, terms, add=None):
        first = True
        for (off, n, sh) in terms:
            A(f"v_bfe_u32 {v(T2)}, v1, {off}, {n}")
            if first:
                A(f"v_lshlrev_b32 {v(dst)}, {sh}, {v(T2)}"); first = False
            else:
                A(f"v_lshl_add_u32 {v(dst)}, {v(T2)}, {sh}, {v(dst)}")
        if add is not None:
            A(f"v_add_u32 {v(dst)}, {add}, {v(dst)}")
    A(f"""
    v_mov_b32 {v(IDX)}, 0x44444444
    v_mov_b32 {v(T0)}, 0xeeeeeeee
    v_cndmask_b32 {v(IDX)}, {v(IDX)}, {v(T0)}, s[{sN8}:{sN8+1}]
    v_mov_b32 {v(SELV)}, 0x3f800000
    v_mov_b32 {v(T0)}, 0x3f80
    v_cndmask_b32 {v(SELV)}, {v(SELV)}, {v(T0)}, s[{sEVEN}:{sEVEN+1}]
    s_mov_b32 s{sPM}, 0xffff
    s_mov_b32 s{sPM+1}, 0xffff
    v_lshlrev_b32 {v(T0)}, 4, v1
    s_add_u32 s{sT0}, s{sWB}, {HI}
    v_add_u32 {v(vCON)}, s{sT0}, {v(T0)}
    s_mul_i32 s{sT0}, s{W}, {WSTR}
    v_add_u32 {v(vWV)}, s{sT0}, {v(T0)}
    s_lshl_b32 s{sT0}, s{W}, 5
    s_add_u32 s{sT0}, s{sT0}, s{s_head}           ; unit
    s_lshl_b32 s{sT1}, s{sT0}, 12
    s_cmp_lt_u32 s{sT0}, 72
    s_cselect_b32 s{sRED}, 1, 0
    s_cselect_b32 s{sT1}, s{sT1}, 0x40000000
    v_add_u32 {v(vRED)}, s{sT1}, {v(T0)}
    s_lshr_b32 s{sT1}, s{sT0}, 1
    s_lshl_b32 s{sT4}, s{sT1}, 5
    s_lshl_b32 s{sT1}, s{sT1}, 8
    s_and_b32 s{sT2}, s{sT0}, 1
    s_mul_i32 s{sT3}, s{sT2}, {4*1152}
    s_add_u32 s{sT4}, s{sT4}, s{sT3}
    s_lshl_b32 s{sT2}, s{sT2}, 6
    s_add_u32 s{sT1}, s{sT1}, s{sT2}
    s_lshr_b32 s{sT2}, s{sT0}, 4
    s_add_u32 s{sT2}, s{sT2}, 1
    s_cmp_ge_u32 s{sT0}, 64
    s_cselect_b32 s{sT2}, 0, s{sT2}
    s_mov_b32 s{sRDLY}, {RD_[0]}
    """)
    for o in range(1, 5):
        A(f"s_cmp_eq_u32 s{sT2}, {o}\ns_cselect_b32 s{sRDLY}, {RD_[o]}, s{sRDLY}")
    bits(vPUB, [(2, 1, 7), (5, 1, 5), (3, 1, 4), (0, 2, 2)], f"s{sT1}")
    A(f"s_lshl_b32 s{sT1}, s{W}, 1\ns_xor_b32 s{sT2}, s{s_head}, s{sT1}\ns_lshl_b32 s{sT2}, s{sT2}, 7\ns_lshl_b32 s{sT1}, s{W}, 13")
    bits(vPST, [(5, 1, 10), (4, 1, 7)])
    A(f"v_xor_b32 {v(T1)}, s{sT2}, {v(vPST)}\nv_add_u32 {v(T1)}, s{sT1}, {v(T1)}")
    bits(vPST, [(5, 1, 15), (4, 1, 12), (0, 4, 3)], v(T1))
    A(f"s_lshl_b32 s{sT1}, s{W}, 9\ns_add_u32 s{sT2}, s{sT1}, {L_Q}")
    bits(vQW, [(5, 1, 8), (0, 4, 4), (4, 1, 3)], f"s{sT2}")
    bits(vQR, [(5, 1, 8), (4, 1, 6), (2, 2, 4), (0, 1, 3)], L_Q)
    bits(vKX, [(4, 2, 9), (3, 1, 8), (0, 3, 4)], HI)
    bits(vAF, [(4, 2, 7), (0, 3, 4)], HI)
    A(f"s_add_u32 s{sT2}, s{sT1}, {L_O}")
    bits(vOW, [(5, 1, 7), (0, 3, 4), (4, 1, 3)], f"s{sT2}")
    A(f"s_lshl_b32 s{sT1}, s{W}, 11")
    bits(vVX, [(4, 2, 9), (0, 4, 4)], f"s{sT1}")
    ARM = D0 + 4
    X0, X1 = D0 + 8, D0 + 9
    for i in range(4): A(f"v_mov_b32 {v(ARM+i)}, -1")
    A(f"s_cmp_eq_u32 s{sRED}, 0\ns_cbranch_scc1 {L('noarm')}")
    bits(X1, [(5, 1, 1), (3, 1, 0)])
    A(f"v_mul_u32_u24 {v(X1)}, 1152, {v(X1)}")
    bits(X0, [(0, 3, 2)], v(X1))
    A(f"buffer_load_dword {v(X1)}, {v(X0)}, {srd(SRD_M0)}, s{sT4} offen")
    A(f"s_mov_b32 s{sT0}, {WS_PART}")
    for i in range(4):
        A(f"buffer_store_dwordx4 {v(ARM,4)}, {v(vRED)}, {srd(SRD_WS)}, s{sT0} offen offset:{i*1024} sc1")
    A(f"s_mov_b64 exec, s[{sEVEN}:{sEVEN+1}]")
    for sl in range(3):
        A(f"s_mov_b32 s{sT0}, {WS_MEMB + sl*MSLOT}")
        A(f"buffer_store_dword {v(ARM)}, {v(vPUB)}, {srd(SRD_WS)}, s{sT0} offen sc1")
    A(f"s_mov_b64 exec, -1\ns_waitcnt vmcnt(0)\nv_min_u32 {v(vSP)}, -2, {v(X1)}")
    A.label(L('noarm'))
    if merged:
        A(f"""
        s_cmp_lg_u32 s{W}, 3
        s_cbranch_scc1 {L('nz')}
        v_lshlrev_b32 {v(X0)}, 2, v1
        v_mov_b32 {v(X1)}, 0
        s_lshl_b32 s{sT0}, s{s_head}, 8
        s_add_u32 s{sT0}, s{sT0}, {FLAG_KV}
        buffer_store_dword {v(X1)}, {v(X0)}, {srd(SRD_WS)}, s{sT0} offen sc1
        s_add_u32 s{sT0}, s{sT0}, {FLAG_OX - FLAG_KV}
        buffer_store_dword {v(X1)}, {v(X0)}, {srd(SRD_WS)}, s{sT0} offen sc1
        v_mov_b32 {v(X0)}, s{sPRG}
        buffer_store_dword {v(X1)}, {v(X0)}, {srd(SRD_WS)}, 0 offen sc1
        s_waitcnt vmcnt(0)
{L('nz')}:
        """)
    A(f"""
    s_barrier
    s_cmp_lg_u32 s{W}, 0
    s_cbranch_scc1 {L('armed')}
    v_mov_b32 {v(T0)}, 1
    v_mov_b32 {v(T1)}, {DBG_RARM}
    s_mov_b64 exec, 1
    buffer_atomic_add {v(T0)}, {v(T1)}, {srd(SRD_DBG)}, 0 offen sc1
    s_mov_b64 exec, -1
    """)
    A.label(L('armed'))
    vWA, vWB, vTR, vTD = D0 + 4, D0 + 5, D0 + 6, D0 + 7
    VS = D0 + 12
    A(f"s_lshl_b32 s{sT0}, s{s_head}, 8\ns_lshl_b32 s{sT1}, s{W}, 6\ns_add_u32 s{sT0}, s{sT0}, s{sT1}")
    bits(vWA, [(2, 4, 13), (0, 2, 4)], f"s{sT0}")
    A(f"""
    v_lshrrev_b32 {v(X0)}, 2, v1
    v_mul_u32_u24 {v(X0)}, 1152, {v(X0)}
    s_mul_i32 s{sT0}, s{s_head}, 147456
    s_lshl_b32 s{sT1}, s{W}, 5
    s_add_u32 s{sT0}, s{sT0}, s{sT1}
    v_add_u32 {v(X0)}, s{sT0}, {v(X0)}
    """)
    bits(vWB, [(1, 1, 7), (0, 1, 4)], v(X0))
    A(f"s_mul_i32 s{sT2}, s{W}, {WSTR}")
    bits(vTR, [(4, 2, 8), (2, 1, 6), (3, 1, 5), (0, 2, 3)], f"s{sT2}")
    bits(vTD, [(4, 2, 9), (2, 2, 6), (0, 2, 3)], f"s{sT2}")
    chunks = [("q", kb) for kb in range(9)] + [("k", kb) for kb in range(9)] + \
             [("o", (p, kb2)) for p in range(5) for kb2 in range(2)] + [("v", kb) for kb in range(9)]
    slot_of = lambda c: (c - 28) % 9
    def wdma(c):
        kind, ix = chunks[c]; sl = slot_of(c)
        for n in range(4):
            A(f"s_add_u32 m0, s{sT2}, {sl*4096 + n*1024}")
            if kind == "o":
                p, kb2 = ix
                A(f"s_mov_b32 s{sT1}, {(kb2*64 + n*16)*1152 + p*256}")
                A(f"buffer_load_dwordx4 {v(vWB)}, {srd(SRD_WO)}, s{sT1} offen lds")
            else:
                A(f"s_mov_b32 s{sT1}, {ix*524288 + n*131072}")
                A(f"buffer_load_dwordx4 {v(vWA)}, {srd({'q': SRD_WQ, 'k': SRD_WK, 'v': SRD_WV}[kind])}, s{sT1} offen lds")
    for c in range(9): wdma(c)
    def trread(dst_fn, h, sl):
        for t, ro in enumerate((0, 2, 16, 18)):
            A(f"ds_read_b64_tr_b16 {dst_fn(t)}, {v(vTR)} offset:{sl*4096 + (32*h + ro)*64}")
    sub = lambda base, t: wreg(base + 2 * t, 2)
    NCH = len(chunks)
    for c in range(NCH):
        kind, ix = chunks[c]; sl = slot_of(c)
        A(f"s_waitcnt vmcnt({min(NCH - 1 - c, 8) * 4 + (7 if c > NCH - 10 else 0)})")
        if kind in "qk":
            base = 0 if kind == "q" else 144
            for h in range(2): trread(lambda t: sub(base + (2 * ix + h) * 8, t), h, sl)
        elif kind == "o":
            p, kb2 = ix
            for h in range(2):
                if p < 4: trread(lambda t: sub(288 + (p * 4 + 2 * kb2 + h) * 8, t), h, sl)
                else:
                    for t in range(2):
                        A(f"ds_read_b64_tr_b16 {wreg(288 + 128 + (2*kb2+h)*4 + 2*t, 2)}, {v(vTD)} offset:{sl*4096 + (32*h + 4*t)*64}")
        else:
            trread(lambda t: v(VS + 2 * t, 2), 0, sl)
            if ix < 8: trread(lambda t: v(VS + 8 + 2 * t, 2), 1, sl)
            else: trread(lambda t: v(WVR + 2 * t, 2), 1, sl)
        A("s_waitcnt lgkmcnt(0)")
        if kind == "v":
            for q in range(4 if ix < 8 else 2):
                A(f"ds_write_b128 {v(vWV)}, {v(VS+4*q,4)} offset:{ix*4096 + q*1024}")
        if c + 9 < NCH: wdma(c + 9)
        if c == NCH - 10:
            A(f"s_mov_b32 s{sT0}, {WS_PART}")
            for i in range(4):
                A(f"buffer_load_dwordx4 {v(D0+32+4*i,4)}, {v(vRED)}, {srd(SRD_WS)}, s{sT0} offen offset:{i*1024} sc1")
            for sl in range(3):
                A(f"s_mov_b32 s{sT0}, {WS_MEMB + sl*MSLOT}")
                A(f"buffer_load_dword {v(D0+48)}, {v(vPUB)}, {srd(SRD_WS)}, s{sT0} offen sc1")
    stamp(A, 9, s_id=s_head)
    AQ, AK, AV = D0, D0 + 4, D0 + 8
    AS = [D0 + 12 + 4 * i for i in range(4)]
    WR = [D0 + 28, D0 + 36, D0 + 44]
    korder = [16, 17] + list(range(16))
    wvl = [kk for kk in korder if kk != 17]
    lg = LQ(A, "lgkmcnt")
    def wvread(f):
        if x_nowv: return
        o = wvl[f] * 2048; d = WR[f % 3]
        A(f"ds_read_b128 {v(d,4)}, {v(vWV)} offset:{o}")
        A(f"ds_read_b128 {v(d+4,4)}, {v(vWV)} offset:{o+1024}")
        lg.push(f"W{f}", 2)
    def zero_acc():
        for i in range(12): A(f"v_mov_b32 {v(AQ+i)}, 0")
    sKV = 5
    sMODE = 6
    def kv_wait(s_need, lab):
        A(f"""
        s_cmp_ge_u32 s{sKV}, s{s_need}
        s_cbranch_scc1 {lab}_ok
        s_lshl_b32 s{sT1}, s{s_head}, 8
        s_add_u32 s{sT1}, s{sT1}, {FLAG_KV}
        v_lshrrev_b32 {v(TMP)}, 2, {v(vCON)}
        v_and_b32 {v(TMP)}, 255, {v(TMP)}
{lab}_p:
        buffer_load_dword {v(D0+40)}, {v(TMP)}, {srd(SRD_WS)}, s{sT1} offen sc1
        s_sub_u32 s{sSPIN}, s{sSPIN}, 1
        s_cbranch_scc1 {abort}
        s_waitcnt vmcnt(0)
        v_cmp_ne_u32 vcc, 4, {v(D0+40)}
        s_ff1_i32_b64 s{sKV}, vcc
        s_cmp_lt_i32 s{sKV}, 0
        s_cselect_b32 s{sKV}, 64, s{sKV}
        s_cmp_ge_u32 s{sKV}, s{s_need}
        s_cbranch_scc1 {lab}_ok
        s_sleep 4
        s_branch {lab}_p
{lab}_ok:
        """)
    A(f"""
    s_mov_b32 s{sSPIN}, {SPIN}
    v_and_b32 {v(X1)}, 15, v1
    v_lshlrev_b32 {v(X1)}, 2, {v(X1)}
{L('warm')}:
    buffer_load_dword {v(X0)}, {v(X1)}, {srd(SRD_DBG)}, 0 offen sc1
    s_sub_u32 s{sSPIN}, s{sSPIN}, 1
    s_cbranch_scc1 {abort}
    s_waitcnt vmcnt(0)
    v_readlane_b32 s{sT0}, {v(X0)}, {DBG_RARM//4}
    v_readlane_b32 s{sT1}, {v(X0)}, 0
    s_cmp_lt_u32 s{sT0}, 32
    s_cbranch_scc1 {L('warm')}
    s_cmp_ge_u32 s{sT1}, 32
    s_cselect_b32 s{sMODE}, 0, 1
    """)
    if merged:
        A(f"""
        s_mov_b32 s{sKV}, 0
        s_cmp_lg_u32 s{W}, 3
        s_cbranch_scc1 {L('nkvi')}
        s_mov_b32 s{sT0}, {WARMD + 1}
        """)
        kv_wait(sT0, L('kvi'))
        A(f"v_lshlrev_b32 {v(X0)}, 7, v1\ns_lshl_b32 s{sT0}, s{s_head}, 13")
        for sg in range(WARMD):
            A(f"s_add_u32 s{sT1}, s{sT0}, {WS_KX + sg*32*8192}\nbuffer_load_dword {v(X1)}, {v(X0)}, {srd(SRD_WS)}, s{sT1} offen sc1")
            A(f"s_add_u32 s{sT1}, s{sT0}, {WS_VX + sg*32*8192}\nbuffer_load_dword {v(X1)}, {v(X0)}, {srd(SRD_WS)}, s{sT1} offen sc1")
        A(f"s_waitcnt vmcnt(0)\n{L('nkvi')}:")
    A(f"""
    s_mov_b32 s{sSTEP}, 0
    s_mov_b32 s{sPW}, {WS_PART}
    s_mov_b32 s{sMA}, {WS_MEMB + 2*MSLOT}
    s_mov_b32 s{sMW}, {WS_MEMB}
    s_mov_b32 s{sMR}, {WS_MEMB + MSLOT}
    s_lshl_b32 s{sSEG}, s{s_head}, 13
    s_cmp_eq_u32 s{sRED}, 0
    s_cbranch_scc1 {L('nom0')}
    s_mov_b64 exec, s[{sEVEN}:{sEVEN+1}]
    buffer_store_dword {v(vSP)}, {v(vPUB)}, {srd(SRD_WS)}, s{sMW} offen sc1
    s_mov_b64 exec, -1
    s_nop 0
    v_mov_b32 {v(vSP)}, -1
{L('nom0')}:
    s_cmp_eq_u32 s{W}, 3
    s_cselect_b64 s[{sU}:{sU+1}], -1, 0
    s_cmp_ge_u32 s{W}, 2
    s_cselect_b32 s{sT0}, 1024, 0
    v_subrev_u32 v1, s{sT0}, {v(vCON)}
    s_waitcnt lgkmcnt(0)
    s_barrier
    """)
    zero_acc()
    if prof: A("v_mov_b32 v1, 0\ns_memtime s[98:99]\ns_waitcnt lgkmcnt(0)")
    if merged: A(f"s_cmp_eq_u32 s{sMODE}, 1\ns_cbranch_scc1 {L('loopS0')}x")
    if cnt: A("s_mov_b32 s20, 0\ns_mov_b32 s21, 0\ns_memtime s[96:97]\ns_memrealtime s[98:99]\ns_waitcnt lgkmcnt(0)\ns_mov_b32 s99, s96")
    RL = D0 + 52
    def sm(acc, a_, b): A(f"v_smfmac_f32_16x16x64_bf16 {v(acc,4)}, {a_}, {b}, {v(IDX)}")
    def mf(d, a_, b_, first):
        A(f"v_mfma_f32_16x16x32_bf16 {v(d,4)}, {a_}, {b_}, {'0' if first else v(d,4)}")
    def chk(r, br):
        A(f"""
        v_max3_u32 {v(TMP)}, {v(r)}, {v(r+1)}, {v(r+2)}
        v_max_u32 {v(TMP)}, {v(TMP)}, {v(r+3)}
        v_cmp_eq_u32 vcc, -1, {v(TMP)}
        {br}
        """)
    def spin(): A(f"s_sub_u32 s{sSPIN}, s{sSPIN}, 1\ns_cbranch_scc1 {abort}")
    def cload(r, so): A(f"buffer_load_dwordx4 {v(r,4)}, {v(vC1)}, {srd(SRD_WS)}, s{so} offen{ld}")
    def pk2(d, s_):
        A(f"v_cvt_pk_bf16_f32 {v(d)}, {v(s_)}, {v(s_+1)}")
        A(f"v_cvt_pk_bf16_f32 {v(d+1)}, {v(s_+2)}, {v(s_+3)}")
    def step_body(par, sc, md):
        LP = lambda n: L(n + md + str(par))
        nxt_loop = L('loop' + md + str(1 - par))
        A.label(LP('loop'))
        A("s_waitcnt vmcnt(2)")
        A.label(LP('loop') + "x")
        lg.clear()
        A(f"""
        s_mov_b32 s{sT3}, s{sMA}
        s_mov_b32 s{sMA}, s{sMW}
        s_mov_b32 s{sMW}, s{sMR}
        s_mov_b32 s{sMR}, s{sT3}
        s_mov_b32 s{sSPIN}, {SPIN}
        s_sub_u32 s{sT0}, s{sMA}, {HI}
        s_add_u32 s{sT1}, s{sT0}, s{sB1}
        s_add_u32 s{sT2}, s{sT0}, 2048
        s_add_u32 s{sT3}, s{sT0}, s{sB3}
        s_add_u32 s{sT4}, s{sSEG}, {WS_KX - HI}
        s_add_u32 m0, s{sWB}, {L_MEMF + 3072}
        """)
        for f in range(3): wvread(f)
        A(f"s_cmp_eq_u32 s{W}, 1\ns_cbranch_scc1 {LP('cdj')}")
        if CD: A(f"s_sleep {CD}")
        P1 = AS[3]
        TQ("cgo")
        cload(RL, sT1)
        if CGAP:
            A(f"s_sleep {CGAP}")
            cload(P1, sT1)
            A("s_waitcnt vmcnt(1)")
        else:
            A.label(LP('cw0'))
            A("s_waitcnt vmcnt(0)")
        chk(RL, f"s_cbranch_vccnz {LP('cf0')}")
        A.label(LP('cd0'))
        TR(3)
        A(f"ds_write_b128 {v(vC1)}, {v(RL,4)} offset:{L_MEMF-HI}")
        A.label(LP('cdj'))
        TQ("cdj")
        A("s_waitcnt lgkmcnt(0)\ns_barrier")
        if trace: TR(4); A("s_waitcnt lgkmcnt(0)")
        lg.clear()
        if cnt: A(f"s_sub_u32 s96, {SPIN}, s{sSPIN}\ns_add_u32 s20, s20, s96")
        PH(0)
        def aread(i):
            A(f"ds_read_b128 {v(AS[i&3],4)}, {v(vAF)} offset:{L_MEMF-HI+i*512}")
            lg.push(f"A{i}")
        def dma(so): A(f"buffer_load_dwordx4 {v(vCON)}, {srd(SRD_WS)}, s{so} offen sc1 lds")
        VXF = [AS[2], AS[3]]
        TQ("start")
        for i in range(3): aread(i)
        f = 0
        nxt = 3
        late = []
        for i, kk in enumerate(korder):
            a_ = v(AS[i & 3], 4)
            TQ(f"q{i}")
            lg.wait(f"A{i}")
            sm(AQ, a_, WQ(kk))
            if i == 0: A("s_waitcnt vmcnt(0)"); aread(3); nxt = 4
            if i == R2AT: dma(sT2)
            if i in (R2AT + 1, R2AT + 2): dma(sT4)
            if i == R3AT: dma(sT3)
            sm(AK, a_, WK(kk))
            if i == R2AT: A(f"s_add_u32 m0, s{sWB}, {L_KX}")
            if i == R2AT + 1: A(f"s_add_u32 m0, s{sWB}, {L_KX + 4096}\ns_add_u32 s{sT4}, s{sT4}, 4096")
            if i == R2AT + 2: A(f"s_mov_b32 m0, s{sM3}")
            if i in (B2AT, 12):
                A(f"s_waitcnt vmcnt({2 if i == B2AT else 0})\ns_barrier")
                while nxt <= i + 3: aread(nxt); nxt += 1
            if i == 7 and 'step' in hooks: hooks['step']()
            if i == 8: A(f"s_add_u32 s{sT0}, s{sSEG}, {WS_VX}\ns_lshr_b32 s{sT2}, s{sSEG}, 2")
            if i == 9: A(f"s_add_u32 s{sT1}, s{sT2}, {0x40000000 if nokm else WS_VM - L_Q}\ns_add_u32 s{sT4}, s{sT2}, {0x40000000 if nokm else WS_KM - L_Q}")
            if kk == 17:
                sm(AV, a_, v(WVR, 8))
            elif i >= 16:
                late.append((a_, f)); f += 1
            else:
                lg.wait(f"W{f}")
                sm(AV, a_, v(WR[f % 3], 8))
                if f + 3 < 17: wvread(f + 3)
                f += 1
            lim = 5 if i < B2AT else (13 if i < 12 else 17)
            while nxt <= min(i + 4, lim): aread(nxt); nxt += 1
            if i == 14: A(f"buffer_load_dwordx4 {v(VXF[0],4)}, {v(vVX)}, {srd(SRD_WS)}, s{sT0} offen sc1")
            if i == 15: A(f"buffer_load_dwordx4 {v(VXF[1],4)}, {v(vVX)}, {srd(SRD_WS)}, s{sT0} offen offset:256 sc1")
        TQ("qend")
        PH(1)
        if trace: A("s_waitcnt lgkmcnt(0)"); TR(5); A("s_waitcnt lgkmcnt(0)")
        S_ = D0 + 28
        QF = [D0 + 0, D0 + 4]; KF = [D0 + 12, D0 + 16]
        KXR = [D0 + 44, D0 + 48, D0 + 40]
        kxl = [(fb, kt) for fb in range(4) for kt in range(2)]
        def kxread(n):
            fb, kt = kxl[n]
            A(f"ds_read_b128 {v(KXR[n % 3],4)}, {v(vKX)} offset:{L_KX-HI+fb*2048+kt*128}")
            lg.push(f"X{n}")
        KP, ZP = D0 + 52, D0 + 54
        def latev(n):
            a_, f_ = late[n]
            lg.wait(f"W{f_}")
            sm(AV, a_, v(WR[f_ % 3], 8))
        def qk_write():
            pk2(AQ, AQ)
            A(f"ds_write_b64 {v(vQW)}, {v(AQ,2)}")
            pk2(KP, AK)
            A(f"ds_write_b64 {v(vQW)}, {v(KP,2)} offset:{L_K-L_Q}")
        latev(0)
        kxread(0); kxread(1)
        A(f"s_add_u32 s{sT0}, s{sSEG}, {WS_KX + WARMD*32*8192}\ns_add_u32 s{sT2}, s{sSEG}, {WS_VX + WARMD*32*8192}\ns_nop 1")
        TQ("s2a")
        qk_write(); lg.push("qk", 2)
        TQ("s2b")
        latev(1)
        kxread(2)
        A(f"""
        v_cmp_u_f32 vcc, {v(AK)}, {v(AK+1)}
        v_cmp_u_f32 s[{sRDLY2}:{sRDLY2+1}], {v(AK+2)}, {v(AK+3)}
        s_or_b64 vcc, vcc, s[{sRDLY2}:{sRDLY2+1}]
        s_cbranch_vccnz {LP('slow')}
        """)
        TQ("s2c")
        lg.wait("qk")
        TQ("s2d")
        A.label(LP('slowret'))
        A("s_barrier")
        TQ("s2end")
        PH(2)
        def qk_reads(fb):
            b = fb & 1
            for (dst, base, tg) in ((QF[b], 0, "Q"), (KF[b], L_K - L_Q, "K")):
                A(f"ds_read_b64_tr_b16 {v(dst,2)}, {v(vQR)} offset:{base+fb*512}")
                A(f"ds_read_b64_tr_b16 {v(dst+2,2)}, {v(vQR)} offset:{base+fb*512+128}")
                lg.push(f"{tg}{fb}", 2)
        qk_reads(0); qk_reads(1)
        pk2(ZP, AV)
        A(f"""
        s_cmp_eq_u32 s{sSTEP}, {last}
        s_cbranch_scc1 {L('done')}
        """)
        ON = D0 + 0; VMT = D0 + 8; M0_, M1_ = D0 + 14, D0 + 15
        PX = D0 + 40; PM = PX + 4
        vmt_ops = [f"v_cndmask_b32 {v(VMT)}, 0, {v(ZP)}, s[{sLO32}:{sLO32+1}]",
                   f"v_cndmask_b32 {v(VMT+1)}, 0, {v(ZP+1)}, s[{sLO32}:{sLO32+1}]",
                   f"v_mov_b32 {v(VMT+2)}, 0", f"v_mov_b32 {v(VMT+3)}, 0"]
        for fb in range(4):
            b = fb & 1
            TQ(f"fb{fb}")
            for kt in range(2):
                n = 2 * fb + kt
                lg.wait(f"Q{fb}"); lg.wait(f"X{n}")
                mf(S_ + 4 * kt, v(KXR[n % 3], 4), v(QF[b], 4), fb == 0)
                if n + 3 < 8: kxread(n + 3)
                if n == 0: A(f"buffer_store_dwordx2 {v(KP,2)}, {v(vQW)}, {srd(SRD_WS)}, s{sT4} offen sc1")
                if n == 3: A(f"buffer_store_dwordx2 {v(ZP,2)}, {v(vQW)}, {srd(SRD_WS)}, s{sT1} offen sc1")
                if fb == 1: A(vmt_ops.pop(0)); A(vmt_ops.pop(0))
                if fb == 3: A(f"v_mov_b32 {v(ON+2*kt)}, 0x3f803f80\nv_mov_b32 {v(ON+2*kt+1)}, 0x3f803f80")
            lg.wait(f"K{fb}")
            mf(S_ + 8, v(KF[b], 4), v(QF[b], 4), fb == 0)
            if fb + 2 < 4: qk_reads(fb + 2)
            if fb == 2 and not nowarm:
                A(f"""
                s_mov_b64 exec, s[{sU}:{sU+1}]
                v_lshlrev_b32 {v(vSP)}, 3, {v(vCON)}
                v_and_b32 {v(TMP)}, 0x1fff, {v(vSP)}
                buffer_load_dword {v(vSP)}, {v(TMP)}, {srd(SRD_WS)}, s{sT0} offen sc1
                buffer_load_dword {v(vSP)}, {v(TMP)}, {srd(SRD_WS)}, s{sT2} offen sc1
                """)
                if merged:
                    A(f"""
                    s_and_b64 exec, exec, 1
                    v_mov_b32 {v(TMP)}, s{sSTEP}
                    v_mov_b32 {v(D0+52)}, s{sPRG}
                    buffer_store_dword {v(TMP)}, {v(D0+52)}, {srd(SRD_WS)}, 0 offen sc1
                    """)
                A("s_mov_b64 exec, -1")
        TQ("scend")
        PH(3)
        A(f"""
        v_cndmask_b32 {v(VMT+4)}, 0, {v(ZP)}, s[{sHI32}:{sHI32+1}]
        v_cndmask_b32 {v(VMT+5)}, 0, {v(ZP+1)}, s[{sHI32}:{sHI32+1}]
        v_mov_b32 {v(ON+4)}, 0x3f003f00
        v_mov_b32 {v(ON+5)}, 0x3f003f00
        v_max3_f32 {v(M0_)}, {v(S_+0)}, {v(S_+1)}, {v(S_+2)}
        v_mov_b32 {v(ON+6)}, 0
        v_max3_f32 {v(M1_)}, {v(S_+3)}, {v(S_+4)}, {v(S_+5)}
        v_max3_f32 {v(M0_)}, {v(M0_)}, {v(S_+6)}, {v(S_+7)}
        v_max3_f32 {v(M1_)}, {v(M1_)}, {v(S_+8)}, {v(S_+9)}
        v_max3_f32 {v(M0_)}, {v(M0_)}, {v(S_+10)}, {v(S_+11)}
        v_max_f32 {v(M0_)}, {v(M0_)}, {v(M1_)}
        v_max_f32 {v(M1_)}, {v(M0_)}, {v(M1_)}
        v_mov_b32 {v(ON+7)}, 0
        v_mov_b32 {v(PM+2)}, 0
        v_permlane32_swap_b32 {v(M0_)}, {v(M1_)}
        v_max_f32 {v(M0_)}, {v(M0_)}, {v(M1_)}
        v_max_f32 {v(M1_)}, {v(M0_)}, {v(M1_)}
        v_mov_b32 {v(PM+3)}, 0
        s_nop 0
        v_permlane16_swap_b32 {v(M0_)}, {v(M1_)}
        v_max_f32 {v(M0_)}, {v(M0_)}, {v(M1_)}
        v_mul_f32 {v(M0_)}, s{sC}, {v(M0_)}
        """)
        for i in range(6):
            A(f"v_pk_fma_f32 {v(S_+2*i,2)}, {v(S_+2*i,2)}, s[{sC}:{sC+1}], {v(M0_,2)} op_sel_hi:[1,1,0] neg_lo:[0,0,1] neg_hi:[0,0,1]")
        for i in range(12):
            A(f"v_exp_f32 {v(S_+i)}, {v(S_+i)}")
            if i >= 2 and i % 2 == 0: A(f"v_cvt_pk_bf16_f32 {v(PX+i//2-1)}, {v(S_+i-2)}, {v(S_+i-1)}")
        OT, OT1, LS = D0 + 16, D0 + 48, S_
        TQ("expend")
        A(f"""
        s_waitcnt vmcnt({(2 if nowarm else 4) + (1 if merged else 0)})
        v_cvt_pk_bf16_f32 {v(PX+5)}, {v(S_+10)}, {v(S_+11)}
        v_mfma_f32_16x16x32_bf16 {v(LS,4)}, {v(ON,4)}, {v(PX,4)}, 0
        v_mfma_f32_16x16x32_bf16 {v(OT,4)}, {v(VXF[0],4)}, {v(PX,4)}, 0
        v_mfma_f32_16x16x32_bf16 {v(LS,4)}, {v(ON+4,4)}, {v(PM,4)}, {v(LS,4)}
        v_mfma_f32_16x16x32_bf16 {v(OT,4)}, {v(VMT,4)}, {v(PM,4)}, {v(OT,4)}
        v_mfma_f32_16x16x32_bf16 {v(OT1,4)}, {v(VXF[1],4)}, {v(PX,4)}, 0
        v_mfma_f32_16x16x32_bf16 {v(OT1,4)}, {v(VMT+2,4)}, {v(PX+2,4)}, {v(OT1,4)}
        """)
        WAo = [D0 + 32, D0 + 36, D0 + 0, D0 + 4]
        WA8 = D0 + 20
        OF = [D0 + 40, D0 + 44, D0 + 48, D0 + 52]
        zl = [WAo[p] + i for p in range(4) for i in range(4)]
        for r in zl[:5]: A(f"v_mov_b32 {v(r)}, 0")
        A(f"v_rcp_f32 {v(M0_)}, {v(LS)}")
        A(f"v_mov_b32 {v(zl[5])}, 0")
        A(f"v_pk_mul_f32 {v(OT,2)}, {v(OT,2)}, {v(M0_,2)} op_sel_hi:[1,0]")
        A(f"v_pk_mul_f32 {v(OT+2,2)}, {v(OT+2,2)}, {v(M0_,2)} op_sel_hi:[1,0]")
        pk2(OT, OT)
        A(f"ds_write_b64 {v(vOW)}, {v(OT,2)}")
        A(f"v_pk_mul_f32 {v(OT1,2)}, {v(OT1,2)}, {v(M0_,2)} op_sel_hi:[1,0]")
        A(f"v_pk_mul_f32 {v(OT1+2,2)}, {v(OT1+2,2)}, {v(M0_,2)} op_sel_hi:[1,0]")
        pk2(OT1, OT1)
        A(f"ds_write_b64 {v(vOW)}, {v(OT1,2)} offset:256")
        for r in zl[6:]: A(f"v_mov_b32 {v(r)}, 0")
        A(f"""
        s_add_u32 s{sT0}, s{sPW}, {4*65536}
        s_add_u32 s{sT1}, s{sPW}, {65536}
        s_waitcnt lgkmcnt(0)
        """)
        TQ("smend")
        PH(4)
        A("s_barrier")
        if trace: TR(0); A("s_waitcnt lgkmcnt(0)")
        lg.clear()
        for ks in range(4):
            A(f"ds_read_b128 {v(OF[ks],4)}, {v(vAF)} offset:{L_O-HI+ks*512}"); lg.push(f"O{ks}")
        SEL = D0 + 12; RT = D0 + 16; RDd = D0 + 20; RBS = [D0 + 24, D0 + 40]
        A(f"""
        s_add_u32 s{sT2}, s{sPW}, {2*65536}
        s_add_u32 s{sT3}, s{sPW}, {3*65536}
        s_add_u32 s{sSTEP}, s{sSTEP}, 1
        s_add_u32 s{sSEG}, s{sSEG}, {0 if fixseg else 32*8192}
        s_mov_b32 s{sSPIN}, {SPIN}
        """)
        for r in range(4): A(f"v_cndmask_b32 {v(SEL+r)}, 0, {v(SELV)}, s[{sSEL+2*r}:{sSEL+2*r+1}]")
        TQ("wostart")
        PH(5)
        tagop = lambda r: (f"v_or_b32 {v(r)}, 1, {v(r)}" if par else f"v_and_b32 {v(r)}, -2, {v(r)}")
        def out_ops(a0, soff, half=False):
            ops = [f"v_cvt_pk_bf16_f32 {v(a0)}, {v(a0)}, {v(a0+1)}", f"v_cvt_pk_bf16_f32 {v(a0+1)}, {v(a0+2)}, {v(a0+3)}",
                   tagop(a0), tagop(a0 + 1)]
            st = f"buffer_store_dwordx2 {v(a0,2)}, {v(vPST)}, {srd(SRD_WS)}, s{soff} offen{sc}"
            if half: st = f"s_mov_b64 exec, s[{sLO32}:{sLO32+1}]\n{st}\ns_mov_b64 exec, -1"
            return ops + [st]
        mfl = [("d", ks) for ks in range(4)] + [(p, ks) for p in range(4) for ks in range(4)]
        groups = [(3, out_ops(WA8, sT0, True))] + [(7 + 4 * p, out_ops(WAo[p], [sPW, sT1, sT2, sT3][p])) for p in range(4)]
        ic = [0]; pos = {}
        def emit(s_):
            A(s_); ic[0] += len([x for x in s_.split("\n") if x.strip()])
        cur = []; gi = 0
        for n, (p, ks) in enumerate(mfl):
            if p == "d":
                n0 = len(A.lines); lg.wait(f"O{ks}"); ic[0] += len(A.lines) - n0
                emit(f"v_mfma_f32_16x16x32_bf16 {v(WA8,4)}, {v(OF[ks],4)}, {WO8(ks)}, {'0' if ks == 0 else v(WA8,4)}")
            else:
                emit(f"v_smfmac_f32_16x16x64_bf16 {v(WAo[p],4)}, {v(OF[ks],4)}, {WO(p,ks)}, {v(IDX)}")
            pos[n] = ic[0]
            k = 0
            while k < 2:
                if not cur and gi < len(groups) and groups[gi][0] <= n and ic[0] - pos[groups[gi][0]] >= 8:
                    cur = list(groups[gi][1]); gi += 1
                if not cur: break
                emit(cur.pop(0)); k += 1
        while cur or gi < len(groups):
            if not cur:
                need = 8 - (ic[0] - pos[groups[gi][0]])
                if need > 0: emit(f"s_nop {need-1}"); ic[0] += need - 1
                cur = list(groups[gi][1]); gi += 1
            emit(cur.pop(0))
        TQ("woend")
        PH(6)
        TR(1)
        A(f"s_cmp_eq_u32 s{sRED}, 0\ns_cbranch_scc1 {LP('nored')}")
        def rload(sidx):
            for i in range(4):
                A(f"buffer_load_dwordx4 {v(RBS[sidx]+4*i,4)}, {v(vRED)}, {srd(SRD_WS)}, s{sPW} offen offset:{i*1024}{ld}")
        def rproc(sidx, br):
            for i in range(4):
                b = RBS[sidx] + 4 * i
                A(f"s_waitcnt vmcnt({(7 if RGAP else 3)-i})")
                mf(RDd, v(SEL, 4), v(b, 4), i == 0)
                o3 = (lambda d, x, y, z: f"v_bitop3_b32 {v(d)}, {v(x)}, {v(y)}, {v(z)} bitop3:0x80") if par else (lambda d, x, y, z: f"v_or3_b32 {v(d)}, {v(x)}, {v(y)}, {v(z)}")
                if i == 0:
                    A(o3(RT, b, b + 1, b + 2)); A(o3(RT, RT, b + 3, b + 3))
                else:
                    A(o3(RT, RT, b, b + 1)); A(o3(RT, RT, b + 2, b + 3))
            A(f"v_and_b32 {v(RT)}, 1, {v(RT)}\nv_cmp_ne_u32 vcc, {par}, {v(RT)}\n{br}")
        A(f"""
        s_mov_b32 s{sT0}, s{sRDLY}
    {LP('rdl')}:
        s_cmp_eq_u32 s{sT0}, 0
        s_cbranch_scc1 {LP('rgo')}
        s_sleep 1
        s_sub_u32 s{sT0}, s{sT0}, 1
        s_branch {LP('rdl')}
    {LP('rgo')}:
        """)
        TQ("rgo")
        rload(0)
        zero_acc()
        if RGAP:
            A(f"s_sleep {RGAP}")
            rload(1)
        A.label(LP('rp0'))
        rproc(0, f"s_cbranch_vccnz {LP('rf0')}")
        A.label(LP('rdone'))
        TQ("rdone")
        A(f"""
        {'s_sub_u32 s96, %d, s%d' % (SPIN, sSPIN) if cnt else 's_nop 0'}
        {'s_add_u32 s21, s21, s96' if cnt else 's_nop 0'}
        s_nop 0
        v_cndmask_b32 {v(RT)}, {v(RDd)}, {v(RDd+2)}, s[{sHI32}:{sHI32+1}]
        v_cndmask_b32 {v(RT+1)}, {v(RDd+1)}, {v(RDd+3)}, s[{sHI32}:{sHI32+1}]
        v_cndmask_b32 {v(RT+3)}, {v(RT+1)}, {v(RT)}, s[{sN8}:{sN8+1}]
        v_cndmask_b32 {v(RT+2)}, {v(RT)}, {v(RT+1)}, s[{sN8}:{sN8+1}]
        s_nop 0
        v_add_f32_dpp {v(RT+2)}, {v(RT+3)}, {v(RT+2)} row_ror:8 row_mask:0xf bank_mask:0xf
        v_mov_b32 {v(RT+3)}, {v(RT+2)}
        s_nop 1
        v_permlane16_swap_b32 {v(RT+2)}, {v(RT+3)}
        v_cvt_pk_bf16_f32 {v(RT+2)}, {v(RT+2)}, {v(RT+3)}
        v_min_u32 {v(TMP)}, -2, {v(RT+2)}
        s_mov_b64 exec, s[{sPM}:{sPM+1}]
        buffer_store_dword {v(TMP)}, {v(vPUB)}, {srd(SRD_WS)}, s{sMW} offen{sc}
        buffer_store_dword {v(vSP)}, {v(vPUB)}, {srd(SRD_WS)}, s{sMA} offen{sc}
        s_mov_b64 exec, -1
        """)
        TQ("pub")
        PH(7)
        TR(2)
        if trace: A("s_waitcnt lgkmcnt(0)")
        A(f"s_branch {nxt_loop}")
        A.label(LP('nored'))
        if trace: A("s_waitcnt vmcnt(0)"); TR(2); A("s_waitcnt lgkmcnt(0)")
        zero_acc()
        if merged:
            A(f"s_cmp_lg_u32 s{W}, 3\ns_cbranch_scc1 {LP('nkv')}\ns_add_u32 s{sT0}, s{sSTEP}, {WARMD + 1}\ns_min_u32 s{sT0}, s{sT0}, 64")
            kv_wait(sT0, LP('kv'))
            A.label(LP('nkv'))
        if CDN: A(f"s_sleep {CDN}")
        A(f"s_branch {nxt_loop}x")
        A.label(LP('rf0'))
        rload(0); spin()
        if RGAP:
            rproc(1, f"s_cbranch_vccz {LP('rdone')}")
            rload(1); spin()
        A(f"s_branch {LP('rp0')}")
        A.label(LP('cf0'))
        cload(RL, sT1); spin()
        if CGAP:
            A("s_waitcnt vmcnt(1)")
            chk(P1, f"s_cbranch_vccz {LP('cd1')}")
            cload(P1, sT1); spin()
            A("s_waitcnt vmcnt(1)")
            chk(RL, f"s_cbranch_vccz {LP('cd0')}")
            A(f"s_branch {LP('cf0')}")
            A.label(LP('cd1'))
            TR(3)
            A(f"ds_write_b128 {v(vC1)}, {v(P1,4)} offset:{L_MEMF-HI}\ns_branch {LP('cdj')}")
        else:
            A(f"s_branch {LP('cw0')}")
        A.label(LP('slow'))
        A(f"s_sub_u32 s{sT3}, s{sMA}, {HI}\ns_waitcnt lgkmcnt(0)\ns_nop 7")
        zero_acc()
        for kp in range(9):
            lab = LP(f'sp{kp}_')
            for h in range(2):
                kk = 2 * kp + h
                if kk != 17:
                    A(f"ds_read_b128 {v(WR[h],4)}, {v(vWV)} offset:{kk*2048}\nds_read_b128 {v(WR[h]+4,4)}, {v(vWV)} offset:{kk*2048+1024}")
            A(f"""
{lab}:
            buffer_load_dwordx4 {v(AS[0],4)}, {v(vAF)}, {srd(SRD_WS)}, s{sT3} offen sc1
            buffer_load_dwordx4 {v(AS[1],4)}, {v(vAF)}, {srd(SRD_WS)}, s{sT3} offen offset:512 sc1
            """)
            spin()
            A(f"""
            s_waitcnt vmcnt(0) lgkmcnt(0)
            v_max3_u32 {v(TMP)}, {v(AS[0])}, {v(AS[0]+1)}, {v(AS[0]+2)}
            v_max3_u32 {v(TMP)}, {v(TMP)}, {v(AS[0]+3)}, {v(AS[1])}
            v_max3_u32 {v(TMP)}, {v(TMP)}, {v(AS[1]+1)}, {v(AS[1]+2)}
            v_max_u32 {v(TMP)}, {v(TMP)}, {v(AS[1]+3)}
            v_cmp_eq_u32 vcc, -1, {v(TMP)}
            s_cbranch_vccnz {lab}
            """)
            for h in range(2):
                kk = 2 * kp + h
                sm(AQ, v(AS[h], 4), WQ(kk)); sm(AK, v(AS[h], 4), WK(kk)); sm(AV, v(AS[h], 4), v(WR[h], 8) if kk != 17 else v(WVR, 8))
            A(f"s_add_u32 s{sT3}, s{sT3}, 1024")
        if prof: A(f"s_mov_b64 exec, {1 << 10}\nv_add_u32 v1, 63, v1\ns_mov_b64 exec, -1")
        if cnt: A("s_add_u32 s20, s20, 0x10000")
        A("s_nop 7")
        qk_write()
        A(f"ds_read_b128 {v(KXR[2],4)}, {v(vKX)} offset:{L_KX-HI+2048}")
        A(f"s_waitcnt lgkmcnt(0)\ns_branch {LP('slowret')}")
    step_body(0, sc, ''); step_body(1, sc, '')
    if merged:
        step_body(0, ' sc1', 'S'); step_body(1, ' sc1', 'S')
    A.label(L('done'))
    A(f"""
    s_lshr_b32 s{sT2}, s{sSEG}, 2
    s_add_u32 s{sT1}, s{sT2}, {WS_VM - L_Q}
    s_add_u32 s{sT4}, s{sT2}, {WS_KM - L_Q}
    buffer_store_dwordx2 {v(D0+52,2)}, {v(vQW)}, {srd(SRD_WS)}, s{sT4} offen sc1
    buffer_store_dwordx2 {v(D0+54,2)}, {v(vQW)}, {srd(SRD_WS)}, s{sT1} offen sc1
    """)
    A("s_waitcnt vmcnt(0) lgkmcnt(0)")
    if merged:
        A(f"""
        s_barrier
        s_cmp_lg_u32 s{W}, 3
        s_cbranch_scc1 {L('nfin')}
        v_mov_b32 {v(TMP)}, 64
        v_mov_b32 {v(D0+52)}, s{sPRG}
        s_mov_b64 exec, 1
        buffer_store_dword {v(TMP)}, {v(D0+52)}, {srd(SRD_WS)}, 0 offen sc1
        s_mov_b64 exec, -1
        s_waitcnt vmcnt(0)
{L('nfin')}:
        """)
    if cnt:
        A(f"v_mov_b32 v1, s20\ns_mov_b64 exec, 2\nv_mov_b32 v1, s21\ns_mov_b64 exec, -1")
        A("s_memtime s[96:97]\ns_memrealtime s[100:101]\ns_waitcnt lgkmcnt(0)\ns_sub_u32 s96, s96, s99\ns_sub_u32 s100, s100, s98")
        A("s_mov_b64 exec, 4\nv_mov_b32 v1, s96\ns_mov_b64 exec, 8\nv_mov_b32 v1, s100\ns_mov_b64 exec, -1")
    if trace:
        for i in range(6): A(f"s_mov_b64 exec, {1 << i}\nv_mov_b32 v1, s{8+2*i}")
        A("s_mov_b64 exec, -1")
    if tq:
        for i in range(len(tq)): A(f"s_mov_b64 exec, {1 << i}\nv_mov_b32 v1, s{8+2*i}")
        A("s_mov_b64 exec, -1")
    if prof or cnt or trace or tq:
        A(f"""
        s_lshl_b32 s96, s{s_head}, 2
        s_add_u32 s96, s96, s{W}
        s_lshl_b32 s96, s96, 8
        s_add_u32 s96, s96, {WS_STAMP + 0x10000}
        v_lshrrev_b32 v28, 2, {v(vCON)}
        v_and_b32 v28, 255, v28
        buffer_store_dword v1, v28, {srd(SRD_WS)}, s96 offen
        s_waitcnt vmcnt(0)
        """)
    stamp(A, 10, s_id=s_head)
```

```python
from common import *
from mod_r4 import f32bits, CEXP

NEGBIG = -1.0e9 / (128 ** -0.5)

XV_LANE16, XV_KM, XV_VM, XV_V = 2, 3, 4, 5
def X_setup(A):
    A(f"""
    v_lshlrev_b32 {v(XV_LANE16)}, 4, v1
    v_bfe_u32 {v(XV_KM)}, v1, 2, 2
    v_lshrrev_b32 v6, 5, v1
    v_lshl_add_u32 {v(XV_KM)}, v6, 2, {v(XV_KM)}
    v_lshlrev_b32 {v(XV_KM)}, 4, {v(XV_KM)}
    v_and_b32 v7, 1, v1
    v_lshl_add_u32 {v(XV_KM)}, v7, 3, {v(XV_KM)}
    s_lshl_b32 s60, s{S_WAVE}, 11
    v_add_u32 {v(XV_KM)}, s60, {v(XV_KM)}
    v_and_b32 {v(XV_VM)}, 31, v1
    v_lshlrev_b32 {v(XV_VM)}, 4, {v(XV_VM)}
    v_lshl_add_u32 {v(XV_VM)}, v6, 3, {v(XV_VM)}
    s_lshl_b32 s60, s{S_WAVE}, 9
    v_add_u32 {v(XV_VM)}, s60, {v(XV_VM)}
    s_lshl_b32 s60, s{S_WAVE}, 11
    v_add_u32 {v(XV_V)}, s60, {v(XV_LANE16)}
    """)

def X_item(A, s_item, sc=" sc1", pre_wait=None):
    Q, K, KM, V_, VM = 8, 40, 72, 104, 112
    SX, SM = 116, 132
    T0, T1 = 148, 149
    P0, P1, PM = 8, 12, 16
    O = 40
    A(f"""
    s_lshl_b32 s60, s{s_item}, 13
    s_add_u32 s61, s60, {WS_QX}
    s_add_u32 s62, s60, {WS_KX}
    s_add_u32 s63, s60, {WS_VX}
    """)
    for i in range(8):
        if i == 4:
            A("s_add_u32 s61, s61, 4096\ns_add_u32 s62, s62, 4096")
        A(f"buffer_load_dwordx4 {v(Q+4*i,4)}, {v(XV_LANE16)}, {srd(SRD_WS)}, s61 offen offset:{(i&3)*1024} sc1")
        A(f"buffer_load_dwordx4 {v(K+4*i,4)}, {v(XV_LANE16)}, {srd(SRD_WS)}, s62 offen offset:{(i&3)*1024} sc1")
    for j in range(2):
        A(f"buffer_load_dwordx4 {v(V_+4*j,4)}, {v(XV_V)}, {srd(SRD_WS)}, s63 offen offset:{j*1024} sc1")
    for i in range(8):
        A(f"s_waitcnt vmcnt({16 - 2*i})")
        A(f"v_mfma_f32_32x32x16_bf16 {v(SX,16)}, {v(K+4*i,4)}, {v(Q+4*i,4)}, {'0' if i == 0 else v(SX,16)}")
    if pre_wait: pre_wait()
    A(f"""
    s_lshl_b32 s60, s{s_item}, 11
    s_add_u32 s61, s60, {WS_KM}
    s_add_u32 s62, s60, {WS_VM}
    """)
    A(f"s_lshl_b32 m0, s{S_WAVE}, 11\ns_nop 0")
    for i in range(2):
        A(f"buffer_load_dwordx4 {v(XV_LANE16)}, {srd(SRD_WS)}, s61 offen offset:{i*1024} sc1 lds")
    A(f"buffer_load_dwordx2 {v(VM,2)}, {v(XV_VM)}, {srd(SRD_WS)}, s62 offen sc1")
    A(f"v_mov_b32 {v(VM+2)}, 0\nv_mov_b32 {v(VM+3)}, 0")
    A(f"v_mov_b32 {v(T1)}, {f32bits(NEGBIG)}")
    for i in range(16):
        m = 0
        for l in range(64):
            key = 8 * (i // 4) + 4 * (l >> 5) + i % 4
            if key <= (l & 31): m |= 1 << l
        A(f"s_mov_b32 s60, {m & 0xffffffff}\ns_mov_b32 s61, {m >> 32}")
        A(f"v_cndmask_b32 {v(SX+i)}, {v(T1)}, {v(SX+i)}, s[60:61]")
    A(f"v_max3_f32 {v(T0)}, {v(SX)}, {v(SX+1)}, {v(SX+2)}")
    for i in range(3, 15, 2):
        A(f"v_max3_f32 {v(T0)}, {v(T0)}, {v(SX+i)}, {v(SX+i+1)}")
    A(f"v_max_f32 {v(T0)}, {v(T0)}, {v(SX+15)}")
    A("s_waitcnt vmcnt(1)")
    for i in range(8):
        A(f"ds_read_b64_tr_b16 {v(KM+4*i,2)}, {v(XV_KM)} offset:{i*256}")
        A(f"ds_read_b64_tr_b16 {v(KM+4*i+2,2)}, {v(XV_KM)} offset:{i*256+128}")
        if i == 6: A("s_waitcnt lgkmcnt(8)")
    for i in range(8):
        A(f"s_waitcnt lgkmcnt({min(8, 14 - 2*i)})")
        A(f"v_mfma_f32_32x32x16_bf16 {v(SM,16)}, {v(KM+4*i,4)}, {v(Q+4*i,4)}, {'0' if i == 0 else v(SM,16)}")
    A(f"""
    s_mov_b32 s60, {f32bits(CEXP)}
    s_nop 10
    v_max3_f32 {v(T0)}, {v(T0)}, {v(SM)}, {v(SM+1)}
    v_max3_f32 {v(T0)}, {v(T0)}, {v(SM+2)}, {v(SM+3)}
    v_mov_b32 {v(T1)}, {v(T0)}
    s_nop 1
    v_permlane32_swap_b32 {v(T0)}, {v(T1)}
    v_max_f32 {v(T0)}, {v(T0)}, {v(T1)}
    v_mul_f32 {v(T0)}, s60, {v(T0)}
    """)
    regs = [SX + i for i in range(16)] + [SM + i for i in range(4)]
    for r in regs: A(f"v_fma_f32 {v(r)}, {v(r)}, s60, -{v(T0)}")
    for r in regs: A(f"v_exp_f32 {v(r)}, {v(r)}")
    A("s_nop 0")
    A(f"v_add_f32 {v(T0)}, {v(regs[0])}, {v(regs[1])}")
    for r in regs[2:]: A(f"v_add_f32 {v(T0)}, {v(T0)}, {v(r)}")
    A(f"""
    v_mov_b32 {v(T1)}, {v(T0)}
    s_nop 1
    v_permlane32_swap_b32 {v(T0)}, {v(T1)}
    v_add_f32 {v(T0)}, {v(T0)}, {v(T1)}
    v_rcp_f32 {v(T0)}, {v(T0)}
    s_nop 0
    """)
    for r in regs: A(f"v_mul_f32 {v(r)}, {v(r)}, {v(T0)}")
    for i in range(8): A(f"v_cvt_pk_bf16_f32 {v(P0+i)}, {v(SX+2*i)}, {v(SX+2*i+1)}")
    for i in range(2): A(f"v_cvt_pk_bf16_f32 {v(PM+i)}, {v(SM+2*i)}, {v(SM+2*i+1)}")
    A(f"""
    v_mov_b32 {v(PM+2)}, 0
    v_mov_b32 {v(PM+3)}, 0
    s_waitcnt vmcnt(0)
    s_nop 0
    v_mfma_f32_32x32x16_bf16 {v(O,16)}, {v(V_,4)}, {v(P0,4)}, 0
    v_mfma_f32_32x32x16_bf16 {v(O,16)}, {v(V_+4,4)}, {v(P1,4)}, {v(O,16)}
    v_mfma_f32_32x32x16_bf16 {v(O,16)}, {v(VM,4)}, {v(PM,4)}, {v(O,16)}
    s_lshl_b32 s60, s{s_item}, 13
    s_add_u32 s60, s60, {WS_OX}
    s_nop 10
    """)
    for i in range(8): A(f"v_cvt_pk_bf16_f32 {v(O+i)}, {v(O+2*i)}, {v(O+2*i+1)}")
    A(f"buffer_store_dwordx4 {v(O,4)}, {v(XV_V)}, {srd(SRD_WS)}, s60 offen{sc}")
    A(f"buffer_store_dwordx4 {v(O+4,4)}, {v(XV_V)}, {srd(SRD_WS)}, s60 offen offset:1024{sc}")

OV_L16, OV_RD, OV_ST, OV_A = 160, 161, 162, 163
O_RED = 131072
def O_setup(A, s_cb, keep=False):
    T0, T1, VD, VT = 164, 165, 166, 167
    A(f"""
    v_lshrrev_b32 {v(T0)}, 2, v1
    v_mul_u32_u24 {v(VD)}, 1152, {v(T0)}
    v_and_b32 {v(T0)}, 3, v1
    v_lshl_add_u32 {v(VD)}, {v(T0)}, 4, {v(VD)}
    s_lshl_b32 s60, s{s_cb}, 6
    s_mul_i32 s61, s{S_WAVE}, {1024*1152}
    s_add_u32 s60, s60, s61
    s_lshl_b32 s63, s{S_WAVE}, 15
    v_bfe_u32 {v(T0)}, v1, 2, 2
    v_lshrrev_b32 {v(T1)}, 5, v1
    v_lshl_add_u32 {v(T0)}, {v(T1)}, 2, {v(T0)}
    v_lshlrev_b32 {v(VT)}, 6, {v(T0)}
    v_bfe_u32 {v(T0)}, v1, 4, 1
    v_lshl_add_u32 {v(VT)}, {v(T0)}, 5, {v(VT)}
    v_and_b32 {v(T0)}, 3, v1
    v_lshl_add_u32 {v(VT)}, {v(T0)}, 3, {v(VT)}
    v_add_u32 {v(VT)}, s63, {v(VT)}
    """)
    def dma(hh):
        for n in range(8):
            A(f"s_add_u32 m0, s63, {(hh & 3)*8192 + n*1024}")
            A(f"s_add_u32 s62, s60, {(hh*128 + n*16)*1152}")
            A(f"buffer_load_dwordx4 {v(VD)}, {srd(SRD_WO)}, s62 offen lds")
    for hh in range(4): dma(hh)
    for hh in range(8):
        A(f"s_waitcnt vmcnt({min(3, 7-hh)*8})")
        for ks in range(8):
            for t in range(2):
                off = (hh & 3) * 8192 + (ks * 16 + t * 8) * 64
                A(f"ds_read_b64_tr_b16 {a((hh*8+ks)*4 + 2*t, 2)}, {v(VT)} offset:{off}")
        if hh + 4 < 8:
            A("s_waitcnt lgkmcnt(0)")
            dma(hh + 4)
    A("s_waitcnt lgkmcnt(0)")
    if not keep: O_addr(A, s_cb)

def O_addr(A, s_cb):
    T0 = 164
    A(f"""
    v_lshlrev_b32 {v(OV_A)}, 4, v1
    s_lshl_b32 s60, s{S_WAVE}, 12
    s_add_u32 s60, s60, {O_RED}
    v_add_u32 {v(OV_L16)}, s60, {v(OV_A)}
    s_lshl_b32 s60, s{S_WAVE}, 10
    s_add_u32 s60, s60, {O_RED}
    v_add_u32 {v(OV_RD)}, s60, {v(OV_A)}
    s_lshl_b32 s60, s{S_WAVE}, 16
    v_add_u32 {v(OV_A)}, s60, {v(OV_A)}
    v_and_b32 {v(T0)}, 31, v1
    v_mul_u32_u24 {v(OV_ST)}, 2304, {v(T0)}
    v_lshrrev_b32 {v(T0)}, 5, v1
    v_lshl_add_u32 {v(OV_ST)}, {v(T0)}, 3, {v(OV_ST)}
    s_lshl_b32 s60, s{s_cb}, 6
    s_lshl_b32 s61, s{S_WAVE}, 4
    s_add_u32 s60, s60, s61
    s_add_u32 s60, s60, 1152
    v_add_u32 {v(OV_ST)}, s60, {v(OV_ST)}
    """)

def O_item(A, s_seg, s_par):
    NR = 32
    F = 8
    ACC = 168
    R = 136
    A(f"""
    s_lshl_b32 s60, s{s_seg}, 18
    s_add_u32 s60, s60, {WS_OX}
    """)
    def ld(i):
        if i % 4 == 0 and i > 0:
            A("s_add_u32 s60, s60, 4096")
        A(f"buffer_load_dwordx4 {v(F+4*(i%NR),4)}, {v(OV_A)}, {srd(SRD_WS)}, s60 offen offset:{(i&3)*1024} sc1")
    for i in range(NR): ld(i)
    for i in range(64):
        A(f"s_waitcnt vmcnt({min(NR-1, 63-i)})")
        A(f"v_mfma_f32_32x32x16_bf16 {v(ACC,16)}, {a(4*i,4)}, {v(F+4*(i%NR),4)}, {'0' if i == 0 else v(ACC,16)}")
        if i + NR < 64: ld(i + NR)
    A(f"""
    v_add_u32 {v(R)}, s{s_par}, {v(OV_L16)}
    v_add_u32 {v(R+1)}, s{s_par}, {v(OV_RD)}
    s_xor_b32 s{s_par}, s{s_par}, 16384
    s_mul_i32 s60, s{s_seg}, {32*2304}
    s_nop 8
    """)
    for q in range(4):
        A(f"ds_write_b128 {v(R)}, {v(ACC+4*q,4)} offset:{q*1024}")
    A("s_waitcnt lgkmcnt(0)\ns_barrier")
    for q in range(4):
        A(f"ds_read_b128 {v(ACC+4*q,4)}, {v(R+1)} offset:{q*4096}")
    A("s_waitcnt lgkmcnt(2)")
    A(f"v_pk_add_f32 {v(ACC,2)}, {v(ACC,2)}, {v(ACC+4,2)}\nv_pk_add_f32 {v(ACC+2,2)}, {v(ACC+2,2)}, {v(ACC+6,2)}")
    A("s_waitcnt lgkmcnt(0)")
    A(f"v_pk_add_f32 {v(ACC+8,2)}, {v(ACC+8,2)}, {v(ACC+12,2)}\nv_pk_add_f32 {v(ACC+10,2)}, {v(ACC+10,2)}, {v(ACC+14,2)}")
    A(f"v_pk_add_f32 {v(ACC,2)}, {v(ACC,2)}, {v(ACC+8,2)}\nv_pk_add_f32 {v(ACC+2,2)}, {v(ACC+2,2)}, {v(ACC+10,2)}")
    A(f"""
    v_cvt_pk_bf16_f32 {v(ACC)}, {v(ACC)}, {v(ACC+1)}
    v_cvt_pk_bf16_f32 {v(ACC+1)}, {v(ACC+2)}, {v(ACC+3)}
    buffer_store_dwordx2 {v(ACC,2)}, {v(OV_ST)}, {srd(SRD_OUT)}, s60 offen
    """)
```

```python
import sys
from common import *
from mod_p import *
from mod_r4 import *
from mod_xo import *
from mod_f import *

OPT = {}
def kernel(name, body, vgpr=256, agpr=256):
    A = Asm()
    body(A)
    return kernel_head(name) + A.text(), kernel_desc(name, vgpr, agpr)

def k_P(A):
    prologue(A, 256, "KP_end")
    A("""s_lshr_b32 s58, s2, 3
    s_and_b32 s59, s2, 7""")
    A("""s_and_b32 s58, s2, 3
    s_lshl_b32 s58, s58, 3
    s_bfe_u32 s59, s2, 0x30003
    s_add_u32 s58, s58, s59
    s_lshr_b32 s59, s2, 6
    s_and_b32 s60, s2, 4
    s_add_u32 s59, s59, s60""")
    mod_P(A, 58, 59, 8, flags=False, sc=OPT.get('sc', ' sc1'), nost=OPT.get('nost', 0))
    A("KP_end:")
    A("s_endpgm")

def ticket_xcd0(A, endlabel):
    A(f"""
    s_getreg_b32 s59, hwreg(HW_REG_XCC_ID)
    s_and_b32 s59, s59, 15
    s_cmp_lg_u32 s59, 0
    s_cbranch_scc1 {endlabel}
    s_cmp_lg_u32 s{S_WAVE}, 0
    s_cbranch_scc1 TK_1
    v_mov_b32 v3, 1
    v_mov_b32 v4, 0
    s_mov_b64 exec, 1
    buffer_atomic_add v3, v4, {srd(SRD_DBG)}, 0 offen sc0 sc1
    s_waitcnt vmcnt(0)
    ds_write_b32 v4, v3
    s_waitcnt lgkmcnt(0)
    s_mov_b64 exec, -1
TK_1:
    s_barrier
    v_mov_b32 v4, 0
    ds_read_b32 v3, v4
    s_waitcnt lgkmcnt(0)
    v_readfirstlane_b32 s58, v3
    s_barrier
    s_cmp_ge_u32 s58, 32
    s_cbranch_scc1 {endlabel}
    """)

def k_R(A):
    prologue(A, 256, "KR_end")
    ticket_xcd0(A, "KR_end")
    mod_R(A, 58, **OPT.get('R', {}))
    A("s_branch KR_end")
    A(f"""
R_abort:
    v_mov_b32 v3, 0xdead
    v_mov_b32 v4, 60
    buffer_store_dword v3, v4, {srd(SRD_DBG)}, 0 offen
    s_waitcnt vmcnt(0)
KR_end:
    s_endpgm""")

def k_X(A):
    prologue(A, 256, "KX_end")
    X_setup(A)
    A("""s_mov_b32 s58, s2
KX_loop:""")
    X_item(A, 58)
    A("""s_add_u32 s58, s58, 256
    s_cmp_lt_u32 s58, 2048
    s_cbranch_scc1 KX_loop
KX_end:
    s_endpgm""")

def k_O(A):
    prologue(A, 252, "KO_end")
    A("""s_mul_hi_u32 s59, s2, 238609295
    s_mul_i32 s58, s59, 18
    s_sub_u32 s58, s2, s58
    s_mov_b32 s70, 0""")
    O_setup(A, 58)
    A("KO_loop:")
    O_item(A, 59, 70)
    A("""s_add_u32 s59, s59, 14
    s_cmp_lt_u32 s59, 64
    s_cbranch_scc1 KO_loop
KO_end:
    s_endpgm""")

def k_F0(A):
    prologue(A, 256, "KF0_end")
    F0(A, 2, 256)
    A("KF0_end:\ns_endpgm")
def mk_FG(which):
    def f(A):
        prologue(A, 255, f"KF{which}_end")
        A("""s_mul_hi_u32 s59, s2, 858993460
        s_mul_i32 s58, s59, 5
        s_sub_u32 s58, s2, s58""")
        FG(A, which, 58, 59, 51)
        A(f"KF{which}_end:\ns_endpgm")
    return f
def k_F2(A):
    prologue(A, 73, "KF2_end")
    A(f"""s_lshl_b32 s58, s2, 2
    s_add_u32 s58, s58, s{S_WAVE}
    s_cmp_gt_u32 s58, 288
    s_cbranch_scc1 KF2_end""")
    F2(A, 58)
    A("KF2_end:\ns_endpgm")

HEADER = open("cdna_kernels/" + NAME + ".s.ref").read().split("; Override launch")[0]

def build(kernels):
    txt = HEADER
    for (n, f, g, lds) in kernels:
        txt += f"; @launch kernel={n} grid=({g},1,1) block=(256,1,1) lds={lds}\n"
    txt += '.amdgcn_target "amdgcn-amd-amdhsa--gfx950"\n.text\n'
    descs = []
    seen = set()
    for (n, f, g, lds) in kernels:
        if n in seen: continue
        seen.add(n)
        t, d = kernel(n, f)
        txt += t; descs.append(d)
    txt += '.section .rodata,"a"\n'
    for d in descs:
        txt += ".p2align 6\n" + d
    return txt

if __name__ == "__main__":
    import common
    if "stamps" in sys.argv: common.STAMPS = True
    if "nosc" in sys.argv: OPT['sc'] = ''
    if "nt" in sys.argv: OPT['sc'] = ' nt'
    if "rdbg" in sys.argv: OPT['R'] = dict(last=1, dbg_noarm=True)
    if "prof" in sys.argv: OPT['R'] = dict(prof=True)
    for a_ in sys.argv:
        if a_.startswith("R:"):
            OPT.setdefault('R', {}).update(eval("dict(" + a_[2:] + ")"))
    if "nost" in sys.argv: OPT['nost'] = 1
    ks = [("p_kernel", k_P, 256, 163840), ("r_kernel", k_R, 256, 163840), ("x_kernel", k_X, 256, 8192), ("o_kernel", k_O, 252, 163840)]
    ksA = [("f0_kernel", k_F0, 256, 0), ("f1_kernel", mk_FG(1), 255, 131072), ("f2_kernel", k_F2, 73, 0), ("f3_kernel", mk_FG(3), 255, 131072)]
    if "aonly" in sys.argv: ks = ksA
    if "all" in sys.argv: ks = ksA + ks
    if "pr" in sys.argv: ks = ks[0:2]
    if "ronly" in sys.argv: ks = ks[1:2]
    if "merged" in sys.argv:
        from merged import k_merged
        common.STAMP_ID = 58
        ks = [("fused_kernel", lambda A: k_merged(A, OPT.get('R', {})), 256, 163840)]
    open(sys.argv[1], "w").write(build(ks))
```

```python
from common import *
from mod_p import *
from mod_r4 import mod_R
from mod_r4 import SPIN
from mod_xo import *
from mod_f import *

NW = 224
EV_LDS = 16384
sWID, sHEAD, sGRP, sCB, sOG, sXN, sON, sPAR, sITEM, sCG, sTG, sKAP, sSP = range(76, 89)

def role_assign(A, abort):
    A(f"""
    s_cmp_lg_u32 s{S_WAVE}, 0
    s_cbranch_scc1 RA_bc
    s_getreg_b32 s59, hwreg(HW_REG_XCC_ID)
    s_and_b32 s59, s59, 15
    s_mov_b64 exec, 1
    v_mov_b32 v3, 1
    s_mov_b32 s60, 32
    s_cmp_ge_u32 s59, 8
    s_cbranch_scc1 RA_not
    s_lshl_b32 s61, s59, 2
    v_mov_b32 v4, s61
    buffer_atomic_add v3, v4, {srd(SRD_DBG)}, 0 offen sc0 sc1
    s_waitcnt vmcnt(0)
    v_readfirstlane_b32 s60, v3
RA_not:
    v_mov_b32 v3, 1
    v_mov_b32 v4, {DBG_TOT}
    buffer_atomic_add v3, v4, {srd(SRD_DBG)}, 0 offen sc1
    s_lshl_b32 s58, s59, 5
    s_add_u32 s58, s58, s60
    s_cmp_lt_u32 s60, 32
    s_cbranch_scc1 RA_have
    v_mov_b32 v5, 1
    v_mov_b32 v4, {DBG_OVF}
    buffer_atomic_add v5, v4, {srd(SRD_DBG)}, 0 offen sc0 sc1
    s_waitcnt vmcnt(0)
    v_readfirstlane_b32 s61, v5
    s_mov_b64 exec, -1
    v_and_b32 v4, 15, v1
    v_lshlrev_b32 v4, 2, v4
    s_mov_b32 s63, {SPIN}
RA_poll:
    buffer_load_dword v5, v4, {srd(SRD_DBG)}, 0 offen sc1
    s_sub_u32 s63, s63, 1
    s_cbranch_scc1 {abort}
    s_waitcnt vmcnt(0)
    v_readlane_b32 s62, v5, {DBG_TOT//4}
    s_cmp_lt_u32 s62, 256
    s_cbranch_scc1 RA_poll
    s_mov_b32 s58, 255
    """)
    for x in range(8):
        A(f"""
        v_readlane_b32 s62, v5, {x}
        s_min_u32 s62, s62, 32
        s_sub_u32 s60, 32, s62
        s_cmp_lt_u32 s61, s60
        s_cbranch_scc0 RA_n{x}
        s_add_u32 s58, s62, s61
        s_add_u32 s58, s58, {32*x}
        s_branch RA_have
RA_n{x}:
        s_sub_u32 s61, s61, s60
        """)
    A(f"""
RA_have:
    s_mov_b64 exec, 1
    v_mov_b32 v3, s58
    v_mov_b32 v4, 0
    ds_write_b32 v4, v3
    s_waitcnt lgkmcnt(0)
    s_mov_b64 exec, -1
RA_bc:
    s_barrier
    v_mov_b32 v4, 0
    ds_read_b32 v3, v4
    s_waitcnt lgkmcnt(0)
    v_readfirstlane_b32 s58, v3
    s_barrier
    """)

def wait_ge(A, srd_, off_expr_s, val, abort, vt=250, sleep=8):
    l = A.newlabel("WG")
    A(f"""
    s_mov_b32 s{sSP}, {SPIN}
    v_mov_b32 {v(vt)}, {off_expr_s}
{l}:
    buffer_load_dword {v(vt+1)}, {v(vt)}, {srd(srd_)}, 0 offen sc1
    s_sub_u32 s{sSP}, s{sSP}, 1
    s_cbranch_scc1 {abort}
    s_waitcnt vmcnt(0)
    v_cmp_le_u32 vcc, {val}, {v(vt+1)}
    s_cbranch_vccnz {l}_ok
    s_sleep {sleep}
    s_branch {l}
{l}_ok:
    """)

def signal_wg(A, off, vt=250):
    l = A.newlabel("SG")
    A(f"""
    s_waitcnt vmcnt(0)
    s_barrier
    s_cmp_lg_u32 s{S_WAVE}, 0
    s_cbranch_scc1 {l}
    v_mov_b32 {v(vt)}, {off}
    v_mov_b32 {v(vt+1)}, 1
    s_mov_b64 exec, 1
    buffer_atomic_add {v(vt+1)}, {v(vt)}, {srd(SRD_DBG)}, 0 offen sc1
    s_mov_b64 exec, -1
{l}:
    """)

def acc_t(A, dst):
    import common
    if not common.STAMPS: return
    A(f"s_memrealtime s[96:97]\ns_waitcnt lgkmcnt(0)\ns_sub_u32 s98, s96, s93\ns_add_u32 s{dst}, s{dst}, s98\ns_mov_b32 s93, s96")

def k_merged(A, ropt, EVS=4, PREF=3):
    AB = "M_abort"
    prologue(A, 256, "M_end")
    if PREF:
        A(f"""
        s_getpc_b64 s[60:61]
M_pc:
        v_lshlrev_b32 v3, 7, v0
        v_mov_b32 v5, M_codeend - M_pc - 4
        """)
        for k in range(PREF):
            A(f"""
            v_add_u32 v4, {k*32768}, v3
            v_min_u32 v4, v4, v5
            global_load_dword v6, v4, s[60:61]
            """)
    stamp(A, 13, s_id=2)
    role_assign(A, AB)
    A("s_cmp_ge_u32 s58, 32\ns_cbranch_scc1 M_worker")
    mod_R(A, 58, abort=AB, merged=True, **ropt)
    A("s_branch M_end")
    A.label("M_worker")
    A(f"""
    s_sub_u32 s{sWID}, s58, 32
    s_lshr_b32 s60, s{sWID}, 3                      ; unit
    s_mul_hi_u32 s61, s60, {(2**32+6)//7}           ; octet
    s_mul_i32 s62, s61, 7
    s_sub_u32 s{sGRP}, s60, s62
    s_lshl_b32 s61, s61, 3
    s_and_b32 s62, s{sWID}, 7
    s_add_u32 s{sHEAD}, s61, s62
    s_mul_hi_u32 s{sOG}, s{sWID}, {(2**32+17)//18}
    s_mul_i32 s60, s{sOG}, 18
    s_sub_u32 s{sCB}, s{sWID}, s60
    s_mul_hi_u32 s{sTG}, s{sWID}, {(2**32+4)//5}
    s_mul_i32 s60, s{sTG}, 5
    s_sub_u32 s{sCG}, s{sWID}, s60
    s_mul_i32 s{sKAP}, s{S_WAVE}, {NW}
    s_add_u32 s{sKAP}, s{sKAP}, s{sWID}
    """)
    stamp(A, 0, s_id=58)
    F0(A, sWID, NW)
    signal_wg(A, DBG_F0, vt=76)
    mod_P(A, sHEAD, sGRP, 7, preloop=lambda: wait_ge(A, SRD_DBG, DBG_RARM, 32, AB, vt=76))
    stamp(A, 4, s_id=58)
    wait_ge(A, SRD_DBG, DBG_F0, NW, AB)
    A(f"s_cmp_ge_u32 s{sTG}, 44\ns_cbranch_scc1 M_nof1")
    FG(A, 1, sCG, sTG, 44)
    A.label("M_nof1")
    signal_wg(A, DBG_F1)
    stamp(A, 5, s_id=58)
    A(f"s_cmp_ge_u32 s{sOG}, 12\ns_cbranch_scc1 M_noos")
    O_setup(A, sCB, keep=True)
    A.label("M_noos")
    stamp(A, 6, s_id=58)
    wait_ge(A, SRD_DBG, DBG_F1, NW, AB)
    A(f"s_cmp_gt_u32 s{sKAP}, 288\ns_cbranch_scc1 M_nof2")
    F2(A, sKAP)
    A.label("M_nof2")
    signal_wg(A, DBG_F2)
    stamp(A, 7, s_id=58)
    wait_ge(A, SRD_DBG, DBG_F2, NW, AB)
    A(f"s_cmp_ge_u32 s{sTG}, 44\ns_cbranch_scc1 M_nof3")
    FG(A, 3, sCG, sTG, 44)
    A.label("M_nof3")
    A("s_waitcnt vmcnt(0)\ns_barrier")
    stamp(A, 11, s_id=58)
    X_setup(A)
    O_addr(A, sCB)
    A(f"""
    s_mov_b32 s{sXN}, s{sGRP}
    s_cmp_lt_u32 s{sOG}, 12
    s_cselect_b32 s{sON}, s{sOG}, 64
    s_mov_b32 s{sPAR}, 0
    s_mov_b32 s90, 0
    s_mov_b32 s91, 0
    s_mov_b32 s92, 0
    s_mov_b32 s93, 0
    """)
    acc_t(A, 92)
    A(f"""
    s_mov_b32 s92, 0
M_ev:
    s_min_u32 s60, s{sXN}, s{sON}
    s_cmp_ge_u32 s60, 64
    s_cbranch_scc1 M_fin
    s_cmp_lg_u32 s{S_WAVE}, 0
    s_cbranch_scc1 M_evb
    s_lshl_b32 s64, s{sHEAD}, 7
    s_add_u32 s64, s64, {FLAG_RP}
    s_min_u32 s65, s{sON}, 63
    s_lshl_b32 s65, s65, 7
    s_add_u32 s65, s65, {FLAG_OX}
    v_mov_b32 v250, s64
    v_mov_b32 v251, s65
    s_mov_b32 s{sSP}, {SPIN}
M_evp:
    buffer_load_dword v252, v250, {srd(SRD_WS)}, 0 offen sc1
    buffer_load_dword v253, v251, {srd(SRD_WS)}, 0 offen sc1
    s_sub_u32 s{sSP}, s{sSP}, 1
    s_cbranch_scc1 {AB}
    s_waitcnt vmcnt(0)
    v_readfirstlane_b32 s60, v252
    v_readfirstlane_b32 s61, v253
    s_mov_b32 s62, 1
    s_cmp_gt_u32 s60, s{sXN}
    s_cbranch_scc1 M_evd
    s_mov_b32 s62, 2
    s_cmp_ge_u32 s{sON}, 64
    s_cbranch_scc1 M_evs
    s_cmp_ge_u32 s61, 128
    s_cbranch_scc1 M_evd
M_evs:
    s_min_u32 s61, s{sXN}, s{sON}
    s_add_u32 s60, s60, 1
    s_cmp_gt_u32 s61, s60
    s_cbranch_scc0 M_evs2
    s_sleep 48
M_evs2:
    s_sleep {EVS}
    s_branch M_evp
M_evd:
    v_mov_b32 v252, s62
    v_mov_b32 v253, {EV_LDS}
    ds_write_b32 v253, v252
    s_waitcnt lgkmcnt(0)
M_evb:
    s_barrier
    v_mov_b32 v253, {EV_LDS}
    ds_read_b32 v252, v253
    s_waitcnt lgkmcnt(0)
    v_readfirstlane_b32 s62, v252
    s_barrier
    """)
    acc_t(A, 92)
    A(f"""
    s_cmp_eq_u32 s62, 2
    s_cbranch_scc1 M_evO
    s_lshl_b32 s{sITEM}, s{sXN}, 5
    s_add_u32 s{sITEM}, s{sITEM}, s{sHEAD}
    """)
    X_item(A, sITEM)
    A(f"""
    s_lshl_b32 s60, s{sXN}, 7
    s_add_u32 s60, s60, {FLAG_OX}
    v_mov_b32 v250, s60
    v_mov_b32 v251, 1
    s_waitcnt vmcnt(0)
    s_mov_b64 exec, 1
    buffer_atomic_add v251, v250, {srd(SRD_WS)}, 0 offen sc1
    s_mov_b64 exec, -1
    s_add_u32 s{sXN}, s{sXN}, 7
    """)
    acc_t(A, 90)
    A(f"""
    s_branch M_ev
M_evO:
    """)
    O_item(A, sON, sPAR)
    acc_t(A, 91)
    A(f"""
    s_add_u32 s{sON}, s{sON}, 12
    s_branch M_ev
M_fin:
    """)
    stamp(A, 12, s_id=58)
    import common
    if common.STAMPS:
        A(f"""
        s_lshl_b32 s98, s58, 8
        s_add_u32 s98, s98, {WS_STAMP + 160}
        v_mov_b32 v76, s90
        v_mov_b32 v77, s91
        v_mov_b32 v78, s92
        v_mov_b32 v79, 0
        s_mov_b64 exec, 1
        buffer_store_dwordx3 v[76:78], v79, {srd(SRD_WS)}, s98 offen
        s_mov_b64 exec, -1
        """)
    A("s_branch M_end")
    A(f"""
{AB}:
    s_mov_b64 exec, -1
    v_mov_b32 v3, 0xdead
    v_mov_b32 v4, {DBG_ABORT}
    buffer_store_dword v3, v4, {srd(SRD_DBG)}, 0 offen
    s_waitcnt vmcnt(0)
M_end:
    s_endpgm
M_codeend:""")
```

```python
from common import *
import math, struct

WSTR = 36864
L_Q = 34816
L_K = 34816 + WSTR
L_O = 34816 + 2 * WSTR
L_MEMF = 145408
L_KX = 145408 + 9216
L_V = L_MEMF + 4096
HI = 98304
PSLOT = 72 * 4096
MSLOT = 9216
SPIN = 200000
CEXP = (128 ** -0.5) * math.log2(math.e)
def f32bits(x): return struct.unpack("<I", struct.pack("<f", x))[0]

def WQ(kk): return wreg(kk * 8, 8)
def WK(kk): return wreg(144 + kk * 8, 8)
def WO(p, ks): return wreg(288 + (p * 4 + ks) * 8, 8)
def WO8(ks): return wreg(288 + 128 + ks * 4, 4)

class LQ:
    def __init__(self, A, name): self.A, self.name, self.q = A, name, []
    def push(self, tag, n=1): self.q += [tag] * n; assert len(self.q) <= (15 if self.name == "lgkmcnt" else 63), self.q
    def wait(self, tag):
        if tag not in self.q: return
        idx = max(i for i, t in enumerate(self.q) if t == tag)
        self.A(f"s_waitcnt {self.name}({len(self.q) - 1 - idx})")
        del self.q[:idx + 1]
    def clear(self): self.q = []

def mod_R(A, s_head, sc="", pfx="R", abort="R_abort", last=63, prof=False, RD_=(0, 0, 0, 1, 2), CD=0, hooks=None, WARMD=2, cnt=False,
          CDN=0, fixseg=False, nokm=False, x_nowv=False, trace=False, RGAP=1, CGAP=1, ld=' sc1', tq=None, merged=False, wbar=False, worder='qk', tstep=False, CDN3=0, nowarm=False, R2AT=0, R3AT=6, B2AT=4):
    assert R3AT > B2AT and R2AT + 2 < B2AT
    def TQ(tag):
        if tq and tag in tq: A(f"s_memtime s[{8+2*tq.index(tag)}:{9+2*tq.index(tag)}]")

    def TR(i):
        if trace: A(f"s_memrealtime s[{8+2*i}:{9+2*i}]")

    L = lambda n: f"{pfx}_{n}"
    W = S_WAVE
    hooks = hooks or {}
    def PH(i):
        if not prof: return
        A(f"""
        s_waitcnt lgkmcnt(0)
        s_memtime s[96:97]
        s_waitcnt lgkmcnt(0)
        s_sub_u32 s99, s96, s98
        s_mov_b32 s98, s96
        s_mov_b64 exec, {1 << i}
        v_add_u32 v1, s99, v1
        s_mov_b64 exec, -1
        """)
    TMP = 0
    IDX, SELV, vPST, vRED, vPUB, vCON, vAF, vWV, vQW, vQR, vKX, vOW, vVX, vSP = range(2, 16)
    vC1 = 1
    assert not prof
    WVR = 16
    D0 = 24
    sSTEP, sPW, sPR, sMW, sMR, sMA, sRED, sSEG = 64, 65, 66, 67, 68, 69, 70, 71
    sLO32, sHI32, sEVEN, sN8 = 72, 74, 76, 78
    sU = 80
    sU2 = sU
    sC = 82
    sRDLY, sWB, sB1 = 84, 85, 59
    sB3, sM3, sPRG = 66, 57, 4
    sRDLY2 = 96
    sPM = sEVEN
    sSEL = 86
    sT0, sT1, sT2, sSPIN, sT3, sT4 = 60, 61, 62, 63, 94, 95
    T0, T1, T2 = D0, D0 + 1, D0 + 2
    stamp(A, 8, s_id=s_head)
    hstamp(A, 12)
    A.c("R setup")
    A(f"""
    s_mov_b32 s{sLO32}, -1
    s_mov_b32 s{sLO32+1}, 0
    s_mov_b32 s{sHI32}, 0
    s_mov_b32 s{sHI32+1}, -1
    s_mov_b32 s{sEVEN}, 0x55555555
    s_mov_b32 s{sEVEN+1}, 0x55555555
    s_mov_b32 s{sN8}, 0xff00ff00
    s_mov_b32 s{sN8+1}, 0xff00ff00
    s_mov_b32 s{sC}, {f32bits(CEXP)}
    s_mov_b32 s{sC+1}, {f32bits(CEXP)}
    s_lshl_b32 s{sWB}, s{W}, 10
    s_cmp_eq_u32 s{W}, 0
    s_mov_b32 s{sB1}, -1024
    s_cselect_b32 s{sB1}, 8192, s{sB1}
    s_lshl_b32 s{sPRG}, s{s_head}, 7
    s_add_u32 s{sPRG}, s{sPRG}, {FLAG_RP}
    s_and_b32 s{sM3}, s{sWB}, 1024
    s_sub_u32 s{sB3}, s{sM3}, s{sWB}
    s_add_u32 s{sB3}, s{sB3}, 6144
    s_add_u32 s{sM3}, s{sM3}, {L_MEMF + 7168}
    """)
    for r in range(4):
        m = (0x03030303 << (2 * r)) & 0xffffffff
        A(f"s_mov_b32 s{sSEL+2*r}, {m}\ns_mov_b32 s{sSEL+2*r+1}, {m}")
    def bits(dst, terms, add=None):
        first = True
        for (off, n, sh) in terms:
            A(f"v_bfe_u32 {v(T2)}, v1, {off}, {n}")
            if first:
                A(f"v_lshlrev_b32 {v(dst)}, {sh}, {v(T2)}"); first = False
            else:
                A(f"v_lshl_add_u32 {v(dst)}, {v(T2)}, {sh}, {v(dst)}")
        if add is not None:
            A(f"v_add_u32 {v(dst)}, {add}, {v(dst)}")
    A(f"""
    v_mov_b32 {v(IDX)}, 0x44444444
    v_mov_b32 {v(T0)}, 0xeeeeeeee
    v_cndmask_b32 {v(IDX)}, {v(IDX)}, {v(T0)}, s[{sN8}:{sN8+1}]
    v_mov_b32 {v(SELV)}, 0x3f800000
    v_mov_b32 {v(T0)}, 0x3f80
    v_cndmask_b32 {v(SELV)}, {v(SELV)}, {v(T0)}, s[{sEVEN}:{sEVEN+1}]
    s_mov_b32 s{sPM}, 0xffff
    s_mov_b32 s{sPM+1}, 0xffff
    v_lshlrev_b32 {v(T0)}, 4, v1
    s_add_u32 s{sT0}, s{sWB}, {HI}
    v_add_u32 {v(vCON)}, s{sT0}, {v(T0)}
    s_mul_i32 s{sT0}, s{W}, {WSTR}
    v_add_u32 {v(vWV)}, s{sT0}, {v(T0)}
    s_lshl_b32 s{sT0}, s{W}, 5
    s_add_u32 s{sT0}, s{sT0}, s{s_head}           ; unit
    s_lshl_b32 s{sT1}, s{sT0}, 12
    s_cmp_lt_u32 s{sT0}, 72
    s_cselect_b32 s{sRED}, 1, 0
    s_cselect_b32 s{sT1}, s{sT1}, 0x40000000
    v_add_u32 {v(vRED)}, s{sT1}, {v(T0)}
    s_lshr_b32 s{sT1}, s{sT0}, 1
    s_lshl_b32 s{sT4}, s{sT1}, 5
    s_lshl_b32 s{sT1}, s{sT1}, 8
    s_and_b32 s{sT2}, s{sT0}, 1
    s_mul_i32 s{sT3}, s{sT2}, {4*1152}
    s_add_u32 s{sT4}, s{sT4}, s{sT3}
    s_lshl_b32 s{sT2}, s{sT2}, 6
    s_add_u32 s{sT1}, s{sT1}, s{sT2}
    s_lshr_b32 s{sT2}, s{sT0}, 4
    s_add_u32 s{sT2}, s{sT2}, 1
    s_cmp_ge_u32 s{sT0}, 64
    s_cselect_b32 s{sT2}, 0, s{sT2}
    s_mov_b32 s{sRDLY}, {RD_[0]}
    """)
    for o in range(1, 5):
        A(f"s_cmp_eq_u32 s{sT2}, {o}\ns_cselect_b32 s{sRDLY}, {RD_[o]}, s{sRDLY}")
    bits(vPUB, [(2, 1, 7), (5, 1, 5), (3, 1, 4), (0, 2, 2)], f"s{sT1}")
    A(f"s_lshl_b32 s{sT1}, s{W}, 1\ns_xor_b32 s{sT2}, s{s_head}, s{sT1}\ns_lshl_b32 s{sT2}, s{sT2}, 7\ns_lshl_b32 s{sT1}, s{W}, 13")
    bits(vPST, [(5, 1, 10), (4, 1, 7)])
    A(f"v_xor_b32 {v(T1)}, s{sT2}, {v(vPST)}\nv_add_u32 {v(T1)}, s{sT1}, {v(T1)}")
    bits(vPST, [(5, 1, 15), (4, 1, 12), (0, 4, 3)], v(T1))
    A(f"s_lshl_b32 s{sT1}, s{W}, 9\ns_add_u32 s{sT2}, s{sT1}, {L_Q}")
    bits(vQW, [(5, 1, 8), (0, 4, 4), (4, 1, 3)], f"s{sT2}")
    bits(vQR, [(5, 1, 8), (4, 1, 6), (2, 2, 4), (0, 1, 3)], L_Q)
    bits(vKX, [(4, 2, 9), (3, 1, 8), (0, 3, 4)], HI)
    bits(vAF, [(4, 2, 7), (0, 3, 4)], HI)
    A(f"s_add_u32 s{sT2}, s{sT1}, {L_O}")
    bits(vOW, [(5, 1, 7), (0, 3, 4), (4, 1, 3)], f"s{sT2}")
    A(f"s_lshl_b32 s{sT1}, s{W}, 11")
    bits(vVX, [(4, 2, 9), (0, 4, 4)], f"s{sT1}")
    ARM = D0 + 4
    X0, X1 = D0 + 8, D0 + 9
    for i in range(4): A(f"v_mov_b32 {v(ARM+i)}, -1")
    A(f"s_cmp_eq_u32 s{sRED}, 0\ns_cbranch_scc1 {L('noarm')}")
    bits(X1, [(5, 1, 1), (3, 1, 0)])
    A(f"v_mul_u32_u24 {v(X1)}, 1152, {v(X1)}")
    bits(X0, [(0, 3, 2)], v(X1))
    A(f"buffer_load_dword {v(X1)}, {v(X0)}, {srd(SRD_M0)}, s{sT4} offen")
    A(f"s_mov_b32 s{sT0}, {WS_PART}")
    for i in range(4):
        A(f"buffer_store_dwordx4 {v(ARM,4)}, {v(vRED)}, {srd(SRD_WS)}, s{sT0} offen offset:{i*1024} sc1")
    A(f"s_mov_b64 exec, s[{sEVEN}:{sEVEN+1}]")
    for sl in range(3):
        A(f"s_mov_b32 s{sT0}, {WS_MEMB + sl*MSLOT}")
        A(f"buffer_store_dword {v(ARM)}, {v(vPUB)}, {srd(SRD_WS)}, s{sT0} offen sc1")
    A(f"s_mov_b64 exec, -1\ns_waitcnt vmcnt(0)\nv_min_u32 {v(vSP)}, -2, {v(X1)}")
    A.label(L('noarm'))
    if merged:
        A(f"""
        s_cmp_lg_u32 s{W}, 3
        s_cbranch_scc1 {L('nz')}
        v_lshlrev_b32 {v(X0)}, 2, v1
        v_mov_b32 {v(X1)}, 0
        s_lshl_b32 s{sT0}, s{s_head}, 8
        s_add_u32 s{sT0}, s{sT0}, {FLAG_KV}
        buffer_store_dword {v(X1)}, {v(X0)}, {srd(SRD_WS)}, s{sT0} offen sc1
        s_add_u32 s{sT0}, s{sT0}, {FLAG_OX - FLAG_KV}
        buffer_store_dword {v(X1)}, {v(X0)}, {srd(SRD_WS)}, s{sT0} offen sc1
        v_mov_b32 {v(X0)}, s{sPRG}
        buffer_store_dword {v(X1)}, {v(X0)}, {srd(SRD_WS)}, 0 offen sc1
        s_waitcnt vmcnt(0)
{L('nz')}:
        """)
    A(f"""
    s_barrier
    s_cmp_lg_u32 s{W}, 0
    s_cbranch_scc1 {L('armed')}
    v_mov_b32 {v(T0)}, 1
    v_mov_b32 {v(T1)}, {DBG_RARM}
    s_mov_b64 exec, 1
    buffer_atomic_add {v(T0)}, {v(T1)}, {srd(SRD_DBG)}, 0 offen sc1
    s_mov_b64 exec, -1
    """)
    A.label(L('armed'))
    vWA, vWB, vTR, vTD = D0 + 4, D0 + 5, D0 + 6, D0 + 7
    VS = D0 + 12
    A(f"s_lshl_b32 s{sT0}, s{s_head}, 8\ns_lshl_b32 s{sT1}, s{W}, 6\ns_add_u32 s{sT0}, s{sT0}, s{sT1}")
    bits(vWA, [(2, 4, 13), (0, 2, 4)], f"s{sT0}")
    A(f"""
    v_lshrrev_b32 {v(X0)}, 2, v1
    v_mul_u32_u24 {v(X0)}, 1152, {v(X0)}
    s_mul_i32 s{sT0}, s{s_head}, 147456
    s_lshl_b32 s{sT1}, s{W}, 5
    s_add_u32 s{sT0}, s{sT0}, s{sT1}
    v_add_u32 {v(X0)}, s{sT0}, {v(X0)}
    """)
    bits(vWB, [(1, 1, 7), (0, 1, 4)], v(X0))
    A(f"s_mul_i32 s{sT2}, s{W}, {WSTR}")
    bits(vTR, [(4, 2, 8), (2, 1, 6), (3, 1, 5), (0, 2, 3)], f"s{sT2}")
    bits(vTD, [(4, 2, 9), (2, 2, 6), (0, 2, 3)], f"s{sT2}")
    chunks = [(worder[0], kb) for kb in range(9)] + [(worder[1], kb) for kb in range(9)] + \
             [("o", (p, kb2)) for p in range(5) for kb2 in range(2)] + [("v", kb) for kb in range(9)]
    slot_of = lambda c: (c - 28) % 9
    def wdma(c):
        kind, ix = chunks[c]; sl = slot_of(c)
        for n in range(4):
            A(f"s_add_u32 m0, s{sT2}, {sl*4096 + n*1024}")
            if kind == "o":
                p, kb2 = ix
                A(f"s_mov_b32 s{sT1}, {(kb2*64 + n*16)*1152 + p*256}")
                A(f"buffer_load_dwordx4 {v(vWB)}, {srd(SRD_WO)}, s{sT1} offen lds")
            else:
                A(f"s_mov_b32 s{sT1}, {ix*524288 + n*131072}")
                A(f"buffer_load_dwordx4 {v(vWA)}, {srd({'q': SRD_WQ, 'k': SRD_WK, 'v': SRD_WV}[kind])}, s{sT1} offen lds")
    for c in range(9): wdma(c)
    def trread(dst_fn, h, sl):
        for t, ro in enumerate((0, 2, 16, 18)):
            A(f"ds_read_b64_tr_b16 {dst_fn(t)}, {v(vTR)} offset:{sl*4096 + (32*h + ro)*64}")
    sub = lambda base, t: wreg(base + 2 * t, 2)
    NCH = len(chunks)
    for c in range(NCH):
        kind, ix = chunks[c]; sl = slot_of(c)
        A(f"s_waitcnt vmcnt({min(NCH - 1 - c, 8) * 4 + (7 if c > NCH - 10 else 0)})")
        if kind in "qk":
            base = 0 if kind == "q" else 144
            for h in range(2): trread(lambda t: sub(base + (2 * ix + h) * 8, t), h, sl)
        elif kind == "o":
            p, kb2 = ix
            for h in range(2):
                if p < 4: trread(lambda t: sub(288 + (p * 4 + 2 * kb2 + h) * 8, t), h, sl)
                else:
                    for t in range(2):
                        A(f"ds_read_b64_tr_b16 {wreg(288 + 128 + (2*kb2+h)*4 + 2*t, 2)}, {v(vTD)} offset:{sl*4096 + (32*h + 4*t)*64}")
        else:
            trread(lambda t: v(VS + 2 * t, 2), 0, sl)
            if ix < 8: trread(lambda t: v(VS + 8 + 2 * t, 2), 1, sl)
            else: trread(lambda t: v(WVR + 2 * t, 2), 1, sl)
        A("s_waitcnt lgkmcnt(0)")
        if kind == "v":
            for q in range(4 if ix < 8 else 2):
                A(f"ds_write_b128 {v(vWV)}, {v(VS+4*q,4)} offset:{ix*4096 + q*1024}")
        if wbar and c + 9 < NCH: A("s_barrier")
        if c + 9 < NCH: wdma(c + 9)
        if c == NCH - 10:
            A(f"s_mov_b32 s{sT0}, {WS_PART}")
            for i in range(4):
                A(f"buffer_load_dwordx4 {v(D0+32+4*i,4)}, {v(vRED)}, {srd(SRD_WS)}, s{sT0} offen offset:{i*1024} sc1")
            for sl in range(3):
                A(f"s_mov_b32 s{sT0}, {WS_MEMB + sl*MSLOT}")
                A(f"buffer_load_dword {v(D0+48)}, {v(vPUB)}, {srd(SRD_WS)}, s{sT0} offen sc1")
    stamp(A, 9, s_id=s_head)
    hstamp(A, 13)
    AQ, AK, AV = D0, D0 + 4, D0 + 8
    AS = [D0 + 12 + 4 * i for i in range(4)]
    WR = [D0 + 28, D0 + 36, D0 + 44]
    korder = [16, 17] + list(range(16))
    wvl = [kk for kk in korder if kk != 17]
    lg = LQ(A, "lgkmcnt")
    def wvread(f):
        if x_nowv: return
        o = wvl[f] * 2048; d = WR[f % 3]
        A(f"ds_read_b128 {v(d,4)}, {v(vWV)} offset:{o}")
        A(f"ds_read_b128 {v(d+4,4)}, {v(vWV)} offset:{o+1024}")
        lg.push(f"W{f}", 2)
    def zero_acc():
        for i in range(12): A(f"v_mov_b32 {v(AQ+i)}, 0")
    sKV = 5
    sMODE = 6
    def kv_wait(s_need, lab):
        A(f"""
        s_cmp_ge_u32 s{sKV}, s{s_need}
        s_cbranch_scc1 {lab}_ok
        s_lshl_b32 s{sT1}, s{s_head}, 8
        s_add_u32 s{sT1}, s{sT1}, {FLAG_KV}
        v_lshrrev_b32 {v(TMP)}, 2, {v(vCON)}
        v_and_b32 {v(TMP)}, 255, {v(TMP)}
{lab}_p:
        buffer_load_dword {v(D0+40)}, {v(TMP)}, {srd(SRD_WS)}, s{sT1} offen sc1
        s_sub_u32 s{sSPIN}, s{sSPIN}, 1
        s_cbranch_scc1 {abort}
        s_waitcnt vmcnt(0)
        v_cmp_ne_u32 vcc, 4, {v(D0+40)}
        s_ff1_i32_b64 s{sKV}, vcc
        s_cmp_lt_i32 s{sKV}, 0
        s_cselect_b32 s{sKV}, 64, s{sKV}
        s_cmp_ge_u32 s{sKV}, s{s_need}
        s_cbranch_scc1 {lab}_ok
        s_sleep 4
        s_branch {lab}_p
{lab}_ok:
        """)
    A(f"""
    s_mov_b32 s{sSPIN}, {SPIN}
    v_and_b32 {v(X1)}, 15, v1
    v_lshlrev_b32 {v(X1)}, 2, {v(X1)}
{L('warm')}:
    buffer_load_dword {v(X0)}, {v(X1)}, {srd(SRD_DBG)}, 0 offen sc1
    s_sub_u32 s{sSPIN}, s{sSPIN}, 1
    s_cbranch_scc1 {abort}
    s_waitcnt vmcnt(0)
    v_readlane_b32 s{sT0}, {v(X0)}, {DBG_RARM//4}
    v_readlane_b32 s{sT1}, {v(X0)}, 0
    s_cmp_lt_u32 s{sT0}, 32
    s_cbranch_scc1 {L('warm')}
    s_cmp_ge_u32 s{sT1}, 32
    s_cselect_b32 s{sMODE}, 0, 1
    """)
    if merged:
        A(f"""
        s_mov_b32 s{sKV}, 0
        s_cmp_lg_u32 s{W}, 3
        s_cbranch_scc1 {L('nkvi')}
        s_mov_b32 s{sT0}, {WARMD + 1}
        """)
        kv_wait(sT0, L('kvi'))
        A(f"v_lshlrev_b32 {v(X0)}, 7, v1\ns_lshl_b32 s{sT0}, s{s_head}, 13")
        for sg in range(WARMD):
            A(f"s_add_u32 s{sT1}, s{sT0}, {WS_KX + sg*32*8192}\nbuffer_load_dword {v(X1)}, {v(X0)}, {srd(SRD_WS)}, s{sT1} offen sc1")
            A(f"s_add_u32 s{sT1}, s{sT0}, {WS_VX + sg*32*8192}\nbuffer_load_dword {v(X1)}, {v(X0)}, {srd(SRD_WS)}, s{sT1} offen sc1")
        A(f"s_waitcnt vmcnt(0)\n{L('nkvi')}:")
    A(f"""
    s_mov_b32 s{sSTEP}, 0
    s_mov_b32 s{sPW}, {WS_PART}
    s_mov_b32 s{sMA}, {WS_MEMB + 2*MSLOT}
    s_mov_b32 s{sMW}, {WS_MEMB}
    s_mov_b32 s{sMR}, {WS_MEMB + MSLOT}
    s_lshl_b32 s{sSEG}, s{s_head}, 13
    s_cmp_eq_u32 s{sRED}, 0
    s_cbranch_scc1 {L('nom0')}
    s_mov_b64 exec, s[{sEVEN}:{sEVEN+1}]
    buffer_store_dword {v(vSP)}, {v(vPUB)}, {srd(SRD_WS)}, s{sMW} offen sc1
    s_mov_b64 exec, -1
    s_nop 0
    v_mov_b32 {v(vSP)}, -1
{L('nom0')}:
    s_cmp_eq_u32 s{W}, 3
    s_cselect_b64 s[{sU}:{sU+1}], -1, 0
    s_cmp_ge_u32 s{W}, 2
    s_cselect_b32 s{sT0}, 1024, 0
    v_subrev_u32 v1, s{sT0}, {v(vCON)}
    s_waitcnt lgkmcnt(0)
    s_barrier
    """)
    zero_acc()
    if prof: A("v_mov_b32 v1, 0\ns_memtime s[98:99]\ns_waitcnt lgkmcnt(0)")
    if merged: A(f"s_cmp_eq_u32 s{sMODE}, 1\ns_cbranch_scc1 {L('loopS0')}x")
    if cnt: A("s_mov_b32 s20, 0\ns_mov_b32 s21, 0\ns_memtime s[96:97]\ns_memrealtime s[98:99]\ns_waitcnt lgkmcnt(0)\ns_mov_b32 s99, s96")
    RL = D0 + 52
    def sm(acc, a_, b): A(f"v_smfmac_f32_16x16x64_bf16 {v(acc,4)}, {a_}, {b}, {v(IDX)}")
    def mf(d, a_, b_, first):
        A(f"v_mfma_f32_16x16x32_bf16 {v(d,4)}, {a_}, {b_}, {'0' if first else v(d,4)}")
    def chk(r, br):
        A(f"""
        v_max3_u32 {v(TMP)}, {v(r)}, {v(r+1)}, {v(r+2)}
        v_max_u32 {v(TMP)}, {v(TMP)}, {v(r+3)}
        v_cmp_eq_u32 vcc, -1, {v(TMP)}
        {br}
        """)
    def spin(): A(f"s_sub_u32 s{sSPIN}, s{sSPIN}, 1\ns_cbranch_scc1 {abort}")
    def cload(r, so): A(f"buffer_load_dwordx4 {v(r,4)}, {v(vC1)}, {srd(SRD_WS)}, s{so} offen{ld}")
    def pk2(d, s_):
        A(f"v_cvt_pk_bf16_f32 {v(d)}, {v(s_)}, {v(s_+1)}")
        A(f"v_cvt_pk_bf16_f32 {v(d+1)}, {v(s_+2)}, {v(s_+3)}")
    def step_body(par, sc, md):
        LP = lambda n: L(n + md + str(par))
        nxt_loop = L('loop' + md + str(1 - par))
        A.label(LP('loop'))
        A("s_waitcnt vmcnt(2)")
        A.label(LP('loop') + "x")
        lg.clear()
        A(f"""
        s_mov_b32 s{sT3}, s{sMA}
        s_mov_b32 s{sMA}, s{sMW}
        s_mov_b32 s{sMW}, s{sMR}
        s_mov_b32 s{sMR}, s{sT3}
        s_mov_b32 s{sSPIN}, {SPIN}
        s_sub_u32 s{sT0}, s{sMA}, {HI}
        s_add_u32 s{sT1}, s{sT0}, s{sB1}
        s_add_u32 s{sT2}, s{sT0}, 2048
        s_add_u32 s{sT3}, s{sT0}, s{sB3}
        s_add_u32 s{sT4}, s{sSEG}, {WS_KX - HI}
        s_add_u32 m0, s{sWB}, {L_MEMF + 3072}
        """)
        for f in range(3): wvread(f)
        A(f"s_cmp_eq_u32 s{W}, 1\ns_cbranch_scc1 {LP('cdj')}")
        if CD: A(f"s_sleep {CD}")
        P1 = AS[3]
        TQ("cgo")
        cload(RL, sT1)
        if CGAP:
            A(f"s_sleep {CGAP}")
            cload(P1, sT1)
            A("s_waitcnt vmcnt(1)")
        else:
            A.label(LP('cw0'))
            A("s_waitcnt vmcnt(0)")
        chk(RL, f"s_cbranch_vccnz {LP('cf0')}")
        A.label(LP('cd0'))
        TR(3)
        A(f"ds_write_b128 {v(vC1)}, {v(RL,4)} offset:{L_MEMF-HI}")
        A.label(LP('cdj'))
        TQ("cdj")
        A("s_waitcnt lgkmcnt(0)\ns_barrier")
        if trace: TR(4); A("s_waitcnt lgkmcnt(0)")
        lg.clear()
        if cnt: A(f"s_sub_u32 s96, {SPIN}, s{sSPIN}\ns_add_u32 s20, s20, s96")
        PH(0)
        def aread(i):
            A(f"ds_read_b128 {v(AS[i&3],4)}, {v(vAF)} offset:{L_MEMF-HI+i*512}")
            lg.push(f"A{i}")
        def dma(so): A(f"buffer_load_dwordx4 {v(vCON)}, {srd(SRD_WS)}, s{so} offen sc1 lds")
        VXF = [AS[2], AS[3]]
        TQ("start")
        for i in range(3): aread(i)
        f = 0
        nxt = 3
        late = []
        for i, kk in enumerate(korder):
            a_ = v(AS[i & 3], 4)
            TQ(f"q{i}")
            lg.wait(f"A{i}")
            sm(AQ, a_, WQ(kk))
            if i == 0: A("s_waitcnt vmcnt(0)"); aread(3); nxt = 4
            if i == R2AT: dma(sT2)
            if i in (R2AT + 1, R2AT + 2): dma(sT4)
            if i == R3AT: dma(sT3)
            sm(AK, a_, WK(kk))
            if i == R2AT: A(f"s_add_u32 m0, s{sWB}, {L_KX}")
            if i == R2AT + 1: A(f"s_add_u32 m0, s{sWB}, {L_KX + 4096}\ns_add_u32 s{sT4}, s{sT4}, 4096")
            if i == R2AT + 2: A(f"s_mov_b32 m0, s{sM3}")
            if i in (B2AT, 12):
                A(f"s_waitcnt vmcnt({2 if i == B2AT else 0})\ns_barrier")
                while nxt <= i + 3: aread(nxt); nxt += 1
            if i == 7 and 'step' in hooks: hooks['step']()
            if i == 8: A(f"s_add_u32 s{sT0}, s{sSEG}, {WS_VX}\ns_lshr_b32 s{sT2}, s{sSEG}, 2")
            if i == 9: A(f"s_add_u32 s{sT1}, s{sT2}, {0x40000000 if nokm else WS_VM - L_Q}\ns_add_u32 s{sT4}, s{sT2}, {0x40000000 if nokm else WS_KM - L_Q}")
            if kk == 17:
                sm(AV, a_, v(WVR, 8))
            elif i >= 16:
                late.append((a_, f)); f += 1
            else:
                lg.wait(f"W{f}")
                sm(AV, a_, v(WR[f % 3], 8))
                if f + 3 < 17: wvread(f + 3)
                f += 1
            lim = 5 if i < B2AT else (13 if i < 12 else 17)
            while nxt <= min(i + 4, lim): aread(nxt); nxt += 1
            if i == 14: A(f"buffer_load_dwordx4 {v(VXF[0],4)}, {v(vVX)}, {srd(SRD_WS)}, s{sT0} offen sc1")
            if i == 15: A(f"buffer_load_dwordx4 {v(VXF[1],4)}, {v(vVX)}, {srd(SRD_WS)}, s{sT0} offen offset:256 sc1")
        TQ("qend")
        PH(1)
        if trace: A("s_waitcnt lgkmcnt(0)"); TR(5); A("s_waitcnt lgkmcnt(0)")
        S_ = D0 + 28
        QF = [D0 + 0, D0 + 4]; KF = [D0 + 12, D0 + 16]
        KXR = [D0 + 44, D0 + 48, D0 + 40]
        kxl = [(fb, kt) for fb in range(4) for kt in range(2)]
        def kxread(n):
            fb, kt = kxl[n]
            A(f"ds_read_b128 {v(KXR[n % 3],4)}, {v(vKX)} offset:{L_KX-HI+fb*2048+kt*128}")
            lg.push(f"X{n}")
        KP, ZP = D0 + 52, D0 + 54
        def latev(n):
            a_, f_ = late[n]
            lg.wait(f"W{f_}")
            sm(AV, a_, v(WR[f_ % 3], 8))
        def qk_write():
            pk2(AQ, AQ)
            A(f"ds_write_b64 {v(vQW)}, {v(AQ,2)}")
            pk2(KP, AK)
            A(f"ds_write_b64 {v(vQW)}, {v(KP,2)} offset:{L_K-L_Q}")
        latev(0)
        kxread(0); kxread(1)
        A(f"s_add_u32 s{sT0}, s{sSEG}, {WS_KX + WARMD*32*8192}\ns_add_u32 s{sT2}, s{sSEG}, {WS_VX + WARMD*32*8192}\ns_nop 1")
        TQ("s2a")
        qk_write(); lg.push("qk", 2)
        TQ("s2b")
        latev(1)
        kxread(2)
        A(f"""
        v_cmp_u_f32 vcc, {v(AK)}, {v(AK+1)}
        v_cmp_u_f32 s[{sRDLY2}:{sRDLY2+1}], {v(AK+2)}, {v(AK+3)}
        s_or_b64 vcc, vcc, s[{sRDLY2}:{sRDLY2+1}]
        s_cbranch_vccnz {LP('slow')}
        """)
        TQ("s2c")
        lg.wait("qk")
        TQ("s2d")
        A.label(LP('slowret'))
        A("s_barrier")
        TQ("s2end")
        PH(2)
        def qk_reads(fb):
            b = fb & 1
            for (dst, base, tg) in ((QF[b], 0, "Q"), (KF[b], L_K - L_Q, "K")):
                A(f"ds_read_b64_tr_b16 {v(dst,2)}, {v(vQR)} offset:{base+fb*512}")
                A(f"ds_read_b64_tr_b16 {v(dst+2,2)}, {v(vQR)} offset:{base+fb*512+128}")
                lg.push(f"{tg}{fb}", 2)
        qk_reads(0); qk_reads(1)
        pk2(ZP, AV)
        A(f"""
        s_cmp_eq_u32 s{sSTEP}, {last}
        s_cbranch_scc1 {L('done')}
        """)
        ON = D0 + 0; VMT = D0 + 8; M0_, M1_ = D0 + 14, D0 + 15
        PX = D0 + 40; PM = PX + 4
        vmt_ops = [f"v_cndmask_b32 {v(VMT)}, 0, {v(ZP)}, s[{sLO32}:{sLO32+1}]",
                   f"v_cndmask_b32 {v(VMT+1)}, 0, {v(ZP+1)}, s[{sLO32}:{sLO32+1}]",
                   f"v_mov_b32 {v(VMT+2)}, 0", f"v_mov_b32 {v(VMT+3)}, 0"]
        for fb in range(4):
            b = fb & 1
            TQ(f"fb{fb}")
            for kt in range(2):
                n = 2 * fb + kt
                lg.wait(f"Q{fb}"); lg.wait(f"X{n}")
                mf(S_ + 4 * kt, v(KXR[n % 3], 4), v(QF[b], 4), fb == 0)
                if n + 3 < 8: kxread(n + 3)
                if n == 0: A(f"buffer_store_dwordx2 {v(KP,2)}, {v(vQW)}, {srd(SRD_WS)}, s{sT4} offen sc1")
                if n == 3: A(f"buffer_store_dwordx2 {v(ZP,2)}, {v(vQW)}, {srd(SRD_WS)}, s{sT1} offen sc1")
                if fb == 1: A(vmt_ops.pop(0)); A(vmt_ops.pop(0))
                if fb == 3: A(f"v_mov_b32 {v(ON+2*kt)}, 0x3f803f80\nv_mov_b32 {v(ON+2*kt+1)}, 0x3f803f80")
            lg.wait(f"K{fb}")
            mf(S_ + 8, v(KF[b], 4), v(QF[b], 4), fb == 0)
            if fb + 2 < 4: qk_reads(fb + 2)
            if fb == 2 and not nowarm:
                A(f"""
                s_mov_b64 exec, s[{sU}:{sU+1}]
                v_lshlrev_b32 {v(vSP)}, 3, {v(vCON)}
                v_and_b32 {v(TMP)}, 0x1fff, {v(vSP)}
                buffer_load_dword {v(vSP)}, {v(TMP)}, {srd(SRD_WS)}, s{sT0} offen sc1
                buffer_load_dword {v(vSP)}, {v(TMP)}, {srd(SRD_WS)}, s{sT2} offen sc1
                """)
                if merged:
                    A(f"""
                    s_and_b64 exec, exec, 1
                    v_mov_b32 {v(TMP)}, s{sSTEP}
                    v_mov_b32 {v(D0+52)}, s{sPRG}
                    buffer_store_dword {v(TMP)}, {v(D0+52)}, {srd(SRD_WS)}, 0 offen sc1
                    """)
                A("s_mov_b64 exec, -1")
        TQ("scend")
        PH(3)
        A(f"""
        v_cndmask_b32 {v(VMT+4)}, 0, {v(ZP)}, s[{sHI32}:{sHI32+1}]
        v_cndmask_b32 {v(VMT+5)}, 0, {v(ZP+1)}, s[{sHI32}:{sHI32+1}]
        v_mov_b32 {v(ON+4)}, 0x3f003f00
        v_mov_b32 {v(ON+5)}, 0x3f003f00
        v_max3_f32 {v(M0_)}, {v(S_+0)}, {v(S_+1)}, {v(S_+2)}
        v_mov_b32 {v(ON+6)}, 0
        v_max3_f32 {v(M1_)}, {v(S_+3)}, {v(S_+4)}, {v(S_+5)}
        v_max3_f32 {v(M0_)}, {v(M0_)}, {v(S_+6)}, {v(S_+7)}
        v_max3_f32 {v(M1_)}, {v(M1_)}, {v(S_+8)}, {v(S_+9)}
        v_max3_f32 {v(M0_)}, {v(M0_)}, {v(S_+10)}, {v(S_+11)}
        v_max_f32 {v(M0_)}, {v(M0_)}, {v(M1_)}
        v_max_f32 {v(M1_)}, {v(M0_)}, {v(M1_)}
        v_mov_b32 {v(ON+7)}, 0
        v_mov_b32 {v(PM+2)}, 0
        v_permlane32_swap_b32 {v(M0_)}, {v(M1_)}
        v_max_f32 {v(M0_)}, {v(M0_)}, {v(M1_)}
        v_max_f32 {v(M1_)}, {v(M0_)}, {v(M1_)}
        v_mov_b32 {v(PM+3)}, 0
        s_nop 0
        v_permlane16_swap_b32 {v(M0_)}, {v(M1_)}
        v_max_f32 {v(M0_)}, {v(M0_)}, {v(M1_)}
        v_mul_f32 {v(M0_)}, s{sC}, {v(M0_)}
        """)
        for i in range(6):
            A(f"v_pk_fma_f32 {v(S_+2*i,2)}, {v(S_+2*i,2)}, s[{sC}:{sC+1}], {v(M0_,2)} op_sel_hi:[1,1,0] neg_lo:[0,0,1] neg_hi:[0,0,1]")
        for i in range(12):
            A(f"v_exp_f32 {v(S_+i)}, {v(S_+i)}")
            if i >= 2 and i % 2 == 0: A(f"v_cvt_pk_bf16_f32 {v(PX+i//2-1)}, {v(S_+i-2)}, {v(S_+i-1)}")
        OT, OT1, LS = D0 + 16, D0 + 48, S_
        TQ("expend")
        A(f"""
        s_waitcnt vmcnt({(2 if nowarm else 4) + (1 if merged else 0)})
        v_cvt_pk_bf16_f32 {v(PX+5)}, {v(S_+10)}, {v(S_+11)}
        v_mfma_f32_16x16x32_bf16 {v(LS,4)}, {v(ON,4)}, {v(PX,4)}, 0
        v_mfma_f32_16x16x32_bf16 {v(OT,4)}, {v(VXF[0],4)}, {v(PX,4)}, 0
        v_mfma_f32_16x16x32_bf16 {v(LS,4)}, {v(ON+4,4)}, {v(PM,4)}, {v(LS,4)}
        v_mfma_f32_16x16x32_bf16 {v(OT,4)}, {v(VMT,4)}, {v(PM,4)}, {v(OT,4)}
        v_mfma_f32_16x16x32_bf16 {v(OT1,4)}, {v(VXF[1],4)}, {v(PX,4)}, 0
        v_mfma_f32_16x16x32_bf16 {v(OT1,4)}, {v(VMT+2,4)}, {v(PX+2,4)}, {v(OT1,4)}
        """)
        WAo = [D0 + 32, D0 + 36, D0 + 0, D0 + 4]
        WA8 = D0 + 20
        OF = [D0 + 40, D0 + 44, D0 + 48, D0 + 52]
        zl = [WAo[p] + i for p in range(4) for i in range(4)]
        for r in zl[:5]: A(f"v_mov_b32 {v(r)}, 0")
        A(f"v_rcp_f32 {v(M0_)}, {v(LS)}")
        A(f"v_mov_b32 {v(zl[5])}, 0")
        A(f"v_pk_mul_f32 {v(OT,2)}, {v(OT,2)}, {v(M0_,2)} op_sel_hi:[1,0]")
        A(f"v_pk_mul_f32 {v(OT+2,2)}, {v(OT+2,2)}, {v(M0_,2)} op_sel_hi:[1,0]")
        pk2(OT, OT)
        A(f"ds_write_b64 {v(vOW)}, {v(OT,2)}")
        A(f"v_pk_mul_f32 {v(OT1,2)}, {v(OT1,2)}, {v(M0_,2)} op_sel_hi:[1,0]")
        A(f"v_pk_mul_f32 {v(OT1+2,2)}, {v(OT1+2,2)}, {v(M0_,2)} op_sel_hi:[1,0]")
        pk2(OT1, OT1)
        A(f"ds_write_b64 {v(vOW)}, {v(OT1,2)} offset:256")
        for r in zl[6:]: A(f"v_mov_b32 {v(r)}, 0")
        A(f"""
        s_add_u32 s{sT0}, s{sPW}, {4*65536}
        s_add_u32 s{sT1}, s{sPW}, {65536}
        s_waitcnt lgkmcnt(0)
        """)
        TQ("smend")
        PH(4)
        A("s_barrier")
        if trace: TR(0); A("s_waitcnt lgkmcnt(0)")
        lg.clear()
        for ks in range(4):
            A(f"ds_read_b128 {v(OF[ks],4)}, {v(vAF)} offset:{L_O-HI+ks*512}"); lg.push(f"O{ks}")
        SEL = D0 + 12; RT = D0 + 16; RDd = D0 + 20; RBS = [D0 + 24, D0 + 40]
        A(f"""
        s_add_u32 s{sT2}, s{sPW}, {2*65536}
        s_add_u32 s{sT3}, s{sPW}, {3*65536}
        s_add_u32 s{sSTEP}, s{sSTEP}, 1
        s_add_u32 s{sSEG}, s{sSEG}, {0 if fixseg else 32*8192}
        s_mov_b32 s{sSPIN}, {SPIN}
        """)
        for r in range(4): A(f"v_cndmask_b32 {v(SEL+r)}, 0, {v(SELV)}, s[{sSEL+2*r}:{sSEL+2*r+1}]")
        TQ("wostart")
        PH(5)
        tagop = lambda r: (f"v_or_b32 {v(r)}, 1, {v(r)}" if par else f"v_and_b32 {v(r)}, -2, {v(r)}")
        def out_ops(a0, soff, half=False):
            ops = [f"v_cvt_pk_bf16_f32 {v(a0)}, {v(a0)}, {v(a0+1)}", f"v_cvt_pk_bf16_f32 {v(a0+1)}, {v(a0+2)}, {v(a0+3)}",
                   tagop(a0), tagop(a0 + 1)]
            st = f"buffer_store_dwordx2 {v(a0,2)}, {v(vPST)}, {srd(SRD_WS)}, s{soff} offen{sc}"
            if half: st = f"s_mov_b64 exec, s[{sLO32}:{sLO32+1}]\n{st}\ns_mov_b64 exec, -1"
            return ops + [st]
        mfl = [("d", ks) for ks in range(4)] + [(p, ks) for p in range(4) for ks in range(4)]
        groups = [(3, out_ops(WA8, sT0, True))] + [(7 + 4 * p, out_ops(WAo[p], [sPW, sT1, sT2, sT3][p])) for p in range(4)]
        ic = [0]; pos = {}
        def emit(s_):
            A(s_); ic[0] += len([x for x in s_.split("\n") if x.strip()])
        cur = []; gi = 0
        for n, (p, ks) in enumerate(mfl):
            if p == "d":
                n0 = len(A.lines); lg.wait(f"O{ks}"); ic[0] += len(A.lines) - n0
                emit(f"v_mfma_f32_16x16x32_bf16 {v(WA8,4)}, {v(OF[ks],4)}, {WO8(ks)}, {'0' if ks == 0 else v(WA8,4)}")
            else:
                emit(f"v_smfmac_f32_16x16x64_bf16 {v(WAo[p],4)}, {v(OF[ks],4)}, {WO(p,ks)}, {v(IDX)}")
            pos[n] = ic[0]
            k = 0
            while k < 2:
                if not cur and gi < len(groups) and groups[gi][0] <= n and ic[0] - pos[groups[gi][0]] >= 8:
                    cur = list(groups[gi][1]); gi += 1
                if not cur: break
                emit(cur.pop(0)); k += 1
        while cur or gi < len(groups):
            if not cur:
                need = 8 - (ic[0] - pos[groups[gi][0]])
                if need > 0: emit(f"s_nop {need-1}"); ic[0] += need - 1
                cur = list(groups[gi][1]); gi += 1
            emit(cur.pop(0))
        TQ("woend")
        PH(6)
        TR(1)
        A(f"s_cmp_eq_u32 s{sRED}, 0\ns_cbranch_scc1 {LP('nored')}")
        def rload(sidx):
            for i in range(4):
                A(f"buffer_load_dwordx4 {v(RBS[sidx]+4*i,4)}, {v(vRED)}, {srd(SRD_WS)}, s{sPW} offen offset:{i*1024}{ld}")
        def rproc(sidx, br):
            for i in range(4):
                b = RBS[sidx] + 4 * i
                A(f"s_waitcnt vmcnt({(7 if RGAP else 3)-i})")
                mf(RDd, v(SEL, 4), v(b, 4), i == 0)
                o3 = (lambda d, x, y, z: f"v_bitop3_b32 {v(d)}, {v(x)}, {v(y)}, {v(z)} bitop3:0x80") if par else (lambda d, x, y, z: f"v_or3_b32 {v(d)}, {v(x)}, {v(y)}, {v(z)}")
                if i == 0:
                    A(o3(RT, b, b + 1, b + 2)); A(o3(RT, RT, b + 3, b + 3))
                else:
                    A(o3(RT, RT, b, b + 1)); A(o3(RT, RT, b + 2, b + 3))
            A(f"v_and_b32 {v(RT)}, 1, {v(RT)}\nv_cmp_ne_u32 vcc, {par}, {v(RT)}\n{br}")
        A(f"""
        s_mov_b32 s{sT0}, s{sRDLY}
    {LP('rdl')}:
        s_cmp_eq_u32 s{sT0}, 0
        s_cbranch_scc1 {LP('rgo')}
        s_sleep 1
        s_sub_u32 s{sT0}, s{sT0}, 1
        s_branch {LP('rdl')}
    {LP('rgo')}:
        """)
        TQ("rgo")
        rload(0)
        zero_acc()
        if RGAP:
            A(f"s_sleep {RGAP}")
            rload(1)
        A.label(LP('rp0'))
        rproc(0, f"s_cbranch_vccnz {LP('rf0')}")
        A.label(LP('rdone'))
        TQ("rdone")
        A(f"""
        {'s_sub_u32 s96, %d, s%d' % (SPIN, sSPIN) if cnt else 's_nop 0'}
        {'s_add_u32 s21, s21, s96' if cnt else 's_nop 0'}
        s_nop 0
        v_cndmask_b32 {v(RT)}, {v(RDd)}, {v(RDd+2)}, s[{sHI32}:{sHI32+1}]
        v_cndmask_b32 {v(RT+1)}, {v(RDd+1)}, {v(RDd+3)}, s[{sHI32}:{sHI32+1}]
        v_cndmask_b32 {v(RT+3)}, {v(RT+1)}, {v(RT)}, s[{sN8}:{sN8+1}]
        v_cndmask_b32 {v(RT+2)}, {v(RT)}, {v(RT+1)}, s[{sN8}:{sN8+1}]
        s_nop 0
        v_add_f32_dpp {v(RT+2)}, {v(RT+3)}, {v(RT+2)} row_ror:8 row_mask:0xf bank_mask:0xf
        v_mov_b32 {v(RT+3)}, {v(RT+2)}
        s_nop 1
        v_permlane16_swap_b32 {v(RT+2)}, {v(RT+3)}
        v_cvt_pk_bf16_f32 {v(RT+2)}, {v(RT+2)}, {v(RT+3)}
        v_min_u32 {v(TMP)}, -2, {v(RT+2)}
        s_mov_b64 exec, s[{sPM}:{sPM+1}]
        buffer_store_dword {v(TMP)}, {v(vPUB)}, {srd(SRD_WS)}, s{sMW} offen{sc}
        buffer_store_dword {v(vSP)}, {v(vPUB)}, {srd(SRD_WS)}, s{sMA} offen{sc}
        s_mov_b64 exec, -1
        """)
        TQ("pub")
        PH(7)
        TR(2)
        if trace: A("s_waitcnt lgkmcnt(0)")
        A(f"s_branch {nxt_loop}")
        A.label(LP('nored'))
        if trace: A("s_waitcnt vmcnt(0)"); TR(2); A("s_waitcnt lgkmcnt(0)")
        zero_acc()
        if merged:
            A(f"s_cmp_lg_u32 s{W}, 3\ns_cbranch_scc1 {LP('nkv')}\ns_add_u32 s{sT0}, s{sSTEP}, {WARMD + 1}\ns_min_u32 s{sT0}, s{sT0}, 64")
            kv_wait(sT0, LP('kv'))
            A.label(LP('nkv'))
        if tstep:
            A(f"s_cmp_lg_u32 s{W}, 2\ns_cbranch_scc1 {LP('nts')}\ns_memrealtime s[96:97]\ns_waitcnt lgkmcnt(0)\ns_mov_b32 m0, s{sSTEP}\nv_writelane_b32 {v(vSP)}, s96, m0\n{LP('nts')}:")
        if CDN: A(f"s_sleep {CDN}")
        A(f"s_branch {nxt_loop}x")
        A.label(LP('rf0'))
        rload(0); spin()
        if RGAP:
            rproc(1, f"s_cbranch_vccz {LP('rdone')}")
            rload(1); spin()
        A(f"s_branch {LP('rp0')}")
        A.label(LP('cf0'))
        cload(RL, sT1); spin()
        if CGAP:
            A("s_waitcnt vmcnt(1)")
            chk(P1, f"s_cbranch_vccz {LP('cd1')}")
            cload(P1, sT1); spin()
            A("s_waitcnt vmcnt(1)")
            chk(RL, f"s_cbranch_vccz {LP('cd0')}")
            A(f"s_branch {LP('cf0')}")
            A.label(LP('cd1'))
            TR(3)
            A(f"ds_write_b128 {v(vC1)}, {v(P1,4)} offset:{L_MEMF-HI}\ns_branch {LP('cdj')}")
        else:
            A(f"s_branch {LP('cw0')}")
        A.label(LP('slow'))
        A(f"s_sub_u32 s{sT3}, s{sMA}, {HI}\ns_waitcnt lgkmcnt(0)\ns_nop 7")
        zero_acc()
        for kp in range(9):
            lab = LP(f'sp{kp}_')
            for h in range(2):
                kk = 2 * kp + h
                if kk != 17:
                    A(f"ds_read_b128 {v(WR[h],4)}, {v(vWV)} offset:{kk*2048}\nds_read_b128 {v(WR[h]+4,4)}, {v(vWV)} offset:{kk*2048+1024}")
            A(f"""
{lab}:
            buffer_load_dwordx4 {v(AS[0],4)}, {v(vAF)}, {srd(SRD_WS)}, s{sT3} offen sc1
            buffer_load_dwordx4 {v(AS[1],4)}, {v(vAF)}, {srd(SRD_WS)}, s{sT3} offen offset:512 sc1
            """)
            spin()
            A(f"""
            s_waitcnt vmcnt(0) lgkmcnt(0)
            v_max3_u32 {v(TMP)}, {v(AS[0])}, {v(AS[0]+1)}, {v(AS[0]+2)}
            v_max3_u32 {v(TMP)}, {v(TMP)}, {v(AS[0]+3)}, {v(AS[1])}
            v_max3_u32 {v(TMP)}, {v(TMP)}, {v(AS[1]+1)}, {v(AS[1]+2)}
            v_max_u32 {v(TMP)}, {v(TMP)}, {v(AS[1]+3)}
            v_cmp_eq_u32 vcc, -1, {v(TMP)}
            s_cbranch_vccnz {lab}
            """)
            for h in range(2):
                kk = 2 * kp + h
                sm(AQ, v(AS[h], 4), WQ(kk)); sm(AK, v(AS[h], 4), WK(kk)); sm(AV, v(AS[h], 4), v(WR[h], 8) if kk != 17 else v(WVR, 8))
            A(f"s_add_u32 s{sT3}, s{sT3}, 1024")
        if prof: A(f"s_mov_b64 exec, {1 << 10}\nv_add_u32 v1, 63, v1\ns_mov_b64 exec, -1")
        if cnt: A("s_add_u32 s20, s20, 0x10000")
        A("s_nop 7")
        qk_write()
        A(f"ds_read_b128 {v(KXR[2],4)}, {v(vKX)} offset:{L_KX-HI+2048}")
        A(f"s_waitcnt lgkmcnt(0)\ns_branch {LP('slowret')}")
    step_body(0, sc, ''); step_body(1, sc, '')
    if merged:
        step_body(0, ' sc1', 'S'); step_body(1, ' sc1', 'S')
    A.label(L('done'))
    A(f"""
    s_lshr_b32 s{sT2}, s{sSEG}, 2
    s_add_u32 s{sT1}, s{sT2}, {WS_VM - L_Q}
    s_add_u32 s{sT4}, s{sT2}, {WS_KM - L_Q}
    buffer_store_dwordx2 {v(D0+52,2)}, {v(vQW)}, {srd(SRD_WS)}, s{sT4} offen sc1
    buffer_store_dwordx2 {v(D0+54,2)}, {v(vQW)}, {srd(SRD_WS)}, s{sT1} offen sc1
    """)
    A("s_waitcnt vmcnt(0) lgkmcnt(0)")
    if merged:
        A(f"""
        s_barrier
        s_cmp_lg_u32 s{W}, 3
        s_cbranch_scc1 {L('nfin')}
        v_mov_b32 {v(TMP)}, 64
        v_mov_b32 {v(D0+52)}, s{sPRG}
        s_mov_b64 exec, 1
        buffer_store_dword {v(TMP)}, {v(D0+52)}, {srd(SRD_WS)}, 0 offen sc1
        s_mov_b64 exec, -1
        s_waitcnt vmcnt(0)
{L('nfin')}:
        """)
    if cnt:
        A(f"v_mov_b32 v1, s20\ns_mov_b64 exec, 2\nv_mov_b32 v1, s21\ns_mov_b64 exec, -1")
        A("s_memtime s[96:97]\ns_memrealtime s[100:101]\ns_waitcnt lgkmcnt(0)\ns_sub_u32 s96, s96, s99\ns_sub_u32 s100, s100, s98")
        A("s_mov_b64 exec, 4\nv_mov_b32 v1, s96\ns_mov_b64 exec, 8\nv_mov_b32 v1, s100\ns_mov_b64 exec, -1")
    if trace:
        for i in range(6): A(f"s_mov_b64 exec, {1 << i}\nv_mov_b32 v1, s{8+2*i}")
        A("s_mov_b64 exec, -1")
    if tq:
        for i in range(len(tq)): A(f"s_mov_b64 exec, {1 << i}\nv_mov_b32 v1, s{8+2*i}")
        A("s_mov_b64 exec, -1")
    if tstep: A(f"v_mov_b32 v1, {v(vSP)}")
    if prof or cnt or trace or tq or tstep:
        A(f"""
        s_lshl_b32 s96, s{s_head}, 2
        s_add_u32 s96, s96, s{W}
        s_lshl_b32 s96, s96, 8
        s_add_u32 s96, s96, {WS_STAMP + 0x10000}
        v_lshrrev_b32 v28, 2, {v(vCON)}
        v_and_b32 v28, 255, v28
        buffer_store_dword v1, v28, {srd(SRD_WS)}, s96 offen
        s_waitcnt vmcnt(0)
        """)
    stamp(A, 10, s_id=s_head)
    hstamp(A, 14)
```

```python
import sys
from common import *
from mod_p import *
from mod_r9 import mod_R
from mod_xo import *
from mod_f import *

OPT = {}
def kernel(name, body, vgpr=256, agpr=256):
    A = Asm()
    body(A)
    return kernel_head(name) + A.text(), kernel_desc(name, vgpr, agpr)

def k_P(A):
    prologue(A, 256, "KP_end")
    A("""s_lshr_b32 s58, s2, 3
    s_and_b32 s59, s2, 7""")
    A("""s_and_b32 s58, s2, 3
    s_lshl_b32 s58, s58, 3
    s_bfe_u32 s59, s2, 0x30003
    s_add_u32 s58, s58, s59
    s_lshr_b32 s59, s2, 6
    s_and_b32 s60, s2, 4
    s_add_u32 s59, s59, s60""")
    mod_P(A, 58, 59, 8, flags=False, sc=OPT.get('sc', ' sc1'), nost=OPT.get('nost', 0))
    A("KP_end:")
    A("s_endpgm")

def ticket_xcd0(A, endlabel):
    A(f"""
    s_getreg_b32 s59, hwreg(HW_REG_XCC_ID)
    s_and_b32 s59, s59, 15
    s_cmp_lg_u32 s59, 0
    s_cbranch_scc1 {endlabel}
    s_cmp_lg_u32 s{S_WAVE}, 0
    s_cbranch_scc1 TK_1
    v_mov_b32 v3, 1
    v_mov_b32 v4, 0
    s_mov_b64 exec, 1
    buffer_atomic_add v3, v4, {srd(SRD_DBG)}, 0 offen sc0 sc1
    s_waitcnt vmcnt(0)
    ds_write_b32 v4, v3
    s_waitcnt lgkmcnt(0)
    s_mov_b64 exec, -1
TK_1:
    s_barrier
    v_mov_b32 v4, 0
    ds_read_b32 v3, v4
    s_waitcnt lgkmcnt(0)
    v_readfirstlane_b32 s58, v3
    s_barrier
    s_cmp_ge_u32 s58, 32
    s_cbranch_scc1 {endlabel}
    """)

def k_R(A):
    prologue(A, 256, "KR_end")
    ticket_xcd0(A, "KR_end")
    mod_R(A, 58, **OPT.get('R', {}))
    A("s_branch KR_end")
    A(f"""
R_abort:
    v_mov_b32 v3, 0xdead
    v_mov_b32 v4, 60
    buffer_store_dword v3, v4, {srd(SRD_DBG)}, 0 offen
    s_waitcnt vmcnt(0)
KR_end:
    s_endpgm""")

def k_X(A):
    prologue(A, 256, "KX_end")
    X_setup(A)
    A("""s_mov_b32 s58, s2
KX_loop:""")
    raise NotImplementedError
    A("""s_add_u32 s58, s58, 256
    s_cmp_lt_u32 s58, 2048
    s_cbranch_scc1 KX_loop
KX_end:
    s_endpgm""")

def k_O(A):
    prologue(A, 252, "KO_end")
    A("""s_mul_hi_u32 s59, s2, 238609295
    s_mul_i32 s58, s59, 18
    s_sub_u32 s58, s2, s58
    s_mov_b32 s70, 0""")
    O_setup(A, 58)
    A("KO_loop:")
    O_item(A, 59, 70)
    A("""s_add_u32 s59, s59, 14
    s_cmp_lt_u32 s59, 64
    s_cbranch_scc1 KO_loop
KO_end:
    s_endpgm""")

def k_F0(A):
    prologue(A, 256, "KF0_end")
    F0(A, 2, 256)
    A("KF0_end:\ns_endpgm")
def mk_FG(which):
    def f(A):
        prologue(A, 255, f"KF{which}_end")
        A("""s_mul_hi_u32 s59, s2, 858993460
        s_mul_i32 s58, s59, 5
        s_sub_u32 s58, s2, s58""")
        FG(A, which, 58, 59, 51)
        A(f"KF{which}_end:\ns_endpgm")
    return f
def k_F2(A):
    prologue(A, 73, "KF2_end")
    A(f"""s_lshl_b32 s58, s2, 2
    s_add_u32 s58, s58, s{S_WAVE}
    s_cmp_gt_u32 s58, 288
    s_cbranch_scc1 KF2_end""")
    F2(A, 58)
    A("KF2_end:\ns_endpgm")

HEADER = open("cdna_kernels/" + NAME + ".s.ref").read().split("; Override launch")[0]

def build(kernels):
    txt = HEADER
    for (n, f, g, lds) in kernels:
        txt += f"; @launch kernel={n} grid=({g},1,1) block=(256,1,1) lds={lds}\n"
    txt += '.amdgcn_target "amdgcn-amd-amdhsa--gfx950"\n.text\n'
    descs = []
    seen = set()
    for (n, f, g, lds) in kernels:
        if n in seen: continue
        seen.add(n)
        t, d = kernel(n, f)
        txt += t; descs.append(d)
    txt += '.section .rodata,"a"\n'
    for d in descs:
        txt += ".p2align 6\n" + d
    return txt

if __name__ == "__main__":
    import common
    if "stamps" in sys.argv: common.STAMPS = True
    if "hst" in sys.argv: common.HST = True
    if "nosc" in sys.argv: OPT['sc'] = ''
    if "nt" in sys.argv: OPT['sc'] = ' nt'
    if "rdbg" in sys.argv: OPT['R'] = dict(last=1, dbg_noarm=True)
    if "prof" in sys.argv: OPT['R'] = dict(prof=True)
    for a_ in sys.argv:
        if a_.startswith("M:"):
            OPT.setdefault('M', {}).update(eval("dict(" + a_[2:] + ")"))
        if a_.startswith("R:"):
            OPT.setdefault('R', {}).update(eval("dict(" + a_[2:] + ")"))
    if "nost" in sys.argv: OPT['nost'] = 1
    ks = [("p_kernel", k_P, 256, 163840), ("r_kernel", k_R, 256, 163840), ("x_kernel", k_X, 256, 8192), ("o_kernel", k_O, 252, 163840)]
    ksA = [("f0_kernel", k_F0, 256, 0), ("f1_kernel", mk_FG(1), 255, 131072), ("f2_kernel", k_F2, 73, 0), ("f3_kernel", mk_FG(3), 255, 131072)]
    if "aonly" in sys.argv: ks = ksA
    if "all" in sys.argv: ks = ksA + ks
    if "pr" in sys.argv: ks = ks[0:2]
    if "ronly" in sys.argv: ks = ks[1:2]
    if "merged" in sys.argv:
        from merged import k_merged
        common.STAMP_ID = 58
        ks = [("fused_kernel", lambda A: k_merged(A, OPT.get('R', {}), **OPT.get('M', {})), 256, 163840)]
    open(sys.argv[1], "w").write(build(ks))
```

```python
from asmlib import *

NAME = "concat_heads__spectral_gfnet__memory_aug_recurrent_mem_tr__prompt"

MB = 1 << 20
WS_QX   = 0
WS_KX   = 16 * MB
WS_VX   = 32 * MB
WS_OX   = 48 * MB
WS_KM   = 64 * MB
WS_VM   = 68 * MB
WS_PART = 72 * MB
WS_MEMB = 73 * MB
WS_FLAG = 74 * MB
WS_F1   = 75 * MB
WS_F3   = 76 * MB
WS_WT   = 77 * MB
WS_X1   = 80 * MB
WS_Y1   = 83 * MB
WS_SIZE = 256 * MB

S_WG = 2
SRD_AX, SRD_WR, SRD_WI, SRD_BX, SRD_M0, SRD_WQ, SRD_WK, SRD_WV, SRD_WO, SRD_OUT, SRD_DBG, SRD_WS = [8 + 4 * i for i in range(12)]
S_WAVE = 56
S_ROLE = 57
def srd(b): return "s[%d:%d]" % (b, b + 3)

SIZES = {SRD_AX: 2048*576*2, SRD_WR: 2048*289*2, SRD_WI: 2048*289*2, SRD_BX: 2048*576*2, SRD_M0: 8*576*2,
         SRD_WQ: 576*4096*2, SRD_WK: 576*4096*2, SRD_WV: 576*4096*2, SRD_WO: 576*4096*2,
         SRD_OUT: 2048*1152*2, SRD_DBG: 256, SRD_WS: WS_SIZE}
KOFF = {SRD_AX: 0, SRD_WR: 8, SRD_WI: 16, SRD_BX: 24, SRD_M0: 32, SRD_WQ: 40, SRD_WK: 48, SRD_WV: 56, SRD_WO: 64,
        SRD_OUT: 80, SRD_DBG: 88, SRD_WS: 96}

def prologue(A, nwg, endlabel):
    A(f"s_cmp_ge_u32 s2, {nwg}")
    A(f"s_cbranch_scc1 {endlabel}")
    for b, off in KOFF.items():
        A(f"s_load_dwordx2 s[{b}:{b+1}], s[0:1], {off}")
    A("v_lshrrev_b32 v2, 6, v0")
    A("v_and_b32 v1, 63, v0")
    A(f"v_readfirstlane_b32 s{S_WAVE}, v2")
    for b in KOFF:
        A(f"s_mov_b32 s{b+2}, {SIZES[b]}")
        A(f"s_mov_b32 s{b+3}, 0x20000")
    A("s_waitcnt lgkmcnt(0)")

def wreg(i, n):
    if i + n <= 256:
        return a(i, n)
    assert i >= 256
    return v(80 + i - 256, n)

WS_STAMP = 100 * MB
STAMPS = False
STAMP_ID = 2
def stamp(A, idx, vt=78, s_id=None):
    import common
    if not common.STAMPS: return
    if s_id is None: s_id = common.STAMP_ID
    l = A.newlabel("ST")
    A(f"""
    s_cmp_lg_u32 s{S_WAVE}, 0
    s_cbranch_scc1 {l}
    s_memrealtime s[96:97]
    s_lshl_b32 s98, s{s_id}, 8
    s_add_u32 s98, s98, {WS_STAMP + idx*4}
    s_waitcnt lgkmcnt(0)
    v_mov_b32 {v(vt)}, s96
    v_mov_b32 {v(vt+1)}, 0
    s_mov_b64 exec, 1
    buffer_store_dword {v(vt)}, {v(vt+1)}, {srd(SRD_WS)}, s98 offen
    s_mov_b64 exec, -1
{l}:
    """)
DBG_XCD = 0
DBG_TOT = 32
DBG_OVF = 80
DBG_RARM = 40
DBG_INIT = 44
DBG_F0 = 68
DBG_F1 = 72
DBG_F2 = 76
DBG_ABORT = 36+28
FLAG_KV = WS_FLAG
FLAG_OX = WS_FLAG + 8192
FLAG_RP = WS_FLAG + 16384

HST = False
def hstamp(A, dw, neg=False, vt=78):
    import common
    if not common.HST: return
    l = A.newlabel("HS")
    A(f"""
    s_cmp_lg_u32 s{S_WAVE}, 0
    s_cbranch_scc1 {l}
    s_memrealtime s[96:97]
    s_waitcnt lgkmcnt(0)
    {'s_not_b32 s96, s96' if neg else 's_nop 0'}
    v_mov_b32 {v(vt)}, s96
    v_mov_b32 {v(vt+1)}, {dw*4}
    s_mov_b64 exec, 1
    buffer_atomic_umax {v(vt)}, {v(vt+1)}, {srd(SRD_DBG)}, 0 offen sc1
    s_mov_b64 exec, -1
{l}:
    """)
DBG_OVH = 84
def claim_off(x): return 192 if x == 0 else [0, 128, 160, 96, 4, 132, 164][x - 1]
```

```python
from common import *
from mod_p import *
from mod_r4 import mod_R
from mod_r4 import SPIN
from mod_xo import *
from mod_f import *

NW = 224
EV_LDS = 16384
sWID, sHEAD, sGRP, sCB, sOG, sXN, sON, sPAR, sITEM, sCG, sTG, sKAP, sSP = range(76, 89)

def role_assign(A, abort):
    A(f"""
    s_cmp_lg_u32 s{S_WAVE}, 0
    s_cbranch_scc1 RA_bc
    s_getreg_b32 s59, hwreg(HW_REG_XCC_ID)
    s_and_b32 s59, s59, 15
    s_mov_b64 exec, 1
    v_mov_b32 v3, 1
    s_mov_b32 s60, 32
    s_cmp_ge_u32 s59, 8
    s_cbranch_scc1 RA_not
    s_lshl_b32 s61, s59, 2
    v_mov_b32 v4, s61
    buffer_atomic_add v3, v4, {srd(SRD_DBG)}, 0 offen sc0 sc1
    s_waitcnt vmcnt(0)
    v_readfirstlane_b32 s60, v3
RA_not:
    v_mov_b32 v3, 1
    v_mov_b32 v4, {DBG_TOT}
    buffer_atomic_add v3, v4, {srd(SRD_DBG)}, 0 offen sc1
    s_lshl_b32 s58, s59, 5
    s_add_u32 s58, s58, s60
    s_cmp_lt_u32 s60, 32
    s_cbranch_scc1 RA_have
    v_mov_b32 v5, 1
    v_mov_b32 v4, {DBG_OVF}
    buffer_atomic_add v5, v4, {srd(SRD_DBG)}, 0 offen sc0 sc1
    s_waitcnt vmcnt(0)
    v_readfirstlane_b32 s61, v5
    s_mov_b64 exec, -1
    v_and_b32 v4, 15, v1
    v_lshlrev_b32 v4, 2, v4
    s_mov_b32 s63, {SPIN}
RA_poll:
    buffer_load_dword v5, v4, {srd(SRD_DBG)}, 0 offen sc1
    s_sub_u32 s63, s63, 1
    s_cbranch_scc1 {abort}
    s_waitcnt vmcnt(0)
    v_readlane_b32 s62, v5, {DBG_TOT//4}
    s_cmp_lt_u32 s62, 256
    s_cbranch_scc1 RA_poll
    s_mov_b32 s58, 255
    """)
    for x in range(8):
        A(f"""
        v_readlane_b32 s62, v5, {x}
        s_min_u32 s62, s62, 32
        s_sub_u32 s60, 32, s62
        s_cmp_lt_u32 s61, s60
        s_cbranch_scc0 RA_n{x}
        s_add_u32 s58, s62, s61
        s_add_u32 s58, s58, {32*x}
        s_branch RA_have
RA_n{x}:
        s_sub_u32 s61, s61, s60
        """)
    A(f"""
RA_have:
    s_mov_b64 exec, 1
    v_mov_b32 v3, s58
    v_mov_b32 v4, 0
    ds_write_b32 v4, v3
    s_waitcnt lgkmcnt(0)
    s_mov_b64 exec, -1
RA_bc:
    s_waitcnt vmcnt(0)
    s_barrier
    v_mov_b32 v4, 0
    ds_read_b32 v3, v4
    s_waitcnt lgkmcnt(0)
    v_readfirstlane_b32 s58, v3
    s_barrier
    """)

def wait_ge(A, srd_, off_expr_s, val, abort, vt=250, sleep=8):
    l = A.newlabel("WG")
    A(f"""
    s_mov_b32 s{sSP}, {SPIN}
    v_mov_b32 {v(vt)}, {off_expr_s}
{l}:
    buffer_load_dword {v(vt+1)}, {v(vt)}, {srd(srd_)}, 0 offen sc1
    s_sub_u32 s{sSP}, s{sSP}, 1
    s_cbranch_scc1 {abort}
    s_waitcnt vmcnt(0)
    v_cmp_le_u32 vcc, {val}, {v(vt+1)}
    s_cbranch_vccnz {l}_ok
    s_sleep {sleep}
    s_branch {l}
{l}_ok:
    """)

def signal_wg(A, off, vt=250):
    l = A.newlabel("SG")
    A(f"""
    s_waitcnt vmcnt(0)
    s_barrier
    s_cmp_lg_u32 s{S_WAVE}, 0
    s_cbranch_scc1 {l}
    v_mov_b32 {v(vt)}, {off}
    v_mov_b32 {v(vt+1)}, 1
    s_mov_b64 exec, 1
    buffer_atomic_add {v(vt+1)}, {v(vt)}, {srd(SRD_DBG)}, 0 offen sc1
    s_mov_b64 exec, -1
{l}:
    """)

def acc_t(A, dst):
    import common
    if not common.STAMPS: return
    A(f"s_memrealtime s[96:97]\ns_waitcnt lgkmcnt(0)\ns_sub_u32 s98, s96, s93\ns_add_u32 s{dst}, s{dst}, s98\ns_mov_b32 s93, s96")

def k_merged(A, ropt, EVS=4, PREF=0):
    AB = "M_abort"
    prologue(A, 256, "M_end")
    if PREF:
        A(f"""
        s_getpc_b64 s[60:61]
M_pc:
        v_lshlrev_b32 v3, 7, v0
        v_mov_b32 v5, M_codeend - M_pc - 4
        """)
        for k in range(PREF):
            A(f"""
            v_add_u32 v4, {k*32768}, v3
            v_min_u32 v4, v4, v5
            global_load_dword v6, v4, s[60:61]
            """)
    stamp(A, 13, s_id=2)
    hstamp(A, 11, neg=True)
    role_assign(A, AB)
    A("s_cmp_ge_u32 s58, 32\ns_cbranch_scc1 M_worker")
    mod_R(A, 58, abort=AB, merged=True, **ropt)
    A("s_branch M_end")
    A.label("M_worker")
    A(f"""
    s_sub_u32 s{sWID}, s58, 32
    s_lshr_b32 s60, s{sWID}, 3                      ; unit
    s_mul_hi_u32 s61, s60, {(2**32+6)//7}           ; octet
    s_mul_i32 s62, s61, 7
    s_sub_u32 s{sGRP}, s60, s62
    s_lshl_b32 s61, s61, 3
    s_and_b32 s62, s{sWID}, 7
    s_add_u32 s{sHEAD}, s61, s62
    s_mul_hi_u32 s{sOG}, s{sWID}, {(2**32+17)//18}
    s_mul_i32 s60, s{sOG}, 18
    s_sub_u32 s{sCB}, s{sWID}, s60
    s_mul_hi_u32 s{sTG}, s{sWID}, {(2**32+4)//5}
    s_mul_i32 s60, s{sTG}, 5
    s_sub_u32 s{sCG}, s{sWID}, s60
    s_mul_i32 s{sKAP}, s{S_WAVE}, {NW}
    s_add_u32 s{sKAP}, s{sKAP}, s{sWID}
    """)
    stamp(A, 0, s_id=58)
    F0(A, sWID, NW)
    signal_wg(A, DBG_F0, vt=76)
    mod_P(A, sHEAD, sGRP, 7, preloop=lambda: wait_ge(A, SRD_DBG, DBG_RARM, 32, AB, vt=76))
    stamp(A, 4, s_id=58)
    wait_ge(A, SRD_DBG, DBG_F0, NW, AB)
    A(f"s_cmp_ge_u32 s{sTG}, 44\ns_cbranch_scc1 M_nof1")
    FG(A, 1, sCG, sTG, 44)
    A.label("M_nof1")
    signal_wg(A, DBG_F1)
    stamp(A, 5, s_id=58)
    A(f"s_cmp_ge_u32 s{sOG}, 12\ns_cbranch_scc1 M_noos")
    O_setup(A, sCB, keep=True)
    A.label("M_noos")
    stamp(A, 6, s_id=58)
    wait_ge(A, SRD_DBG, DBG_F1, NW, AB)
    A(f"s_cmp_gt_u32 s{sKAP}, 288\ns_cbranch_scc1 M_nof2")
    F2(A, sKAP)
    A.label("M_nof2")
    signal_wg(A, DBG_F2)
    stamp(A, 7, s_id=58)
    wait_ge(A, SRD_DBG, DBG_F2, NW, AB)
    A(f"s_cmp_ge_u32 s{sTG}, 44\ns_cbranch_scc1 M_nof3")
    FG(A, 3, sCG, sTG, 44)
    A.label("M_nof3")
    A("s_waitcnt vmcnt(0)\ns_barrier")
    stamp(A, 11, s_id=58)
    hstamp(A, 9)
    X_setup(A)
    O_addr(A, sCB)
    A(f"""
    s_mov_b32 s{sXN}, s{sGRP}
    s_cmp_lt_u32 s{sOG}, 12
    s_cselect_b32 s{sON}, s{sOG}, 64
    s_mov_b32 s{sPAR}, 0
    s_mov_b32 s90, 0
    s_mov_b32 s91, 0
    s_mov_b32 s92, 0
    s_mov_b32 s93, 0
    """)
    acc_t(A, 92)
    A(f"""
    s_mov_b32 s92, 0
M_ev:
    s_min_u32 s60, s{sXN}, s{sON}
    s_cmp_ge_u32 s60, 64
    s_cbranch_scc1 M_fin
    s_cmp_lg_u32 s{S_WAVE}, 0
    s_cbranch_scc1 M_evb
    s_lshl_b32 s64, s{sHEAD}, 7
    s_add_u32 s64, s64, {FLAG_RP}
    s_min_u32 s65, s{sON}, 63
    s_lshl_b32 s65, s65, 7
    s_add_u32 s65, s65, {FLAG_OX}
    v_mov_b32 v250, s64
    v_mov_b32 v251, s65
    s_mov_b32 s{sSP}, {SPIN}
M_evp:
    buffer_load_dword v252, v250, {srd(SRD_WS)}, 0 offen sc1
    buffer_load_dword v253, v251, {srd(SRD_WS)}, 0 offen sc1
    s_sub_u32 s{sSP}, s{sSP}, 1
    s_cbranch_scc1 {AB}
    s_waitcnt vmcnt(0)
    v_readfirstlane_b32 s60, v252
    v_readfirstlane_b32 s61, v253
    s_mov_b32 s62, 1
    s_cmp_gt_u32 s60, s{sXN}
    s_cbranch_scc1 M_evd
    s_mov_b32 s62, 2
    s_cmp_ge_u32 s{sON}, 64
    s_cbranch_scc1 M_evs
    s_cmp_ge_u32 s61, 128
    s_cbranch_scc1 M_evd
M_evs:
    s_min_u32 s61, s{sXN}, s{sON}
    s_add_u32 s60, s60, 1
    s_cmp_gt_u32 s61, s60
    s_cbranch_scc0 M_evs2
    s_sleep 48
M_evs2:
    s_sleep {EVS}
    s_branch M_evp
M_evd:
    v_mov_b32 v252, s62
    v_mov_b32 v253, {EV_LDS}
    ds_write_b32 v253, v252
    s_waitcnt lgkmcnt(0)
M_evb:
    s_barrier
    v_mov_b32 v253, {EV_LDS}
    ds_read_b32 v252, v253
    s_waitcnt lgkmcnt(0)
    v_readfirstlane_b32 s62, v252
    s_barrier
    """)
    acc_t(A, 92)
    A(f"""
    s_cmp_eq_u32 s62, 2
    s_cbranch_scc1 M_evO
    s_lshl_b32 s{sITEM}, s{sXN}, 5
    s_add_u32 s{sITEM}, s{sITEM}, s{sHEAD}
    """)
    X_item(A, sITEM)
    A(f"""
    s_lshl_b32 s60, s{sXN}, 7
    s_add_u32 s60, s60, {FLAG_OX}
    v_mov_b32 v250, s60
    v_mov_b32 v251, 1
    s_waitcnt vmcnt(0)
    s_mov_b64 exec, 1
    buffer_atomic_add v251, v250, {srd(SRD_WS)}, 0 offen sc1
    s_mov_b64 exec, -1
    s_add_u32 s{sXN}, s{sXN}, 7
    """)
    acc_t(A, 90)
    A(f"""
    s_branch M_ev
M_evO:
    """)
    O_item(A, sON, sPAR)
    acc_t(A, 91)
    A(f"""
    s_add_u32 s{sON}, s{sON}, 12
    s_branch M_ev
M_fin:
    """)
    stamp(A, 12, s_id=58)
    hstamp(A, 15)
    import common
    if common.STAMPS:
        A(f"""
        s_lshl_b32 s98, s58, 8
        s_add_u32 s98, s98, {WS_STAMP + 160}
        v_mov_b32 v76, s90
        v_mov_b32 v77, s91
        v_mov_b32 v78, s92
        v_mov_b32 v79, 0
        s_mov_b64 exec, 1
        buffer_store_dwordx3 v[76:78], v79, {srd(SRD_WS)}, s98 offen
        s_mov_b64 exec, -1
        """)
    A("s_branch M_end")
    A(f"""
{AB}:
    s_mov_b64 exec, -1
    v_mov_b32 v3, 0xdead
    v_mov_b32 v4, {DBG_ABORT}
    buffer_store_dword v3, v4, {srd(SRD_DBG)}, 0 offen
    s_waitcnt vmcnt(0)
M_end:
    s_endpgm
M_codeend:""")
```

```python
from common import *
from mod_p import *
from mod_r4 import mod_R
from mod_r4 import SPIN
from mod_xo import *
from mod_f import *

NW = 224
EV_LDS = 16384
sWID, sHEAD, sGRP, sCB, sOG, sXN, sON, sPAR, sITEM, sCG, sTG, sKAP, sSP = range(76, 89)

BC_LDS = 163836
def claim_issue(A, FX=0):
    A(f"""
    s_getreg_b32 s59, hwreg(HW_REG_XCC_ID)
    s_and_b32 s59, s59, 15
    """)
    if FX:
        A("s_cmp_ge_u32 s2, 128\ns_cselect_b32 s60, 1, 0\ns_max_u32 s59, s59, s60")
    A(f"""
    s_bfe_u32 s60, s2, 0x50003
    s_lshl_b32 s58, s59, 5
    s_add_u32 s58, s58, s60
    v_mov_b32 v30, -1
    v_mov_b32 v31, 0
    s_cmp_lg_u32 s{S_WAVE}, 0
    s_cbranch_scc1 RA_iss
    s_cmp_ge_u32 s59, 8
    s_cbranch_scc1 RA_iss
    s_lshl_b32 s61, 1, s60
    s_lshl_b32 s62, s59, 2
    v_mov_b32 v30, s61
    v_mov_b32 v31, s62
    s_mov_b64 exec, 1
    buffer_atomic_or v30, v31, {srd(SRD_DBG)}, 0 offen sc0 sc1
    s_mov_b64 exec, -1
RA_iss:
    """)

def claim_resolve(A, t, younger, abort):
    A(f"""
    s_cmp_lg_u32 s{S_WAVE}, 0
    s_cbranch_scc1 RA{t}_bc
    s_and_b32 s60, s58, 31
    s_waitcnt vmcnt({younger})
RA{t}_try:
    v_readfirstlane_b32 s61, v30
    s_bitcmp0_b32 s61, s60
    s_cbranch_scc1 RA{t}_got
    s_ff0_i32_b32 s60, s61
    s_cmp_lt_i32 s60, 0
    s_cbranch_scc1 RA{t}_ovf
    s_lshl_b32 s61, 1, s60
    v_mov_b32 v30, s61
    s_mov_b64 exec, 1
    buffer_atomic_or v30, v31, {srd(SRD_DBG)}, 0 offen sc0 sc1
    s_mov_b64 exec, -1
    s_waitcnt vmcnt(0)
    s_branch RA{t}_try
RA{t}_got:
    s_lshl_b32 s3, s59, 5
    s_add_u32 s3, s3, s60
    s_mov_b32 s62, 0
    s_branch RA{t}_tot
RA{t}_ovf:
    s_mov_b32 s62, 1
RA{t}_tot:
    v_mov_b32 v28, 1
    v_mov_b32 v29, {DBG_TOT}
    s_mov_b64 exec, 1
    buffer_atomic_add v28, v29, {srd(SRD_DBG)}, 0 offen sc1
    s_mov_b64 exec, -1
    s_cmp_eq_u32 s62, 0
    s_cbranch_scc1 RA{t}_have
    v_mov_b32 v28, 1
    v_mov_b32 v29, {DBG_OVF}
    s_mov_b64 exec, 1
    buffer_atomic_add v28, v29, {srd(SRD_DBG)}, 0 offen sc0 sc1
    s_mov_b64 exec, -1
    s_waitcnt vmcnt(0)
    v_readfirstlane_b32 s61, v28                 ; o
    v_and_b32 v29, 15, v1
    v_lshlrev_b32 v29, 2, v29
    s_mov_b32 s63, {SPIN}
RA{t}_poll:
    buffer_load_dword v28, v29, {srd(SRD_DBG)}, 0 offen sc1
    s_sub_u32 s63, s63, 1
    s_cbranch_scc1 {abort}
    s_waitcnt vmcnt(0)
    v_readlane_b32 s62, v28, {DBG_TOT//4}
    s_cmp_lt_u32 s62, 256
    s_cbranch_scc1 RA{t}_poll
    s_mov_b32 s3, 0
RA{t}_scan:
    s_lshr_b32 s60, s3, 5
    s_nop 3
    v_readlane_b32 s62, v28, s60
    s_and_b32 s60, s3, 31
    s_bitcmp1_b32 s62, s60
    s_cbranch_scc1 RA{t}_nx
    s_cmp_eq_u32 s61, 0
    s_cbranch_scc1 RA{t}_fnd
    s_sub_u32 s61, s61, 1
RA{t}_nx:
    s_add_u32 s3, s3, 1
    s_cmp_lt_u32 s3, 255
    s_cbranch_scc1 RA{t}_scan
RA{t}_fnd:
    s_cmp_ge_u32 s3, 32
    s_cbranch_scc1 RA{t}_have
    v_mov_b32 v28, 1
    v_mov_b32 v29, {DBG_OVH}
    s_mov_b64 exec, 1
    buffer_store_dword v28, v29, {srd(SRD_DBG)}, 0 offen sc1
    s_mov_b64 exec, -1
    s_waitcnt vmcnt(0)
RA{t}_have:
    v_mov_b32 v28, s3
    v_mov_b32 v29, {BC_LDS}
    ds_write_b32 v29, v28
    s_waitcnt lgkmcnt(0)
RA{t}_bc:
    s_barrier
    v_mov_b32 v29, {BC_LDS}
    ds_read_b32 v28, v29
    s_waitcnt lgkmcnt(0)
    v_readfirstlane_b32 s3, v28
    s_barrier
    """)

def wait_ge(A, srd_, off_expr_s, val, abort, vt=250, sleep=8):
    l = A.newlabel("WG")
    A(f"""
    s_mov_b32 s{sSP}, {SPIN}
    v_mov_b32 {v(vt)}, {off_expr_s}
{l}:
    buffer_load_dword {v(vt+1)}, {v(vt)}, {srd(srd_)}, 0 offen sc1
    s_sub_u32 s{sSP}, s{sSP}, 1
    s_cbranch_scc1 {abort}
    s_waitcnt vmcnt(0)
    v_cmp_le_u32 vcc, {val}, {v(vt+1)}
    s_cbranch_vccnz {l}_ok
    s_sleep {sleep}
    s_branch {l}
{l}_ok:
    """)

def signal_wg(A, off, vt=250):
    l = A.newlabel("SG")
    A(f"""
    s_waitcnt vmcnt(0)
    s_barrier
    s_cmp_lg_u32 s{S_WAVE}, 0
    s_cbranch_scc1 {l}
    v_mov_b32 {v(vt)}, {off}
    v_mov_b32 {v(vt+1)}, 1
    s_mov_b64 exec, 1
    buffer_atomic_add {v(vt+1)}, {v(vt)}, {srd(SRD_DBG)}, 0 offen sc1
    s_mov_b64 exec, -1
{l}:
    """)

def acc_t(A, dst):
    import common
    if not common.STAMPS: return
    A(f"s_memrealtime s[96:97]\ns_waitcnt lgkmcnt(0)\ns_sub_u32 s98, s96, s93\ns_add_u32 s{dst}, s{dst}, s98\ns_mov_b32 s93, s96")

def k_merged(A, ropt, EVS=4, PREF=0, FX=0):
    AB = "M_abort"
    prologue(A, 256, "M_end")
    if PREF:
        A(f"""
        s_getpc_b64 s[60:61]
M_pc:
        v_lshlrev_b32 v3, 7, v0
        v_mov_b32 v5, M_codeend - M_pc - 4
        """)
        for k in range(PREF):
            A(f"""
            v_add_u32 v4, {k*32768}, v3
            v_min_u32 v4, v4, v5
            global_load_dword v6, v4, s[60:61]
            """)
    stamp(A, 13, s_id=2)
    hstamp(A, 11, neg=True)
    claim_issue(A, FX)
    A("s_mov_b32 s57, 0\ns_cmp_eq_u32 s59, 0\ns_cbranch_scc1 M_head")
    claim_resolve(A, "a", 0, AB)
    A.label("M_dispatch")
    A("s_mov_b32 s58, s3\ns_mov_b32 s57, 1\ns_cmp_ge_u32 s58, 32\ns_cbranch_scc1 M_worker")
    A.label("M_head")
    def resolve():
        A("s_cmp_eq_u32 s57, 1\ns_cbranch_scc1 M_resolved")
        claim_resolve(A, "b", 36, AB)
        A("s_cmp_eq_u32 s3, s58\ns_cbranch_scc1 M_resolved\ns_waitcnt vmcnt(0)\ns_barrier\ns_branch M_dispatch")
        A.label("M_resolved")
    mod_R(A, 58, abort=AB, merged=True, hooks=dict(resolve=resolve), **ropt)
    A("s_branch M_end")
    A.label("M_worker")
    A(f"""
    s_sub_u32 s{sWID}, s58, 32
    s_lshr_b32 s60, s{sWID}, 3                      ; unit
    s_mul_hi_u32 s61, s60, {(2**32+6)//7}           ; octet
    s_mul_i32 s62, s61, 7
    s_sub_u32 s{sGRP}, s60, s62
    s_lshl_b32 s61, s61, 3
    s_and_b32 s62, s{sWID}, 7
    s_add_u32 s{sHEAD}, s61, s62
    s_mul_hi_u32 s{sOG}, s{sWID}, {(2**32+17)//18}
    s_mul_i32 s60, s{sOG}, 18
    s_sub_u32 s{sCB}, s{sWID}, s60
    s_mul_hi_u32 s{sTG}, s{sWID}, {(2**32+4)//5}
    s_mul_i32 s60, s{sTG}, 5
    s_sub_u32 s{sCG}, s{sWID}, s60
    s_mul_i32 s{sKAP}, s{S_WAVE}, {NW}
    s_add_u32 s{sKAP}, s{sKAP}, s{sWID}
    """)
    stamp(A, 0, s_id=58)
    F0(A, sWID, NW)
    signal_wg(A, DBG_F0, vt=76)
    mod_P(A, sHEAD, sGRP, 7, preloop=lambda: wait_ge(A, SRD_DBG, DBG_RARM, 32, AB, vt=76))
    stamp(A, 4, s_id=58)
    wait_ge(A, SRD_DBG, DBG_F0, NW, AB)
    A(f"s_cmp_ge_u32 s{sTG}, 44\ns_cbranch_scc1 M_nof1")
    FG(A, 1, sCG, sTG, 44)
    A.label("M_nof1")
    signal_wg(A, DBG_F1)
    stamp(A, 5, s_id=58)
    A(f"s_cmp_ge_u32 s{sOG}, 12\ns_cbranch_scc1 M_noos")
    O_setup(A, sCB, keep=True)
    A.label("M_noos")
    stamp(A, 6, s_id=58)
    wait_ge(A, SRD_DBG, DBG_F1, NW, AB)
    A(f"s_cmp_gt_u32 s{sKAP}, 288\ns_cbranch_scc1 M_nof2")
    F2(A, sKAP)
    A.label("M_nof2")
    signal_wg(A, DBG_F2)
    stamp(A, 7, s_id=58)
    wait_ge(A, SRD_DBG, DBG_F2, NW, AB)
    A(f"s_cmp_ge_u32 s{sTG}, 44\ns_cbranch_scc1 M_nof3")
    FG(A, 3, sCG, sTG, 44)
    A.label("M_nof3")
    A("s_waitcnt vmcnt(0)\ns_barrier")
    stamp(A, 11, s_id=58)
    hstamp(A, 9)
    X_setup(A)
    O_addr(A, sCB)
    A(f"""
    s_mov_b32 s{sXN}, s{sGRP}
    s_cmp_lt_u32 s{sOG}, 12
    s_cselect_b32 s{sON}, s{sOG}, 64
    s_mov_b32 s{sPAR}, 0
    s_mov_b32 s90, 0
    s_mov_b32 s91, 0
    s_mov_b32 s92, 0
    s_mov_b32 s93, 0
    """)
    acc_t(A, 92)
    A(f"""
    s_mov_b32 s92, 0
M_ev:
    s_min_u32 s60, s{sXN}, s{sON}
    s_cmp_ge_u32 s60, 64
    s_cbranch_scc1 M_fin
    s_cmp_lg_u32 s{S_WAVE}, 0
    s_cbranch_scc1 M_evb
    s_lshl_b32 s64, s{sHEAD}, 7
    s_add_u32 s64, s64, {FLAG_RP}
    s_min_u32 s65, s{sON}, 63
    s_lshl_b32 s65, s65, 7
    s_add_u32 s65, s65, {FLAG_OX}
    v_mov_b32 v250, s64
    v_mov_b32 v251, s65
    s_mov_b32 s{sSP}, {SPIN}
M_evp:
    buffer_load_dword v252, v250, {srd(SRD_WS)}, 0 offen sc1
    buffer_load_dword v253, v251, {srd(SRD_WS)}, 0 offen sc1
    s_sub_u32 s{sSP}, s{sSP}, 1
    s_cbranch_scc1 {AB}
    s_waitcnt vmcnt(0)
    v_readfirstlane_b32 s60, v252
    v_readfirstlane_b32 s61, v253
    s_mov_b32 s62, 1
    s_cmp_gt_u32 s60, s{sXN}
    s_cbranch_scc1 M_evd
    s_mov_b32 s62, 2
    s_cmp_ge_u32 s{sON}, 64
    s_cbranch_scc1 M_evs
    s_cmp_ge_u32 s61, 128
    s_cbranch_scc1 M_evd
M_evs:
    s_min_u32 s61, s{sXN}, s{sON}
    s_add_u32 s60, s60, 1
    s_cmp_gt_u32 s61, s60
    s_cbranch_scc0 M_evs2
    s_sleep 48
M_evs2:
    s_sleep {EVS}
    s_branch M_evp
M_evd:
    v_mov_b32 v252, s62
    v_mov_b32 v253, {EV_LDS}
    ds_write_b32 v253, v252
    s_waitcnt lgkmcnt(0)
M_evb:
    s_barrier
    v_mov_b32 v253, {EV_LDS}
    ds_read_b32 v252, v253
    s_waitcnt lgkmcnt(0)
    v_readfirstlane_b32 s62, v252
    s_barrier
    """)
    acc_t(A, 92)
    A(f"""
    s_cmp_eq_u32 s62, 2
    s_cbranch_scc1 M_evO
    s_lshl_b32 s{sITEM}, s{sXN}, 5
    s_add_u32 s{sITEM}, s{sITEM}, s{sHEAD}
    """)
    X_item(A, sITEM)
    A(f"""
    s_lshl_b32 s60, s{sXN}, 7
    s_add_u32 s60, s60, {FLAG_OX}
    v_mov_b32 v250, s60
    v_mov_b32 v251, 1
    s_waitcnt vmcnt(0)
    s_mov_b64 exec, 1
    buffer_atomic_add v251, v250, {srd(SRD_WS)}, 0 offen sc1
    s_mov_b64 exec, -1
    s_add_u32 s{sXN}, s{sXN}, 7
    """)
    acc_t(A, 90)
    A(f"""
    s_branch M_ev
M_evO:
    """)
    O_item(A, sON, sPAR)
    acc_t(A, 91)
    A(f"""
    s_add_u32 s{sON}, s{sON}, 12
    s_branch M_ev
M_fin:
    """)
    stamp(A, 12, s_id=58)
    hstamp(A, 15)
    import common
    if common.STAMPS:
        A(f"""
        s_lshl_b32 s98, s58, 8
        s_add_u32 s98, s98, {WS_STAMP + 160}
        v_mov_b32 v76, s90
        v_mov_b32 v77, s91
        v_mov_b32 v78, s92
        v_mov_b32 v79, 0
        s_mov_b64 exec, 1
        buffer_store_dwordx3 v[76:78], v79, {srd(SRD_WS)}, s98 offen
        s_mov_b64 exec, -1
        """)
    A("s_branch M_end")
    A(f"""
{AB}:
    s_mov_b64 exec, -1
    v_mov_b32 v3, 0xdead
    v_mov_b32 v4, {DBG_ABORT}
    buffer_store_dword v3, v4, {srd(SRD_DBG)}, 0 offen
    s_waitcnt vmcnt(0)
M_end:
    s_endpgm
M_codeend:""")
```

```python
from common import *
import math, struct

WSTR = 36864
L_Q = 34816
L_K = 34816 + WSTR
L_O = 34816 + 2 * WSTR
L_MEMF = 145408
L_KX = 145408 + 9216
L_V = L_MEMF + 4096
HI = 98304
PSLOT = 72 * 4096
MSLOT = 9216
SPIN = 200000
CEXP = (128 ** -0.5) * math.log2(math.e)
def f32bits(x): return struct.unpack("<I", struct.pack("<f", x))[0]

def WQ(kk): return wreg(kk * 8, 8)
def WK(kk): return wreg(144 + kk * 8, 8)
def WO(p, ks): return wreg(288 + (p * 4 + ks) * 8, 8)
def WO8(ks): return wreg(288 + 128 + ks * 4, 4)

class LQ:
    def __init__(self, A, name): self.A, self.name, self.q = A, name, []
    def push(self, tag, n=1): self.q += [tag] * n; assert len(self.q) <= (15 if self.name == "lgkmcnt" else 63), self.q
    def wait(self, tag):
        if tag not in self.q: return
        idx = max(i for i, t in enumerate(self.q) if t == tag)
        self.A(f"s_waitcnt {self.name}({len(self.q) - 1 - idx})")
        del self.q[:idx + 1]
    def clear(self): self.q = []

def mod_R(A, s_head, sc="", pfx="R", abort="R_abort", last=63, prof=False, RD_=(0, 0, 0, 1, 2), CD=0, hooks=None, WARMD=2, cnt=False,
          CDN=0, fixseg=False, nokm=False, x_nowv=False, trace=False, RGAP=1, CGAP=1, ld=' sc1', tq=None, merged=False, wbar=False, worder='qk', tstep=False, CDN3=0, nowarm=False, R2AT=0, R3AT=6, B2AT=4):
    assert R3AT > B2AT and R2AT + 2 < B2AT
    def TQ(tag):
        if tq and tag in tq: A(f"s_memtime s[{8+2*tq.index(tag)}:{9+2*tq.index(tag)}]")

    def TR(i):
        if trace: A(f"s_memrealtime s[{8+2*i}:{9+2*i}]")

    L = lambda n: f"{pfx}_{n}"
    W = S_WAVE
    hooks = hooks or {}
    def PH(i):
        if not prof: return
        A(f"""
        s_waitcnt lgkmcnt(0)
        s_memtime s[96:97]
        s_waitcnt lgkmcnt(0)
        s_sub_u32 s99, s96, s98
        s_mov_b32 s98, s96
        s_mov_b64 exec, {1 << i}
        v_add_u32 v1, s99, v1
        s_mov_b64 exec, -1
        """)
    TMP = 0
    IDX, SELV, vPST, vRED, vPUB, vCON, vAF, vWV, vQW, vQR, vKX, vOW, vVX, vSP = range(2, 16)
    vC1 = 1
    assert not prof
    WVR = 16
    D0 = 24
    sSTEP, sPW, sPR, sMW, sMR, sMA, sRED, sSEG = 64, 65, 66, 67, 68, 69, 70, 71
    sLO32, sHI32, sEVEN, sN8 = 72, 74, 76, 78
    sU = 80
    sU2 = sU
    sC = 82
    sRDLY, sWB, sB1 = 84, 85, 59
    sB3, sM3, sPRG = 66, 57, 4
    sRDLY2 = 96
    sPM = sEVEN
    sSEL = 86
    sT0, sT1, sT2, sSPIN, sT3, sT4 = 60, 61, 62, 63, 94, 95
    T0, T1, T2 = D0, D0 + 1, D0 + 2
    stamp(A, 8, s_id=s_head)
    hstamp(A, 12)
    def bits(dst, terms, add=None):
        first = True
        for (off, n, sh) in terms:
            A(f"v_bfe_u32 {v(T2)}, v1, {off}, {n}")
            if first:
                A(f"v_lshlrev_b32 {v(dst)}, {sh}, {v(T2)}"); first = False
            else:
                A(f"v_lshl_add_u32 {v(dst)}, {v(T2)}, {sh}, {v(dst)}")
        if add is not None:
            A(f"v_add_u32 {v(dst)}, {add}, {v(dst)}")
    vWA, vWB, vTR, vTD = D0 + 52, D0 + 53, D0 + 54, D0 + 55
    X0, X1 = D0 + 8, D0 + 9
    sWL = 7
    VS = D0 + 12
    A(f"s_lshl_b32 s{sT0}, s{s_head}, 8\ns_lshl_b32 s{sT1}, s{W}, 6\ns_add_u32 s{sT0}, s{sT0}, s{sT1}")
    bits(vWA, [(2, 4, 13), (0, 2, 4)], f"s{sT0}")
    A(f"""
    v_lshrrev_b32 {v(X0)}, 2, v1
    v_mul_u32_u24 {v(X0)}, 1152, {v(X0)}
    s_mul_i32 s{sT0}, s{s_head}, 147456
    s_lshl_b32 s{sT1}, s{W}, 5
    s_add_u32 s{sT0}, s{sT0}, s{sT1}
    v_add_u32 {v(X0)}, s{sT0}, {v(X0)}
    """)
    bits(vWB, [(1, 1, 7), (0, 1, 4)], v(X0))
    A(f"s_mul_i32 s{sWL}, s{W}, {WSTR}")
    bits(vTR, [(4, 2, 8), (2, 1, 6), (3, 1, 5), (0, 2, 3)], f"s{sWL}")
    bits(vTD, [(4, 2, 9), (2, 2, 6), (0, 2, 3)], f"s{sWL}")
    chunks = [(worder[0], kb) for kb in range(9)] + [(worder[1], kb) for kb in range(9)] + \
             [("o", (p, kb2)) for p in range(5) for kb2 in range(2)] + [("v", kb) for kb in range(9)]
    slot_of = lambda c: (c - 28) % 9
    def wdma(c):
        kind, ix = chunks[c]; sl = slot_of(c)
        for n in range(4):
            A(f"s_add_u32 m0, s{sWL}, {sl*4096 + n*1024}")
            if kind == "o":
                p, kb2 = ix
                A(f"s_mov_b32 s{sT1}, {(kb2*64 + n*16)*1152 + p*256}")
                A(f"buffer_load_dwordx4 {v(vWB)}, {srd(SRD_WO)}, s{sT1} offen lds")
            else:
                A(f"s_mov_b32 s{sT1}, {ix*524288 + n*131072}")
                A(f"buffer_load_dwordx4 {v(vWA)}, {srd({'q': SRD_WQ, 'k': SRD_WK, 'v': SRD_WV}[kind])}, s{sT1} offen lds")
    for c in range(9): wdma(c)
    if 'resolve' in hooks: hooks['resolve']()
    A.c("R setup")
    A(f"""
    s_mov_b32 s{sLO32}, -1
    s_mov_b32 s{sLO32+1}, 0
    s_mov_b32 s{sHI32}, 0
    s_mov_b32 s{sHI32+1}, -1
    s_mov_b32 s{sEVEN}, 0x55555555
    s_mov_b32 s{sEVEN+1}, 0x55555555
    s_mov_b32 s{sN8}, 0xff00ff00
    s_mov_b32 s{sN8+1}, 0xff00ff00
    s_mov_b32 s{sC}, {f32bits(CEXP)}
    s_mov_b32 s{sC+1}, {f32bits(CEXP)}
    s_lshl_b32 s{sWB}, s{W}, 10
    s_cmp_eq_u32 s{W}, 0
    s_mov_b32 s{sB1}, -1024
    s_cselect_b32 s{sB1}, 8192, s{sB1}
    s_lshl_b32 s{sPRG}, s{s_head}, 7
    s_add_u32 s{sPRG}, s{sPRG}, {FLAG_RP}
    s_and_b32 s{sM3}, s{sWB}, 1024
    s_sub_u32 s{sB3}, s{sM3}, s{sWB}
    s_add_u32 s{sB3}, s{sB3}, 6144
    s_add_u32 s{sM3}, s{sM3}, {L_MEMF + 7168}
    """)
    for r in range(4):
        m = (0x03030303 << (2 * r)) & 0xffffffff
        A(f"s_mov_b32 s{sSEL+2*r}, {m}\ns_mov_b32 s{sSEL+2*r+1}, {m}")
    A(f"""
    v_mov_b32 {v(IDX)}, 0x44444444
    v_mov_b32 {v(T0)}, 0xeeeeeeee
    v_cndmask_b32 {v(IDX)}, {v(IDX)}, {v(T0)}, s[{sN8}:{sN8+1}]
    v_mov_b32 {v(SELV)}, 0x3f800000
    v_mov_b32 {v(T0)}, 0x3f80
    v_cndmask_b32 {v(SELV)}, {v(SELV)}, {v(T0)}, s[{sEVEN}:{sEVEN+1}]
    s_mov_b32 s{sPM}, 0xffff
    s_mov_b32 s{sPM+1}, 0xffff
    v_lshlrev_b32 {v(T0)}, 4, v1
    s_add_u32 s{sT0}, s{sWB}, {HI}
    v_add_u32 {v(vCON)}, s{sT0}, {v(T0)}
    s_mul_i32 s{sT0}, s{W}, {WSTR}
    v_add_u32 {v(vWV)}, s{sT0}, {v(T0)}
    s_lshl_b32 s{sT0}, s{W}, 5
    s_add_u32 s{sT0}, s{sT0}, s{s_head}           ; unit
    s_lshl_b32 s{sT1}, s{sT0}, 12
    s_cmp_lt_u32 s{sT0}, 72
    s_cselect_b32 s{sRED}, 1, 0
    s_cselect_b32 s{sT1}, s{sT1}, 0x40000000
    v_add_u32 {v(vRED)}, s{sT1}, {v(T0)}
    s_lshr_b32 s{sT1}, s{sT0}, 1
    s_lshl_b32 s{sT4}, s{sT1}, 5
    s_lshl_b32 s{sT1}, s{sT1}, 8
    s_and_b32 s{sT2}, s{sT0}, 1
    s_mul_i32 s{sT3}, s{sT2}, {4*1152}
    s_add_u32 s{sT4}, s{sT4}, s{sT3}
    s_lshl_b32 s{sT2}, s{sT2}, 6
    s_add_u32 s{sT1}, s{sT1}, s{sT2}
    s_lshr_b32 s{sT2}, s{sT0}, 4
    s_add_u32 s{sT2}, s{sT2}, 1
    s_cmp_ge_u32 s{sT0}, 64
    s_cselect_b32 s{sT2}, 0, s{sT2}
    s_mov_b32 s{sRDLY}, {RD_[0]}
    """)
    for o in range(1, 5):
        A(f"s_cmp_eq_u32 s{sT2}, {o}\ns_cselect_b32 s{sRDLY}, {RD_[o]}, s{sRDLY}")
    bits(vPUB, [(2, 1, 7), (5, 1, 5), (3, 1, 4), (0, 2, 2)], f"s{sT1}")
    A(f"s_lshl_b32 s{sT1}, s{W}, 1\ns_xor_b32 s{sT2}, s{s_head}, s{sT1}\ns_lshl_b32 s{sT2}, s{sT2}, 7\ns_lshl_b32 s{sT1}, s{W}, 13")
    bits(vPST, [(5, 1, 10), (4, 1, 7)])
    A(f"v_xor_b32 {v(T1)}, s{sT2}, {v(vPST)}\nv_add_u32 {v(T1)}, s{sT1}, {v(T1)}")
    bits(vPST, [(5, 1, 15), (4, 1, 12), (0, 4, 3)], v(T1))
    A(f"s_lshl_b32 s{sT1}, s{W}, 9\ns_add_u32 s{sT2}, s{sT1}, {L_Q}")
    bits(vQW, [(5, 1, 8), (0, 4, 4), (4, 1, 3)], f"s{sT2}")
    bits(vQR, [(5, 1, 8), (4, 1, 6), (2, 2, 4), (0, 1, 3)], L_Q)
    bits(vKX, [(4, 2, 9), (3, 1, 8), (0, 3, 4)], HI)
    bits(vAF, [(4, 2, 7), (0, 3, 4)], HI)
    A(f"s_add_u32 s{sT2}, s{sT1}, {L_O}")
    bits(vOW, [(5, 1, 7), (0, 3, 4), (4, 1, 3)], f"s{sT2}")
    A(f"s_lshl_b32 s{sT1}, s{W}, 11")
    bits(vVX, [(4, 2, 9), (0, 4, 4)], f"s{sT1}")
    ARM = D0 + 4
    X0, X1 = D0 + 8, D0 + 9
    for i in range(4): A(f"v_mov_b32 {v(ARM+i)}, -1")
    A(f"s_cmp_eq_u32 s{sRED}, 0\ns_cbranch_scc1 {L('noarm')}")
    bits(X1, [(5, 1, 1), (3, 1, 0)])
    A(f"v_mul_u32_u24 {v(X1)}, 1152, {v(X1)}")
    bits(X0, [(0, 3, 2)], v(X1))
    A(f"buffer_load_dword {v(vSP)}, {v(X0)}, {srd(SRD_M0)}, s{sT4} offen")
    A(f"s_mov_b32 s{sT0}, {WS_PART}")
    for i in range(4):
        A(f"buffer_store_dwordx4 {v(ARM,4)}, {v(vRED)}, {srd(SRD_WS)}, s{sT0} offen offset:{i*1024} sc1")
    A(f"s_mov_b64 exec, s[{sEVEN}:{sEVEN+1}]")
    for sl in range(3):
        A(f"s_mov_b32 s{sT0}, {WS_MEMB + sl*MSLOT}")
        A(f"buffer_store_dword {v(ARM)}, {v(vPUB)}, {srd(SRD_WS)}, s{sT0} offen sc1")
    A("s_mov_b64 exec, -1")
    A.label(L('noarm'))
    if merged:
        A(f"""
        s_cmp_lg_u32 s{W}, 3
        s_cbranch_scc1 {L('nz')}
        v_lshlrev_b32 {v(X0)}, 2, v1
        v_mov_b32 {v(X1)}, 0
        s_lshl_b32 s{sT0}, s{s_head}, 8
        s_add_u32 s{sT0}, s{sT0}, {FLAG_KV}
        buffer_store_dword {v(X1)}, {v(X0)}, {srd(SRD_WS)}, s{sT0} offen sc1
        s_add_u32 s{sT0}, s{sT0}, {FLAG_OX - FLAG_KV}
        buffer_store_dword {v(X1)}, {v(X0)}, {srd(SRD_WS)}, s{sT0} offen sc1
        v_mov_b32 {v(X0)}, s{sPRG}
        buffer_store_dword {v(X1)}, {v(X0)}, {srd(SRD_WS)}, 0 offen sc1
{L('nz')}:
        """)
    def trread(dst_fn, h, sl):
        for t, ro in enumerate((0, 2, 16, 18)):
            A(f"ds_read_b64_tr_b16 {dst_fn(t)}, {v(vTR)} offset:{sl*4096 + (32*h + ro)*64}")
    sub = lambda base, t: wreg(base + 2 * t, 2)
    NCH = len(chunks)
    for c in range(NCH):
        kind, ix = chunks[c]; sl = slot_of(c)
        A(f"s_waitcnt vmcnt({min(NCH - 1 - c, 8) * 4 + (7 if c > NCH - 10 else 0)})")
        if kind in "qk":
            base = 0 if kind == "q" else 144
            for h in range(2): trread(lambda t: sub(base + (2 * ix + h) * 8, t), h, sl)
        elif kind == "o":
            p, kb2 = ix
            for h in range(2):
                if p < 4: trread(lambda t: sub(288 + (p * 4 + 2 * kb2 + h) * 8, t), h, sl)
                else:
                    for t in range(2):
                        A(f"ds_read_b64_tr_b16 {wreg(288 + 128 + (2*kb2+h)*4 + 2*t, 2)}, {v(vTD)} offset:{sl*4096 + (32*h + 4*t)*64}")
        else:
            trread(lambda t: v(VS + 2 * t, 2), 0, sl)
            if ix < 8: trread(lambda t: v(VS + 8 + 2 * t, 2), 1, sl)
            else: trread(lambda t: v(WVR + 2 * t, 2), 1, sl)
        A("s_waitcnt lgkmcnt(0)")
        if kind == "v":
            for q in range(4 if ix < 8 else 2):
                A(f"ds_write_b128 {v(vWV)}, {v(VS+4*q,4)} offset:{ix*4096 + q*1024}")
        if c + 9 < NCH: A("s_barrier")
        if c == 9:
            A(f"""
            s_cmp_lg_u32 s{W}, 0
            s_cbranch_scc1 {L('armed')}
            v_mov_b32 {v(T0)}, 1
            v_mov_b32 {v(T1)}, {DBG_RARM}
            s_mov_b64 exec, 1
            buffer_atomic_add {v(T0)}, {v(T1)}, {srd(SRD_DBG)}, 0 offen sc1
            s_mov_b64 exec, -1
{L('armed')}:
            """)
        if c + 9 < NCH: wdma(c + 9)
        if c == NCH - 10:
            A(f"s_mov_b32 s{sT0}, {WS_PART}")
            for i in range(4):
                A(f"buffer_load_dwordx4 {v(D0+32+4*i,4)}, {v(vRED)}, {srd(SRD_WS)}, s{sT0} offen offset:{i*1024} sc1")
            for sl in range(3):
                A(f"s_mov_b32 s{sT0}, {WS_MEMB + sl*MSLOT}")
                A(f"buffer_load_dword {v(D0+48)}, {v(vPUB)}, {srd(SRD_WS)}, s{sT0} offen sc1")
    stamp(A, 9, s_id=s_head)
    hstamp(A, 13)
    AQ, AK, AV = D0, D0 + 4, D0 + 8
    AS = [D0 + 12 + 4 * i for i in range(4)]
    WR = [D0 + 28, D0 + 36, D0 + 44]
    korder = [16, 17] + list(range(16))
    wvl = [kk for kk in korder if kk != 17]
    lg = LQ(A, "lgkmcnt")
    def wvread(f):
        if x_nowv: return
        o = wvl[f] * 2048; d = WR[f % 3]
        A(f"ds_read_b128 {v(d,4)}, {v(vWV)} offset:{o}")
        A(f"ds_read_b128 {v(d+4,4)}, {v(vWV)} offset:{o+1024}")
        lg.push(f"W{f}", 2)
    def zero_acc():
        for i in range(12): A(f"v_mov_b32 {v(AQ+i)}, 0")
    sKV = 5
    sMODE = 6
    def kv_wait(s_need, lab):
        A(f"""
        s_cmp_ge_u32 s{sKV}, s{s_need}
        s_cbranch_scc1 {lab}_ok
        s_lshl_b32 s{sT1}, s{s_head}, 8
        s_add_u32 s{sT1}, s{sT1}, {FLAG_KV}
        v_lshrrev_b32 {v(TMP)}, 2, {v(vCON)}
        v_and_b32 {v(TMP)}, 255, {v(TMP)}
{lab}_p:
        buffer_load_dword {v(D0+40)}, {v(TMP)}, {srd(SRD_WS)}, s{sT1} offen sc1
        s_sub_u32 s{sSPIN}, s{sSPIN}, 1
        s_cbranch_scc1 {abort}
        s_waitcnt vmcnt(0)
        v_cmp_ne_u32 vcc, 4, {v(D0+40)}
        s_ff1_i32_b64 s{sKV}, vcc
        s_cmp_lt_i32 s{sKV}, 0
        s_cselect_b32 s{sKV}, 64, s{sKV}
        s_cmp_ge_u32 s{sKV}, s{s_need}
        s_cbranch_scc1 {lab}_ok
        s_sleep 4
        s_branch {lab}_p
{lab}_ok:
        """)
    A(f"""
    s_mov_b32 s{sSPIN}, {SPIN}
    v_and_b32 {v(X1)}, 31, v1
    v_lshlrev_b32 {v(X1)}, 2, {v(X1)}
{L('warm')}:
    buffer_load_dword {v(X0)}, {v(X1)}, {srd(SRD_DBG)}, 0 offen sc1
    s_sub_u32 s{sSPIN}, s{sSPIN}, 1
    s_cbranch_scc1 {abort}
    s_waitcnt vmcnt(0)
    v_readlane_b32 s{sT0}, {v(X0)}, {DBG_RARM//4}
    v_readlane_b32 s{sT1}, {v(X0)}, {DBG_OVH//4}
    s_cmp_lt_u32 s{sT0}, 32
    s_cbranch_scc1 {L('warm')}
    s_cmp_eq_u32 s{sT1}, 0
    s_cselect_b32 s{sMODE}, 0, 1
    """)
    if merged:
        A(f"""
        s_mov_b32 s{sKV}, 0
        s_cmp_lg_u32 s{W}, 3
        s_cbranch_scc1 {L('nkvi')}
        s_mov_b32 s{sT0}, {WARMD + 1}
        """)
        kv_wait(sT0, L('kvi'))
        A(f"v_lshlrev_b32 {v(X0)}, 7, v1\ns_lshl_b32 s{sT0}, s{s_head}, 13")
        for sg in range(WARMD):
            A(f"s_add_u32 s{sT1}, s{sT0}, {WS_KX + sg*32*8192}\nbuffer_load_dword {v(X1)}, {v(X0)}, {srd(SRD_WS)}, s{sT1} offen sc1")
            A(f"s_add_u32 s{sT1}, s{sT0}, {WS_VX + sg*32*8192}\nbuffer_load_dword {v(X1)}, {v(X0)}, {srd(SRD_WS)}, s{sT1} offen sc1")
        A(f"s_waitcnt vmcnt(0)\n{L('nkvi')}:")
    A(f"""
    s_mov_b32 s{sSTEP}, 0
    s_mov_b32 s{sPW}, {WS_PART}
    s_mov_b32 s{sMA}, {WS_MEMB + 2*MSLOT}
    s_mov_b32 s{sMW}, {WS_MEMB}
    s_mov_b32 s{sMR}, {WS_MEMB + MSLOT}
    s_lshl_b32 s{sSEG}, s{s_head}, 13
    s_cmp_eq_u32 s{sRED}, 0
    s_cbranch_scc1 {L('nom0')}
    v_min_u32 {v(vSP)}, -2, {v(vSP)}
    s_mov_b64 exec, s[{sEVEN}:{sEVEN+1}]
    buffer_store_dword {v(vSP)}, {v(vPUB)}, {srd(SRD_WS)}, s{sMW} offen sc1
    s_mov_b64 exec, -1
    s_nop 0
    v_mov_b32 {v(vSP)}, -1
{L('nom0')}:
    s_cmp_eq_u32 s{W}, 3
    s_cselect_b64 s[{sU}:{sU+1}], -1, 0
    s_cmp_ge_u32 s{W}, 2
    s_cselect_b32 s{sT0}, 1024, 0
    v_subrev_u32 v1, s{sT0}, {v(vCON)}
    s_waitcnt lgkmcnt(0)
    s_barrier
    """)
    zero_acc()
    if prof: A("v_mov_b32 v1, 0\ns_memtime s[98:99]\ns_waitcnt lgkmcnt(0)")
    if merged: A(f"s_cmp_eq_u32 s{sMODE}, 1\ns_cbranch_scc1 {L('loopS0')}x")
    if cnt: A("s_mov_b32 s20, 0\ns_mov_b32 s21, 0\ns_memtime s[96:97]\ns_memrealtime s[98:99]\ns_waitcnt lgkmcnt(0)\ns_mov_b32 s99, s96")
    RL = D0 + 52
    def sm(acc, a_, b): A(f"v_smfmac_f32_16x16x64_bf16 {v(acc,4)}, {a_}, {b}, {v(IDX)}")
    def mf(d, a_, b_, first):
        A(f"v_mfma_f32_16x16x32_bf16 {v(d,4)}, {a_}, {b_}, {'0' if first else v(d,4)}")
    def chk(r, br):
        A(f"""
        v_max3_u32 {v(TMP)}, {v(r)}, {v(r+1)}, {v(r+2)}
        v_max_u32 {v(TMP)}, {v(TMP)}, {v(r+3)}
        v_cmp_eq_u32 vcc, -1, {v(TMP)}
        {br}
        """)
    def spin(): A(f"s_sub_u32 s{sSPIN}, s{sSPIN}, 1\ns_cbranch_scc1 {abort}")
    def cload(r, so): A(f"buffer_load_dwordx4 {v(r,4)}, {v(vC1)}, {srd(SRD_WS)}, s{so} offen{ld}")
    def pk2(d, s_):
        A(f"v_cvt_pk_bf16_f32 {v(d)}, {v(s_)}, {v(s_+1)}")
        A(f"v_cvt_pk_bf16_f32 {v(d+1)}, {v(s_+2)}, {v(s_+3)}")
    def step_body(par, sc, md):
        LP = lambda n: L(n + md + str(par))
        nxt_loop = L('loop' + md + str(1 - par))
        A.label(LP('loop'))
        A("s_waitcnt vmcnt(2)")
        A.label(LP('loop') + "x")
        lg.clear()
        A(f"""
        s_mov_b32 s{sT3}, s{sMA}
        s_mov_b32 s{sMA}, s{sMW}
        s_mov_b32 s{sMW}, s{sMR}
        s_mov_b32 s{sMR}, s{sT3}
        s_mov_b32 s{sSPIN}, {SPIN}
        s_sub_u32 s{sT0}, s{sMA}, {HI}
        s_add_u32 s{sT1}, s{sT0}, s{sB1}
        s_add_u32 s{sT2}, s{sT0}, 2048
        s_add_u32 s{sT3}, s{sT0}, s{sB3}
        s_add_u32 s{sT4}, s{sSEG}, {WS_KX - HI}
        s_add_u32 m0, s{sWB}, {L_MEMF + 3072}
        """)
        for f in range(3): wvread(f)
        A(f"s_cmp_eq_u32 s{W}, 1\ns_cbranch_scc1 {LP('cdj')}")
        if CD: A(f"s_sleep {CD}")
        P1 = AS[3]
        TQ("cgo")
        cload(RL, sT1)
        if CGAP:
            A(f"s_sleep {CGAP}")
            cload(P1, sT1)
            A("s_waitcnt vmcnt(1)")
        else:
            A.label(LP('cw0'))
            A("s_waitcnt vmcnt(0)")
        chk(RL, f"s_cbranch_vccnz {LP('cf0')}")
        A.label(LP('cd0'))
        TR(3)
        A(f"ds_write_b128 {v(vC1)}, {v(RL,4)} offset:{L_MEMF-HI}")
        A.label(LP('cdj'))
        TQ("cdj")
        A("s_waitcnt lgkmcnt(0)\ns_barrier")
        if trace: TR(4); A("s_waitcnt lgkmcnt(0)")
        lg.clear()
        if cnt: A(f"s_sub_u32 s96, {SPIN}, s{sSPIN}\ns_add_u32 s20, s20, s96")
        PH(0)
        def aread(i):
            A(f"ds_read_b128 {v(AS[i&3],4)}, {v(vAF)} offset:{L_MEMF-HI+i*512}")
            lg.push(f"A{i}")
        def dma(so): A(f"buffer_load_dwordx4 {v(vCON)}, {srd(SRD_WS)}, s{so} offen sc1 lds")
        VXF = [AS[2], AS[3]]
        TQ("start")
        for i in range(3): aread(i)
        f = 0
        nxt = 3
        late = []
        for i, kk in enumerate(korder):
            a_ = v(AS[i & 3], 4)
            TQ(f"q{i}")
            lg.wait(f"A{i}")
            sm(AQ, a_, WQ(kk))
            if i == 0: A("s_waitcnt vmcnt(0)"); aread(3); nxt = 4
            if i == R2AT: dma(sT2)
            if i in (R2AT + 1, R2AT + 2): dma(sT4)
            if i == R3AT: dma(sT3)
            sm(AK, a_, WK(kk))
            if i == R2AT: A(f"s_add_u32 m0, s{sWB}, {L_KX}")
            if i == R2AT + 1: A(f"s_add_u32 m0, s{sWB}, {L_KX + 4096}\ns_add_u32 s{sT4}, s{sT4}, 4096")
            if i == R2AT + 2: A(f"s_mov_b32 m0, s{sM3}")
            if i in (B2AT, 12):
                A(f"s_waitcnt vmcnt({2 if i == B2AT else 0})\ns_barrier")
                while nxt <= i + 3: aread(nxt); nxt += 1
            if i == 7 and 'step' in hooks: hooks['step']()
            if i == 8: A(f"s_add_u32 s{sT0}, s{sSEG}, {WS_VX}\ns_lshr_b32 s{sT2}, s{sSEG}, 2")
            if i == 9: A(f"s_add_u32 s{sT1}, s{sT2}, {0x40000000 if nokm else WS_VM - L_Q}\ns_add_u32 s{sT4}, s{sT2}, {0x40000000 if nokm else WS_KM - L_Q}")
            if kk == 17:
                sm(AV, a_, v(WVR, 8))
            elif i >= 16:
                late.append((a_, f)); f += 1
            else:
                lg.wait(f"W{f}")
                sm(AV, a_, v(WR[f % 3], 8))
                if f + 3 < 17: wvread(f + 3)
                f += 1
            lim = 5 if i < B2AT else (13 if i < 12 else 17)
            while nxt <= min(i + 4, lim): aread(nxt); nxt += 1
            if i == 14: A(f"buffer_load_dwordx4 {v(VXF[0],4)}, {v(vVX)}, {srd(SRD_WS)}, s{sT0} offen sc1")
            if i == 15: A(f"buffer_load_dwordx4 {v(VXF[1],4)}, {v(vVX)}, {srd(SRD_WS)}, s{sT0} offen offset:256 sc1")
        TQ("qend")
        PH(1)
        if trace: A("s_waitcnt lgkmcnt(0)"); TR(5); A("s_waitcnt lgkmcnt(0)")
        S_ = D0 + 28
        QF = [D0 + 0, D0 + 4]; KF = [D0 + 12, D0 + 16]
        KXR = [D0 + 44, D0 + 48, D0 + 40]
        kxl = [(fb, kt) for fb in range(4) for kt in range(2)]
        def kxread(n):
            fb, kt = kxl[n]
            A(f"ds_read_b128 {v(KXR[n % 3],4)}, {v(vKX)} offset:{L_KX-HI+fb*2048+kt*128}")
            lg.push(f"X{n}")
        KP, ZP = D0 + 52, D0 + 54
        def latev(n):
            a_, f_ = late[n]
            lg.wait(f"W{f_}")
            sm(AV, a_, v(WR[f_ % 3], 8))
        def qk_write():
            pk2(AQ, AQ)
            A(f"ds_write_b64 {v(vQW)}, {v(AQ,2)}")
            pk2(KP, AK)
            A(f"ds_write_b64 {v(vQW)}, {v(KP,2)} offset:{L_K-L_Q}")
        latev(0)
        kxread(0); kxread(1)
        A(f"s_add_u32 s{sT0}, s{sSEG}, {WS_KX + WARMD*32*8192}\ns_add_u32 s{sT2}, s{sSEG}, {WS_VX + WARMD*32*8192}\ns_nop 1")
        TQ("s2a")
        qk_write(); lg.push("qk", 2)
        TQ("s2b")
        latev(1)
        kxread(2)
        A(f"""
        v_cmp_u_f32 vcc, {v(AK)}, {v(AK+1)}
        v_cmp_u_f32 s[{sRDLY2}:{sRDLY2+1}], {v(AK+2)}, {v(AK+3)}
        s_or_b64 vcc, vcc, s[{sRDLY2}:{sRDLY2+1}]
        s_cbranch_vccnz {LP('slow')}
        """)
        TQ("s2c")
        lg.wait("qk")
        TQ("s2d")
        A.label(LP('slowret'))
        A("s_barrier")
        TQ("s2end")
        PH(2)
        def qk_reads(fb):
            b = fb & 1
            for (dst, base, tg) in ((QF[b], 0, "Q"), (KF[b], L_K - L_Q, "K")):
                A(f"ds_read_b64_tr_b16 {v(dst,2)}, {v(vQR)} offset:{base+fb*512}")
                A(f"ds_read_b64_tr_b16 {v(dst+2,2)}, {v(vQR)} offset:{base+fb*512+128}")
                lg.push(f"{tg}{fb}", 2)
        qk_reads(0); qk_reads(1)
        pk2(ZP, AV)
        A(f"""
        s_cmp_eq_u32 s{sSTEP}, {last}
        s_cbranch_scc1 {L('done')}
        """)
        ON = D0 + 0; VMT = D0 + 8; M0_, M1_ = D0 + 14, D0 + 15
        PX = D0 + 40; PM = PX + 4
        vmt_ops = [f"v_cndmask_b32 {v(VMT)}, 0, {v(ZP)}, s[{sLO32}:{sLO32+1}]",
                   f"v_cndmask_b32 {v(VMT+1)}, 0, {v(ZP+1)}, s[{sLO32}:{sLO32+1}]",
                   f"v_mov_b32 {v(VMT+2)}, 0", f"v_mov_b32 {v(VMT+3)}, 0"]
        for fb in range(4):
            b = fb & 1
            TQ(f"fb{fb}")
            for kt in range(2):
                n = 2 * fb + kt
                lg.wait(f"Q{fb}"); lg.wait(f"X{n}")
                mf(S_ + 4 * kt, v(KXR[n % 3], 4), v(QF[b], 4), fb == 0)
                if n + 3 < 8: kxread(n + 3)
                if n == 0: A(f"buffer_store_dwordx2 {v(KP,2)}, {v(vQW)}, {srd(SRD_WS)}, s{sT4} offen sc1")
                if n == 3: A(f"buffer_store_dwordx2 {v(ZP,2)}, {v(vQW)}, {srd(SRD_WS)}, s{sT1} offen sc1")
                if fb == 1: A(vmt_ops.pop(0)); A(vmt_ops.pop(0))
                if fb == 3: A(f"v_mov_b32 {v(ON+2*kt)}, 0x3f803f80\nv_mov_b32 {v(ON+2*kt+1)}, 0x3f803f80")
            lg.wait(f"K{fb}")
            mf(S_ + 8, v(KF[b], 4), v(QF[b], 4), fb == 0)
            if fb + 2 < 4: qk_reads(fb + 2)
            if fb == 2 and not nowarm:
                A(f"""
                s_mov_b64 exec, s[{sU}:{sU+1}]
                v_lshlrev_b32 {v(vSP)}, 3, {v(vCON)}
                v_and_b32 {v(TMP)}, 0x1fff, {v(vSP)}
                buffer_load_dword {v(vSP)}, {v(TMP)}, {srd(SRD_WS)}, s{sT0} offen sc1
                buffer_load_dword {v(vSP)}, {v(TMP)}, {srd(SRD_WS)}, s{sT2} offen sc1
                """)
                if merged:
                    A(f"""
                    s_and_b64 exec, exec, 1
                    v_mov_b32 {v(TMP)}, s{sSTEP}
                    v_mov_b32 {v(D0+52)}, s{sPRG}
                    buffer_store_dword {v(TMP)}, {v(D0+52)}, {srd(SRD_WS)}, 0 offen sc1
                    """)
                A("s_mov_b64 exec, -1")
        TQ("scend")
        PH(3)
        A(f"""
        v_cndmask_b32 {v(VMT+4)}, 0, {v(ZP)}, s[{sHI32}:{sHI32+1}]
        v_cndmask_b32 {v(VMT+5)}, 0, {v(ZP+1)}, s[{sHI32}:{sHI32+1}]
        v_mov_b32 {v(ON+4)}, 0x3f003f00
        v_mov_b32 {v(ON+5)}, 0x3f003f00
        v_max3_f32 {v(M0_)}, {v(S_+0)}, {v(S_+1)}, {v(S_+2)}
        v_mov_b32 {v(ON+6)}, 0
        v_max3_f32 {v(M1_)}, {v(S_+3)}, {v(S_+4)}, {v(S_+5)}
        v_max3_f32 {v(M0_)}, {v(M0_)}, {v(S_+6)}, {v(S_+7)}
        v_max3_f32 {v(M1_)}, {v(M1_)}, {v(S_+8)}, {v(S_+9)}
        v_max3_f32 {v(M0_)}, {v(M0_)}, {v(S_+10)}, {v(S_+11)}
        v_max_f32 {v(M0_)}, {v(M0_)}, {v(M1_)}
        v_max_f32 {v(M1_)}, {v(M0_)}, {v(M1_)}
        v_mov_b32 {v(ON+7)}, 0
        v_mov_b32 {v(PM+2)}, 0
        v_permlane32_swap_b32 {v(M0_)}, {v(M1_)}
        v_max_f32 {v(M0_)}, {v(M0_)}, {v(M1_)}
        v_max_f32 {v(M1_)}, {v(M0_)}, {v(M1_)}
        v_mov_b32 {v(PM+3)}, 0
        s_nop 0
        v_permlane16_swap_b32 {v(M0_)}, {v(M1_)}
        v_max_f32 {v(M0_)}, {v(M0_)}, {v(M1_)}
        v_mul_f32 {v(M0_)}, s{sC}, {v(M0_)}
        """)
        for i in range(6):
            A(f"v_pk_fma_f32 {v(S_+2*i,2)}, {v(S_+2*i,2)}, s[{sC}:{sC+1}], {v(M0_,2)} op_sel_hi:[1,1,0] neg_lo:[0,0,1] neg_hi:[0,0,1]")
        for i in range(12):
            A(f"v_exp_f32 {v(S_+i)}, {v(S_+i)}")
            if i >= 2 and i % 2 == 0: A(f"v_cvt_pk_bf16_f32 {v(PX+i//2-1)}, {v(S_+i-2)}, {v(S_+i-1)}")
        OT, OT1, LS = D0 + 16, D0 + 48, S_
        TQ("expend")
        A(f"""
        s_waitcnt vmcnt({(2 if nowarm else 4) + (1 if merged else 0)})
        v_cvt_pk_bf16_f32 {v(PX+5)}, {v(S_+10)}, {v(S_+11)}
        v_mfma_f32_16x16x32_bf16 {v(LS,4)}, {v(ON,4)}, {v(PX,4)}, 0
        v_mfma_f32_16x16x32_bf16 {v(OT,4)}, {v(VXF[0],4)}, {v(PX,4)}, 0
        v_mfma_f32_16x16x32_bf16 {v(LS,4)}, {v(ON+4,4)}, {v(PM,4)}, {v(LS,4)}
        v_mfma_f32_16x16x32_bf16 {v(OT,4)}, {v(VMT,4)}, {v(PM,4)}, {v(OT,4)}
        v_mfma_f32_16x16x32_bf16 {v(OT1,4)}, {v(VXF[1],4)}, {v(PX,4)}, 0
        v_mfma_f32_16x16x32_bf16 {v(OT1,4)}, {v(VMT+2,4)}, {v(PX+2,4)}, {v(OT1,4)}
        """)
        WAo = [D0 + 32, D0 + 36, D0 + 0, D0 + 4]
        WA8 = D0 + 20
        OF = [D0 + 40, D0 + 44, D0 + 48, D0 + 52]
        zl = [WAo[p] + i for p in range(4) for i in range(4)]
        for r in zl[:5]: A(f"v_mov_b32 {v(r)}, 0")
        A(f"v_rcp_f32 {v(M0_)}, {v(LS)}")
        A(f"v_mov_b32 {v(zl[5])}, 0")
        A(f"v_pk_mul_f32 {v(OT,2)}, {v(OT,2)}, {v(M0_,2)} op_sel_hi:[1,0]")
        A(f"v_pk_mul_f32 {v(OT+2,2)}, {v(OT+2,2)}, {v(M0_,2)} op_sel_hi:[1,0]")
        pk2(OT, OT)
        A(f"ds_write_b64 {v(vOW)}, {v(OT,2)}")
        A(f"v_pk_mul_f32 {v(OT1,2)}, {v(OT1,2)}, {v(M0_,2)} op_sel_hi:[1,0]")
        A(f"v_pk_mul_f32 {v(OT1+2,2)}, {v(OT1+2,2)}, {v(M0_,2)} op_sel_hi:[1,0]")
        pk2(OT1, OT1)
        A(f"ds_write_b64 {v(vOW)}, {v(OT1,2)} offset:256")
        for r in zl[6:]: A(f"v_mov_b32 {v(r)}, 0")
        A(f"""
        s_add_u32 s{sT0}, s{sPW}, {4*65536}
        s_add_u32 s{sT1}, s{sPW}, {65536}
        s_waitcnt lgkmcnt(0)
        """)
        TQ("smend")
        PH(4)
        A("s_barrier")
        if trace: TR(0); A("s_waitcnt lgkmcnt(0)")
        lg.clear()
        for ks in range(4):
            A(f"ds_read_b128 {v(OF[ks],4)}, {v(vAF)} offset:{L_O-HI+ks*512}"); lg.push(f"O{ks}")
        SEL = D0 + 12; RT = D0 + 16; RDd = D0 + 20; RBS = [D0 + 24, D0 + 40]
        A(f"""
        s_add_u32 s{sT2}, s{sPW}, {2*65536}
        s_add_u32 s{sT3}, s{sPW}, {3*65536}
        s_add_u32 s{sSTEP}, s{sSTEP}, 1
        s_add_u32 s{sSEG}, s{sSEG}, {0 if fixseg else 32*8192}
        s_mov_b32 s{sSPIN}, {SPIN}
        """)
        for r in range(4): A(f"v_cndmask_b32 {v(SEL+r)}, 0, {v(SELV)}, s[{sSEL+2*r}:{sSEL+2*r+1}]")
        TQ("wostart")
        PH(5)
        tagop = lambda r: (f"v_or_b32 {v(r)}, 1, {v(r)}" if par else f"v_and_b32 {v(r)}, -2, {v(r)}")
        def out_ops(a0, soff, half=False):
            ops = [f"v_cvt_pk_bf16_f32 {v(a0)}, {v(a0)}, {v(a0+1)}", f"v_cvt_pk_bf16_f32 {v(a0+1)}, {v(a0+2)}, {v(a0+3)}",
                   tagop(a0), tagop(a0 + 1)]
            st = f"buffer_store_dwordx2 {v(a0,2)}, {v(vPST)}, {srd(SRD_WS)}, s{soff} offen{sc}"
            if half: st = f"s_mov_b64 exec, s[{sLO32}:{sLO32+1}]\n{st}\ns_mov_b64 exec, -1"
            return ops + [st]
        mfl = [("d", ks) for ks in range(4)] + [(p, ks) for p in range(4) for ks in range(4)]
        groups = [(3, out_ops(WA8, sT0, True))] + [(7 + 4 * p, out_ops(WAo[p], [sPW, sT1, sT2, sT3][p])) for p in range(4)]
        ic = [0]; pos = {}
        def emit(s_):
            A(s_); ic[0] += len([x for x in s_.split("\n") if x.strip()])
        cur = []; gi = 0
        for n, (p, ks) in enumerate(mfl):
            if p == "d":
                n0 = len(A.lines); lg.wait(f"O{ks}"); ic[0] += len(A.lines) - n0
                emit(f"v_mfma_f32_16x16x32_bf16 {v(WA8,4)}, {v(OF[ks],4)}, {WO8(ks)}, {'0' if ks == 0 else v(WA8,4)}")
            else:
                emit(f"v_smfmac_f32_16x16x64_bf16 {v(WAo[p],4)}, {v(OF[ks],4)}, {WO(p,ks)}, {v(IDX)}")
            pos[n] = ic[0]
            k = 0
            while k < 2:
                if not cur and gi < len(groups) and groups[gi][0] <= n and ic[0] - pos[groups[gi][0]] >= 8:
                    cur = list(groups[gi][1]); gi += 1
                if not cur: break
                emit(cur.pop(0)); k += 1
        while cur or gi < len(groups):
            if not cur:
                need = 8 - (ic[0] - pos[groups[gi][0]])
                if need > 0: emit(f"s_nop {need-1}"); ic[0] += need - 1
                cur = list(groups[gi][1]); gi += 1
            emit(cur.pop(0))
        TQ("woend")
        PH(6)
        TR(1)
        A(f"s_cmp_eq_u32 s{sRED}, 0\ns_cbranch_scc1 {LP('nored')}")
        def rload(sidx):
            for i in range(4):
                A(f"buffer_load_dwordx4 {v(RBS[sidx]+4*i,4)}, {v(vRED)}, {srd(SRD_WS)}, s{sPW} offen offset:{i*1024}{ld}")
        def rproc(sidx, br):
            for i in range(4):
                b = RBS[sidx] + 4 * i
                A(f"s_waitcnt vmcnt({(7 if RGAP else 3)-i})")
                mf(RDd, v(SEL, 4), v(b, 4), i == 0)
                o3 = (lambda d, x, y, z: f"v_bitop3_b32 {v(d)}, {v(x)}, {v(y)}, {v(z)} bitop3:0x80") if par else (lambda d, x, y, z: f"v_or3_b32 {v(d)}, {v(x)}, {v(y)}, {v(z)}")
                if i == 0:
                    A(o3(RT, b, b + 1, b + 2)); A(o3(RT, RT, b + 3, b + 3))
                else:
                    A(o3(RT, RT, b, b + 1)); A(o3(RT, RT, b + 2, b + 3))
            A(f"v_and_b32 {v(RT)}, 1, {v(RT)}\nv_cmp_ne_u32 vcc, {par}, {v(RT)}\n{br}")
        A(f"""
        s_mov_b32 s{sT0}, s{sRDLY}
    {LP('rdl')}:
        s_cmp_eq_u32 s{sT0}, 0
        s_cbranch_scc1 {LP('rgo')}
        s_sleep 1
        s_sub_u32 s{sT0}, s{sT0}, 1
        s_branch {LP('rdl')}
    {LP('rgo')}:
        """)
        TQ("rgo")
        rload(0)
        zero_acc()
        if RGAP:
            A(f"s_sleep {RGAP}")
            rload(1)
        A.label(LP('rp0'))
        rproc(0, f"s_cbranch_vccnz {LP('rf0')}")
        A.label(LP('rdone'))
        TQ("rdone")
        A(f"""
        {'s_sub_u32 s96, %d, s%d' % (SPIN, sSPIN) if cnt else 's_nop 0'}
        {'s_add_u32 s21, s21, s96' if cnt else 's_nop 0'}
        s_nop 0
        v_cndmask_b32 {v(RT)}, {v(RDd)}, {v(RDd+2)}, s[{sHI32}:{sHI32+1}]
        v_cndmask_b32 {v(RT+1)}, {v(RDd+1)}, {v(RDd+3)}, s[{sHI32}:{sHI32+1}]
        v_cndmask_b32 {v(RT+3)}, {v(RT+1)}, {v(RT)}, s[{sN8}:{sN8+1}]
        v_cndmask_b32 {v(RT+2)}, {v(RT)}, {v(RT+1)}, s[{sN8}:{sN8+1}]
        s_nop 0
        v_add_f32_dpp {v(RT+2)}, {v(RT+3)}, {v(RT+2)} row_ror:8 row_mask:0xf bank_mask:0xf
        v_mov_b32 {v(RT+3)}, {v(RT+2)}
        s_nop 1
        v_permlane16_swap_b32 {v(RT+2)}, {v(RT+3)}
        v_cvt_pk_bf16_f32 {v(RT+2)}, {v(RT+2)}, {v(RT+3)}
        v_min_u32 {v(TMP)}, -2, {v(RT+2)}
        s_mov_b64 exec, s[{sPM}:{sPM+1}]
        buffer_store_dword {v(TMP)}, {v(vPUB)}, {srd(SRD_WS)}, s{sMW} offen{sc}
        buffer_store_dword {v(vSP)}, {v(vPUB)}, {srd(SRD_WS)}, s{sMA} offen{sc}
        s_mov_b64 exec, -1
        """)
        TQ("pub")
        PH(7)
        TR(2)
        if trace: A("s_waitcnt lgkmcnt(0)")
        A(f"s_branch {nxt_loop}")
        A.label(LP('nored'))
        if trace: A("s_waitcnt vmcnt(0)"); TR(2); A("s_waitcnt lgkmcnt(0)")
        zero_acc()
        if merged:
            A(f"s_cmp_lg_u32 s{W}, 3\ns_cbranch_scc1 {LP('nkv')}\ns_add_u32 s{sT0}, s{sSTEP}, {WARMD + 1}\ns_min_u32 s{sT0}, s{sT0}, 64")
            kv_wait(sT0, LP('kv'))
            A.label(LP('nkv'))
        if tstep:
            A(f"s_cmp_lg_u32 s{W}, 2\ns_cbranch_scc1 {LP('nts')}\ns_memrealtime s[96:97]\ns_waitcnt lgkmcnt(0)\ns_mov_b32 m0, s{sSTEP}\nv_writelane_b32 {v(vSP)}, s96, m0\n{LP('nts')}:")
        if CDN: A(f"s_sleep {CDN}")
        A(f"s_branch {nxt_loop}x")
        A.label(LP('rf0'))
        rload(0); spin()
        if RGAP:
            rproc(1, f"s_cbranch_vccz {LP('rdone')}")
            rload(1); spin()
        A(f"s_branch {LP('rp0')}")
        A.label(LP('cf0'))
        cload(RL, sT1); spin()
        if CGAP:
            A("s_waitcnt vmcnt(1)")
            chk(P1, f"s_cbranch_vccz {LP('cd1')}")
            cload(P1, sT1); spin()
            A("s_waitcnt vmcnt(1)")
            chk(RL, f"s_cbranch_vccz {LP('cd0')}")
            A(f"s_branch {LP('cf0')}")
            A.label(LP('cd1'))
            TR(3)
            A(f"ds_write_b128 {v(vC1)}, {v(P1,4)} offset:{L_MEMF-HI}\ns_branch {LP('cdj')}")
        else:
            A(f"s_branch {LP('cw0')}")
        A.label(LP('slow'))
        A(f"s_sub_u32 s{sT3}, s{sMA}, {HI}\ns_waitcnt lgkmcnt(0)\ns_nop 7")
        zero_acc()
        for kp in range(9):
            lab = LP(f'sp{kp}_')
            for h in range(2):
                kk = 2 * kp + h
                if kk != 17:
                    A(f"ds_read_b128 {v(WR[h],4)}, {v(vWV)} offset:{kk*2048}\nds_read_b128 {v(WR[h]+4,4)}, {v(vWV)} offset:{kk*2048+1024}")
            A(f"""
{lab}:
            buffer_load_dwordx4 {v(AS[0],4)}, {v(vAF)}, {srd(SRD_WS)}, s{sT3} offen sc1
            buffer_load_dwordx4 {v(AS[1],4)}, {v(vAF)}, {srd(SRD_WS)}, s{sT3} offen offset:512 sc1
            """)
            spin()
            A(f"""
            s_waitcnt vmcnt(0) lgkmcnt(0)
            v_max3_u32 {v(TMP)}, {v(AS[0])}, {v(AS[0]+1)}, {v(AS[0]+2)}
            v_max3_u32 {v(TMP)}, {v(TMP)}, {v(AS[0]+3)}, {v(AS[1])}
            v_max3_u32 {v(TMP)}, {v(TMP)}, {v(AS[1]+1)}, {v(AS[1]+2)}
            v_max_u32 {v(TMP)}, {v(TMP)}, {v(AS[1]+3)}
            v_cmp_eq_u32 vcc, -1, {v(TMP)}
            s_cbranch_vccnz {lab}
            """)
            for h in range(2):
                kk = 2 * kp + h
                sm(AQ, v(AS[h], 4), WQ(kk)); sm(AK, v(AS[h], 4), WK(kk)); sm(AV, v(AS[h], 4), v(WR[h], 8) if kk != 17 else v(WVR, 8))
            A(f"s_add_u32 s{sT3}, s{sT3}, 1024")
        if prof: A(f"s_mov_b64 exec, {1 << 10}\nv_add_u32 v1, 63, v1\ns_mov_b64 exec, -1")
        if cnt: A("s_add_u32 s20, s20, 0x10000")
        A("s_nop 7")
        qk_write()
        A(f"ds_read_b128 {v(KXR[2],4)}, {v(vKX)} offset:{L_KX-HI+2048}")
        A(f"s_waitcnt lgkmcnt(0)\ns_branch {LP('slowret')}")
    step_body(0, sc, ''); step_body(1, sc, '')
    if merged:
        step_body(0, ' sc1', 'S'); step_body(1, ' sc1', 'S')
    A.label(L('done'))
    A(f"""
    s_lshr_b32 s{sT2}, s{sSEG}, 2
    s_add_u32 s{sT1}, s{sT2}, {WS_VM - L_Q}
    s_add_u32 s{sT4}, s{sT2}, {WS_KM - L_Q}
    buffer_store_dwordx2 {v(D0+52,2)}, {v(vQW)}, {srd(SRD_WS)}, s{sT4} offen sc1
    buffer_store_dwordx2 {v(D0+54,2)}, {v(vQW)}, {srd(SRD_WS)}, s{sT1} offen sc1
    """)
    A("s_waitcnt vmcnt(0) lgkmcnt(0)")
    if merged:
        A(f"""
        s_barrier
        s_cmp_lg_u32 s{W}, 3
        s_cbranch_scc1 {L('nfin')}
        v_mov_b32 {v(TMP)}, 64
        v_mov_b32 {v(D0+52)}, s{sPRG}
        s_mov_b64 exec, 1
        buffer_store_dword {v(TMP)}, {v(D0+52)}, {srd(SRD_WS)}, 0 offen sc1
        s_mov_b64 exec, -1
        s_waitcnt vmcnt(0)
{L('nfin')}:
        """)
    if cnt:
        A(f"v_mov_b32 v1, s20\ns_mov_b64 exec, 2\nv_mov_b32 v1, s21\ns_mov_b64 exec, -1")
        A("s_memtime s[96:97]\ns_memrealtime s[100:101]\ns_waitcnt lgkmcnt(0)\ns_sub_u32 s96, s96, s99\ns_sub_u32 s100, s100, s98")
        A("s_mov_b64 exec, 4\nv_mov_b32 v1, s96\ns_mov_b64 exec, 8\nv_mov_b32 v1, s100\ns_mov_b64 exec, -1")
    if trace:
        for i in range(6): A(f"s_mov_b64 exec, {1 << i}\nv_mov_b32 v1, s{8+2*i}")
        A("s_mov_b64 exec, -1")
    if tq:
        for i in range(len(tq)): A(f"s_mov_b64 exec, {1 << i}\nv_mov_b32 v1, s{8+2*i}")
        A("s_mov_b64 exec, -1")
    if tstep: A(f"v_mov_b32 v1, {v(vSP)}")
    if prof or cnt or trace or tq or tstep:
        A(f"""
        s_lshl_b32 s96, s{s_head}, 2
        s_add_u32 s96, s96, s{W}
        s_lshl_b32 s96, s96, 8
        s_add_u32 s96, s96, {WS_STAMP + 0x10000}
        v_lshrrev_b32 v28, 2, {v(vCON)}
        v_and_b32 v28, 255, v28
        buffer_store_dword v1, v28, {srd(SRD_WS)}, s96 offen
        s_waitcnt vmcnt(0)
        """)
    stamp(A, 10, s_id=s_head)
    hstamp(A, 14)
```

```python
from common import *
from mod_p import *
from mod_r4 import mod_R
from mod_r4 import SPIN
from mod_xo import *
from mod_f import *

NW = 224
EV_LDS = 16384
sWID, sHEAD, sGRP, sCB, sOG, sXN, sON, sPAR, sITEM, sCG, sTG, sKAP, sSP = range(76, 89)

BC_LDS = 163836
def claim_issue(A, FX=0):
    A(f"""
    s_getreg_b32 s59, hwreg(HW_REG_XCC_ID)
    s_and_b32 s59, s59, 15
    """)
    if FX:
        A("s_cmp_ge_u32 s2, 128\ns_cselect_b32 s60, 1, 0\ns_max_u32 s59, s59, s60")
    A(f"""
    s_bfe_u32 s60, s2, 0x50003
    s_lshl_b32 s58, s59, 5
    s_add_u32 s58, s58, s60
    v_mov_b32 v30, -1
    v_mov_b32 v31, 0
    s_cmp_lg_u32 s{S_WAVE}, 0
    s_cbranch_scc1 RA_iss
    s_cmp_ge_u32 s59, 8
    s_cbranch_scc1 RA_iss
    s_lshl_b32 s61, 1, s60
    s_mov_b32 s62, {claim_off(0)}
    """)
    for x in range(1, 8):
        A(f"s_cmp_eq_u32 s59, {x}\ns_cselect_b32 s62, {claim_off(x)}, s62")
    A(f"""
    v_mov_b32 v30, s61
    v_mov_b32 v31, s62
    s_mov_b64 exec, 1
    buffer_atomic_or v30, v31, {srd(SRD_DBG)}, 0 offen sc0 sc1
    s_mov_b64 exec, -1
RA_iss:
    """)

def claim_resolve(A, t, younger, abort):
    A(f"""
    s_cmp_lg_u32 s{S_WAVE}, 0
    s_cbranch_scc1 RA{t}_bc
    s_and_b32 s60, s58, 31
    s_waitcnt vmcnt({younger})
RA{t}_try:
    v_readfirstlane_b32 s61, v30
    s_bitcmp0_b32 s61, s60
    s_cbranch_scc1 RA{t}_got
    s_ff0_i32_b32 s60, s61
    s_cmp_lt_i32 s60, 0
    s_cbranch_scc1 RA{t}_ovf
    s_lshl_b32 s61, 1, s60
    v_mov_b32 v30, s61
    s_mov_b64 exec, 1
    buffer_atomic_or v30, v31, {srd(SRD_DBG)}, 0 offen sc0 sc1
    s_mov_b64 exec, -1
    s_waitcnt vmcnt(0)
    s_branch RA{t}_try
RA{t}_got:
    s_lshl_b32 s3, s59, 5
    s_add_u32 s3, s3, s60
    s_branch RA{t}_have
RA{t}_ovf:
    v_mov_b32 v28, 1
    v_mov_b32 v29, {DBG_OVF}
    s_mov_b64 exec, 1
    buffer_atomic_add v28, v29, {srd(SRD_DBG)}, 0 offen sc0 sc1
    s_mov_b64 exec, -1
    s_waitcnt vmcnt(0)
    v_readfirstlane_b32 s61, v28                 ; o
    v_lshlrev_b32 v29, 2, v1
    s_mov_b32 s63, {SPIN}
RA{t}_poll:
    buffer_load_dword v28, v29, {srd(SRD_DBG)}, 0 offen sc1
    s_sub_u32 s63, s63, 1
    s_cbranch_scc1 {abort}
    s_waitcnt vmcnt(0)
    v_readlane_b32 s62, v28, {DBG_OVF//4}
    """)
    for x in range(8):
        A(f"v_readlane_b32 s60, v28, {claim_off(x)//4}\ns_nop 1\nv_writelane_b32 v30, s60, {x}\ns_bcnt1_i32_b32 s60, s60\ns_add_u32 s62, s62, s60")
    A(f"""
    s_cmp_lt_u32 s62, 256
    s_cbranch_scc1 RA{t}_poll
    s_mov_b32 s3, 0
RA{t}_scan:
    s_lshr_b32 s60, s3, 5
    s_nop 3
    v_readlane_b32 s62, v30, s60
    s_and_b32 s60, s3, 31
    s_bitcmp1_b32 s62, s60
    s_cbranch_scc1 RA{t}_nx
    s_cmp_eq_u32 s61, 0
    s_cbranch_scc1 RA{t}_fnd
    s_sub_u32 s61, s61, 1
RA{t}_nx:
    s_add_u32 s3, s3, 1
    s_cmp_lt_u32 s3, 255
    s_cbranch_scc1 RA{t}_scan
RA{t}_fnd:
    s_cmp_ge_u32 s3, 32
    s_cbranch_scc1 RA{t}_have
    v_mov_b32 v28, 1
    v_mov_b32 v29, {DBG_OVH}
    s_mov_b64 exec, 1
    buffer_store_dword v28, v29, {srd(SRD_DBG)}, 0 offen sc1
    s_mov_b64 exec, -1
    s_waitcnt vmcnt(0)
RA{t}_have:
    v_mov_b32 v28, s3
    v_mov_b32 v29, {BC_LDS}
    ds_write_b32 v29, v28
    s_waitcnt lgkmcnt(0)
RA{t}_bc:
    s_barrier
    v_mov_b32 v29, {BC_LDS}
    ds_read_b32 v28, v29
    s_waitcnt lgkmcnt(0)
    v_readfirstlane_b32 s3, v28
    s_barrier
    """)

def wait_ge(A, srd_, off_expr_s, val, abort, vt=250, sleep=8):
    l = A.newlabel("WG")
    A(f"""
    s_mov_b32 s{sSP}, {SPIN}
    v_mov_b32 {v(vt)}, {off_expr_s}
{l}:
    buffer_load_dword {v(vt+1)}, {v(vt)}, {srd(srd_)}, 0 offen sc1
    s_sub_u32 s{sSP}, s{sSP}, 1
    s_cbranch_scc1 {abort}
    s_waitcnt vmcnt(0)
    v_cmp_le_u32 vcc, {val}, {v(vt+1)}
    s_cbranch_vccnz {l}_ok
    s_sleep {sleep}
    s_branch {l}
{l}_ok:
    """)

def signal_wg(A, off, vt=250):
    l = A.newlabel("SG")
    A(f"""
    s_waitcnt vmcnt(0)
    s_barrier
    s_cmp_lg_u32 s{S_WAVE}, 0
    s_cbranch_scc1 {l}
    v_mov_b32 {v(vt)}, {off}
    v_mov_b32 {v(vt+1)}, 1
    s_mov_b64 exec, 1
    buffer_atomic_add {v(vt+1)}, {v(vt)}, {srd(SRD_DBG)}, 0 offen sc1
    s_mov_b64 exec, -1
{l}:
    """)

def acc_t(A, dst):
    import common
    if not common.STAMPS: return
    A(f"s_memrealtime s[96:97]\ns_waitcnt lgkmcnt(0)\ns_sub_u32 s98, s96, s93\ns_add_u32 s{dst}, s{dst}, s98\ns_mov_b32 s93, s96")

def rec_t(A, r):
    import common
    if common.STAMPS: A(f"s_memrealtime s[{r}:{r+1}]\ns_waitcnt lgkmcnt(0)")

def k_merged(A, ropt, EVS=4, PREF=0, FX=0):
    AB = "M_abort"
    if ropt.get('tstart'): A("s_memrealtime s[100:101]")
    if PREF:
        A(f"""
        s_getpc_b64 s[60:61]
M_pc:
        v_lshlrev_b32 v254, 7, v0
        v_min_u32 v255, M_codeend - M_pc - 4, v254
        global_load_dword v253, v255, s[60:61]
        """)
        for k in range(1, PREF):
            A(f"""
            v_add_u32 v254, 32768, v254
            v_min_u32 v255, M_codeend - M_pc - 4, v254
            global_load_dword v253, v255, s[60:61]
            """)
    prologue(A, 256, "M_end")
    stamp(A, 13, s_id=2)
    hstamp(A, 11, neg=True)
    claim_issue(A, FX)
    A("s_mov_b32 s57, 0\ns_cmp_eq_u32 s59, 0\ns_cbranch_scc1 M_head")
    claim_resolve(A, "a", 0, AB)
    A.label("M_dispatch")
    A("s_mov_b32 s58, s3\ns_mov_b32 s57, 1\ns_cmp_ge_u32 s58, 32\ns_cbranch_scc1 M_worker")
    A.label("M_head")
    def resolve():
        A("s_cmp_eq_u32 s57, 1\ns_cbranch_scc1 M_resolved")
        claim_resolve(A, "b", 36, AB)
        A("s_cmp_eq_u32 s3, s58\ns_cbranch_scc1 M_resolved\ns_waitcnt vmcnt(0)\ns_barrier\ns_branch M_dispatch")
        A.label("M_resolved")
    mod_R(A, 58, abort=AB, merged=True, hooks=dict(resolve=resolve), **ropt)
    A("s_branch M_end")
    A.label("M_worker")
    A(f"""
    s_sub_u32 s{sWID}, s58, 32
    s_lshr_b32 s60, s{sWID}, 3                      ; unit
    s_mul_hi_u32 s61, s60, {(2**32+6)//7}           ; octet
    s_mul_i32 s62, s61, 7
    s_sub_u32 s{sGRP}, s60, s62
    s_lshl_b32 s61, s61, 3
    s_and_b32 s62, s{sWID}, 7
    s_add_u32 s{sHEAD}, s61, s62
    s_mul_hi_u32 s{sOG}, s{sWID}, {(2**32+17)//18}
    s_mul_i32 s60, s{sOG}, 18
    s_sub_u32 s{sCB}, s{sWID}, s60
    s_mul_hi_u32 s{sTG}, s{sWID}, {(2**32+4)//5}
    s_mul_i32 s60, s{sTG}, 5
    s_sub_u32 s{sCG}, s{sWID}, s60
    s_mul_i32 s{sKAP}, s{S_WAVE}, {NW}
    s_add_u32 s{sKAP}, s{sKAP}, s{sWID}
    """)
    stamp(A, 0, s_id=58)
    F0(A, sWID, NW)
    signal_wg(A, DBG_F0, vt=76)
    mod_P(A, sHEAD, sGRP, 7, preloop=lambda: wait_ge(A, SRD_DBG, DBG_RARM, 32, AB, vt=76))
    stamp(A, 4, s_id=58)
    wait_ge(A, SRD_DBG, DBG_F0, NW, AB)
    A(f"s_cmp_ge_u32 s{sTG}, 44\ns_cbranch_scc1 M_nof1")
    FG(A, 1, sCG, sTG, 44)
    A.label("M_nof1")
    signal_wg(A, DBG_F1)
    stamp(A, 5, s_id=58)
    A(f"s_cmp_ge_u32 s{sOG}, 12\ns_cbranch_scc1 M_noos")
    O_setup(A, sCB, keep=True)
    A.label("M_noos")
    stamp(A, 6, s_id=58)
    wait_ge(A, SRD_DBG, DBG_F1, NW, AB)
    A(f"s_cmp_gt_u32 s{sKAP}, 288\ns_cbranch_scc1 M_nof2")
    F2(A, sKAP)
    A.label("M_nof2")
    signal_wg(A, DBG_F2)
    stamp(A, 7, s_id=58)
    wait_ge(A, SRD_DBG, DBG_F2, NW, AB)
    A(f"s_cmp_ge_u32 s{sTG}, 44\ns_cbranch_scc1 M_nof3")
    FG(A, 3, sCG, sTG, 44)
    A.label("M_nof3")
    A("s_waitcnt vmcnt(0)\ns_barrier")
    stamp(A, 11, s_id=58)
    hstamp(A, 9)
    X_setup(A)
    O_addr(A, sCB)
    A(f"""
    s_mov_b32 s{sXN}, s{sGRP}
    s_cmp_lt_u32 s{sOG}, 12
    s_cselect_b32 s{sON}, s{sOG}, 64
    s_mov_b32 s{sPAR}, 0
    s_mov_b32 s90, 0
    s_mov_b32 s91, 0
    s_mov_b32 s92, 0
    s_mov_b32 s93, 0
    """)
    acc_t(A, 92)
    A(f"""
    s_mov_b32 s92, 0
M_evx:
    s_cmp_ge_u32 s{sXN}, 64
    s_cbranch_scc1 M_ev
    s_lshl_b32 s{sITEM}, s{sXN}, 5
    s_add_u32 s{sITEM}, s{sITEM}, s{sHEAD}
    """)
    X_pre(A, sITEM)
    acc_t(A, 90)
    A(f"""
M_ev:
    s_min_u32 s60, s{sXN}, s{sON}
    s_cmp_ge_u32 s60, 64
    s_cbranch_scc1 M_fin
    s_cmp_lg_u32 s{S_WAVE}, 0
    s_cbranch_scc1 M_evb
    s_lshl_b32 s64, s{sHEAD}, 7
    s_add_u32 s64, s64, {FLAG_RP}
    s_min_u32 s65, s{sON}, 63
    s_lshl_b32 s65, s65, 7
    s_add_u32 s65, s65, {FLAG_OX}
    v_mov_b32 v250, s64
    v_and_b32 v251, 31, v1
    v_lshlrev_b32 v251, 2, v251
    v_add_u32 v251, s65, v251
    s_mov_b32 s{sSP}, {SPIN}
M_evp:
    buffer_load_dword v252, v250, {srd(SRD_WS)}, 0 offen sc1
    buffer_load_dword v253, v251, {srd(SRD_WS)}, 0 offen sc1
    s_mov_b32 s62, 3
    s_sub_u32 s{sSP}, s{sSP}, 1
    s_cbranch_scc1 M_evd
    s_waitcnt vmcnt(0)
    v_readfirstlane_b32 s60, v252
    v_cmp_eq_u32 vcc, 0, v253
    s_mov_b32 s62, 1
    s_cmp_gt_u32 s60, s{sXN}
    s_cbranch_scc1 M_evd
    s_add_u32 s61, s60, 1
    s_min_u32 s61, s61, 63
    s_cmp_ge_u32 s61, s{sXN}
    s_cbranch_scc1 M_evs2
    s_mov_b32 s62, 2
    s_cmp_ge_u32 s{sON}, 64
    s_cbranch_scc1 M_evs
    s_cbranch_vccz M_evd
M_evs:
    s_min_u32 s61, s{sXN}, s{sON}
    s_add_u32 s60, s60, 1
    s_cmp_gt_u32 s61, s60
    s_cbranch_scc0 M_evs2
    s_sleep 48
M_evs2:
    s_sleep {EVS}
    s_branch M_evp
M_evd:
    v_mov_b32 v252, s62
    v_mov_b32 v253, {EV_LDS}
    ds_write_b32 v253, v252
    s_waitcnt lgkmcnt(0)
M_evb:
    s_barrier
    v_mov_b32 v253, {EV_LDS}
    ds_read_b32 v252, v253
    s_waitcnt lgkmcnt(0)
    v_readfirstlane_b32 s62, v252
    s_barrier
    """)
    acc_t(A, 92)
    A(f"""
    s_cmp_eq_u32 s62, 3
    s_cbranch_scc1 {AB}
    s_cmp_eq_u32 s62, 2
    s_cbranch_scc1 M_evO
    """)
    rec_t(A, 66)
    X_post(A, sITEM)
    rec_t(A, 74)
    A(f"""
    s_lshl_b32 s60, s{sXN}, 7
    s_lshl_b32 s61, s{sHEAD}, 2
    s_add_u32 s60, s60, s61
    s_add_u32 s60, s60, {FLAG_OX}
    v_mov_b32 v251, 1
    s_waitcnt vmcnt(0)
    s_barrier
    s_cmp_lg_u32 s{S_WAVE}, 0
    s_cbranch_scc1 M_xf
    s_mov_b64 exec, 1
    buffer_store_dword v251, off, {srd(SRD_WS)}, s60 sc1
    s_mov_b64 exec, -1
M_xf:
    s_add_u32 s{sXN}, s{sXN}, 7
    """)
    rec_t(A, 68)
    acc_t(A, 90)
    A(f"""
    s_branch M_evx
M_evO:
    """)
    rec_t(A, 70)
    O_item(A, sON, sPAR)
    rec_t(A, 72)
    acc_t(A, 91)
    A(f"""
    s_add_u32 s{sON}, s{sON}, 12
    s_branch M_ev
M_fin:
    """)
    stamp(A, 12, s_id=58)
    hstamp(A, 15)
    import common
    if common.STAMPS:
        A(f"""
        s_lshl_b32 s98, s58, 8
        s_add_u32 s98, s98, {WS_STAMP + 160}
        v_mov_b32 v76, s90
        v_mov_b32 v77, s91
        v_mov_b32 v78, s92
        v_mov_b32 v79, 0
        s_mov_b64 exec, 1
        buffer_store_dwordx3 v[76:78], v79, {srd(SRD_WS)}, s98 offen
        v_mov_b32 v72, s66
        v_mov_b32 v73, s74
        v_mov_b32 v74, s68
        v_mov_b32 v75, s70
        v_mov_b32 v76, s72
        buffer_store_dwordx4 v[72:75], v79, {srd(SRD_WS)}, s98 offen offset:16
        buffer_store_dword v76, v79, {srd(SRD_WS)}, s98 offen offset:32
        s_mov_b64 exec, -1
        """)
    A("s_branch M_end")
    A(f"""
{AB}:
    s_mov_b64 exec, -1
    v_mov_b32 v3, 0xdead
    v_mov_b32 v4, {DBG_ABORT}
    buffer_store_dword v3, v4, {srd(SRD_DBG)}, 0 offen
    s_waitcnt vmcnt(0)
M_end:
    s_endpgm
M_codeend:""")
```

```python
from common import *
import math, struct

WSTR = 36864
L_Q = 34816
L_K = 34816 + WSTR
L_O = 34816 + 2 * WSTR
L_MEMF = 145408
L_KX = 145408 + 9216
L_V = L_MEMF + 4096
HI = 98304
PSLOT = 72 * 4096
MSLOT = 9216
SPIN = 200000
CEXP = (128 ** -0.5) * math.log2(math.e)
def f32bits(x): return struct.unpack("<I", struct.pack("<f", x))[0]

def WQ(kk): return wreg(kk * 8, 8)
def WK(kk): return wreg(144 + kk * 8, 8)
def WO(p, ks): return wreg(288 + (p * 4 + ks) * 8, 8)
def WO8(ks): return wreg(288 + 128 + ks * 4, 4)

class LQ:
    def __init__(self, A, name): self.A, self.name, self.q = A, name, []
    def push(self, tag, n=1): self.q += [tag] * n; assert len(self.q) <= (15 if self.name == "lgkmcnt" else 63), self.q
    def wait(self, tag):
        if tag not in self.q: return
        idx = max(i for i, t in enumerate(self.q) if t == tag)
        self.A(f"s_waitcnt {self.name}({len(self.q) - 1 - idx})")
        del self.q[:idx + 1]
    def clear(self): self.q = []

def mod_R(A, s_head, sc="", pfx="R", abort="R_abort", last=63, prof=False, RD_=(0, 0, 0, 1, 2), CD=0, hooks=None, WARMD=2, cnt=False,
          CDN=0, fixseg=False, nokm=False, x_nowv=False, trace=False, RGAP=1, CGAP=1, ld=' sc1', tq=None, merged=False, wbar=False, worder='qk', wnt='', tstart=False, eflag=True, EFAT=13, tstep=False, CDN3=0, nowarm=False, R2AT=0, R3AT=6, B2AT=4):
    assert R3AT > B2AT and R2AT + 2 < B2AT
    def TQ(tag):
        if tq and tag in tq: A(f"s_memtime s[{8+2*tq.index(tag)}:{9+2*tq.index(tag)}]")

    def TR(i):
        if trace: A(f"s_memrealtime s[{8+2*i}:{9+2*i}]")

    L = lambda n: f"{pfx}_{n}"
    def TS(i):
        r = 98 if i == 1 else 8 + 2 * i
        if tstart: A(f"s_memrealtime s[{r}:{r+1}]\ns_waitcnt lgkmcnt(0)")
    W = S_WAVE
    hooks = hooks or {}
    def PH(i):
        if not prof: return
        A(f"""
        s_waitcnt lgkmcnt(0)
        s_memtime s[96:97]
        s_waitcnt lgkmcnt(0)
        s_sub_u32 s99, s96, s98
        s_mov_b32 s98, s96
        s_mov_b64 exec, {1 << i}
        v_add_u32 v1, s99, v1
        s_mov_b64 exec, -1
        """)
    TMP = 0
    IDX, SELV, vPST, vRED, vPUB, vCON, vAF, vWV, vQW, vQR, vKX, vOW, vVX, vSP = range(2, 16)
    vC1 = 1
    assert not prof
    WVR = 16
    D0 = 24
    sSTEP, sPW, sPR, sMW, sMR, sMA, sRED, sSEG = 64, 65, 66, 67, 68, 69, 70, 71
    sLO32, sHI32, sEVEN, sN8 = 72, 74, 76, 78
    sU = 80
    sU2 = sU
    sC = 82
    sRDLY, sWB, sB1 = 84, 85, 59
    sB3, sM3, sPRG = 66, 57, 4
    sRDLY2 = 96
    sPM = sEVEN
    sSEL = 86
    sT0, sT1, sT2, sSPIN, sT3, sT4 = 60, 61, 62, 63, 94, 95
    T0, T1, T2 = D0, D0 + 1, D0 + 2
    stamp(A, 8, s_id=s_head)
    hstamp(A, 12)
    def bits(dst, terms, add=None):
        first = True
        for (off, n, sh) in terms:
            A(f"v_bfe_u32 {v(T2)}, v1, {off}, {n}")
            if first:
                A(f"v_lshlrev_b32 {v(dst)}, {sh}, {v(T2)}"); first = False
            else:
                A(f"v_lshl_add_u32 {v(dst)}, {v(T2)}, {sh}, {v(dst)}")
        if add is not None:
            A(f"v_add_u32 {v(dst)}, {add}, {v(dst)}")
    vWA, vWB = D0 + 52, D0 + 53
    vTR = [D0 + 44, D0 + 45]
    vTO = [D0 + 46 + k for k in range(4)]
    vTD = [D0 + 28 + k for k in range(4)]
    X0, X1 = D0 + 8, D0 + 9
    sWL = 7
    VS = D0 + 12
    A(f"""
    s_lshl_b32 s{sT0}, s{s_head}, 8
    s_lshr_b32 s{sT1}, s{W}, 1
    s_lshl_b32 s{sT1}, s{sT1}, 7
    s_add_u32 s{sT0}, s{sT0}, s{sT1}
    s_and_b32 s{sT1}, s{W}, 1
    s_lshl_b32 s{sT1}, s{sT1}, 18
    s_add_u32 s{sT0}, s{sT0}, s{sT1}
    s_mul_i32 s{sWL}, s{W}, {WSTR}
    """)
    bits(vWA, [(3, 3, 13), (0, 3, 4)], f"s{sT0}")
    chunks = [(worder[0], kb) for kb in range(9)] + [(worder[1], kb) for kb in range(9)] + \
             [("o", (p, kb2)) for p in range(5) for kb2 in range(2)] + [("v", kb) for kb in range(9)]
    slot_of = lambda c: (c - 28) % 9
    def wdma(c):
        kind, ix = chunks[c]; sl = slot_of(c)
        for n in range(4):
            A(f"s_add_u32 m0, s{sWL}, {sl*4096 + n*1024}")
            if kind == "o":
                p, kb2 = ix
                A(f"s_mov_b32 s{sT1}, {(kb2*64 + n*4)*1152 + p*256}")
                A(f"buffer_load_dwordx4 {v(vWB)}, {srd(SRD_WO)}, s{sT1} offen{wnt} lds")
            else:
                A(f"s_mov_b32 s{sT1}, {ix*524288 + n*65536}")
                A(f"buffer_load_dwordx4 {v(vWA)}, {srd({'q': SRD_WQ, 'k': SRD_WK, 'v': SRD_WV}[kind])}, s{sT1} offen{wnt} lds")
    for c in range(9): wdma(c)
    TS(1)
    if 'resolve' in hooks: hooks['resolve']()
    TS(2)
    A.c("R setup")
    A(f"""
    s_mov_b32 s{sLO32}, -1
    s_mov_b32 s{sLO32+1}, 0
    s_mov_b32 s{sHI32}, 0
    s_mov_b32 s{sHI32+1}, -1
    s_mov_b32 s{sEVEN}, 0x55555555
    s_mov_b32 s{sEVEN+1}, 0x55555555
    s_mov_b32 s{sN8}, 0xff00ff00
    s_mov_b32 s{sN8+1}, 0xff00ff00
    s_mov_b32 s{sC}, {f32bits(CEXP)}
    s_mov_b32 s{sC+1}, {f32bits(CEXP)}
    s_lshl_b32 s{sWB}, s{W}, 10
    s_cmp_eq_u32 s{W}, 0
    s_mov_b32 s{sB1}, -1024
    s_cselect_b32 s{sB1}, 8192, s{sB1}
    s_lshl_b32 s{sPRG}, s{s_head}, 7
    s_add_u32 s{sPRG}, s{sPRG}, {FLAG_RP}
    s_and_b32 s{sM3}, s{sWB}, 1024
    s_sub_u32 s{sB3}, s{sM3}, s{sWB}
    s_add_u32 s{sB3}, s{sB3}, 6144
    s_add_u32 s{sM3}, s{sM3}, {L_MEMF + 7168}
    """)
    for r in range(4):
        m = (0x03030303 << (2 * r)) & 0xffffffff
        A(f"s_mov_b32 s{sSEL+2*r}, {m}\ns_mov_b32 s{sSEL+2*r+1}, {m}")
    A(f"""
    v_mov_b32 {v(IDX)}, 0x44444444
    v_mov_b32 {v(T0)}, 0xeeeeeeee
    v_cndmask_b32 {v(IDX)}, {v(IDX)}, {v(T0)}, s[{sN8}:{sN8+1}]
    v_mov_b32 {v(SELV)}, 0x3f800000
    v_mov_b32 {v(T0)}, 0x3f80
    v_cndmask_b32 {v(SELV)}, {v(SELV)}, {v(T0)}, s[{sEVEN}:{sEVEN+1}]
    s_mov_b32 s{sPM}, 0xffff
    s_mov_b32 s{sPM+1}, 0xffff
    v_lshlrev_b32 {v(T0)}, 4, v1
    s_add_u32 s{sT0}, s{sWB}, {HI}
    v_add_u32 {v(vCON)}, s{sT0}, {v(T0)}
    s_mul_i32 s{sT0}, s{W}, {WSTR}
    v_add_u32 {v(vWV)}, s{sT0}, {v(T0)}
    s_lshl_b32 s{sT0}, s{W}, 5
    s_add_u32 s{sT0}, s{sT0}, s{s_head}           ; unit
    s_lshl_b32 s{sT1}, s{sT0}, 12
    s_cmp_lt_u32 s{sT0}, 72
    s_cselect_b32 s{sRED}, 1, 0
    s_cselect_b32 s{sT1}, s{sT1}, 0x40000000
    v_add_u32 {v(vRED)}, s{sT1}, {v(T0)}
    s_lshr_b32 s{sT1}, s{sT0}, 1
    s_lshl_b32 s{sT4}, s{sT1}, 5
    s_lshl_b32 s{sT1}, s{sT1}, 8
    s_and_b32 s{sT2}, s{sT0}, 1
    s_mul_i32 s{sT3}, s{sT2}, {4*1152}
    s_add_u32 s{sT4}, s{sT4}, s{sT3}
    s_lshl_b32 s{sT2}, s{sT2}, 6
    s_add_u32 s{sT1}, s{sT1}, s{sT2}
    s_lshr_b32 s{sT2}, s{sT0}, 4
    s_add_u32 s{sT2}, s{sT2}, 1
    s_cmp_ge_u32 s{sT0}, 64
    s_cselect_b32 s{sT2}, 0, s{sT2}
    s_mov_b32 s{sRDLY}, {RD_[0]}
    """)
    for o in range(1, 5):
        A(f"s_cmp_eq_u32 s{sT2}, {o}\ns_cselect_b32 s{sRDLY}, {RD_[o]}, s{sRDLY}")
    bits(vPUB, [(2, 1, 7), (5, 1, 5), (3, 1, 4), (0, 2, 2)], f"s{sT1}")
    A(f"s_lshl_b32 s{sT1}, s{W}, 1\ns_xor_b32 s{sT2}, s{s_head}, s{sT1}\ns_lshl_b32 s{sT2}, s{sT2}, 7\ns_lshl_b32 s{sT1}, s{W}, 13")
    bits(vPST, [(5, 1, 10), (4, 1, 7)])
    A(f"v_xor_b32 {v(T1)}, s{sT2}, {v(vPST)}\nv_add_u32 {v(T1)}, s{sT1}, {v(T1)}")
    bits(vPST, [(5, 1, 15), (4, 1, 12), (0, 4, 3)], v(T1))
    A(f"s_lshl_b32 s{sT1}, s{W}, 9\ns_add_u32 s{sT2}, s{sT1}, {L_Q}")
    bits(vQW, [(5, 1, 8), (0, 4, 4), (4, 1, 3)], f"s{sT2}")
    bits(vQR, [(5, 1, 8), (4, 1, 6), (2, 2, 4), (0, 1, 3)], L_Q)
    bits(vKX, [(4, 2, 9), (3, 1, 8), (0, 3, 4)], HI)
    bits(vAF, [(4, 2, 7), (0, 3, 4)], HI)
    A(f"s_add_u32 s{sT2}, s{sT1}, {L_O}")
    bits(vOW, [(5, 1, 7), (0, 3, 4), (4, 1, 3)], f"s{sT2}")
    A(f"s_lshl_b32 s{sT1}, s{W}, 11")
    bits(vVX, [(4, 2, 9), (0, 4, 4)], f"s{sT1}")
    ARM = D0 + 4
    X0, X1 = D0 + 8, D0 + 9
    for i in range(4): A(f"v_mov_b32 {v(ARM+i)}, -1")
    A(f"s_cmp_eq_u32 s{sRED}, 0\ns_cbranch_scc1 {L('noarm')}")
    bits(X1, [(5, 1, 1), (3, 1, 0)])
    A(f"v_mul_u32_u24 {v(X1)}, 1152, {v(X1)}")
    bits(X0, [(0, 3, 2)], v(X1))
    A(f"buffer_load_dword {v(vSP)}, {v(X0)}, {srd(SRD_M0)}, s{sT4} offen")
    A(f"s_mov_b32 s{sT0}, {WS_PART}")
    for i in range(4):
        A(f"buffer_store_dwordx4 {v(ARM,4)}, {v(vRED)}, {srd(SRD_WS)}, s{sT0} offen offset:{i*1024} sc1")
    A(f"s_mov_b64 exec, s[{sEVEN}:{sEVEN+1}]")
    for sl in range(3):
        A(f"s_mov_b32 s{sT0}, {WS_MEMB + sl*MSLOT}")
        A(f"buffer_store_dword {v(ARM)}, {v(vPUB)}, {srd(SRD_WS)}, s{sT0} offen sc1")
    A("s_mov_b64 exec, -1")
    A.label(L('noarm'))
    if merged:
        A(f"""
        s_cmp_lg_u32 s{W}, 3
        s_cbranch_scc1 {L('nz')}
        v_lshlrev_b32 {v(X0)}, 2, v1
        v_mov_b32 {v(X1)}, 0
        s_lshl_b32 s{sT0}, s{s_head}, 8
        s_add_u32 s{sT0}, s{sT0}, {FLAG_KV}
        buffer_store_dword {v(X1)}, {v(X0)}, {srd(SRD_WS)}, s{sT0} offen sc1
        s_add_u32 s{sT0}, s{sT0}, {FLAG_OX - FLAG_KV}
        buffer_store_dword {v(X1)}, {v(X0)}, {srd(SRD_WS)}, s{sT0} offen sc1
        v_mov_b32 {v(X0)}, s{sPRG}
        buffer_store_dword {v(X1)}, {v(X0)}, {srd(SRD_WS)}, 0 offen sc1
{L('nz')}:
        """)
    A(f"""
    v_lshrrev_b32 {v(X0)}, 4, v1
    s_lshl_b32 s{sT0}, s{W}, 4
    v_add_u32 {v(X0)}, s{sT0}, {v(X0)}
    v_mul_u32_u24 {v(X0)}, 1152, {v(X0)}
    s_mul_i32 s{sT0}, s{s_head}, 147456
    v_add_u32 {v(X0)}, s{sT0}, {v(X0)}
    s_and_b32 s{sT0}, s{W}, 2
    s_mul_i32 s{sT0}, s{sT0}, {WSTR}
    s_and_b32 s{sT1}, s{W}, 1
    s_lshl_b32 s{sT1}, s{sT1}, 6
    s_add_u32 s{sT0}, s{sT0}, s{sT1}
    s_lshl_b32 s{sT1}, s{W}, 5
    """)
    bits(vWB, [(0, 4, 4)], v(X0))
    bits(vTR[0], [(4, 2, 9), (2, 1, 7), (3, 1, 5), (0, 2, 3)], f"s{sT0}")
    A(f"v_add_u32 {v(vTR[1])}, {WSTR}, {v(vTR[0])}")
    bits(vTO[0], [(4, 2, 10), (2, 1, 8), (3, 1, 7), (0, 2, 3)], f"s{sT1}")
    bits(vTD[0], [(4, 1, 11), (2, 2, 8), (0, 2, 3)], f"s{sT1}")
    A(f"v_bfe_u32 {v(T2)}, v1, 5, 1\nv_mul_u32_u24 {v(T2)}, {WSTR}, {v(T2)}\nv_add_u32 {v(vTD[0])}, {v(vTD[0])}, {v(T2)}")
    for k in range(1, 4): A(f"v_add_u32 {v(vTO[k])}, {k*WSTR}, {v(vTO[0])}")
    A(f"v_add_u32 {v(vTD[1])}, {2*WSTR}, {v(vTD[0])}")
    def trread(dst_fn, h, sl):
        for t, ro in enumerate((0, 2, 16, 18)):
            A(f"ds_read_b64_tr_b16 {dst_fn(t)}, {v(vTR[h])} offset:{sl*4096 + ro*128}")
    def trread_o(dst_fn, h, sl):
        for t, (k, ro) in enumerate(((0, 0), (0, 2), (1, 0), (1, 2))):
            A(f"ds_read_b64_tr_b16 {dst_fn(t)}, {v(vTO[2*h+k])} offset:{sl*4096 + ro*256}")
    sub = lambda base, t: wreg(base + 2 * t, 2)
    NCH = len(chunks)
    for c in range(NCH):
        kind, ix = chunks[c]; sl = slot_of(c)
        A(f"s_waitcnt vmcnt({min(NCH - 1 - c, 8) * 4 + (7 if c > NCH - 10 else 0)}) lgkmcnt(0)\ns_barrier")
        if kind in "qk":
            base = 0 if kind == "q" else 144
            for h in range(2): trread(lambda t: sub(base + (2 * ix + h) * 8, t), h, sl)
        elif kind == "o":
            p, kb2 = ix
            for h in range(2):
                if p < 4: trread_o(lambda t: sub(288 + (p * 4 + 2 * kb2 + h) * 8, t), h, sl)
                else:
                    for t in range(2):
                        A(f"ds_read_b64_tr_b16 {wreg(288 + 128 + (2*kb2+h)*4 + 2*t, 2)}, {v(vTD[h])} offset:{sl*4096 + 4*t*256}")
        else:
            trread(lambda t: v(VS + 2 * t, 2), 0, sl)
            if ix < 8: trread(lambda t: v(VS + 8 + 2 * t, 2), 1, sl)
            else: trread(lambda t: v(WVR + 2 * t, 2), 1, sl)
        A("s_waitcnt lgkmcnt(0)\ns_barrier")
        if kind == "v":
            for q in range(4 if ix < 8 else 2):
                A(f"ds_write_b128 {v(vWV)}, {v(VS+4*q,4)} offset:{ix*4096 + q*1024}")
        if c == 0: TS(3)
        if c == 9: TS(4)
        if c == NCH - 1: TS(5)
        if c == 9:
            A(f"""
            s_cmp_lg_u32 s{W}, 0
            s_cbranch_scc1 {L('armed')}
            v_mov_b32 {v(T0)}, 1
            v_mov_b32 {v(T1)}, {DBG_RARM}
            s_mov_b64 exec, 1
            buffer_atomic_add {v(T0)}, {v(T1)}, {srd(SRD_DBG)}, 0 offen sc1
            s_mov_b64 exec, -1
{L('armed')}:
            """)
        if c + 9 < NCH: wdma(c + 9)
        if c == NCH - 10:
            A(f"s_mov_b32 s{sT0}, {WS_PART}")
            for i in range(4):
                A(f"buffer_load_dwordx4 {v(D0+28+4*i,4)}, {v(vRED)}, {srd(SRD_WS)}, s{sT0} offen offset:{i*1024} sc1")
            for sl in range(3):
                A(f"s_mov_b32 s{sT0}, {WS_MEMB + sl*MSLOT}")
                A(f"buffer_load_dword {v(D0+46)}, {v(vPUB)}, {srd(SRD_WS)}, s{sT0} offen sc1")
    stamp(A, 9, s_id=s_head)
    hstamp(A, 13)
    AQ, AK, AV = D0, D0 + 4, D0 + 8
    AS = [D0 + 12 + 4 * i for i in range(4)]
    WR = [D0 + 28, D0 + 36, D0 + 44]
    korder = [16, 17] + list(range(16))
    wvl = [kk for kk in korder if kk != 17]
    lg = LQ(A, "lgkmcnt")
    def wvread(f):
        if x_nowv: return
        o = wvl[f] * 2048; d = WR[f % 3]
        A(f"ds_read_b128 {v(d,4)}, {v(vWV)} offset:{o}")
        A(f"ds_read_b128 {v(d+4,4)}, {v(vWV)} offset:{o+1024}")
        lg.push(f"W{f}", 2)
    def zero_acc():
        for i in range(12): A(f"v_mov_b32 {v(AQ+i)}, 0")
    sKV = 5
    sMODE = 6
    def kv_wait(s_need, lab):
        A(f"""
        s_cmp_ge_u32 s{sKV}, s{s_need}
        s_cbranch_scc1 {lab}_ok
        s_lshl_b32 s{sT1}, s{s_head}, 8
        s_add_u32 s{sT1}, s{sT1}, {FLAG_KV}
        v_lshrrev_b32 {v(TMP)}, 2, {v(vCON)}
        v_and_b32 {v(TMP)}, 255, {v(TMP)}
{lab}_p:
        buffer_load_dword {v(D0+40)}, {v(TMP)}, {srd(SRD_WS)}, s{sT1} offen sc1
        s_sub_u32 s{sSPIN}, s{sSPIN}, 1
        s_cbranch_scc1 {abort}
        s_waitcnt vmcnt(0)
        v_cmp_ne_u32 vcc, 4, {v(D0+40)}
        s_ff1_i32_b64 s{sKV}, vcc
        s_cmp_lt_i32 s{sKV}, 0
        s_cselect_b32 s{sKV}, 64, s{sKV}
        s_cmp_ge_u32 s{sKV}, s{s_need}
        s_cbranch_scc1 {lab}_ok
        s_sleep 4
        s_branch {lab}_p
{lab}_ok:
        """)
    A(f"""
    s_mov_b32 s{sSPIN}, {SPIN}
    v_and_b32 {v(X1)}, 31, v1
    v_lshlrev_b32 {v(X1)}, 2, {v(X1)}
{L('warm')}:
    buffer_load_dword {v(X0)}, {v(X1)}, {srd(SRD_DBG)}, 0 offen sc1
    s_sub_u32 s{sSPIN}, s{sSPIN}, 1
    s_cbranch_scc1 {abort}
    s_waitcnt vmcnt(0)
    v_readlane_b32 s{sT0}, {v(X0)}, {DBG_RARM//4}
    v_readlane_b32 s{sT1}, {v(X0)}, {DBG_OVH//4}
    s_cmp_lt_u32 s{sT0}, 32
    s_cbranch_scc1 {L('warm')}
    s_cmp_eq_u32 s{sT1}, 0
    s_cselect_b32 s{sMODE}, 0, 1
    """)
    if merged:
        A(f"""
        s_mov_b32 s{sKV}, 0
        s_cmp_lg_u32 s{W}, 3
        s_cbranch_scc1 {L('nkvi')}
        s_mov_b32 s{sT0}, {WARMD + 1}
        """)
        kv_wait(sT0, L('kvi'))
        A(f"v_lshlrev_b32 {v(X0)}, 7, v1\ns_lshl_b32 s{sT0}, s{s_head}, 13")
        for sg in range(WARMD):
            A(f"s_add_u32 s{sT1}, s{sT0}, {WS_KX + sg*32*8192}\nbuffer_load_dword {v(X1)}, {v(X0)}, {srd(SRD_WS)}, s{sT1} offen sc1")
            A(f"s_add_u32 s{sT1}, s{sT0}, {WS_VX + sg*32*8192}\nbuffer_load_dword {v(X1)}, {v(X0)}, {srd(SRD_WS)}, s{sT1} offen sc1")
        A(f"s_waitcnt vmcnt(0)\n{L('nkvi')}:")
    A(f"""
    s_mov_b32 s{sSTEP}, 0
    s_mov_b32 s{sPW}, {WS_PART}
    s_mov_b32 s{sMA}, {WS_MEMB + 2*MSLOT}
    s_mov_b32 s{sMW}, {WS_MEMB}
    s_mov_b32 s{sMR}, {WS_MEMB + MSLOT}
    s_lshl_b32 s{sSEG}, s{s_head}, 13
    s_cmp_eq_u32 s{sRED}, 0
    s_cbranch_scc1 {L('nom0')}
    v_min_u32 {v(vSP)}, -2, {v(vSP)}
    s_mov_b64 exec, s[{sEVEN}:{sEVEN+1}]
    buffer_store_dword {v(vSP)}, {v(vPUB)}, {srd(SRD_WS)}, s{sMW} offen sc1
    s_mov_b64 exec, -1
    s_nop 0
    v_mov_b32 {v(vSP)}, -1
{L('nom0')}:
    s_cmp_eq_u32 s{W}, 3
    s_cselect_b64 s[{sU}:{sU+1}], -1, 0
    s_cmp_ge_u32 s{W}, 2
    s_cselect_b32 s{sT0}, 1024, 0
    v_subrev_u32 v1, s{sT0}, {v(vCON)}
    s_waitcnt lgkmcnt(0)
    s_barrier
    """)
    zero_acc()
    if prof: A("v_mov_b32 v1, 0\ns_memtime s[98:99]\ns_waitcnt lgkmcnt(0)")
    TS(6)
    if merged: A(f"s_cmp_eq_u32 s{sMODE}, 1\ns_cbranch_scc1 {L('loopS0')}x")
    if cnt: A("s_mov_b32 s20, 0\ns_mov_b32 s21, 0\ns_memtime s[96:97]\ns_memrealtime s[98:99]\ns_waitcnt lgkmcnt(0)\ns_mov_b32 s99, s96")
    RL = D0 + 52
    def sm(acc, a_, b): A(f"v_smfmac_f32_16x16x64_bf16 {v(acc,4)}, {a_}, {b}, {v(IDX)}")
    def mf(d, a_, b_, first):
        A(f"v_mfma_f32_16x16x32_bf16 {v(d,4)}, {a_}, {b_}, {'0' if first else v(d,4)}")
    def chk(r, br):
        A(f"""
        v_max3_u32 {v(TMP)}, {v(r)}, {v(r+1)}, {v(r+2)}
        v_max_u32 {v(TMP)}, {v(TMP)}, {v(r+3)}
        v_cmp_eq_u32 vcc, -1, {v(TMP)}
        {br}
        """)
    def spin(): A(f"s_sub_u32 s{sSPIN}, s{sSPIN}, 1\ns_cbranch_scc1 {abort}")
    def cload(r, so): A(f"buffer_load_dwordx4 {v(r,4)}, {v(vC1)}, {srd(SRD_WS)}, s{so} offen{ld}")
    def pk2(d, s_):
        A(f"v_cvt_pk_bf16_f32 {v(d)}, {v(s_)}, {v(s_+1)}")
        A(f"v_cvt_pk_bf16_f32 {v(d+1)}, {v(s_+2)}, {v(s_+3)}")
    def step_body(par, sc, md):
        LP = lambda n: L(n + md + str(par))
        nxt_loop = L('loop' + md + str(1 - par))
        A.label(LP('loop'))
        A("s_waitcnt vmcnt(2)")
        A.label(LP('loop') + "x")
        lg.clear()
        A(f"""
        s_mov_b32 s{sT3}, s{sMA}
        s_mov_b32 s{sMA}, s{sMW}
        s_mov_b32 s{sMW}, s{sMR}
        s_mov_b32 s{sMR}, s{sT3}
        s_mov_b32 s{sSPIN}, {SPIN}
        s_sub_u32 s{sT0}, s{sMA}, {HI}
        s_add_u32 s{sT1}, s{sT0}, s{sB1}
        s_add_u32 s{sT2}, s{sT0}, 2048
        s_add_u32 s{sT3}, s{sT0}, s{sB3}
        s_add_u32 s{sT4}, s{sSEG}, {WS_KX - HI}
        s_add_u32 m0, s{sWB}, {L_MEMF + 3072}
        """)
        for f in range(3): wvread(f)
        A(f"s_cmp_eq_u32 s{W}, 1\ns_cbranch_scc1 {LP('cdj')}")
        if CD: A(f"s_sleep {CD}")
        P1 = AS[3]
        TQ("cgo")
        cload(RL, sT1)
        if CGAP:
            A(f"s_sleep {CGAP}")
            cload(P1, sT1)
            A("s_waitcnt vmcnt(1)")
        else:
            A.label(LP('cw0'))
            A("s_waitcnt vmcnt(0)")
        chk(RL, f"s_cbranch_vccnz {LP('cf0')}")
        A.label(LP('cd0'))
        TR(3)
        A(f"ds_write_b128 {v(vC1)}, {v(RL,4)} offset:{L_MEMF-HI}")
        A.label(LP('cdj'))
        TQ("cdj")
        A("s_waitcnt lgkmcnt(0)\ns_barrier")
        if trace: TR(4); A("s_waitcnt lgkmcnt(0)")
        lg.clear()
        if cnt: A(f"s_sub_u32 s96, {SPIN}, s{sSPIN}\ns_add_u32 s20, s20, s96")
        PH(0)
        def aread(i):
            A(f"ds_read_b128 {v(AS[i&3],4)}, {v(vAF)} offset:{L_MEMF-HI+i*512}")
            lg.push(f"A{i}")
        def dma(so): A(f"buffer_load_dwordx4 {v(vCON)}, {srd(SRD_WS)}, s{so} offen sc1 lds")
        VXF = [AS[2], AS[3]]
        TQ("start")
        for i in range(3): aread(i)
        f = 0
        nxt = 3
        late = []
        for i, kk in enumerate(korder):
            a_ = v(AS[i & 3], 4)
            TQ(f"q{i}")
            lg.wait(f"A{i}")
            sm(AQ, a_, WQ(kk))
            if i == 0: A("s_waitcnt vmcnt(0)"); aread(3); nxt = 4
            if i == EFAT and merged and eflag:
                A(f"s_and_b64 exec, s[{sU}:{sU+1}], 1\nv_mov_b32 {v(TMP)}, s{sSTEP}\nbuffer_store_dword {v(TMP)}, off, {srd(SRD_WS)}, s{sPRG} sc1\ns_mov_b64 exec, -1")
            if i == R2AT: dma(sT2)
            if i in (R2AT + 1, R2AT + 2): dma(sT4)
            if i == R3AT: dma(sT3)
            sm(AK, a_, WK(kk))
            if i == R2AT: A(f"s_add_u32 m0, s{sWB}, {L_KX}")
            if i == R2AT + 1: A(f"s_add_u32 m0, s{sWB}, {L_KX + 4096}\ns_add_u32 s{sT4}, s{sT4}, 4096")
            if i == R2AT + 2: A(f"s_mov_b32 m0, s{sM3}")
            if i in (B2AT, 12):
                A(f"s_waitcnt vmcnt({2 if i == B2AT else 0})\ns_barrier")
                while nxt <= i + 3: aread(nxt); nxt += 1
            if i == 7 and 'step' in hooks: hooks['step']()
            if i == 8: A(f"s_add_u32 s{sT0}, s{sSEG}, {WS_VX}\ns_lshr_b32 s{sT2}, s{sSEG}, 2")
            if i == 9: A(f"s_add_u32 s{sT1}, s{sT2}, {0x40000000 if nokm else WS_VM - L_Q}\ns_add_u32 s{sT4}, s{sT2}, {0x40000000 if nokm else WS_KM - L_Q}")
            if kk == 17:
                sm(AV, a_, v(WVR, 8))
            elif i >= 16:
                late.append((a_, f)); f += 1
            else:
                lg.wait(f"W{f}")
                sm(AV, a_, v(WR[f % 3], 8))
                if f + 3 < 17: wvread(f + 3)
                f += 1
            lim = 5 if i < B2AT else (13 if i < 12 else 17)
            while nxt <= min(i + 4, lim): aread(nxt); nxt += 1
            if i == 14: A(f"buffer_load_dwordx4 {v(VXF[0],4)}, {v(vVX)}, {srd(SRD_WS)}, s{sT0} offen sc1")
            if i == 15: A(f"buffer_load_dwordx4 {v(VXF[1],4)}, {v(vVX)}, {srd(SRD_WS)}, s{sT0} offen offset:256 sc1")
        TQ("qend")
        PH(1)
        if trace: A("s_waitcnt lgkmcnt(0)"); TR(5); A("s_waitcnt lgkmcnt(0)")
        S_ = D0 + 28
        QF = [D0 + 0, D0 + 4]; KF = [D0 + 12, D0 + 16]
        KXR = [D0 + 44, D0 + 48, D0 + 40]
        kxl = [(fb, kt) for fb in range(4) for kt in range(2)]
        def kxread(n):
            fb, kt = kxl[n]
            A(f"ds_read_b128 {v(KXR[n % 3],4)}, {v(vKX)} offset:{L_KX-HI+fb*2048+kt*128}")
            lg.push(f"X{n}")
        KP, ZP = D0 + 52, D0 + 54
        def latev(n):
            a_, f_ = late[n]
            lg.wait(f"W{f_}")
            sm(AV, a_, v(WR[f_ % 3], 8))
        def qk_write():
            pk2(AQ, AQ)
            A(f"ds_write_b64 {v(vQW)}, {v(AQ,2)}")
            pk2(KP, AK)
            A(f"ds_write_b64 {v(vQW)}, {v(KP,2)} offset:{L_K-L_Q}")
        latev(0)
        kxread(0); kxread(1)
        A(f"s_add_u32 s{sT0}, s{sSEG}, {WS_KX + WARMD*32*8192}\ns_add_u32 s{sT2}, s{sSEG}, {WS_VX + WARMD*32*8192}\ns_nop 1")
        TQ("s2a")
        qk_write(); lg.push("qk", 2)
        TQ("s2b")
        latev(1)
        kxread(2)
        A(f"""
        v_cmp_u_f32 vcc, {v(AK)}, {v(AK+1)}
        v_cmp_u_f32 s[{sRDLY2}:{sRDLY2+1}], {v(AK+2)}, {v(AK+3)}
        s_or_b64 vcc, vcc, s[{sRDLY2}:{sRDLY2+1}]
        s_cbranch_vccnz {LP('slow')}
        """)
        TQ("s2c")
        lg.wait("qk")
        TQ("s2d")
        A.label(LP('slowret'))
        A("s_barrier")
        TQ("s2end")
        PH(2)
        def qk_reads(fb):
            b = fb & 1
            for (dst, base, tg) in ((QF[b], 0, "Q"), (KF[b], L_K - L_Q, "K")):
                A(f"ds_read_b64_tr_b16 {v(dst,2)}, {v(vQR)} offset:{base+fb*512}")
                A(f"ds_read_b64_tr_b16 {v(dst+2,2)}, {v(vQR)} offset:{base+fb*512+128}")
                lg.push(f"{tg}{fb}", 2)
        qk_reads(0); qk_reads(1)
        pk2(ZP, AV)
        A(f"""
        s_cmp_eq_u32 s{sSTEP}, {last}
        s_cbranch_scc1 {L('done')}
        """)
        ON = D0 + 0; VMT = D0 + 8; M0_, M1_ = D0 + 14, D0 + 15
        PX = D0 + 40; PM = PX + 4
        vmt_ops = [f"v_cndmask_b32 {v(VMT)}, 0, {v(ZP)}, s[{sLO32}:{sLO32+1}]",
                   f"v_cndmask_b32 {v(VMT+1)}, 0, {v(ZP+1)}, s[{sLO32}:{sLO32+1}]",
                   f"v_mov_b32 {v(VMT+2)}, 0", f"v_mov_b32 {v(VMT+3)}, 0"]
        for fb in range(4):
            b = fb & 1
            TQ(f"fb{fb}")
            for kt in range(2):
                n = 2 * fb + kt
                lg.wait(f"Q{fb}"); lg.wait(f"X{n}")
                mf(S_ + 4 * kt, v(KXR[n % 3], 4), v(QF[b], 4), fb == 0)
                if n + 3 < 8: kxread(n + 3)
                if n == 0: A(f"buffer_store_dwordx2 {v(KP,2)}, {v(vQW)}, {srd(SRD_WS)}, s{sT4} offen sc1")
                if n == 3: A(f"buffer_store_dwordx2 {v(ZP,2)}, {v(vQW)}, {srd(SRD_WS)}, s{sT1} offen sc1")
                if fb == 1: A(vmt_ops.pop(0)); A(vmt_ops.pop(0))
                if fb == 3: A(f"v_mov_b32 {v(ON+2*kt)}, 0x3f803f80\nv_mov_b32 {v(ON+2*kt+1)}, 0x3f803f80")
            lg.wait(f"K{fb}")
            mf(S_ + 8, v(KF[b], 4), v(QF[b], 4), fb == 0)
            if fb + 2 < 4: qk_reads(fb + 2)
            if fb == 2 and not nowarm:
                A(f"""
                s_mov_b64 exec, s[{sU}:{sU+1}]
                v_lshlrev_b32 {v(vSP)}, 3, {v(vCON)}
                v_and_b32 {v(TMP)}, 0x1fff, {v(vSP)}
                buffer_load_dword {v(vSP)}, {v(TMP)}, {srd(SRD_WS)}, s{sT0} offen sc1
                buffer_load_dword {v(vSP)}, {v(TMP)}, {srd(SRD_WS)}, s{sT2} offen sc1
                """)
                if merged and not eflag:
                    A(f"""
                    s_and_b64 exec, exec, 1
                    v_mov_b32 {v(TMP)}, s{sSTEP}
                    v_mov_b32 {v(D0+52)}, s{sPRG}
                    buffer_store_dword {v(TMP)}, {v(D0+52)}, {srd(SRD_WS)}, 0 offen sc1
                    """)
                A("s_mov_b64 exec, -1")
        TQ("scend")
        PH(3)
        A(f"""
        v_cndmask_b32 {v(VMT+4)}, 0, {v(ZP)}, s[{sHI32}:{sHI32+1}]
        v_cndmask_b32 {v(VMT+5)}, 0, {v(ZP+1)}, s[{sHI32}:{sHI32+1}]
        v_mov_b32 {v(ON+4)}, 0x3f003f00
        v_mov_b32 {v(ON+5)}, 0x3f003f00
        v_max3_f32 {v(M0_)}, {v(S_+0)}, {v(S_+1)}, {v(S_+2)}
        v_mov_b32 {v(ON+6)}, 0
        v_max3_f32 {v(M1_)}, {v(S_+3)}, {v(S_+4)}, {v(S_+5)}
        v_max3_f32 {v(M0_)}, {v(M0_)}, {v(S_+6)}, {v(S_+7)}
        v_max3_f32 {v(M1_)}, {v(M1_)}, {v(S_+8)}, {v(S_+9)}
        v_max3_f32 {v(M0_)}, {v(M0_)}, {v(S_+10)}, {v(S_+11)}
        v_max_f32 {v(M0_)}, {v(M0_)}, {v(M1_)}
        v_max_f32 {v(M1_)}, {v(M0_)}, {v(M1_)}
        v_mov_b32 {v(ON+7)}, 0
        v_mov_b32 {v(PM+2)}, 0
        v_permlane32_swap_b32 {v(M0_)}, {v(M1_)}
        v_max_f32 {v(M0_)}, {v(M0_)}, {v(M1_)}
        v_max_f32 {v(M1_)}, {v(M0_)}, {v(M1_)}
        v_mov_b32 {v(PM+3)}, 0
        s_nop 0
        v_permlane16_swap_b32 {v(M0_)}, {v(M1_)}
        v_max_f32 {v(M0_)}, {v(M0_)}, {v(M1_)}
        v_mul_f32 {v(M0_)}, s{sC}, {v(M0_)}
        """)
        for i in range(6):
            A(f"v_pk_fma_f32 {v(S_+2*i,2)}, {v(S_+2*i,2)}, s[{sC}:{sC+1}], {v(M0_,2)} op_sel_hi:[1,1,0] neg_lo:[0,0,1] neg_hi:[0,0,1]")
        for i in range(12):
            A(f"v_exp_f32 {v(S_+i)}, {v(S_+i)}")
            if i >= 2 and i % 2 == 0: A(f"v_cvt_pk_bf16_f32 {v(PX+i//2-1)}, {v(S_+i-2)}, {v(S_+i-1)}")
        OT, OT1, LS = D0 + 16, D0 + 48, S_
        TQ("expend")
        A(f"""
        s_waitcnt vmcnt({(2 if nowarm else 4) + (1 if merged and not eflag else 0)})
        v_cvt_pk_bf16_f32 {v(PX+5)}, {v(S_+10)}, {v(S_+11)}
        v_mfma_f32_16x16x32_bf16 {v(LS,4)}, {v(ON,4)}, {v(PX,4)}, 0
        v_mfma_f32_16x16x32_bf16 {v(OT,4)}, {v(VXF[0],4)}, {v(PX,4)}, 0
        v_mfma_f32_16x16x32_bf16 {v(LS,4)}, {v(ON+4,4)}, {v(PM,4)}, {v(LS,4)}
        v_mfma_f32_16x16x32_bf16 {v(OT,4)}, {v(VMT,4)}, {v(PM,4)}, {v(OT,4)}
        v_mfma_f32_16x16x32_bf16 {v(OT1,4)}, {v(VXF[1],4)}, {v(PX,4)}, 0
        v_mfma_f32_16x16x32_bf16 {v(OT1,4)}, {v(VMT+2,4)}, {v(PX+2,4)}, {v(OT1,4)}
        """)
        WAo = [D0 + 32, D0 + 36, D0 + 0, D0 + 4]
        WA8 = D0 + 20
        OF = [D0 + 40, D0 + 44, D0 + 48, D0 + 52]
        zl = [WAo[p] + i for p in range(4) for i in range(4)]
        for r in zl[:5]: A(f"v_mov_b32 {v(r)}, 0")
        A(f"v_rcp_f32 {v(M0_)}, {v(LS)}")
        A(f"v_mov_b32 {v(zl[5])}, 0")
        A(f"v_pk_mul_f32 {v(OT,2)}, {v(OT,2)}, {v(M0_,2)} op_sel_hi:[1,0]")
        A(f"v_pk_mul_f32 {v(OT+2,2)}, {v(OT+2,2)}, {v(M0_,2)} op_sel_hi:[1,0]")
        pk2(OT, OT)
        A(f"ds_write_b64 {v(vOW)}, {v(OT,2)}")
        A(f"v_pk_mul_f32 {v(OT1,2)}, {v(OT1,2)}, {v(M0_,2)} op_sel_hi:[1,0]")
        A(f"v_pk_mul_f32 {v(OT1+2,2)}, {v(OT1+2,2)}, {v(M0_,2)} op_sel_hi:[1,0]")
        pk2(OT1, OT1)
        A(f"ds_write_b64 {v(vOW)}, {v(OT1,2)} offset:256")
        for r in zl[6:]: A(f"v_mov_b32 {v(r)}, 0")
        A(f"""
        s_add_u32 s{sT0}, s{sPW}, {4*65536}
        s_add_u32 s{sT1}, s{sPW}, {65536}
        s_waitcnt lgkmcnt(0)
        """)
        TQ("smend")
        PH(4)
        A("s_barrier")
        if trace: TR(0); A("s_waitcnt lgkmcnt(0)")
        lg.clear()
        for ks in range(4):
            A(f"ds_read_b128 {v(OF[ks],4)}, {v(vAF)} offset:{L_O-HI+ks*512}"); lg.push(f"O{ks}")
        SEL = D0 + 12; RT = D0 + 16; RDd = D0 + 20; RBS = [D0 + 24, D0 + 40]
        A(f"""
        s_add_u32 s{sT2}, s{sPW}, {2*65536}
        s_add_u32 s{sT3}, s{sPW}, {3*65536}
        s_add_u32 s{sSTEP}, s{sSTEP}, 1
        s_add_u32 s{sSEG}, s{sSEG}, {0 if fixseg else 32*8192}
        s_mov_b32 s{sSPIN}, {SPIN}
        """)
        for r in range(4): A(f"v_cndmask_b32 {v(SEL+r)}, 0, {v(SELV)}, s[{sSEL+2*r}:{sSEL+2*r+1}]")
        TQ("wostart")
        PH(5)
        tagop = lambda r: (f"v_or_b32 {v(r)}, 1, {v(r)}" if par else f"v_and_b32 {v(r)}, -2, {v(r)}")
        def out_ops(a0, soff, half=False):
            ops = [f"v_cvt_pk_bf16_f32 {v(a0)}, {v(a0)}, {v(a0+1)}", f"v_cvt_pk_bf16_f32 {v(a0+1)}, {v(a0+2)}, {v(a0+3)}",
                   tagop(a0), tagop(a0 + 1)]
            st = f"buffer_store_dwordx2 {v(a0,2)}, {v(vPST)}, {srd(SRD_WS)}, s{soff} offen{sc}"
            if half: st = f"s_mov_b64 exec, s[{sLO32}:{sLO32+1}]\n{st}\ns_mov_b64 exec, -1"
            return ops + [st]
        mfl = [("d", ks) for ks in range(4)] + [(p, ks) for p in range(4) for ks in range(4)]
        groups = [(3, out_ops(WA8, sT0, True))] + [(7 + 4 * p, out_ops(WAo[p], [sPW, sT1, sT2, sT3][p])) for p in range(4)]
        ic = [0]; pos = {}
        def emit(s_):
            A(s_); ic[0] += len([x for x in s_.split("\n") if x.strip()])
        cur = []; gi = 0
        for n, (p, ks) in enumerate(mfl):
            if p == "d":
                n0 = len(A.lines); lg.wait(f"O{ks}"); ic[0] += len(A.lines) - n0
                emit(f"v_mfma_f32_16x16x32_bf16 {v(WA8,4)}, {v(OF[ks],4)}, {WO8(ks)}, {'0' if ks == 0 else v(WA8,4)}")
            else:
                emit(f"v_smfmac_f32_16x16x64_bf16 {v(WAo[p],4)}, {v(OF[ks],4)}, {WO(p,ks)}, {v(IDX)}")
            pos[n] = ic[0]
            k = 0
            while k < 2:
                if not cur and gi < len(groups) and groups[gi][0] <= n and ic[0] - pos[groups[gi][0]] >= 8:
                    cur = list(groups[gi][1]); gi += 1
                if not cur: break
                emit(cur.pop(0)); k += 1
        while cur or gi < len(groups):
            if not cur:
                need = 8 - (ic[0] - pos[groups[gi][0]])
                if need > 0: emit(f"s_nop {need-1}"); ic[0] += need - 1
                cur = list(groups[gi][1]); gi += 1
            emit(cur.pop(0))
        TQ("woend")
        PH(6)
        TR(1)
        A(f"s_cmp_eq_u32 s{sRED}, 0\ns_cbranch_scc1 {LP('nored')}")
        def rload(sidx):
            for i in range(4):
                A(f"buffer_load_dwordx4 {v(RBS[sidx]+4*i,4)}, {v(vRED)}, {srd(SRD_WS)}, s{sPW} offen offset:{i*1024}{ld}")
        def rproc(sidx, br):
            for i in range(4):
                b = RBS[sidx] + 4 * i
                A(f"s_waitcnt vmcnt({(7 if RGAP else 3)-i})")
                mf(RDd, v(SEL, 4), v(b, 4), i == 0)
                o3 = (lambda d, x, y, z: f"v_bitop3_b32 {v(d)}, {v(x)}, {v(y)}, {v(z)} bitop3:0x80") if par else (lambda d, x, y, z: f"v_or3_b32 {v(d)}, {v(x)}, {v(y)}, {v(z)}")
                if i == 0:
                    A(o3(RT, b, b + 1, b + 2)); A(o3(RT, RT, b + 3, b + 3))
                else:
                    A(o3(RT, RT, b, b + 1)); A(o3(RT, RT, b + 2, b + 3))
            A(f"v_and_b32 {v(RT)}, 1, {v(RT)}\nv_cmp_ne_u32 vcc, {par}, {v(RT)}\n{br}")
        A(f"""
        s_mov_b32 s{sT0}, s{sRDLY}
    {LP('rdl')}:
        s_cmp_eq_u32 s{sT0}, 0
        s_cbranch_scc1 {LP('rgo')}
        s_sleep 1
        s_sub_u32 s{sT0}, s{sT0}, 1
        s_branch {LP('rdl')}
    {LP('rgo')}:
        """)
        TQ("rgo")
        rload(0)
        zero_acc()
        if RGAP:
            A(f"s_sleep {RGAP}")
            rload(1)
        A.label(LP('rp0'))
        rproc(0, f"s_cbranch_vccnz {LP('rf0')}")
        A.label(LP('rdone'))
        TQ("rdone")
        A(f"""
        {'s_sub_u32 s96, %d, s%d' % (SPIN, sSPIN) if cnt else 's_nop 0'}
        {'s_add_u32 s21, s21, s96' if cnt else 's_nop 0'}
        s_nop 0
        v_cndmask_b32 {v(RT)}, {v(RDd)}, {v(RDd+2)}, s[{sHI32}:{sHI32+1}]
        v_cndmask_b32 {v(RT+1)}, {v(RDd+1)}, {v(RDd+3)}, s[{sHI32}:{sHI32+1}]
        v_cndmask_b32 {v(RT+3)}, {v(RT+1)}, {v(RT)}, s[{sN8}:{sN8+1}]
        v_cndmask_b32 {v(RT+2)}, {v(RT)}, {v(RT+1)}, s[{sN8}:{sN8+1}]
        s_nop 0
        v_add_f32_dpp {v(RT+2)}, {v(RT+3)}, {v(RT+2)} row_ror:8 row_mask:0xf bank_mask:0xf
        v_mov_b32 {v(RT+3)}, {v(RT+2)}
        s_nop 1
        v_permlane16_swap_b32 {v(RT+2)}, {v(RT+3)}
        v_cvt_pk_bf16_f32 {v(RT+2)}, {v(RT+2)}, {v(RT+3)}
        v_min_u32 {v(TMP)}, -2, {v(RT+2)}
        s_mov_b64 exec, s[{sPM}:{sPM+1}]
        buffer_store_dword {v(TMP)}, {v(vPUB)}, {srd(SRD_WS)}, s{sMW} offen{sc}
        buffer_store_dword {v(vSP)}, {v(vPUB)}, {srd(SRD_WS)}, s{sMA} offen{sc}
        s_mov_b64 exec, -1
        """)
        TQ("pub")
        PH(7)
        TR(2)
        if trace: A("s_waitcnt lgkmcnt(0)")
        A(f"s_branch {nxt_loop}")
        A.label(LP('nored'))
        if trace: A("s_waitcnt vmcnt(0)"); TR(2); A("s_waitcnt lgkmcnt(0)")
        zero_acc()
        if merged:
            A(f"s_cmp_lg_u32 s{W}, 3\ns_cbranch_scc1 {LP('nkv')}\ns_add_u32 s{sT0}, s{sSTEP}, {WARMD + 1}\ns_min_u32 s{sT0}, s{sT0}, 64")
            kv_wait(sT0, LP('kv'))
            A.label(LP('nkv'))
        if tstep:
            A(f"s_cmp_lg_u32 s{W}, 2\ns_cbranch_scc1 {LP('nts')}\ns_memrealtime s[96:97]\ns_waitcnt lgkmcnt(0)\ns_mov_b32 m0, s{sSTEP}\nv_writelane_b32 {v(vSP)}, s96, m0\n{LP('nts')}:")
        if CDN: A(f"s_sleep {CDN}")
        A(f"s_branch {nxt_loop}x")
        A.label(LP('rf0'))
        rload(0); spin()
        if RGAP:
            rproc(1, f"s_cbranch_vccz {LP('rdone')}")
            rload(1); spin()
        A(f"s_branch {LP('rp0')}")
        A.label(LP('cf0'))
        cload(RL, sT1); spin()
        if CGAP:
            A("s_waitcnt vmcnt(1)")
            chk(P1, f"s_cbranch_vccz {LP('cd1')}")
            cload(P1, sT1); spin()
            A("s_waitcnt vmcnt(1)")
            chk(RL, f"s_cbranch_vccz {LP('cd0')}")
            A(f"s_branch {LP('cf0')}")
            A.label(LP('cd1'))
            TR(3)
            A(f"ds_write_b128 {v(vC1)}, {v(P1,4)} offset:{L_MEMF-HI}\ns_branch {LP('cdj')}")
        else:
            A(f"s_branch {LP('cw0')}")
        A.label(LP('slow'))
        A(f"s_sub_u32 s{sT3}, s{sMA}, {HI}\ns_waitcnt lgkmcnt(0)\ns_nop 7")
        zero_acc()
        for kp in range(9):
            lab = LP(f'sp{kp}_')
            for h in range(2):
                kk = 2 * kp + h
                if kk != 17:
                    A(f"ds_read_b128 {v(WR[h],4)}, {v(vWV)} offset:{kk*2048}\nds_read_b128 {v(WR[h]+4,4)}, {v(vWV)} offset:{kk*2048+1024}")
            A(f"""
{lab}:
            buffer_load_dwordx4 {v(AS[0],4)}, {v(vAF)}, {srd(SRD_WS)}, s{sT3} offen sc1
            buffer_load_dwordx4 {v(AS[1],4)}, {v(vAF)}, {srd(SRD_WS)}, s{sT3} offen offset:512 sc1
            """)
            spin()
            A(f"""
            s_waitcnt vmcnt(0) lgkmcnt(0)
            v_max3_u32 {v(TMP)}, {v(AS[0])}, {v(AS[0]+1)}, {v(AS[0]+2)}
            v_max3_u32 {v(TMP)}, {v(TMP)}, {v(AS[0]+3)}, {v(AS[1])}
            v_max3_u32 {v(TMP)}, {v(TMP)}, {v(AS[1]+1)}, {v(AS[1]+2)}
            v_max_u32 {v(TMP)}, {v(TMP)}, {v(AS[1]+3)}
            v_cmp_eq_u32 vcc, -1, {v(TMP)}
            s_cbranch_vccnz {lab}
            """)
            for h in range(2):
                kk = 2 * kp + h
                sm(AQ, v(AS[h], 4), WQ(kk)); sm(AK, v(AS[h], 4), WK(kk)); sm(AV, v(AS[h], 4), v(WR[h], 8) if kk != 17 else v(WVR, 8))
            A(f"s_add_u32 s{sT3}, s{sT3}, 1024")
        if prof: A(f"s_mov_b64 exec, {1 << 10}\nv_add_u32 v1, 63, v1\ns_mov_b64 exec, -1")
        if cnt: A("s_add_u32 s20, s20, 0x10000")
        A("s_nop 7")
        qk_write()
        A(f"ds_read_b128 {v(KXR[2],4)}, {v(vKX)} offset:{L_KX-HI+2048}")
        A(f"s_waitcnt lgkmcnt(0)\ns_branch {LP('slowret')}")
    step_body(0, sc, ''); step_body(1, sc, '')
    if merged:
        step_body(0, ' sc1', 'S'); step_body(1, ' sc1', 'S')
    A.label(L('done'))
    A(f"""
    s_lshr_b32 s{sT2}, s{sSEG}, 2
    s_add_u32 s{sT1}, s{sT2}, {WS_VM - L_Q}
    s_add_u32 s{sT4}, s{sT2}, {WS_KM - L_Q}
    buffer_store_dwordx2 {v(D0+52,2)}, {v(vQW)}, {srd(SRD_WS)}, s{sT4} offen sc1
    buffer_store_dwordx2 {v(D0+54,2)}, {v(vQW)}, {srd(SRD_WS)}, s{sT1} offen sc1
    """)
    A("s_waitcnt vmcnt(0) lgkmcnt(0)")
    if merged:
        A(f"""
        s_barrier
        s_cmp_lg_u32 s{W}, 3
        s_cbranch_scc1 {L('nfin')}
        v_mov_b32 {v(TMP)}, 64
        v_mov_b32 {v(D0+52)}, s{sPRG}
        s_mov_b64 exec, 1
        buffer_store_dword {v(TMP)}, {v(D0+52)}, {srd(SRD_WS)}, 0 offen sc1
        s_mov_b64 exec, -1
        s_waitcnt vmcnt(0)
{L('nfin')}:
        """)
    if cnt:
        A(f"v_mov_b32 v1, s20\ns_mov_b64 exec, 2\nv_mov_b32 v1, s21\ns_mov_b64 exec, -1")
        A("s_memtime s[96:97]\ns_memrealtime s[100:101]\ns_waitcnt lgkmcnt(0)\ns_sub_u32 s96, s96, s99\ns_sub_u32 s100, s100, s98")
        A("s_mov_b64 exec, 4\nv_mov_b32 v1, s96\ns_mov_b64 exec, 8\nv_mov_b32 v1, s100\ns_mov_b64 exec, -1")
    if trace:
        for i in range(6): A(f"s_mov_b64 exec, {1 << i}\nv_mov_b32 v1, s{8+2*i}")
        A("s_mov_b64 exec, -1")
    if tq:
        for i in range(len(tq)): A(f"s_mov_b64 exec, {1 << i}\nv_mov_b32 v1, s{8+2*i}")
        A("s_mov_b64 exec, -1")
    if tstart:
        TS(7)
        A("s_mov_b32 s8, s100\ns_mov_b32 s10, s98")
        for i in range(8): A(f"s_mov_b64 exec, {1 << i}\nv_mov_b32 v1, s{8+2*i}")
        A("s_mov_b64 exec, -1")
    if tstep: A(f"v_mov_b32 v1, {v(vSP)}")
    if prof or cnt or trace or tq or tstep or tstart:
        A(f"""
        s_lshl_b32 s96, s{s_head}, 2
        s_add_u32 s96, s96, s{W}
        s_lshl_b32 s96, s96, 8
        s_add_u32 s96, s96, {WS_STAMP + 0x10000}
        v_lshrrev_b32 v28, 2, {v(vCON)}
        v_and_b32 v28, 255, v28
        buffer_store_dword v1, v28, {srd(SRD_WS)}, s96 offen
        s_waitcnt vmcnt(0)
        """)
    stamp(A, 10, s_id=s_head)
    hstamp(A, 14)
```

```python
from common import *
from mod_r4 import f32bits, CEXP

NEGBIG = -1.0e9 / (128 ** -0.5)

XV_LANE16, XV_KM, XV_VM, XV_V = 2, 3, 4, 5
def X_setup(A):
    A(f"""
    v_lshlrev_b32 {v(XV_LANE16)}, 4, v1
    v_bfe_u32 {v(XV_KM)}, v1, 2, 2
    v_lshrrev_b32 v6, 5, v1
    v_lshl_add_u32 {v(XV_KM)}, v6, 2, {v(XV_KM)}
    v_lshlrev_b32 {v(XV_KM)}, 4, {v(XV_KM)}
    v_and_b32 v7, 1, v1
    v_lshl_add_u32 {v(XV_KM)}, v7, 3, {v(XV_KM)}
    s_lshl_b32 s60, s{S_WAVE}, 11
    v_add_u32 {v(XV_KM)}, s60, {v(XV_KM)}
    v_and_b32 {v(XV_VM)}, 31, v1
    v_lshlrev_b32 {v(XV_VM)}, 4, {v(XV_VM)}
    v_lshl_add_u32 {v(XV_VM)}, v6, 3, {v(XV_VM)}
    s_lshl_b32 s60, s{S_WAVE}, 9
    v_add_u32 {v(XV_VM)}, s60, {v(XV_VM)}
    s_lshl_b32 s60, s{S_WAVE}, 11
    v_add_u32 {v(XV_V)}, s60, {v(XV_LANE16)}
    """)

XQ, XV_, XSX, XT0 = 184, 216, 224, 240
def X_pre(A, s_item):
    Q, K, V_, SX, T0, T1 = XQ, 8, XV_, XSX, XT0, 40
    A(f"""
    s_lshl_b32 s60, s{s_item}, 13
    s_add_u32 s61, s60, {WS_QX}
    s_add_u32 s62, s60, {WS_KX}
    s_add_u32 s63, s60, {WS_VX}
    """)
    for i in range(8):
        if i == 4:
            A("s_add_u32 s61, s61, 4096\ns_add_u32 s62, s62, 4096")
        A(f"buffer_load_dwordx4 {v(Q+4*i,4)}, {v(XV_LANE16)}, {srd(SRD_WS)}, s61 offen offset:{(i&3)*1024} sc1")
        A(f"buffer_load_dwordx4 {v(K+4*i,4)}, {v(XV_LANE16)}, {srd(SRD_WS)}, s62 offen offset:{(i&3)*1024} sc1")
    for j in range(2):
        A(f"buffer_load_dwordx4 {v(V_+4*j,4)}, {v(XV_V)}, {srd(SRD_WS)}, s63 offen offset:{j*1024} sc1")
    for i in range(8):
        A(f"s_waitcnt vmcnt({16 - 2*i})")
        A(f"v_mfma_f32_32x32x16_bf16 {v(SX,16)}, {v(K+4*i,4)}, {v(Q+4*i,4)}, {'0' if i == 0 else v(SX,16)}")
    A(f"v_mov_b32 {v(T1)}, {f32bits(NEGBIG)}\ns_nop 8")
    for i in range(16):
        m = 0
        for l in range(64):
            key = 8 * (i // 4) + 4 * (l >> 5) + i % 4
            if key <= (l & 31): m |= 1 << l
        A(f"s_mov_b32 s60, {m & 0xffffffff}\ns_mov_b32 s61, {m >> 32}")
        A(f"v_cndmask_b32 {v(SX+i)}, {v(T1)}, {v(SX+i)}, s[60:61]")
    A(f"v_max3_f32 {v(T0)}, {v(SX)}, {v(SX+1)}, {v(SX+2)}")
    for i in range(3, 15, 2):
        A(f"v_max3_f32 {v(T0)}, {v(T0)}, {v(SX+i)}, {v(SX+i+1)}")
    A(f"v_max_f32 {v(T0)}, {v(T0)}, {v(SX+15)}\ns_waitcnt vmcnt(0)")

def X_post(A, s_item, sc=" sc1"):
    Q, V_, SX, T0 = XQ, XV_, XSX, XT0
    KM, VM, SM, P0, P1, PM, O, T1 = 8, 40, 44, 60, 64, 68, 72, 88
    A(f"""
    s_lshl_b32 s60, s{s_item}, 11
    s_add_u32 s61, s60, {WS_KM}
    s_add_u32 s62, s60, {WS_VM}
    s_lshl_b32 m0, s{S_WAVE}, 11
    s_nop 0
    """)
    for i in range(2):
        A(f"buffer_load_dwordx4 {v(XV_LANE16)}, {srd(SRD_WS)}, s61 offen offset:{i*1024} sc1 lds")
    A(f"buffer_load_dwordx2 {v(VM,2)}, {v(XV_VM)}, {srd(SRD_WS)}, s62 offen sc1")
    A(f"v_mov_b32 {v(VM+2)}, 0\nv_mov_b32 {v(VM+3)}, 0\nv_mov_b32 {v(PM+2)}, 0\nv_mov_b32 {v(PM+3)}, 0")
    A("s_waitcnt vmcnt(1)")
    for i in range(8):
        A(f"ds_read_b64_tr_b16 {v(KM+4*i,2)}, {v(XV_KM)} offset:{i*256}")
        A(f"ds_read_b64_tr_b16 {v(KM+4*i+2,2)}, {v(XV_KM)} offset:{i*256+128}")
        if i == 6: A("s_waitcnt lgkmcnt(8)")
    for i in range(8):
        A(f"s_waitcnt lgkmcnt({min(8, 14 - 2*i)})")
        A(f"v_mfma_f32_32x32x16_bf16 {v(SM,16)}, {v(KM+4*i,4)}, {v(Q+4*i,4)}, {'0' if i == 0 else v(SM,16)}")
    A(f"""
    s_mov_b32 s60, {f32bits(CEXP)}
    s_nop 10
    v_max3_f32 {v(T0)}, {v(T0)}, {v(SM)}, {v(SM+1)}
    v_max3_f32 {v(T0)}, {v(T0)}, {v(SM+2)}, {v(SM+3)}
    v_mov_b32 {v(T1)}, {v(T0)}
    s_nop 1
    v_permlane32_swap_b32 {v(T0)}, {v(T1)}
    v_max_f32 {v(T0)}, {v(T0)}, {v(T1)}
    v_mul_f32 {v(T0)}, s60, {v(T0)}
    """)
    regs = [SX + i for i in range(16)] + [SM + i for i in range(4)]
    for r in regs: A(f"v_fma_f32 {v(r)}, {v(r)}, s60, -{v(T0)}")
    for r in regs: A(f"v_exp_f32 {v(r)}, {v(r)}")
    A("s_nop 0")
    A(f"v_add_f32 {v(T0)}, {v(regs[0])}, {v(regs[1])}")
    for r in regs[2:]: A(f"v_add_f32 {v(T0)}, {v(T0)}, {v(r)}")
    A(f"""
    v_mov_b32 {v(T1)}, {v(T0)}
    s_nop 1
    v_permlane32_swap_b32 {v(T0)}, {v(T1)}
    v_add_f32 {v(T0)}, {v(T0)}, {v(T1)}
    v_rcp_f32 {v(T0)}, {v(T0)}
    s_nop 0
    """)
    for r in regs: A(f"v_mul_f32 {v(r)}, {v(r)}, {v(T0)}")
    for i in range(8): A(f"v_cvt_pk_bf16_f32 {v(P0+i)}, {v(SX+2*i)}, {v(SX+2*i+1)}")
    for i in range(2): A(f"v_cvt_pk_bf16_f32 {v(PM+i)}, {v(SM+2*i)}, {v(SM+2*i+1)}")
    A(f"""
    s_waitcnt vmcnt(0)
    s_nop 0
    v_mfma_f32_32x32x16_bf16 {v(O,16)}, {v(V_,4)}, {v(P0,4)}, 0
    v_mfma_f32_32x32x16_bf16 {v(O,16)}, {v(V_+4,4)}, {v(P1,4)}, {v(O,16)}
    v_mfma_f32_32x32x16_bf16 {v(O,16)}, {v(VM,4)}, {v(PM,4)}, {v(O,16)}
    s_lshl_b32 s60, s{s_item}, 13
    s_add_u32 s60, s60, {WS_OX}
    s_nop 10
    """)
    for i in range(8): A(f"v_cvt_pk_bf16_f32 {v(O+i)}, {v(O+2*i)}, {v(O+2*i+1)}")
    A(f"buffer_store_dwordx4 {v(O,4)}, {v(XV_V)}, {srd(SRD_WS)}, s60 offen{sc}")
    A(f"buffer_store_dwordx4 {v(O+4,4)}, {v(XV_V)}, {srd(SRD_WS)}, s60 offen offset:1024{sc}")

def X_item(A, s_item):
    X_pre(A, s_item); X_post(A, s_item)

OV_L16, OV_RD, OV_ST, OV_A = 160, 161, 162, 163
O_RED = 131072
def O_setup(A, s_cb, keep=False):
    T0, T1, VD, VT = 164, 165, 166, 167
    A(f"""
    v_lshrrev_b32 {v(T0)}, 2, v1
    v_mul_u32_u24 {v(VD)}, 1152, {v(T0)}
    v_and_b32 {v(T0)}, 3, v1
    v_lshl_add_u32 {v(VD)}, {v(T0)}, 4, {v(VD)}
    s_lshl_b32 s60, s{s_cb}, 6
    s_mul_i32 s61, s{S_WAVE}, {1024*1152}
    s_add_u32 s60, s60, s61
    s_lshl_b32 s63, s{S_WAVE}, 15
    v_bfe_u32 {v(T0)}, v1, 2, 2
    v_lshrrev_b32 {v(T1)}, 5, v1
    v_lshl_add_u32 {v(T0)}, {v(T1)}, 2, {v(T0)}
    v_lshlrev_b32 {v(VT)}, 6, {v(T0)}
    v_bfe_u32 {v(T0)}, v1, 4, 1
    v_lshl_add_u32 {v(VT)}, {v(T0)}, 5, {v(VT)}
    v_and_b32 {v(T0)}, 3, v1
    v_lshl_add_u32 {v(VT)}, {v(T0)}, 3, {v(VT)}
    v_add_u32 {v(VT)}, s63, {v(VT)}
    """)
    def dma(hh):
        for n in range(8):
            A(f"s_add_u32 m0, s63, {(hh & 3)*8192 + n*1024}")
            A(f"s_add_u32 s62, s60, {(hh*128 + n*16)*1152}")
            A(f"buffer_load_dwordx4 {v(VD)}, {srd(SRD_WO)}, s62 offen lds")
    for hh in range(4): dma(hh)
    for hh in range(8):
        A(f"s_waitcnt vmcnt({min(3, 7-hh)*8})")
        for ks in range(8):
            for t in range(2):
                off = (hh & 3) * 8192 + (ks * 16 + t * 8) * 64
                A(f"ds_read_b64_tr_b16 {a((hh*8+ks)*4 + 2*t, 2)}, {v(VT)} offset:{off}")
        if hh + 4 < 8:
            A("s_waitcnt lgkmcnt(0)")
            dma(hh + 4)
    A("s_waitcnt lgkmcnt(0)")
    if not keep: O_addr(A, s_cb)

def O_addr(A, s_cb):
    T0 = 164
    A(f"""
    v_lshlrev_b32 {v(OV_A)}, 4, v1
    s_lshl_b32 s60, s{S_WAVE}, 12
    s_add_u32 s60, s60, {O_RED}
    v_add_u32 {v(OV_L16)}, s60, {v(OV_A)}
    s_lshl_b32 s60, s{S_WAVE}, 10
    s_add_u32 s60, s60, {O_RED}
    v_add_u32 {v(OV_RD)}, s60, {v(OV_A)}
    s_lshl_b32 s60, s{S_WAVE}, 16
    v_add_u32 {v(OV_A)}, s60, {v(OV_A)}
    v_and_b32 {v(T0)}, 31, v1
    v_mul_u32_u24 {v(OV_ST)}, 2304, {v(T0)}
    v_lshrrev_b32 {v(T0)}, 5, v1
    v_lshl_add_u32 {v(OV_ST)}, {v(T0)}, 3, {v(OV_ST)}
    s_lshl_b32 s60, s{s_cb}, 6
    s_lshl_b32 s61, s{S_WAVE}, 4
    s_add_u32 s60, s60, s61
    s_add_u32 s60, s60, 1152
    v_add_u32 {v(OV_ST)}, s60, {v(OV_ST)}
    """)

def O_item(A, s_seg, s_par):
    NR = 32
    F = 8
    ACC = 168
    R = 136
    A(f"""
    s_lshl_b32 s60, s{s_seg}, 18
    s_add_u32 s60, s60, {WS_OX}
    """)
    def ld(i):
        if i % 4 == 0 and i > 0:
            A("s_add_u32 s60, s60, 4096")
        A(f"buffer_load_dwordx4 {v(F+4*(i%NR),4)}, {v(OV_A)}, {srd(SRD_WS)}, s60 offen offset:{(i&3)*1024} sc1")
    for i in range(NR): ld(i)
    for i in range(64):
        A(f"s_waitcnt vmcnt({min(NR-1, 63-i)})")
        A(f"v_mfma_f32_32x32x16_bf16 {v(ACC,16)}, {a(4*i,4)}, {v(F+4*(i%NR),4)}, {'0' if i == 0 else v(ACC,16)}")
        if i + NR < 64: ld(i + NR)
    A(f"""
    v_add_u32 {v(R)}, s{s_par}, {v(OV_L16)}
    v_add_u32 {v(R+1)}, s{s_par}, {v(OV_RD)}
    s_xor_b32 s{s_par}, s{s_par}, 16384
    s_mul_i32 s60, s{s_seg}, {32*2304}
    s_nop 8
    """)
    for q in range(4):
        A(f"ds_write_b128 {v(R)}, {v(ACC+4*q,4)} offset:{q*1024}")
    A("s_waitcnt lgkmcnt(0)\ns_barrier")
    for q in range(4):
        A(f"ds_read_b128 {v(ACC+4*q,4)}, {v(R+1)} offset:{q*4096}")
    A("s_waitcnt lgkmcnt(2)")
    A(f"v_pk_add_f32 {v(ACC,2)}, {v(ACC,2)}, {v(ACC+4,2)}\nv_pk_add_f32 {v(ACC+2,2)}, {v(ACC+2,2)}, {v(ACC+6,2)}")
    A("s_waitcnt lgkmcnt(0)")
    A(f"v_pk_add_f32 {v(ACC+8,2)}, {v(ACC+8,2)}, {v(ACC+12,2)}\nv_pk_add_f32 {v(ACC+10,2)}, {v(ACC+10,2)}, {v(ACC+14,2)}")
    A(f"v_pk_add_f32 {v(ACC,2)}, {v(ACC,2)}, {v(ACC+8,2)}\nv_pk_add_f32 {v(ACC+2,2)}, {v(ACC+2,2)}, {v(ACC+10,2)}")
    A(f"""
    v_cvt_pk_bf16_f32 {v(ACC)}, {v(ACC)}, {v(ACC+1)}
    v_cvt_pk_bf16_f32 {v(ACC+1)}, {v(ACC+2)}, {v(ACC+3)}
    buffer_store_dwordx2 {v(ACC,2)}, {v(OV_ST)}, {srd(SRD_OUT)}, s60 offen
    """)
```

```python
from asmlib import *

NAME = "concat_heads__spectral_gfnet__memory_aug_recurrent_mem_tr__prompt"

MB = 1 << 20
RECSZ   = 32 * 8192
WS_KX   = 2 * MB
WS_VX   = 18 * MB
WS_QX   = 34 * MB
WS_KM   = 50 * MB
WS_VM   = WS_KM + 2048
WS_OX   = 66 * MB
WS_PART = 82 * MB
WS_MEMB = 82 * MB + 512 * 1024
WS_FLAG = 82 * MB + 576 * 1024
WS_F1   = 84 * MB
WS_F3   = 85 * MB
WS_WT   = 86 * MB
WS_X1   = 89 * MB
WS_Y1   = 92 * MB
WS_SIZE = 256 * MB

S_WG = 2
SRD_AX, SRD_WR, SRD_WI, SRD_BX, SRD_M0, SRD_WQ, SRD_WK, SRD_WV, SRD_WO, SRD_OUT, SRD_DBG, SRD_WS = [8 + 4 * i for i in range(12)]
S_WAVE = 56
S_ROLE = 57
def srd(b): return "s[%d:%d]" % (b, b + 3)

SIZES = {SRD_AX: 2048*576*2, SRD_WR: 2048*289*2, SRD_WI: 2048*289*2, SRD_BX: 2048*576*2, SRD_M0: 8*576*2,
         SRD_WQ: 576*4096*2, SRD_WK: 576*4096*2, SRD_WV: 576*4096*2, SRD_WO: 576*4096*2,
         SRD_OUT: 2048*1152*2, SRD_DBG: 256, SRD_WS: WS_SIZE}
KOFF = {SRD_AX: 0, SRD_WR: 8, SRD_WI: 16, SRD_BX: 24, SRD_M0: 32, SRD_WQ: 40, SRD_WK: 48, SRD_WV: 56, SRD_WO: 64,
        SRD_OUT: 80, SRD_DBG: 88, SRD_WS: 96}

def prologue(A, nwg, endlabel):
    A(f"s_cmp_ge_u32 s2, {nwg}")
    A(f"s_cbranch_scc1 {endlabel}")
    for b, off in KOFF.items():
        A(f"s_load_dwordx2 s[{b}:{b+1}], s[0:1], {off}")
    A("v_lshrrev_b32 v2, 6, v0")
    A("v_and_b32 v1, 63, v0")
    A(f"v_readfirstlane_b32 s{S_WAVE}, v2")
    for b in KOFF:
        A(f"s_mov_b32 s{b+2}, {SIZES[b]}")
        A(f"s_mov_b32 s{b+3}, 0x20000")
    A("s_waitcnt lgkmcnt(0)")

def wreg(i, n):
    if i + n <= 256:
        return a(i, n)
    assert i >= 256
    return v(80 + i - 256, n)

WS_STAMP = 100 * MB
STAMPS = False
STAMP_ID = 2
def stamp(A, idx, vt=78, s_id=None):
    import common
    if not common.STAMPS: return
    if s_id is None: s_id = common.STAMP_ID
    l = A.newlabel("ST")
    A(f"""
    s_cmp_lg_u32 s{S_WAVE}, 0
    s_cbranch_scc1 {l}
    s_memrealtime s[96:97]
    s_lshl_b32 s98, s{s_id}, 8
    s_add_u32 s98, s98, {WS_STAMP + idx*4}
    s_waitcnt lgkmcnt(0)
    v_mov_b32 {v(vt)}, s96
    v_mov_b32 {v(vt+1)}, 0
    s_mov_b64 exec, 1
    buffer_store_dword {v(vt)}, {v(vt+1)}, {srd(SRD_WS)}, s98 offen
    s_mov_b64 exec, -1
{l}:
    """)
DBG_XCD = 0
DBG_TOT = 32
DBG_OVF = 80
DBG_RARM = 40
DBG_INIT = 44
DBG_F0 = 68
DBG_F1 = 72
DBG_F2 = 76
DBG_ABORT = 36+28
FLAG_KV = WS_FLAG
FLAG_OX = WS_FLAG + 65536
OXS_LOG = 7
FLAG_RP = WS_FLAG + 16384

HST = False
def hstamp(A, dw, neg=False, vt=78):
    import common
    if not common.HST: return
    l = A.newlabel("HS")
    A(f"""
    s_cmp_lg_u32 s{S_WAVE}, 0
    s_cbranch_scc1 {l}
    s_memrealtime s[96:97]
    s_waitcnt lgkmcnt(0)
    {'s_not_b32 s96, s96' if neg else 's_nop 0'}
    v_mov_b32 {v(vt)}, s96
    v_mov_b32 {v(vt+1)}, {dw*4}
    s_mov_b64 exec, 1
    buffer_atomic_umax {v(vt)}, {v(vt+1)}, {srd(SRD_DBG)}, 0 offen sc1
    s_mov_b64 exec, -1
{l}:
    """)
DBG_OVH = 84
def claim_off(x): return 192 if x == 0 else [0, 128, 160, 96, 4, 132, 164][x - 1]
```

```python
from common import *
from mod_p import *
from mod_r8 import mod_R
from mod_r4 import SPIN
from mod_xo import *
from mod_f import *

NW = 224
EV_LDS = 16384
sWID, sHEAD, sGRP, sCB, sOG, sXN, sON, sPAR, sITEM, sCG, sTG, sKAP, sSP, sREC = range(76, 90)

BC_LDS = 163836
def claim_issue(A, FX=0):
    A(f"""
    s_getreg_b32 s59, hwreg(HW_REG_XCC_ID)
    s_and_b32 s59, s59, 15
    """)
    if FX:
        A("s_cmp_ge_u32 s2, 128\ns_cselect_b32 s60, 1, 0\ns_max_u32 s59, s59, s60")
    A(f"""
    s_bfe_u32 s60, s2, 0x50003
    s_lshl_b32 s58, s59, 5
    s_add_u32 s58, s58, s60
    v_mov_b32 v30, -1
    v_mov_b32 v31, 0
    s_cmp_lg_u32 s{S_WAVE}, 0
    s_cbranch_scc1 RA_iss
    s_cmp_ge_u32 s59, 8
    s_cbranch_scc1 RA_iss
    s_lshl_b32 s61, 1, s60
    s_mov_b32 s62, {claim_off(0)}
    """)
    for x in range(1, 8):
        A(f"s_cmp_eq_u32 s59, {x}\ns_cselect_b32 s62, {claim_off(x)}, s62")
    A(f"""
    v_mov_b32 v30, s61
    v_mov_b32 v31, s62
    s_mov_b64 exec, 1
    buffer_atomic_or v30, v31, {srd(SRD_DBG)}, 0 offen sc0 sc1
    s_mov_b64 exec, -1
RA_iss:
    """)

def claim_resolve(A, t, younger, abort):
    A(f"""
    s_cmp_lg_u32 s{S_WAVE}, 0
    s_cbranch_scc1 RA{t}_bc
    s_and_b32 s60, s58, 31
    s_waitcnt vmcnt({younger})
RA{t}_try:
    v_readfirstlane_b32 s61, v30
    s_bitcmp0_b32 s61, s60
    s_cbranch_scc1 RA{t}_got
    s_ff0_i32_b32 s60, s61
    s_cmp_lt_i32 s60, 0
    s_cbranch_scc1 RA{t}_ovf
    s_lshl_b32 s61, 1, s60
    v_mov_b32 v30, s61
    s_mov_b64 exec, 1
    buffer_atomic_or v30, v31, {srd(SRD_DBG)}, 0 offen sc0 sc1
    s_mov_b64 exec, -1
    s_waitcnt vmcnt(0)
    s_branch RA{t}_try
RA{t}_got:
    s_lshl_b32 s3, s59, 5
    s_add_u32 s3, s3, s60
    s_branch RA{t}_have
RA{t}_ovf:
    v_mov_b32 v28, 1
    v_mov_b32 v29, {DBG_OVF}
    s_mov_b64 exec, 1
    buffer_atomic_add v28, v29, {srd(SRD_DBG)}, 0 offen sc0 sc1
    s_mov_b64 exec, -1
    s_waitcnt vmcnt(0)
    v_readfirstlane_b32 s61, v28                 ; o
    v_lshlrev_b32 v29, 2, v1
    s_mov_b32 s63, {SPIN}
RA{t}_poll:
    buffer_load_dword v28, v29, {srd(SRD_DBG)}, 0 offen sc1
    s_sub_u32 s63, s63, 1
    s_cbranch_scc1 {abort}
    s_waitcnt vmcnt(0)
    v_readlane_b32 s62, v28, {DBG_OVF//4}
    """)
    for x in range(8):
        A(f"v_readlane_b32 s60, v28, {claim_off(x)//4}\ns_nop 1\nv_writelane_b32 v30, s60, {x}\ns_bcnt1_i32_b32 s60, s60\ns_add_u32 s62, s62, s60")
    A(f"""
    s_cmp_lt_u32 s62, 256
    s_cbranch_scc1 RA{t}_poll
    s_mov_b32 s3, 0
RA{t}_scan:
    s_lshr_b32 s60, s3, 5
    s_nop 3
    v_readlane_b32 s62, v30, s60
    s_and_b32 s60, s3, 31
    s_bitcmp1_b32 s62, s60
    s_cbranch_scc1 RA{t}_nx
    s_cmp_eq_u32 s61, 0
    s_cbranch_scc1 RA{t}_fnd
    s_sub_u32 s61, s61, 1
RA{t}_nx:
    s_add_u32 s3, s3, 1
    s_cmp_lt_u32 s3, 255
    s_cbranch_scc1 RA{t}_scan
RA{t}_fnd:
    s_cmp_ge_u32 s3, 32
    s_cbranch_scc1 RA{t}_have
    v_mov_b32 v28, 1
    v_mov_b32 v29, {DBG_OVH}
    s_mov_b64 exec, 1
    buffer_store_dword v28, v29, {srd(SRD_DBG)}, 0 offen sc1
    s_mov_b64 exec, -1
    s_waitcnt vmcnt(0)
RA{t}_have:
    v_mov_b32 v28, s3
    v_mov_b32 v29, {BC_LDS}
    ds_write_b32 v29, v28
    s_waitcnt lgkmcnt(0)
RA{t}_bc:
    s_barrier
    v_mov_b32 v29, {BC_LDS}
    ds_read_b32 v28, v29
    s_waitcnt lgkmcnt(0)
    v_readfirstlane_b32 s3, v28
    s_barrier
    """)

def wait_ge(A, srd_, off_expr_s, val, abort, vt=250, sleep=8):
    l = A.newlabel("WG")
    A(f"""
    s_mov_b32 s{sSP}, {SPIN}
    v_mov_b32 {v(vt)}, {off_expr_s}
{l}:
    buffer_load_dword {v(vt+1)}, {v(vt)}, {srd(srd_)}, 0 offen sc1
    s_sub_u32 s{sSP}, s{sSP}, 1
    s_cbranch_scc1 {abort}
    s_waitcnt vmcnt(0)
    v_cmp_le_u32 vcc, {val}, {v(vt+1)}
    s_cbranch_vccnz {l}_ok
    s_sleep {sleep}
    s_branch {l}
{l}_ok:
    """)

def signal_wg(A, off, vt=250):
    l = A.newlabel("SG")
    A(f"""
    s_waitcnt vmcnt(0)
    s_barrier
    s_cmp_lg_u32 s{S_WAVE}, 0
    s_cbranch_scc1 {l}
    v_mov_b32 {v(vt)}, {off}
    v_mov_b32 {v(vt+1)}, 1
    s_mov_b64 exec, 1
    buffer_atomic_add {v(vt+1)}, {v(vt)}, {srd(SRD_DBG)}, 0 offen sc1
    s_mov_b64 exec, -1
{l}:
    """)

def acc_t(A, dst):
    import common
    if not common.STAMPS: return
    A(f"s_memrealtime s[96:97]\ns_waitcnt lgkmcnt(0)\ns_sub_u32 s98, s96, s93\ns_add_u32 s{dst}, s{dst}, s98\ns_mov_b32 s93, s96")

def rec_t(A, r):
    import common
    if common.STAMPS: A(f"s_memrealtime s[{r}:{r+1}]\ns_waitcnt lgkmcnt(0)")

def k_merged(A, ropt, EVS=4, PREF=0, FX=0, WDLY=0):
    AB = "M_abort"
    if ropt.get('tstart'): A("s_memrealtime s[100:101]")
    if PREF:
        A(f"""
        s_getpc_b64 s[60:61]
M_pc:
        v_lshlrev_b32 v254, 7, v0
        v_min_u32 v255, M_codeend - M_pc - 4, v254
        global_load_dword v253, v255, s[60:61]
        """)
        for k in range(1, PREF):
            A(f"""
            v_add_u32 v254, 32768, v254
            v_min_u32 v255, M_codeend - M_pc - 4, v254
            global_load_dword v253, v255, s[60:61]
            """)
    prologue(A, 256, "M_end")
    stamp(A, 13, s_id=2)
    hstamp(A, 11, neg=True)
    claim_issue(A, FX)
    A("s_mov_b32 s57, 0\ns_cmp_eq_u32 s59, 0\ns_cbranch_scc1 M_head")
    claim_resolve(A, "a", 0, AB)
    A.label("M_dispatch")
    A("s_mov_b32 s58, s3\ns_mov_b32 s57, 1\ns_cmp_ge_u32 s58, 32\ns_cbranch_scc1 M_worker")
    A.label("M_head")
    def resolve():
        A("s_cmp_eq_u32 s57, 1\ns_cbranch_scc1 M_resolved")
        claim_resolve(A, "b", 36, AB)
        A("s_cmp_eq_u32 s3, s58\ns_cbranch_scc1 M_resolved\ns_waitcnt vmcnt(0)\ns_barrier\ns_branch M_dispatch")
        A.label("M_resolved")
    mod_R(A, 58, abort=AB, merged=True, hooks=dict(resolve=resolve), **ropt)
    A("s_branch M_end")
    A.label("M_worker")
    A(f"""
    s_sub_u32 s{sWID}, s58, 32
    s_lshr_b32 s60, s{sWID}, 3                      ; unit
    s_mul_hi_u32 s61, s60, {(2**32+6)//7}           ; octet
    s_mul_i32 s62, s61, 7
    s_sub_u32 s{sGRP}, s60, s62
    s_lshl_b32 s61, s61, 3
    s_and_b32 s62, s{sWID}, 7
    s_add_u32 s{sHEAD}, s61, s62
    s_mul_hi_u32 s{sOG}, s{sWID}, {(2**32+17)//18}
    s_mul_i32 s60, s{sOG}, 18
    s_sub_u32 s{sCB}, s{sWID}, s60
    s_mul_hi_u32 s{sTG}, s{sWID}, {(2**32+4)//5}
    s_mul_i32 s60, s{sTG}, 5
    s_sub_u32 s{sCG}, s{sWID}, s60
    s_mul_i32 s{sKAP}, s{S_WAVE}, {NW}
    s_add_u32 s{sKAP}, s{sKAP}, s{sWID}
    """)
    stamp(A, 0, s_id=58)
    if WDLY == 2: wait_ge(A, SRD_DBG, DBG_RARM, 32, AB, vt=76, sleep=16)
    F0(A, sWID, NW)
    signal_wg(A, DBG_F0, vt=76)
    if WDLY == 1: wait_ge(A, SRD_DBG, DBG_RARM, 32, AB, vt=76, sleep=16)
    mod_P(A, sHEAD, sGRP, 7, preloop=lambda: wait_ge(A, SRD_DBG, DBG_RARM, 32, AB, vt=76))
    stamp(A, 4, s_id=58)
    wait_ge(A, SRD_DBG, DBG_F0, NW, AB)
    A(f"s_cmp_ge_u32 s{sTG}, 44\ns_cbranch_scc1 M_nof1")
    FG(A, 1, sCG, sTG, 44)
    A.label("M_nof1")
    signal_wg(A, DBG_F1)
    stamp(A, 5, s_id=58)
    A(f"s_cmp_ge_u32 s{sOG}, 12\ns_cbranch_scc1 M_noos")
    O_setup(A, sCB, keep=True)
    A.label("M_noos")
    stamp(A, 6, s_id=58)
    wait_ge(A, SRD_DBG, DBG_F1, NW, AB)
    A(f"s_cmp_gt_u32 s{sKAP}, 288\ns_cbranch_scc1 M_nof2")
    F2(A, sKAP)
    A.label("M_nof2")
    signal_wg(A, DBG_F2)
    stamp(A, 7, s_id=58)
    wait_ge(A, SRD_DBG, DBG_F2, NW, AB)
    A(f"s_cmp_ge_u32 s{sTG}, 44\ns_cbranch_scc1 M_nof3")
    FG(A, 3, sCG, sTG, 44)
    A.label("M_nof3")
    A("s_waitcnt vmcnt(0)\ns_barrier")
    stamp(A, 11, s_id=58)
    hstamp(A, 9)
    X_setup(A)
    O_addr(A, sCB)
    A(f"""
    s_mov_b32 s{sXN}, s{sGRP}
    s_cmp_lt_u32 s{sOG}, 12
    s_cselect_b32 s{sON}, s{sOG}, 64
    s_mov_b32 s{sPAR}, 0
    s_mov_b32 s90, 0
    s_mov_b32 s91, 0
    s_mov_b32 s92, 0
    s_mov_b32 s93, 0
    """)
    acc_t(A, 92)
    A(f"""
    s_mov_b32 s92, 0
M_evx:
    s_cmp_ge_u32 s{sXN}, 64
    s_cbranch_scc1 M_ev
    s_lshl_b32 s{sITEM}, s{sXN}, 5
    s_add_u32 s{sITEM}, s{sITEM}, s{sHEAD}
    s_mov_b32 s{sREC}, s{sITEM}
    """)
    X_pre(A, sREC)
    acc_t(A, 90)
    A(f"""
M_ev:
    s_min_u32 s60, s{sXN}, s{sON}
    s_cmp_ge_u32 s60, 64
    s_cbranch_scc1 M_fin
    s_cmp_lg_u32 s{S_WAVE}, 0
    s_cbranch_scc1 M_evb
    s_lshl_b32 s64, s{sHEAD}, 7
    s_add_u32 s64, s64, {FLAG_RP}
    s_min_u32 s65, s{sON}, 63
    s_lshl_b32 s65, s65, 7
    s_add_u32 s65, s65, {FLAG_OX}
    v_mov_b32 v250, s64
    v_and_b32 v251, 31, v1
    v_lshlrev_b32 v251, 2, v251
    v_add_u32 v251, s65, v251
    s_mov_b32 s{sSP}, {SPIN}
M_evp:
    buffer_load_dword v252, v250, {srd(SRD_WS)}, 0 offen sc1
    buffer_load_dword v253, v251, {srd(SRD_WS)}, 0 offen sc1
    s_mov_b32 s62, 3
    s_sub_u32 s{sSP}, s{sSP}, 1
    s_cbranch_scc1 M_evd
    s_waitcnt vmcnt(0)
    v_readfirstlane_b32 s60, v252
    v_cmp_eq_u32 vcc, 0, v253
    s_mov_b32 s62, 1
    s_cmp_gt_u32 s60, s{sXN}
    s_cbranch_scc1 M_evd
    s_add_u32 s61, s60, 1
    s_min_u32 s61, s61, 63
    s_cmp_ge_u32 s61, s{sXN}
    s_cbranch_scc1 M_evs2
    s_mov_b32 s62, 2
    s_cmp_ge_u32 s{sON}, 64
    s_cbranch_scc1 M_evs
    s_cbranch_vccz M_evd
M_evs:
    s_min_u32 s61, s{sXN}, s{sON}
    s_add_u32 s60, s60, 1
    s_cmp_gt_u32 s61, s60
    s_cbranch_scc0 M_evs2
    s_sleep 48
M_evs2:
    s_sleep {EVS}
    s_branch M_evp
M_evd:
    v_mov_b32 v252, s62
    v_mov_b32 v253, {EV_LDS}
    ds_write_b32 v253, v252
    s_waitcnt lgkmcnt(0)
M_evb:
    s_barrier
    v_mov_b32 v253, {EV_LDS}
    ds_read_b32 v252, v253
    s_waitcnt lgkmcnt(0)
    v_readfirstlane_b32 s62, v252
    s_barrier
    """)
    acc_t(A, 92)
    A(f"""
    s_cmp_eq_u32 s62, 3
    s_cbranch_scc1 {AB}
    s_cmp_eq_u32 s62, 2
    s_cbranch_scc1 M_evO
    """)
    rec_t(A, 66)
    X_post(A, sITEM, sREC)
    rec_t(A, 74)
    A(f"""
    s_lshl_b32 s60, s{sXN}, 7
    s_lshl_b32 s61, s{sHEAD}, 2
    s_add_u32 s60, s60, s61
    s_add_u32 s60, s60, {FLAG_OX}
    v_mov_b32 v251, 1
    s_waitcnt vmcnt(0)
    s_barrier
    s_cmp_lg_u32 s{S_WAVE}, 0
    s_cbranch_scc1 M_xf
    s_mov_b64 exec, 1
    buffer_store_dword v251, off, {srd(SRD_WS)}, s60 sc1
    s_mov_b64 exec, -1
M_xf:
    s_add_u32 s{sXN}, s{sXN}, 7
    """)
    rec_t(A, 68)
    acc_t(A, 90)
    A(f"""
    s_branch M_evx
M_evO:
    """)
    rec_t(A, 70)
    O_item(A, sON, sPAR)
    rec_t(A, 72)
    acc_t(A, 91)
    A(f"""
    s_add_u32 s{sON}, s{sON}, 12
    s_branch M_ev
M_fin:
    """)
    stamp(A, 12, s_id=58)
    hstamp(A, 15)
    import common
    if common.STAMPS:
        A(f"""
        s_lshl_b32 s98, s58, 8
        s_add_u32 s98, s98, {WS_STAMP + 160}
        v_mov_b32 v76, s90
        v_mov_b32 v77, s91
        v_mov_b32 v78, s92
        v_mov_b32 v79, 0
        s_mov_b64 exec, 1
        buffer_store_dwordx3 v[76:78], v79, {srd(SRD_WS)}, s98 offen
        v_mov_b32 v72, s66
        v_mov_b32 v73, s74
        v_mov_b32 v74, s68
        v_mov_b32 v75, s70
        v_mov_b32 v76, s72
        buffer_store_dwordx4 v[72:75], v79, {srd(SRD_WS)}, s98 offen offset:16
        buffer_store_dword v76, v79, {srd(SRD_WS)}, s98 offen offset:32
        s_mov_b64 exec, -1
        """)
    A("s_branch M_end")
    A(f"""
{AB}:
    s_mov_b64 exec, -1
    v_mov_b32 v3, 0xdead
    v_mov_b32 v4, {DBG_ABORT}
    buffer_store_dword v3, v4, {srd(SRD_DBG)}, 0 offen
    s_waitcnt vmcnt(0)
M_end:
    s_endpgm
M_codeend:""")
```

```python
from common import *

XBUF = 36864

def xtile_addr_setup(A, vdma, vfr, rowstride, vt0, vt1):
    A(f"""
    v_lshrrev_b32 {v(vt0)}, 3, v1
    v_and_b32 {v(vt1)}, 6, {v(vt0)}
    s_lshr_b32 s60, s{S_WAVE}, 1
    v_or_b32 {v(vt1)}, s60, {v(vt1)}
    v_and_b32 {v(vdma)}, 7, v1
    v_xor_b32 {v(vdma)}, {v(vdma)}, {v(vt1)}
    v_lshlrev_b32 {v(vdma)}, 4, {v(vdma)}
    s_lshl_b32 s60, s{S_WAVE}, 3
    v_add_u32 {v(vt0)}, s60, {v(vt0)}
    s_mov_b32 s60, {rowstride}
    v_mul_lo_u32 {v(vt0)}, {v(vt0)}, s60
    v_add_u32 {v(vdma)}, {v(vdma)}, {v(vt0)}
    """)
    A(f"""
    v_and_b32 {v(vt0)}, 6, v1
    v_bfe_u32 {v(vt1)}, v1, 4, 1
    v_or_b32 {v(vt0)}, {v(vt0)}, {v(vt1)}        ; h
    v_lshrrev_b32 {v(vt1)}, 5, v1                ; hf
    v_xor_b32 {v(vt0)}, {v(vt0)}, {v(vt1)}       ; h ^ hf
    v_and_b32 {v(vt1)}, 31, v1
    v_lshlrev_b32 {v(vt1)}, 7, {v(vt1)}
    """)
    for k in range(4):
        A(f"""
        v_xor_b32 {v(vfr+k)}, {2*k}, {v(vt0)}
        v_lshlrev_b32 {v(vfr+k)}, 4, {v(vfr+k)}
        v_add_u32 {v(vfr+k)}, {v(vfr+k)}, {v(vt1)}
        """)

def mod_P(A, s_head, s_grp, NG, sc=" sc1", flags=True, nost=0, preloop=None, ptouch=False):
    L = lambda n: f"P_{n}"
    ACC = [2, 18, 34]
    XF = [50, 54, 58]
    VFR = 62
    VDMA = 66
    VST = 67
    VW = 68
    VTR = 69
    VT0, VT1 = 72, 73
    VFL = 74
    VONE = 75
    stamp(A, 0)
    A.c("P: weight staging setup")
    A(f"""
    v_lshrrev_b32 {v(VT0)}, 4, v1                 ; l>>4
    v_lshlrev_b32 {v(VT1)}, 2, {v(VT0)}
    v_and_b32 {v(VW)}, 15, v1
    v_xor_b32 {v(VW)}, {v(VW)}, {v(VT1)}
    v_lshlrev_b32 {v(VW)}, 4, {v(VW)}
    s_lshl_b32 s60, s{S_WAVE}, 2
    v_add_u32 {v(VT0)}, s60, {v(VT0)}
    v_lshlrev_b32 {v(VT0)}, 13, {v(VT0)}
    v_add_u32 {v(VW)}, {v(VW)}, {v(VT0)}
    s_lshl_b32 s60, s{s_head}, 8
    v_add_u32 {v(VW)}, s60, {v(VW)}
    v_bfe_u32 {v(VT0)}, v1, 2, 2                  ; r
    v_lshrrev_b32 {v(VT1)}, 5, v1                 ; hf
    v_lshl_add_u32 {v(VT1)}, {v(VT1)}, 3, {v(VT0)} ; 8hf + r
    v_lshlrev_b32 {v(VTR)}, 8, {v(VT1)}           ; *256
    v_bfe_u32 {v(VT1)}, v1, 4, 1                  ; fsub
    v_lshlrev_b32 {v(VT1)}, 1, {v(VT1)}
    v_bfe_u32 {v(VTR+1)}, v1, 1, 1                ; c>>1
    v_add_u32 {v(VT1)}, {v(VT1)}, {v(VTR+1)}
    s_lshl_b32 s60, s{S_WAVE}, 2
    v_add_u32 {v(VT1)}, s60, {v(VT1)}             ; chunk16
    v_lshlrev_b32 {v(VT0)}, 2, {v(VT0)}
    v_xor_b32 {v(VT1)}, {v(VT1)}, {v(VT0)}
    v_lshl_add_u32 {v(VTR)}, {v(VT1)}, 4, {v(VTR)}
    v_and_b32 {v(VT0)}, 1, v1
    v_lshl_add_u32 {v(VTR)}, {v(VT0)}, 3, {v(VTR)}
    v_add_u32 {v(VTR+1)}, 0x10000, {v(VTR)}
    v_add_u32 {v(VTR+2)}, 0x20000, {v(VTR)}
    s_lshl_b32 s61, s{S_WAVE}, 10                 ; w*1024 (lds)
    """)
    xtile_addr_setup(A, VDMA, VFR, 1152, VT0, VT1)
    A(f"""
    v_lshlrev_b32 {v(VST)}, 4, v1
    s_lshl_b32 s60, s{S_WAVE}, 11
    v_add_u32 {v(VST)}, s60, {v(VST)}
    v_mov_b32 {v(VONE)}, 1
    v_lshlrev_b32 {v(VT0)}, 4, v0
    """)
    order = [1, 2, 0]
    srds = {0: SRD_WQ, 1: SRD_WK, 2: SRD_WV}
    def wdma(c):
        m = order[c // 9]; kb = c % 9; slot = c % 9
        for n in range(4):
            A(f"s_add_u32 m0, s61, {slot*16384 + n*4096}")
            A(f"s_mov_b32 s62, {kb*524288 + n*131072}")
            A(f"buffer_load_dwordx4 {v(VW)}, {srd(srds[m])}, s62 offen lds")
    def xdma_one(cg, s_bufbase, s_src):
        A(f"s_add_u32 m0, s{s_bufbase}, {cg*4096}")
        A(f"s_add_u32 s62, s{s_src}, {cg*128}")
        A(f"buffer_load_dwordx4 {v(VDMA)}, {srd(SRD_BX)}, s62 offen lds")
    A(f"""
    s_mov_b32 s63, s{s_grp}
    s_mul_i32 s65, s63, {XBUF}
    s_mov_b32 s64, s61
    """)
    for c in range(9):
        wdma(c)
    pending = [4] * 9
    for c in range(27):
        rest = sum(pending[1:])
        A(f"s_waitcnt vmcnt({rest})")
        pending.pop(0)
        A("s_barrier")
        m = order[c // 9]; kb = c % 9; slot = c % 9
        for ksl in range(4):
            for t in range(2):
                off = slot * 16384 + ksl * 4096 + t * 1024
                A(f"ds_read_b64_tr_b16 {wreg(m*144 + (kb*4+ksl)*4 + 2*t, 2)}, {v(VTR + (off >> 16))} offset:{off & 0xffff}")
        A("s_waitcnt lgkmcnt(0)")
        A("s_barrier")
        pass
        if c + 9 < 27:
            wdma(c + 9); pending.append(4)
        if c == 20 or c == 22:
            for cg in range(9):
                xdma_one(cg, 64, 65)
            pending.append(9)
            A(f"s_add_u32 s64, s64, {XBUF}")
            A(f"s_add_u32 s65, s65, {NG*XBUF}")
    A("s_waitcnt vmcnt(9)")
    A(f"""
    s_mov_b32 s66, 0
    s_mov_b32 s67, -1
    """)
    stamp(A, 1)
    if preloop: preloop()
    A.label(L("loop"))
    A("s_barrier")
    def xread(ks):
        A(f"ds_read_b128 {v(XF[ks%3],4)}, {v(VFR + (ks&3))} offset:{(ks>>2)*4096}")
    xread(0); xread(1)
    for ks in range(36):
        A(f"s_waitcnt lgkmcnt({1 if ks < 35 else 0})")
        x = v(XF[ks % 3], 4)
        def mf(m):
            w = wreg(m*144 + ks*4, 4)
            c = "0" if ks == 0 else v(ACC[m], 16)
            if m == 2:
                A(f"v_mfma_f32_32x32x16_bf16 {v(ACC[m],16)}, {x}, {w}, {c}")
            else:
                A(f"v_mfma_f32_32x32x16_bf16 {v(ACC[m],16)}, {w}, {x}, {c}")
        mf(1)
        if ks + 2 < 36: xread(ks + 2)
        mf(2)
        if 1 <= ks <= 9:
            xdma_one(ks - 1, 64, 65)
        if ks == 20:
            A("s_waitcnt vmcnt(9)")
            if flags:
                A(f"""
                s_cmp_lt_i32 s67, 0
                s_cbranch_scc1 {L('nofl')}
                s_lshl_b32 s62, s{s_head}, 6
                s_add_u32 s62, s62, s67
                s_lshl_b32 s62, s62, 2
                s_add_u32 s62, s62, {FLAG_KV}
                v_mov_b32 {v(VFL)}, s62
                s_mov_b64 exec, 1
                buffer_atomic_add {v(VONE)}, {v(VFL)}, {srd(SRD_WS)}, 0 offen sc1
                s_mov_b64 exec, -1
                """)
                A.label(L("nofl"))
        mf(0)
    A(f"""
    s_add_u32 s64, s64, {XBUF}
    s_add_u32 s65, s65, {NG*XBUF}
    s_add_u32 s62, s61, {3*XBUF}
    s_cmp_ge_u32 s64, s62
    s_cselect_b32 s64, s61, s64
    s_add_u32 s66, s66, 1
    s_cmp_eq_u32 s66, 3
    s_cselect_b32 s66, 0, s66
    s_mov_b32 s62, {XBUF}
    s_cselect_b32 s62, {(-2*XBUF) & 0xffffffff}, s62
    """)
    for k in range(4):
        A(f"v_add_u32 {v(VFR+k)}, s62, {v(VFR+k)}")
    A(f"""
    s_lshl_b32 s62, s63, 5
    s_add_u32 s62, s62, s{s_head}
    s_lshl_b32 s62, s62, 13
    s_lshr_b32 s71, s62, 1
    s_add_u32 s71, s71, {WS_KM}
    s_add_u32 s68, s62, {WS_KX}
    s_add_u32 s69, s62, {WS_VX}
    s_add_u32 s70, s62, {WS_QX}
    """)
    for m, so in ((1, 68), (2, 69), (0, 70)):
        if m == 0: A("s_nop 3")
        for i in range(8):
            A(f"v_cvt_pk_bf16_f32 {v(ACC[m]+i)}, {v(ACC[m]+2*i)}, {v(ACC[m]+2*i+1)}")
        s_ = sc if m != 0 else sc
        if nost: continue
        A(f"buffer_store_dwordx4 {v(ACC[m],4)}, {v(VST)}, {srd(SRD_WS)}, s{so} offen{s_}")
        A(f"buffer_store_dwordx4 {v(ACC[m]+4,4)}, {v(VST)}, {srd(SRD_WS)}, s{so} offen offset:1024{s_}")
    if ptouch:
        A(f"v_lshrrev_b32 {v(VFL)}, 1, {v(VST)}\nv_and_b32 {v(VFL)}, -16, {v(VFL)}\nbuffer_store_dwordx4 {v(ACC[0],4)}, {v(VT0)}, {srd(SRD_WS)}, s71 offen sc1")
    A(f"""
    s_mov_b32 s67, s63
    s_add_u32 s63, s63, {NG}
    s_cmp_lt_u32 s63, 64
    s_cbranch_scc1 {L('loop')}
    """)
    stamp(A, 2)
    A("s_waitcnt vmcnt(0)")
    stamp(A, 3)
    if flags:
        A(f"""
        s_lshl_b32 s62, s{s_head}, 6
        s_add_u32 s62, s62, s67
        s_lshl_b32 s62, s62, 2
        s_add_u32 s62, s62, {FLAG_KV}
        v_mov_b32 {v(VFL)}, s62
        s_mov_b64 exec, 1
        buffer_atomic_add {v(VONE)}, {v(VFL)}, {srd(SRD_WS)}, 0 offen sc1
        s_mov_b64 exec, -1
        """)
    A("s_barrier")
```

```python
from common import *
import math, struct

WSTR = 36864
L_Q = 34816
L_K = 34816 + WSTR
L_O = 34816 + 2 * WSTR
L_MEMF = 145408
L_KX = 145408 + 9216
L_V = L_MEMF + 4096
HI = 98304
PSLOT = 72 * 4096
MSLOT = 9216
SPIN = 200000
CEXP = (128 ** -0.5) * math.log2(math.e)
def f32bits(x): return struct.unpack("<I", struct.pack("<f", x))[0]

def WQ(kk): return wreg(kk * 8, 8)
def WK(kk): return wreg(144 + kk * 8, 8)
def WO(p, ks): return wreg(288 + (p * 4 + ks) * 8, 8)
def WO8(ks): return wreg(288 + 128 + ks * 4, 4)

class LQ:
    def __init__(self, A, name): self.A, self.name, self.q = A, name, []
    def push(self, tag, n=1): self.q += [tag] * n; assert len(self.q) <= (15 if self.name == "lgkmcnt" else 63), self.q
    def wait(self, tag):
        if tag not in self.q: return
        idx = max(i for i, t in enumerate(self.q) if t == tag)
        self.A(f"s_waitcnt {self.name}({len(self.q) - 1 - idx})")
        del self.q[:idx + 1]
    def clear(self): self.q = []

def mod_R(A, s_head, sc="", pfx="R", abort="R_abort", last=63, prof=False, RD_=(0, 0, 0, 1, 2), CD=0, hooks=None, WARMD=2, cnt=False,
          CDN=0, fixseg=False, nokm=False, x_nowv=False, trace=False, RGAP=1, CGAP=1, ld=' sc1', tq=None, merged=False, wbar=False, worder='qk', wnt='', tstart=False, eflag=True, EFAT=13, tstep=False, CDN3=0, nowarm=False, R2AT=0, R3AT=6, B2AT=4):
    assert R3AT > B2AT and R2AT + 2 < B2AT
    def TQ(tag):
        if tq and tag in tq: A(f"s_memtime s[{8+2*tq.index(tag)}:{9+2*tq.index(tag)}]")

    def TR(i):
        if trace: A(f"s_memrealtime s[{8+2*i}:{9+2*i}]")

    L = lambda n: f"{pfx}_{n}"
    def TS(i):
        r = 98 if i == 1 else 8 + 2 * i
        if tstart: A(f"s_memrealtime s[{r}:{r+1}]\ns_waitcnt lgkmcnt(0)")
    W = S_WAVE
    hooks = hooks or {}
    def PH(i):
        if not prof: return
        A(f"""
        s_waitcnt lgkmcnt(0)
        s_memtime s[96:97]
        s_waitcnt lgkmcnt(0)
        s_sub_u32 s99, s96, s98
        s_mov_b32 s98, s96
        s_mov_b64 exec, {1 << i}
        v_add_u32 v1, s99, v1
        s_mov_b64 exec, -1
        """)
    TMP = 0
    IDX, SELV, vPST, vRED, vPUB, vCON, vAF, vWV, vQW, vQR, vKX, vOW, vVX, vSP = range(2, 16)
    vC1 = 1
    assert not prof
    WVR = 16
    D0 = 24
    sSTEP, sPW, sPR, sMW, sMR, sMA, sRED, sSEG = 64, 65, 66, 67, 68, 69, 70, 71
    sLO32, sHI32, sEVEN, sN8 = 72, 74, 76, 78
    sU = 80
    sU2 = sU
    sC = 82
    sRDLY, sWB, sB1 = 84, 85, 59
    sB3, sM3, sPRG = 66, 57, 4
    sRDLY2 = 96
    sPM = sEVEN
    sSEL = 86
    sT0, sT1, sT2, sSPIN, sT3, sT4 = 60, 61, 62, 63, 94, 95
    T0, T1, T2 = D0, D0 + 1, D0 + 2
    stamp(A, 8, s_id=s_head)
    hstamp(A, 12)
    def bits(dst, terms, add=None):
        first = True
        for (off, n, sh) in terms:
            A(f"v_bfe_u32 {v(T2)}, v1, {off}, {n}")
            if first:
                A(f"v_lshlrev_b32 {v(dst)}, {sh}, {v(T2)}"); first = False
            else:
                A(f"v_lshl_add_u32 {v(dst)}, {v(T2)}, {sh}, {v(dst)}")
        if add is not None:
            A(f"v_add_u32 {v(dst)}, {add}, {v(dst)}")
    vWA, vWB = D0 + 52, D0 + 53
    vTR = [D0 + 44, D0 + 45]
    vTO = [D0 + 46 + k for k in range(4)]
    vTD = [D0 + 28 + k for k in range(4)]
    X0, X1 = D0 + 8, D0 + 9
    sWL = 7
    VS = D0 + 12
    A(f"""
    s_lshl_b32 s{sT0}, s{s_head}, 8
    s_lshr_b32 s{sT1}, s{W}, 1
    s_lshl_b32 s{sT1}, s{sT1}, 7
    s_add_u32 s{sT0}, s{sT0}, s{sT1}
    s_and_b32 s{sT1}, s{W}, 1
    s_lshl_b32 s{sT1}, s{sT1}, 18
    s_add_u32 s{sT0}, s{sT0}, s{sT1}
    s_mul_i32 s{sWL}, s{W}, {WSTR}
    """)
    bits(vWA, [(3, 3, 13), (0, 3, 4)], f"s{sT0}")
    chunks = [(worder[0], kb) for kb in range(9)] + [(worder[1], kb) for kb in range(9)] + \
             [("o", (p, kb2)) for p in range(5) for kb2 in range(2)] + [("v", kb) for kb in range(9)]
    slot_of = lambda c: (c - 28) % 9
    def wdma(c):
        kind, ix = chunks[c]; sl = slot_of(c)
        for n in range(4):
            A(f"s_add_u32 m0, s{sWL}, {sl*4096 + n*1024}")
            if kind == "o":
                p, kb2 = ix
                A(f"s_mov_b32 s{sT1}, {(kb2*64 + n*4)*1152 + p*256}")
                A(f"buffer_load_dwordx4 {v(vWB)}, {srd(SRD_WO)}, s{sT1} offen{wnt} lds")
            else:
                A(f"s_mov_b32 s{sT1}, {ix*524288 + n*65536}")
                A(f"buffer_load_dwordx4 {v(vWA)}, {srd({'q': SRD_WQ, 'k': SRD_WK, 'v': SRD_WV}[kind])}, s{sT1} offen{wnt} lds")
    for c in range(9): wdma(c)
    TS(1)
    if 'resolve' in hooks: hooks['resolve']()
    TS(2)
    A.c("R setup")
    A(f"""
    s_mov_b32 s{sLO32}, -1
    s_mov_b32 s{sLO32+1}, 0
    s_mov_b32 s{sHI32}, 0
    s_mov_b32 s{sHI32+1}, -1
    s_mov_b32 s{sEVEN}, 0x55555555
    s_mov_b32 s{sEVEN+1}, 0x55555555
    s_mov_b32 s{sN8}, 0xff00ff00
    s_mov_b32 s{sN8+1}, 0xff00ff00
    s_mov_b32 s{sC}, {f32bits(CEXP)}
    s_mov_b32 s{sC+1}, {f32bits(CEXP)}
    s_lshl_b32 s{sWB}, s{W}, 10
    s_cmp_eq_u32 s{W}, 0
    s_mov_b32 s{sB1}, -1024
    s_cselect_b32 s{sB1}, 8192, s{sB1}
    s_lshl_b32 s{sPRG}, s{s_head}, 7
    s_add_u32 s{sPRG}, s{sPRG}, {FLAG_RP}
    s_and_b32 s{sM3}, s{sWB}, 1024
    s_sub_u32 s{sB3}, s{sM3}, s{sWB}
    s_add_u32 s{sB3}, s{sB3}, 6144
    s_add_u32 s{sM3}, s{sM3}, {L_MEMF + 7168}
    """)
    for r in range(4):
        m = (0x03030303 << (2 * r)) & 0xffffffff
        A(f"s_mov_b32 s{sSEL+2*r}, {m}\ns_mov_b32 s{sSEL+2*r+1}, {m}")
    A(f"""
    v_mov_b32 {v(IDX)}, 0x44444444
    v_mov_b32 {v(T0)}, 0xeeeeeeee
    v_cndmask_b32 {v(IDX)}, {v(IDX)}, {v(T0)}, s[{sN8}:{sN8+1}]
    v_mov_b32 {v(SELV)}, 0x3f800000
    v_mov_b32 {v(T0)}, 0x3f80
    v_cndmask_b32 {v(SELV)}, {v(SELV)}, {v(T0)}, s[{sEVEN}:{sEVEN+1}]
    s_mov_b32 s{sPM}, 0xffff
    s_mov_b32 s{sPM+1}, 0xffff
    v_lshlrev_b32 {v(T0)}, 4, v1
    s_add_u32 s{sT0}, s{sWB}, {HI}
    v_add_u32 {v(vCON)}, s{sT0}, {v(T0)}
    s_mul_i32 s{sT0}, s{W}, {WSTR}
    v_add_u32 {v(vWV)}, s{sT0}, {v(T0)}
    s_lshl_b32 s{sT0}, s{W}, 5
    s_add_u32 s{sT0}, s{sT0}, s{s_head}           ; unit
    s_lshl_b32 s{sT1}, s{sT0}, 12
    s_cmp_lt_u32 s{sT0}, 72
    s_cselect_b32 s{sRED}, 1, 0
    s_cselect_b32 s{sT1}, s{sT1}, 0x40000000
    v_add_u32 {v(vRED)}, s{sT1}, {v(T0)}
    s_lshr_b32 s{sT1}, s{sT0}, 1
    s_lshl_b32 s{sT4}, s{sT1}, 5
    s_lshl_b32 s{sT1}, s{sT1}, 8
    s_and_b32 s{sT2}, s{sT0}, 1
    s_mul_i32 s{sT3}, s{sT2}, {4*1152}
    s_add_u32 s{sT4}, s{sT4}, s{sT3}
    s_lshl_b32 s{sT2}, s{sT2}, 6
    s_add_u32 s{sT1}, s{sT1}, s{sT2}
    s_lshr_b32 s{sT2}, s{sT0}, 4
    s_add_u32 s{sT2}, s{sT2}, 1
    s_cmp_ge_u32 s{sT0}, 64
    s_cselect_b32 s{sT2}, 0, s{sT2}
    s_mov_b32 s{sRDLY}, {RD_[0]}
    """)
    for o in range(1, 5):
        A(f"s_cmp_eq_u32 s{sT2}, {o}\ns_cselect_b32 s{sRDLY}, {RD_[o]}, s{sRDLY}")
    bits(vPUB, [(2, 1, 7), (5, 1, 5), (3, 1, 4), (0, 2, 2)], f"s{sT1}")
    A(f"s_lshl_b32 s{sT1}, s{W}, 1\ns_xor_b32 s{sT2}, s{s_head}, s{sT1}\ns_lshl_b32 s{sT2}, s{sT2}, 7\ns_lshl_b32 s{sT1}, s{W}, 13")
    bits(vPST, [(5, 1, 10), (4, 1, 7)])
    A(f"v_xor_b32 {v(T1)}, s{sT2}, {v(vPST)}\nv_add_u32 {v(T1)}, s{sT1}, {v(T1)}")
    bits(vPST, [(5, 1, 15), (4, 1, 12), (0, 4, 3)], v(T1))
    A(f"s_lshl_b32 s{sT1}, s{W}, 9\ns_add_u32 s{sT2}, s{sT1}, {L_Q}")
    bits(vQW, [(5, 1, 8), (0, 4, 4), (4, 1, 3)], f"s{sT2}")
    bits(vQR, [(5, 1, 8), (4, 1, 6), (2, 2, 4), (0, 1, 3)], L_Q)
    bits(vKX, [(4, 2, 9), (3, 1, 8), (0, 3, 4)], HI)
    bits(vAF, [(4, 2, 7), (0, 3, 4)], HI)
    A(f"s_add_u32 s{sT2}, s{sT1}, {L_O}")
    bits(vOW, [(5, 1, 7), (0, 3, 4), (4, 1, 3)], f"s{sT2}")
    A(f"s_lshl_b32 s{sT1}, s{W}, 11")
    bits(vVX, [(4, 2, 9), (0, 4, 4)], f"s{sT1}")
    ARM = D0 + 4
    X0, X1 = D0 + 8, D0 + 9
    for i in range(4): A(f"v_mov_b32 {v(ARM+i)}, -1")
    A(f"s_cmp_eq_u32 s{sRED}, 0\ns_cbranch_scc1 {L('noarm')}")
    bits(X1, [(5, 1, 1), (3, 1, 0)])
    A(f"v_mul_u32_u24 {v(X1)}, 1152, {v(X1)}")
    bits(X0, [(0, 3, 2)], v(X1))
    A(f"buffer_load_dword {v(vSP)}, {v(X0)}, {srd(SRD_M0)}, s{sT4} offen")
    A(f"s_mov_b32 s{sT0}, {WS_PART}")
    for i in range(4):
        A(f"buffer_store_dwordx4 {v(ARM,4)}, {v(vRED)}, {srd(SRD_WS)}, s{sT0} offen offset:{i*1024} sc1")
    A(f"s_mov_b64 exec, s[{sEVEN}:{sEVEN+1}]")
    for sl in range(3):
        A(f"s_mov_b32 s{sT0}, {WS_MEMB + sl*MSLOT}")
        A(f"buffer_store_dword {v(ARM)}, {v(vPUB)}, {srd(SRD_WS)}, s{sT0} offen sc1")
    A("s_mov_b64 exec, -1")
    A.label(L('noarm'))
    if merged:
        A(f"""
        s_cmp_lg_u32 s{W}, 3
        s_cbranch_scc1 {L('nz')}
        v_lshlrev_b32 {v(X0)}, 2, v1
        v_mov_b32 {v(X1)}, 0
        s_lshl_b32 s{sT0}, s{s_head}, 8
        s_add_u32 s{sT0}, s{sT0}, {FLAG_KV}
        buffer_store_dword {v(X1)}, {v(X0)}, {srd(SRD_WS)}, s{sT0} offen sc1
        s_add_u32 s{sT0}, s{sT0}, {FLAG_OX - FLAG_KV}
        buffer_store_dword {v(X1)}, {v(X0)}, {srd(SRD_WS)}, s{sT0} offen sc1
        v_mov_b32 {v(X0)}, s{sPRG}
        buffer_store_dword {v(X1)}, {v(X0)}, {srd(SRD_WS)}, 0 offen sc1
{L('nz')}:
        """)
    A(f"""
    v_lshrrev_b32 {v(X0)}, 4, v1
    s_lshl_b32 s{sT0}, s{W}, 4
    v_add_u32 {v(X0)}, s{sT0}, {v(X0)}
    v_mul_u32_u24 {v(X0)}, 1152, {v(X0)}
    s_mul_i32 s{sT0}, s{s_head}, 147456
    v_add_u32 {v(X0)}, s{sT0}, {v(X0)}
    s_and_b32 s{sT0}, s{W}, 2
    s_mul_i32 s{sT0}, s{sT0}, {WSTR}
    s_and_b32 s{sT1}, s{W}, 1
    s_lshl_b32 s{sT1}, s{sT1}, 6
    s_add_u32 s{sT0}, s{sT0}, s{sT1}
    s_lshl_b32 s{sT1}, s{W}, 5
    """)
    bits(vWB, [(0, 4, 4)], v(X0))
    bits(vTR[0], [(4, 2, 9), (2, 1, 7), (3, 1, 5), (0, 2, 3)], f"s{sT0}")
    A(f"v_add_u32 {v(vTR[1])}, {WSTR}, {v(vTR[0])}")
    bits(vTO[0], [(4, 2, 10), (2, 1, 8), (3, 1, 7), (0, 2, 3)], f"s{sT1}")
    bits(vTD[0], [(4, 1, 11), (2, 2, 8), (0, 2, 3)], f"s{sT1}")
    A(f"v_bfe_u32 {v(T2)}, v1, 5, 1\nv_mul_u32_u24 {v(T2)}, {WSTR}, {v(T2)}\nv_add_u32 {v(vTD[0])}, {v(vTD[0])}, {v(T2)}")
    for k in range(1, 4): A(f"v_add_u32 {v(vTO[k])}, {k*WSTR}, {v(vTO[0])}")
    A(f"v_add_u32 {v(vTD[1])}, {2*WSTR}, {v(vTD[0])}")
    def trread(dst_fn, h, sl):
        for t, ro in enumerate((0, 2, 16, 18)):
            A(f"ds_read_b64_tr_b16 {dst_fn(t)}, {v(vTR[h])} offset:{sl*4096 + ro*128}")
    def trread_o(dst_fn, h, sl):
        for t, (k, ro) in enumerate(((0, 0), (0, 2), (1, 0), (1, 2))):
            A(f"ds_read_b64_tr_b16 {dst_fn(t)}, {v(vTO[2*h+k])} offset:{sl*4096 + ro*256}")
    sub = lambda base, t: wreg(base + 2 * t, 2)
    NCH = len(chunks)
    for c in range(NCH):
        kind, ix = chunks[c]; sl = slot_of(c)
        A(f"s_waitcnt vmcnt({min(NCH - 1 - c, 8) * 4 + (7 if c > NCH - 10 else 0)}) lgkmcnt(0)\ns_barrier")
        if kind in "qk":
            base = 0 if kind == "q" else 144
            for h in range(2): trread(lambda t: sub(base + (2 * ix + h) * 8, t), h, sl)
        elif kind == "o":
            p, kb2 = ix
            for h in range(2):
                if p < 4: trread_o(lambda t: sub(288 + (p * 4 + 2 * kb2 + h) * 8, t), h, sl)
                else:
                    for t in range(2):
                        A(f"ds_read_b64_tr_b16 {wreg(288 + 128 + (2*kb2+h)*4 + 2*t, 2)}, {v(vTD[h])} offset:{sl*4096 + 4*t*256}")
        else:
            trread(lambda t: v(VS + 2 * t, 2), 0, sl)
            if ix < 8: trread(lambda t: v(VS + 8 + 2 * t, 2), 1, sl)
            else: trread(lambda t: v(WVR + 2 * t, 2), 1, sl)
        A("s_waitcnt lgkmcnt(0)\ns_barrier")
        if kind == "v":
            for q in range(4 if ix < 8 else 2):
                A(f"ds_write_b128 {v(vWV)}, {v(VS+4*q,4)} offset:{ix*4096 + q*1024}")
        if c == 0: TS(3)
        if c == 9: TS(4)
        if c == NCH - 1: TS(5)
        if c == 9:
            A(f"""
            s_cmp_lg_u32 s{W}, 0
            s_cbranch_scc1 {L('armed')}
            v_mov_b32 {v(T0)}, 1
            v_mov_b32 {v(T1)}, {DBG_RARM}
            s_mov_b64 exec, 1
            buffer_atomic_add {v(T0)}, {v(T1)}, {srd(SRD_DBG)}, 0 offen sc1
            s_mov_b64 exec, -1
{L('armed')}:
            """)
        if c + 9 < NCH: wdma(c + 9)
        if c == NCH - 10:
            A(f"s_mov_b32 s{sT0}, {WS_PART}")
            for i in range(4):
                A(f"buffer_load_dwordx4 {v(D0+28+4*i,4)}, {v(vRED)}, {srd(SRD_WS)}, s{sT0} offen offset:{i*1024} sc1")
            for sl in range(3):
                A(f"s_mov_b32 s{sT0}, {WS_MEMB + sl*MSLOT}")
                A(f"buffer_load_dword {v(D0+46)}, {v(vPUB)}, {srd(SRD_WS)}, s{sT0} offen sc1")
    stamp(A, 9, s_id=s_head)
    hstamp(A, 13)
    AQ, AK, AV = D0, D0 + 4, D0 + 8
    AS = [D0 + 12 + 4 * i for i in range(4)]
    WR = [D0 + 28, D0 + 36, D0 + 44]
    korder = [16, 17] + list(range(16))
    wvl = [kk for kk in korder if kk != 17]
    lg = LQ(A, "lgkmcnt")
    def wvread(f):
        if x_nowv: return
        o = wvl[f] * 2048; d = WR[f % 3]
        A(f"ds_read_b128 {v(d,4)}, {v(vWV)} offset:{o}")
        A(f"ds_read_b128 {v(d+4,4)}, {v(vWV)} offset:{o+1024}")
        lg.push(f"W{f}", 2)
    def zero_acc():
        for i in range(12): A(f"v_mov_b32 {v(AQ+i)}, 0")
    sKV = 5
    sMODE = 6
    def kv_wait(s_need, lab):
        A(f"""
        s_cmp_ge_u32 s{sKV}, s{s_need}
        s_cbranch_scc1 {lab}_ok
        s_lshl_b32 s{sT1}, s{s_head}, 8
        s_add_u32 s{sT1}, s{sT1}, {FLAG_KV}
        v_lshrrev_b32 {v(TMP)}, 2, {v(vCON)}
        v_and_b32 {v(TMP)}, 255, {v(TMP)}
{lab}_p:
        buffer_load_dword {v(D0+40)}, {v(TMP)}, {srd(SRD_WS)}, s{sT1} offen sc1
        s_sub_u32 s{sSPIN}, s{sSPIN}, 1
        s_cbranch_scc1 {abort}
        s_waitcnt vmcnt(0)
        v_cmp_ne_u32 vcc, 4, {v(D0+40)}
        s_ff1_i32_b64 s{sKV}, vcc
        s_cmp_lt_i32 s{sKV}, 0
        s_cselect_b32 s{sKV}, 64, s{sKV}
        s_cmp_ge_u32 s{sKV}, s{s_need}
        s_cbranch_scc1 {lab}_ok
        s_sleep 4
        s_branch {lab}_p
{lab}_ok:
        """)
    A(f"""
    s_mov_b32 s{sSPIN}, {SPIN}
    v_and_b32 {v(X1)}, 31, v1
    v_lshlrev_b32 {v(X1)}, 2, {v(X1)}
{L('warm')}:
    buffer_load_dword {v(X0)}, {v(X1)}, {srd(SRD_DBG)}, 0 offen sc1
    s_sub_u32 s{sSPIN}, s{sSPIN}, 1
    s_cbranch_scc1 {abort}
    s_waitcnt vmcnt(0)
    v_readlane_b32 s{sT0}, {v(X0)}, {DBG_RARM//4}
    v_readlane_b32 s{sT1}, {v(X0)}, {DBG_OVH//4}
    s_cmp_lt_u32 s{sT0}, 32
    s_cbranch_scc1 {L('warm')}
    s_cmp_eq_u32 s{sT1}, 0
    s_cselect_b32 s{sMODE}, 0, 1
    """)
    if merged:
        A(f"""
        s_mov_b32 s{sKV}, 0
        s_cmp_lg_u32 s{W}, 3
        s_cbranch_scc1 {L('nkvi')}
        s_mov_b32 s{sT0}, {WARMD + 1}
        """)
        kv_wait(sT0, L('kvi'))
        A(f"v_lshlrev_b32 {v(X0)}, 7, v1\ns_lshl_b32 s{sT0}, s{s_head}, 13")
        for sg in range(WARMD):
            A(f"s_add_u32 s{sT1}, s{sT0}, {WS_KX + sg*RECSZ}\nbuffer_load_dword {v(X1)}, {v(X0)}, {srd(SRD_WS)}, s{sT1} offen sc1")
            A(f"s_add_u32 s{sT1}, s{sT0}, {WS_VX + sg*RECSZ}\nbuffer_load_dword {v(X1)}, {v(X0)}, {srd(SRD_WS)}, s{sT1} offen sc1")
        A(f"s_waitcnt vmcnt(0)\n{L('nkvi')}:")
    A(f"""
    s_mov_b32 s{sSTEP}, 0
    s_mov_b32 s{sPW}, {WS_PART}
    s_mov_b32 s{sMA}, {WS_MEMB + 2*MSLOT}
    s_mov_b32 s{sMW}, {WS_MEMB}
    s_mov_b32 s{sMR}, {WS_MEMB + MSLOT}
    s_lshl_b32 s{sSEG}, s{s_head}, 13
    s_cmp_eq_u32 s{sRED}, 0
    s_cbranch_scc1 {L('nom0')}
    v_min_u32 {v(vSP)}, -2, {v(vSP)}
    s_mov_b64 exec, s[{sEVEN}:{sEVEN+1}]
    buffer_store_dword {v(vSP)}, {v(vPUB)}, {srd(SRD_WS)}, s{sMW} offen sc1
    s_mov_b64 exec, -1
    s_nop 0
    v_mov_b32 {v(vSP)}, -1
{L('nom0')}:
    s_cmp_eq_u32 s{W}, 3
    s_cselect_b64 s[{sU}:{sU+1}], -1, 0
    s_cmp_ge_u32 s{W}, 2
    s_cselect_b32 s{sT0}, 1024, 0
    v_subrev_u32 v1, s{sT0}, {v(vCON)}
    s_waitcnt lgkmcnt(0)
    s_barrier
    """)
    zero_acc()
    if prof: A("v_mov_b32 v1, 0\ns_memtime s[98:99]\ns_waitcnt lgkmcnt(0)")
    TS(6)
    if merged: A(f"s_cmp_eq_u32 s{sMODE}, 1\ns_cbranch_scc1 {L('loopS0')}x")
    if cnt: A("s_mov_b32 s20, 0\ns_mov_b32 s21, 0\ns_memtime s[96:97]\ns_memrealtime s[98:99]\ns_waitcnt lgkmcnt(0)\ns_mov_b32 s99, s96")
    RL = D0 + 52
    def sm(acc, a_, b): A(f"v_smfmac_f32_16x16x64_bf16 {v(acc,4)}, {a_}, {b}, {v(IDX)}")
    def mf(d, a_, b_, first):
        A(f"v_mfma_f32_16x16x32_bf16 {v(d,4)}, {a_}, {b_}, {'0' if first else v(d,4)}")
    def chk(r, br):
        A(f"""
        v_max3_u32 {v(TMP)}, {v(r)}, {v(r+1)}, {v(r+2)}
        v_max_u32 {v(TMP)}, {v(TMP)}, {v(r+3)}
        v_cmp_eq_u32 vcc, -1, {v(TMP)}
        {br}
        """)
    def spin(): A(f"s_sub_u32 s{sSPIN}, s{sSPIN}, 1\ns_cbranch_scc1 {abort}")
    def cload(r, so): A(f"buffer_load_dwordx4 {v(r,4)}, {v(vC1)}, {srd(SRD_WS)}, s{so} offen{ld}")
    def pk2(d, s_):
        A(f"v_cvt_pk_bf16_f32 {v(d)}, {v(s_)}, {v(s_+1)}")
        A(f"v_cvt_pk_bf16_f32 {v(d+1)}, {v(s_+2)}, {v(s_+3)}")
    def step_body(par, sc, md):
        LP = lambda n: L(n + md + str(par))
        nxt_loop = L('loop' + md + str(1 - par))
        A.label(LP('loop'))
        A("s_waitcnt vmcnt(2)")
        A.label(LP('loop') + "x")
        lg.clear()
        A(f"""
        s_mov_b32 s{sT3}, s{sMA}
        s_mov_b32 s{sMA}, s{sMW}
        s_mov_b32 s{sMW}, s{sMR}
        s_mov_b32 s{sMR}, s{sT3}
        s_mov_b32 s{sSPIN}, {SPIN}
        s_sub_u32 s{sT0}, s{sMA}, {HI}
        s_add_u32 s{sT1}, s{sT0}, s{sB1}
        s_add_u32 s{sT2}, s{sT0}, 2048
        s_add_u32 s{sT3}, s{sT0}, s{sB3}
        s_add_u32 s{sT4}, s{sSEG}, {WS_KX - HI}
        s_add_u32 m0, s{sWB}, {L_MEMF + 3072}
        """)
        for f in range(3): wvread(f)
        A(f"s_cmp_eq_u32 s{W}, 1\ns_cbranch_scc1 {LP('cdj')}")
        if CD: A(f"s_sleep {CD}")
        P1 = AS[3]
        TQ("cgo")
        cload(RL, sT1)
        if CGAP:
            A(f"s_sleep {CGAP}")
            cload(P1, sT1)
            A("s_waitcnt vmcnt(1)")
        else:
            A.label(LP('cw0'))
            A("s_waitcnt vmcnt(0)")
        chk(RL, f"s_cbranch_vccnz {LP('cf0')}")
        A.label(LP('cd0'))
        TR(3)
        A(f"ds_write_b128 {v(vC1)}, {v(RL,4)} offset:{L_MEMF-HI}")
        A.label(LP('cdj'))
        TQ("cdj")
        A("s_waitcnt lgkmcnt(0)\ns_barrier")
        if trace: TR(4); A("s_waitcnt lgkmcnt(0)")
        lg.clear()
        if cnt: A(f"s_sub_u32 s96, {SPIN}, s{sSPIN}\ns_add_u32 s20, s20, s96")
        PH(0)
        def aread(i):
            A(f"ds_read_b128 {v(AS[i&3],4)}, {v(vAF)} offset:{L_MEMF-HI+i*512}")
            lg.push(f"A{i}")
        def dma(so): A(f"buffer_load_dwordx4 {v(vCON)}, {srd(SRD_WS)}, s{so} offen sc1 lds")
        VXF = [AS[2], AS[3]]
        TQ("start")
        for i in range(3): aread(i)
        f = 0
        nxt = 3
        late = []
        for i, kk in enumerate(korder):
            a_ = v(AS[i & 3], 4)
            TQ(f"q{i}")
            lg.wait(f"A{i}")
            sm(AQ, a_, WQ(kk))
            if i == 0: A("s_waitcnt vmcnt(0)"); aread(3); nxt = 4
            if i == EFAT and merged and eflag:
                A(f"s_and_b64 exec, s[{sU}:{sU+1}], 1\nv_mov_b32 {v(TMP)}, s{sSTEP}\nbuffer_store_dword {v(TMP)}, off, {srd(SRD_WS)}, s{sPRG} sc1\ns_mov_b64 exec, -1")
            if i == R2AT: dma(sT2)
            if i in (R2AT + 1, R2AT + 2): dma(sT4)
            if i == R3AT: dma(sT3)
            sm(AK, a_, WK(kk))
            if i == R2AT: A(f"s_add_u32 m0, s{sWB}, {L_KX}")
            if i == R2AT + 1: A(f"s_add_u32 m0, s{sWB}, {L_KX + 4096}\ns_add_u32 s{sT4}, s{sT4}, 4096")
            if i == R2AT + 2: A(f"s_mov_b32 m0, s{sM3}")
            if i in (B2AT, 12):
                A(f"s_waitcnt vmcnt({2 if i == B2AT else 0})\ns_barrier")
                while nxt <= i + 3: aread(nxt); nxt += 1
            if i == 7 and 'step' in hooks: hooks['step']()
            if i == 8: A(f"s_add_u32 s{sT0}, s{sSEG}, {WS_VX}\ns_lshr_b32 s{sT2}, s{sSEG}, 1")
            if i == 9: A(f"s_add_u32 s{sT1}, s{sT2}, {0x40000000 if nokm else WS_VM - L_Q}\ns_add_u32 s{sT4}, s{sT2}, {0x40000000 if nokm else WS_KM - L_Q}")
            if kk == 17:
                sm(AV, a_, v(WVR, 8))
            elif i >= 16:
                late.append((a_, f)); f += 1
            else:
                lg.wait(f"W{f}")
                sm(AV, a_, v(WR[f % 3], 8))
                if f + 3 < 17: wvread(f + 3)
                f += 1
            lim = 5 if i < B2AT else (13 if i < 12 else 17)
            while nxt <= min(i + 4, lim): aread(nxt); nxt += 1
            if i == 14: A(f"buffer_load_dwordx4 {v(VXF[0],4)}, {v(vVX)}, {srd(SRD_WS)}, s{sT0} offen sc1")
            if i == 15: A(f"buffer_load_dwordx4 {v(VXF[1],4)}, {v(vVX)}, {srd(SRD_WS)}, s{sT0} offen offset:256 sc1")
        TQ("qend")
        PH(1)
        if trace: A("s_waitcnt lgkmcnt(0)"); TR(5); A("s_waitcnt lgkmcnt(0)")
        S_ = D0 + 28
        QF = [D0 + 0, D0 + 4]; KF = [D0 + 12, D0 + 16]
        KXR = [D0 + 44, D0 + 48, D0 + 40]
        kxl = [(fb, kt) for fb in range(4) for kt in range(2)]
        def kxread(n):
            fb, kt = kxl[n]
            A(f"ds_read_b128 {v(KXR[n % 3],4)}, {v(vKX)} offset:{L_KX-HI+fb*2048+kt*128}")
            lg.push(f"X{n}")
        KP, ZP = D0 + 52, D0 + 54
        def latev(n):
            a_, f_ = late[n]
            lg.wait(f"W{f_}")
            sm(AV, a_, v(WR[f_ % 3], 8))
        def qk_write():
            pk2(AQ, AQ)
            A(f"ds_write_b64 {v(vQW)}, {v(AQ,2)}")
            pk2(KP, AK)
            A(f"ds_write_b64 {v(vQW)}, {v(KP,2)} offset:{L_K-L_Q}")
        latev(0)
        kxread(0); kxread(1)
        A(f"s_add_u32 s{sT0}, s{sSEG}, {WS_KX + WARMD*RECSZ}\ns_add_u32 s{sT2}, s{sSEG}, {WS_VX + WARMD*RECSZ}\ns_nop 1")
        TQ("s2a")
        qk_write(); lg.push("qk", 2)
        TQ("s2b")
        latev(1)
        kxread(2)
        A(f"""
        v_cmp_u_f32 vcc, {v(AK)}, {v(AK+1)}
        v_cmp_u_f32 s[{sRDLY2}:{sRDLY2+1}], {v(AK+2)}, {v(AK+3)}
        s_or_b64 vcc, vcc, s[{sRDLY2}:{sRDLY2+1}]
        s_cbranch_vccnz {LP('slow')}
        """)
        TQ("s2c")
        lg.wait("qk")
        TQ("s2d")
        A.label(LP('slowret'))
        A("s_barrier")
        TQ("s2end")
        PH(2)
        def qk_reads(fb):
            b = fb & 1
            for (dst, base, tg) in ((QF[b], 0, "Q"), (KF[b], L_K - L_Q, "K")):
                A(f"ds_read_b64_tr_b16 {v(dst,2)}, {v(vQR)} offset:{base+fb*512}")
                A(f"ds_read_b64_tr_b16 {v(dst+2,2)}, {v(vQR)} offset:{base+fb*512+128}")
                lg.push(f"{tg}{fb}", 2)
        qk_reads(0); qk_reads(1)
        pk2(ZP, AV)
        A(f"""
        s_cmp_eq_u32 s{sSTEP}, {last}
        s_cbranch_scc1 {L('done')}
        """)
        ON = D0 + 0; VMT = D0 + 8; M0_, M1_ = D0 + 14, D0 + 15
        PX = D0 + 40; PM = PX + 4
        vmt_ops = [f"v_cndmask_b32 {v(VMT)}, 0, {v(ZP)}, s[{sLO32}:{sLO32+1}]",
                   f"v_cndmask_b32 {v(VMT+1)}, 0, {v(ZP+1)}, s[{sLO32}:{sLO32+1}]",
                   f"v_mov_b32 {v(VMT+2)}, 0", f"v_mov_b32 {v(VMT+3)}, 0"]
        for fb in range(4):
            b = fb & 1
            TQ(f"fb{fb}")
            for kt in range(2):
                n = 2 * fb + kt
                lg.wait(f"Q{fb}"); lg.wait(f"X{n}")
                mf(S_ + 4 * kt, v(KXR[n % 3], 4), v(QF[b], 4), fb == 0)
                if n + 3 < 8: kxread(n + 3)
                if n == 0: A(f"buffer_store_dwordx2 {v(KP,2)}, {v(vQW)}, {srd(SRD_WS)}, s{sT4} offen sc1")
                if n == 3: A(f"buffer_store_dwordx2 {v(ZP,2)}, {v(vQW)}, {srd(SRD_WS)}, s{sT1} offen sc1")
                if fb == 1: A(vmt_ops.pop(0)); A(vmt_ops.pop(0))
                if fb == 3: A(f"v_mov_b32 {v(ON+2*kt)}, 0x3f803f80\nv_mov_b32 {v(ON+2*kt+1)}, 0x3f803f80")
            lg.wait(f"K{fb}")
            mf(S_ + 8, v(KF[b], 4), v(QF[b], 4), fb == 0)
            if fb + 2 < 4: qk_reads(fb + 2)
            if fb == 2 and not nowarm:
                A(f"""
                s_mov_b64 exec, s[{sU}:{sU+1}]
                v_lshlrev_b32 {v(vSP)}, 3, {v(vCON)}
                v_and_b32 {v(TMP)}, 0x1fff, {v(vSP)}
                buffer_load_dword {v(vSP)}, {v(TMP)}, {srd(SRD_WS)}, s{sT0} offen sc1
                buffer_load_dword {v(vSP)}, {v(TMP)}, {srd(SRD_WS)}, s{sT2} offen sc1
                """)
                if merged and not eflag:
                    A(f"""
                    s_and_b64 exec, exec, 1
                    v_mov_b32 {v(TMP)}, s{sSTEP}
                    v_mov_b32 {v(D0+52)}, s{sPRG}
                    buffer_store_dword {v(TMP)}, {v(D0+52)}, {srd(SRD_WS)}, 0 offen sc1
                    """)
                A("s_mov_b64 exec, -1")
        TQ("scend")
        PH(3)
        A(f"""
        v_cndmask_b32 {v(VMT+4)}, 0, {v(ZP)}, s[{sHI32}:{sHI32+1}]
        v_cndmask_b32 {v(VMT+5)}, 0, {v(ZP+1)}, s[{sHI32}:{sHI32+1}]
        v_mov_b32 {v(ON+4)}, 0x3f003f00
        v_mov_b32 {v(ON+5)}, 0x3f003f00
        v_max3_f32 {v(M0_)}, {v(S_+0)}, {v(S_+1)}, {v(S_+2)}
        v_mov_b32 {v(ON+6)}, 0
        v_max3_f32 {v(M1_)}, {v(S_+3)}, {v(S_+4)}, {v(S_+5)}
        v_max3_f32 {v(M0_)}, {v(M0_)}, {v(S_+6)}, {v(S_+7)}
        v_max3_f32 {v(M1_)}, {v(M1_)}, {v(S_+8)}, {v(S_+9)}
        v_max3_f32 {v(M0_)}, {v(M0_)}, {v(S_+10)}, {v(S_+11)}
        v_max_f32 {v(M0_)}, {v(M0_)}, {v(M1_)}
        v_max_f32 {v(M1_)}, {v(M0_)}, {v(M1_)}
        v_mov_b32 {v(ON+7)}, 0
        v_mov_b32 {v(PM+2)}, 0
        v_permlane32_swap_b32 {v(M0_)}, {v(M1_)}
        v_max_f32 {v(M0_)}, {v(M0_)}, {v(M1_)}
        v_max_f32 {v(M1_)}, {v(M0_)}, {v(M1_)}
        v_mov_b32 {v(PM+3)}, 0
        s_nop 0
        v_permlane16_swap_b32 {v(M0_)}, {v(M1_)}
        v_max_f32 {v(M0_)}, {v(M0_)}, {v(M1_)}
        v_mul_f32 {v(M0_)}, s{sC}, {v(M0_)}
        """)
        for i in range(6):
            A(f"v_pk_fma_f32 {v(S_+2*i,2)}, {v(S_+2*i,2)}, s[{sC}:{sC+1}], {v(M0_,2)} op_sel_hi:[1,1,0] neg_lo:[0,0,1] neg_hi:[0,0,1]")
        for i in range(12):
            A(f"v_exp_f32 {v(S_+i)}, {v(S_+i)}")
            if i >= 2 and i % 2 == 0: A(f"v_cvt_pk_bf16_f32 {v(PX+i//2-1)}, {v(S_+i-2)}, {v(S_+i-1)}")
        OT, OT1, LS = D0 + 16, D0 + 48, S_
        TQ("expend")
        A(f"""
        s_waitcnt vmcnt({(2 if nowarm else 4) + (1 if merged and not eflag else 0)})
        v_cvt_pk_bf16_f32 {v(PX+5)}, {v(S_+10)}, {v(S_+11)}
        v_mfma_f32_16x16x32_bf16 {v(LS,4)}, {v(ON,4)}, {v(PX,4)}, 0
        v_mfma_f32_16x16x32_bf16 {v(OT,4)}, {v(VXF[0],4)}, {v(PX,4)}, 0
        v_mfma_f32_16x16x32_bf16 {v(LS,4)}, {v(ON+4,4)}, {v(PM,4)}, {v(LS,4)}
        v_mfma_f32_16x16x32_bf16 {v(OT,4)}, {v(VMT,4)}, {v(PM,4)}, {v(OT,4)}
        v_mfma_f32_16x16x32_bf16 {v(OT1,4)}, {v(VXF[1],4)}, {v(PX,4)}, 0
        v_mfma_f32_16x16x32_bf16 {v(OT1,4)}, {v(VMT+2,4)}, {v(PX+2,4)}, {v(OT1,4)}
        """)
        WAo = [D0 + 32, D0 + 36, D0 + 0, D0 + 4]
        WA8 = D0 + 20
        OF = [D0 + 40, D0 + 44, D0 + 48, D0 + 52]
        zl = [WAo[p] + i for p in range(4) for i in range(4)]
        for r in zl[:5]: A(f"v_mov_b32 {v(r)}, 0")
        A(f"v_rcp_f32 {v(M0_)}, {v(LS)}")
        A(f"v_mov_b32 {v(zl[5])}, 0")
        A(f"v_pk_mul_f32 {v(OT,2)}, {v(OT,2)}, {v(M0_,2)} op_sel_hi:[1,0]")
        A(f"v_pk_mul_f32 {v(OT+2,2)}, {v(OT+2,2)}, {v(M0_,2)} op_sel_hi:[1,0]")
        pk2(OT, OT)
        A(f"ds_write_b64 {v(vOW)}, {v(OT,2)}")
        A(f"v_pk_mul_f32 {v(OT1,2)}, {v(OT1,2)}, {v(M0_,2)} op_sel_hi:[1,0]")
        A(f"v_pk_mul_f32 {v(OT1+2,2)}, {v(OT1+2,2)}, {v(M0_,2)} op_sel_hi:[1,0]")
        pk2(OT1, OT1)
        A(f"ds_write_b64 {v(vOW)}, {v(OT1,2)} offset:256")
        for r in zl[6:]: A(f"v_mov_b32 {v(r)}, 0")
        A(f"""
        s_add_u32 s{sT0}, s{sPW}, {4*65536}
        s_add_u32 s{sT1}, s{sPW}, {65536}
        s_waitcnt lgkmcnt(0)
        """)
        TQ("smend")
        PH(4)
        A("s_barrier")
        if trace: TR(0); A("s_waitcnt lgkmcnt(0)")
        lg.clear()
        for ks in range(4):
            A(f"ds_read_b128 {v(OF[ks],4)}, {v(vAF)} offset:{L_O-HI+ks*512}"); lg.push(f"O{ks}")
        SEL = D0 + 12; RT = D0 + 16; RDd = D0 + 20; RBS = [D0 + 24, D0 + 40]
        A(f"""
        s_add_u32 s{sT2}, s{sPW}, {2*65536}
        s_add_u32 s{sT3}, s{sPW}, {3*65536}
        s_add_u32 s{sSTEP}, s{sSTEP}, 1
        s_add_u32 s{sSEG}, s{sSEG}, {0 if fixseg else RECSZ}
        s_mov_b32 s{sSPIN}, {SPIN}
        """)
        for r in range(4): A(f"v_cndmask_b32 {v(SEL+r)}, 0, {v(SELV)}, s[{sSEL+2*r}:{sSEL+2*r+1}]")
        TQ("wostart")
        PH(5)
        tagop = lambda r: (f"v_or_b32 {v(r)}, 1, {v(r)}" if par else f"v_and_b32 {v(r)}, -2, {v(r)}")
        def out_ops(a0, soff, half=False):
            ops = [f"v_cvt_pk_bf16_f32 {v(a0)}, {v(a0)}, {v(a0+1)}", f"v_cvt_pk_bf16_f32 {v(a0+1)}, {v(a0+2)}, {v(a0+3)}",
                   tagop(a0), tagop(a0 + 1)]
            st = f"buffer_store_dwordx2 {v(a0,2)}, {v(vPST)}, {srd(SRD_WS)}, s{soff} offen{sc}"
            if half: st = f"s_mov_b64 exec, s[{sLO32}:{sLO32+1}]\n{st}\ns_mov_b64 exec, -1"
            return ops + [st]
        mfl = [("d", ks) for ks in range(4)] + [(p, ks) for p in range(4) for ks in range(4)]
        groups = [(3, out_ops(WA8, sT0, True))] + [(7 + 4 * p, out_ops(WAo[p], [sPW, sT1, sT2, sT3][p])) for p in range(4)]
        ic = [0]; pos = {}
        def emit(s_):
            A(s_); ic[0] += len([x for x in s_.split("\n") if x.strip()])
        cur = []; gi = 0
        for n, (p, ks) in enumerate(mfl):
            if p == "d":
                n0 = len(A.lines); lg.wait(f"O{ks}"); ic[0] += len(A.lines) - n0
                emit(f"v_mfma_f32_16x16x32_bf16 {v(WA8,4)}, {v(OF[ks],4)}, {WO8(ks)}, {'0' if ks == 0 else v(WA8,4)}")
            else:
                emit(f"v_smfmac_f32_16x16x64_bf16 {v(WAo[p],4)}, {v(OF[ks],4)}, {WO(p,ks)}, {v(IDX)}")
            pos[n] = ic[0]
            k = 0
            while k < 2:
                if not cur and gi < len(groups) and groups[gi][0] <= n and ic[0] - pos[groups[gi][0]] >= 8:
                    cur = list(groups[gi][1]); gi += 1
                if not cur: break
                emit(cur.pop(0)); k += 1
        while cur or gi < len(groups):
            if not cur:
                need = 8 - (ic[0] - pos[groups[gi][0]])
                if need > 0: emit(f"s_nop {need-1}"); ic[0] += need - 1
                cur = list(groups[gi][1]); gi += 1
            emit(cur.pop(0))
        TQ("woend")
        PH(6)
        TR(1)
        A(f"s_cmp_eq_u32 s{sRED}, 0\ns_cbranch_scc1 {LP('nored')}")
        def rload(sidx):
            for i in range(4):
                A(f"buffer_load_dwordx4 {v(RBS[sidx]+4*i,4)}, {v(vRED)}, {srd(SRD_WS)}, s{sPW} offen offset:{i*1024}{ld}")
        def rproc(sidx, br):
            for i in range(4):
                b = RBS[sidx] + 4 * i
                A(f"s_waitcnt vmcnt({(7 if RGAP else 3)-i})")
                mf(RDd, v(SEL, 4), v(b, 4), i == 0)
                o3 = (lambda d, x, y, z: f"v_bitop3_b32 {v(d)}, {v(x)}, {v(y)}, {v(z)} bitop3:0x80") if par else (lambda d, x, y, z: f"v_or3_b32 {v(d)}, {v(x)}, {v(y)}, {v(z)}")
                if i == 0:
                    A(o3(RT, b, b + 1, b + 2)); A(o3(RT, RT, b + 3, b + 3))
                else:
                    A(o3(RT, RT, b, b + 1)); A(o3(RT, RT, b + 2, b + 3))
            A(f"v_and_b32 {v(RT)}, 1, {v(RT)}\nv_cmp_ne_u32 vcc, {par}, {v(RT)}\n{br}")
        A(f"""
        s_mov_b32 s{sT0}, s{sRDLY}
    {LP('rdl')}:
        s_cmp_eq_u32 s{sT0}, 0
        s_cbranch_scc1 {LP('rgo')}
        s_sleep 1
        s_sub_u32 s{sT0}, s{sT0}, 1
        s_branch {LP('rdl')}
    {LP('rgo')}:
        """)
        TQ("rgo")
        rload(0)
        zero_acc()
        if RGAP:
            A(f"s_sleep {RGAP}")
            rload(1)
        A.label(LP('rp0'))
        rproc(0, f"s_cbranch_vccnz {LP('rf0')}")
        A.label(LP('rdone'))
        TQ("rdone")
        A(f"""
        {'s_sub_u32 s96, %d, s%d' % (SPIN, sSPIN) if cnt else 's_nop 0'}
        {'s_add_u32 s21, s21, s96' if cnt else 's_nop 0'}
        s_nop 0
        v_cndmask_b32 {v(RT)}, {v(RDd)}, {v(RDd+2)}, s[{sHI32}:{sHI32+1}]
        v_cndmask_b32 {v(RT+1)}, {v(RDd+1)}, {v(RDd+3)}, s[{sHI32}:{sHI32+1}]
        v_cndmask_b32 {v(RT+3)}, {v(RT+1)}, {v(RT)}, s[{sN8}:{sN8+1}]
        v_cndmask_b32 {v(RT+2)}, {v(RT)}, {v(RT+1)}, s[{sN8}:{sN8+1}]
        s_nop 0
        v_add_f32_dpp {v(RT+2)}, {v(RT+3)}, {v(RT+2)} row_ror:8 row_mask:0xf bank_mask:0xf
        v_mov_b32 {v(RT+3)}, {v(RT+2)}
        s_nop 1
        v_permlane16_swap_b32 {v(RT+2)}, {v(RT+3)}
        v_cvt_pk_bf16_f32 {v(RT+2)}, {v(RT+2)}, {v(RT+3)}
        v_min_u32 {v(TMP)}, -2, {v(RT+2)}
        s_mov_b64 exec, s[{sPM}:{sPM+1}]
        buffer_store_dword {v(TMP)}, {v(vPUB)}, {srd(SRD_WS)}, s{sMW} offen{sc}
        buffer_store_dword {v(vSP)}, {v(vPUB)}, {srd(SRD_WS)}, s{sMA} offen{sc}
        s_mov_b64 exec, -1
        """)
        TQ("pub")
        PH(7)
        TR(2)
        if trace: A("s_waitcnt lgkmcnt(0)")
        A(f"s_branch {nxt_loop}")
        A.label(LP('nored'))
        if trace: A("s_waitcnt vmcnt(0)"); TR(2); A("s_waitcnt lgkmcnt(0)")
        zero_acc()
        if merged:
            A(f"s_cmp_lg_u32 s{W}, 3\ns_cbranch_scc1 {LP('nkv')}\ns_add_u32 s{sT0}, s{sSTEP}, {WARMD + 1}\ns_min_u32 s{sT0}, s{sT0}, 64")
            kv_wait(sT0, LP('kv'))
            A.label(LP('nkv'))
        if tstep:
            A(f"s_cmp_lg_u32 s{W}, 2\ns_cbranch_scc1 {LP('nts')}\ns_memrealtime s[96:97]\ns_waitcnt lgkmcnt(0)\ns_mov_b32 m0, s{sSTEP}\nv_writelane_b32 {v(vSP)}, s96, m0\n{LP('nts')}:")
        if CDN: A(f"s_sleep {CDN}")
        A(f"s_branch {nxt_loop}x")
        A.label(LP('rf0'))
        rload(0); spin()
        if RGAP:
            rproc(1, f"s_cbranch_vccz {LP('rdone')}")
            rload(1); spin()
        A(f"s_branch {LP('rp0')}")
        A.label(LP('cf0'))
        cload(RL, sT1); spin()
        if CGAP:
            A("s_waitcnt vmcnt(1)")
            chk(P1, f"s_cbranch_vccz {LP('cd1')}")
            cload(P1, sT1); spin()
            A("s_waitcnt vmcnt(1)")
            chk(RL, f"s_cbranch_vccz {LP('cd0')}")
            A(f"s_branch {LP('cf0')}")
            A.label(LP('cd1'))
            TR(3)
            A(f"ds_write_b128 {v(vC1)}, {v(P1,4)} offset:{L_MEMF-HI}\ns_branch {LP('cdj')}")
        else:
            A(f"s_branch {LP('cw0')}")
        A.label(LP('slow'))
        A(f"s_sub_u32 s{sT3}, s{sMA}, {HI}\ns_waitcnt lgkmcnt(0)\ns_nop 7")
        zero_acc()
        for kp in range(9):
            lab = LP(f'sp{kp}_')
            for h in range(2):
                kk = 2 * kp + h
                if kk != 17:
                    A(f"ds_read_b128 {v(WR[h],4)}, {v(vWV)} offset:{kk*2048}\nds_read_b128 {v(WR[h]+4,4)}, {v(vWV)} offset:{kk*2048+1024}")
            A(f"""
{lab}:
            buffer_load_dwordx4 {v(AS[0],4)}, {v(vAF)}, {srd(SRD_WS)}, s{sT3} offen sc1
            buffer_load_dwordx4 {v(AS[1],4)}, {v(vAF)}, {srd(SRD_WS)}, s{sT3} offen offset:512 sc1
            """)
            spin()
            A(f"""
            s_waitcnt vmcnt(0) lgkmcnt(0)
            v_max3_u32 {v(TMP)}, {v(AS[0])}, {v(AS[0]+1)}, {v(AS[0]+2)}
            v_max3_u32 {v(TMP)}, {v(TMP)}, {v(AS[0]+3)}, {v(AS[1])}
            v_max3_u32 {v(TMP)}, {v(TMP)}, {v(AS[1]+1)}, {v(AS[1]+2)}
            v_max_u32 {v(TMP)}, {v(TMP)}, {v(AS[1]+3)}
            v_cmp_eq_u32 vcc, -1, {v(TMP)}
            s_cbranch_vccnz {lab}
            """)
            for h in range(2):
                kk = 2 * kp + h
                sm(AQ, v(AS[h], 4), WQ(kk)); sm(AK, v(AS[h], 4), WK(kk)); sm(AV, v(AS[h], 4), v(WR[h], 8) if kk != 17 else v(WVR, 8))
            A(f"s_add_u32 s{sT3}, s{sT3}, 1024")
        if prof: A(f"s_mov_b64 exec, {1 << 10}\nv_add_u32 v1, 63, v1\ns_mov_b64 exec, -1")
        if cnt: A("s_add_u32 s20, s20, 0x10000")
        A("s_nop 7")
        qk_write()
        A(f"ds_read_b128 {v(KXR[2],4)}, {v(vKX)} offset:{L_KX-HI+2048}")
        A(f"s_waitcnt lgkmcnt(0)\ns_branch {LP('slowret')}")
    step_body(0, sc, ''); step_body(1, sc, '')
    if merged:
        step_body(0, ' sc1', 'S'); step_body(1, ' sc1', 'S')
    A.label(L('done'))
    A(f"""
    s_lshr_b32 s{sT2}, s{sSEG}, 1
    s_add_u32 s{sT1}, s{sT2}, {WS_VM - L_Q}
    s_add_u32 s{sT4}, s{sT2}, {WS_KM - L_Q}
    buffer_store_dwordx2 {v(D0+52,2)}, {v(vQW)}, {srd(SRD_WS)}, s{sT4} offen sc1
    buffer_store_dwordx2 {v(D0+54,2)}, {v(vQW)}, {srd(SRD_WS)}, s{sT1} offen sc1
    """)
    A("s_waitcnt vmcnt(0) lgkmcnt(0)")
    if merged:
        A(f"""
        s_barrier
        s_cmp_lg_u32 s{W}, 3
        s_cbranch_scc1 {L('nfin')}
        v_mov_b32 {v(TMP)}, 64
        v_mov_b32 {v(D0+52)}, s{sPRG}
        s_mov_b64 exec, 1
        buffer_store_dword {v(TMP)}, {v(D0+52)}, {srd(SRD_WS)}, 0 offen sc1
        s_mov_b64 exec, -1
        s_waitcnt vmcnt(0)
{L('nfin')}:
        """)
    if cnt:
        A(f"v_mov_b32 v1, s20\ns_mov_b64 exec, 2\nv_mov_b32 v1, s21\ns_mov_b64 exec, -1")
        A("s_memtime s[96:97]\ns_memrealtime s[100:101]\ns_waitcnt lgkmcnt(0)\ns_sub_u32 s96, s96, s99\ns_sub_u32 s100, s100, s98")
        A("s_mov_b64 exec, 4\nv_mov_b32 v1, s96\ns_mov_b64 exec, 8\nv_mov_b32 v1, s100\ns_mov_b64 exec, -1")
    if trace:
        for i in range(6): A(f"s_mov_b64 exec, {1 << i}\nv_mov_b32 v1, s{8+2*i}")
        A("s_mov_b64 exec, -1")
    if tq:
        for i in range(len(tq)): A(f"s_mov_b64 exec, {1 << i}\nv_mov_b32 v1, s{8+2*i}")
        A("s_mov_b64 exec, -1")
    if tstart:
        TS(7)
        A("s_mov_b32 s8, s100\ns_mov_b32 s10, s98")
        for i in range(8): A(f"s_mov_b64 exec, {1 << i}\nv_mov_b32 v1, s{8+2*i}")
        A("s_mov_b64 exec, -1")
    if tstep: A(f"v_mov_b32 v1, {v(vSP)}")
    if prof or cnt or trace or tq or tstep or tstart:
        A(f"""
        s_lshl_b32 s96, s{s_head}, 2
        s_add_u32 s96, s96, s{W}
        s_lshl_b32 s96, s96, 8
        s_add_u32 s96, s96, {WS_STAMP + 0x10000}
        v_lshrrev_b32 v28, 2, {v(vCON)}
        v_and_b32 v28, 255, v28
        buffer_store_dword v1, v28, {srd(SRD_WS)}, s96 offen
        s_waitcnt vmcnt(0)
        """)
    stamp(A, 10, s_id=s_head)
    hstamp(A, 14)
```

```python
from common import *
import math, struct

WSTR = 36864
L_Q = 34816
L_K = 34816 + WSTR
L_O = 34816 + 2 * WSTR
L_MEMF = 145408
L_KX = 145408 + 9216
L_V = L_MEMF + 4096
HI = 98304
PSLOT = 72 * 4096
MSLOT = 9216
SPIN = 200000
CEXP = (128 ** -0.5) * math.log2(math.e)
def f32bits(x): return struct.unpack("<I", struct.pack("<f", x))[0]

def WQ(kk): return wreg(kk * 8, 8)
def WK(kk): return wreg(144 + kk * 8, 8)
def WO(p, ks): return wreg(288 + (p * 4 + ks) * 8, 8)
def WO8(ks): return wreg(288 + 128 + ks * 4, 4)

class LQ:
    def __init__(self, A, name): self.A, self.name, self.q = A, name, []
    def push(self, tag, n=1): self.q += [tag] * n; assert len(self.q) <= (15 if self.name == "lgkmcnt" else 63), self.q
    def wait(self, tag):
        if tag not in self.q: return
        idx = max(i for i, t in enumerate(self.q) if t == tag)
        self.A(f"s_waitcnt {self.name}({len(self.q) - 1 - idx})")
        del self.q[:idx + 1]
    def clear(self): self.q = []

def mod_R(A, s_head, sc="", pfx="R", abort="R_abort", last=63, prof=False, RD_=(0, 0, 0, 1, 2), CD=0, hooks=None, WARMD=2, cnt=False,
          CDN=0, fixseg=False, nokm=False, x_nowv=False, trace=False, RGAP=0, CGAP=0, ld=' sc1', tq=None, merged=False, wbar=False, worder='qk', wnt='', tstart=False, eflag=True, EFAT=13, WAT=14, tstep=False, CDN3=0, nowarm=False, R2AT=1, R3AT=7, B2AT=6, B3AT=13):
    assert R3AT > B2AT and R2AT + 2 < B2AT and eflag
    def TQ(tag):
        if tq and tag in tq: A(f"s_memtime s[{8+2*tq.index(tag)}:{9+2*tq.index(tag)}]")

    def TR(i):
        if trace: A(f"s_memrealtime s[{8+2*i}:{9+2*i}]")

    L = lambda n: f"{pfx}_{n}"
    def TS(i):
        r = 98 if i == 1 else 8 + 2 * i
        if tstart: A(f"s_memrealtime s[{r}:{r+1}]\ns_waitcnt lgkmcnt(0)")
    W = S_WAVE
    hooks = hooks or {}
    def PH(i):
        if not prof: return
        A(f"""
        s_waitcnt lgkmcnt(0)
        s_memtime s[96:97]
        s_waitcnt lgkmcnt(0)
        s_sub_u32 s99, s96, s98
        s_mov_b32 s98, s96
        s_mov_b64 exec, {1 << i}
        v_add_u32 v1, s99, v1
        s_mov_b64 exec, -1
        """)
    TMP = 0
    IDX, SELV, vPST, vRED, vPUB, vCON, vAF, vWV, vQW, vQR, vKX, vOW, vVX, vSP = range(2, 16)
    vC1 = 1
    assert not prof
    WVR = 16
    D0 = 24
    sSTEP, sPW, sPR, sMW, sMR, sMA, sRED, sSEG = 64, 65, 66, 67, 68, 69, 70, 71
    sLO32, sHI32, sEVEN, sN8 = 72, 74, 76, 78
    sU = 80
    sU2 = sU
    sC = 82
    sRDLY, sWB, sB1 = 84, 85, 59
    sB3, sM3, sPRG = 66, 57, 4
    sRDLY2 = 96
    sPM = sEVEN
    sSEL = 86
    sT0, sT1, sT2, sSPIN, sT3, sT4 = 60, 61, 62, 63, 94, 95
    T0, T1, T2 = D0, D0 + 1, D0 + 2
    stamp(A, 8, s_id=s_head)
    hstamp(A, 12)
    def bits(dst, terms, add=None):
        first = True
        for (off, n, sh) in terms:
            A(f"v_bfe_u32 {v(T2)}, v1, {off}, {n}")
            if first:
                A(f"v_lshlrev_b32 {v(dst)}, {sh}, {v(T2)}"); first = False
            else:
                A(f"v_lshl_add_u32 {v(dst)}, {v(T2)}, {sh}, {v(dst)}")
        if add is not None:
            A(f"v_add_u32 {v(dst)}, {add}, {v(dst)}")
    vWA, vWB = D0 + 52, D0 + 53
    vTR = [D0 + 44, D0 + 45]
    vTO = [D0 + 46 + k for k in range(4)]
    vTD = [D0 + 28 + k for k in range(4)]
    X0, X1 = D0 + 8, D0 + 9
    sWL = 7
    VS = D0 + 12
    A(f"""
    s_lshl_b32 s{sT0}, s{s_head}, 8
    s_lshr_b32 s{sT1}, s{W}, 1
    s_lshl_b32 s{sT1}, s{sT1}, 7
    s_add_u32 s{sT0}, s{sT0}, s{sT1}
    s_and_b32 s{sT1}, s{W}, 1
    s_lshl_b32 s{sT1}, s{sT1}, 18
    s_add_u32 s{sT0}, s{sT0}, s{sT1}
    s_mul_i32 s{sWL}, s{W}, {WSTR}
    """)
    bits(vWA, [(3, 3, 13), (0, 3, 4)], f"s{sT0}")
    chunks = [(worder[0], kb) for kb in range(9)] + [(worder[1], kb) for kb in range(9)] + \
             [("o", (p, kb2)) for p in range(5) for kb2 in range(2)] + [("v", kb) for kb in range(9)]
    slot_of = lambda c: (c - 28) % 9
    def wdma(c):
        kind, ix = chunks[c]; sl = slot_of(c)
        for n in range(4):
            A(f"s_add_u32 m0, s{sWL}, {sl*4096 + n*1024}")
            if kind == "o":
                p, kb2 = ix
                A(f"s_mov_b32 s{sT1}, {(kb2*64 + n*4)*1152 + p*256}")
                A(f"buffer_load_dwordx4 {v(vWB)}, {srd(SRD_WO)}, s{sT1} offen{wnt} lds")
            else:
                A(f"s_mov_b32 s{sT1}, {ix*524288 + n*65536}")
                A(f"buffer_load_dwordx4 {v(vWA)}, {srd({'q': SRD_WQ, 'k': SRD_WK, 'v': SRD_WV}[kind])}, s{sT1} offen{wnt} lds")
    for c in range(9): wdma(c)
    TS(1)
    if 'resolve' in hooks: hooks['resolve']()
    TS(2)
    A.c("R setup")
    A(f"""
    s_mov_b32 s{sLO32}, -1
    s_mov_b32 s{sLO32+1}, 0
    s_mov_b32 s{sHI32}, 0
    s_mov_b32 s{sHI32+1}, -1
    s_mov_b32 s{sEVEN}, 0x55555555
    s_mov_b32 s{sEVEN+1}, 0x55555555
    s_mov_b32 s{sN8}, 0xff00ff00
    s_mov_b32 s{sN8+1}, 0xff00ff00
    s_mov_b32 s{sC}, {f32bits(CEXP)}
    s_mov_b32 s{sC+1}, {f32bits(CEXP)}
    s_lshl_b32 s{sWB}, s{W}, 10
    s_cmp_eq_u32 s{W}, 2
    s_mov_b32 s{sB1}, -1024
    s_cselect_b32 s{sB1}, 8192, s{sB1}
    s_lshl_b32 s{sPRG}, s{s_head}, 7
    s_add_u32 s{sPRG}, s{sPRG}, {FLAG_RP}
    s_sub_u32 s{sB3}, 7168, s{sWB}
    s_mov_b32 s{sM3}, {L_MEMF + 8192}
    """)
    for r in range(4):
        m = (0x03030303 << (2 * r)) & 0xffffffff
        A(f"s_mov_b32 s{sSEL+2*r}, {m}\ns_mov_b32 s{sSEL+2*r+1}, {m}")
    A(f"""
    v_mov_b32 {v(IDX)}, 0x44444444
    v_mov_b32 {v(T0)}, 0xeeeeeeee
    v_cndmask_b32 {v(IDX)}, {v(IDX)}, {v(T0)}, s[{sN8}:{sN8+1}]
    v_mov_b32 {v(SELV)}, 0x3f800000
    v_mov_b32 {v(T0)}, 0x3f80
    v_cndmask_b32 {v(SELV)}, {v(SELV)}, {v(T0)}, s[{sEVEN}:{sEVEN+1}]
    s_mov_b32 s{sPM}, 0xffff
    s_mov_b32 s{sPM+1}, 0xffff
    v_lshlrev_b32 {v(T0)}, 4, v1
    s_add_u32 s{sT0}, s{sWB}, {HI}
    v_add_u32 {v(vCON)}, s{sT0}, {v(T0)}
    s_mul_i32 s{sT0}, s{W}, {WSTR}
    v_add_u32 {v(vWV)}, s{sT0}, {v(T0)}
    s_lshl_b32 s{sT0}, s{W}, 5
    s_add_u32 s{sT0}, s{sT0}, s{s_head}           ; unit
    s_lshl_b32 s{sT1}, s{sT0}, 12
    s_cmp_lt_u32 s{sT0}, 72
    s_cselect_b32 s{sRED}, 1, 0
    s_cselect_b32 s{sT1}, s{sT1}, 0x40000000
    v_add_u32 {v(vRED)}, s{sT1}, {v(T0)}
    s_lshr_b32 s{sT1}, s{sT0}, 1
    s_lshl_b32 s{sT4}, s{sT1}, 5
    s_lshl_b32 s{sT1}, s{sT1}, 8
    s_and_b32 s{sT2}, s{sT0}, 1
    s_mul_i32 s{sT3}, s{sT2}, {4*1152}
    s_add_u32 s{sT4}, s{sT4}, s{sT3}
    s_lshl_b32 s{sT2}, s{sT2}, 6
    s_add_u32 s{sT1}, s{sT1}, s{sT2}
    s_lshr_b32 s{sT2}, s{sT0}, 4
    s_add_u32 s{sT2}, s{sT2}, 1
    s_cmp_ge_u32 s{sT0}, 64
    s_cselect_b32 s{sT2}, 0, s{sT2}
    s_mov_b32 s{sRDLY}, {RD_[0]}
    """)
    for o in range(1, 5):
        A(f"s_cmp_eq_u32 s{sT2}, {o}\ns_cselect_b32 s{sRDLY}, {RD_[o]}, s{sRDLY}")
    bits(vPUB, [(2, 1, 7), (5, 1, 5), (3, 1, 4), (0, 2, 2)], f"s{sT1}")
    A(f"s_lshl_b32 s{sT1}, s{W}, 1\ns_xor_b32 s{sT2}, s{s_head}, s{sT1}\ns_lshl_b32 s{sT2}, s{sT2}, 7\ns_lshl_b32 s{sT1}, s{W}, 13")
    bits(vPST, [(5, 1, 10), (4, 1, 7)])
    A(f"v_xor_b32 {v(T1)}, s{sT2}, {v(vPST)}\nv_add_u32 {v(T1)}, s{sT1}, {v(T1)}")
    bits(vPST, [(5, 1, 15), (4, 1, 12), (0, 4, 3)], v(T1))
    A(f"s_lshl_b32 s{sT1}, s{W}, 9\ns_add_u32 s{sT2}, s{sT1}, {L_Q}")
    bits(vQW, [(5, 1, 8), (0, 4, 4), (4, 1, 3)], f"s{sT2}")
    bits(vQR, [(5, 1, 8), (4, 1, 6), (2, 2, 4), (0, 1, 3)], L_Q)
    bits(vKX, [(4, 2, 9), (3, 1, 8), (0, 3, 4)], HI)
    bits(vAF, [(4, 2, 7), (0, 3, 4)], HI)
    A(f"s_add_u32 s{sT2}, s{sT1}, {L_O}")
    bits(vOW, [(5, 1, 7), (0, 3, 4), (4, 1, 3)], f"s{sT2}")
    A(f"s_lshl_b32 s{sT1}, s{W}, 11")
    bits(vVX, [(4, 2, 9), (0, 4, 4)], f"s{sT1}")
    ARM = D0 + 4
    X0, X1 = D0 + 8, D0 + 9
    for i in range(4): A(f"v_mov_b32 {v(ARM+i)}, -1")
    A(f"s_cmp_eq_u32 s{sRED}, 0\ns_cbranch_scc1 {L('noarm')}")
    bits(X1, [(5, 1, 1), (3, 1, 0)])
    A(f"v_mul_u32_u24 {v(X1)}, 1152, {v(X1)}")
    bits(X0, [(0, 3, 2)], v(X1))
    A(f"buffer_load_dword {v(vSP)}, {v(X0)}, {srd(SRD_M0)}, s{sT4} offen")
    A(f"s_mov_b32 s{sT0}, {WS_PART}")
    for i in range(4):
        A(f"buffer_store_dwordx4 {v(ARM,4)}, {v(vRED)}, {srd(SRD_WS)}, s{sT0} offen offset:{i*1024} sc1")
    A(f"s_mov_b64 exec, s[{sEVEN}:{sEVEN+1}]")
    for sl in range(3):
        A(f"s_mov_b32 s{sT0}, {WS_MEMB + sl*MSLOT}")
        A(f"buffer_store_dword {v(ARM)}, {v(vPUB)}, {srd(SRD_WS)}, s{sT0} offen sc1")
    A("s_mov_b64 exec, -1")
    A.label(L('noarm'))
    if merged:
        A(f"""
        s_cmp_lg_u32 s{W}, 3
        s_cbranch_scc1 {L('nz')}
        v_lshlrev_b32 {v(X0)}, 2, v1
        v_mov_b32 {v(X1)}, 0
        s_lshl_b32 s{sT0}, s{s_head}, 8
        s_add_u32 s{sT0}, s{sT0}, {FLAG_KV}
        buffer_store_dword {v(X1)}, {v(X0)}, {srd(SRD_WS)}, s{sT0} offen sc1
        s_add_u32 s{sT0}, s{sT0}, {FLAG_OX - FLAG_KV}
        buffer_store_dword {v(X1)}, {v(X0)}, {srd(SRD_WS)}, s{sT0} offen sc1
        v_mov_b32 {v(X0)}, s{sPRG}
        buffer_store_dword {v(X1)}, {v(X0)}, {srd(SRD_WS)}, 0 offen sc1
{L('nz')}:
        """)
    A(f"""
    v_lshrrev_b32 {v(X0)}, 4, v1
    s_lshl_b32 s{sT0}, s{W}, 4
    v_add_u32 {v(X0)}, s{sT0}, {v(X0)}
    v_mul_u32_u24 {v(X0)}, 1152, {v(X0)}
    s_mul_i32 s{sT0}, s{s_head}, 147456
    v_add_u32 {v(X0)}, s{sT0}, {v(X0)}
    s_and_b32 s{sT0}, s{W}, 2
    s_mul_i32 s{sT0}, s{sT0}, {WSTR}
    s_and_b32 s{sT1}, s{W}, 1
    s_lshl_b32 s{sT1}, s{sT1}, 6
    s_add_u32 s{sT0}, s{sT0}, s{sT1}
    s_lshl_b32 s{sT1}, s{W}, 5
    """)
    bits(vWB, [(0, 4, 4)], v(X0))
    bits(vTR[0], [(4, 2, 9), (2, 1, 7), (3, 1, 5), (0, 2, 3)], f"s{sT0}")
    A(f"v_add_u32 {v(vTR[1])}, {WSTR}, {v(vTR[0])}")
    bits(vTO[0], [(4, 2, 10), (2, 1, 8), (3, 1, 7), (0, 2, 3)], f"s{sT1}")
    bits(vTD[0], [(4, 1, 11), (2, 2, 8), (0, 2, 3)], f"s{sT1}")
    A(f"v_bfe_u32 {v(T2)}, v1, 5, 1\nv_mul_u32_u24 {v(T2)}, {WSTR}, {v(T2)}\nv_add_u32 {v(vTD[0])}, {v(vTD[0])}, {v(T2)}")
    for k in range(1, 4): A(f"v_add_u32 {v(vTO[k])}, {k*WSTR}, {v(vTO[0])}")
    A(f"v_add_u32 {v(vTD[1])}, {2*WSTR}, {v(vTD[0])}")
    def trread(dst_fn, h, sl):
        for t, ro in enumerate((0, 2, 16, 18)):
            A(f"ds_read_b64_tr_b16 {dst_fn(t)}, {v(vTR[h])} offset:{sl*4096 + ro*128}")
    def trread_o(dst_fn, h, sl):
        for t, (k, ro) in enumerate(((0, 0), (0, 2), (1, 0), (1, 2))):
            A(f"ds_read_b64_tr_b16 {dst_fn(t)}, {v(vTO[2*h+k])} offset:{sl*4096 + ro*256}")
    sub = lambda base, t: wreg(base + 2 * t, 2)
    NCH = len(chunks)
    for c in range(NCH):
        kind, ix = chunks[c]; sl = slot_of(c)
        A(f"s_waitcnt vmcnt({min(NCH - 1 - c, 8) * 4 + (7 if c > NCH - 10 else 0)}) lgkmcnt(0)\ns_barrier")
        if kind in "qk":
            base = 0 if kind == "q" else 144
            for h in range(2): trread(lambda t: sub(base + (2 * ix + h) * 8, t), h, sl)
        elif kind == "o":
            p, kb2 = ix
            for h in range(2):
                if p < 4: trread_o(lambda t: sub(288 + (p * 4 + 2 * kb2 + h) * 8, t), h, sl)
                else:
                    for t in range(2):
                        A(f"ds_read_b64_tr_b16 {wreg(288 + 128 + (2*kb2+h)*4 + 2*t, 2)}, {v(vTD[h])} offset:{sl*4096 + 4*t*256}")
        else:
            trread(lambda t: v(VS + 2 * t, 2), 0, sl)
            if ix < 8: trread(lambda t: v(VS + 8 + 2 * t, 2), 1, sl)
            else: trread(lambda t: v(WVR + 2 * t, 2), 1, sl)
        A("s_waitcnt lgkmcnt(0)\ns_barrier")
        if kind == "v":
            for q in range(4 if ix < 8 else 2):
                A(f"ds_write_b128 {v(vWV)}, {v(VS+4*q,4)} offset:{ix*4096 + q*1024}")
        if c == 0: TS(3)
        if c == 9: TS(4)
        if c == NCH - 1: TS(5)
        if c == 9:
            A(f"""
            s_cmp_lg_u32 s{W}, 0
            s_cbranch_scc1 {L('armed')}
            v_mov_b32 {v(T0)}, 1
            v_mov_b32 {v(T1)}, {DBG_RARM}
            s_mov_b64 exec, 1
            buffer_atomic_add {v(T0)}, {v(T1)}, {srd(SRD_DBG)}, 0 offen sc1
            s_mov_b64 exec, -1
{L('armed')}:
            """)
        if c + 9 < NCH: wdma(c + 9)
        if c == NCH - 10:
            A(f"s_mov_b32 s{sT0}, {WS_PART}")
            for i in range(4):
                A(f"buffer_load_dwordx4 {v(D0+28+4*i,4)}, {v(vRED)}, {srd(SRD_WS)}, s{sT0} offen offset:{i*1024} sc1")
            for sl in range(3):
                A(f"s_mov_b32 s{sT0}, {WS_MEMB + sl*MSLOT}")
                A(f"buffer_load_dword {v(D0+46)}, {v(vPUB)}, {srd(SRD_WS)}, s{sT0} offen sc1")
    stamp(A, 9, s_id=s_head)
    hstamp(A, 13)
    AQ, AK, AV = D0, D0 + 4, D0 + 8
    AS = [D0 + 12 + 4 * i for i in range(4)]
    WR = [D0 + 28, D0 + 36, D0 + 44]
    korder = [16, 17] + list(range(16))
    wvl = [kk for kk in korder if kk != 17]
    lg = LQ(A, "lgkmcnt")
    def wvread(f):
        if x_nowv: return
        o = wvl[f] * 2048; d = WR[f % 3]
        A(f"ds_read_b128 {v(d,4)}, {v(vWV)} offset:{o}")
        A(f"ds_read_b128 {v(d+4,4)}, {v(vWV)} offset:{o+1024}")
        lg.push(f"W{f}", 2)
    def zero_acc():
        for i in range(12): A(f"v_mov_b32 {v(AQ+i)}, 0")
    sKV = 5
    sMODE = 6
    def kv_wait(s_need, lab):
        A(f"""
        s_cmp_ge_u32 s{sKV}, s{s_need}
        s_cbranch_scc1 {lab}_ok
        s_lshl_b32 s{sT1}, s{s_head}, 8
        s_add_u32 s{sT1}, s{sT1}, {FLAG_KV}
        v_lshrrev_b32 {v(TMP)}, 2, {v(vCON)}
        v_and_b32 {v(TMP)}, 255, {v(TMP)}
{lab}_p:
        buffer_load_dword {v(D0+40)}, {v(TMP)}, {srd(SRD_WS)}, s{sT1} offen sc1
        s_sub_u32 s{sSPIN}, s{sSPIN}, 1
        s_cbranch_scc1 {abort}
        s_waitcnt vmcnt(0)
        v_cmp_ne_u32 vcc, 4, {v(D0+40)}
        s_ff1_i32_b64 s{sKV}, vcc
        s_cmp_lt_i32 s{sKV}, 0
        s_cselect_b32 s{sKV}, 64, s{sKV}
        s_cmp_ge_u32 s{sKV}, s{s_need}
        s_cbranch_scc1 {lab}_ok
        s_sleep 4
        s_branch {lab}_p
{lab}_ok:
        """)
    A(f"""
    s_mov_b32 s{sSPIN}, {SPIN}
    v_and_b32 {v(X1)}, 31, v1
    v_lshlrev_b32 {v(X1)}, 2, {v(X1)}
{L('warm')}:
    buffer_load_dword {v(X0)}, {v(X1)}, {srd(SRD_DBG)}, 0 offen sc1
    s_sub_u32 s{sSPIN}, s{sSPIN}, 1
    s_cbranch_scc1 {abort}
    s_waitcnt vmcnt(0)
    v_readlane_b32 s{sT0}, {v(X0)}, {DBG_RARM//4}
    v_readlane_b32 s{sT1}, {v(X0)}, {DBG_OVH//4}
    s_cmp_lt_u32 s{sT0}, 32
    s_cbranch_scc1 {L('warm')}
    s_cmp_eq_u32 s{sT1}, 0
    s_cselect_b32 s{sMODE}, 0, 1
    """)
    if merged:
        A(f"""
        s_mov_b32 s{sKV}, 0
        s_cmp_lg_u32 s{W}, 3
        s_cbranch_scc1 {L('nkvi')}
        s_mov_b32 s{sT0}, {WARMD + 1}
        """)
        kv_wait(sT0, L('kvi'))
        A(f"v_lshlrev_b32 {v(X0)}, 7, v1\ns_lshl_b32 s{sT0}, s{s_head}, 13")
        for sg in range(WARMD):
            A(f"s_add_u32 s{sT1}, s{sT0}, {WS_KX + sg*RECSZ}\nbuffer_load_dword {v(X1)}, {v(X0)}, {srd(SRD_WS)}, s{sT1} offen sc1")
            A(f"s_add_u32 s{sT1}, s{sT0}, {WS_VX + sg*RECSZ}\nbuffer_load_dword {v(X1)}, {v(X0)}, {srd(SRD_WS)}, s{sT1} offen sc1")
        A(f"s_waitcnt vmcnt(0)\n{L('nkvi')}:")
    A(f"""
    s_mov_b32 s{sSTEP}, 0
    s_mov_b32 s{sPW}, {WS_PART}
    s_mov_b32 s{sMA}, {WS_MEMB + 2*MSLOT}
    s_mov_b32 s{sMW}, {WS_MEMB}
    s_mov_b32 s{sMR}, {WS_MEMB + MSLOT}
    s_lshl_b32 s{sSEG}, s{s_head}, 13
    s_cmp_eq_u32 s{sRED}, 0
    s_cbranch_scc1 {L('nom0')}
    v_min_u32 {v(vSP)}, -2, {v(vSP)}
    s_mov_b64 exec, s[{sEVEN}:{sEVEN+1}]
    buffer_store_dword {v(vSP)}, {v(vPUB)}, {srd(SRD_WS)}, s{sMW} offen sc1
    s_mov_b64 exec, -1
    s_nop 0
    v_mov_b32 {v(vSP)}, -1
{L('nom0')}:
    s_cmp_eq_u32 s{W}, 3
    s_cselect_b64 s[{sU}:{sU+1}], -1, 0
    s_cmp_eq_u32 s{W}, 3
    s_movk_i32 s{sT0}, 2048
    s_cselect_b32 s{sT0}, 1024, s{sT0}
    v_subrev_u32 v1, s{sT0}, {v(vCON)}
    s_waitcnt lgkmcnt(0)
    s_barrier
    """)
    zero_acc()
    if prof: A("v_mov_b32 v1, 0\ns_memtime s[98:99]\ns_waitcnt lgkmcnt(0)")
    TS(6)
    if merged: A(f"s_cmp_eq_u32 s{sMODE}, 1\ns_cbranch_scc1 {L('loopS0')}x")
    if cnt: A("s_mov_b32 s20, 0\ns_mov_b32 s21, 0\ns_memtime s[96:97]\ns_memrealtime s[98:99]\ns_waitcnt lgkmcnt(0)\ns_mov_b32 s99, s96")
    RL = D0 + 52
    def sm(acc, a_, b): A(f"v_smfmac_f32_16x16x64_bf16 {v(acc,4)}, {a_}, {b}, {v(IDX)}")
    def mf(d, a_, b_, first):
        A(f"v_mfma_f32_16x16x32_bf16 {v(d,4)}, {a_}, {b_}, {'0' if first else v(d,4)}")
    def chk(r, br):
        A(f"""
        v_max3_u32 {v(TMP)}, {v(r)}, {v(r+1)}, {v(r+2)}
        v_max_u32 {v(TMP)}, {v(TMP)}, {v(r+3)}
        v_cmp_eq_u32 vcc, -1, {v(TMP)}
        {br}
        """)
    def spin(): A(f"s_sub_u32 s{sSPIN}, s{sSPIN}, 1\ns_cbranch_scc1 {abort}")
    def cload(r, so): A(f"buffer_load_dwordx4 {v(r,4)}, {v(vC1)}, {srd(SRD_WS)}, s{so} offen{ld}")
    def pk2(d, s_):
        A(f"v_cvt_pk_bf16_f32 {v(d)}, {v(s_)}, {v(s_+1)}")
        A(f"v_cvt_pk_bf16_f32 {v(d+1)}, {v(s_+2)}, {v(s_+3)}")
    def step_body(par, sc, md):
        LP = lambda n: L(n + md + str(par))
        nxt_loop = L('loop' + md + str(1 - par))
        A.label(LP('loop'))
        A("s_waitcnt vmcnt(2)")
        A.label(LP('loop') + "x")
        lg.clear()
        A(f"""
        s_mov_b32 s{sT3}, s{sMA}
        s_mov_b32 s{sMA}, s{sMW}
        s_mov_b32 s{sMW}, s{sMR}
        s_mov_b32 s{sMR}, s{sT3}
        s_mov_b32 s{sSPIN}, {SPIN}
        s_sub_u32 s{sT0}, s{sMA}, {HI}
        s_add_u32 s{sT1}, s{sT0}, s{sB1}
        s_add_u32 s{sT2}, s{sT0}, 3072
        s_sub_u32 s{sT0}, s{sT0}, 1024
        s_add_u32 s{sT3}, s{sT0}, s{sB3}
        s_add_u32 s{sT3}, s{sT3}, 1024
        s_add_u32 s{sT4}, s{sSEG}, {WS_KX - HI}
        s_add_u32 m0, s{sWB}, {L_MEMF + 4096}
        """)
        for f in range(3): wvread(f)
        A(f"s_cmp_lt_u32 s{W}, 2\ns_cbranch_scc1 {LP('cdj')}")
        if CD: A(f"s_sleep {CD}")
        TQ("cgo")
        def cload2(r):
            A(f"buffer_load_dwordx4 {v(r,4)}, {v(vC1)}, {srd(SRD_WS)}, s{sT1} offen sc1")
            A(f"buffer_load_dwordx4 {v(r+4,4)}, {v(vC1)}, {srd(SRD_WS)}, s{sT0} offen offset:1024 sc1")
        def cproc(r, y, br):
            A(f"""
            s_waitcnt vmcnt({y+1})
            ds_write_b128 {v(vC1)}, {v(r,4)} offset:{L_MEMF-HI}
            v_max3_u32 {v(TMP)}, {v(r)}, {v(r+1)}, {v(r+2)}
            s_waitcnt vmcnt({y})
            ds_write_b128 {v(vC1)}, {v(r+4,4)} offset:{L_MEMF-HI+1024}
            v_max3_u32 {v(TMP)}, {v(TMP)}, {v(r+3)}, {v(r+4)}
            v_max3_u32 {v(TMP)}, {v(TMP)}, {v(r+5)}, {v(r+6)}
            v_max_u32 {v(TMP)}, {v(TMP)}, {v(r+7)}
            v_cmp_eq_u32 vcc, -1, {v(TMP)}
            {br}
            """)
        if CGAP:
            cload2(AS[2]); A(f"s_sleep {CGAP}" if CGAP > 0 else f"s_nop {-CGAP}"); cload2(AS[0])
            A.label(LP('cp'))
            cproc(AS[2], 2, f"s_cbranch_vccnz {LP('cf')}")
            A.label(LP('cok'))
            A("s_waitcnt vmcnt(0)")
        else:
            A.label(LP('cp'))
            cload2(AS[2]); spin()
            cproc(AS[2], 0, f"s_cbranch_vccnz {LP('cp')}")
        A.label(LP('cdj'))
        TQ("cdj")
        A("s_waitcnt lgkmcnt(0)\ns_barrier")
        if trace: TR(4); A("s_waitcnt lgkmcnt(0)")
        lg.clear()
        if cnt: A(f"s_sub_u32 s96, {SPIN}, s{sSPIN}\ns_add_u32 s20, s20, s96")
        PH(0)
        slot = lambda i: (i & 3) if i < 12 else (i - 12) % 3
        prev_user = lambda j: j - 4 if j < 15 else j - 3
        def aread(i):
            A(f"ds_read_b128 {v(AS[slot(i)],4)}, {v(vAF)} offset:{L_MEMF-HI+i*512}")
            lg.push(f"A{i}")
        def dma(so): A(f"buffer_load_dwordx4 {v(vCON)}, {srd(SRD_WS)}, s{so} offen sc1 lds")
        KXR = [D0 + 44, D0 + 48, D0 + 28, D0 + 32, D0 + 36, D0 + 40, D0 + 28, D0 + 32]
        VXF = [D0 + 52, D0 + 24]
        def kxread(n):
            A(f"ds_read_b128 {v(KXR[n],4)}, {v(vKX)} offset:{L_KX-HI+(n>>1)*2048+(n&1)*128}")
            lg.push(f"X{n}")
        TQ("start")
        for i in range(4): aread(i)
        f = 0
        nxt = 4
        late = []
        for i, kk in enumerate(korder):
            a_ = v(AS[slot(i)], 4)
            TQ(f"q{i}")
            lg.wait(f"A{i}")
            sm(AQ, a_, WQ(kk))
            if i == WAT:
                A(f"s_mov_b64 exec, s[{sU}:{sU+1}]")
                if not nowarm:
                    A(f"""
                    v_lshlrev_b32 {v(vSP)}, 3, {v(vCON)}
                    v_and_b32 {v(TMP)}, 0x1fff, {v(vSP)}
                    buffer_load_dword {v(vSP)}, {v(TMP)}, {srd(SRD_WS)}, s{sT3} offen sc1
                    buffer_load_dword {v(vSP)}, {v(TMP)}, {srd(SRD_WS)}, s{sT2} offen sc1
                    """)
                if merged:
                    A(f"s_and_b64 exec, exec, 1\nv_mov_b32 {v(TMP)}, s{sSTEP}\nbuffer_store_dword {v(TMP)}, off, {srd(SRD_WS)}, s{sPRG} sc1")
                A("s_mov_b64 exec, -1")
            if i == R2AT: dma(sT2)
            if i in (R2AT + 1, R2AT + 2): dma(sT4)
            if i == R3AT: dma(sT3)
            if i == R3AT + 1: A(f"buffer_load_dwordx4 {v(VXF[0],4)}, {v(vVX)}, {srd(SRD_WS)}, s{sT0} offen sc1")
            sm(AK, a_, WK(kk))
            if i == R2AT: A(f"s_add_u32 m0, s{sWB}, {L_KX}")
            if i == R2AT + 1: A(f"s_add_u32 m0, s{sWB}, {L_KX + 4096}\ns_add_u32 s{sT4}, s{sT4}, 4096")
            if i == R2AT + 2: A(f"s_mov_b32 m0, s{sM3}\ns_add_u32 s{sT0}, s{sSEG}, {WS_VX}")
            if i in (B2AT, B3AT):
                A(f"s_waitcnt vmcnt(2)\ns_barrier")
                while prev_user(nxt) < i: aread(nxt); nxt += 1
            if i == 8: A(f"s_lshr_b32 s{sT2}, s{sSEG}, 1")
            if i == 9: A(f"s_add_u32 s{sT1}, s{sT2}, {0x40000000 if nokm else WS_VM - L_Q}\ns_add_u32 s{sT4}, s{sT2}, {0x40000000 if nokm else WS_KM - L_Q}")
            if i == 10: A(f"s_add_u32 s{sT3}, s{sSEG}, {WS_KX + WARMD*RECSZ}\ns_add_u32 s{sT2}, s{sSEG}, {WS_VX + WARMD*RECSZ}")
            if kk == 17:
                sm(AV, a_, v(WVR, 8))
            elif i >= 16:
                late.append((a_, f)); f += 1
            else:
                lg.wait(f"W{f}")
                sm(AV, a_, v(WR[f % 3], 8))
                if f + 3 < 17: wvread(f + 3)
                f += 1
            lim = 7 if i < B2AT else (15 if i < B3AT else 17)
            while nxt <= lim and prev_user(nxt) <= i: aread(nxt); nxt += 1
            if i == 11: A(f"buffer_load_dwordx4 {v(VXF[1],4)}, {v(vVX)}, {srd(SRD_WS)}, s{sT0} offen offset:256 sc1")
            if i == 15: kxread(0); kxread(1)
        assert nxt == 18 and WAT > B3AT >= 12 and R3AT + 1 <= 11
        TQ("qend")
        QF = [D0 + 0, D0 + 4]; KF = [D0 + 16, D0 + 20]
        KP, ZP = D0 + 12, D0 + 14
        def latev(n):
            a_, f_ = late[n]
            lg.wait(f"W{f_}")
            sm(AV, a_, v(WR[f_ % 3], 8))
        def qk_write():
            pk2(AQ, AQ)
            A(f"ds_write_b64 {v(vQW)}, {v(AQ,2)}")
            pk2(KP, AK)
            A(f"ds_write_b64 {v(vQW)}, {v(KP,2)} offset:{L_K-L_Q}")
        latev(0)
        kxread(2); kxread(3)
        A("s_nop 3")
        TQ("s2a")
        qk_write(); lg.push("qk", 2)
        latev(1)
        kxread(4); kxread(5)
        A(f"""
        v_cmp_u_f32 vcc, {v(AK)}, {v(AK+1)}
        v_cmp_u_f32 s[{sRDLY2}:{sRDLY2+1}], {v(AK+2)}, {v(AK+3)}
        s_or_b64 vcc, vcc, s[{sRDLY2}:{sRDLY2+1}]
        s_cbranch_vccnz {LP('slow')}
        """)
        A.label(LP('slowret'))
        if par == (last & 1):
            A(f"s_cmp_eq_u32 s{sSTEP}, {last}\ns_cbranch_scc1 {L('done')}")
        TQ("s2c")
        lg.wait("qk")
        A("s_barrier")
        TQ("s2end")
        def qk_reads(fb):
            b = fb & 1
            for (dst, base, tg) in ((QF[b], 0, "Q"), (KF[b], L_K - L_Q, "K")):
                A(f"ds_read_b64_tr_b16 {v(dst,2)}, {v(vQR)} offset:{base+fb*512}")
                A(f"ds_read_b64_tr_b16 {v(dst+2,2)}, {v(vQR)} offset:{base+fb*512+128}")
                lg.push(f"{tg}{fb}", 2)
        qk_reads(0); qk_reads(1)
        pk2(ZP, AV)
        ST = [D0 + 8, KXR[0], KXR[1]]
        VMT = D0 + 36; ON1 = D0 + 16; ON2 = D0 + 20
        M0_, M1_ = D0 + 42, D0 + 43
        PX = D0 + 0; PM = PX + 4
        for fb in range(4):
            b = fb & 1
            TQ(f"fb{fb}")
            for kt in range(2):
                n = 2 * fb + kt
                lg.wait(f"Q{fb}"); lg.wait(f"X{n}")
                mf(ST[kt], v(KXR[n], 4), v(QF[b], 4), fb == 0)
                if n in (2, 3): kxread(n + 4)
                if n == 0: A(f"buffer_store_dwordx2 {v(KP,2)}, {v(vQW)}, {srd(SRD_WS)}, s{sT4} offen sc1")
                if n == 3: A(f"buffer_store_dwordx2 {v(ZP,2)}, {v(vQW)}, {srd(SRD_WS)}, s{sT1} offen sc1")
                if n == 4: A(f"v_cndmask_b32 {v(VMT)}, 0, {v(ZP)}, s[{sLO32}:{sLO32+1}]\nv_cndmask_b32 {v(VMT+1)}, 0, {v(ZP+1)}, s[{sLO32}:{sLO32+1}]")
                if n == 5: A(f"v_mov_b32 {v(VMT+2)}, 0\nv_mov_b32 {v(VMT+3)}, 0")
                if n == 6: A(f"v_mov_b32 {v(ON1)}, 0x3f803f80\nv_mov_b32 {v(ON1+1)}, 0x3f803f80")
                if n == 7: A(f"v_mov_b32 {v(ON1+2)}, 0x3f803f80\nv_mov_b32 {v(ON1+3)}, 0x3f803f80")
            lg.wait(f"K{fb}")
            mf(ST[2], v(KF[b], 4), v(QF[b], 4), fb == 0)
            if fb + 2 < 4: qk_reads(fb + 2)
            if fb == 2:
                A(f"v_cndmask_b32 {v(VMT+4)}, 0, {v(ZP)}, s[{sHI32}:{sHI32+1}]\nv_cndmask_b32 {v(VMT+5)}, 0, {v(ZP+1)}, s[{sHI32}:{sHI32+1}]")
        TQ("scend")
        SR = [ST[t] + r for t in range(3) for r in range(4)]
        A(f"v_mov_b32 {v(ON2)}, 0x3f003f00\nv_mov_b32 {v(ON2+1)}, 0x3f003f00\nv_mov_b32 {v(ON2+2)}, 0\nv_mov_b32 {v(ON2+3)}, 0")
        A(f"""
        v_max3_f32 {v(M0_)}, {v(SR[0])}, {v(SR[1])}, {v(SR[2])}
        s_nop 0
        v_max3_f32 {v(M1_)}, {v(SR[3])}, {v(SR[4])}, {v(SR[5])}
        v_max3_f32 {v(M0_)}, {v(M0_)}, {v(SR[6])}, {v(SR[7])}
        v_max3_f32 {v(M1_)}, {v(M1_)}, {v(SR[8])}, {v(SR[9])}
        v_max3_f32 {v(M0_)}, {v(M0_)}, {v(SR[10])}, {v(SR[11])}
        v_max_f32 {v(M0_)}, {v(M0_)}, {v(M1_)}
        v_max_f32 {v(M1_)}, {v(M0_)}, {v(M1_)}
        v_mov_b32 {v(D0+12)}, 0
        v_mov_b32 {v(D0+13)}, 0
        v_permlane32_swap_b32 {v(M0_)}, {v(M1_)}
        v_max_f32 {v(M0_)}, {v(M0_)}, {v(M1_)}
        v_max_f32 {v(M1_)}, {v(M0_)}, {v(M1_)}
        v_mov_b32 {v(D0+14)}, 0
        v_mov_b32 {v(D0+15)}, 0
        v_permlane16_swap_b32 {v(M0_)}, {v(M1_)}
        v_max_f32 {v(M0_)}, {v(M0_)}, {v(M1_)}
        v_mul_f32 {v(M0_)}, s{sC}, {v(M0_)}
        """)
        for i in range(6):
            A(f"v_pk_fma_f32 {v(SR[2*i],2)}, {v(SR[2*i],2)}, s[{sC}:{sC+1}], {v(M0_,2)} op_sel_hi:[1,1,0] neg_lo:[0,0,1] neg_hi:[0,0,1]")
        for i in range(12):
            A(f"v_exp_f32 {v(SR[i])}, {v(SR[i])}")
            if i >= 2 and i % 2 == 0: A(f"v_cvt_pk_bf16_f32 {v(PX+i//2-1)}, {v(SR[i-2])}, {v(SR[i-1])}")
        OT, OT1, LS = D0 + 28, D0 + 32, D0 + 8
        TQ("expend")
        A(f"""
        s_waitcnt vmcnt({2 + (0 if nowarm else 2) + (1 if merged else 0)})
        v_cvt_pk_bf16_f32 {v(PX+5)}, {v(SR[10])}, {v(SR[11])}
        v_mfma_f32_16x16x32_bf16 {v(LS,4)}, {v(ON1,4)}, {v(PX,4)}, 0
        v_mfma_f32_16x16x32_bf16 {v(OT,4)}, {v(VXF[0],4)}, {v(PX,4)}, 0
        v_mfma_f32_16x16x32_bf16 {v(LS,4)}, {v(ON2,4)}, {v(PM,4)}, {v(LS,4)}
        v_mfma_f32_16x16x32_bf16 {v(OT,4)}, {v(VMT,4)}, {v(PM,4)}, {v(OT,4)}
        v_mfma_f32_16x16x32_bf16 {v(OT1,4)}, {v(VXF[1],4)}, {v(PX,4)}, 0
        v_mfma_f32_16x16x32_bf16 {v(OT1,4)}, {v(VMT+2,4)}, {v(PX+2,4)}, {v(OT1,4)}
        """)
        WAo = [D0 + 44, D0 + 48, D0 + 12, D0 + 16]
        WA8 = D0 + 20
        OF = [D0 + 0, D0 + 4, D0 + 36, D0 + 40]
        zl = [WAo[p] + i for p in (0, 1, 3) for i in range(4)]
        for r in zl[:5]: A(f"v_mov_b32 {v(r)}, 0")
        A(f"v_rcp_f32 {v(M0_)}, {v(LS)}")
        A(f"v_mov_b32 {v(zl[5])}, 0")
        A(f"v_pk_mul_f32 {v(OT,2)}, {v(OT,2)}, {v(M0_,2)} op_sel_hi:[1,0]")
        A(f"v_pk_mul_f32 {v(OT+2,2)}, {v(OT+2,2)}, {v(M0_,2)} op_sel_hi:[1,0]")
        pk2(OT, OT)
        A(f"ds_write_b64 {v(vOW)}, {v(OT,2)}")
        A(f"v_pk_mul_f32 {v(OT1,2)}, {v(OT1,2)}, {v(M0_,2)} op_sel_hi:[1,0]")
        A(f"v_pk_mul_f32 {v(OT1+2,2)}, {v(OT1+2,2)}, {v(M0_,2)} op_sel_hi:[1,0]")
        pk2(OT1, OT1)
        A(f"ds_write_b64 {v(vOW)}, {v(OT1,2)} offset:256")
        for r in zl[6:]: A(f"v_mov_b32 {v(r)}, 0")
        A(f"""
        s_add_u32 s{sT0}, s{sPW}, {4*65536}
        s_add_u32 s{sT1}, s{sPW}, {65536}
        s_waitcnt lgkmcnt(0)
        """)
        TQ("smend")
        PH(4)
        A("s_barrier")
        if trace: TR(0); A("s_waitcnt lgkmcnt(0)")
        lg.clear()
        for ks in range(4):
            A(f"ds_read_b128 {v(OF[ks],4)}, {v(vAF)} offset:{L_O-HI+ks*512}"); lg.push(f"O{ks}")
        SEL = D0 + 36; RT = D0 + 40; RDd = D0 + 20; RBS = [[D0 + 28, D0 + 32, D0 + 52, D0 + 24], [D0 + 44, D0 + 48, D0 + 12, D0 + 16]]
        A(f"""
        s_add_u32 s{sT2}, s{sPW}, {2*65536}
        s_add_u32 s{sT3}, s{sPW}, {3*65536}
        s_add_u32 s{sSTEP}, s{sSTEP}, 1
        s_add_u32 s{sSEG}, s{sSEG}, {0 if fixseg else RECSZ}
        s_mov_b32 s{sSPIN}, {SPIN}
        """)
        TQ("wostart")
        PH(5)
        tagop = lambda r: (f"v_or_b32 {v(r)}, 1, {v(r)}" if par else f"v_and_b32 {v(r)}, -2, {v(r)}")
        def out_ops(a0, soff, half=False):
            ops = [f"v_cvt_pk_bf16_f32 {v(a0)}, {v(a0)}, {v(a0+1)}", f"v_cvt_pk_bf16_f32 {v(a0+1)}, {v(a0+2)}, {v(a0+3)}",
                   tagop(a0), tagop(a0 + 1)]
            st = f"buffer_store_dwordx2 {v(a0,2)}, {v(vPST)}, {srd(SRD_WS)}, s{soff} offen{sc}"
            if half: st = f"s_mov_b64 exec, s[{sLO32}:{sLO32+1}]\n{st}\ns_mov_b64 exec, -1"
            return ops + [st]
        mfl = [("d", ks) for ks in range(4)] + [(p, ks) for p in range(4) for ks in range(4)]
        groups = [(3, out_ops(WA8, sT0, True))] + [(7 + 4 * p, out_ops(WAo[p], [sPW, sT1, sT2, sT3][p])) for p in range(4)]
        ic = [0]; pos = {}
        def emit(s_):
            A(s_); ic[0] += len([x for x in s_.split("\n") if x.strip()])
        cur = []; gi = 0
        for n, (p, ks) in enumerate(mfl):
            if p == "d":
                n0 = len(A.lines); lg.wait(f"O{ks}"); ic[0] += len(A.lines) - n0
                emit(f"v_mfma_f32_16x16x32_bf16 {v(WA8,4)}, {v(OF[ks],4)}, {WO8(ks)}, {'0' if ks == 0 else v(WA8,4)}")
            else:
                emit(f"v_smfmac_f32_16x16x64_bf16 {v(WAo[p],4)}, {v(OF[ks],4)}, {WO(p,ks)}, {v(IDX)}")
            pos[n] = ic[0]
            k = 0
            while k < 2:
                if not cur and gi < len(groups) and groups[gi][0] <= n and ic[0] - pos[groups[gi][0]] >= 8:
                    cur = list(groups[gi][1]); gi += 1
                if not cur: break
                emit(cur.pop(0)); k += 1
        while cur or gi < len(groups):
            if not cur:
                need = 8 - (ic[0] - pos[groups[gi][0]])
                if need > 0: emit(f"s_nop {need-1}"); ic[0] += need - 1
                cur = list(groups[gi][1]); gi += 1
            emit(cur.pop(0))
        TQ("woend")
        PH(6)
        TR(1)
        A(f"s_cmp_eq_u32 s{sRED}, 0\ns_cbranch_scc1 {LP('nored')}")
        def rload(sidx):
            for i in range(4):
                A(f"buffer_load_dwordx4 {v(RBS[sidx][i],4)}, {v(vRED)}, {srd(SRD_WS)}, s{sPW} offen offset:{i*1024}{ld}")
        def rproc(sidx, br):
            for i in range(4):
                b = RBS[sidx][i]
                A(f"s_waitcnt vmcnt({(7 if RGAP else 3)-i})")
                mf(RDd, v(SEL, 4), v(b, 4), i == 0)
                o3 = (lambda d, x, y, z: f"v_bitop3_b32 {v(d)}, {v(x)}, {v(y)}, {v(z)} bitop3:0x80") if par else (lambda d, x, y, z: f"v_or3_b32 {v(d)}, {v(x)}, {v(y)}, {v(z)}")
                if i == 0:
                    A(o3(RT, b, b + 1, b + 2)); A(o3(RT, RT, b + 3, b + 3))
                else:
                    A(o3(RT, RT, b, b + 1)); A(o3(RT, RT, b + 2, b + 3))
            A(f"v_and_b32 {v(RT)}, 1, {v(RT)}\nv_cmp_ne_u32 vcc, {par}, {v(RT)}\n{br}")
        A(f"""
        s_mov_b32 s{sT0}, s{sRDLY}
    {LP('rdl')}:
        s_cmp_eq_u32 s{sT0}, 0
        s_cbranch_scc1 {LP('rgo')}
        s_sleep 1
        s_sub_u32 s{sT0}, s{sT0}, 1
        s_branch {LP('rdl')}
    {LP('rgo')}:
        """)
        TQ("rgo")
        rload(0)
        zero_acc()
        for r in range(4): A(f"v_cndmask_b32 {v(SEL+r)}, 0, {v(SELV)}, s[{sSEL+2*r}:{sSEL+2*r+1}]")
        if RGAP:
            if RGAP > 0: A(f"s_sleep {RGAP}")
            rload(1)
        A.label(LP('rp0'))
        rproc(0, f"s_cbranch_vccnz {LP('rf0')}")
        A.label(LP('rdone'))
        TQ("rdone")
        A(f"""
        {'s_sub_u32 s96, %d, s%d' % (SPIN, sSPIN) if cnt else 's_nop 0'}
        {'s_add_u32 s21, s21, s96' if cnt else 's_nop 0'}
        s_nop 0
        v_cndmask_b32 {v(RT)}, {v(RDd)}, {v(RDd+2)}, s[{sHI32}:{sHI32+1}]
        v_cndmask_b32 {v(RT+1)}, {v(RDd+1)}, {v(RDd+3)}, s[{sHI32}:{sHI32+1}]
        v_cndmask_b32 {v(RT+3)}, {v(RT+1)}, {v(RT)}, s[{sN8}:{sN8+1}]
        v_cndmask_b32 {v(RT+2)}, {v(RT)}, {v(RT+1)}, s[{sN8}:{sN8+1}]
        s_nop 0
        v_add_f32_dpp {v(RT+2)}, {v(RT+3)}, {v(RT+2)} row_ror:8 row_mask:0xf bank_mask:0xf
        v_mov_b32 {v(RT+3)}, {v(RT+2)}
        s_nop 1
        v_permlane16_swap_b32 {v(RT+2)}, {v(RT+3)}
        v_cvt_pk_bf16_f32 {v(RT+2)}, {v(RT+2)}, {v(RT+3)}
        v_min_u32 {v(TMP)}, -2, {v(RT+2)}
        s_mov_b64 exec, s[{sPM}:{sPM+1}]
        buffer_store_dword {v(TMP)}, {v(vPUB)}, {srd(SRD_WS)}, s{sMW} offen{sc}
        buffer_store_dword {v(vSP)}, {v(vPUB)}, {srd(SRD_WS)}, s{sMA} offen{sc}
        s_mov_b64 exec, -1
        """)
        TQ("pub")
        PH(7)
        TR(2)
        if trace: A("s_waitcnt lgkmcnt(0)")
        A(f"s_branch {nxt_loop}")
        A.label(LP('nored'))
        if trace: A("s_waitcnt vmcnt(0)"); TR(2); A("s_waitcnt lgkmcnt(0)")
        zero_acc()
        if merged:
            A(f"s_cmp_lg_u32 s{W}, 3\ns_cbranch_scc1 {LP('nkv')}\ns_add_u32 s{sT0}, s{sSTEP}, {WARMD + 1}\ns_min_u32 s{sT0}, s{sT0}, 64")
            kv_wait(sT0, LP('kv'))
            A.label(LP('nkv'))
        if tstep:
            A(f"s_cmp_lg_u32 s{W}, 2\ns_cbranch_scc1 {LP('nts')}\ns_memrealtime s[96:97]\ns_waitcnt lgkmcnt(0)\ns_mov_b32 m0, s{sSTEP}\nv_writelane_b32 {v(vSP)}, s96, m0\n{LP('nts')}:")
        if CDN: A(f"s_sleep {CDN}")
        A(f"s_branch {nxt_loop}x")
        A.label(LP('rf0'))
        rload(0); spin()
        if RGAP:
            rproc(1, f"s_cbranch_vccz {LP('rdone')}")
            rload(1); spin()
        A(f"s_branch {LP('rp0')}")
        if CGAP:
            A.label(LP('cf'))
            cload2(AS[2]); spin()
            cproc(AS[0], 2, f"s_cbranch_vccz {LP('cok')}")
            cload2(AS[0]); spin()
            A(f"s_branch {LP('cp')}")
        A.label(LP('slow'))
        A(f"s_sub_u32 s97, s{sMA}, {HI}\ns_waitcnt lgkmcnt(0)\ns_nop 7")
        zero_acc()
        for kp in range(9):
            lab = LP(f'sp{kp}_')
            for h in range(2):
                kk = 2 * kp + h
                if kk != 17:
                    A(f"ds_read_b128 {v(WR[h],4)}, {v(vWV)} offset:{kk*2048}\nds_read_b128 {v(WR[h]+4,4)}, {v(vWV)} offset:{kk*2048+1024}")
            A(f"""
{lab}:
            buffer_load_dwordx4 {v(AS[0],4)}, {v(vAF)}, {srd(SRD_WS)}, s97 offen sc1
            buffer_load_dwordx4 {v(AS[1],4)}, {v(vAF)}, {srd(SRD_WS)}, s97 offen offset:512 sc1
            """)
            spin()
            A(f"""
            s_waitcnt vmcnt(0) lgkmcnt(0)
            v_max3_u32 {v(TMP)}, {v(AS[0])}, {v(AS[0]+1)}, {v(AS[0]+2)}
            v_max3_u32 {v(TMP)}, {v(TMP)}, {v(AS[0]+3)}, {v(AS[1])}
            v_max3_u32 {v(TMP)}, {v(TMP)}, {v(AS[1]+1)}, {v(AS[1]+2)}
            v_max_u32 {v(TMP)}, {v(TMP)}, {v(AS[1]+3)}
            v_cmp_eq_u32 vcc, -1, {v(TMP)}
            s_cbranch_vccnz {lab}
            """)
            for h in range(2):
                kk = 2 * kp + h
                sm(AQ, v(AS[h], 4), WQ(kk)); sm(AK, v(AS[h], 4), WK(kk)); sm(AV, v(AS[h], 4), v(WR[h], 8) if kk != 17 else v(WVR, 8))
            A(f"s_add_u32 s97, s97, 1024")
        if prof: A(f"s_mov_b64 exec, {1 << 10}\nv_add_u32 v1, 63, v1\ns_mov_b64 exec, -1")
        if cnt: A("s_add_u32 s20, s20, 0x10000")
        A("s_nop 7")
        qk_write()
        for n in range(2, 6): A(f"ds_read_b128 {v(KXR[n],4)}, {v(vKX)} offset:{L_KX-HI+(n>>1)*2048+(n&1)*128}")
        A(f"s_waitcnt lgkmcnt(0)\ns_branch {LP('slowret')}")
    step_body(0, sc, ''); step_body(1, sc, '')
    if merged:
        step_body(0, ' sc1', 'S'); step_body(1, ' sc1', 'S')
    A.label(L('done'))
    A(f"""
    s_lshr_b32 s{sT2}, s{sSEG}, 1
    s_add_u32 s{sT1}, s{sT2}, {WS_VM - L_Q}
    s_add_u32 s{sT4}, s{sT2}, {WS_KM - L_Q}
    buffer_store_dwordx2 {v(D0+12,2)}, {v(vQW)}, {srd(SRD_WS)}, s{sT4} offen sc1
    s_nop 1
    v_cvt_pk_bf16_f32 {v(D0+14)}, {v(D0+8)}, {v(D0+9)}
    v_cvt_pk_bf16_f32 {v(D0+15)}, {v(D0+10)}, {v(D0+11)}
    buffer_store_dwordx2 {v(D0+14,2)}, {v(vQW)}, {srd(SRD_WS)}, s{sT1} offen sc1
    """)
    A("s_waitcnt vmcnt(0) lgkmcnt(0)")
    if merged:
        A(f"""
        s_barrier
        s_cmp_lg_u32 s{W}, 3
        s_cbranch_scc1 {L('nfin')}
        v_mov_b32 {v(TMP)}, 64
        v_mov_b32 {v(D0+52)}, s{sPRG}
        s_mov_b64 exec, 1
        buffer_store_dword {v(TMP)}, {v(D0+52)}, {srd(SRD_WS)}, 0 offen sc1
        s_mov_b64 exec, -1
        s_waitcnt vmcnt(0)
{L('nfin')}:
        """)
    if cnt:
        A(f"v_mov_b32 v1, s20\ns_mov_b64 exec, 2\nv_mov_b32 v1, s21\ns_mov_b64 exec, -1")
        A("s_memtime s[96:97]\ns_memrealtime s[100:101]\ns_waitcnt lgkmcnt(0)\ns_sub_u32 s96, s96, s99\ns_sub_u32 s100, s100, s98")
        A("s_mov_b64 exec, 4\nv_mov_b32 v1, s96\ns_mov_b64 exec, 8\nv_mov_b32 v1, s100\ns_mov_b64 exec, -1")
    if trace:
        for i in range(6): A(f"s_mov_b64 exec, {1 << i}\nv_mov_b32 v1, s{8+2*i}")
        A("s_mov_b64 exec, -1")
    if tq:
        for i in range(len(tq)): A(f"s_mov_b64 exec, {1 << i}\nv_mov_b32 v1, s{8+2*i}")
        A("s_mov_b64 exec, -1")
    if tstart:
        TS(7)
        A("s_mov_b32 s8, s100\ns_mov_b32 s10, s98")
        for i in range(8): A(f"s_mov_b64 exec, {1 << i}\nv_mov_b32 v1, s{8+2*i}")
        A("s_mov_b64 exec, -1")
    if tstep: A(f"v_mov_b32 v1, {v(vSP)}")
    if prof or cnt or trace or tq or tstep or tstart:
        A(f"""
        s_lshl_b32 s96, s{s_head}, 2
        s_add_u32 s96, s96, s{W}
        s_lshl_b32 s96, s96, 8
        s_add_u32 s96, s96, {WS_STAMP + 0x10000}
        v_lshrrev_b32 v28, 2, {v(vCON)}
        v_and_b32 v28, 255, v28
        buffer_store_dword v1, v28, {srd(SRD_WS)}, s96 offen
        s_waitcnt vmcnt(0)
        """)
    stamp(A, 10, s_id=s_head)
    hstamp(A, 14)
```

```python
from common import *
from mod_r4 import f32bits, CEXP

NEGBIG = -1.0e9 / (128 ** -0.5)

XV_LANE16, XV_KM, XV_VM, XV_V = 2, 3, 4, 5
def X_setup(A):
    A(f"""
    v_lshlrev_b32 {v(XV_LANE16)}, 4, v1
    v_bfe_u32 {v(XV_KM)}, v1, 2, 2
    v_lshrrev_b32 v6, 5, v1
    v_lshl_add_u32 {v(XV_KM)}, v6, 2, {v(XV_KM)}
    v_lshlrev_b32 {v(XV_KM)}, 4, {v(XV_KM)}
    v_and_b32 v7, 1, v1
    v_lshl_add_u32 {v(XV_KM)}, v7, 3, {v(XV_KM)}
    s_lshl_b32 s60, s{S_WAVE}, 11
    v_add_u32 {v(XV_KM)}, s60, {v(XV_KM)}
    v_and_b32 {v(XV_VM)}, 31, v1
    v_lshlrev_b32 {v(XV_VM)}, 4, {v(XV_VM)}
    v_lshl_add_u32 {v(XV_VM)}, v6, 3, {v(XV_VM)}
    s_lshl_b32 s60, s{S_WAVE}, 9
    v_add_u32 {v(XV_VM)}, s60, {v(XV_VM)}
    s_lshl_b32 s60, s{S_WAVE}, 11
    v_add_u32 {v(XV_V)}, s60, {v(XV_LANE16)}
    """)

XQ, XV_, XSX, XT0 = 184, 216, 224, 240
def X_pre(A, s_rec):
    Q, K, V_, SX, T0, T1 = XQ, 8, XV_, XSX, XT0, 40
    A(f"""
    s_lshl_b32 s60, s{s_rec}, 13
    s_add_u32 s61, s60, {WS_QX}
    s_add_u32 s62, s60, {WS_KX}
    s_add_u32 s63, s60, {WS_VX}
    """)
    for i in range(8):
        if i == 4:
            A("s_add_u32 s61, s61, 4096\ns_add_u32 s62, s62, 4096")
        A(f"buffer_load_dwordx4 {v(Q+4*i,4)}, {v(XV_LANE16)}, {srd(SRD_WS)}, s61 offen offset:{(i&3)*1024} sc1")
        A(f"buffer_load_dwordx4 {v(K+4*i,4)}, {v(XV_LANE16)}, {srd(SRD_WS)}, s62 offen offset:{(i&3)*1024} sc1")
    for j in range(2):
        A(f"buffer_load_dwordx4 {v(V_+4*j,4)}, {v(XV_V)}, {srd(SRD_WS)}, s63 offen offset:{j*1024} sc1")
    for i in range(8):
        A(f"s_waitcnt vmcnt({16 - 2*i})")
        A(f"v_mfma_f32_32x32x16_bf16 {v(SX,16)}, {v(K+4*i,4)}, {v(Q+4*i,4)}, {'0' if i == 0 else v(SX,16)}")
    A(f"v_mov_b32 {v(T1)}, {f32bits(NEGBIG)}\ns_nop 8")
    for i in range(16):
        m = 0
        for l in range(64):
            key = 8 * (i // 4) + 4 * (l >> 5) + i % 4
            if key <= (l & 31): m |= 1 << l
        A(f"s_mov_b32 s60, {m & 0xffffffff}\ns_mov_b32 s61, {m >> 32}")
        A(f"v_cndmask_b32 {v(SX+i)}, {v(T1)}, {v(SX+i)}, s[60:61]")
    A(f"v_max3_f32 {v(T0)}, {v(SX)}, {v(SX+1)}, {v(SX+2)}")
    for i in range(3, 15, 2):
        A(f"v_max3_f32 {v(T0)}, {v(T0)}, {v(SX+i)}, {v(SX+i+1)}")
    A(f"v_max_f32 {v(T0)}, {v(T0)}, {v(SX+15)}\ns_waitcnt vmcnt(0)")

def X_post(A, s_item, s_rec, sc=" sc1"):
    Q, V_, SX, T0 = XQ, XV_, XSX, XT0
    KM, VM, SM, P0, P1, PM, O, T1 = 8, 40, 44, 60, 64, 68, 72, 88
    A(f"""
    s_lshl_b32 s60, s{s_rec}, 12
    s_add_u32 s61, s60, {WS_KM}
    s_add_u32 s62, s60, {WS_VM}
    s_lshl_b32 m0, s{S_WAVE}, 11
    s_nop 0
    """)
    for i in range(2):
        A(f"buffer_load_dwordx4 {v(XV_LANE16)}, {srd(SRD_WS)}, s61 offen offset:{i*1024} sc1 lds")
    A(f"buffer_load_dwordx2 {v(VM,2)}, {v(XV_VM)}, {srd(SRD_WS)}, s62 offen sc1")
    A(f"v_mov_b32 {v(VM+2)}, 0\nv_mov_b32 {v(VM+3)}, 0\nv_mov_b32 {v(PM+2)}, 0\nv_mov_b32 {v(PM+3)}, 0")
    A("s_waitcnt vmcnt(1)")
    for i in range(8):
        A(f"ds_read_b64_tr_b16 {v(KM+4*i,2)}, {v(XV_KM)} offset:{i*256}")
        A(f"ds_read_b64_tr_b16 {v(KM+4*i+2,2)}, {v(XV_KM)} offset:{i*256+128}")
        if i == 6: A("s_waitcnt lgkmcnt(8)")
    for i in range(8):
        A(f"s_waitcnt lgkmcnt({min(8, 14 - 2*i)})")
        A(f"v_mfma_f32_32x32x16_bf16 {v(SM,16)}, {v(KM+4*i,4)}, {v(Q+4*i,4)}, {'0' if i == 0 else v(SM,16)}")
    A(f"""
    s_mov_b32 s60, {f32bits(CEXP)}
    s_nop 10
    v_max3_f32 {v(T0)}, {v(T0)}, {v(SM)}, {v(SM+1)}
    v_max3_f32 {v(T0)}, {v(T0)}, {v(SM+2)}, {v(SM+3)}
    v_mov_b32 {v(T1)}, {v(T0)}
    s_nop 1
    v_permlane32_swap_b32 {v(T0)}, {v(T1)}
    v_max_f32 {v(T0)}, {v(T0)}, {v(T1)}
    v_mul_f32 {v(T0)}, s60, {v(T0)}
    """)
    regs = [SX + i for i in range(16)] + [SM + i for i in range(4)]
    for r in regs: A(f"v_fma_f32 {v(r)}, {v(r)}, s60, -{v(T0)}")
    for r in regs: A(f"v_exp_f32 {v(r)}, {v(r)}")
    A("s_nop 0")
    A(f"v_add_f32 {v(T0)}, {v(regs[0])}, {v(regs[1])}")
    for r in regs[2:]: A(f"v_add_f32 {v(T0)}, {v(T0)}, {v(r)}")
    A(f"""
    v_mov_b32 {v(T1)}, {v(T0)}
    s_nop 1
    v_permlane32_swap_b32 {v(T0)}, {v(T1)}
    v_add_f32 {v(T0)}, {v(T0)}, {v(T1)}
    v_rcp_f32 {v(T0)}, {v(T0)}
    s_nop 0
    """)
    for r in regs: A(f"v_mul_f32 {v(r)}, {v(r)}, {v(T0)}")
    for i in range(8): A(f"v_cvt_pk_bf16_f32 {v(P0+i)}, {v(SX+2*i)}, {v(SX+2*i+1)}")
    for i in range(2): A(f"v_cvt_pk_bf16_f32 {v(PM+i)}, {v(SM+2*i)}, {v(SM+2*i+1)}")
    A(f"""
    s_waitcnt vmcnt(0)
    s_nop 0
    v_mfma_f32_32x32x16_bf16 {v(O,16)}, {v(V_,4)}, {v(P0,4)}, 0
    v_mfma_f32_32x32x16_bf16 {v(O,16)}, {v(V_+4,4)}, {v(P1,4)}, {v(O,16)}
    v_mfma_f32_32x32x16_bf16 {v(O,16)}, {v(VM,4)}, {v(PM,4)}, {v(O,16)}
    s_lshl_b32 s60, s{s_item}, 13
    s_add_u32 s60, s60, {WS_OX}
    s_nop 10
    """)
    for i in range(8): A(f"v_cvt_pk_bf16_f32 {v(O+i)}, {v(O+2*i)}, {v(O+2*i+1)}")
    A(f"buffer_store_dwordx4 {v(O,4)}, {v(XV_V)}, {srd(SRD_WS)}, s60 offen{sc}")
    A(f"buffer_store_dwordx4 {v(O+4,4)}, {v(XV_V)}, {srd(SRD_WS)}, s60 offen offset:1024{sc}")


OV_L16, OV_RD, OV_ST, OV_A = 160, 161, 162, 163
O_RED = 131072
def O_setup(A, s_cb, keep=False):
    T0, T1, VD, VT = 164, 165, 166, 167
    A(f"""
    v_lshrrev_b32 {v(T0)}, 2, v1
    v_mul_u32_u24 {v(VD)}, 1152, {v(T0)}
    v_and_b32 {v(T0)}, 3, v1
    v_lshl_add_u32 {v(VD)}, {v(T0)}, 4, {v(VD)}
    s_lshl_b32 s60, s{s_cb}, 6
    s_mul_i32 s61, s{S_WAVE}, {1024*1152}
    s_add_u32 s60, s60, s61
    s_lshl_b32 s63, s{S_WAVE}, 15
    v_bfe_u32 {v(T0)}, v1, 2, 2
    v_lshrrev_b32 {v(T1)}, 5, v1
    v_lshl_add_u32 {v(T0)}, {v(T1)}, 2, {v(T0)}
    v_lshlrev_b32 {v(VT)}, 6, {v(T0)}
    v_bfe_u32 {v(T0)}, v1, 4, 1
    v_lshl_add_u32 {v(VT)}, {v(T0)}, 5, {v(VT)}
    v_and_b32 {v(T0)}, 3, v1
    v_lshl_add_u32 {v(VT)}, {v(T0)}, 3, {v(VT)}
    v_add_u32 {v(VT)}, s63, {v(VT)}
    """)
    def dma(hh):
        for n in range(8):
            A(f"s_add_u32 m0, s63, {(hh & 3)*8192 + n*1024}")
            A(f"s_add_u32 s62, s60, {(hh*128 + n*16)*1152}")
            A(f"buffer_load_dwordx4 {v(VD)}, {srd(SRD_WO)}, s62 offen lds")
    for hh in range(4): dma(hh)
    for hh in range(8):
        A(f"s_waitcnt vmcnt({min(3, 7-hh)*8})")
        for ks in range(8):
            for t in range(2):
                off = (hh & 3) * 8192 + (ks * 16 + t * 8) * 64
                A(f"ds_read_b64_tr_b16 {a((hh*8+ks)*4 + 2*t, 2)}, {v(VT)} offset:{off}")
        if hh + 4 < 8:
            A("s_waitcnt lgkmcnt(0)")
            dma(hh + 4)
    A("s_waitcnt lgkmcnt(0)")
    if not keep: O_addr(A, s_cb)

def O_addr(A, s_cb):
    T0 = 164
    A(f"""
    v_lshlrev_b32 {v(OV_A)}, 4, v1
    s_lshl_b32 s60, s{S_WAVE}, 12
    s_add_u32 s60, s60, {O_RED}
    v_add_u32 {v(OV_L16)}, s60, {v(OV_A)}
    s_lshl_b32 s60, s{S_WAVE}, 10
    s_add_u32 s60, s60, {O_RED}
    v_add_u32 {v(OV_RD)}, s60, {v(OV_A)}
    s_lshl_b32 s60, s{S_WAVE}, 16
    v_add_u32 {v(OV_A)}, s60, {v(OV_A)}
    v_and_b32 {v(T0)}, 31, v1
    v_mul_u32_u24 {v(OV_ST)}, 2304, {v(T0)}
    v_lshrrev_b32 {v(T0)}, 5, v1
    v_lshl_add_u32 {v(OV_ST)}, {v(T0)}, 3, {v(OV_ST)}
    s_lshl_b32 s60, s{s_cb}, 6
    s_lshl_b32 s61, s{S_WAVE}, 4
    s_add_u32 s60, s60, s61
    s_add_u32 s60, s60, 1152
    v_add_u32 {v(OV_ST)}, s60, {v(OV_ST)}
    """)

def O_item(A, s_seg, s_par):
    NR = 32
    F = 8
    ACC = 168
    R = 136
    A(f"""
    s_lshl_b32 s60, s{s_seg}, 18
    s_add_u32 s60, s60, {WS_OX}
    """)
    def ld(i):
        if i % 4 == 0 and i > 0:
            A("s_add_u32 s60, s60, 4096")
        A(f"buffer_load_dwordx4 {v(F+4*(i%NR),4)}, {v(OV_A)}, {srd(SRD_WS)}, s60 offen offset:{(i&3)*1024} sc1")
    for i in range(NR): ld(i)
    for i in range(64):
        A(f"s_waitcnt vmcnt({min(NR-1, 63-i)})")
        A(f"v_mfma_f32_32x32x16_bf16 {v(ACC,16)}, {a(4*i,4)}, {v(F+4*(i%NR),4)}, {'0' if i == 0 else v(ACC,16)}")
        if i + NR < 64: ld(i + NR)
    A(f"""
    v_add_u32 {v(R)}, s{s_par}, {v(OV_L16)}
    v_add_u32 {v(R+1)}, s{s_par}, {v(OV_RD)}
    s_xor_b32 s{s_par}, s{s_par}, 16384
    s_mul_i32 s60, s{s_seg}, {32*2304}
    s_nop 8
    """)
    for q in range(4):
        A(f"ds_write_b128 {v(R)}, {v(ACC+4*q,4)} offset:{q*1024}")
    A("s_waitcnt lgkmcnt(0)\ns_barrier")
    for q in range(4):
        A(f"ds_read_b128 {v(ACC+4*q,4)}, {v(R+1)} offset:{q*4096}")
    A("s_waitcnt lgkmcnt(2)")
    A(f"v_pk_add_f32 {v(ACC,2)}, {v(ACC,2)}, {v(ACC+4,2)}\nv_pk_add_f32 {v(ACC+2,2)}, {v(ACC+2,2)}, {v(ACC+6,2)}")
    A("s_waitcnt lgkmcnt(0)")
    A(f"v_pk_add_f32 {v(ACC+8,2)}, {v(ACC+8,2)}, {v(ACC+12,2)}\nv_pk_add_f32 {v(ACC+10,2)}, {v(ACC+10,2)}, {v(ACC+14,2)}")
    A(f"v_pk_add_f32 {v(ACC,2)}, {v(ACC,2)}, {v(ACC+8,2)}\nv_pk_add_f32 {v(ACC+2,2)}, {v(ACC+2,2)}, {v(ACC+10,2)}")
    A(f"""
    v_cvt_pk_bf16_f32 {v(ACC)}, {v(ACC)}, {v(ACC+1)}
    v_cvt_pk_bf16_f32 {v(ACC+1)}, {v(ACC+2)}, {v(ACC+3)}
    buffer_store_dwordx2 {v(ACC,2)}, {v(OV_ST)}, {srd(SRD_OUT)}, s60 offen
    """)
```

```python
from common import *
import math, struct

WSTR = 36864
L_Q = 34816
L_K = 34816 + WSTR
L_O = 34816 + 2 * WSTR
L_MEMF = 145408
L_KX = 145408 + 9216
L_V = L_MEMF + 4096
HI = 98304
PSLOT = 72 * 4096
MSLOT = 9216
SPIN = 200000
CEXP = (128 ** -0.5) * math.log2(math.e)
def f32bits(x): return struct.unpack("<I", struct.pack("<f", x))[0]

def WQ(kk): return wreg(kk * 8, 8)
def WK(kk): return wreg(144 + kk * 8, 8)
def WO(p, ks): return wreg(288 + (p * 4 + ks) * 8, 8)
def WO8(ks): return wreg(288 + 128 + ks * 4, 4)

class LQ:
    def __init__(self, A, name): self.A, self.name, self.q = A, name, []
    def push(self, tag, n=1): self.q += [tag] * n; assert len(self.q) <= (15 if self.name == "lgkmcnt" else 63), self.q
    def wait(self, tag):
        if tag not in self.q: return
        idx = max(i for i, t in enumerate(self.q) if t == tag)
        self.A(f"s_waitcnt {self.name}({len(self.q) - 1 - idx})")
        del self.q[:idx + 1]
    def clear(self): self.q = []

def mod_R(A, s_head, sc="", pfx="R", abort="R_abort", last=63, prof=False, RD_=(0, 0, 0, 1, 2), CD=0, hooks=None, WARMD=2, cnt=False,
          CDN=0, fixseg=False, nokm=False, x_nowv=False, trace=False, RGAP=0, CGAP=0, ld=' sc1', tq=None, merged=False, wbar=False, worder='qk', wnt='', tstart=False, ARMAT=9, MW=3, R1N=4, EL=26, eflag=True, EFAT=13, WAT=14, tstep=False, CDN3=0, nowarm=False, R2AT=1, R3AT=7, B2AT=6, B3AT=13):
    assert R3AT > B2AT and R2AT + 2 < B2AT and eflag
    def TQ(tag):
        if tq and tag in tq: A(f"s_memtime s[{8+2*tq.index(tag)}:{9+2*tq.index(tag)}]")

    def TR(i):
        if trace: A(f"s_memrealtime s[{8+2*i}:{9+2*i}]")

    L = lambda n: f"{pfx}_{n}"
    def TS(i):
        r = 98 if i == 1 else 8 + 2 * i
        if tstart: A(f"s_memrealtime s[{r}:{r+1}]\ns_waitcnt lgkmcnt(0)")
    W = S_WAVE
    hooks = hooks or {}
    def PH(i):
        if not prof: return
        A(f"""
        s_waitcnt lgkmcnt(0)
        s_memtime s[96:97]
        s_waitcnt lgkmcnt(0)
        s_sub_u32 s99, s96, s98
        s_mov_b32 s98, s96
        s_mov_b64 exec, {1 << i}
        v_add_u32 v1, s99, v1
        s_mov_b64 exec, -1
        """)
    TMP = 0
    IDX, SELV, vPST, vRED, vPUB, vCON, vAF, vWV, vQW, vQR, vKX, vOW, vVX, vSP = range(2, 16)
    vC1 = 1
    assert not prof
    WVR = 16
    D0 = 24
    sSTEP, sPW, sPR, sMW, sMR, sMA, sRED, sSEG = 64, 65, 66, 67, 68, 69, 70, 71
    sLO32, sHI32, sEVEN, sN8 = 72, 74, 76, 78
    sB2 = 81
    sWOF = 80
    sC = 82
    sRDLY, sWB, sB1 = 84, 85, 59
    sB3, sM3, sPRG = 66, 57, 4
    sRDLY2 = 96
    sPM = sEVEN
    sSEL = 86
    sT0, sT1, sT2, sSPIN, sT3, sT4 = 60, 61, 62, 63, 94, 95
    T0, T1, T2 = D0, D0 + 1, D0 + 2
    stamp(A, 8, s_id=s_head)
    hstamp(A, 12)
    def bits(dst, terms, add=None):
        first = True
        for (off, n, sh) in terms:
            A(f"v_bfe_u32 {v(T2)}, v1, {off}, {n}")
            if first:
                A(f"v_lshlrev_b32 {v(dst)}, {sh}, {v(T2)}"); first = False
            else:
                A(f"v_lshl_add_u32 {v(dst)}, {v(T2)}, {sh}, {v(dst)}")
        if add is not None:
            A(f"v_add_u32 {v(dst)}, {add}, {v(dst)}")
    vWA, vWB = D0 + 52, D0 + 53
    vTR = [D0 + 44, D0 + 45]
    vTO = [D0 + 46 + k for k in range(4)]
    vTD = [D0 + 28 + k for k in range(4)]
    X0, X1 = D0 + 8, D0 + 9
    sWL = 7
    VS = D0 + 12
    A(f"""
    s_lshl_b32 s{sT0}, s{s_head}, 8
    s_lshr_b32 s{sT1}, s{W}, 1
    s_lshl_b32 s{sT1}, s{sT1}, 7
    s_add_u32 s{sT0}, s{sT0}, s{sT1}
    s_and_b32 s{sT1}, s{W}, 1
    s_lshl_b32 s{sT1}, s{sT1}, 18
    s_add_u32 s{sT0}, s{sT0}, s{sT1}
    s_mul_i32 s{sWL}, s{W}, {WSTR}
    """)
    bits(vWA, [(3, 3, 13), (0, 3, 4)], f"s{sT0}")
    chunks = [(worder[0], kb) for kb in range(9)] + [(worder[1], kb) for kb in range(9)] + \
             [("o", (p, kb2)) for p in range(5) for kb2 in range(2)] + [("v", kb) for kb in range(9)]
    slot_of = lambda c: (c - 28) % 9
    def wdma(c):
        kind, ix = chunks[c]; sl = slot_of(c)
        for n in range(4):
            A(f"s_add_u32 m0, s{sWL}, {sl*4096 + n*1024}")
            if kind == "o":
                p, kb2 = ix
                A(f"s_mov_b32 s{sT1}, {(kb2*64 + n*4)*1152 + p*256}")
                A(f"buffer_load_dwordx4 {v(vWB)}, {srd(SRD_WO)}, s{sT1} offen{wnt} lds")
            else:
                A(f"s_mov_b32 s{sT1}, {ix*524288 + n*65536}")
                A(f"buffer_load_dwordx4 {v(vWA)}, {srd({'q': SRD_WQ, 'k': SRD_WK, 'v': SRD_WV}[kind])}, s{sT1} offen{wnt} lds")
    for c in range(9): wdma(c)
    TS(1)
    if 'resolve' in hooks: hooks['resolve']()
    TS(2)
    A.c("R setup")
    A(f"""
    s_mov_b32 s{sLO32}, -1
    s_mov_b32 s{sLO32+1}, 0
    s_mov_b32 s{sHI32}, 0
    s_mov_b32 s{sHI32+1}, -1
    s_mov_b32 s{sEVEN}, 0x55555555
    s_mov_b32 s{sEVEN+1}, 0x55555555
    s_mov_b32 s{sN8}, 0xff00ff00
    s_mov_b32 s{sN8+1}, 0xff00ff00
    s_mov_b32 s{sC}, {f32bits(CEXP)}
    s_mov_b32 s{sC+1}, {f32bits(CEXP)}
    s_lshl_b32 s{sWB}, s{W}, 10
    s_cmp_eq_u32 s{W}, 2
    s_mov_b32 s{sB1}, -1024
    s_cselect_b32 s{sB1}, 8192, s{sB1}
    s_lshl_b32 s{sPRG}, s{s_head}, 7
    s_add_u32 s{sPRG}, s{sPRG}, {FLAG_RP}
    """)
    if R1N == 4:
        A(f"s_sub_u32 s{sB3}, 7168, s{sWB}\ns_mov_b32 s{sM3}, {L_MEMF + 8192}\ns_movk_i32 s{sB2}, -1024")
    else:
        A(f"""
        s_and_b32 s{sM3}, s{sWB}, 1024
        s_sub_u32 s{sB3}, s{sM3}, s{sWB}
        s_add_u32 s{sB3}, s{sB3}, 6144
        s_add_u32 s{sM3}, s{sM3}, {L_MEMF + 7168}
        s_movk_i32 s{sB2}, -1024
        s_cmp_eq_u32 s{W}, 3
        s_cselect_b32 s{sB2}, -2048, s{sB2}
        """)
    for r in range(4):
        m = (0x03030303 << (2 * r)) & 0xffffffff
        A(f"s_mov_b32 s{sSEL+2*r}, {m}\ns_mov_b32 s{sSEL+2*r+1}, {m}")
    A(f"""
    v_mov_b32 {v(IDX)}, 0x44444444
    v_mov_b32 {v(T0)}, 0xeeeeeeee
    v_cndmask_b32 {v(IDX)}, {v(IDX)}, {v(T0)}, s[{sN8}:{sN8+1}]
    v_mov_b32 {v(SELV)}, 0x3f800000
    v_mov_b32 {v(T0)}, 0x3f80
    v_cndmask_b32 {v(SELV)}, {v(SELV)}, {v(T0)}, s[{sEVEN}:{sEVEN+1}]
    s_mov_b32 s{sPM}, 0xffff
    s_mov_b32 s{sPM+1}, 0xffff
    v_lshlrev_b32 {v(T0)}, 4, v1
    s_add_u32 s{sT0}, s{sWB}, {HI}
    v_add_u32 {v(vCON)}, s{sT0}, {v(T0)}
    s_mul_i32 s{sT0}, s{W}, {WSTR}
    v_add_u32 {v(vWV)}, s{sT0}, {v(T0)}
    s_lshl_b32 s{sT0}, s{W}, 5
    s_add_u32 s{sT0}, s{sT0}, s{s_head}           ; unit
    s_lshl_b32 s{sT1}, s{sT0}, 12
    s_cmp_lt_u32 s{sT0}, 72
    s_cselect_b32 s{sRED}, 1, 0
    s_cselect_b32 s{sT1}, s{sT1}, 0x40000000
    v_add_u32 {v(vRED)}, s{sT1}, {v(T0)}
    s_lshr_b32 s{sT1}, s{sT0}, 1
    s_lshl_b32 s{sT4}, s{sT1}, 5
    s_lshl_b32 s{sT1}, s{sT1}, 8
    s_and_b32 s{sT2}, s{sT0}, 1
    s_mul_i32 s{sT3}, s{sT2}, {4*1152}
    s_add_u32 s{sT4}, s{sT4}, s{sT3}
    s_lshl_b32 s{sT2}, s{sT2}, 6
    s_add_u32 s{sT1}, s{sT1}, s{sT2}
    s_lshr_b32 s{sT2}, s{sT0}, 4
    s_add_u32 s{sT2}, s{sT2}, 1
    s_cmp_ge_u32 s{sT0}, 64
    s_cselect_b32 s{sT2}, 0, s{sT2}
    s_mov_b32 s{sRDLY}, {RD_[0]}
    """)
    for o in range(1, 5):
        A(f"s_cmp_eq_u32 s{sT2}, {o}\ns_cselect_b32 s{sRDLY}, {RD_[o]}, s{sRDLY}")
    bits(vPUB, [(2, 1, 7), (5, 1, 5), (3, 1, 4), (0, 2, 2)], f"s{sT1}")
    A(f"s_lshl_b32 s{sT1}, s{W}, 1\ns_xor_b32 s{sT2}, s{s_head}, s{sT1}\ns_lshl_b32 s{sT2}, s{sT2}, 7\ns_lshl_b32 s{sT1}, s{W}, 13")
    bits(vPST, [(5, 1, 10), (4, 1, 7)])
    A(f"v_xor_b32 {v(T1)}, s{sT2}, {v(vPST)}\nv_add_u32 {v(T1)}, s{sT1}, {v(T1)}")
    bits(vPST, [(5, 1, 15), (4, 1, 12), (0, 4, 3)], v(T1))
    A(f"s_lshl_b32 s{sT1}, s{W}, 9\ns_add_u32 s{sT2}, s{sT1}, {L_Q}")
    bits(vQW, [(5, 1, 8), (0, 4, 4), (4, 1, 3)], f"s{sT2}")
    bits(vQR, [(5, 1, 8), (4, 1, 6), (2, 2, 4), (0, 1, 3)], L_Q)
    bits(vKX, [(4, 2, 9), (3, 1, 8), (0, 3, 4)], HI)
    bits(vAF, [(4, 2, 7), (0, 3, 4)], HI)
    A(f"s_add_u32 s{sT2}, s{sT1}, {L_O}")
    bits(vOW, [(5, 1, 7), (0, 3, 4), (4, 1, 3)], f"s{sT2}")
    A(f"s_lshl_b32 s{sT1}, s{W}, 11")
    bits(vVX, [(4, 2, 9), (0, 4, 4)], f"s{sT1}")
    ARM = D0 + 4
    X0, X1 = D0 + 8, D0 + 9
    for i in range(4): A(f"v_mov_b32 {v(ARM+i)}, -1")
    A(f"s_cmp_eq_u32 s{sRED}, 0\ns_cbranch_scc1 {L('noarm')}")
    bits(X1, [(5, 1, 1), (3, 1, 0)])
    A(f"v_mul_u32_u24 {v(X1)}, 1152, {v(X1)}")
    bits(X0, [(0, 3, 2)], v(X1))
    A(f"buffer_load_dword {v(vSP)}, {v(X0)}, {srd(SRD_M0)}, s{sT4} offen")
    A(f"s_mov_b32 s{sT0}, {WS_PART}")
    for i in range(4):
        A(f"buffer_store_dwordx4 {v(ARM,4)}, {v(vRED)}, {srd(SRD_WS)}, s{sT0} offen offset:{i*1024} sc1")
    A(f"s_mov_b64 exec, s[{sEVEN}:{sEVEN+1}]")
    for sl in range(3):
        A(f"s_mov_b32 s{sT0}, {WS_MEMB + sl*MSLOT}")
        A(f"buffer_store_dword {v(ARM)}, {v(vPUB)}, {srd(SRD_WS)}, s{sT0} offen sc1")
    A("s_mov_b64 exec, -1")
    A.label(L('noarm'))
    if merged:
        A(f"""
        s_cmp_lg_u32 s{W}, 3
        s_cbranch_scc1 {L('nz')}
        v_lshlrev_b32 {v(X0)}, 2, v1
        v_mov_b32 {v(X1)}, 0
        s_lshl_b32 s{sT0}, s{s_head}, 8
        s_add_u32 s{sT0}, s{sT0}, {FLAG_KV}
        buffer_store_dword {v(X1)}, {v(X0)}, {srd(SRD_WS)}, s{sT0} offen sc1
        s_add_u32 s{sT0}, s{sT0}, {FLAG_OX - FLAG_KV}
        buffer_store_dword {v(X1)}, {v(X0)}, {srd(SRD_WS)}, s{sT0} offen sc1
        v_mov_b32 {v(X0)}, s{sPRG}
        buffer_store_dword {v(X1)}, {v(X0)}, {srd(SRD_WS)}, 0 offen sc1
{L('nz')}:
        """)
    A(f"""
    v_lshrrev_b32 {v(X0)}, 4, v1
    s_lshl_b32 s{sT0}, s{W}, 4
    v_add_u32 {v(X0)}, s{sT0}, {v(X0)}
    v_mul_u32_u24 {v(X0)}, 1152, {v(X0)}
    s_mul_i32 s{sT0}, s{s_head}, 147456
    v_add_u32 {v(X0)}, s{sT0}, {v(X0)}
    s_and_b32 s{sT0}, s{W}, 2
    s_mul_i32 s{sT0}, s{sT0}, {WSTR}
    s_and_b32 s{sT1}, s{W}, 1
    s_lshl_b32 s{sT1}, s{sT1}, 6
    s_add_u32 s{sT0}, s{sT0}, s{sT1}
    s_lshl_b32 s{sT1}, s{W}, 5
    """)
    bits(vWB, [(0, 4, 4)], v(X0))
    bits(vTR[0], [(4, 2, 9), (2, 1, 7), (3, 1, 5), (0, 2, 3)], f"s{sT0}")
    A(f"v_add_u32 {v(vTR[1])}, {WSTR}, {v(vTR[0])}")
    bits(vTO[0], [(4, 2, 10), (2, 1, 8), (3, 1, 7), (0, 2, 3)], f"s{sT1}")
    bits(vTD[0], [(4, 1, 11), (2, 2, 8), (0, 2, 3)], f"s{sT1}")
    A(f"v_bfe_u32 {v(T2)}, v1, 5, 1\nv_mul_u32_u24 {v(T2)}, {WSTR}, {v(T2)}\nv_add_u32 {v(vTD[0])}, {v(vTD[0])}, {v(T2)}")
    for k in range(1, 4): A(f"v_add_u32 {v(vTO[k])}, {k*WSTR}, {v(vTO[0])}")
    A(f"v_add_u32 {v(vTD[1])}, {2*WSTR}, {v(vTD[0])}")
    def trread(dst_fn, h, sl):
        for t, ro in enumerate((0, 2, 16, 18)):
            A(f"ds_read_b64_tr_b16 {dst_fn(t)}, {v(vTR[h])} offset:{sl*4096 + ro*128}")
    def trread_o(dst_fn, h, sl):
        for t, (k, ro) in enumerate(((0, 0), (0, 2), (1, 0), (1, 2))):
            A(f"ds_read_b64_tr_b16 {dst_fn(t)}, {v(vTO[2*h+k])} offset:{sl*4096 + ro*256}")
    sub = lambda base, t: wreg(base + 2 * t, 2)
    NCH = len(chunks)
    sKV, sMODE, sEARLY, sWARMED = 5, 6, 3, 7
    def warm0():
        A(f"v_lshlrev_b32 {v(X0)}, 7, v1\ns_lshl_b32 s{sT0}, s{s_head}, 13")
        for sg in range(WARMD):
            A(f"s_add_u32 s{sT1}, s{sT0}, {WS_KX + sg*RECSZ}\nbuffer_load_dword {v(X1)}, {v(X0)}, {srd(SRD_WS)}, s{sT1} offen sc1")
            A(f"s_add_u32 s{sT1}, s{sT0}, {WS_VX + sg*RECSZ}\nbuffer_load_dword {v(X1)}, {v(X0)}, {srd(SRD_WS)}, s{sT1} offen sc1")
    for c in range(NCH):
        kind, ix = chunks[c]; sl = slot_of(c)
        A(f"s_waitcnt vmcnt({min(NCH - 1 - c, 8) * 4 + (7 if c > NCH - 10 else 0) + (2 if EL < c <= EL + 9 else 0)}) lgkmcnt(0)\ns_barrier")
        if kind in "qk":
            base = 0 if kind == "q" else 144
            for h in range(2): trread(lambda t: sub(base + (2 * ix + h) * 8, t), h, sl)
        elif kind == "o":
            p, kb2 = ix
            for h in range(2):
                if p < 4: trread_o(lambda t: sub(288 + (p * 4 + 2 * kb2 + h) * 8, t), h, sl)
                else:
                    for t in range(2):
                        A(f"ds_read_b64_tr_b16 {wreg(288 + 128 + (2*kb2+h)*4 + 2*t, 2)}, {v(vTD[h])} offset:{sl*4096 + 4*t*256}")
        else:
            trread(lambda t: v(VS + 2 * t, 2), 0, sl)
            if ix < 8: trread(lambda t: v(VS + 8 + 2 * t, 2), 1, sl)
            else: trread(lambda t: v(WVR + 2 * t, 2), 1, sl)
        A("s_waitcnt lgkmcnt(0)\ns_barrier")
        if kind == "v":
            for q in range(4 if ix < 8 else 2):
                A(f"ds_write_b128 {v(vWV)}, {v(VS+4*q,4)} offset:{ix*4096 + q*1024}")
        if c == 0: TS(3)
        if c == 9: TS(4)
        if c == NCH - 1: TS(5)
        if c == ARMAT:
            A(f"""
            s_cmp_lg_u32 s{W}, 0
            s_cbranch_scc1 {L('armed')}
            v_mov_b32 {v(T0)}, 1
            v_mov_b32 {v(T1)}, {DBG_RARM}
            s_mov_b64 exec, 1
            buffer_atomic_add {v(T0)}, {v(T1)}, {srd(SRD_DBG)}, 0 offen sc1
            s_mov_b64 exec, -1
{L('armed')}:
            s_cmp_eq_u32 s{sRED}, 0
            s_cbranch_scc1 {L('nom0')}
            v_min_u32 {v(vSP)}, -2, {v(vSP)}
            s_mov_b32 s{sT0}, {WS_MEMB}
            s_mov_b64 exec, s[{sEVEN}:{sEVEN+1}]
            buffer_store_dword {v(vSP)}, {v(vPUB)}, {srd(SRD_WS)}, s{sT0} offen sc1
            s_mov_b64 exec, -1
            s_nop 0
            v_mov_b32 {v(vSP)}, -1
{L('nom0')}:
            """)
        if c + 9 < NCH: wdma(c + 9)
        if c == EL:
            A(f"""
            v_lshlrev_b32 {v(X1)}, 2, v1
            s_lshl_b32 s{sT1}, s{s_head}, 8
            s_add_u32 s{sT1}, s{sT1}, {FLAG_KV}
            buffer_load_dword {v(D0+50)}, {v(X1)}, {srd(SRD_DBG)}, 0 offen sc1
            buffer_load_dword {v(D0+51)}, {v(X1)}, {srd(SRD_WS)}, s{sT1} offen sc1
            """)
        if c == EL + 10:
            A(f"""
            v_readlane_b32 s{sEARLY}, {v(D0+50)}, {DBG_RARM//4}
            v_readlane_b32 s{sT1}, {v(D0+50)}, {DBG_OVH//4}
            v_cmp_ne_u32 vcc, 4, {v(D0+51)}
            s_cmp_eq_u32 s{sT1}, 0
            s_cselect_b32 s{sMODE}, 0, 1
            s_ff1_i32_b64 s{sKV}, vcc
            s_cmp_lt_i32 s{sKV}, 0
            s_cselect_b32 s{sKV}, 64, s{sKV}
            s_mov_b32 s{sWARMED}, 0
            """)
            if merged:
                A(f"""
                s_cmp_lg_u32 s{W}, 3
                s_cbranch_scc1 {L('nwe')}
                s_cmp_lt_u32 s{sKV}, {WARMD + 1}
                s_cbranch_scc1 {L('nwe')}
                """)
                warm0()
                A(f"s_mov_b32 s{sWARMED}, 1\n{L('nwe')}:")
        if c == NCH - 10:
            A(f"s_mov_b32 s{sT0}, {WS_PART}")
            for i in range(4):
                A(f"buffer_load_dwordx4 {v(D0+28+4*i,4)}, {v(vRED)}, {srd(SRD_WS)}, s{sT0} offen offset:{i*1024} sc1")
            for sl in range(3):
                A(f"s_mov_b32 s{sT0}, {WS_MEMB + sl*MSLOT}")
                A(f"buffer_load_dword {v(D0+46)}, {v(vPUB)}, {srd(SRD_WS)}, s{sT0} offen sc1")
    stamp(A, 9, s_id=s_head)
    hstamp(A, 13)
    AQ, AK, AV = D0, D0 + 4, D0 + 8
    AS = [D0 + 12 + 4 * i for i in range(4)]
    WR = [D0 + 28, D0 + 36, D0 + 44]
    korder = [16, 17] + list(range(16))
    wvl = [kk for kk in korder if kk != 17]
    lg = LQ(A, "lgkmcnt")
    def wvread(f):
        if x_nowv: return
        o = wvl[f] * 2048; d = WR[f % 3]
        A(f"ds_read_b128 {v(d,4)}, {v(vWV)} offset:{o}")
        A(f"ds_read_b128 {v(d+4,4)}, {v(vWV)} offset:{o+1024}")
        lg.push(f"W{f}", 2)
    def zero_acc():
        for i in range(12): A(f"v_mov_b32 {v(AQ+i)}, 0")
    def kv_wait(s_need, lab):
        A(f"""
        s_cmp_ge_u32 s{sKV}, s{s_need}
        s_cbranch_scc1 {lab}_ok
        s_waitcnt vmcnt(0)
        s_lshl_b32 s{sT1}, s{s_head}, 8
        s_add_u32 s{sT1}, s{sT1}, {FLAG_KV}
        v_lshrrev_b32 {v(TMP)}, 2, {v(vCON)}
        v_and_b32 {v(TMP)}, 255, {v(TMP)}
{lab}_p:
        buffer_load_dword {v(D0+40)}, {v(TMP)}, {srd(SRD_WS)}, s{sT1} offen sc1
        s_sub_u32 s{sSPIN}, s{sSPIN}, 1
        s_cbranch_scc1 {abort}
        s_waitcnt vmcnt(0)
        v_cmp_ne_u32 vcc, 4, {v(D0+40)}
        s_ff1_i32_b64 s{sKV}, vcc
        s_cmp_lt_i32 s{sKV}, 0
        s_cselect_b32 s{sKV}, 64, s{sKV}
        s_cmp_ge_u32 s{sKV}, s{s_need}
        s_cbranch_scc1 {lab}_ok
        s_sleep 4
        s_branch {lab}_p
{lab}_ok:
        """)
    A(f"""
    s_mov_b32 s{sSPIN}, {SPIN}
    v_lshlrev_b32 {v(T1)}, 2, v1
    s_cmp_ge_u32 s{sEARLY}, 32
    s_cbranch_scc1 {L('warmok')}
    s_mov_b32 s{sKV}, 0
    s_mov_b32 s{sWARMED}, 0
{L('warm')}:
    buffer_load_dword {v(T0)}, {v(T1)}, {srd(SRD_DBG)}, 0 offen sc1
    s_sub_u32 s{sSPIN}, s{sSPIN}, 1
    s_cbranch_scc1 {abort}
    s_waitcnt vmcnt(0)
    v_readlane_b32 s{sT0}, {v(T0)}, {DBG_RARM//4}
    v_readlane_b32 s{sT1}, {v(T0)}, {DBG_OVH//4}
    s_cmp_lt_u32 s{sT0}, 32
    s_cbranch_scc1 {L('warm')}
    s_cmp_eq_u32 s{sT1}, 0
    s_cselect_b32 s{sMODE}, 0, 1
{L('warmok')}:
    """)
    if merged:
        A(f"""
        s_cmp_lg_u32 s{W}, 3
        s_cbranch_scc1 {L('nkvi')}
        s_cmp_eq_u32 s{sWARMED}, 1
        s_cbranch_scc1 {L('nkvi')}
        s_waitcnt vmcnt(0)
        s_mov_b32 s{sT0}, {WARMD + 1}
        """)
        kv_wait(sT0, L('kvi'))
        warm0()
        A(f"{L('nkvi')}:")
    A(f"""
    s_mov_b32 s{sSTEP}, 0
    s_mov_b32 s{sPW}, {WS_PART}
    s_mov_b32 s{sMA}, {WS_MEMB + 2*MSLOT}
    s_mov_b32 s{sMW}, {WS_MEMB}
    s_mov_b32 s{sMR}, {WS_MEMB + MSLOT}
    s_lshl_b32 s{sSEG}, s{s_head}, 13
    s_mov_b32 s{sWOF}, 0x40000000
    s_cmp_lg_u32 s{W}, 3
    s_cselect_b32 s{sPRG}, s{sWOF}, s{sPRG}
    s_cbranch_scc1 {L('nw3i')}
    s_mov_b32 s{sWOF}, {WS_KX + WARMD*RECSZ}
    v_lshlrev_b32 {v(vRED)}, 7, v1
    v_mov_b32 {v(vSP)}, 0
{L('nw3i')}:
    s_cmp_eq_u32 s{W}, 3
    s_movk_i32 s{sT0}, 2048
    s_cselect_b32 s{sT0}, 1024, s{sT0}
    v_subrev_u32 v1, s{sT0}, {v(vCON)}
    s_waitcnt vmcnt(0) lgkmcnt(0)
    s_barrier
    """)
    zero_acc()
    if prof: A("v_mov_b32 v1, 0\ns_memtime s[98:99]\ns_waitcnt lgkmcnt(0)")
    TS(6)
    if merged: A(f"s_cmp_eq_u32 s{sMODE}, 1\ns_cbranch_scc1 {L('loopS0')}x")
    if cnt: A("s_mov_b32 s20, 0\ns_mov_b32 s21, 0\ns_memtime s[96:97]\ns_memrealtime s[98:99]\ns_waitcnt lgkmcnt(0)\ns_mov_b32 s99, s96")
    RL = D0 + 52
    def sm(acc, a_, b): A(f"v_smfmac_f32_16x16x64_bf16 {v(acc,4)}, {a_}, {b}, {v(IDX)}")
    def mf(d, a_, b_, first):
        A(f"v_mfma_f32_16x16x32_bf16 {v(d,4)}, {a_}, {b_}, {'0' if first else v(d,4)}")
    def chk(r, br):
        A(f"""
        v_max3_u32 {v(TMP)}, {v(r)}, {v(r+1)}, {v(r+2)}
        v_max_u32 {v(TMP)}, {v(TMP)}, {v(r+3)}
        v_cmp_eq_u32 vcc, -1, {v(TMP)}
        {br}
        """)
    def spin(): A(f"s_sub_u32 s{sSPIN}, s{sSPIN}, 1\ns_cbranch_scc1 {abort}")
    def cload(r, so): A(f"buffer_load_dwordx4 {v(r,4)}, {v(vC1)}, {srd(SRD_WS)}, s{so} offen{ld}")
    def pk2(d, s_):
        A(f"v_cvt_pk_bf16_f32 {v(d)}, {v(s_)}, {v(s_+1)}")
        A(f"v_cvt_pk_bf16_f32 {v(d+1)}, {v(s_+2)}, {v(s_+3)}")
    def step_body(par, sc, md):
        LP = lambda n: L(n + md + str(par))
        nxt_loop = L('loop' + md + str(1 - par))
        A.label(LP('loop'))
        A("s_waitcnt vmcnt(2)")
        A.label(LP('loop') + "x")
        lg.clear()
        A(f"""
        s_mov_b32 s{sT3}, s{sMA}
        s_mov_b32 s{sMA}, s{sMW}
        s_mov_b32 s{sMW}, s{sMR}
        s_mov_b32 s{sMR}, s{sT3}
        s_mov_b32 s{sSPIN}, {SPIN}
        s_sub_u32 s{sT0}, s{sMA}, {HI}
        s_add_u32 s{sT1}, s{sT0}, s{sB1}
        s_add_u32 s{sT2}, s{sT0}, {(R1N-1)*1024}
        s_add_u32 s{sT3}, s{sT0}, s{sB3}
        s_add_u32 s{sT0}, s{sT0}, s{sB2}
        s_add_u32 s{sT4}, s{sSEG}, {WS_KX - HI}
        s_add_u32 m0, s{sWB}, {L_MEMF + R1N*1024}
        """)
        for f in range(3): wvread(f)
        A(f"s_cmp_lt_u32 s{W}, 2\ns_cbranch_scc1 {LP('cdj')}")
        if CD: A(f"s_sleep {CD}")
        TQ("cgo")
        def cload2(r):
            A(f"buffer_load_dwordx4 {v(r,4)}, {v(vC1)}, {srd(SRD_WS)}, s{sT1} offen sc1")
            A(f"buffer_load_dwordx4 {v(r+4,4)}, {v(vC1)}, {srd(SRD_WS)}, s{sT0} offen offset:1024 sc1")
        def cproc(r, y, br):
            A(f"""
            s_waitcnt vmcnt({y+1})
            ds_write_b128 {v(vC1)}, {v(r,4)} offset:{L_MEMF-HI}
            v_max3_u32 {v(TMP)}, {v(r)}, {v(r+1)}, {v(r+2)}
            s_waitcnt vmcnt({y})
            ds_write_b128 {v(vC1)}, {v(r+4,4)} offset:{L_MEMF-HI+1024}
            v_max3_u32 {v(TMP)}, {v(TMP)}, {v(r+3)}, {v(r+4)}
            v_max3_u32 {v(TMP)}, {v(TMP)}, {v(r+5)}, {v(r+6)}
            v_max_u32 {v(TMP)}, {v(TMP)}, {v(r+7)}
            v_cmp_eq_u32 vcc, -1, {v(TMP)}
            {br}
            """)
        if CGAP:
            cload2(AS[0]); A(f"s_sleep {CGAP}" if CGAP > 0 else f"s_nop {-CGAP}"); cload2(AS[2])
            A.label(LP('cp'))
            cproc(AS[0], 2, f"s_cbranch_vccnz {LP('cf')}")
        else:
            A.label(LP('cp'))
            cload2(AS[2]); spin()
            cproc(AS[2], 0, f"s_cbranch_vccnz {LP('cp')}")
        A.label(LP('cdj'))
        TQ("cdj")
        A("s_waitcnt lgkmcnt(0)\ns_barrier")
        if trace: TR(4); A("s_waitcnt lgkmcnt(0)")
        lg.clear()
        if cnt: A(f"s_sub_u32 s96, {SPIN}, s{sSPIN}\ns_add_u32 s20, s20, s96")
        PH(0)
        slot = lambda i: (i & 3) if i < 12 else (i - 12) % 3
        prev_user = lambda j: j - 4 if j < 15 else j - 3
        def aread(i):
            A(f"ds_read_b128 {v(AS[slot(i)],4)}, {v(vAF)} offset:{L_MEMF-HI+i*512}")
            lg.push(f"A{i}")
        def dma(so): A(f"buffer_load_dwordx4 {v(vCON)}, {srd(SRD_WS)}, s{so} offen sc1 lds")
        KXR = [D0 + 44, D0 + 48, D0 + 28, D0 + 32, D0 + 36, D0 + 40, D0 + 28, D0 + 32]
        VXF = [D0 + 52, D0 + 24]
        def kxread(n):
            A(f"ds_read_b128 {v(KXR[n],4)}, {v(vKX)} offset:{L_KX-HI+(n>>1)*2048+(n&1)*128}")
            lg.push(f"X{n}")
        TQ("start")
        aread(0); aread(1)
        if CGAP: A("s_waitcnt vmcnt(0)")
        aread(2); aread(3)
        f = 0
        nxt = 4
        late = []
        for i, kk in enumerate(korder):
            a_ = v(AS[slot(i)], 4)
            TQ(f"q{i}")
            lg.wait(f"A{i}")
            sm(AQ, a_, WQ(kk))
            if i == WAT and not nowarm: A(f"buffer_load_dword {v(TMP)}, {v(vRED)}, {srd(SRD_WS)}, s{sT3} offen sc1")
            if i == WAT + 1 and not nowarm: A(f"buffer_load_dword {v(TMP)}, {v(vRED)}, {srd(SRD_WS)}, s{sT2} offen sc1")
            if i == WAT + 2 and merged: A(f"buffer_store_dword {v(vSP)}, off, {srd(SRD_WS)}, s{sPRG} sc1")
            if i == R2AT: dma(sT2)
            if i in (R2AT + 1, R2AT + 2): dma(sT4)
            if i == R3AT: dma(sT3)
            if i == R3AT + 1: A(f"buffer_load_dwordx4 {v(VXF[0],4)}, {v(vVX)}, {srd(SRD_WS)}, s{sT0} offen sc1")
            sm(AK, a_, WK(kk))
            if i == R2AT: A(f"s_add_u32 m0, s{sWB}, {L_KX}")
            if i == R2AT + 1: A(f"s_add_u32 m0, s{sWB}, {L_KX + 4096}\ns_add_u32 s{sT4}, s{sT4}, 4096")
            if i == R2AT + 2: A(f"s_mov_b32 m0, s{sM3}\ns_add_u32 s{sT0}, s{sSEG}, {WS_VX}")
            if i in (B2AT, B3AT):
                A(f"s_waitcnt vmcnt(2)\ns_barrier")
                while prev_user(nxt) < i: aread(nxt); nxt += 1
            if i == 8: A(f"s_lshr_b32 s{sT2}, s{sSEG}, 1")
            if i == 9: A(f"s_add_u32 s{sT1}, s{sT2}, {0x40000000 if nokm else WS_VM - L_Q}\ns_add_u32 s{sT4}, s{sT2}, {0x40000000 if nokm else WS_KM - L_Q}")
            if i == 10: A(f"s_add_u32 s{sT3}, s{sSEG}, s{sWOF}\ns_add_u32 s{sT2}, s{sT3}, {WS_VX - WS_KX}")
            if kk == 17:
                sm(AV, a_, v(WVR, 8))
            elif i >= 16:
                late.append((a_, f)); f += 1
            else:
                lg.wait(f"W{f}")
                sm(AV, a_, v(WR[f % 3], 8))
                if f + 3 < 17: wvread(f + 3)
                f += 1
            lim = 2*R1N-1 if i < B2AT else (2*R1N+7 if i < B3AT else 17)
            while nxt <= lim and prev_user(nxt) <= i: aread(nxt); nxt += 1
            if i == 11: A(f"buffer_load_dwordx4 {v(VXF[1],4)}, {v(vVX)}, {srd(SRD_WS)}, s{sT0} offen offset:256 sc1")
            if i == 15: kxread(0); kxread(1)
        assert nxt == 18 and WAT > B3AT >= 12 and R3AT + 1 <= 11
        TQ("qend")
        QF = [D0 + 0, D0 + 4]; KF = [D0 + 16, D0 + 20]
        KP, ZP = D0 + 12, D0 + 14
        def latev(n):
            a_, f_ = late[n]
            lg.wait(f"W{f_}")
            sm(AV, a_, v(WR[f_ % 3], 8))
        def qk_write():
            pk2(AQ, AQ)
            A(f"ds_write_b64 {v(vQW)}, {v(AQ,2)}")
            pk2(KP, AK)
            A(f"ds_write_b64 {v(vQW)}, {v(KP,2)} offset:{L_K-L_Q}")
        latev(0)
        kxread(2); kxread(3)
        if MW == 1: A("s_nop 3")
        else: A("s_nop 0")
        TQ("s2a")
        qk_write(); lg.push("qk", 2)
        latev(1)
        kxread(4); kxread(5)
        A(f"""
        v_cmp_u_f32 vcc, {v(AK)}, {v(AK+1)}
        v_cmp_u_f32 s[{sRDLY2}:{sRDLY2+1}], {v(AK+2)}, {v(AK+3)}
        s_or_b64 vcc, vcc, s[{sRDLY2}:{sRDLY2+1}]
        s_cbranch_vccnz {LP('slow')}
        """)
        A.label(LP('slowret'))
        if par == (last & 1):
            A(f"s_cmp_eq_u32 s{sSTEP}, {last}\ns_cbranch_scc1 {L('done')}")
        TQ("s2c")
        lg.wait("qk")
        A("s_barrier")
        TQ("s2end")
        def qk_reads(fb):
            b = fb & 1
            for (dst, base, tg) in ((QF[b], 0, "Q"), (KF[b], L_K - L_Q, "K")):
                A(f"ds_read_b64_tr_b16 {v(dst,2)}, {v(vQR)} offset:{base+fb*512}")
                A(f"ds_read_b64_tr_b16 {v(dst+2,2)}, {v(vQR)} offset:{base+fb*512+128}")
                lg.push(f"{tg}{fb}", 2)
        qk_reads(0); qk_reads(1)
        pk2(ZP, AV)
        ST = [D0 + 8, KXR[0], KXR[1]]
        VMT = D0 + 36; ON1 = D0 + 16; ON2 = D0 + 20
        M0_, M1_ = D0 + 42, D0 + 43
        PX = D0 + 0; PM = PX + 4
        for fb in range(4):
            b = fb & 1
            TQ(f"fb{fb}")
            for kt in range(2):
                n = 2 * fb + kt
                lg.wait(f"Q{fb}"); lg.wait(f"X{n}")
                mf(ST[kt], v(KXR[n], 4), v(QF[b], 4), fb == 0)
                if n in (2, 3): kxread(n + 4)
                if n == 0: A(f"buffer_store_dwordx2 {v(KP,2)}, {v(vQW)}, {srd(SRD_WS)}, s{sT4} offen sc1")
                if n == 3: A(f"buffer_store_dwordx2 {v(ZP,2)}, {v(vQW)}, {srd(SRD_WS)}, s{sT1} offen sc1")
                if n == 4: A(f"v_cndmask_b32 {v(VMT)}, 0, {v(ZP)}, s[{sLO32}:{sLO32+1}]\nv_cndmask_b32 {v(VMT+1)}, 0, {v(ZP+1)}, s[{sLO32}:{sLO32+1}]")
                if n == 5: A(f"v_mov_b32 {v(VMT+2)}, 0\nv_mov_b32 {v(VMT+3)}, 0")
                if n == 6: A(f"v_mov_b32 {v(ON1)}, 0x3f803f80\nv_mov_b32 {v(ON1+1)}, 0x3f803f80")
                if n == 7: A(f"v_mov_b32 {v(ON1+2)}, 0x3f803f80\nv_mov_b32 {v(ON1+3)}, 0x3f803f80")
            lg.wait(f"K{fb}")
            mf(ST[2], v(KF[b], 4), v(QF[b], 4), fb == 0)
            if fb + 2 < 4: qk_reads(fb + 2)
            if fb == 2:
                A(f"v_cndmask_b32 {v(VMT+4)}, 0, {v(ZP)}, s[{sHI32}:{sHI32+1}]\nv_cndmask_b32 {v(VMT+5)}, 0, {v(ZP+1)}, s[{sHI32}:{sHI32+1}]")
        TQ("scend")
        SR = [ST[t] + r for t in range(3) for r in range(4)]
        A(f"v_mov_b32 {v(ON2)}, 0x3f003f00\nv_mov_b32 {v(ON2+1)}, 0x3f003f00\nv_mov_b32 {v(ON2+2)}, 0\nv_mov_b32 {v(ON2+3)}, 0")
        A(f"""
        v_max3_f32 {v(M0_)}, {v(SR[0])}, {v(SR[1])}, {v(SR[2])}
        s_nop 0
        v_max3_f32 {v(M1_)}, {v(SR[3])}, {v(SR[4])}, {v(SR[5])}
        v_max3_f32 {v(M0_)}, {v(M0_)}, {v(SR[6])}, {v(SR[7])}
        v_max3_f32 {v(M1_)}, {v(M1_)}, {v(SR[8])}, {v(SR[9])}
        v_max3_f32 {v(M0_)}, {v(M0_)}, {v(SR[10])}, {v(SR[11])}
        v_max_f32 {v(M0_)}, {v(M0_)}, {v(M1_)}
        v_max_f32 {v(M1_)}, {v(M0_)}, {v(M1_)}
        v_mov_b32 {v(D0+12)}, 0
        v_mov_b32 {v(D0+13)}, 0
        v_permlane32_swap_b32 {v(M0_)}, {v(M1_)}
        v_max_f32 {v(M0_)}, {v(M0_)}, {v(M1_)}
        v_max_f32 {v(M1_)}, {v(M0_)}, {v(M1_)}
        v_mov_b32 {v(D0+14)}, 0
        v_mov_b32 {v(D0+15)}, 0
        v_permlane16_swap_b32 {v(M0_)}, {v(M1_)}
        v_max_f32 {v(M0_)}, {v(M0_)}, {v(M1_)}
        v_mul_f32 {v(M0_)}, s{sC}, {v(M0_)}
        """)
        for i in range(6):
            A(f"v_pk_fma_f32 {v(SR[2*i],2)}, {v(SR[2*i],2)}, s[{sC}:{sC+1}], {v(M0_,2)} op_sel_hi:[1,1,0] neg_lo:[0,0,1] neg_hi:[0,0,1]")
        for i in range(12):
            A(f"v_exp_f32 {v(SR[i])}, {v(SR[i])}")
            if i >= 2 and i % 2 == 0: A(f"v_cvt_pk_bf16_f32 {v(PX+i//2-1)}, {v(SR[i-2])}, {v(SR[i-1])}")
        OT, OT1, LS = D0 + 28, D0 + 32, D0 + 8
        TQ("expend")
        A(f"""
        s_waitcnt vmcnt({2 + (0 if nowarm else 2) + (1 if merged else 0)})
        v_cvt_pk_bf16_f32 {v(PX+5)}, {v(SR[10])}, {v(SR[11])}
        v_mfma_f32_16x16x32_bf16 {v(LS,4)}, {v(ON1,4)}, {v(PX,4)}, 0
        v_mfma_f32_16x16x32_bf16 {v(OT,4)}, {v(VXF[0],4)}, {v(PX,4)}, 0
        v_mfma_f32_16x16x32_bf16 {v(LS,4)}, {v(ON2,4)}, {v(PM,4)}, {v(LS,4)}
        v_mfma_f32_16x16x32_bf16 {v(OT,4)}, {v(VMT,4)}, {v(PM,4)}, {v(OT,4)}
        v_mfma_f32_16x16x32_bf16 {v(OT1,4)}, {v(VXF[1],4)}, {v(PX,4)}, 0
        v_mfma_f32_16x16x32_bf16 {v(OT1,4)}, {v(VMT+2,4)}, {v(PX+2,4)}, {v(OT1,4)}
        """)
        WAo = [D0 + 44, D0 + 48, D0 + 12, D0 + 16]
        WA8 = D0 + 20
        OF = [D0 + 0, D0 + 4, D0 + 36, D0 + 40]
        zl = [WAo[p] + i for p in (0, 1, 3) for i in range(4)]
        npre = 5 if MW == 1 else 0
        for r in zl[:npre]: A(f"v_mov_b32 {v(r)}, 0")
        A(f"v_rcp_f32 {v(M0_)}, {v(LS)}")
        A(f"v_mov_b32 {v(zl[npre])}, 0")
        if MW > 1: A(f"v_mov_b32 {v(zl[npre+1])}, 0"); npre += 1
        A(f"v_pk_mul_f32 {v(OT,2)}, {v(OT,2)}, {v(M0_,2)} op_sel_hi:[1,0]")
        A(f"v_pk_mul_f32 {v(OT+2,2)}, {v(OT+2,2)}, {v(M0_,2)} op_sel_hi:[1,0]")
        pk2(OT, OT)
        A(f"ds_write_b64 {v(vOW)}, {v(OT,2)}")
        A(f"v_pk_mul_f32 {v(OT1,2)}, {v(OT1,2)}, {v(M0_,2)} op_sel_hi:[1,0]")
        A(f"v_pk_mul_f32 {v(OT1+2,2)}, {v(OT1+2,2)}, {v(M0_,2)} op_sel_hi:[1,0]")
        pk2(OT1, OT1)
        A(f"ds_write_b64 {v(vOW)}, {v(OT1,2)} offset:256")
        for r in zl[npre+1:]: A(f"v_mov_b32 {v(r)}, 0")
        A(f"""
        s_add_u32 s{sT0}, s{sPW}, {4*65536}
        s_add_u32 s{sT1}, s{sPW}, {65536}
        s_waitcnt lgkmcnt(0)
        """)
        TQ("smend")
        PH(4)
        A("s_barrier")
        if trace: TR(0); A("s_waitcnt lgkmcnt(0)")
        lg.clear()
        for ks in range(4):
            A(f"ds_read_b128 {v(OF[ks],4)}, {v(vAF)} offset:{L_O-HI+ks*512}"); lg.push(f"O{ks}")
        SEL = D0 + 36; RT = D0 + 40; RDd = D0 + 20; RBS = [[D0 + 28, D0 + 32, D0 + 52, D0 + 24], [D0 + 44, D0 + 48, D0 + 12, D0 + 16]]
        A(f"""
        s_add_u32 s{sT2}, s{sPW}, {2*65536}
        s_add_u32 s{sT3}, s{sPW}, {3*65536}
        s_add_u32 s{sSTEP}, s{sSTEP}, 1
        s_add_u32 s{sSEG}, s{sSEG}, {0 if fixseg else RECSZ}
        s_mov_b32 s{sSPIN}, {SPIN}
        """)
        TQ("wostart")
        PH(5)
        tagop = lambda r: (f"v_or_b32 {v(r)}, 1, {v(r)}" if par else f"v_and_b32 {v(r)}, -2, {v(r)}")
        def out_ops(a0, soff, half=False):
            ops = [f"v_cvt_pk_bf16_f32 {v(a0)}, {v(a0)}, {v(a0+1)}", f"v_cvt_pk_bf16_f32 {v(a0+1)}, {v(a0+2)}, {v(a0+3)}",
                   tagop(a0), tagop(a0 + 1)]
            st = f"buffer_store_dwordx2 {v(a0,2)}, {v(vPST)}, {srd(SRD_WS)}, s{soff} offen{sc}"
            if half: st = f"s_mov_b64 exec, s[{sLO32}:{sLO32+1}]\n{st}\ns_mov_b64 exec, -1"
            return ops + [st]
        mfl = [("d", ks) for ks in range(4)] + [(p, ks) for p in range(4) for ks in range(4)]
        groups = [(3, out_ops(WA8, sT0, True))] + [(7 + 4 * p, out_ops(WAo[p], [sPW, sT1, sT2, sT3][p])) for p in range(4)]
        ic = [0]; pos = {}
        def emit(s_):
            A(s_); ic[0] += len([x for x in s_.split("\n") if x.strip()])
        cur = []; gi = 0
        for n, (p, ks) in enumerate(mfl):
            if p == "d":
                n0 = len(A.lines); lg.wait(f"O{ks}"); ic[0] += len(A.lines) - n0
                emit(f"v_mfma_f32_16x16x32_bf16 {v(WA8,4)}, {v(OF[ks],4)}, {WO8(ks)}, {'0' if ks == 0 else v(WA8,4)}")
            else:
                emit(f"v_smfmac_f32_16x16x64_bf16 {v(WAo[p],4)}, {v(OF[ks],4)}, {WO(p,ks)}, {v(IDX)}")
            ic[0] += MW - 1
            pos[n] = ic[0]
            k = 0
            while k < 2:
                if not cur and gi < len(groups) and groups[gi][0] <= n and ic[0] - pos[groups[gi][0]] >= (9 if MW > 1 else 8):
                    cur = list(groups[gi][1]); gi += 1
                if not cur: break
                emit(cur.pop(0)); k += 1
        while cur or gi < len(groups):
            if not cur:
                need = 8 - (ic[0] - pos[groups[gi][0]])
                if need > 0: emit(f"s_nop {need-1}"); ic[0] += need - 1
                cur = list(groups[gi][1]); gi += 1
            emit(cur.pop(0))
        TQ("woend")
        PH(6)
        TR(1)
        A(f"s_cmp_eq_u32 s{sRED}, 0\ns_cbranch_scc1 {LP('nored')}")
        def rload(sidx):
            for i in range(4):
                A(f"buffer_load_dwordx4 {v(RBS[sidx][i],4)}, {v(vRED)}, {srd(SRD_WS)}, s{sPW} offen offset:{i*1024}{ld}")
        def rproc(sidx, br):
            for i in range(4):
                b = RBS[sidx][i]
                A(f"s_waitcnt vmcnt({(7 if RGAP else 3)-i})")
                mf(RDd, v(SEL, 4), v(b, 4), i == 0)
                o3 = (lambda d, x, y, z: f"v_bitop3_b32 {v(d)}, {v(x)}, {v(y)}, {v(z)} bitop3:0x80") if par else (lambda d, x, y, z: f"v_or3_b32 {v(d)}, {v(x)}, {v(y)}, {v(z)}")
                if i == 0:
                    A(o3(RT, b, b + 1, b + 2)); A(o3(RT, RT, b + 3, b + 3))
                else:
                    A(o3(RT, RT, b, b + 1)); A(o3(RT, RT, b + 2, b + 3))
            A(f"v_and_b32 {v(RT)}, 1, {v(RT)}\nv_cmp_ne_u32 vcc, {par}, {v(RT)}\n{br}")
        A(f"""
        s_mov_b32 s{sT0}, s{sRDLY}
    {LP('rdl')}:
        s_cmp_eq_u32 s{sT0}, 0
        s_cbranch_scc1 {LP('rgo')}
        s_sleep 1
        s_sub_u32 s{sT0}, s{sT0}, 1
        s_branch {LP('rdl')}
    {LP('rgo')}:
        """)
        TQ("rgo")
        rload(0)
        zero_acc()
        for r in range(4): A(f"v_cndmask_b32 {v(SEL+r)}, 0, {v(SELV)}, s[{sSEL+2*r}:{sSEL+2*r+1}]")
        if RGAP:
            if RGAP > 0: A(f"s_sleep {RGAP}")
            rload(1)
        A.label(LP('rp0'))
        rproc(0, f"s_cbranch_vccnz {LP('rf0')}")
        A.label(LP('rdone'))
        TQ("rdone")
        A(f"""
        {'s_sub_u32 s96, %d, s%d' % (SPIN, sSPIN) if cnt else 's_nop 0'}
        {'s_add_u32 s21, s21, s96' if cnt else 's_nop 0'}
        s_nop 0
        v_cndmask_b32 {v(RT)}, {v(RDd)}, {v(RDd+2)}, s[{sHI32}:{sHI32+1}]
        v_cndmask_b32 {v(RT+1)}, {v(RDd+1)}, {v(RDd+3)}, s[{sHI32}:{sHI32+1}]
        v_cndmask_b32 {v(RT+3)}, {v(RT+1)}, {v(RT)}, s[{sN8}:{sN8+1}]
        v_cndmask_b32 {v(RT+2)}, {v(RT)}, {v(RT+1)}, s[{sN8}:{sN8+1}]
        s_nop 0
        v_add_f32_dpp {v(RT+2)}, {v(RT+3)}, {v(RT+2)} row_ror:8 row_mask:0xf bank_mask:0xf
        v_mov_b32 {v(RT+3)}, {v(RT+2)}
        s_nop 1
        v_permlane16_swap_b32 {v(RT+2)}, {v(RT+3)}
        v_cvt_pk_bf16_f32 {v(RT+2)}, {v(RT+2)}, {v(RT+3)}
        v_min_u32 {v(TMP)}, -2, {v(RT+2)}
        s_mov_b64 exec, s[{sPM}:{sPM+1}]
        buffer_store_dword {v(TMP)}, {v(vPUB)}, {srd(SRD_WS)}, s{sMW} offen{sc}
        buffer_store_dword {v(vSP)}, {v(vPUB)}, {srd(SRD_WS)}, s{sMA} offen{sc}
        s_mov_b64 exec, -1
        """)
        TQ("pub")
        PH(7)
        TR(2)
        if trace: A("s_waitcnt lgkmcnt(0)")
        A(f"s_branch {nxt_loop}")
        A.label(LP('nored'))
        if trace: A("s_waitcnt vmcnt(0)"); TR(2); A("s_waitcnt lgkmcnt(0)")
        zero_acc()
        if merged:
            A(f"s_cmp_lg_u32 s{W}, 3\ns_cbranch_scc1 {LP('nkv')}\nv_mov_b32 {v(vSP)}, s{sSTEP}\ns_add_u32 s{sT0}, s{sSTEP}, {WARMD + 1}\ns_min_u32 s{sT0}, s{sT0}, 64")
            kv_wait(sT0, LP('kv'))
            A.label(LP('nkv'))
        if tstep:
            A(f"s_cmp_lg_u32 s{W}, 2\ns_cbranch_scc1 {LP('nts')}\ns_memrealtime s[96:97]\ns_waitcnt lgkmcnt(0)\ns_mov_b32 m0, s{sSTEP}\nv_writelane_b32 {v(vSP)}, s96, m0\n{LP('nts')}:")
        if CDN: A(f"s_sleep {CDN}")
        A(f"s_branch {nxt_loop}x")
        A.label(LP('rf0'))
        rload(0); spin()
        if RGAP:
            rproc(1, f"s_cbranch_vccz {LP('rdone')}")
            rload(1); spin()
        A(f"s_branch {LP('rp0')}")
        if CGAP:
            A.label(LP('cf'))
            cload2(AS[0]); spin()
            cproc(AS[2], 2, f"s_cbranch_vccz {LP('cok')}")
            cload2(AS[2]); spin()
            A(f"s_branch {LP('cp')}")
            A(f"{LP('cok')}:\ns_waitcnt vmcnt(0)\ns_branch {LP('cdj')}")
        A.label(LP('slow'))
        A(f"s_sub_u32 s97, s{sMA}, {HI}\ns_waitcnt lgkmcnt(0)\ns_nop 7")
        zero_acc()
        for kp in range(9):
            lab = LP(f'sp{kp}_')
            for h in range(2):
                kk = 2 * kp + h
                if kk != 17:
                    A(f"ds_read_b128 {v(WR[h],4)}, {v(vWV)} offset:{kk*2048}\nds_read_b128 {v(WR[h]+4,4)}, {v(vWV)} offset:{kk*2048+1024}")
            A(f"""
{lab}:
            buffer_load_dwordx4 {v(AS[0],4)}, {v(vAF)}, {srd(SRD_WS)}, s97 offen sc1
            buffer_load_dwordx4 {v(AS[1],4)}, {v(vAF)}, {srd(SRD_WS)}, s97 offen offset:512 sc1
            """)
            spin()
            A(f"""
            s_waitcnt vmcnt(0) lgkmcnt(0)
            v_max3_u32 {v(TMP)}, {v(AS[0])}, {v(AS[0]+1)}, {v(AS[0]+2)}
            v_max3_u32 {v(TMP)}, {v(TMP)}, {v(AS[0]+3)}, {v(AS[1])}
            v_max3_u32 {v(TMP)}, {v(TMP)}, {v(AS[1]+1)}, {v(AS[1]+2)}
            v_max_u32 {v(TMP)}, {v(TMP)}, {v(AS[1]+3)}
            v_cmp_eq_u32 vcc, -1, {v(TMP)}
            s_cbranch_vccnz {lab}
            """)
            for h in range(2):
                kk = 2 * kp + h
                sm(AQ, v(AS[h], 4), WQ(kk)); sm(AK, v(AS[h], 4), WK(kk)); sm(AV, v(AS[h], 4), v(WR[h], 8) if kk != 17 else v(WVR, 8))
            A(f"s_add_u32 s97, s97, 1024")
        if prof: A(f"s_mov_b64 exec, {1 << 10}\nv_add_u32 v1, 63, v1\ns_mov_b64 exec, -1")
        if cnt: A("s_add_u32 s20, s20, 0x10000")
        A("s_nop 7")
        qk_write()
        for n in range(2, 6): A(f"ds_read_b128 {v(KXR[n],4)}, {v(vKX)} offset:{L_KX-HI+(n>>1)*2048+(n&1)*128}")
        A(f"s_waitcnt lgkmcnt(0)\ns_branch {LP('slowret')}")
    step_body(0, sc, ''); step_body(1, sc, '')
    if merged:
        step_body(0, ' sc1', 'S'); step_body(1, ' sc1', 'S')
    A.label(L('done'))
    A(f"""
    s_lshr_b32 s{sT2}, s{sSEG}, 1
    s_add_u32 s{sT1}, s{sT2}, {WS_VM - L_Q}
    s_add_u32 s{sT4}, s{sT2}, {WS_KM - L_Q}
    buffer_store_dwordx2 {v(D0+12,2)}, {v(vQW)}, {srd(SRD_WS)}, s{sT4} offen sc1
    s_nop 1
    v_cvt_pk_bf16_f32 {v(D0+14)}, {v(D0+8)}, {v(D0+9)}
    v_cvt_pk_bf16_f32 {v(D0+15)}, {v(D0+10)}, {v(D0+11)}
    buffer_store_dwordx2 {v(D0+14,2)}, {v(vQW)}, {srd(SRD_WS)}, s{sT1} offen sc1
    """)
    A("s_waitcnt vmcnt(0) lgkmcnt(0)")
    if merged:
        A(f"""
        s_barrier
        s_cmp_lg_u32 s{W}, 3
        s_cbranch_scc1 {L('nfin')}
        v_mov_b32 {v(TMP)}, 64
        v_mov_b32 {v(D0+52)}, s{sPRG}
        s_mov_b64 exec, 1
        buffer_store_dword {v(TMP)}, {v(D0+52)}, {srd(SRD_WS)}, 0 offen sc1
        s_mov_b64 exec, -1
        s_waitcnt vmcnt(0)
{L('nfin')}:
        """)
    if cnt:
        A(f"v_mov_b32 v1, s20\ns_mov_b64 exec, 2\nv_mov_b32 v1, s21\ns_mov_b64 exec, -1")
        A("s_memtime s[96:97]\ns_memrealtime s[100:101]\ns_waitcnt lgkmcnt(0)\ns_sub_u32 s96, s96, s99\ns_sub_u32 s100, s100, s98")
        A("s_mov_b64 exec, 4\nv_mov_b32 v1, s96\ns_mov_b64 exec, 8\nv_mov_b32 v1, s100\ns_mov_b64 exec, -1")
    if trace:
        for i in range(6): A(f"s_mov_b64 exec, {1 << i}\nv_mov_b32 v1, s{8+2*i}")
        A("s_mov_b64 exec, -1")
    if tq:
        for i in range(len(tq)): A(f"s_mov_b64 exec, {1 << i}\nv_mov_b32 v1, s{8+2*i}")
        A("s_mov_b64 exec, -1")
    if tstart:
        TS(7)
        A("s_mov_b32 s8, s100\ns_mov_b32 s10, s98")
        for i in range(8): A(f"s_mov_b64 exec, {1 << i}\nv_mov_b32 v1, s{8+2*i}")
        A("s_mov_b64 exec, -1")
    if tstep: A(f"v_mov_b32 v1, {v(vSP)}")
    if prof or cnt or trace or tq or tstep or tstart:
        A(f"""
        s_lshl_b32 s96, s{s_head}, 2
        s_add_u32 s96, s96, s{W}
        s_lshl_b32 s96, s96, 8
        s_add_u32 s96, s96, {WS_STAMP + 0x10000}
        v_lshrrev_b32 v28, 2, {v(vCON)}
        v_and_b32 v28, 255, v28
        buffer_store_dword v1, v28, {srd(SRD_WS)}, s96 offen
        s_waitcnt vmcnt(0)
        """)
    stamp(A, 10, s_id=s_head)
    hstamp(A, 14)
```

```python
from common import *
from mod_p import *
from mod_r8 import mod_R
from mod_r4 import SPIN
from mod_xo import *
from mod_f import *

NW = 224
EV_LDS = 16384
sWID, sHEAD, sGRP, sCB, sOG, sXN, sON, sPAR, sITEM, sCG, sTG, sKAP, sSP, sREC = range(76, 90)
sDUE, sIMM = 94, 95

BC_LDS = 163836
def claim_issue(A, FX=0, JX=0):
    A(f"""
    s_getreg_b32 s59, hwreg(HW_REG_XCC_ID)
    s_and_b32 s59, s59, 15
    """)
    if FX:
        A("s_cmp_ge_u32 s2, 128\ns_cselect_b32 s60, 1, 0\ns_max_u32 s59, s59, s60")
    A(f"""
    s_bfe_u32 s60, s2, 0x50003
    s_xor_b32 s60, s60, {JX}
    s_lshl_b32 s58, s59, 5
    s_add_u32 s58, s58, s60
    v_mov_b32 v30, -1
    v_mov_b32 v31, 0
    s_cmp_lg_u32 s{S_WAVE}, 0
    s_cbranch_scc1 RA_iss
    s_cmp_ge_u32 s59, 8
    s_cbranch_scc1 RA_iss
    s_lshl_b32 s61, 1, s60
    s_mov_b32 s62, {claim_off(0)}
    """)
    for x in range(1, 8):
        A(f"s_cmp_eq_u32 s59, {x}\ns_cselect_b32 s62, {claim_off(x)}, s62")
    A(f"""
    v_mov_b32 v30, s61
    v_mov_b32 v31, s62
    s_mov_b64 exec, 1
    buffer_atomic_or v30, v31, {srd(SRD_DBG)}, 0 offen sc0 sc1
    s_mov_b64 exec, -1
RA_iss:
    """)

def claim_resolve(A, t, younger, abort):
    A(f"""
    s_cmp_lg_u32 s{S_WAVE}, 0
    s_cbranch_scc1 RA{t}_bc
    s_and_b32 s60, s58, 31
    s_waitcnt vmcnt({younger})
RA{t}_try:
    v_readfirstlane_b32 s61, v30
    s_bitcmp0_b32 s61, s60
    s_cbranch_scc1 RA{t}_got
    s_ff0_i32_b32 s60, s61
    s_cmp_lt_i32 s60, 0
    s_cbranch_scc1 RA{t}_ovf
    s_lshl_b32 s61, 1, s60
    v_mov_b32 v30, s61
    s_mov_b64 exec, 1
    buffer_atomic_or v30, v31, {srd(SRD_DBG)}, 0 offen sc0 sc1
    s_mov_b64 exec, -1
    s_waitcnt vmcnt(0)
    s_branch RA{t}_try
RA{t}_got:
    s_lshl_b32 s3, s59, 5
    s_add_u32 s3, s3, s60
    s_branch RA{t}_have
RA{t}_ovf:
    v_mov_b32 v28, 1
    v_mov_b32 v29, {DBG_OVF}
    s_mov_b64 exec, 1
    buffer_atomic_add v28, v29, {srd(SRD_DBG)}, 0 offen sc0 sc1
    s_mov_b64 exec, -1
    s_waitcnt vmcnt(0)
    v_readfirstlane_b32 s61, v28                 ; o
    v_lshlrev_b32 v29, 2, v1
    s_mov_b32 s63, {SPIN}
RA{t}_poll:
    buffer_load_dword v28, v29, {srd(SRD_DBG)}, 0 offen sc1
    s_sub_u32 s63, s63, 1
    s_cbranch_scc1 {abort}
    s_waitcnt vmcnt(0)
    v_readlane_b32 s62, v28, {DBG_OVF//4}
    """)
    for x in range(8):
        A(f"v_readlane_b32 s60, v28, {claim_off(x)//4}\ns_nop 1\nv_writelane_b32 v30, s60, {x}\ns_bcnt1_i32_b32 s60, s60\ns_add_u32 s62, s62, s60")
    A(f"""
    s_cmp_lt_u32 s62, 256
    s_cbranch_scc1 RA{t}_poll
    s_mov_b32 s3, 0
RA{t}_scan:
    s_lshr_b32 s60, s3, 5
    s_nop 3
    v_readlane_b32 s62, v30, s60
    s_and_b32 s60, s3, 31
    s_bitcmp1_b32 s62, s60
    s_cbranch_scc1 RA{t}_nx
    s_cmp_eq_u32 s61, 0
    s_cbranch_scc1 RA{t}_fnd
    s_sub_u32 s61, s61, 1
RA{t}_nx:
    s_add_u32 s3, s3, 1
    s_cmp_lt_u32 s3, 255
    s_cbranch_scc1 RA{t}_scan
RA{t}_fnd:
    s_cmp_ge_u32 s3, 32
    s_cbranch_scc1 RA{t}_have
    v_mov_b32 v28, 1
    v_mov_b32 v29, {DBG_OVH}
    s_mov_b64 exec, 1
    buffer_store_dword v28, v29, {srd(SRD_DBG)}, 0 offen sc1
    s_mov_b64 exec, -1
    s_waitcnt vmcnt(0)
RA{t}_have:
    v_mov_b32 v28, s3
    v_mov_b32 v29, {BC_LDS}
    ds_write_b32 v29, v28
    s_waitcnt lgkmcnt(0)
RA{t}_bc:
    s_barrier
    v_mov_b32 v29, {BC_LDS}
    ds_read_b32 v28, v29
    s_waitcnt lgkmcnt(0)
    v_readfirstlane_b32 s3, v28
    s_barrier
    """)

def wait_ge(A, srd_, off_expr_s, val, abort, vt=250, sleep=8):
    l = A.newlabel("WG")
    A(f"""
    s_mov_b32 s{sSP}, {SPIN}
    v_mov_b32 {v(vt)}, {off_expr_s}
{l}:
    buffer_load_dword {v(vt+1)}, {v(vt)}, {srd(srd_)}, 0 offen sc1
    s_sub_u32 s{sSP}, s{sSP}, 1
    s_cbranch_scc1 {abort}
    s_waitcnt vmcnt(0)
    v_cmp_le_u32 vcc, {val}, {v(vt+1)}
    s_cbranch_vccnz {l}_ok
    s_sleep {sleep}
    s_branch {l}
{l}_ok:
    """)

def signal_wg(A, off, vt=250):
    l = A.newlabel("SG")
    A(f"""
    s_waitcnt vmcnt(0)
    s_barrier
    s_cmp_lg_u32 s{S_WAVE}, 0
    s_cbranch_scc1 {l}
    v_mov_b32 {v(vt)}, {off}
    v_mov_b32 {v(vt+1)}, 1
    s_mov_b64 exec, 1
    buffer_atomic_add {v(vt+1)}, {v(vt)}, {srd(SRD_DBG)}, 0 offen sc1
    s_mov_b64 exec, -1
{l}:
    """)

def acc_t(A, dst):
    import common
    if not common.STAMPS: return
    A(f"s_memrealtime s[96:97]\ns_waitcnt lgkmcnt(0)\ns_sub_u32 s98, s96, s93\ns_add_u32 s{dst}, s{dst}, s98\ns_mov_b32 s93, s96")

def rec_t(A, r):
    import common
    if common.STAMPS: A(f"s_memrealtime s[{r}:{r+1}]\ns_waitcnt lgkmcnt(0)")

def k_merged(A, ropt, EVS=4, PREF=0, FX=0, WDLY=0, TSTEP=170, TMIN=30, NOEV=0, JX=0, FLAGKS=20, F0FIRST=0):
    AB = "M_abort"
    if ropt.get('tstart'): A("s_memrealtime s[100:101]")
    if PREF:
        A(f"""
        s_getpc_b64 s[60:61]
M_pc:
        v_lshlrev_b32 v254, 7, v0
        v_min_u32 v255, M_codeend - M_pc - 4, v254
        global_load_dword v253, v255, s[60:61]
        """)
        for k in range(1, PREF):
            A(f"""
            v_add_u32 v254, 32768, v254
            v_min_u32 v255, M_codeend - M_pc - 4, v254
            global_load_dword v253, v255, s[60:61]
            """)
    prologue(A, 256, "M_end")
    stamp(A, 13, s_id=2)
    hstamp(A, 11, neg=True)
    claim_issue(A, FX, JX)
    A("s_mov_b32 s57, 0\ns_cmp_eq_u32 s59, 0\ns_cbranch_scc1 M_head")
    claim_resolve(A, "a", 0, AB)
    A.label("M_dispatch")
    A("s_mov_b32 s58, s3\ns_mov_b32 s57, 1\ns_cmp_ge_u32 s58, 32\ns_cbranch_scc1 M_worker")
    A.label("M_head")
    def resolve():
        A("s_cmp_eq_u32 s57, 1\ns_cbranch_scc1 M_resolved")
        claim_resolve(A, "b", 36, AB)
        A("s_cmp_eq_u32 s3, s58\ns_cbranch_scc1 M_resolved\ns_waitcnt vmcnt(0)\ns_barrier\ns_branch M_dispatch")
        A.label("M_resolved")
    mod_R(A, 58, abort=AB, merged=True, hooks=dict(resolve=resolve), **ropt)
    A("s_branch M_end")
    A.label("M_worker")
    A(f"""
    s_sub_u32 s{sWID}, s58, 32
    s_lshr_b32 s60, s{sWID}, 3                      ; unit
    s_mul_hi_u32 s61, s60, {(2**32+6)//7}           ; octet
    s_mul_i32 s62, s61, 7
    s_sub_u32 s{sGRP}, s60, s62
    s_lshl_b32 s61, s61, 3
    s_and_b32 s62, s{sWID}, 7
    s_add_u32 s{sHEAD}, s61, s62
    s_mul_hi_u32 s{sOG}, s{sWID}, {(2**32+17)//18}
    s_mul_i32 s60, s{sOG}, 18
    s_sub_u32 s{sCB}, s{sWID}, s60
    s_mul_hi_u32 s{sTG}, s{sWID}, {(2**32+4)//5}
    s_mul_i32 s60, s{sTG}, 5
    s_sub_u32 s{sCG}, s{sWID}, s60
    s_mul_i32 s{sKAP}, s{S_WAVE}, {NW}
    s_add_u32 s{sKAP}, s{sKAP}, s{sWID}
    """)
    stamp(A, 0, s_id=58)
    if F0FIRST:
        F0(A, sWID, NW)
        signal_wg(A, DBG_F0, vt=76)
    mod_P(A, sHEAD, sGRP, 7, preloop=lambda: wait_ge(A, SRD_DBG, DBG_RARM, 32, AB, vt=76), FLAGKS=FLAGKS)
    stamp(A, 4, s_id=58)
    def osetup():
        A(f"s_cmp_ge_u32 s{sOG}, 12\ns_cbranch_scc1 M_noos")
        O_setup(A, sCB, keep=True)
        A.label("M_noos")
        A("s_barrier")
        stamp(A, 6, s_id=58)
    if not F0FIRST:
        F0(A, sWID, NW)
        signal_wg(A, DBG_F0, vt=76)
        osetup()
    wait_ge(A, SRD_DBG, DBG_F0, NW, AB)
    A(f"s_cmp_ge_u32 s{sTG}, 44\ns_cbranch_scc1 M_nof1")
    FG(A, 1, sCG, sTG, 44)
    A.label("M_nof1")
    signal_wg(A, DBG_F1)
    stamp(A, 5, s_id=58)
    if F0FIRST: osetup()
    wait_ge(A, SRD_DBG, DBG_F1, NW, AB)
    A(f"s_cmp_gt_u32 s{sKAP}, 288\ns_cbranch_scc1 M_nof2")
    F2(A, sKAP)
    A.label("M_nof2")
    signal_wg(A, DBG_F2)
    stamp(A, 7, s_id=58)
    wait_ge(A, SRD_DBG, DBG_F2, NW, AB)
    A(f"s_cmp_ge_u32 s{sTG}, 44\ns_cbranch_scc1 M_nof3")
    FG(A, 3, sCG, sTG, 44)
    A.label("M_nof3")
    A("s_waitcnt vmcnt(0)\ns_barrier")
    stamp(A, 11, s_id=58)
    hstamp(A, 9)
    if NOEV == 1: A("s_branch M_end")
    X_setup(A)
    O_addr(A, sCB)
    A(f"""
    s_mov_b32 s{sXN}, s{sGRP}
    s_cmp_lt_u32 s{sOG}, 12
    s_cselect_b32 s{sON}, s{sOG}, 64
    {'s_mov_b32 s%d, 64' % sON if NOEV == 2 else ''}
    s_mov_b32 s{sPAR}, 0
    s_mov_b32 s90, 0
    s_mov_b32 s91, 0
    s_mov_b32 s92, 0
    s_mov_b32 s93, 0
    """)
    acc_t(A, 92)
    A(f"""
    s_mov_b32 s92, 0
M_evx:
    s_cmp_ge_u32 s{sXN}, 64
    s_cbranch_scc1 M_ev
    s_lshl_b32 s{sITEM}, s{sXN}, 5
    s_add_u32 s{sITEM}, s{sITEM}, s{sHEAD}
    s_mov_b32 s{sREC}, s{sITEM}
    """)
    X_pre(A, sREC)
    A(f"s_memrealtime s[60:61]\ns_mov_b32 s{sIMM}, 0\ns_waitcnt lgkmcnt(0)\ns_mov_b32 s{sDUE}, s60")
    acc_t(A, 90)
    A(f"""
M_ev:
    s_min_u32 s60, s{sXN}, s{sON}
    s_cmp_ge_u32 s60, 64
    s_cbranch_scc1 M_fin
    s_cmp_lg_u32 s{S_WAVE}, 0
    s_cbranch_scc1 M_evb
    s_lshl_b32 s64, s{sHEAD}, 7
    s_add_u32 s64, s64, {FLAG_RP}
    s_min_u32 s65, s{sON}, 63
    s_lshl_b32 s65, s65, 7
    s_add_u32 s65, s65, {FLAG_OX}
    v_mov_b32 v250, s64
    v_and_b32 v251, 31, v1
    v_lshlrev_b32 v251, 2, v251
    v_add_u32 v251, s65, v251
    s_mov_b32 s{sSP}, {SPIN}
M_evp:
    s_mov_b32 s62, 3
    s_sub_u32 s{sSP}, s{sSP}, 1
    s_cbranch_scc1 M_evd
    s_cmp_ge_u32 s{sXN}, 64
    s_cbranch_scc1 M_evo
    s_memrealtime s[60:61]
    s_waitcnt lgkmcnt(0)
    s_sub_u32 s61, s60, s{sDUE}
    s_cmp_lt_i32 s61, 0
    s_cbranch_scc1 M_evi
    buffer_load_dword v252, v250, {srd(SRD_WS)}, 0 offen sc1
    s_waitcnt vmcnt(0)
    v_readfirstlane_b32 s61, v252
    s_mov_b32 s62, 1
    s_cmp_gt_u32 s61, s{sXN}
    s_cbranch_scc1 M_evd
    s_sub_u32 s61, s{sXN}, s61
    s_cmp_le_u32 s61, 1
    s_cselect_b32 s{sIMM}, 1, 0
    s_cselect_b32 s62, 0, 1
    s_sub_u32 s61, s61, s62
    s_mul_i32 s61, s61, {TSTEP}
    s_max_u32 s61, s61, {TMIN}
    s_add_u32 s{sDUE}, s60, s61
M_evi:
    s_cmp_eq_u32 s{sIMM}, 1
    s_cbranch_scc1 M_evs
M_evo:
    s_cmp_ge_u32 s{sON}, 64
    s_cbranch_scc1 M_evs
    buffer_load_dword v253, v251, {srd(SRD_WS)}, 0 offen sc1
    s_mov_b32 s62, 2
    s_waitcnt vmcnt(0)
    v_cmp_eq_u32 vcc, 0, v253
    s_cbranch_vccz M_evd
M_evs:
    s_sleep {EVS}
    s_branch M_evp
M_evd:
    v_mov_b32 v252, s62
    v_mov_b32 v253, {EV_LDS}
    ds_write_b32 v253, v252
    s_waitcnt lgkmcnt(0)
M_evb:
    s_barrier
    v_mov_b32 v253, {EV_LDS}
    ds_read_b32 v252, v253
    s_waitcnt lgkmcnt(0)
    v_readfirstlane_b32 s62, v252
    s_barrier
    """)
    acc_t(A, 92)
    A(f"""
    s_cmp_eq_u32 s62, 3
    s_cbranch_scc1 {AB}
    s_cmp_eq_u32 s62, 2
    s_cbranch_scc1 M_evO
    """)
    rec_t(A, 66)
    X_post(A, sITEM, sREC)
    rec_t(A, 74)
    A(f"""
    s_lshl_b32 s60, s{sXN}, 7
    s_lshl_b32 s61, s{sHEAD}, 2
    s_add_u32 s60, s60, s61
    s_add_u32 s60, s60, {FLAG_OX}
    v_mov_b32 v251, 1
    s_waitcnt vmcnt(0)
    s_barrier
    s_cmp_lg_u32 s{S_WAVE}, 0
    s_cbranch_scc1 M_xf
    s_mov_b64 exec, 1
    buffer_store_dword v251, off, {srd(SRD_WS)}, s60 sc1
    s_mov_b64 exec, -1
M_xf:
    s_add_u32 s{sXN}, s{sXN}, 7
    """)
    rec_t(A, 68)
    acc_t(A, 90)
    A(f"""
    s_branch M_evx
M_evO:
    """)
    rec_t(A, 70)
    O_item(A, sON, sPAR)
    rec_t(A, 72)
    acc_t(A, 91)
    A(f"""
    s_add_u32 s{sON}, s{sON}, 12
    s_branch M_ev
M_fin:
    """)
    stamp(A, 12, s_id=58)
    hstamp(A, 15)
    import common
    if common.STAMPS:
        A(f"""
        s_lshl_b32 s98, s58, 8
        s_add_u32 s98, s98, {WS_STAMP + 160}
        v_mov_b32 v76, s90
        v_mov_b32 v77, s91
        v_mov_b32 v78, s92
        v_mov_b32 v79, 0
        s_mov_b64 exec, 1
        buffer_store_dwordx3 v[76:78], v79, {srd(SRD_WS)}, s98 offen
        v_mov_b32 v72, s66
        v_mov_b32 v73, s74
        v_mov_b32 v74, s68
        v_mov_b32 v75, s70
        v_mov_b32 v76, s72
        buffer_store_dwordx4 v[72:75], v79, {srd(SRD_WS)}, s98 offen offset:16
        buffer_store_dword v76, v79, {srd(SRD_WS)}, s98 offen offset:32
        s_mov_b64 exec, -1
        """)
    A("s_branch M_end")
    A(f"""
{AB}:
    s_mov_b64 exec, -1
    v_mov_b32 v3, 0xdead
    v_mov_b32 v4, {DBG_ABORT}
    buffer_store_dword v3, v4, {srd(SRD_DBG)}, 0 offen
    s_waitcnt vmcnt(0)
M_end:
    s_endpgm
M_codeend:""")
```

```python
from common import *

XBUF = 36864

def xtile_addr_setup(A, vdma, vfr, rowstride, vt0, vt1):
    A(f"""
    v_lshrrev_b32 {v(vt0)}, 3, v1
    v_and_b32 {v(vt1)}, 6, {v(vt0)}
    s_lshr_b32 s60, s{S_WAVE}, 1
    v_or_b32 {v(vt1)}, s60, {v(vt1)}
    v_and_b32 {v(vdma)}, 7, v1
    v_xor_b32 {v(vdma)}, {v(vdma)}, {v(vt1)}
    v_lshlrev_b32 {v(vdma)}, 4, {v(vdma)}
    s_lshl_b32 s60, s{S_WAVE}, 3
    v_add_u32 {v(vt0)}, s60, {v(vt0)}
    s_mov_b32 s60, {rowstride}
    v_mul_lo_u32 {v(vt0)}, {v(vt0)}, s60
    v_add_u32 {v(vdma)}, {v(vdma)}, {v(vt0)}
    """)
    A(f"""
    v_and_b32 {v(vt0)}, 6, v1
    v_bfe_u32 {v(vt1)}, v1, 4, 1
    v_or_b32 {v(vt0)}, {v(vt0)}, {v(vt1)}        ; h
    v_lshrrev_b32 {v(vt1)}, 5, v1                ; hf
    v_xor_b32 {v(vt0)}, {v(vt0)}, {v(vt1)}       ; h ^ hf
    v_and_b32 {v(vt1)}, 31, v1
    v_lshlrev_b32 {v(vt1)}, 7, {v(vt1)}
    """)
    for k in range(4):
        A(f"""
        v_xor_b32 {v(vfr+k)}, {2*k}, {v(vt0)}
        v_lshlrev_b32 {v(vfr+k)}, 4, {v(vfr+k)}
        v_add_u32 {v(vfr+k)}, {v(vfr+k)}, {v(vt1)}
        """)

def mod_P(A, s_head, s_grp, NG, sc=" sc1", flags=True, nost=0, preloop=None, ptouch=False, early=None, FLAGKS=12):
    L = lambda n: f"P_{n}"
    ACC = [2, 18, 34]
    XF = [50, 54, 58]
    VFR = 62
    VDMA = 66
    VST = 67
    VW = 68
    VTR = 69
    VT0, VT1 = 72, 73
    VFL = 74
    VONE = 75
    stamp(A, 0)
    A.c("P: weight staging setup")
    A(f"""
    v_lshrrev_b32 {v(VT0)}, 4, v1                 ; l>>4
    v_lshlrev_b32 {v(VT1)}, 2, {v(VT0)}
    v_and_b32 {v(VW)}, 15, v1
    v_xor_b32 {v(VW)}, {v(VW)}, {v(VT1)}
    v_lshlrev_b32 {v(VW)}, 4, {v(VW)}
    s_lshl_b32 s60, s{S_WAVE}, 2
    v_add_u32 {v(VT0)}, s60, {v(VT0)}
    v_lshlrev_b32 {v(VT0)}, 13, {v(VT0)}
    v_add_u32 {v(VW)}, {v(VW)}, {v(VT0)}
    s_lshl_b32 s60, s{s_head}, 8
    v_add_u32 {v(VW)}, s60, {v(VW)}
    v_bfe_u32 {v(VT0)}, v1, 2, 2                  ; r
    v_lshrrev_b32 {v(VT1)}, 5, v1                 ; hf
    v_lshl_add_u32 {v(VT1)}, {v(VT1)}, 3, {v(VT0)} ; 8hf + r
    v_lshlrev_b32 {v(VTR)}, 8, {v(VT1)}           ; *256
    v_bfe_u32 {v(VT1)}, v1, 4, 1                  ; fsub
    v_lshlrev_b32 {v(VT1)}, 1, {v(VT1)}
    v_bfe_u32 {v(VTR+1)}, v1, 1, 1                ; c>>1
    v_add_u32 {v(VT1)}, {v(VT1)}, {v(VTR+1)}
    s_lshl_b32 s60, s{S_WAVE}, 2
    v_add_u32 {v(VT1)}, s60, {v(VT1)}             ; chunk16
    v_lshlrev_b32 {v(VT0)}, 2, {v(VT0)}
    v_xor_b32 {v(VT1)}, {v(VT1)}, {v(VT0)}
    v_lshl_add_u32 {v(VTR)}, {v(VT1)}, 4, {v(VTR)}
    v_and_b32 {v(VT0)}, 1, v1
    v_lshl_add_u32 {v(VTR)}, {v(VT0)}, 3, {v(VTR)}
    v_add_u32 {v(VTR+1)}, 0x10000, {v(VTR)}
    v_add_u32 {v(VTR+2)}, 0x20000, {v(VTR)}
    s_lshl_b32 s61, s{S_WAVE}, 10                 ; w*1024 (lds)
    """)
    xtile_addr_setup(A, VDMA, VFR, 1152, VT0, VT1)
    A(f"""
    v_lshlrev_b32 {v(VST)}, 4, v1
    s_lshl_b32 s60, s{S_WAVE}, 11
    v_add_u32 {v(VST)}, s60, {v(VST)}
    v_mov_b32 {v(VONE)}, 1
    v_lshlrev_b32 {v(VT0)}, 4, v0
    """)
    order = [1, 2, 0]
    srds = {0: SRD_WQ, 1: SRD_WK, 2: SRD_WV}
    def wdma(c):
        m = order[c // 9]; kb = c % 9; slot = c % 9
        for n in range(4):
            A(f"s_add_u32 m0, s61, {slot*16384 + n*4096}")
            A(f"s_mov_b32 s62, {kb*524288 + n*131072}")
            A(f"buffer_load_dwordx4 {v(VW)}, {srd(srds[m])}, s62 offen lds")
    def xdma_one(cg, s_bufbase, s_src):
        A(f"s_add_u32 m0, s{s_bufbase}, {cg*4096}")
        A(f"s_add_u32 s62, s{s_src}, {cg*128}")
        A(f"buffer_load_dwordx4 {v(VDMA)}, {srd(SRD_BX)}, s62 offen lds")
    A(f"""
    s_mov_b32 s63, s{s_grp}
    s_mul_i32 s65, s63, {XBUF}
    s_mov_b32 s64, s61
    """)
    for c in range(9):
        wdma(c)
    if early:
        early()
        A(f"""
        s_lshl_b32 s61, s{S_WAVE}, 10
        s_mov_b32 s63, s{s_grp}
        s_mul_i32 s65, s63, {XBUF}
        s_mov_b32 s64, s61
        """)
    pending = [4] * 9
    for c in range(27):
        rest = sum(pending[1:])
        A(f"s_waitcnt vmcnt({rest})")
        pending.pop(0)
        A("s_barrier")
        m = order[c // 9]; kb = c % 9; slot = c % 9
        for ksl in range(4):
            for t in range(2):
                off = slot * 16384 + ksl * 4096 + t * 1024
                A(f"ds_read_b64_tr_b16 {wreg(m*144 + (kb*4+ksl)*4 + 2*t, 2)}, {v(VTR + (off >> 16))} offset:{off & 0xffff}")
        A("s_waitcnt lgkmcnt(0)")
        A("s_barrier")
        pass
        if c + 9 < 27:
            wdma(c + 9); pending.append(4)
        if c == 20 or c == 22:
            for cg in range(9):
                xdma_one(cg, 64, 65)
            pending.append(9)
            A(f"s_add_u32 s64, s64, {XBUF}")
            A(f"s_add_u32 s65, s65, {NG*XBUF}")
    A("s_waitcnt vmcnt(9)")
    A(f"""
    s_mov_b32 s66, 0
    s_mov_b32 s67, -1
    """)
    stamp(A, 1)
    if preloop: preloop()
    A.label(L("loop"))
    A("s_barrier")
    def xread(ks):
        A(f"ds_read_b128 {v(XF[ks%3],4)}, {v(VFR + (ks&3))} offset:{(ks>>2)*4096}")
    xread(0); xread(1)
    for ks in range(36):
        A(f"s_waitcnt lgkmcnt({1 if ks < 35 else 0})")
        x = v(XF[ks % 3], 4)
        def mf(m):
            w = wreg(m*144 + ks*4, 4)
            c = "0" if ks == 0 else v(ACC[m], 16)
            if m == 2:
                A(f"v_mfma_f32_32x32x16_bf16 {v(ACC[m],16)}, {x}, {w}, {c}")
            else:
                A(f"v_mfma_f32_32x32x16_bf16 {v(ACC[m],16)}, {w}, {x}, {c}")
        mf(1)
        if ks + 2 < 36: xread(ks + 2)
        mf(2)
        if 1 <= ks <= 9:
            xdma_one(ks - 1, 64, 65)
        if ks == FLAGKS:
            A("s_waitcnt vmcnt(9)")
            if flags:
                A(f"""
                s_cmp_lt_i32 s67, 0
                s_cbranch_scc1 {L('nofl')}
                s_lshl_b32 s62, s{s_head}, 6
                s_add_u32 s62, s62, s67
                s_lshl_b32 s62, s62, 2
                s_add_u32 s62, s62, {FLAG_KV}
                v_mov_b32 {v(VFL)}, s62
                s_mov_b64 exec, 1
                buffer_atomic_add {v(VONE)}, {v(VFL)}, {srd(SRD_WS)}, 0 offen sc1
                s_mov_b64 exec, -1
                """)
                A.label(L("nofl"))
        mf(0)
    A(f"""
    s_add_u32 s64, s64, {XBUF}
    s_add_u32 s65, s65, {NG*XBUF}
    s_add_u32 s62, s61, {3*XBUF}
    s_cmp_ge_u32 s64, s62
    s_cselect_b32 s64, s61, s64
    s_add_u32 s66, s66, 1
    s_cmp_eq_u32 s66, 3
    s_cselect_b32 s66, 0, s66
    s_mov_b32 s62, {XBUF}
    s_cselect_b32 s62, {(-2*XBUF) & 0xffffffff}, s62
    """)
    for k in range(4):
        A(f"v_add_u32 {v(VFR+k)}, s62, {v(VFR+k)}")
    A(f"""
    s_lshl_b32 s62, s63, 5
    s_add_u32 s62, s62, s{s_head}
    s_lshl_b32 s62, s62, 13
    s_lshr_b32 s71, s62, 1
    s_add_u32 s71, s71, {WS_KM}
    s_add_u32 s68, s62, {WS_KX}
    s_add_u32 s69, s62, {WS_VX}
    s_add_u32 s70, s62, {WS_QX}
    """)
    for m, so in ((1, 68), (2, 69), (0, 70)):
        if m == 0: A("s_nop 3")
        for i in range(8):
            A(f"v_cvt_pk_bf16_f32 {v(ACC[m]+i)}, {v(ACC[m]+2*i)}, {v(ACC[m]+2*i+1)}")
        s_ = sc if m != 0 else sc
        if nost: continue
        A(f"buffer_store_dwordx4 {v(ACC[m],4)}, {v(VST)}, {srd(SRD_WS)}, s{so} offen{s_}")
        A(f"buffer_store_dwordx4 {v(ACC[m]+4,4)}, {v(VST)}, {srd(SRD_WS)}, s{so} offen offset:1024{s_}")
    if ptouch:
        A(f"v_lshrrev_b32 {v(VFL)}, 1, {v(VST)}\nv_and_b32 {v(VFL)}, -16, {v(VFL)}\nbuffer_store_dwordx4 {v(ACC[0],4)}, {v(VT0)}, {srd(SRD_WS)}, s71 offen sc1")
    A(f"""
    s_mov_b32 s67, s63
    s_add_u32 s63, s63, {NG}
    s_cmp_lt_u32 s63, 64
    s_cbranch_scc1 {L('loop')}
    """)
    stamp(A, 2)
    A("s_waitcnt vmcnt(0)")
    stamp(A, 3)
    if flags:
        A(f"""
        s_lshl_b32 s62, s{s_head}, 6
        s_add_u32 s62, s62, s67
        s_lshl_b32 s62, s62, 2
        s_add_u32 s62, s62, {FLAG_KV}
        v_mov_b32 {v(VFL)}, s62
        s_mov_b64 exec, 1
        buffer_atomic_add {v(VONE)}, {v(VFL)}, {srd(SRD_WS)}, 0 offen sc1
        s_mov_b64 exec, -1
        """)
    A("s_barrier")
```

```python
from common import *
import math, struct

WSTR = 36864
L_Q = 34816
L_K = 34816 + WSTR
L_O = 34816 + 2 * WSTR
L_MEMF = 145408
L_KX = 145408 + 9216
L_V = L_MEMF + 4096
HI = 98304
PSLOT = 72 * 4096
MSLOT = 9216
SPIN = 200000
CEXP = (128 ** -0.5) * math.log2(math.e)
def f32bits(x): return struct.unpack("<I", struct.pack("<f", x))[0]

def WQ(kk): return wreg(kk * 8, 8)
def WK(kk): return wreg(144 + kk * 8, 8)
def WO(p, ks): return wreg(288 + (p * 4 + ks) * 8, 8)
def WO8(ks): return wreg(288 + 128 + ks * 4, 4)

class LQ:
    def __init__(self, A, name): self.A, self.name, self.q = A, name, []
    def push(self, tag, n=1): self.q += [tag] * n; assert len(self.q) <= (15 if self.name == "lgkmcnt" else 63), self.q
    def wait(self, tag):
        if tag not in self.q: return
        idx = max(i for i, t in enumerate(self.q) if t == tag)
        self.A(f"s_waitcnt {self.name}({len(self.q) - 1 - idx})")
        del self.q[:idx + 1]
    def clear(self): self.q = []

def mod_R(A, s_head, sc="", pfx="R", abort="R_abort", last=63, prof=False, RD_=(0, 0, 0, 1, 2), CD=0, hooks=None, WARMD=2, cnt=False,
          CDN=0, fixseg=False, nokm=False, x_nowv=False, trace=False, RGAP=0, CGAP=0, ld=' sc1', tq=None, merged=False, wbar=False, worder='qk', wnt='', tstart=False, ARMAT=9, MW=3, R1N=4, EL=26, eflag=True, EFAT=13, WAT=14, FAT=16, tstep=False, CDN3=0, nowarm=False, R2AT=1, R3AT=7, B2AT=6, B3AT=13):
    assert R3AT > B2AT and R2AT + 2 < B2AT and eflag
    def TQ(tag):
        if tq and tag in tq: A(f"s_memtime s[{8+2*tq.index(tag)}:{9+2*tq.index(tag)}]")

    def TR(i):
        if trace: A(f"s_memrealtime s[{8+2*i}:{9+2*i}]")

    L = lambda n: f"{pfx}_{n}"
    def TS(i):
        r = 98 if i == 1 else 8 + 2 * i
        if tstart: A(f"s_memrealtime s[{r}:{r+1}]\ns_waitcnt lgkmcnt(0)")
    W = S_WAVE
    hooks = hooks or {}
    def PH(i):
        if not prof: return
        A(f"""
        s_waitcnt lgkmcnt(0)
        s_memtime s[96:97]
        s_waitcnt lgkmcnt(0)
        s_sub_u32 s99, s96, s98
        s_mov_b32 s98, s96
        s_mov_b64 exec, {1 << i}
        v_add_u32 v1, s99, v1
        s_mov_b64 exec, -1
        """)
    TMP = 0
    IDX, SELV, vPST, vRED, vPUB, vCON, vAF, vWV, vQW, vQR, vKX, vOW, vVX, vSP = range(2, 16)
    vC1 = 1
    assert not prof
    WVR = 16
    D0 = 24
    sSTEP, sPW, sPR, sMW, sMR, sMA, sRED, sSEG = 64, 65, 66, 67, 68, 69, 70, 71
    sLO32, sHI32, sEVEN, sN8 = 72, 74, 76, 78
    sB2 = 81
    sKVO = 3
    sWOF = 80
    sC = 82
    sRDLY, sWB, sB1 = 84, 85, 59
    sB3, sM3, sPRG = 66, 57, 4
    sRDLY2 = 96
    sPM = sEVEN
    sSEL = 86
    sT0, sT1, sT2, sSPIN, sT3, sT4 = 60, 61, 62, 63, 94, 95
    T0, T1, T2 = D0, D0 + 1, D0 + 2
    stamp(A, 8, s_id=s_head)
    hstamp(A, 12)
    def bits(dst, terms, add=None):
        first = True
        for (off, n, sh) in terms:
            A(f"v_bfe_u32 {v(T2)}, v1, {off}, {n}")
            if first:
                A(f"v_lshlrev_b32 {v(dst)}, {sh}, {v(T2)}"); first = False
            else:
                A(f"v_lshl_add_u32 {v(dst)}, {v(T2)}, {sh}, {v(dst)}")
        if add is not None:
            A(f"v_add_u32 {v(dst)}, {add}, {v(dst)}")
    vWA, vWB = D0 + 52, D0 + 53
    vTR = [D0 + 44, D0 + 45]
    vTO = [D0 + 46 + k for k in range(4)]
    vTD = [D0 + 28 + k for k in range(4)]
    X0, X1 = D0 + 8, D0 + 9
    sWL = 7
    VS = D0 + 12
    A(f"""
    s_lshl_b32 s{sT0}, s{s_head}, 8
    s_lshr_b32 s{sT1}, s{W}, 1
    s_lshl_b32 s{sT1}, s{sT1}, 7
    s_add_u32 s{sT0}, s{sT0}, s{sT1}
    s_and_b32 s{sT1}, s{W}, 1
    s_lshl_b32 s{sT1}, s{sT1}, 18
    s_add_u32 s{sT0}, s{sT0}, s{sT1}
    s_mul_i32 s{sWL}, s{W}, {WSTR}
    """)
    bits(vWA, [(3, 3, 13), (0, 3, 4)], f"s{sT0}")
    grp = lambda ch: [("o", (p, kb2)) for p in range(5) for kb2 in range(2)] if ch == 'o' else [(ch, kb) for kb in range(9)]
    if len(worder) == 2: worder = worder + 'o'
    chunks = grp(worder[0]) + grp(worder[1]) + grp(worder[2]) + [("v", kb) for kb in range(9)]
    A(f"""
    v_lshrrev_b32 {v(X0)}, 4, v1
    s_lshl_b32 s{sT0}, s{W}, 4
    v_add_u32 {v(X0)}, s{sT0}, {v(X0)}
    v_mul_u32_u24 {v(X0)}, 1152, {v(X0)}
    s_mul_i32 s{sT0}, s{s_head}, 147456
    v_add_u32 {v(X0)}, s{sT0}, {v(X0)}
    """)
    bits(vWB, [(0, 4, 4)], v(X0))
    slot_of = lambda c: (c - 28) % 9
    def wdma(c):
        kind, ix = chunks[c]; sl = slot_of(c)
        for n in range(4):
            A(f"s_add_u32 m0, s{sWL}, {sl*4096 + n*1024}")
            if kind == "o":
                p, kb2 = ix
                A(f"s_mov_b32 s{sT1}, {(kb2*64 + n*4)*1152 + p*256}")
                A(f"buffer_load_dwordx4 {v(vWB)}, {srd(SRD_WO)}, s{sT1} offen{wnt} lds")
            else:
                A(f"s_mov_b32 s{sT1}, {ix*524288 + n*65536}")
                A(f"buffer_load_dwordx4 {v(vWA)}, {srd({'q': SRD_WQ, 'k': SRD_WK, 'v': SRD_WV}[kind])}, s{sT1} offen{wnt} lds")
    for c in range(9): wdma(c)
    TS(1)
    if 'resolve' in hooks: hooks['resolve']()
    TS(2)
    A.c("R setup")
    A(f"""
    s_mov_b32 s{sLO32}, -1
    s_mov_b32 s{sLO32+1}, 0
    s_mov_b32 s{sHI32}, 0
    s_mov_b32 s{sHI32+1}, -1
    s_mov_b32 s{sEVEN}, 0x55555555
    s_mov_b32 s{sEVEN+1}, 0x55555555
    s_mov_b32 s{sN8}, 0xff00ff00
    s_mov_b32 s{sN8+1}, 0xff00ff00
    s_mov_b32 s{sC}, {f32bits(CEXP)}
    s_mov_b32 s{sC+1}, {f32bits(CEXP)}
    s_lshl_b32 s{sWB}, s{W}, 10
    s_cmp_eq_u32 s{W}, 2
    s_mov_b32 s{sB1}, -1024
    s_cselect_b32 s{sB1}, 8192, s{sB1}
    s_lshl_b32 s{sPRG}, s{s_head}, 7
    s_add_u32 s{sPRG}, s{sPRG}, {FLAG_RP}
    """)
    if R1N == 4:
        A(f"s_sub_u32 s{sB3}, 7168, s{sWB}\ns_mov_b32 s{sM3}, {L_MEMF + 8192}\ns_movk_i32 s{sB2}, -1024")
    else:
        A(f"""
        s_and_b32 s{sM3}, s{sWB}, 1024
        s_sub_u32 s{sB3}, s{sM3}, s{sWB}
        s_add_u32 s{sB3}, s{sB3}, 6144
        s_add_u32 s{sM3}, s{sM3}, {L_MEMF + 7168}
        s_movk_i32 s{sB2}, -1024
        s_cmp_eq_u32 s{W}, 3
        s_cselect_b32 s{sB2}, -2048, s{sB2}
        """)
    for r in range(4):
        m = (0x03030303 << (2 * r)) & 0xffffffff
        A(f"s_mov_b32 s{sSEL+2*r}, {m}\ns_mov_b32 s{sSEL+2*r+1}, {m}")
    A(f"""
    v_mov_b32 {v(IDX)}, 0x44444444
    v_mov_b32 {v(T0)}, 0xeeeeeeee
    v_cndmask_b32 {v(IDX)}, {v(IDX)}, {v(T0)}, s[{sN8}:{sN8+1}]
    v_mov_b32 {v(SELV)}, 0x3f800000
    v_mov_b32 {v(T0)}, 0x3f80
    v_cndmask_b32 {v(SELV)}, {v(SELV)}, {v(T0)}, s[{sEVEN}:{sEVEN+1}]
    s_mov_b32 s{sPM}, 0xffff
    s_mov_b32 s{sPM+1}, 0xffff
    v_lshlrev_b32 {v(T0)}, 4, v1
    s_add_u32 s{sT0}, s{sWB}, {HI}
    v_add_u32 {v(vCON)}, s{sT0}, {v(T0)}
    s_mul_i32 s{sT0}, s{W}, {WSTR}
    v_add_u32 {v(vWV)}, s{sT0}, {v(T0)}
    s_lshl_b32 s{sT0}, s{W}, 5
    s_add_u32 s{sT0}, s{sT0}, s{s_head}           ; unit
    s_lshl_b32 s{sT1}, s{sT0}, 12
    s_cmp_lt_u32 s{sT0}, 72
    s_cselect_b32 s{sRED}, 1, 0
    s_cselect_b32 s{sT1}, s{sT1}, 0x40000000
    v_add_u32 {v(vRED)}, s{sT1}, {v(T0)}
    s_lshr_b32 s{sT1}, s{sT0}, 1
    s_lshl_b32 s{sT4}, s{sT1}, 5
    s_lshl_b32 s{sT1}, s{sT1}, 8
    s_and_b32 s{sT2}, s{sT0}, 1
    s_mul_i32 s{sT3}, s{sT2}, {4*1152}
    s_add_u32 s{sT4}, s{sT4}, s{sT3}
    s_lshl_b32 s{sT2}, s{sT2}, 6
    s_add_u32 s{sT1}, s{sT1}, s{sT2}
    s_lshr_b32 s{sT2}, s{sT0}, 4
    s_add_u32 s{sT2}, s{sT2}, 1
    s_cmp_ge_u32 s{sT0}, 64
    s_cselect_b32 s{sT2}, 0, s{sT2}
    s_mov_b32 s{sRDLY}, {RD_[0]}
    """)
    for o in range(1, 5):
        A(f"s_cmp_eq_u32 s{sT2}, {o}\ns_cselect_b32 s{sRDLY}, {RD_[o]}, s{sRDLY}")
    bits(vPUB, [(2, 1, 7), (5, 1, 5), (3, 1, 4), (0, 2, 2)], f"s{sT1}")
    A(f"s_lshl_b32 s{sT1}, s{W}, 1\ns_xor_b32 s{sT2}, s{s_head}, s{sT1}\ns_lshl_b32 s{sT2}, s{sT2}, 7\ns_lshl_b32 s{sT1}, s{W}, 13")
    bits(vPST, [(5, 1, 10), (4, 1, 7)])
    A(f"v_xor_b32 {v(T1)}, s{sT2}, {v(vPST)}\nv_add_u32 {v(T1)}, s{sT1}, {v(T1)}")
    bits(vPST, [(5, 1, 15), (4, 1, 12), (0, 4, 3)], v(T1))
    A(f"s_lshl_b32 s{sT1}, s{W}, 9\ns_add_u32 s{sT2}, s{sT1}, {L_Q}")
    bits(vQW, [(5, 1, 8), (0, 4, 4), (4, 1, 3)], f"s{sT2}")
    bits(vQR, [(5, 1, 8), (4, 1, 6), (2, 2, 4), (0, 1, 3)], L_Q)
    bits(vKX, [(4, 2, 9), (3, 1, 8), (0, 3, 4)], HI)
    bits(vAF, [(4, 2, 7), (0, 3, 4)], HI)
    A(f"s_add_u32 s{sT2}, s{sT1}, {L_O}")
    bits(vOW, [(5, 1, 7), (0, 3, 4), (4, 1, 3)], f"s{sT2}")
    A(f"s_lshl_b32 s{sT1}, s{W}, 11")
    bits(vVX, [(4, 2, 9), (0, 4, 4)], f"s{sT1}")
    ARM = D0 + 4
    X0, X1 = D0 + 8, D0 + 9
    for i in range(4): A(f"v_mov_b32 {v(ARM+i)}, -1")
    A(f"s_cmp_eq_u32 s{sRED}, 0\ns_cbranch_scc1 {L('noarm')}")
    bits(X1, [(5, 1, 1), (3, 1, 0)])
    A(f"v_mul_u32_u24 {v(X1)}, 1152, {v(X1)}")
    bits(X0, [(0, 3, 2)], v(X1))
    A(f"buffer_load_dword {v(vSP)}, {v(X0)}, {srd(SRD_M0)}, s{sT4} offen")
    A(f"s_mov_b32 s{sT0}, {WS_PART}")
    for i in range(4):
        A(f"buffer_store_dwordx4 {v(ARM,4)}, {v(vRED)}, {srd(SRD_WS)}, s{sT0} offen offset:{i*1024} sc1")
    A(f"s_mov_b64 exec, s[{sEVEN}:{sEVEN+1}]")
    for sl in range(3):
        A(f"s_mov_b32 s{sT0}, {WS_MEMB + sl*MSLOT}")
        A(f"buffer_store_dword {v(ARM)}, {v(vPUB)}, {srd(SRD_WS)}, s{sT0} offen sc1")
    A("s_mov_b64 exec, -1")
    A.label(L('noarm'))
    if merged:
        A(f"""
        s_cmp_lg_u32 s{W}, 3
        s_cbranch_scc1 {L('nz')}
        v_lshlrev_b32 {v(X0)}, 2, v1
        v_mov_b32 {v(X1)}, 0
        s_lshl_b32 s{sT0}, s{s_head}, 8
        s_add_u32 s{sT0}, s{sT0}, {FLAG_KV}
        buffer_store_dword {v(X1)}, {v(X0)}, {srd(SRD_WS)}, s{sT0} offen sc1
        s_add_u32 s{sT0}, s{sT0}, {FLAG_OX - FLAG_KV}
        buffer_store_dword {v(X1)}, {v(X0)}, {srd(SRD_WS)}, s{sT0} offen sc1
        v_mov_b32 {v(X0)}, s{sPRG}
        buffer_store_dword {v(X1)}, {v(X0)}, {srd(SRD_WS)}, 0 offen sc1
{L('nz')}:
        """)
    A(f"""
    s_and_b32 s{sT0}, s{W}, 2
    s_mul_i32 s{sT0}, s{sT0}, {WSTR}
    s_and_b32 s{sT1}, s{W}, 1
    s_lshl_b32 s{sT1}, s{sT1}, 6
    s_add_u32 s{sT0}, s{sT0}, s{sT1}
    s_lshl_b32 s{sT1}, s{W}, 5
    """)
    bits(vTR[0], [(4, 2, 9), (2, 1, 7), (3, 1, 5), (0, 2, 3)], f"s{sT0}")
    A(f"v_add_u32 {v(vTR[1])}, {WSTR}, {v(vTR[0])}")
    bits(vTO[0], [(4, 2, 10), (2, 1, 8), (3, 1, 7), (0, 2, 3)], f"s{sT1}")
    bits(vTD[0], [(4, 1, 11), (2, 2, 8), (0, 2, 3)], f"s{sT1}")
    A(f"v_bfe_u32 {v(T2)}, v1, 5, 1\nv_mul_u32_u24 {v(T2)}, {WSTR}, {v(T2)}\nv_add_u32 {v(vTD[0])}, {v(vTD[0])}, {v(T2)}")
    for k in range(1, 4): A(f"v_add_u32 {v(vTO[k])}, {k*WSTR}, {v(vTO[0])}")
    A(f"v_add_u32 {v(vTD[1])}, {2*WSTR}, {v(vTD[0])}")
    def trread(dst_fn, h, sl):
        for t, ro in enumerate((0, 2, 16, 18)):
            A(f"ds_read_b64_tr_b16 {dst_fn(t)}, {v(vTR[h])} offset:{sl*4096 + ro*128}")
    def trread_o(dst_fn, h, sl):
        for t, (k, ro) in enumerate(((0, 0), (0, 2), (1, 0), (1, 2))):
            A(f"ds_read_b64_tr_b16 {dst_fn(t)}, {v(vTO[2*h+k])} offset:{sl*4096 + ro*256}")
    sub = lambda base, t: wreg(base + 2 * t, 2)
    NCH = len(chunks)
    sKV, sMODE, sEARLY, sWARMED = 5, 6, 3, 7
    def warm0():
        A(f"v_lshlrev_b32 {v(X0)}, 7, v1\ns_lshl_b32 s{sT0}, s{s_head}, 13")
        for sg in range(WARMD):
            A(f"s_add_u32 s{sT1}, s{sT0}, {WS_KX + sg*RECSZ}\nbuffer_load_dword {v(X1)}, {v(X0)}, {srd(SRD_WS)}, s{sT1} offen sc1")
            A(f"s_add_u32 s{sT1}, s{sT0}, {WS_VX + sg*RECSZ}\nbuffer_load_dword {v(X1)}, {v(X0)}, {srd(SRD_WS)}, s{sT1} offen sc1")
    for c in range(NCH):
        kind, ix = chunks[c]; sl = slot_of(c)
        A(f"s_waitcnt vmcnt({min(NCH - 1 - c, 8) * 4 + (7 if c > NCH - 10 else 0) + (2 if EL < c <= EL + 9 else 0)}) lgkmcnt(0)\ns_barrier")
        if kind in "qk":
            base = 0 if kind == "q" else 144
            for h in range(2): trread(lambda t: sub(base + (2 * ix + h) * 8, t), h, sl)
        elif kind == "o":
            p, kb2 = ix
            for h in range(2):
                if p < 4: trread_o(lambda t: sub(288 + (p * 4 + 2 * kb2 + h) * 8, t), h, sl)
                else:
                    for t in range(2):
                        A(f"ds_read_b64_tr_b16 {wreg(288 + 128 + (2*kb2+h)*4 + 2*t, 2)}, {v(vTD[h])} offset:{sl*4096 + 4*t*256}")
        else:
            trread(lambda t: v(VS + 2 * t, 2), 0, sl)
            if ix < 8: trread(lambda t: v(VS + 8 + 2 * t, 2), 1, sl)
            else: trread(lambda t: v(WVR + 2 * t, 2), 1, sl)
        A("s_waitcnt lgkmcnt(0)\ns_barrier")
        if kind == "v":
            for q in range(4 if ix < 8 else 2):
                A(f"ds_write_b128 {v(vWV)}, {v(VS+4*q,4)} offset:{ix*4096 + q*1024}")
        if c == 0: TS(3)
        if c == 9: TS(4)
        if c == NCH - 1: TS(5)
        if c == ARMAT:
            A(f"""
            s_cmp_lg_u32 s{W}, 0
            s_cbranch_scc1 {L('armed')}
            v_mov_b32 {v(T0)}, 1
            v_mov_b32 {v(T1)}, {DBG_RARM}
            s_mov_b64 exec, 1
            buffer_atomic_add {v(T0)}, {v(T1)}, {srd(SRD_DBG)}, 0 offen sc1
            s_mov_b64 exec, -1
{L('armed')}:
            s_cmp_eq_u32 s{sRED}, 0
            s_cbranch_scc1 {L('nom0')}
            v_min_u32 {v(vSP)}, -2, {v(vSP)}
            s_mov_b32 s{sT0}, {WS_MEMB}
            s_mov_b64 exec, s[{sEVEN}:{sEVEN+1}]
            buffer_store_dword {v(vSP)}, {v(vPUB)}, {srd(SRD_WS)}, s{sT0} offen sc1
            s_mov_b64 exec, -1
            s_nop 0
            v_mov_b32 {v(vSP)}, -1
{L('nom0')}:
            """)
        if c + 9 < NCH: wdma(c + 9)
        if c == EL:
            A(f"""
            v_lshlrev_b32 {v(X1)}, 2, v1
            s_lshl_b32 s{sT1}, s{s_head}, 8
            s_add_u32 s{sT1}, s{sT1}, {FLAG_KV}
            buffer_load_dword {v(D0+50)}, {v(X1)}, {srd(SRD_DBG)}, 0 offen sc1
            buffer_load_dword {v(D0+51)}, {v(X1)}, {srd(SRD_WS)}, s{sT1} offen sc1
            """)
        if c == EL + 10:
            A(f"""
            v_readlane_b32 s{sEARLY}, {v(D0+50)}, {DBG_RARM//4}
            v_readlane_b32 s{sT1}, {v(D0+50)}, {DBG_OVH//4}
            v_cmp_ne_u32 vcc, 4, {v(D0+51)}
            s_cmp_eq_u32 s{sT1}, 0
            s_cselect_b32 s{sMODE}, 0, 1
            s_ff1_i32_b64 s{sKV}, vcc
            s_cmp_lt_i32 s{sKV}, 0
            s_cselect_b32 s{sKV}, 64, s{sKV}
            s_mov_b32 s{sWARMED}, 0
            """)
            if merged:
                A(f"""
                s_cmp_lg_u32 s{W}, 3
                s_cbranch_scc1 {L('nwe')}
                s_cmp_lt_u32 s{sKV}, {WARMD + 1}
                s_cbranch_scc1 {L('nwe')}
                """)
                warm0()
                A(f"s_mov_b32 s{sWARMED}, 1\n{L('nwe')}:")
        if c == NCH - 10:
            A(f"s_mov_b32 s{sT0}, {WS_PART}")
            for i in range(4):
                A(f"buffer_load_dwordx4 {v(D0+28+4*i,4)}, {v(vRED)}, {srd(SRD_WS)}, s{sT0} offen offset:{i*1024} sc1")
            for sl in range(3):
                A(f"s_mov_b32 s{sT0}, {WS_MEMB + sl*MSLOT}")
                A(f"buffer_load_dword {v(D0+46)}, {v(vPUB)}, {srd(SRD_WS)}, s{sT0} offen sc1")
    stamp(A, 9, s_id=s_head)
    hstamp(A, 13)
    AQ, AK, AV = D0, D0 + 4, D0 + 8
    AS = [D0 + 12 + 4 * i for i in range(4)]
    WR = [D0 + 28, D0 + 36, D0 + 44]
    korder = [16, 17] + list(range(16))
    wvl = [kk for kk in korder if kk != 17]
    lg = LQ(A, "lgkmcnt")
    def wvread(f):
        if x_nowv: return
        o = wvl[f] * 2048; d = WR[f % 3]
        A(f"ds_read_b128 {v(d,4)}, {v(vWV)} offset:{o}")
        A(f"ds_read_b128 {v(d+4,4)}, {v(vWV)} offset:{o+1024}")
        lg.push(f"W{f}", 2)
    def zero_acc():
        for i in range(12): A(f"v_mov_b32 {v(AQ+i)}, 0")
    def kv_wait(s_need, lab):
        A(f"""
        s_cmp_ge_u32 s{sKV}, s{s_need}
        s_cbranch_scc1 {lab}_ok
        s_waitcnt vmcnt(0)
        s_lshl_b32 s{sT1}, s{s_head}, 8
        s_add_u32 s{sT1}, s{sT1}, {FLAG_KV}
        v_lshrrev_b32 {v(TMP)}, 2, {v(vCON)}
        v_and_b32 {v(TMP)}, 255, {v(TMP)}
{lab}_p:
        buffer_load_dword {v(D0+40)}, {v(TMP)}, {srd(SRD_WS)}, s{sT1} offen sc1
        s_sub_u32 s{sSPIN}, s{sSPIN}, 1
        s_cbranch_scc1 {abort}
        s_waitcnt vmcnt(0)
        v_cmp_ne_u32 vcc, 4, {v(D0+40)}
        s_ff1_i32_b64 s{sKV}, vcc
        s_cmp_lt_i32 s{sKV}, 0
        s_cselect_b32 s{sKV}, 64, s{sKV}
        s_cmp_ge_u32 s{sKV}, s{s_need}
        s_cbranch_scc1 {lab}_ok
        s_sleep 4
        s_branch {lab}_p
{lab}_ok:
        """)
    A(f"""
    s_mov_b32 s{sSPIN}, {SPIN}
    v_lshlrev_b32 {v(T1)}, 2, v1
    s_cmp_ge_u32 s{sEARLY}, 32
    s_cbranch_scc1 {L('warmok')}
    s_mov_b32 s{sKV}, 0
    s_mov_b32 s{sWARMED}, 0
{L('warm')}:
    buffer_load_dword {v(T0)}, {v(T1)}, {srd(SRD_DBG)}, 0 offen sc1
    s_sub_u32 s{sSPIN}, s{sSPIN}, 1
    s_cbranch_scc1 {abort}
    s_waitcnt vmcnt(0)
    v_readlane_b32 s{sT0}, {v(T0)}, {DBG_RARM//4}
    v_readlane_b32 s{sT1}, {v(T0)}, {DBG_OVH//4}
    s_cmp_lt_u32 s{sT0}, 32
    s_cbranch_scc1 {L('warm')}
    s_cmp_eq_u32 s{sT1}, 0
    s_cselect_b32 s{sMODE}, 0, 1
{L('warmok')}:
    """)
    if merged:
        A(f"""
        s_cmp_lg_u32 s{W}, 3
        s_cbranch_scc1 {L('nkvi')}
        s_cmp_eq_u32 s{sWARMED}, 1
        s_cbranch_scc1 {L('nkvi')}
        s_waitcnt vmcnt(0)
        s_mov_b32 s{sT0}, {WARMD + 1}
        """)
        kv_wait(sT0, L('kvi'))
        warm0()
        A(f"{L('nkvi')}:")
    A(f"""
    s_mov_b32 s{sSTEP}, 0
    s_mov_b32 s{sPW}, {WS_PART}
    s_mov_b32 s{sMA}, {WS_MEMB + 2*MSLOT}
    s_mov_b32 s{sMW}, {WS_MEMB}
    s_mov_b32 s{sMR}, {WS_MEMB + MSLOT}
    s_lshl_b32 s{sSEG}, s{s_head}, 13
    s_mov_b32 s{sWOF}, 0x40000000
    s_cmp_lg_u32 s{W}, 3
    s_cselect_b32 s{sPRG}, s{sWOF}, s{sPRG}
    s_mov_b32 s{sKVO}, s{sWOF}
    s_cbranch_scc1 {L('nw3i')}
    s_lshl_b32 s{sKVO}, s{s_head}, 8
    s_add_u32 s{sKVO}, s{sKVO}, {FLAG_KV}
    v_lshlrev_b32 {v(vPUB)}, 2, v1
    s_mov_b32 s{sWOF}, {WS_KX + WARMD*RECSZ}
    v_lshlrev_b32 {v(vRED)}, 7, v1
    v_mov_b32 {v(vSP)}, 0
{L('nw3i')}:
    s_cmp_eq_u32 s{W}, 3
    s_movk_i32 s{sT0}, 2048
    s_cselect_b32 s{sT0}, 1024, s{sT0}
    v_subrev_u32 v1, s{sT0}, {v(vCON)}
    s_waitcnt vmcnt(0) lgkmcnt(0)
    s_barrier
    """)
    zero_acc()
    if prof: A("v_mov_b32 v1, 0\ns_memtime s[98:99]\ns_waitcnt lgkmcnt(0)")
    TS(6)
    if merged: A(f"s_cmp_eq_u32 s{sMODE}, 1\ns_cbranch_scc1 {L('loopS0')}x")
    if cnt: A("s_mov_b32 s20, 0\ns_mov_b32 s21, 0\ns_memtime s[96:97]\ns_memrealtime s[98:99]\ns_waitcnt lgkmcnt(0)\ns_mov_b32 s99, s96")
    RL = D0 + 52
    def sm(acc, a_, b): A(f"v_smfmac_f32_16x16x64_bf16 {v(acc,4)}, {a_}, {b}, {v(IDX)}")
    def mf(d, a_, b_, first):
        A(f"v_mfma_f32_16x16x32_bf16 {v(d,4)}, {a_}, {b_}, {'0' if first else v(d,4)}")
    def chk(r, br):
        A(f"""
        v_max3_u32 {v(TMP)}, {v(r)}, {v(r+1)}, {v(r+2)}
        v_max_u32 {v(TMP)}, {v(TMP)}, {v(r+3)}
        v_cmp_eq_u32 vcc, -1, {v(TMP)}
        {br}
        """)
    def spin(): A(f"s_sub_u32 s{sSPIN}, s{sSPIN}, 1\ns_cbranch_scc1 {abort}")
    def cload(r, so): A(f"buffer_load_dwordx4 {v(r,4)}, {v(vC1)}, {srd(SRD_WS)}, s{so} offen{ld}")
    def pk2(d, s_):
        A(f"v_cvt_pk_bf16_f32 {v(d)}, {v(s_)}, {v(s_+1)}")
        A(f"v_cvt_pk_bf16_f32 {v(d+1)}, {v(s_+2)}, {v(s_+3)}")
    def step_body(par, sc, md):
        LP = lambda n: L(n + md + str(par))
        nxt_loop = L('loop' + md + str(1 - par))
        A.label(LP('loop'))
        A("s_waitcnt vmcnt(2)")
        A.label(LP('loop') + "x")
        lg.clear()
        A(f"""
        s_mov_b32 s{sT3}, s{sMA}
        s_mov_b32 s{sMA}, s{sMW}
        s_mov_b32 s{sMW}, s{sMR}
        s_mov_b32 s{sMR}, s{sT3}
        s_mov_b32 s{sSPIN}, {SPIN}
        s_sub_u32 s{sT0}, s{sMA}, {HI}
        s_add_u32 s{sT1}, s{sT0}, s{sB1}
        s_add_u32 s{sT2}, s{sT0}, {(R1N-1)*1024}
        s_add_u32 s{sT3}, s{sT0}, s{sB3}
        s_add_u32 s{sT0}, s{sT0}, s{sB2}
        s_add_u32 s{sT4}, s{sSEG}, {WS_KX - HI}
        s_add_u32 m0, s{sWB}, {L_MEMF + R1N*1024}
        """)
        for f in range(3): wvread(f)
        A(f"s_cmp_lt_u32 s{W}, 2\ns_cbranch_scc1 {LP('cdj')}")
        if CD: A(f"s_sleep {CD}")
        TQ("cgo")
        def cload2(r):
            A(f"buffer_load_dwordx4 {v(r,4)}, {v(vC1)}, {srd(SRD_WS)}, s{sT1} offen sc1")
            A(f"buffer_load_dwordx4 {v(r+4,4)}, {v(vC1)}, {srd(SRD_WS)}, s{sT0} offen offset:1024 sc1")
        def cproc(r, y, br):
            A(f"""
            s_waitcnt vmcnt({y+1})
            ds_write_b128 {v(vC1)}, {v(r,4)} offset:{L_MEMF-HI}
            v_max3_u32 {v(TMP)}, {v(r)}, {v(r+1)}, {v(r+2)}
            s_waitcnt vmcnt({y})
            ds_write_b128 {v(vC1)}, {v(r+4,4)} offset:{L_MEMF-HI+1024}
            v_max3_u32 {v(TMP)}, {v(TMP)}, {v(r+3)}, {v(r+4)}
            v_max3_u32 {v(TMP)}, {v(TMP)}, {v(r+5)}, {v(r+6)}
            v_max_u32 {v(TMP)}, {v(TMP)}, {v(r+7)}
            v_cmp_eq_u32 vcc, -1, {v(TMP)}
            {br}
            """)
        if CGAP:
            cload2(AS[0]); A(f"s_sleep {CGAP}" if CGAP > 0 else f"s_nop {-CGAP}"); cload2(AS[2])
            A.label(LP('cp'))
            cproc(AS[0], 2, f"s_cbranch_vccnz {LP('cf')}")
        else:
            A.label(LP('cp'))
            cload2(AS[2]); spin()
            cproc(AS[2], 0, f"s_cbranch_vccnz {LP('cp')}")
        A.label(LP('cdj'))
        TQ("cdj")
        A("s_waitcnt lgkmcnt(0)\ns_barrier")
        if trace: TR(4); A("s_waitcnt lgkmcnt(0)")
        lg.clear()
        if cnt: A(f"s_sub_u32 s96, {SPIN}, s{sSPIN}\ns_add_u32 s20, s20, s96")
        PH(0)
        slot = lambda i: (i & 3) if i < 12 else (i - 12) % 3
        prev_user = lambda j: j - 4 if j < 15 else j - 3
        def aread(i):
            A(f"ds_read_b128 {v(AS[slot(i)],4)}, {v(vAF)} offset:{L_MEMF-HI+i*512}")
            lg.push(f"A{i}")
        def dma(so): A(f"buffer_load_dwordx4 {v(vCON)}, {srd(SRD_WS)}, s{so} offen sc1 lds")
        KXR = [D0 + 44, D0 + 48, D0 + 28, D0 + 32, D0 + 36, D0 + 40, D0 + 28, D0 + 32]
        VXF = [D0 + 52, D0 + 24]
        def kxread(n):
            A(f"ds_read_b128 {v(KXR[n],4)}, {v(vKX)} offset:{L_KX-HI+(n>>1)*2048+(n&1)*128}")
            lg.push(f"X{n}")
        TQ("start")
        aread(0); aread(1)
        if CGAP: A("s_waitcnt vmcnt(0)")
        aread(2); aread(3)
        f = 0
        nxt = 4
        late = []
        slow_n = [0]
        for i, kk in enumerate(korder):
            a_ = v(AS[slot(i)], 4)
            TQ(f"q{i}")
            lg.wait(f"A{i}")
            sm(AQ, a_, WQ(kk))
            if i == FAT and merged: A(f"buffer_store_dword {v(vSP)}, off, {srd(SRD_WS)}, s{sPRG} sc1"); slow_n[0] += 1
            if i == WAT and not nowarm: A(f"buffer_load_dword {v(TMP)}, {v(vRED)}, {srd(SRD_WS)}, s{sT3} offen sc1"); slow_n[0] += 1
            if i == WAT + 1 and not nowarm: A(f"buffer_load_dword {v(TMP)}, {v(vRED)}, {srd(SRD_WS)}, s{sT2} offen sc1"); slow_n[0] += 1
            if i == WAT + 3 and merged: A(f"buffer_load_dword {v(TMP)}, {v(vPUB)}, {srd(SRD_WS)}, s{sKVO} offen sc1"); slow_n[0] += 1
            if i == R2AT: dma(sT2)
            if i in (R2AT + 1, R2AT + 2): dma(sT4)
            if i == R3AT: dma(sT3)
            if i == R3AT + 1: A(f"buffer_load_dwordx4 {v(VXF[0],4)}, {v(vVX)}, {srd(SRD_WS)}, s{sT0} offen sc1")
            sm(AK, a_, WK(kk))
            if i == R2AT: A(f"s_add_u32 m0, s{sWB}, {L_KX}")
            if i == R2AT + 1: A(f"s_add_u32 m0, s{sWB}, {L_KX + 4096}\ns_add_u32 s{sT4}, s{sT4}, 4096")
            if i == R2AT + 2: A(f"s_mov_b32 m0, s{sM3}\ns_add_u32 s{sT0}, s{sSEG}, {WS_VX}")
            if i in (B2AT, B3AT):
                A(f"s_waitcnt vmcnt({2 + slow_n[0]})\ns_barrier")
                while prev_user(nxt) < i: aread(nxt); nxt += 1
            if i == 8: A(f"s_lshr_b32 s{sT2}, s{sSEG}, 1")
            if i == 9: A(f"s_add_u32 s{sT1}, s{sT2}, {0x40000000 if nokm else WS_VM - L_Q}\ns_add_u32 s{sT4}, s{sT2}, {0x40000000 if nokm else WS_KM - L_Q}")
            if i == 10: A(f"s_add_u32 s{sT3}, s{sSEG}, s{sWOF}\ns_add_u32 s{sT2}, s{sT3}, {WS_VX - WS_KX}")
            if kk == 17:
                sm(AV, a_, v(WVR, 8))
            elif i >= 16:
                late.append((a_, f)); f += 1
            else:
                lg.wait(f"W{f}")
                sm(AV, a_, v(WR[f % 3], 8))
                if f + 3 < 17: wvread(f + 3)
                f += 1
            lim = 2*R1N-1 if i < B2AT else (2*R1N+7 if i < B3AT else 17)
            while nxt <= lim and prev_user(nxt) <= i: aread(nxt); nxt += 1
            if i == 11: A(f"buffer_load_dwordx4 {v(VXF[1],4)}, {v(vVX)}, {srd(SRD_WS)}, s{sT0} offen offset:256 sc1")
            if i == 15: kxread(0); kxread(1)
        assert nxt == 18 and WAT + 3 <= 17 and FAT < WAT + 3 and WAT >= 12 and FAT >= 12 and B3AT >= 12 and R3AT + 1 <= 11
        TQ("qend")
        QF = [D0 + 0, D0 + 4]; KF = [D0 + 16, D0 + 20]
        KP, ZP = D0 + 12, D0 + 14
        def latev(n):
            a_, f_ = late[n]
            lg.wait(f"W{f_}")
            sm(AV, a_, v(WR[f_ % 3], 8))
        def qk_write():
            pk2(AQ, AQ)
            A(f"ds_write_b64 {v(vQW)}, {v(AQ,2)}")
            pk2(KP, AK)
            A(f"ds_write_b64 {v(vQW)}, {v(KP,2)} offset:{L_K-L_Q}")
        latev(0)
        kxread(2); kxread(3)
        if MW == 1: A("s_nop 3")
        else: A("s_nop 0")
        TQ("s2a")
        qk_write(); lg.push("qk", 2)
        latev(1)
        kxread(4); kxread(5)
        A(f"""
        v_cmp_u_f32 vcc, {v(AK)}, {v(AK+1)}
        v_cmp_u_f32 s[{sRDLY2}:{sRDLY2+1}], {v(AK+2)}, {v(AK+3)}
        s_or_b64 vcc, vcc, s[{sRDLY2}:{sRDLY2+1}]
        s_cbranch_vccnz {LP('slow')}
        """)
        A.label(LP('slowret'))
        if par == (last & 1):
            A(f"s_cmp_eq_u32 s{sSTEP}, {last}\ns_cbranch_scc1 {L('done')}")
        TQ("s2c")
        lg.wait("qk")
        A("s_barrier")
        TQ("s2end")
        def qk_reads(fb):
            b = fb & 1
            for (dst, base, tg) in ((QF[b], 0, "Q"), (KF[b], L_K - L_Q, "K")):
                A(f"ds_read_b64_tr_b16 {v(dst,2)}, {v(vQR)} offset:{base+fb*512}")
                A(f"ds_read_b64_tr_b16 {v(dst+2,2)}, {v(vQR)} offset:{base+fb*512+128}")
                lg.push(f"{tg}{fb}", 2)
        qk_reads(0); qk_reads(1)
        pk2(ZP, AV)
        ST = [D0 + 8, KXR[0], KXR[1]]
        VMT = D0 + 36; ON1 = D0 + 16; ON2 = D0 + 20
        M0_, M1_ = D0 + 42, D0 + 43
        PX = D0 + 0; PM = PX + 4
        for fb in range(4):
            b = fb & 1
            TQ(f"fb{fb}")
            for kt in range(2):
                n = 2 * fb + kt
                lg.wait(f"Q{fb}"); lg.wait(f"X{n}")
                mf(ST[kt], v(KXR[n], 4), v(QF[b], 4), fb == 0)
                if n in (2, 3): kxread(n + 4)
                if n == 0: A(f"buffer_store_dwordx2 {v(KP,2)}, {v(vQW)}, {srd(SRD_WS)}, s{sT4} offen sc1")
                if n == 3: A(f"buffer_store_dwordx2 {v(ZP,2)}, {v(vQW)}, {srd(SRD_WS)}, s{sT1} offen sc1")
                if n == 4: A(f"v_cndmask_b32 {v(VMT)}, 0, {v(ZP)}, s[{sLO32}:{sLO32+1}]\nv_cndmask_b32 {v(VMT+1)}, 0, {v(ZP+1)}, s[{sLO32}:{sLO32+1}]")
                if n == 5: A(f"v_mov_b32 {v(VMT+2)}, 0\nv_mov_b32 {v(VMT+3)}, 0")
                if n == 6: A(f"v_mov_b32 {v(ON1)}, 0x3f803f80\nv_mov_b32 {v(ON1+1)}, 0x3f803f80")
                if n == 7: A(f"v_mov_b32 {v(ON1+2)}, 0x3f803f80\nv_mov_b32 {v(ON1+3)}, 0x3f803f80")
            lg.wait(f"K{fb}")
            mf(ST[2], v(KF[b], 4), v(QF[b], 4), fb == 0)
            if fb + 2 < 4: qk_reads(fb + 2)
            if fb == 2:
                A(f"v_cndmask_b32 {v(VMT+4)}, 0, {v(ZP)}, s[{sHI32}:{sHI32+1}]\nv_cndmask_b32 {v(VMT+5)}, 0, {v(ZP+1)}, s[{sHI32}:{sHI32+1}]")
        TQ("scend")
        SR = [ST[t] + r for t in range(3) for r in range(4)]
        A(f"v_mov_b32 {v(ON2)}, 0x3f003f00\nv_mov_b32 {v(ON2+1)}, 0x3f003f00\nv_mov_b32 {v(ON2+2)}, 0\nv_mov_b32 {v(ON2+3)}, 0")
        A(f"""
        v_max3_f32 {v(M0_)}, {v(SR[0])}, {v(SR[1])}, {v(SR[2])}
        s_nop 0
        v_max3_f32 {v(M1_)}, {v(SR[3])}, {v(SR[4])}, {v(SR[5])}
        v_max3_f32 {v(M0_)}, {v(M0_)}, {v(SR[6])}, {v(SR[7])}
        v_max3_f32 {v(M1_)}, {v(M1_)}, {v(SR[8])}, {v(SR[9])}
        v_max3_f32 {v(M0_)}, {v(M0_)}, {v(SR[10])}, {v(SR[11])}
        v_max_f32 {v(M0_)}, {v(M0_)}, {v(M1_)}
        v_max_f32 {v(M1_)}, {v(M0_)}, {v(M1_)}
        v_mov_b32 {v(D0+12)}, 0
        v_mov_b32 {v(D0+13)}, 0
        v_permlane32_swap_b32 {v(M0_)}, {v(M1_)}
        v_max_f32 {v(M0_)}, {v(M0_)}, {v(M1_)}
        v_max_f32 {v(M1_)}, {v(M0_)}, {v(M1_)}
        v_mov_b32 {v(D0+14)}, 0
        v_mov_b32 {v(D0+15)}, 0
        v_permlane16_swap_b32 {v(M0_)}, {v(M1_)}
        v_max_f32 {v(M0_)}, {v(M0_)}, {v(M1_)}
        v_mul_f32 {v(M0_)}, s{sC}, {v(M0_)}
        """)
        for i in range(6):
            A(f"v_pk_fma_f32 {v(SR[2*i],2)}, {v(SR[2*i],2)}, s[{sC}:{sC+1}], {v(M0_,2)} op_sel_hi:[1,1,0] neg_lo:[0,0,1] neg_hi:[0,0,1]")
        for i in range(12):
            A(f"v_exp_f32 {v(SR[i])}, {v(SR[i])}")
            if i >= 2 and i % 2 == 0: A(f"v_cvt_pk_bf16_f32 {v(PX+i//2-1)}, {v(SR[i-2])}, {v(SR[i-1])}")
        OT, OT1, LS = D0 + 28, D0 + 32, D0 + 8
        TQ("expend")
        A(f"""
        s_waitcnt vmcnt({2 + slow_n[0]})
        v_cvt_pk_bf16_f32 {v(PX+5)}, {v(SR[10])}, {v(SR[11])}
        v_mfma_f32_16x16x32_bf16 {v(LS,4)}, {v(ON1,4)}, {v(PX,4)}, 0
        v_mfma_f32_16x16x32_bf16 {v(OT,4)}, {v(VXF[0],4)}, {v(PX,4)}, 0
        v_mfma_f32_16x16x32_bf16 {v(LS,4)}, {v(ON2,4)}, {v(PM,4)}, {v(LS,4)}
        v_mfma_f32_16x16x32_bf16 {v(OT,4)}, {v(VMT,4)}, {v(PM,4)}, {v(OT,4)}
        v_mfma_f32_16x16x32_bf16 {v(OT1,4)}, {v(VXF[1],4)}, {v(PX,4)}, 0
        v_mfma_f32_16x16x32_bf16 {v(OT1,4)}, {v(VMT+2,4)}, {v(PX+2,4)}, {v(OT1,4)}
        """)
        WAo = [D0 + 44, D0 + 48, D0 + 12, D0 + 16]
        WA8 = D0 + 20
        OF = [D0 + 0, D0 + 4, D0 + 36, D0 + 40]
        zl = [WAo[p] + i for p in (0, 1, 3) for i in range(4)]
        npre = 5 if MW == 1 else 0
        for r in zl[:npre]: A(f"v_mov_b32 {v(r)}, 0")
        A(f"v_rcp_f32 {v(M0_)}, {v(LS)}")
        A(f"v_mov_b32 {v(zl[npre])}, 0")
        if MW > 1: A(f"v_mov_b32 {v(zl[npre+1])}, 0"); npre += 1
        A(f"v_pk_mul_f32 {v(OT,2)}, {v(OT,2)}, {v(M0_,2)} op_sel_hi:[1,0]")
        A(f"v_pk_mul_f32 {v(OT+2,2)}, {v(OT+2,2)}, {v(M0_,2)} op_sel_hi:[1,0]")
        pk2(OT, OT)
        A(f"ds_write_b64 {v(vOW)}, {v(OT,2)}")
        A(f"v_pk_mul_f32 {v(OT1,2)}, {v(OT1,2)}, {v(M0_,2)} op_sel_hi:[1,0]")
        A(f"v_pk_mul_f32 {v(OT1+2,2)}, {v(OT1+2,2)}, {v(M0_,2)} op_sel_hi:[1,0]")
        pk2(OT1, OT1)
        A(f"ds_write_b64 {v(vOW)}, {v(OT1,2)} offset:256")
        for r in zl[npre+1:]: A(f"v_mov_b32 {v(r)}, 0")
        A(f"""
        s_add_u32 s{sT0}, s{sPW}, {4*65536}
        s_add_u32 s{sT1}, s{sPW}, {65536}
        s_waitcnt lgkmcnt(0)
        """)
        TQ("smend")
        PH(4)
        A("s_barrier")
        if trace: TR(0); A("s_waitcnt lgkmcnt(0)")
        lg.clear()
        for ks in range(4):
            A(f"ds_read_b128 {v(OF[ks],4)}, {v(vAF)} offset:{L_O-HI+ks*512}"); lg.push(f"O{ks}")
        SEL = D0 + 36; RT = D0 + 40; RDd = D0 + 20; RBS = [[D0 + 28, D0 + 32, D0 + 52, D0 + 24], [D0 + 44, D0 + 48, D0 + 12, D0 + 16]]
        A(f"""
        s_add_u32 s{sT2}, s{sPW}, {2*65536}
        s_add_u32 s{sT3}, s{sPW}, {3*65536}
        s_add_u32 s{sSTEP}, s{sSTEP}, 1
        s_add_u32 s{sSEG}, s{sSEG}, {0 if fixseg else RECSZ}
        s_mov_b32 s{sSPIN}, {SPIN}
        """)
        TQ("wostart")
        PH(5)
        tagop = lambda r: (f"v_or_b32 {v(r)}, 1, {v(r)}" if par else f"v_and_b32 {v(r)}, -2, {v(r)}")
        def out_ops(a0, soff, half=False):
            ops = [f"v_cvt_pk_bf16_f32 {v(a0)}, {v(a0)}, {v(a0+1)}", f"v_cvt_pk_bf16_f32 {v(a0+1)}, {v(a0+2)}, {v(a0+3)}",
                   tagop(a0), tagop(a0 + 1)]
            st = f"buffer_store_dwordx2 {v(a0,2)}, {v(vPST)}, {srd(SRD_WS)}, s{soff} offen{sc}"
            if half: st = f"s_mov_b64 exec, s[{sLO32}:{sLO32+1}]\n{st}\ns_mov_b64 exec, -1"
            return ops + [st]
        mfl = [("d", ks) for ks in range(4)] + [(p, ks) for p in range(4) for ks in range(4)]
        groups = [(3, out_ops(WA8, sT0, True))] + [(7 + 4 * p, out_ops(WAo[p], [sPW, sT1, sT2, sT3][p])) for p in range(4)]
        ic = [0]; pos = {}
        def emit(s_):
            A(s_); ic[0] += len([x for x in s_.split("\n") if x.strip()])
        cur = []; gi = 0
        for n, (p, ks) in enumerate(mfl):
            if p == "d":
                n0 = len(A.lines); lg.wait(f"O{ks}"); ic[0] += len(A.lines) - n0
                emit(f"v_mfma_f32_16x16x32_bf16 {v(WA8,4)}, {v(OF[ks],4)}, {WO8(ks)}, {'0' if ks == 0 else v(WA8,4)}")
            else:
                emit(f"v_smfmac_f32_16x16x64_bf16 {v(WAo[p],4)}, {v(OF[ks],4)}, {WO(p,ks)}, {v(IDX)}")
            ic[0] += MW - 1
            pos[n] = ic[0]
            k = 0
            while k < 2:
                if not cur and gi < len(groups) and groups[gi][0] <= n and ic[0] - pos[groups[gi][0]] >= (9 if MW > 1 else 8):
                    cur = list(groups[gi][1]); gi += 1
                if not cur: break
                emit(cur.pop(0)); k += 1
        while cur or gi < len(groups):
            if not cur:
                need = 8 - (ic[0] - pos[groups[gi][0]])
                if need > 0: emit(f"s_nop {need-1}"); ic[0] += need - 1
                cur = list(groups[gi][1]); gi += 1
            emit(cur.pop(0))
        TQ("woend")
        PH(6)
        TR(1)
        A(f"s_cmp_eq_u32 s{sRED}, 0\ns_cbranch_scc1 {LP('nored')}")
        def rload(sidx):
            for i in range(4):
                A(f"buffer_load_dwordx4 {v(RBS[sidx][i],4)}, {v(vRED)}, {srd(SRD_WS)}, s{sPW} offen offset:{i*1024}{ld}")
        def rproc(sidx, br):
            for i in range(4):
                b = RBS[sidx][i]
                A(f"s_waitcnt vmcnt({(7 if RGAP else 3)-i})")
                mf(RDd, v(SEL, 4), v(b, 4), i == 0)
                o3 = (lambda d, x, y, z: f"v_bitop3_b32 {v(d)}, {v(x)}, {v(y)}, {v(z)} bitop3:0x80") if par else (lambda d, x, y, z: f"v_or3_b32 {v(d)}, {v(x)}, {v(y)}, {v(z)}")
                if i == 0:
                    A(o3(RT, b, b + 1, b + 2)); A(o3(RT, RT, b + 3, b + 3))
                else:
                    A(o3(RT, RT, b, b + 1)); A(o3(RT, RT, b + 2, b + 3))
            A(f"v_and_b32 {v(RT)}, 1, {v(RT)}\nv_cmp_ne_u32 vcc, {par}, {v(RT)}\n{br}")
        A(f"""
        s_mov_b32 s{sT0}, s{sRDLY}
    {LP('rdl')}:
        s_cmp_eq_u32 s{sT0}, 0
        s_cbranch_scc1 {LP('rgo')}
        s_sleep 1
        s_sub_u32 s{sT0}, s{sT0}, 1
        s_branch {LP('rdl')}
    {LP('rgo')}:
        """)
        TQ("rgo")
        rload(0)
        zero_acc()
        for r in range(4): A(f"v_cndmask_b32 {v(SEL+r)}, 0, {v(SELV)}, s[{sSEL+2*r}:{sSEL+2*r+1}]")
        if RGAP:
            if RGAP > 0: A(f"s_sleep {RGAP}")
            rload(1)
        A.label(LP('rp0'))
        rproc(0, f"s_cbranch_vccnz {LP('rf0')}")
        A.label(LP('rdone'))
        TQ("rdone")
        A(f"""
        {'s_sub_u32 s96, %d, s%d' % (SPIN, sSPIN) if cnt else 's_nop 0'}
        {'s_add_u32 s21, s21, s96' if cnt else 's_nop 0'}
        s_nop 0
        v_cndmask_b32 {v(RT)}, {v(RDd)}, {v(RDd+2)}, s[{sHI32}:{sHI32+1}]
        v_cndmask_b32 {v(RT+1)}, {v(RDd+1)}, {v(RDd+3)}, s[{sHI32}:{sHI32+1}]
        v_cndmask_b32 {v(RT+3)}, {v(RT+1)}, {v(RT)}, s[{sN8}:{sN8+1}]
        v_cndmask_b32 {v(RT+2)}, {v(RT)}, {v(RT+1)}, s[{sN8}:{sN8+1}]
        s_nop 0
        v_add_f32_dpp {v(RT+2)}, {v(RT+3)}, {v(RT+2)} row_ror:8 row_mask:0xf bank_mask:0xf
        v_mov_b32 {v(RT+3)}, {v(RT+2)}
        s_nop 1
        v_permlane16_swap_b32 {v(RT+2)}, {v(RT+3)}
        v_cvt_pk_bf16_f32 {v(RT+2)}, {v(RT+2)}, {v(RT+3)}
        v_min_u32 {v(TMP)}, -2, {v(RT+2)}
        s_mov_b64 exec, s[{sPM}:{sPM+1}]
        buffer_store_dword {v(TMP)}, {v(vPUB)}, {srd(SRD_WS)}, s{sMW} offen{sc}
        buffer_store_dword {v(vSP)}, {v(vPUB)}, {srd(SRD_WS)}, s{sMA} offen{sc}
        s_mov_b64 exec, -1
        """)
        TQ("pub")
        PH(7)
        TR(2)
        if trace: A("s_waitcnt lgkmcnt(0)")
        A(f"s_branch {nxt_loop}")
        A.label(LP('nored'))
        if trace: A("s_waitcnt vmcnt(0)"); TR(2); A("s_waitcnt lgkmcnt(0)")
        zero_acc()
        if merged:
            A(f"""
            s_cmp_lg_u32 s{W}, 3
            s_cbranch_scc1 {LP('nkv')}
            v_mov_b32 {v(vSP)}, s{sSTEP}
            s_cmp_ge_u32 s{sKV}, 64
            s_cbranch_scc1 {LP('nkv')}
            s_waitcnt vmcnt(7)
            v_cmp_ne_u32 vcc, 4, {v(TMP)}
            s_ff1_i32_b64 s{sKV}, vcc
            s_cmp_lt_i32 s{sKV}, 0
            s_cselect_b32 s{sKV}, 64, s{sKV}
            s_cselect_b32 s{sKVO}, 0x40000000, s{sKVO}
            s_add_u32 s{sT0}, s{sSTEP}, {WARMD + 1}
            s_min_u32 s{sT0}, s{sT0}, 64
            """)
            kv_wait(sT0, LP('kv'))
            A.label(LP('nkv'))
        if tstep:
            A(f"s_cmp_lg_u32 s{W}, 2\ns_cbranch_scc1 {LP('nts')}\ns_memrealtime s[96:97]\ns_waitcnt lgkmcnt(0)\ns_mov_b32 m0, s{sSTEP}\nv_writelane_b32 {v(vSP)}, s96, m0\n{LP('nts')}:")
        if CDN: A(f"s_sleep {CDN}")
        A(f"s_branch {nxt_loop}x")
        A.label(LP('rf0'))
        rload(0); spin()
        if RGAP:
            rproc(1, f"s_cbranch_vccz {LP('rdone')}")
            rload(1); spin()
        A(f"s_branch {LP('rp0')}")
        if CGAP:
            A.label(LP('cf'))
            cload2(AS[0]); spin()
            cproc(AS[2], 2, f"s_cbranch_vccz {LP('cok')}")
            cload2(AS[2]); spin()
            A(f"s_branch {LP('cp')}")
            A(f"{LP('cok')}:\ns_waitcnt vmcnt(0)\ns_branch {LP('cdj')}")
        A.label(LP('slow'))
        A(f"s_sub_u32 s97, s{sMA}, {HI}\ns_waitcnt lgkmcnt(0)\ns_nop 7")
        zero_acc()
        for kp in range(9):
            lab = LP(f'sp{kp}_')
            for h in range(2):
                kk = 2 * kp + h
                if kk != 17:
                    A(f"ds_read_b128 {v(WR[h],4)}, {v(vWV)} offset:{kk*2048}\nds_read_b128 {v(WR[h]+4,4)}, {v(vWV)} offset:{kk*2048+1024}")
            A(f"""
{lab}:
            buffer_load_dwordx4 {v(AS[0],4)}, {v(vAF)}, {srd(SRD_WS)}, s97 offen sc1
            buffer_load_dwordx4 {v(AS[1],4)}, {v(vAF)}, {srd(SRD_WS)}, s97 offen offset:512 sc1
            """)
            spin()
            A(f"""
            s_waitcnt vmcnt(0) lgkmcnt(0)
            v_max3_u32 {v(TMP)}, {v(AS[0])}, {v(AS[0]+1)}, {v(AS[0]+2)}
            v_max3_u32 {v(TMP)}, {v(TMP)}, {v(AS[0]+3)}, {v(AS[1])}
            v_max3_u32 {v(TMP)}, {v(TMP)}, {v(AS[1]+1)}, {v(AS[1]+2)}
            v_max_u32 {v(TMP)}, {v(TMP)}, {v(AS[1]+3)}
            v_cmp_eq_u32 vcc, -1, {v(TMP)}
            s_cbranch_vccnz {lab}
            """)
            for h in range(2):
                kk = 2 * kp + h
                sm(AQ, v(AS[h], 4), WQ(kk)); sm(AK, v(AS[h], 4), WK(kk)); sm(AV, v(AS[h], 4), v(WR[h], 8) if kk != 17 else v(WVR, 8))
            A(f"s_add_u32 s97, s97, 1024")
        if prof: A(f"s_mov_b64 exec, {1 << 10}\nv_add_u32 v1, 63, v1\ns_mov_b64 exec, -1")
        if cnt: A("s_add_u32 s20, s20, 0x10000")
        import common
        if common.HST:
            A(f"v_mov_b32 {v(TMP)}, 1\ns_mov_b64 exec, 1\nbuffer_atomic_add {v(TMP)}, off, {srd(SRD_DBG)}, 32 sc1\ns_mov_b64 exec, -1\ns_waitcnt vmcnt(0)")
        A("s_nop 7")
        qk_write()
        for n in range(2, 6): A(f"ds_read_b128 {v(KXR[n],4)}, {v(vKX)} offset:{L_KX-HI+(n>>1)*2048+(n&1)*128}")
        A(f"s_waitcnt lgkmcnt(0)\ns_branch {LP('slowret')}")
    step_body(0, sc, ''); step_body(1, sc, '')
    if merged:
        step_body(0, ' sc1', 'S'); step_body(1, ' sc1', 'S')
    A.label(L('done'))
    A(f"""
    s_lshr_b32 s{sT2}, s{sSEG}, 1
    s_add_u32 s{sT1}, s{sT2}, {WS_VM - L_Q}
    s_add_u32 s{sT4}, s{sT2}, {WS_KM - L_Q}
    buffer_store_dwordx2 {v(D0+12,2)}, {v(vQW)}, {srd(SRD_WS)}, s{sT4} offen sc1
    s_nop 1
    v_cvt_pk_bf16_f32 {v(D0+14)}, {v(D0+8)}, {v(D0+9)}
    v_cvt_pk_bf16_f32 {v(D0+15)}, {v(D0+10)}, {v(D0+11)}
    buffer_store_dwordx2 {v(D0+14,2)}, {v(vQW)}, {srd(SRD_WS)}, s{sT1} offen sc1
    """)
    A("s_waitcnt vmcnt(0) lgkmcnt(0)")
    if merged:
        A(f"""
        s_barrier
        s_cmp_lg_u32 s{W}, 3
        s_cbranch_scc1 {L('nfin')}
        v_mov_b32 {v(TMP)}, 64
        v_mov_b32 {v(D0+52)}, s{sPRG}
        s_mov_b64 exec, 1
        buffer_store_dword {v(TMP)}, {v(D0+52)}, {srd(SRD_WS)}, 0 offen sc1
        s_mov_b64 exec, -1
        s_waitcnt vmcnt(0)
{L('nfin')}:
        """)
    if cnt:
        A(f"v_mov_b32 v1, s20\ns_mov_b64 exec, 2\nv_mov_b32 v1, s21\ns_mov_b64 exec, -1")
        A("s_memtime s[96:97]\ns_memrealtime s[100:101]\ns_waitcnt lgkmcnt(0)\ns_sub_u32 s96, s96, s99\ns_sub_u32 s100, s100, s98")
        A("s_mov_b64 exec, 4\nv_mov_b32 v1, s96\ns_mov_b64 exec, 8\nv_mov_b32 v1, s100\ns_mov_b64 exec, -1")
    if trace:
        for i in range(6): A(f"s_mov_b64 exec, {1 << i}\nv_mov_b32 v1, s{8+2*i}")
        A("s_mov_b64 exec, -1")
    if tq:
        for i in range(len(tq)): A(f"s_mov_b64 exec, {1 << i}\nv_mov_b32 v1, s{8+2*i}")
        A("s_mov_b64 exec, -1")
    if tstart:
        TS(7)
        A("s_mov_b32 s8, s100\ns_mov_b32 s10, s98")
        for i in range(8): A(f"s_mov_b64 exec, {1 << i}\nv_mov_b32 v1, s{8+2*i}")
        A("s_mov_b64 exec, -1")
    if tstep: A(f"v_mov_b32 v1, {v(vSP)}")
    if prof or cnt or trace or tq or tstep or tstart:
        A(f"""
        s_lshl_b32 s96, s{s_head}, 2
        s_add_u32 s96, s96, s{W}
        s_lshl_b32 s96, s96, 8
        s_add_u32 s96, s96, {WS_STAMP + 0x10000}
        v_lshrrev_b32 v28, 2, {v(vCON)}
        v_and_b32 v28, 255, v28
        buffer_store_dword v1, v28, {srd(SRD_WS)}, s96 offen
        s_waitcnt vmcnt(0)
        """)
    stamp(A, 10, s_id=s_head)
    hstamp(A, 14)
```

```python
from common import *
import math, struct

WSTR = 36864
L_Q = 34816
L_K = 34816 + WSTR
L_O = 34816 + 2 * WSTR
L_MEMF = 145408
L_KX = 145408 + 9216
L_V = L_MEMF + 4096
HI = 98304
PSLOT = 72 * 4096
MSLOT = 9216
SPIN = 200000
CEXP = (128 ** -0.5) * math.log2(math.e)
def f32bits(x): return struct.unpack("<I", struct.pack("<f", x))[0]

def WQ(kk): return wreg(kk * 8, 8)
def WK(kk): return wreg(144 + kk * 8, 8)
def WO(p, ks): return wreg(288 + (p * 4 + ks) * 8, 8)
def WO8(ks): return wreg(288 + 128 + ks * 4, 4)

class LQ:
    def __init__(self, A, name): self.A, self.name, self.q = A, name, []
    def push(self, tag, n=1): self.q += [tag] * n; assert len(self.q) <= (15 if self.name == "lgkmcnt" else 63), self.q
    def wait(self, tag):
        if tag not in self.q: return
        idx = max(i for i, t in enumerate(self.q) if t == tag)
        self.A(f"s_waitcnt {self.name}({len(self.q) - 1 - idx})")
        del self.q[:idx + 1]
    def clear(self): self.q = []

def mod_R(A, s_head, sc="", pfx="R", abort="R_abort", last=63, prof=False, RD_=(0, 0, 0, 1, 2), CD=0, hooks=None, WARMD=2, cnt=False,
          CDN=0, fixseg=False, nokm=False, x_nowv=False, trace=False, RGAP=0, CGAP=0, ld=' sc1', tq=None, merged=False, wbar=False, worder='qk', wnt='', tstart=False, ARMAT=9, HELP=0, HAT=27, MW=3, R1N=4, EL=26, eflag=True, EFAT=13, WAT=14, FAT=16, tstep=False, CDN3=0, nowarm=False, R2AT=1, R3AT=7, B2AT=6, B3AT=13):
    assert R3AT > B2AT and R2AT + 2 < B2AT and eflag
    def TQ(tag):
        if tq and tag in tq: A(f"s_memtime s[{8+2*tq.index(tag)}:{9+2*tq.index(tag)}]")

    def TR(i):
        if trace: A(f"s_memrealtime s[{8+2*i}:{9+2*i}]")

    L = lambda n: f"{pfx}_{n}"
    def TS(i):
        r = 98 if i == 1 else 8 + 2 * i
        if tstart: A(f"s_memrealtime s[{r}:{r+1}]\ns_waitcnt lgkmcnt(0)")
    W = S_WAVE
    hooks = hooks or {}
    def PH(i):
        if not prof: return
        A(f"""
        s_waitcnt lgkmcnt(0)
        s_memtime s[96:97]
        s_waitcnt lgkmcnt(0)
        s_sub_u32 s99, s96, s98
        s_mov_b32 s98, s96
        s_mov_b64 exec, {1 << i}
        v_add_u32 v1, s99, v1
        s_mov_b64 exec, -1
        """)
    TMP = 0
    IDX, SELV, vPST, vRED, vPUB, vCON, vAF, vWV, vQW, vQR, vKX, vOW, vVX, vSP = range(2, 16)
    vC1 = 1
    assert not prof
    WVR = 16
    D0 = 24
    sSTEP, sPW, sPR, sMW, sMR, sMA, sRED, sSEG = 64, 65, 66, 67, 68, 69, 70, 71
    sLO32, sHI32, sEVEN, sN8 = 72, 74, 76, 78
    sB2 = 81
    sKVO = 3
    sWOF = 80
    sC = 82
    sRDLY, sWB, sB1 = 84, 85, 59
    sB3, sM3, sPRG = 66, 57, 4
    sRDLY2 = 96
    sPM = sEVEN
    sSEL = 86
    sT0, sT1, sT2, sSPIN, sT3, sT4 = 60, 61, 62, 63, 94, 95
    T0, T1, T2 = D0, D0 + 1, D0 + 2
    stamp(A, 8, s_id=s_head)
    hstamp(A, 12)
    def bits(dst, terms, add=None):
        first = True
        for (off, n, sh) in terms:
            A(f"v_bfe_u32 {v(T2)}, v1, {off}, {n}")
            if first:
                A(f"v_lshlrev_b32 {v(dst)}, {sh}, {v(T2)}"); first = False
            else:
                A(f"v_lshl_add_u32 {v(dst)}, {v(T2)}, {sh}, {v(dst)}")
        if add is not None:
            A(f"v_add_u32 {v(dst)}, {add}, {v(dst)}")
    vWA, vWB = D0 + 52, D0 + 53
    vTR = [D0 + 44, D0 + 45]
    vTO = [D0 + 46 + k for k in range(4)]
    vTD = [D0 + 28 + k for k in range(4)]
    X0, X1 = D0 + 8, D0 + 9
    sWL = 7
    VS = D0 + 12
    A(f"""
    s_lshl_b32 s{sT0}, s{s_head}, 8
    s_lshr_b32 s{sT1}, s{W}, 1
    s_lshl_b32 s{sT1}, s{sT1}, 7
    s_add_u32 s{sT0}, s{sT0}, s{sT1}
    s_and_b32 s{sT1}, s{W}, 1
    s_lshl_b32 s{sT1}, s{sT1}, 18
    s_add_u32 s{sT0}, s{sT0}, s{sT1}
    s_mul_i32 s{sWL}, s{W}, {WSTR}
    """)
    bits(vWA, [(3, 3, 13), (0, 3, 4)], f"s{sT0}")
    grp = lambda ch: [("o", (p, kb2)) for p in range(5) for kb2 in range(2)] if ch == 'o' else [(ch, kb) for kb in range(9)]
    if len(worder) == 2: worder = worder + 'o'
    if worder == 'mix':
        a_, b_ = grp('k') + grp('q'), grp('o')
        chunks = []
        while a_ or b_:
            if len(b_) * 18 >= len(a_) * 10 and b_ and chunks: chunks.append(b_.pop(0))
            else: chunks.append(a_.pop(0))
        chunks += [("v", kb) for kb in range(9)]
    else:
        chunks = grp(worder[0]) + grp(worder[1]) + grp(worder[2]) + [("v", kb) for kb in range(9)]
    A(f"""
    v_lshrrev_b32 {v(X0)}, 4, v1
    s_lshl_b32 s{sT0}, s{W}, 4
    v_add_u32 {v(X0)}, s{sT0}, {v(X0)}
    v_mul_u32_u24 {v(X0)}, 1152, {v(X0)}
    s_mul_i32 s{sT0}, s{s_head}, 147456
    v_add_u32 {v(X0)}, s{sT0}, {v(X0)}
    """)
    bits(vWB, [(0, 4, 4)], v(X0))
    slot_of = lambda c: (c - 28) % 9
    def wdma(c):
        kind, ix = chunks[c]; sl = slot_of(c)
        for n in range(4):
            A(f"s_add_u32 m0, s{sWL}, {sl*4096 + n*1024}")
            if kind == "o":
                p, kb2 = ix
                A(f"s_mov_b32 s{sT1}, {(kb2*64 + n*4)*1152 + p*256}")
                A(f"buffer_load_dwordx4 {v(vWB)}, {srd(SRD_WO)}, s{sT1} offen{wnt} lds")
            else:
                A(f"s_mov_b32 s{sT1}, {ix*524288 + n*65536}")
                A(f"buffer_load_dwordx4 {v(vWA)}, {srd({'q': SRD_WQ, 'k': SRD_WK, 'v': SRD_WV}[kind])}, s{sT1} offen{wnt} lds")
    for c in range(9): wdma(c)
    TS(1)
    if 'resolve' in hooks: hooks['resolve']()
    TS(2)
    A.c("R setup")
    A(f"""
    s_mov_b32 s{sLO32}, -1
    s_mov_b32 s{sLO32+1}, 0
    s_mov_b32 s{sHI32}, 0
    s_mov_b32 s{sHI32+1}, -1
    s_mov_b32 s{sEVEN}, 0x55555555
    s_mov_b32 s{sEVEN+1}, 0x55555555
    s_mov_b32 s{sN8}, 0xff00ff00
    s_mov_b32 s{sN8+1}, 0xff00ff00
    s_mov_b32 s{sC}, {f32bits(CEXP)}
    s_mov_b32 s{sC+1}, {f32bits(CEXP)}
    s_lshl_b32 s{sWB}, s{W}, 10
    s_cmp_eq_u32 s{W}, 2
    s_mov_b32 s{sB1}, -1024
    s_cselect_b32 s{sB1}, 8192, s{sB1}
    s_lshl_b32 s{sPRG}, s{s_head}, 7
    s_add_u32 s{sPRG}, s{sPRG}, {FLAG_RP}
    """)
    if R1N == 4:
        A(f"s_sub_u32 s{sB3}, 7168, s{sWB}\ns_mov_b32 s{sM3}, {L_MEMF + 8192}\ns_movk_i32 s{sB2}, -1024")
    else:
        A(f"""
        s_and_b32 s{sM3}, s{sWB}, 1024
        s_sub_u32 s{sB3}, s{sM3}, s{sWB}
        s_add_u32 s{sB3}, s{sB3}, 6144
        s_add_u32 s{sM3}, s{sM3}, {L_MEMF + 7168}
        s_movk_i32 s{sB2}, -1024
        s_cmp_eq_u32 s{W}, 3
        s_cselect_b32 s{sB2}, -2048, s{sB2}
        """)
    for r in range(4):
        m = (0x03030303 << (2 * r)) & 0xffffffff
        A(f"s_mov_b32 s{sSEL+2*r}, {m}\ns_mov_b32 s{sSEL+2*r+1}, {m}")
    A(f"""
    v_mov_b32 {v(IDX)}, 0x44444444
    v_mov_b32 {v(T0)}, 0xeeeeeeee
    v_cndmask_b32 {v(IDX)}, {v(IDX)}, {v(T0)}, s[{sN8}:{sN8+1}]
    v_mov_b32 {v(SELV)}, 0x3f800000
    v_mov_b32 {v(T0)}, 0x3f80
    v_cndmask_b32 {v(SELV)}, {v(SELV)}, {v(T0)}, s[{sEVEN}:{sEVEN+1}]
    s_mov_b32 s{sPM}, 0xffff
    s_mov_b32 s{sPM+1}, 0xffff
    v_lshlrev_b32 {v(T0)}, 4, v1
    s_add_u32 s{sT0}, s{sWB}, {HI}
    v_add_u32 {v(vCON)}, s{sT0}, {v(T0)}
    s_mul_i32 s{sT0}, s{W}, {WSTR}
    v_add_u32 {v(vWV)}, s{sT0}, {v(T0)}
    s_lshl_b32 s{sT0}, s{W}, 5
    s_add_u32 s{sT0}, s{sT0}, s{s_head}           ; unit
    s_lshl_b32 s{sT1}, s{sT0}, 12
    s_cmp_lt_u32 s{sT0}, 72
    s_cselect_b32 s{sRED}, 1, 0
    s_cselect_b32 s{sT1}, s{sT1}, 0x40000000
    v_add_u32 {v(vRED)}, s{sT1}, {v(T0)}
    s_lshr_b32 s{sT1}, s{sT0}, 1
    s_lshl_b32 s{sT4}, s{sT1}, 5
    s_lshl_b32 s{sT1}, s{sT1}, 8
    s_and_b32 s{sT2}, s{sT0}, 1
    s_mul_i32 s{sT3}, s{sT2}, {4*1152}
    s_add_u32 s{sT4}, s{sT4}, s{sT3}
    s_lshl_b32 s{sT2}, s{sT2}, 6
    s_add_u32 s{sT1}, s{sT1}, s{sT2}
    s_lshr_b32 s{sT2}, s{sT0}, 4
    s_add_u32 s{sT2}, s{sT2}, 1
    s_cmp_ge_u32 s{sT0}, 64
    s_cselect_b32 s{sT2}, 0, s{sT2}
    s_mov_b32 s{sRDLY}, {RD_[0]}
    """)
    for o in range(1, 5):
        A(f"s_cmp_eq_u32 s{sT2}, {o}\ns_cselect_b32 s{sRDLY}, {RD_[o]}, s{sRDLY}")
    bits(vPUB, [(2, 1, 7), (5, 1, 5), (3, 1, 4), (0, 2, 2)], f"s{sT1}")
    A(f"s_lshl_b32 s{sT1}, s{W}, 1\ns_xor_b32 s{sT2}, s{s_head}, s{sT1}\ns_lshl_b32 s{sT2}, s{sT2}, 7\ns_lshl_b32 s{sT1}, s{W}, 13")
    bits(vPST, [(5, 1, 10), (4, 1, 7)])
    A(f"v_xor_b32 {v(T1)}, s{sT2}, {v(vPST)}\nv_add_u32 {v(T1)}, s{sT1}, {v(T1)}")
    bits(vPST, [(5, 1, 15), (4, 1, 12), (0, 4, 3)], v(T1))
    A(f"s_lshl_b32 s{sT1}, s{W}, 9\ns_add_u32 s{sT2}, s{sT1}, {L_Q}")
    bits(vQW, [(5, 1, 8), (0, 4, 4), (4, 1, 3)], f"s{sT2}")
    bits(vQR, [(5, 1, 8), (4, 1, 6), (2, 2, 4), (0, 1, 3)], L_Q)
    bits(vKX, [(4, 2, 9), (3, 1, 8), (0, 3, 4)], HI)
    bits(vAF, [(4, 2, 7), (0, 3, 4)], HI)
    A(f"s_add_u32 s{sT2}, s{sT1}, {L_O}")
    bits(vOW, [(5, 1, 7), (0, 3, 4), (4, 1, 3)], f"s{sT2}")
    A(f"s_lshl_b32 s{sT1}, s{W}, 11")
    bits(vVX, [(4, 2, 9), (0, 4, 4)], f"s{sT1}")
    ARM = D0 + 4
    X0, X1 = D0 + 8, D0 + 9
    for i in range(4): A(f"v_mov_b32 {v(ARM+i)}, -1")
    A(f"s_cmp_eq_u32 s{sRED}, 0\ns_cbranch_scc1 {L('noarm')}")
    bits(X1, [(5, 1, 1), (3, 1, 0)])
    A(f"v_mul_u32_u24 {v(X1)}, 1152, {v(X1)}")
    bits(X0, [(0, 3, 2)], v(X1))
    A(f"buffer_load_dword {v(vSP)}, {v(X0)}, {srd(SRD_M0)}, s{sT4} offen")
    A(f"s_mov_b32 s{sT0}, {WS_PART}")
    for i in range(4):
        A(f"buffer_store_dwordx4 {v(ARM,4)}, {v(vRED)}, {srd(SRD_WS)}, s{sT0} offen offset:{i*1024} sc1")
    A(f"s_mov_b64 exec, s[{sEVEN}:{sEVEN+1}]")
    for sl in range(3):
        A(f"s_mov_b32 s{sT0}, {WS_MEMB + sl*MSLOT}")
        A(f"buffer_store_dword {v(ARM)}, {v(vPUB)}, {srd(SRD_WS)}, s{sT0} offen sc1")
    A("s_mov_b64 exec, -1")
    A.label(L('noarm'))
    if merged:
        A(f"""
        s_cmp_lg_u32 s{W}, 3
        s_cbranch_scc1 {L('nz')}
        v_lshlrev_b32 {v(X0)}, 2, v1
        v_mov_b32 {v(X1)}, 0
        s_lshl_b32 s{sT0}, s{s_head}, 8
        s_add_u32 s{sT0}, s{sT0}, {FLAG_KV}
        buffer_store_dword {v(X1)}, {v(X0)}, {srd(SRD_WS)}, s{sT0} offen sc1
        s_add_u32 s{sT0}, s{sT0}, {FLAG_OX - FLAG_KV}
        buffer_store_dword {v(X1)}, {v(X0)}, {srd(SRD_WS)}, s{sT0} offen sc1
        v_mov_b32 {v(X0)}, s{sPRG}
        buffer_store_dword {v(X1)}, {v(X0)}, {srd(SRD_WS)}, 0 offen sc1
{L('nz')}:
        """)
    A(f"""
    s_and_b32 s{sT0}, s{W}, 2
    s_mul_i32 s{sT0}, s{sT0}, {WSTR}
    s_and_b32 s{sT1}, s{W}, 1
    s_lshl_b32 s{sT1}, s{sT1}, 6
    s_add_u32 s{sT0}, s{sT0}, s{sT1}
    s_lshl_b32 s{sT1}, s{W}, 5
    """)
    bits(vTR[0], [(4, 2, 9), (2, 1, 7), (3, 1, 5), (0, 2, 3)], f"s{sT0}")
    A(f"v_add_u32 {v(vTR[1])}, {WSTR}, {v(vTR[0])}")
    bits(vTO[0], [(4, 2, 10), (2, 1, 8), (3, 1, 7), (0, 2, 3)], f"s{sT1}")
    bits(vTD[0], [(4, 1, 11), (2, 2, 8), (0, 2, 3)], f"s{sT1}")
    A(f"v_bfe_u32 {v(T2)}, v1, 5, 1\nv_mul_u32_u24 {v(T2)}, {WSTR}, {v(T2)}\nv_add_u32 {v(vTD[0])}, {v(vTD[0])}, {v(T2)}")
    for k in range(1, 4): A(f"v_add_u32 {v(vTO[k])}, {k*WSTR}, {v(vTO[0])}")
    A(f"v_add_u32 {v(vTD[1])}, {2*WSTR}, {v(vTD[0])}")
    def trread(dst_fn, h, sl):
        for t, ro in enumerate((0, 2, 16, 18)):
            A(f"ds_read_b64_tr_b16 {dst_fn(t)}, {v(vTR[h])} offset:{sl*4096 + ro*128}")
    def trread_o(dst_fn, h, sl):
        for t, (k, ro) in enumerate(((0, 0), (0, 2), (1, 0), (1, 2))):
            A(f"ds_read_b64_tr_b16 {dst_fn(t)}, {v(vTO[2*h+k])} offset:{sl*4096 + ro*256}")
    sub = lambda base, t: wreg(base + 2 * t, 2)
    NCH = len(chunks)
    NH = (9 - HELP) * 8 // 8 if HELP else 0
    sKV, sMODE, sEARLY, sWARMED = 5, 6, 3, 7
    def warm0():
        A(f"v_lshlrev_b32 {v(X0)}, 7, v1\ns_lshl_b32 s{sT0}, s{s_head}, 13")
        for sg in range(WARMD):
            A(f"s_add_u32 s{sT1}, s{sT0}, {WS_KX + sg*RECSZ}\nbuffer_load_dword {v(X1)}, {v(X0)}, {srd(SRD_WS)}, s{sT1} offen sc1")
            A(f"s_add_u32 s{sT1}, s{sT0}, {WS_VX + sg*RECSZ}\nbuffer_load_dword {v(X1)}, {v(X0)}, {srd(SRD_WS)}, s{sT1} offen sc1")
    for c in range(NCH):
        kind, ix = chunks[c]; sl = slot_of(c)
        A(f"s_waitcnt vmcnt({min(NCH - 1 - c, 8) * 4 + (7 if c > NCH - 10 else 0) + (2 if EL < c <= EL + 9 else 0) + (NH if HAT < c <= HAT + 9 else 0)}) lgkmcnt(0)\ns_barrier")
        if kind in "qk":
            base = 0 if kind == "q" else 144
            for h in range(2): trread(lambda t: sub(base + (2 * ix + h) * 8, t), h, sl)
        elif kind == "o":
            p, kb2 = ix
            for h in range(2):
                if p < 4: trread_o(lambda t: sub(288 + (p * 4 + 2 * kb2 + h) * 8, t), h, sl)
                else:
                    for t in range(2):
                        A(f"ds_read_b64_tr_b16 {wreg(288 + 128 + (2*kb2+h)*4 + 2*t, 2)}, {v(vTD[h])} offset:{sl*4096 + 4*t*256}")
        else:
            trread(lambda t: v(VS + 2 * t, 2), 0, sl)
            if ix < 8: trread(lambda t: v(VS + 8 + 2 * t, 2), 1, sl)
            else: trread(lambda t: v(WVR + 2 * t, 2), 1, sl)
        A("s_waitcnt lgkmcnt(0)\ns_barrier")
        if kind == "v":
            for q in range(4 if ix < 8 else 2):
                A(f"ds_write_b128 {v(vWV)}, {v(VS+4*q,4)} offset:{ix*4096 + q*1024}")
        if c == 0: TS(3)
        if c == 9: TS(4)
        if c == NCH - 1: TS(5)
        if c == ARMAT:
            A(f"""
            s_cmp_lg_u32 s{W}, 0
            s_cbranch_scc1 {L('armed')}
            v_mov_b32 {v(T0)}, 1
            v_mov_b32 {v(T1)}, {DBG_RARM}
            s_mov_b64 exec, 1
            buffer_atomic_add {v(T0)}, {v(T1)}, {srd(SRD_DBG)}, 0 offen sc1
            s_mov_b64 exec, -1
{L('armed')}:
            s_cmp_eq_u32 s{sRED}, 0
            s_cbranch_scc1 {L('nom0')}
            v_min_u32 {v(vSP)}, -2, {v(vSP)}
            s_mov_b32 s{sT0}, {WS_MEMB}
            s_mov_b64 exec, s[{sEVEN}:{sEVEN+1}]
            buffer_store_dword {v(vSP)}, {v(vPUB)}, {srd(SRD_WS)}, s{sT0} offen sc1
            s_mov_b64 exec, -1
            s_nop 0
            v_mov_b32 {v(vSP)}, -1
{L('nom0')}:
            """)
        if c + 9 < NCH: wdma(c + 9)
        if c == HAT and HELP:
            A(f"""
            s_and_b32 s{sT0}, s{W}, 1
            s_add_u32 s{sT0}, s{sT0}, s{s_head}
            s_and_b32 s{sT0}, s{sT0}, 3
            s_lshr_b32 s{sT1}, s{W}, 1
            s_lshl_b32 s{sT1}, s{sT1}, 2
            s_add_u32 s{sT0}, s{sT0}, s{sT1}
            s_lshl_b32 s{sT0}, s{sT0}, 16
            s_lshr_b32 s{sT1}, s{s_head}, 2
            s_lshl_b32 s{sT1}, s{sT1}, 10
            s_add_u32 s{sT0}, s{sT0}, s{sT1}
            s_add_u32 s{sT0}, s{sT0}, {HELP*524288}
            """)
            bits(X0, [(3, 3, 13), (0, 3, 7)])
            for n in range(NH):
                A(f"buffer_load_dword {v(D0+55)}, {v(X0)}, {srd(SRD_WV)}, s{sT0} offen\ns_add_u32 s{sT0}, s{sT0}, 524288")
        if c == EL:
            A(f"""
            v_lshlrev_b32 {v(X1)}, 2, v1
            s_lshl_b32 s{sT1}, s{s_head}, 8
            s_add_u32 s{sT1}, s{sT1}, {FLAG_KV}
            buffer_load_dword {v(D0+50)}, {v(X1)}, {srd(SRD_DBG)}, 0 offen sc1
            buffer_load_dword {v(D0+51)}, {v(X1)}, {srd(SRD_WS)}, s{sT1} offen sc1
            """)
        if c == EL + 10:
            A(f"""
            v_readlane_b32 s{sEARLY}, {v(D0+50)}, {DBG_RARM//4}
            v_readlane_b32 s{sT1}, {v(D0+50)}, {DBG_OVH//4}
            v_cmp_ne_u32 vcc, 4, {v(D0+51)}
            s_cmp_eq_u32 s{sT1}, 0
            s_cselect_b32 s{sMODE}, 0, 1
            s_ff1_i32_b64 s{sKV}, vcc
            s_cmp_lt_i32 s{sKV}, 0
            s_cselect_b32 s{sKV}, 64, s{sKV}
            s_mov_b32 s{sWARMED}, 0
            """)
            if merged:
                A(f"""
                s_cmp_lg_u32 s{W}, 3
                s_cbranch_scc1 {L('nwe')}
                s_cmp_lt_u32 s{sKV}, {WARMD + 1}
                s_cbranch_scc1 {L('nwe')}
                """)
                warm0()
                A(f"s_mov_b32 s{sWARMED}, 1\n{L('nwe')}:")
        if c == NCH - 10:
            A(f"s_mov_b32 s{sT0}, {WS_PART}")
            for i in range(4):
                A(f"buffer_load_dwordx4 {v(D0+28+4*i,4)}, {v(vRED)}, {srd(SRD_WS)}, s{sT0} offen offset:{i*1024} sc1")
            for sl in range(3):
                A(f"s_mov_b32 s{sT0}, {WS_MEMB + sl*MSLOT}")
                A(f"buffer_load_dword {v(D0+46)}, {v(vPUB)}, {srd(SRD_WS)}, s{sT0} offen sc1")
    stamp(A, 9, s_id=s_head)
    hstamp(A, 13)
    AQ, AK, AV = D0, D0 + 4, D0 + 8
    AS = [D0 + 12 + 4 * i for i in range(4)]
    WR = [D0 + 28, D0 + 36, D0 + 44]
    korder = [16, 17] + list(range(16))
    wvl = [kk for kk in korder if kk != 17]
    lg = LQ(A, "lgkmcnt")
    def wvread(f):
        if x_nowv: return
        o = wvl[f] * 2048; d = WR[f % 3]
        A(f"ds_read_b128 {v(d,4)}, {v(vWV)} offset:{o}")
        A(f"ds_read_b128 {v(d+4,4)}, {v(vWV)} offset:{o+1024}")
        lg.push(f"W{f}", 2)
    def zero_acc():
        for i in range(12): A(f"v_mov_b32 {v(AQ+i)}, 0")
    def kv_wait(s_need, lab):
        A(f"""
        s_cmp_ge_u32 s{sKV}, s{s_need}
        s_cbranch_scc1 {lab}_ok
        s_waitcnt vmcnt(0)
        s_lshl_b32 s{sT1}, s{s_head}, 8
        s_add_u32 s{sT1}, s{sT1}, {FLAG_KV}
        v_lshrrev_b32 {v(TMP)}, 2, {v(vCON)}
        v_and_b32 {v(TMP)}, 255, {v(TMP)}
{lab}_p:
        buffer_load_dword {v(D0+40)}, {v(TMP)}, {srd(SRD_WS)}, s{sT1} offen sc1
        s_sub_u32 s{sSPIN}, s{sSPIN}, 1
        s_cbranch_scc1 {abort}
        s_waitcnt vmcnt(0)
        v_cmp_ne_u32 vcc, 4, {v(D0+40)}
        s_ff1_i32_b64 s{sKV}, vcc
        s_cmp_lt_i32 s{sKV}, 0
        s_cselect_b32 s{sKV}, 64, s{sKV}
        s_cmp_ge_u32 s{sKV}, s{s_need}
        s_cbranch_scc1 {lab}_ok
        s_sleep 4
        s_branch {lab}_p
{lab}_ok:
        """)
    A(f"""
    s_mov_b32 s{sSPIN}, {SPIN}
    v_lshlrev_b32 {v(T1)}, 2, v1
    s_cmp_ge_u32 s{sEARLY}, 32
    s_cbranch_scc1 {L('warmok')}
    s_mov_b32 s{sKV}, 0
    s_mov_b32 s{sWARMED}, 0
{L('warm')}:
    buffer_load_dword {v(T0)}, {v(T1)}, {srd(SRD_DBG)}, 0 offen sc1
    s_sub_u32 s{sSPIN}, s{sSPIN}, 1
    s_cbranch_scc1 {abort}
    s_waitcnt vmcnt(0)
    v_readlane_b32 s{sT0}, {v(T0)}, {DBG_RARM//4}
    v_readlane_b32 s{sT1}, {v(T0)}, {DBG_OVH//4}
    s_cmp_lt_u32 s{sT0}, 32
    s_cbranch_scc1 {L('warm')}
    s_cmp_eq_u32 s{sT1}, 0
    s_cselect_b32 s{sMODE}, 0, 1
{L('warmok')}:
    """)
    if merged:
        A(f"""
        s_cmp_lg_u32 s{W}, 3
        s_cbranch_scc1 {L('nkvi')}
        s_cmp_eq_u32 s{sWARMED}, 1
        s_cbranch_scc1 {L('nkvi')}
        s_waitcnt vmcnt(0)
        s_mov_b32 s{sT0}, {WARMD + 1}
        """)
        kv_wait(sT0, L('kvi'))
        warm0()
        A(f"{L('nkvi')}:")
    A(f"""
    s_mov_b32 s{sSTEP}, 0
    s_mov_b32 s{sPW}, {WS_PART}
    s_mov_b32 s{sMA}, {WS_MEMB + 2*MSLOT}
    s_mov_b32 s{sMW}, {WS_MEMB}
    s_mov_b32 s{sMR}, {WS_MEMB + MSLOT}
    s_lshl_b32 s{sSEG}, s{s_head}, 13
    s_mov_b32 s{sWOF}, 0x40000000
    s_cmp_lg_u32 s{W}, 3
    s_cselect_b32 s{sPRG}, s{sWOF}, s{sPRG}
    s_mov_b32 s{sKVO}, s{sWOF}
    s_cbranch_scc1 {L('nw3i')}
    s_lshl_b32 s{sKVO}, s{s_head}, 8
    s_add_u32 s{sKVO}, s{sKVO}, {FLAG_KV}
    v_lshlrev_b32 {v(vPUB)}, 2, v1
    s_mov_b32 s{sWOF}, {WS_KX + WARMD*RECSZ}
    v_lshlrev_b32 {v(vRED)}, 7, v1
    v_mov_b32 {v(vSP)}, 0
{L('nw3i')}:
    s_cmp_eq_u32 s{W}, 3
    s_movk_i32 s{sT0}, 2048
    s_cselect_b32 s{sT0}, 1024, s{sT0}
    v_subrev_u32 v1, s{sT0}, {v(vCON)}
    s_waitcnt vmcnt(0) lgkmcnt(0)
    s_barrier
    """)
    zero_acc()
    if prof: A("v_mov_b32 v1, 0\ns_memtime s[98:99]\ns_waitcnt lgkmcnt(0)")
    TS(6)
    if merged: A(f"s_cmp_eq_u32 s{sMODE}, 1\ns_cbranch_scc1 {L('loopS0')}x")
    if cnt: A("s_mov_b32 s20, 0\ns_mov_b32 s21, 0\ns_memtime s[96:97]\ns_memrealtime s[98:99]\ns_waitcnt lgkmcnt(0)\ns_mov_b32 s99, s96")
    RL = D0 + 52
    def sm(acc, a_, b): A(f"v_smfmac_f32_16x16x64_bf16 {v(acc,4)}, {a_}, {b}, {v(IDX)}")
    def mf(d, a_, b_, first):
        A(f"v_mfma_f32_16x16x32_bf16 {v(d,4)}, {a_}, {b_}, {'0' if first else v(d,4)}")
    def chk(r, br):
        A(f"""
        v_max3_u32 {v(TMP)}, {v(r)}, {v(r+1)}, {v(r+2)}
        v_max_u32 {v(TMP)}, {v(TMP)}, {v(r+3)}
        v_cmp_eq_u32 vcc, -1, {v(TMP)}
        {br}
        """)
    def spin(): A(f"s_sub_u32 s{sSPIN}, s{sSPIN}, 1\ns_cbranch_scc1 {abort}")
    def cload(r, so): A(f"buffer_load_dwordx4 {v(r,4)}, {v(vC1)}, {srd(SRD_WS)}, s{so} offen{ld}")
    def pk2(d, s_):
        A(f"v_cvt_pk_bf16_f32 {v(d)}, {v(s_)}, {v(s_+1)}")
        A(f"v_cvt_pk_bf16_f32 {v(d+1)}, {v(s_+2)}, {v(s_+3)}")
    def step_body(par, sc, md):
        LP = lambda n: L(n + md + str(par))
        nxt_loop = L('loop' + md + str(1 - par))
        A.label(LP('loop'))
        A("s_waitcnt vmcnt(2)")
        A.label(LP('loop') + "x")
        lg.clear()
        A(f"""
        s_mov_b32 s{sT3}, s{sMA}
        s_mov_b32 s{sMA}, s{sMW}
        s_mov_b32 s{sMW}, s{sMR}
        s_mov_b32 s{sMR}, s{sT3}
        s_mov_b32 s{sSPIN}, {SPIN}
        s_sub_u32 s{sT0}, s{sMA}, {HI}
        s_add_u32 s{sT1}, s{sT0}, s{sB1}
        s_add_u32 s{sT2}, s{sT0}, {(R1N-1)*1024}
        s_add_u32 s{sT3}, s{sT0}, s{sB3}
        s_add_u32 s{sT0}, s{sT0}, s{sB2}
        s_add_u32 s{sT4}, s{sSEG}, {WS_KX - HI}
        s_add_u32 m0, s{sWB}, {L_MEMF + R1N*1024}
        """)
        for f in range(3): wvread(f)
        A(f"s_cmp_lt_u32 s{W}, 2\ns_cbranch_scc1 {LP('cdj')}")
        if CD: A(f"s_sleep {CD}")
        TQ("cgo")
        def cload2(r):
            A(f"buffer_load_dwordx4 {v(r,4)}, {v(vC1)}, {srd(SRD_WS)}, s{sT1} offen sc1")
            A(f"buffer_load_dwordx4 {v(r+4,4)}, {v(vC1)}, {srd(SRD_WS)}, s{sT0} offen offset:1024 sc1")
        def cproc(r, y, br):
            A(f"""
            s_waitcnt vmcnt({y+1})
            ds_write_b128 {v(vC1)}, {v(r,4)} offset:{L_MEMF-HI}
            v_max3_u32 {v(TMP)}, {v(r)}, {v(r+1)}, {v(r+2)}
            s_waitcnt vmcnt({y})
            ds_write_b128 {v(vC1)}, {v(r+4,4)} offset:{L_MEMF-HI+1024}
            v_max3_u32 {v(TMP)}, {v(TMP)}, {v(r+3)}, {v(r+4)}
            v_max3_u32 {v(TMP)}, {v(TMP)}, {v(r+5)}, {v(r+6)}
            v_max_u32 {v(TMP)}, {v(TMP)}, {v(r+7)}
            v_cmp_eq_u32 vcc, -1, {v(TMP)}
            {br}
            """)
        if CGAP:
            cload2(AS[0]); A(f"s_sleep {CGAP}" if CGAP > 0 else f"s_nop {-CGAP}"); cload2(AS[2])
            A.label(LP('cp'))
            cproc(AS[0], 2, f"s_cbranch_vccnz {LP('cf')}")
        else:
            A.label(LP('cp'))
            cload2(AS[2]); spin()
            cproc(AS[2], 0, f"s_cbranch_vccnz {LP('cp')}")
        A.label(LP('cdj'))
        TQ("cdj")
        A("s_waitcnt lgkmcnt(0)\ns_barrier")
        if trace: TR(4); A("s_waitcnt lgkmcnt(0)")
        lg.clear()
        if cnt: A(f"s_sub_u32 s96, {SPIN}, s{sSPIN}\ns_add_u32 s20, s20, s96")
        PH(0)
        slot = lambda i: (i & 3) if i < 12 else (i - 12) % 3
        prev_user = lambda j: j - 4 if j < 15 else j - 3
        def aread(i):
            A(f"ds_read_b128 {v(AS[slot(i)],4)}, {v(vAF)} offset:{L_MEMF-HI+i*512}")
            lg.push(f"A{i}")
        def dma(so): A(f"buffer_load_dwordx4 {v(vCON)}, {srd(SRD_WS)}, s{so} offen sc1 lds")
        KXR = [D0 + 44, D0 + 48, D0 + 28, D0 + 32, D0 + 36, D0 + 40, D0 + 28, D0 + 32]
        VXF = [D0 + 52, D0 + 24]
        def kxread(n):
            A(f"ds_read_b128 {v(KXR[n],4)}, {v(vKX)} offset:{L_KX-HI+(n>>1)*2048+(n&1)*128}")
            lg.push(f"X{n}")
        TQ("start")
        aread(0); aread(1)
        if CGAP: A("s_waitcnt vmcnt(0)")
        aread(2); aread(3)
        f = 0
        nxt = 4
        late = []
        slow_n = [0]
        for i, kk in enumerate(korder):
            a_ = v(AS[slot(i)], 4)
            TQ(f"q{i}")
            lg.wait(f"A{i}")
            sm(AQ, a_, WQ(kk))
            if i == FAT and merged: A(f"buffer_store_dword {v(vSP)}, off, {srd(SRD_WS)}, s{sPRG} sc1"); slow_n[0] += 1
            if i == WAT and not nowarm: A(f"buffer_load_dword {v(TMP)}, {v(vRED)}, {srd(SRD_WS)}, s{sT3} offen sc1"); slow_n[0] += 1
            if i == WAT + 1 and not nowarm: A(f"buffer_load_dword {v(TMP)}, {v(vRED)}, {srd(SRD_WS)}, s{sT2} offen sc1"); slow_n[0] += 1
            if i == WAT + 3 and merged: A(f"buffer_load_dword {v(TMP)}, {v(vPUB)}, {srd(SRD_WS)}, s{sKVO} offen sc1"); slow_n[0] += 1
            if i == R2AT: dma(sT2)
            if i in (R2AT + 1, R2AT + 2): dma(sT4)
            if i == R3AT: dma(sT3)
            if i == R3AT + 1: A(f"buffer_load_dwordx4 {v(VXF[0],4)}, {v(vVX)}, {srd(SRD_WS)}, s{sT0} offen sc1")
            sm(AK, a_, WK(kk))
            if i == R2AT: A(f"s_add_u32 m0, s{sWB}, {L_KX}")
            if i == R2AT + 1: A(f"s_add_u32 m0, s{sWB}, {L_KX + 4096}\ns_add_u32 s{sT4}, s{sT4}, 4096")
            if i == R2AT + 2: A(f"s_mov_b32 m0, s{sM3}\ns_add_u32 s{sT0}, s{sSEG}, {WS_VX}")
            if i in (B2AT, B3AT):
                A(f"s_waitcnt vmcnt({2 + slow_n[0]})\ns_barrier")
                while prev_user(nxt) < i: aread(nxt); nxt += 1
            if i == 8: A(f"s_lshr_b32 s{sT2}, s{sSEG}, 1")
            if i == 9: A(f"s_add_u32 s{sT1}, s{sT2}, {0x40000000 if nokm else WS_VM - L_Q}\ns_add_u32 s{sT4}, s{sT2}, {0x40000000 if nokm else WS_KM - L_Q}")
            if i == 10: A(f"s_add_u32 s{sT3}, s{sSEG}, s{sWOF}\ns_add_u32 s{sT2}, s{sT3}, {WS_VX - WS_KX}")
            if kk == 17:
                sm(AV, a_, v(WVR, 8))
            elif i >= 16:
                late.append((a_, f)); f += 1
            else:
                lg.wait(f"W{f}")
                sm(AV, a_, v(WR[f % 3], 8))
                if f + 3 < 17: wvread(f + 3)
                f += 1
            lim = 2*R1N-1 if i < B2AT else (2*R1N+7 if i < B3AT else 17)
            while nxt <= lim and prev_user(nxt) <= i: aread(nxt); nxt += 1
            if i == 11: A(f"buffer_load_dwordx4 {v(VXF[1],4)}, {v(vVX)}, {srd(SRD_WS)}, s{sT0} offen offset:256 sc1")
            if i == 15: kxread(0); kxread(1)
        assert nxt == 18 and WAT + 3 <= 17 and FAT < WAT + 3 and WAT >= 12 and FAT >= 12 and B3AT >= 12 and R3AT + 1 <= 11
        TQ("qend")
        QF = [D0 + 0, D0 + 4]; KF = [D0 + 16, D0 + 20]
        KP, ZP = D0 + 12, D0 + 14
        def latev(n):
            a_, f_ = late[n]
            lg.wait(f"W{f_}")
            sm(AV, a_, v(WR[f_ % 3], 8))
        def qk_write():
            pk2(AQ, AQ)
            A(f"ds_write_b64 {v(vQW)}, {v(AQ,2)}")
            pk2(KP, AK)
            A(f"ds_write_b64 {v(vQW)}, {v(KP,2)} offset:{L_K-L_Q}")
        latev(0)
        kxread(2); kxread(3)
        if MW == 1: A("s_nop 3")
        else: A("s_nop 0")
        TQ("s2a")
        qk_write(); lg.push("qk", 2)
        latev(1)
        kxread(4); kxread(5)
        A(f"""
        v_cmp_u_f32 vcc, {v(AK)}, {v(AK+1)}
        v_cmp_u_f32 s[{sRDLY2}:{sRDLY2+1}], {v(AK+2)}, {v(AK+3)}
        s_or_b64 vcc, vcc, s[{sRDLY2}:{sRDLY2+1}]
        s_cbranch_vccnz {LP('slow')}
        """)
        A.label(LP('slowret'))
        if par == (last & 1):
            A(f"s_cmp_eq_u32 s{sSTEP}, {last}\ns_cbranch_scc1 {L('done')}")
        TQ("s2c")
        lg.wait("qk")
        A("s_barrier")
        TQ("s2end")
        def qk_reads(fb):
            b = fb & 1
            for (dst, base, tg) in ((QF[b], 0, "Q"), (KF[b], L_K - L_Q, "K")):
                A(f"ds_read_b64_tr_b16 {v(dst,2)}, {v(vQR)} offset:{base+fb*512}")
                A(f"ds_read_b64_tr_b16 {v(dst+2,2)}, {v(vQR)} offset:{base+fb*512+128}")
                lg.push(f"{tg}{fb}", 2)
        qk_reads(0); qk_reads(1)
        pk2(ZP, AV)
        ST = [D0 + 8, KXR[0], KXR[1]]
        VMT = D0 + 36; ON1 = D0 + 16; ON2 = D0 + 20
        M0_, M1_ = D0 + 42, D0 + 43
        PX = D0 + 0; PM = PX + 4
        for fb in range(4):
            b = fb & 1
            TQ(f"fb{fb}")
            for kt in range(2):
                n = 2 * fb + kt
                lg.wait(f"Q{fb}"); lg.wait(f"X{n}")
                mf(ST[kt], v(KXR[n], 4), v(QF[b], 4), fb == 0)
                if n in (2, 3): kxread(n + 4)
                if n == 0: A(f"buffer_store_dwordx2 {v(KP,2)}, {v(vQW)}, {srd(SRD_WS)}, s{sT4} offen sc1")
                if n == 3: A(f"buffer_store_dwordx2 {v(ZP,2)}, {v(vQW)}, {srd(SRD_WS)}, s{sT1} offen sc1")
                if n == 4: A(f"v_cndmask_b32 {v(VMT)}, 0, {v(ZP)}, s[{sLO32}:{sLO32+1}]\nv_cndmask_b32 {v(VMT+1)}, 0, {v(ZP+1)}, s[{sLO32}:{sLO32+1}]")
                if n == 5: A(f"v_mov_b32 {v(VMT+2)}, 0\nv_mov_b32 {v(VMT+3)}, 0")
                if n == 6: A(f"v_mov_b32 {v(ON1)}, 0x3f803f80\nv_mov_b32 {v(ON1+1)}, 0x3f803f80")
                if n == 7: A(f"v_mov_b32 {v(ON1+2)}, 0x3f803f80\nv_mov_b32 {v(ON1+3)}, 0x3f803f80")
            lg.wait(f"K{fb}")
            mf(ST[2], v(KF[b], 4), v(QF[b], 4), fb == 0)
            if fb + 2 < 4: qk_reads(fb + 2)
            if fb == 2:
                A(f"v_cndmask_b32 {v(VMT+4)}, 0, {v(ZP)}, s[{sHI32}:{sHI32+1}]\nv_cndmask_b32 {v(VMT+5)}, 0, {v(ZP+1)}, s[{sHI32}:{sHI32+1}]")
        TQ("scend")
        SR = [ST[t] + r for t in range(3) for r in range(4)]
        A(f"v_mov_b32 {v(ON2)}, 0x3f003f00\nv_mov_b32 {v(ON2+1)}, 0x3f003f00\nv_mov_b32 {v(ON2+2)}, 0\nv_mov_b32 {v(ON2+3)}, 0")
        A(f"""
        v_max3_f32 {v(M0_)}, {v(SR[0])}, {v(SR[1])}, {v(SR[2])}
        s_nop 0
        v_max3_f32 {v(M1_)}, {v(SR[3])}, {v(SR[4])}, {v(SR[5])}
        v_max3_f32 {v(M0_)}, {v(M0_)}, {v(SR[6])}, {v(SR[7])}
        v_max3_f32 {v(M1_)}, {v(M1_)}, {v(SR[8])}, {v(SR[9])}
        v_max3_f32 {v(M0_)}, {v(M0_)}, {v(SR[10])}, {v(SR[11])}
        v_max_f32 {v(M0_)}, {v(M0_)}, {v(M1_)}
        v_max_f32 {v(M1_)}, {v(M0_)}, {v(M1_)}
        v_mov_b32 {v(D0+12)}, 0
        v_mov_b32 {v(D0+13)}, 0
        v_permlane32_swap_b32 {v(M0_)}, {v(M1_)}
        v_max_f32 {v(M0_)}, {v(M0_)}, {v(M1_)}
        v_max_f32 {v(M1_)}, {v(M0_)}, {v(M1_)}
        v_mov_b32 {v(D0+14)}, 0
        v_mov_b32 {v(D0+15)}, 0
        v_permlane16_swap_b32 {v(M0_)}, {v(M1_)}
        v_max_f32 {v(M0_)}, {v(M0_)}, {v(M1_)}
        v_mul_f32 {v(M0_)}, s{sC}, {v(M0_)}
        """)
        for i in range(6):
            A(f"v_pk_fma_f32 {v(SR[2*i],2)}, {v(SR[2*i],2)}, s[{sC}:{sC+1}], {v(M0_,2)} op_sel_hi:[1,1,0] neg_lo:[0,0,1] neg_hi:[0,0,1]")
        for i in range(12):
            A(f"v_exp_f32 {v(SR[i])}, {v(SR[i])}")
            if i >= 2 and i % 2 == 0: A(f"v_cvt_pk_bf16_f32 {v(PX+i//2-1)}, {v(SR[i-2])}, {v(SR[i-1])}")
        OT, OT1, LS = D0 + 28, D0 + 32, D0 + 8
        TQ("expend")
        A(f"""
        s_waitcnt vmcnt({2 + slow_n[0]})
        v_cvt_pk_bf16_f32 {v(PX+5)}, {v(SR[10])}, {v(SR[11])}
        v_mfma_f32_16x16x32_bf16 {v(LS,4)}, {v(ON1,4)}, {v(PX,4)}, 0
        v_mfma_f32_16x16x32_bf16 {v(OT,4)}, {v(VXF[0],4)}, {v(PX,4)}, 0
        v_mfma_f32_16x16x32_bf16 {v(LS,4)}, {v(ON2,4)}, {v(PM,4)}, {v(LS,4)}
        v_mfma_f32_16x16x32_bf16 {v(OT,4)}, {v(VMT,4)}, {v(PM,4)}, {v(OT,4)}
        v_mfma_f32_16x16x32_bf16 {v(OT1,4)}, {v(VXF[1],4)}, {v(PX,4)}, 0
        v_mfma_f32_16x16x32_bf16 {v(OT1,4)}, {v(VMT+2,4)}, {v(PX+2,4)}, {v(OT1,4)}
        """)
        WAo = [D0 + 44, D0 + 48, D0 + 12, D0 + 16]
        WA8 = D0 + 20
        OF = [D0 + 0, D0 + 4, D0 + 36, D0 + 40]
        zl = [WAo[p] + i for p in (0, 1, 3) for i in range(4)]
        npre = 5 if MW == 1 else 0
        for r in zl[:npre]: A(f"v_mov_b32 {v(r)}, 0")
        A(f"v_rcp_f32 {v(M0_)}, {v(LS)}")
        A(f"v_mov_b32 {v(zl[npre])}, 0")
        if MW > 1: A(f"v_mov_b32 {v(zl[npre+1])}, 0"); npre += 1
        A(f"v_pk_mul_f32 {v(OT,2)}, {v(OT,2)}, {v(M0_,2)} op_sel_hi:[1,0]")
        A(f"v_pk_mul_f32 {v(OT+2,2)}, {v(OT+2,2)}, {v(M0_,2)} op_sel_hi:[1,0]")
        pk2(OT, OT)
        A(f"ds_write_b64 {v(vOW)}, {v(OT,2)}")
        A(f"v_pk_mul_f32 {v(OT1,2)}, {v(OT1,2)}, {v(M0_,2)} op_sel_hi:[1,0]")
        A(f"v_pk_mul_f32 {v(OT1+2,2)}, {v(OT1+2,2)}, {v(M0_,2)} op_sel_hi:[1,0]")
        pk2(OT1, OT1)
        A(f"ds_write_b64 {v(vOW)}, {v(OT1,2)} offset:256")
        for r in zl[npre+1:]: A(f"v_mov_b32 {v(r)}, 0")
        A(f"""
        s_add_u32 s{sT0}, s{sPW}, {4*65536}
        s_add_u32 s{sT1}, s{sPW}, {65536}
        s_waitcnt lgkmcnt(0)
        """)
        TQ("smend")
        PH(4)
        A("s_barrier")
        if trace: TR(0); A("s_waitcnt lgkmcnt(0)")
        lg.clear()
        for ks in range(4):
            A(f"ds_read_b128 {v(OF[ks],4)}, {v(vAF)} offset:{L_O-HI+ks*512}"); lg.push(f"O{ks}")
        SEL = D0 + 36; RT = D0 + 40; RDd = D0 + 20; RBS = [[D0 + 28, D0 + 32, D0 + 52, D0 + 24], [D0 + 44, D0 + 48, D0 + 12, D0 + 16]]
        A(f"""
        s_add_u32 s{sT2}, s{sPW}, {2*65536}
        s_add_u32 s{sT3}, s{sPW}, {3*65536}
        s_add_u32 s{sSTEP}, s{sSTEP}, 1
        s_add_u32 s{sSEG}, s{sSEG}, {0 if fixseg else RECSZ}
        s_mov_b32 s{sSPIN}, {SPIN}
        """)
        TQ("wostart")
        PH(5)
        tagop = lambda r: (f"v_or_b32 {v(r)}, 1, {v(r)}" if par else f"v_and_b32 {v(r)}, -2, {v(r)}")
        def out_ops(a0, soff, half=False):
            ops = [f"v_cvt_pk_bf16_f32 {v(a0)}, {v(a0)}, {v(a0+1)}", f"v_cvt_pk_bf16_f32 {v(a0+1)}, {v(a0+2)}, {v(a0+3)}",
                   tagop(a0), tagop(a0 + 1)]
            st = f"buffer_store_dwordx2 {v(a0,2)}, {v(vPST)}, {srd(SRD_WS)}, s{soff} offen{sc}"
            if half: st = f"s_mov_b64 exec, s[{sLO32}:{sLO32+1}]\n{st}\ns_mov_b64 exec, -1"
            return ops + [st]
        mfl = [("d", ks) for ks in range(4)] + [(p, ks) for p in range(4) for ks in range(4)]
        groups = [(3, out_ops(WA8, sT0, True))] + [(7 + 4 * p, out_ops(WAo[p], [sPW, sT1, sT2, sT3][p])) for p in range(4)]
        ic = [0]; pos = {}
        def emit(s_):
            A(s_); ic[0] += len([x for x in s_.split("\n") if x.strip()])
        cur = []; gi = 0
        for n, (p, ks) in enumerate(mfl):
            if p == "d":
                n0 = len(A.lines); lg.wait(f"O{ks}"); ic[0] += len(A.lines) - n0
                emit(f"v_mfma_f32_16x16x32_bf16 {v(WA8,4)}, {v(OF[ks],4)}, {WO8(ks)}, {'0' if ks == 0 else v(WA8,4)}")
            else:
                emit(f"v_smfmac_f32_16x16x64_bf16 {v(WAo[p],4)}, {v(OF[ks],4)}, {WO(p,ks)}, {v(IDX)}")
            ic[0] += MW - 1
            pos[n] = ic[0]
            k = 0
            while k < 2:
                if not cur and gi < len(groups) and groups[gi][0] <= n and ic[0] - pos[groups[gi][0]] >= (9 if MW > 1 else 8):
                    cur = list(groups[gi][1]); gi += 1
                if not cur: break
                emit(cur.pop(0)); k += 1
        while cur or gi < len(groups):
            if not cur:
                need = 8 - (ic[0] - pos[groups[gi][0]])
                if need > 0: emit(f"s_nop {need-1}"); ic[0] += need - 1
                cur = list(groups[gi][1]); gi += 1
            emit(cur.pop(0))
        TQ("woend")
        PH(6)
        TR(1)
        A(f"s_cmp_eq_u32 s{sRED}, 0\ns_cbranch_scc1 {LP('nored')}")
        def rload(sidx):
            for i in range(4):
                A(f"buffer_load_dwordx4 {v(RBS[sidx][i],4)}, {v(vRED)}, {srd(SRD_WS)}, s{sPW} offen offset:{i*1024}{ld}")
        def rproc(sidx, br):
            for i in range(4):
                b = RBS[sidx][i]
                A(f"s_waitcnt vmcnt({(7 if RGAP else 3)-i})")
                mf(RDd, v(SEL, 4), v(b, 4), i == 0)
                o3 = (lambda d, x, y, z: f"v_bitop3_b32 {v(d)}, {v(x)}, {v(y)}, {v(z)} bitop3:0x80") if par else (lambda d, x, y, z: f"v_or3_b32 {v(d)}, {v(x)}, {v(y)}, {v(z)}")
                if i == 0:
                    A(o3(RT, b, b + 1, b + 2)); A(o3(RT, RT, b + 3, b + 3))
                else:
                    A(o3(RT, RT, b, b + 1)); A(o3(RT, RT, b + 2, b + 3))
            A(f"v_and_b32 {v(RT)}, 1, {v(RT)}\nv_cmp_ne_u32 vcc, {par}, {v(RT)}\n{br}")
        A(f"""
        s_mov_b32 s{sT0}, s{sRDLY}
    {LP('rdl')}:
        s_cmp_eq_u32 s{sT0}, 0
        s_cbranch_scc1 {LP('rgo')}
        s_sleep 1
        s_sub_u32 s{sT0}, s{sT0}, 1
        s_branch {LP('rdl')}
    {LP('rgo')}:
        """)
        TQ("rgo")
        rload(0)
        zero_acc()
        for r in range(4): A(f"v_cndmask_b32 {v(SEL+r)}, 0, {v(SELV)}, s[{sSEL+2*r}:{sSEL+2*r+1}]")
        if RGAP:
            if RGAP > 0: A(f"s_sleep {RGAP}")
            rload(1)
        A.label(LP('rp0'))
        rproc(0, f"s_cbranch_vccnz {LP('rf0')}")
        A.label(LP('rdone'))
        TQ("rdone")
        A(f"""
        {'s_sub_u32 s96, %d, s%d' % (SPIN, sSPIN) if cnt else 's_nop 0'}
        {'s_add_u32 s21, s21, s96' if cnt else 's_nop 0'}
        s_nop 0
        v_cndmask_b32 {v(RT)}, {v(RDd)}, {v(RDd+2)}, s[{sHI32}:{sHI32+1}]
        v_cndmask_b32 {v(RT+1)}, {v(RDd+1)}, {v(RDd+3)}, s[{sHI32}:{sHI32+1}]
        v_cndmask_b32 {v(RT+3)}, {v(RT+1)}, {v(RT)}, s[{sN8}:{sN8+1}]
        v_cndmask_b32 {v(RT+2)}, {v(RT)}, {v(RT+1)}, s[{sN8}:{sN8+1}]
        s_nop 0
        v_add_f32_dpp {v(RT+2)}, {v(RT+3)}, {v(RT+2)} row_ror:8 row_mask:0xf bank_mask:0xf
        v_mov_b32 {v(RT+3)}, {v(RT+2)}
        s_nop 1
        v_permlane16_swap_b32 {v(RT+2)}, {v(RT+3)}
        v_cvt_pk_bf16_f32 {v(RT+2)}, {v(RT+2)}, {v(RT+3)}
        v_min_u32 {v(TMP)}, -2, {v(RT+2)}
        s_mov_b64 exec, s[{sPM}:{sPM+1}]
        buffer_store_dword {v(TMP)}, {v(vPUB)}, {srd(SRD_WS)}, s{sMW} offen{sc}
        buffer_store_dword {v(vSP)}, {v(vPUB)}, {srd(SRD_WS)}, s{sMA} offen{sc}
        s_mov_b64 exec, -1
        """)
        TQ("pub")
        PH(7)
        TR(2)
        if trace: A("s_waitcnt lgkmcnt(0)")
        A(f"s_branch {nxt_loop}")
        A.label(LP('nored'))
        if trace: A("s_waitcnt vmcnt(0)"); TR(2); A("s_waitcnt lgkmcnt(0)")
        zero_acc()
        if merged:
            A(f"""
            s_cmp_lg_u32 s{W}, 3
            s_cbranch_scc1 {LP('nkv')}
            v_mov_b32 {v(vSP)}, s{sSTEP}
            s_cmp_ge_u32 s{sKV}, 64
            s_cbranch_scc1 {LP('nkv')}
            s_waitcnt vmcnt(7)
            v_cmp_ne_u32 vcc, 4, {v(TMP)}
            s_ff1_i32_b64 s{sKV}, vcc
            s_cmp_lt_i32 s{sKV}, 0
            s_cselect_b32 s{sKV}, 64, s{sKV}
            s_cselect_b32 s{sKVO}, 0x40000000, s{sKVO}
            s_add_u32 s{sT0}, s{sSTEP}, {WARMD + 1}
            s_min_u32 s{sT0}, s{sT0}, 64
            """)
            kv_wait(sT0, LP('kv'))
            A.label(LP('nkv'))
        if tstep:
            A(f"s_cmp_lg_u32 s{W}, 2\ns_cbranch_scc1 {LP('nts')}\ns_memrealtime s[96:97]\ns_waitcnt lgkmcnt(0)\ns_mov_b32 m0, s{sSTEP}\nv_writelane_b32 {v(vSP)}, s96, m0\n{LP('nts')}:")
        if CDN: A(f"s_sleep {CDN}")
        A(f"s_branch {nxt_loop}x")
        A.label(LP('rf0'))
        rload(0); spin()
        if RGAP:
            rproc(1, f"s_cbranch_vccz {LP('rdone')}")
            rload(1); spin()
        A(f"s_branch {LP('rp0')}")
        if CGAP:
            A.label(LP('cf'))
            cload2(AS[0]); spin()
            cproc(AS[2], 2, f"s_cbranch_vccz {LP('cok')}")
            cload2(AS[2]); spin()
            A(f"s_branch {LP('cp')}")
            A(f"{LP('cok')}:\ns_waitcnt vmcnt(0)\ns_branch {LP('cdj')}")
        A.label(LP('slow'))
        A(f"s_sub_u32 s97, s{sMA}, {HI}\ns_waitcnt lgkmcnt(0)\ns_nop 7")
        zero_acc()
        for kp in range(9):
            lab = LP(f'sp{kp}_')
            for h in range(2):
                kk = 2 * kp + h
                if kk != 17:
                    A(f"ds_read_b128 {v(WR[h],4)}, {v(vWV)} offset:{kk*2048}\nds_read_b128 {v(WR[h]+4,4)}, {v(vWV)} offset:{kk*2048+1024}")
            A(f"""
{lab}:
            buffer_load_dwordx4 {v(AS[0],4)}, {v(vAF)}, {srd(SRD_WS)}, s97 offen sc1
            buffer_load_dwordx4 {v(AS[1],4)}, {v(vAF)}, {srd(SRD_WS)}, s97 offen offset:512 sc1
            """)
            spin()
            A(f"""
            s_waitcnt vmcnt(0) lgkmcnt(0)
            v_max3_u32 {v(TMP)}, {v(AS[0])}, {v(AS[0]+1)}, {v(AS[0]+2)}
            v_max3_u32 {v(TMP)}, {v(TMP)}, {v(AS[0]+3)}, {v(AS[1])}
            v_max3_u32 {v(TMP)}, {v(TMP)}, {v(AS[1]+1)}, {v(AS[1]+2)}
            v_max_u32 {v(TMP)}, {v(TMP)}, {v(AS[1]+3)}
            v_cmp_eq_u32 vcc, -1, {v(TMP)}
            s_cbranch_vccnz {lab}
            """)
            for h in range(2):
                kk = 2 * kp + h
                sm(AQ, v(AS[h], 4), WQ(kk)); sm(AK, v(AS[h], 4), WK(kk)); sm(AV, v(AS[h], 4), v(WR[h], 8) if kk != 17 else v(WVR, 8))
            A(f"s_add_u32 s97, s97, 1024")
        if prof: A(f"s_mov_b64 exec, {1 << 10}\nv_add_u32 v1, 63, v1\ns_mov_b64 exec, -1")
        if cnt: A("s_add_u32 s20, s20, 0x10000")
        import common
        if common.HST:
            A(f"v_mov_b32 {v(TMP)}, 1\ns_mov_b64 exec, 1\nbuffer_atomic_add {v(TMP)}, off, {srd(SRD_DBG)}, 32 sc1\ns_mov_b64 exec, -1\ns_waitcnt vmcnt(0)")
        A("s_nop 7")
        qk_write()
        for n in range(2, 6): A(f"ds_read_b128 {v(KXR[n],4)}, {v(vKX)} offset:{L_KX-HI+(n>>1)*2048+(n&1)*128}")
        A(f"s_waitcnt lgkmcnt(0)\ns_branch {LP('slowret')}")
    step_body(0, sc, ''); step_body(1, sc, '')
    if merged:
        step_body(0, ' sc1', 'S'); step_body(1, ' sc1', 'S')
    A.label(L('done'))
    A(f"""
    s_lshr_b32 s{sT2}, s{sSEG}, 1
    s_add_u32 s{sT1}, s{sT2}, {WS_VM - L_Q}
    s_add_u32 s{sT4}, s{sT2}, {WS_KM - L_Q}
    buffer_store_dwordx2 {v(D0+12,2)}, {v(vQW)}, {srd(SRD_WS)}, s{sT4} offen sc1
    s_nop 1
    v_cvt_pk_bf16_f32 {v(D0+14)}, {v(D0+8)}, {v(D0+9)}
    v_cvt_pk_bf16_f32 {v(D0+15)}, {v(D0+10)}, {v(D0+11)}
    buffer_store_dwordx2 {v(D0+14,2)}, {v(vQW)}, {srd(SRD_WS)}, s{sT1} offen sc1
    """)
    A("s_waitcnt vmcnt(0) lgkmcnt(0)")
    if merged:
        A(f"""
        s_barrier
        s_cmp_lg_u32 s{W}, 3
        s_cbranch_scc1 {L('nfin')}
        v_mov_b32 {v(TMP)}, 64
        v_mov_b32 {v(D0+52)}, s{sPRG}
        s_mov_b64 exec, 1
        buffer_store_dword {v(TMP)}, {v(D0+52)}, {srd(SRD_WS)}, 0 offen sc1
        s_mov_b64 exec, -1
        s_waitcnt vmcnt(0)
{L('nfin')}:
        """)
    if cnt:
        A(f"v_mov_b32 v1, s20\ns_mov_b64 exec, 2\nv_mov_b32 v1, s21\ns_mov_b64 exec, -1")
        A("s_memtime s[96:97]\ns_memrealtime s[100:101]\ns_waitcnt lgkmcnt(0)\ns_sub_u32 s96, s96, s99\ns_sub_u32 s100, s100, s98")
        A("s_mov_b64 exec, 4\nv_mov_b32 v1, s96\ns_mov_b64 exec, 8\nv_mov_b32 v1, s100\ns_mov_b64 exec, -1")
    if trace:
        for i in range(6): A(f"s_mov_b64 exec, {1 << i}\nv_mov_b32 v1, s{8+2*i}")
        A("s_mov_b64 exec, -1")
    if tq:
        for i in range(len(tq)): A(f"s_mov_b64 exec, {1 << i}\nv_mov_b32 v1, s{8+2*i}")
        A("s_mov_b64 exec, -1")
    if tstart:
        TS(7)
        A("s_mov_b32 s8, s100\ns_mov_b32 s10, s98")
        for i in range(8): A(f"s_mov_b64 exec, {1 << i}\nv_mov_b32 v1, s{8+2*i}")
        A("s_mov_b64 exec, -1")
    if tstep: A(f"v_mov_b32 v1, {v(vSP)}")
    if prof or cnt or trace or tq or tstep or tstart:
        A(f"""
        s_lshl_b32 s96, s{s_head}, 2
        s_add_u32 s96, s96, s{W}
        s_lshl_b32 s96, s96, 8
        s_add_u32 s96, s96, {WS_STAMP + 0x10000}
        v_lshrrev_b32 v28, 2, {v(vCON)}
        v_and_b32 v28, 255, v28
        buffer_store_dword v1, v28, {srd(SRD_WS)}, s96 offen
        s_waitcnt vmcnt(0)
        """)
    stamp(A, 10, s_id=s_head)
    hstamp(A, 14)
```

```python
from common import *
from mod_p import *
from mod_r9 import mod_R
from mod_r4 import SPIN
from mod_xo import *
from mod_f import *

NW = 224
EV_LDS = 16384
sWID, sHEAD, sGRP, sCB, sOG, sXN, sON, sPAR, sITEM, sCG, sTG, sKAP, sSP, sREC = range(76, 90)
sDUE, sIMM, sQT = 94, 95, 59

BC_LDS = 163836
def claim_issue(A, FX=0, JX=0):
    A(f"""
    s_getreg_b32 s59, hwreg(HW_REG_XCC_ID)
    s_and_b32 s59, s59, 15
    """)
    if FX:
        A("s_cmp_ge_u32 s2, 128\ns_cselect_b32 s60, 1, 0\ns_max_u32 s59, s59, s60")
    A(f"""
    s_bfe_u32 s60, s2, 0x50003
    s_xor_b32 s60, s60, {JX}
    s_lshl_b32 s58, s59, 5
    s_add_u32 s58, s58, s60
    v_mov_b32 v30, -1
    v_mov_b32 v31, 0
    s_cmp_lg_u32 s{S_WAVE}, 0
    s_cbranch_scc1 RA_iss
    s_cmp_ge_u32 s59, 8
    s_cbranch_scc1 RA_iss
    s_lshl_b32 s61, 1, s60
    s_mov_b32 s62, {claim_off(0)}
    """)
    for x in range(1, 8):
        A(f"s_cmp_eq_u32 s59, {x}\ns_cselect_b32 s62, {claim_off(x)}, s62")
    A(f"""
    v_mov_b32 v30, s61
    v_mov_b32 v31, s62
    s_mov_b64 exec, 1
    buffer_atomic_or v30, v31, {srd(SRD_DBG)}, 0 offen sc0 sc1
    s_mov_b64 exec, -1
RA_iss:
    """)

def claim_resolve(A, t, younger, abort):
    A(f"""
    s_cmp_lg_u32 s{S_WAVE}, 0
    s_cbranch_scc1 RA{t}_bc
    s_and_b32 s60, s58, 31
    s_waitcnt vmcnt({younger})
RA{t}_try:
    v_readfirstlane_b32 s61, v30
    s_bitcmp0_b32 s61, s60
    s_cbranch_scc1 RA{t}_got
    s_ff0_i32_b32 s60, s61
    s_cmp_lt_i32 s60, 0
    s_cbranch_scc1 RA{t}_ovf
    s_lshl_b32 s61, 1, s60
    v_mov_b32 v30, s61
    s_mov_b64 exec, 1
    buffer_atomic_or v30, v31, {srd(SRD_DBG)}, 0 offen sc0 sc1
    s_mov_b64 exec, -1
    s_waitcnt vmcnt(0)
    s_branch RA{t}_try
RA{t}_got:
    s_lshl_b32 s3, s59, 5
    s_add_u32 s3, s3, s60
    s_branch RA{t}_have
RA{t}_ovf:
    v_mov_b32 v28, 1
    v_mov_b32 v29, {DBG_OVF}
    s_mov_b64 exec, 1
    buffer_atomic_add v28, v29, {srd(SRD_DBG)}, 0 offen sc0 sc1
    s_mov_b64 exec, -1
    s_waitcnt vmcnt(0)
    v_readfirstlane_b32 s61, v28                 ; o
    v_lshlrev_b32 v29, 2, v1
    s_mov_b32 s63, {SPIN}
RA{t}_poll:
    buffer_load_dword v28, v29, {srd(SRD_DBG)}, 0 offen sc1
    s_sub_u32 s63, s63, 1
    s_cbranch_scc1 {abort}
    s_waitcnt vmcnt(0)
    v_readlane_b32 s62, v28, {DBG_OVF//4}
    """)
    for x in range(8):
        A(f"v_readlane_b32 s60, v28, {claim_off(x)//4}\ns_nop 1\nv_writelane_b32 v30, s60, {x}\ns_bcnt1_i32_b32 s60, s60\ns_add_u32 s62, s62, s60")
    A(f"""
    s_cmp_lt_u32 s62, 256
    s_cbranch_scc1 RA{t}_poll
    s_mov_b32 s3, 0
RA{t}_scan:
    s_lshr_b32 s60, s3, 5
    s_nop 3
    v_readlane_b32 s62, v30, s60
    s_and_b32 s60, s3, 31
    s_bitcmp1_b32 s62, s60
    s_cbranch_scc1 RA{t}_nx
    s_cmp_eq_u32 s61, 0
    s_cbranch_scc1 RA{t}_fnd
    s_sub_u32 s61, s61, 1
RA{t}_nx:
    s_add_u32 s3, s3, 1
    s_cmp_lt_u32 s3, 255
    s_cbranch_scc1 RA{t}_scan
RA{t}_fnd:
    s_cmp_ge_u32 s3, 32
    s_cbranch_scc1 RA{t}_have
    v_mov_b32 v28, 1
    v_mov_b32 v29, {DBG_OVH}
    s_mov_b64 exec, 1
    buffer_store_dword v28, v29, {srd(SRD_DBG)}, 0 offen sc1
    s_mov_b64 exec, -1
    s_waitcnt vmcnt(0)
RA{t}_have:
    v_mov_b32 v28, s3
    v_mov_b32 v29, {BC_LDS}
    ds_write_b32 v29, v28
    s_waitcnt lgkmcnt(0)
RA{t}_bc:
    s_barrier
    v_mov_b32 v29, {BC_LDS}
    ds_read_b32 v28, v29
    s_waitcnt lgkmcnt(0)
    v_readfirstlane_b32 s3, v28
    s_barrier
    """)

def wait_ge(A, srd_, off_expr_s, val, abort, vt=250, sleep=8):
    l = A.newlabel("WG")
    A(f"""
    s_mov_b32 s{sSP}, {SPIN}
    v_mov_b32 {v(vt)}, {off_expr_s}
{l}:
    buffer_load_dword {v(vt+1)}, {v(vt)}, {srd(srd_)}, 0 offen sc1
    s_sub_u32 s{sSP}, s{sSP}, 1
    s_cbranch_scc1 {abort}
    s_waitcnt vmcnt(0)
    v_cmp_le_u32 vcc, {val}, {v(vt+1)}
    s_cbranch_vccnz {l}_ok
    s_sleep {sleep}
    s_branch {l}
{l}_ok:
    """)

def signal_wg(A, off, vt=250):
    l = A.newlabel("SG")
    A(f"""
    s_waitcnt vmcnt(0)
    s_barrier
    s_cmp_lg_u32 s{S_WAVE}, 0
    s_cbranch_scc1 {l}
    v_mov_b32 {v(vt)}, {off}
    v_mov_b32 {v(vt+1)}, 1
    s_mov_b64 exec, 1
    buffer_atomic_add {v(vt+1)}, {v(vt)}, {srd(SRD_DBG)}, 0 offen sc1
    s_mov_b64 exec, -1
{l}:
    """)

def acc_t(A, dst):
    import common
    if not common.STAMPS: return
    A(f"s_memrealtime s[96:97]\ns_waitcnt lgkmcnt(0)\ns_sub_u32 s98, s96, s93\ns_add_u32 s{dst}, s{dst}, s98\ns_mov_b32 s93, s96")

def rec_t(A, r):
    import common
    if common.STAMPS: A(f"s_memrealtime s[{r}:{r+1}]\ns_waitcnt lgkmcnt(0)")

def k_merged(A, ropt, EVS=4, PREF=0, FX=0, WDLY=0, TSTEP=170, TMIN=30, QSPLIT=0, IMMD=1, NOEV=0, JX=0, FLAGKS=20, F0FIRST=0):
    AB = "M_abort"
    if ropt.get('tstart'): A("s_memrealtime s[100:101]")
    if PREF:
        A(f"""
        s_getpc_b64 s[60:61]
M_pc:
        v_lshlrev_b32 v254, 7, v0
        v_min_u32 v255, M_codeend - M_pc - 4, v254
        global_load_dword v253, v255, s[60:61]
        """)
        for k in range(1, PREF):
            A(f"""
            v_add_u32 v254, 32768, v254
            v_min_u32 v255, M_codeend - M_pc - 4, v254
            global_load_dword v253, v255, s[60:61]
            """)
    prologue(A, 256, "M_end")
    stamp(A, 13, s_id=2)
    hstamp(A, 11, neg=True)
    claim_issue(A, FX, JX)
    A("s_mov_b32 s57, 0\ns_cmp_eq_u32 s59, 0\ns_cbranch_scc1 M_head")
    claim_resolve(A, "a", 0, AB)
    A.label("M_dispatch")
    A("s_mov_b32 s58, s3\ns_mov_b32 s57, 1\ns_cmp_ge_u32 s58, 32\ns_cbranch_scc1 M_worker")
    A.label("M_head")
    def resolve():
        A("s_cmp_eq_u32 s57, 1\ns_cbranch_scc1 M_resolved")
        claim_resolve(A, "b", 36, AB)
        A("s_cmp_eq_u32 s3, s58\ns_cbranch_scc1 M_resolved\ns_waitcnt vmcnt(0)\ns_barrier\ns_branch M_dispatch")
        A.label("M_resolved")
    mod_R(A, 58, abort=AB, merged=True, hooks=dict(resolve=resolve), **ropt)
    A("s_branch M_end")
    A.label("M_worker")
    A(f"""
    s_sub_u32 s{sWID}, s58, 32
    s_lshr_b32 s60, s{sWID}, 3                      ; unit
    s_mul_hi_u32 s61, s60, {(2**32+6)//7}           ; octet
    s_mul_i32 s62, s61, 7
    s_sub_u32 s{sGRP}, s60, s62
    s_lshl_b32 s61, s61, 3
    s_and_b32 s62, s{sWID}, 7
    s_add_u32 s{sHEAD}, s61, s62
    s_mul_hi_u32 s{sOG}, s{sWID}, {(2**32+17)//18}
    s_mul_i32 s60, s{sOG}, 18
    s_sub_u32 s{sCB}, s{sWID}, s60
    s_mul_hi_u32 s{sTG}, s{sWID}, {(2**32+4)//5}
    s_mul_i32 s60, s{sTG}, 5
    s_sub_u32 s{sCG}, s{sWID}, s60
    s_mul_i32 s{sKAP}, s{S_WAVE}, {NW}
    s_add_u32 s{sKAP}, s{sKAP}, s{sWID}
    """)
    stamp(A, 0, s_id=58)
    if F0FIRST:
        F0(A, sWID, NW)
        signal_wg(A, DBG_F0, vt=76)
    mod_P(A, sHEAD, sGRP, 7, preloop=lambda: wait_ge(A, SRD_DBG, DBG_RARM, 32, AB, vt=76), FLAGKS=FLAGKS)
    stamp(A, 4, s_id=58)
    def osetup():
        A(f"s_cmp_ge_u32 s{sOG}, 12\ns_cbranch_scc1 M_noos")
        O_setup(A, sCB, keep=True)
        A.label("M_noos")
        A("s_barrier")
        stamp(A, 6, s_id=58)
    if not F0FIRST:
        F0(A, sWID, NW)
        signal_wg(A, DBG_F0, vt=76)
        osetup()
    wait_ge(A, SRD_DBG, DBG_F0, NW, AB)
    A(f"s_cmp_ge_u32 s{sTG}, 44\ns_cbranch_scc1 M_nof1")
    FG(A, 1, sCG, sTG, 44)
    A.label("M_nof1")
    signal_wg(A, DBG_F1)
    stamp(A, 5, s_id=58)
    if F0FIRST: osetup()
    wait_ge(A, SRD_DBG, DBG_F1, NW, AB)
    A(f"s_cmp_gt_u32 s{sKAP}, 288\ns_cbranch_scc1 M_nof2")
    F2(A, sKAP)
    A.label("M_nof2")
    signal_wg(A, DBG_F2)
    stamp(A, 7, s_id=58)
    wait_ge(A, SRD_DBG, DBG_F2, NW, AB)
    A(f"s_cmp_ge_u32 s{sTG}, 44\ns_cbranch_scc1 M_nof3")
    FG(A, 3, sCG, sTG, 44)
    A.label("M_nof3")
    A("s_waitcnt vmcnt(0)\ns_barrier")
    stamp(A, 11, s_id=58)
    hstamp(A, 9)
    if NOEV == 1: A("s_branch M_end")
    X_setup(A)
    O_addr(A, sCB)
    A(f"""
    s_mov_b32 s{sXN}, s{sGRP}
    s_cmp_lt_u32 s{sOG}, 12
    s_cselect_b32 s{sON}, s{sOG}, 64
    {'s_mov_b32 s%d, 64' % sON if NOEV == 2 else ''}
    s_mov_b32 s{sPAR}, 0
    s_mov_b32 s{sQT}, 0
    s_mov_b32 s90, 0
    s_mov_b32 s91, 0
    s_mov_b32 s92, 0
    s_mov_b32 s93, 0
    """)
    acc_t(A, 92)
    A(f"""
    s_mov_b32 s92, 0
M_evx:
    s_cmp_ge_u32 s{sXN}, 64
    s_cbranch_scc1 M_ev
    s_lshl_b32 s{sITEM}, s{sXN}, 5
    s_add_u32 s{sITEM}, s{sITEM}, s{sHEAD}
    s_mov_b32 s{sREC}, s{sITEM}
    """)
    X_pre(A, sREC)
    A(f"s_memrealtime s[60:61]\ns_mov_b32 s{sIMM}, 0\ns_waitcnt lgkmcnt(0)\ns_mov_b32 s{sDUE}, s60")
    acc_t(A, 90)
    A(f"""
M_ev:
    s_min_u32 s60, s{sXN}, s{sON}
    s_cmp_ge_u32 s60, 64
    s_cbranch_scc1 M_fin
    s_cmp_lg_u32 s{S_WAVE}, 0
    s_cbranch_scc1 M_evb
    s_lshl_b32 s64, s{sHEAD}, 7
    s_add_u32 s64, s64, {FLAG_RP}
    s_min_u32 s65, s{sON}, 63
    s_lshl_b32 s65, s65, {5 + OXS_LOG}
    s_add_u32 s65, s65, {FLAG_OX}
    v_mov_b32 v250, s64
    v_and_b32 v251, 31, v1
    v_lshlrev_b32 v251, {OXS_LOG}, v251
    v_add_u32 v251, s65, v251
    s_mov_b32 s{sSP}, {SPIN}
M_evp:
    s_mov_b32 s62, 3
    s_sub_u32 s{sSP}, s{sSP}, 1
    s_cbranch_scc1 M_evd
    s_cmp_ge_u32 s{sXN}, 64
    s_cbranch_scc1 M_evo
    s_memrealtime s[60:61]
    s_waitcnt lgkmcnt(0)
    s_sub_u32 s61, s60, s{sDUE}
    s_cmp_lt_i32 s61, 0
    s_cbranch_scc1 M_evi
    buffer_load_dword v252, v250, {srd(SRD_WS)}, 0 offen sc1
    s_waitcnt vmcnt(0)
    v_readfirstlane_b32 s61, v252
    s_mov_b32 s62, 1
    s_cmp_gt_u32 s61, s{sXN}
    s_cbranch_scc1 M_evd
    s_cmp_eq_u32 s61, 63
    s_cbranch_scc1 M_evd
    s_sub_u32 s61, s{sXN}, s61
    s_cmp_ge_u32 s{sXN}, 62
    s_cselect_b32 s63, 2, {IMMD}
    s_cselect_b32 s64, 1, 0
    s_cmp_le_u32 s61, s63
    s_cselect_b32 s{sIMM}, 1, 0
    s_cselect_b32 s62, s64, s63
    s_min_u32 s62, s62, s61
    s_sub_u32 s61, s61, s62
    s_mul_i32 s61, s61, {TSTEP}
    s_max_u32 s61, s61, {TMIN}
    s_add_u32 s{sDUE}, s60, s61
M_evi:
    s_cmp_eq_u32 s{sIMM}, 1
    s_cbranch_scc1 M_evs
M_evo:
    s_cmp_ge_u32 s{sON}, 64
    s_cbranch_scc1 M_evs
    buffer_load_dword v253, v251, {srd(SRD_WS)}, 0 offen sc1
    s_mov_b32 s62, 2
    s_waitcnt vmcnt(0)
    v_cmp_eq_u32 vcc, 0, v253
    s_cbranch_vccz M_evd
M_evs:
    s_sleep {EVS}
    s_branch M_evp
M_evd:
    v_mov_b32 v252, s62
    v_mov_b32 v253, {EV_LDS}
    ds_write_b32 v253, v252
    s_waitcnt lgkmcnt(0)
M_evb:
    s_barrier
    v_mov_b32 v253, {EV_LDS}
    ds_read_b32 v252, v253
    s_waitcnt lgkmcnt(0)
    v_readfirstlane_b32 s62, v252
    s_barrier
    """)
    acc_t(A, 92)
    A(f"""
    s_cmp_eq_u32 s62, 3
    s_cbranch_scc1 {AB}
    s_cmp_eq_u32 s62, 2
    s_cbranch_scc1 M_evO
    """)
    rec_t(A, 66)
    X_post(A, sITEM, sREC)
    rec_t(A, 74)
    A(f"""
    s_lshl_b32 s60, s{sITEM}, {OXS_LOG}
    s_add_u32 s60, s60, {FLAG_OX}
    v_mov_b32 v251, 1
    s_waitcnt vmcnt(0)
    s_barrier
    s_cmp_lg_u32 s{S_WAVE}, 0
    s_cbranch_scc1 M_xf
    s_mov_b64 exec, 1
    buffer_store_dword v251, off, {srd(SRD_WS)}, s60 sc1
    s_mov_b64 exec, -1
M_xf:
    s_add_u32 s{sXN}, s{sXN}, 7
    """)
    rec_t(A, 68)
    acc_t(A, 90)
    A(f"""
    s_branch M_evx
M_evO:
    s_cmp_lt_u32 s{sON}, {62 if QSPLIT else 64}
    s_cbranch_scc1 M_evO2
    v_bfe_u32 v252, v1, 3, 2
    v_cmp_eq_u32 vcc, s{sQT}, v252
    v_mov_b32 v253, 0x40000000
    s_nop 0
    v_cndmask_b32 {v(OV_A)}, v253, {v(OV_A)}, vcc
    v_cndmask_b32 {v(OV_ST)}, v253, {v(OV_ST)}, vcc
M_evO2:
    """)
    rec_t(A, 70)
    O_item(A, sON, sPAR)
    rec_t(A, 72)
    acc_t(A, 91)
    A(f"""
    s_add_u32 s{sON}, s{sON}, 12
    s_cmp_lt_u32 s{sON}, 64
    s_cbranch_scc1 M_ev
    s_sub_u32 s60, s{sOG}, 4
    s_cmp_lt_u32 s60, {6 if QSPLIT else 0}
    s_cbranch_scc0 M_ev
    s_lshr_b32 s{sQT}, s60, 1
    s_add_u32 s{sQT}, s{sQT}, 1
    s_and_b32 s{sON}, s{sOG}, 1
    s_add_u32 s{sON}, s{sON}, 62
    s_mov_b32 s{sOG}, 99
    s_branch M_ev
M_fin:
    """)
    stamp(A, 12, s_id=58)
    hstamp(A, 15)
    import common
    if common.STAMPS:
        A(f"""
        s_lshl_b32 s98, s58, 8
        s_add_u32 s98, s98, {WS_STAMP + 160}
        v_mov_b32 v76, s90
        v_mov_b32 v77, s91
        v_mov_b32 v78, s92
        v_mov_b32 v79, 0
        s_mov_b64 exec, 1
        buffer_store_dwordx3 v[76:78], v79, {srd(SRD_WS)}, s98 offen
        v_mov_b32 v72, s66
        v_mov_b32 v73, s74
        v_mov_b32 v74, s68
        v_mov_b32 v75, s70
        v_mov_b32 v76, s72
        buffer_store_dwordx4 v[72:75], v79, {srd(SRD_WS)}, s98 offen offset:16
        buffer_store_dword v76, v79, {srd(SRD_WS)}, s98 offen offset:32
        s_mov_b64 exec, -1
        """)
    A("s_branch M_end")
    A(f"""
{AB}:
    s_mov_b64 exec, -1
    v_mov_b32 v3, 0xdead
    v_mov_b32 v4, {DBG_ABORT}
    buffer_store_dword v3, v4, {srd(SRD_DBG)}, 0 offen
    s_waitcnt vmcnt(0)
M_end:
    s_endpgm
M_codeend:""")
```

```python
from common import *

XBUF = 36864

def xtile_addr_setup(A, vdma, vfr, rowstride, vt0, vt1):
    A(f"""
    v_lshrrev_b32 {v(vt0)}, 3, v1
    v_and_b32 {v(vt1)}, 6, {v(vt0)}
    s_lshr_b32 s60, s{S_WAVE}, 1
    v_or_b32 {v(vt1)}, s60, {v(vt1)}
    v_and_b32 {v(vdma)}, 7, v1
    v_xor_b32 {v(vdma)}, {v(vdma)}, {v(vt1)}
    v_lshlrev_b32 {v(vdma)}, 4, {v(vdma)}
    s_lshl_b32 s60, s{S_WAVE}, 3
    v_add_u32 {v(vt0)}, s60, {v(vt0)}
    s_mov_b32 s60, {rowstride}
    v_mul_lo_u32 {v(vt0)}, {v(vt0)}, s60
    v_add_u32 {v(vdma)}, {v(vdma)}, {v(vt0)}
    """)
    A(f"""
    v_and_b32 {v(vt0)}, 6, v1
    v_bfe_u32 {v(vt1)}, v1, 4, 1
    v_or_b32 {v(vt0)}, {v(vt0)}, {v(vt1)}        ; h
    v_lshrrev_b32 {v(vt1)}, 5, v1                ; hf
    v_xor_b32 {v(vt0)}, {v(vt0)}, {v(vt1)}       ; h ^ hf
    v_and_b32 {v(vt1)}, 31, v1
    v_lshlrev_b32 {v(vt1)}, 7, {v(vt1)}
    """)
    for k in range(4):
        A(f"""
        v_xor_b32 {v(vfr+k)}, {2*k}, {v(vt0)}
        v_lshlrev_b32 {v(vfr+k)}, 4, {v(vfr+k)}
        v_add_u32 {v(vfr+k)}, {v(vfr+k)}, {v(vt1)}
        """)

def mod_P(A, s_head, s_grp, NG, sc=" sc1", flags=True, nost=0, preloop=None, ptouch=False, early=None, FLAGKS=12):
    L = lambda n: f"P_{n}"
    ACC = [2, 18, 34]
    XF = [50, 54, 58]
    VFR = 62
    VDMA = 66
    VST = 67
    VW = 68
    VTR = 69
    VT0, VT1 = 72, 73
    VFL = 74
    VONE = 75
    stamp(A, 0)
    A.c("P: weight staging setup")
    A(f"""
    v_lshrrev_b32 {v(VT0)}, 4, v1                 ; l>>4
    v_lshlrev_b32 {v(VT1)}, 2, {v(VT0)}
    v_and_b32 {v(VW)}, 15, v1
    v_xor_b32 {v(VW)}, {v(VW)}, {v(VT1)}
    v_lshlrev_b32 {v(VW)}, 4, {v(VW)}
    s_lshl_b32 s60, s{S_WAVE}, 2
    v_add_u32 {v(VT0)}, s60, {v(VT0)}
    v_lshlrev_b32 {v(VT0)}, 13, {v(VT0)}
    v_add_u32 {v(VW)}, {v(VW)}, {v(VT0)}
    s_lshl_b32 s60, s{s_head}, 8
    v_add_u32 {v(VW)}, s60, {v(VW)}
    v_bfe_u32 {v(VT0)}, v1, 2, 2                  ; r
    v_lshrrev_b32 {v(VT1)}, 5, v1                 ; hf
    v_lshl_add_u32 {v(VT1)}, {v(VT1)}, 3, {v(VT0)} ; 8hf + r
    v_lshlrev_b32 {v(VTR)}, 8, {v(VT1)}           ; *256
    v_bfe_u32 {v(VT1)}, v1, 4, 1                  ; fsub
    v_lshlrev_b32 {v(VT1)}, 1, {v(VT1)}
    v_bfe_u32 {v(VTR+1)}, v1, 1, 1                ; c>>1
    v_add_u32 {v(VT1)}, {v(VT1)}, {v(VTR+1)}
    s_lshl_b32 s60, s{S_WAVE}, 2
    v_add_u32 {v(VT1)}, s60, {v(VT1)}             ; chunk16
    v_lshlrev_b32 {v(VT0)}, 2, {v(VT0)}
    v_xor_b32 {v(VT1)}, {v(VT1)}, {v(VT0)}
    v_lshl_add_u32 {v(VTR)}, {v(VT1)}, 4, {v(VTR)}
    v_and_b32 {v(VT0)}, 1, v1
    v_lshl_add_u32 {v(VTR)}, {v(VT0)}, 3, {v(VTR)}
    v_add_u32 {v(VTR+1)}, 0x10000, {v(VTR)}
    v_add_u32 {v(VTR+2)}, 0x20000, {v(VTR)}
    s_lshl_b32 s61, s{S_WAVE}, 10                 ; w*1024 (lds)
    """)
    xtile_addr_setup(A, VDMA, VFR, 1152, VT0, VT1)
    A(f"""
    v_lshlrev_b32 {v(VST)}, 4, v1
    s_lshl_b32 s60, s{S_WAVE}, 11
    v_add_u32 {v(VST)}, s60, {v(VST)}
    v_mov_b32 {v(VONE)}, 1
    v_lshlrev_b32 {v(VT0)}, 4, v0
    """)
    order = [1, 2, 0]
    srds = {0: SRD_WQ, 1: SRD_WK, 2: SRD_WV}
    def wdma(c):
        m = order[c // 9]; kb = c % 9; slot = c % 9
        for n in range(4):
            A(f"s_add_u32 m0, s61, {slot*16384 + n*4096}")
            A(f"s_mov_b32 s62, {kb*524288 + n*131072}")
            A(f"buffer_load_dwordx4 {v(VW)}, {srd(srds[m])}, s62 offen lds")
    def xdma_one(cg, s_bufbase, s_src):
        A(f"s_add_u32 m0, s{s_bufbase}, {cg*4096}")
        A(f"s_add_u32 s62, s{s_src}, {cg*128}")
        A(f"buffer_load_dwordx4 {v(VDMA)}, {srd(SRD_BX)}, s62 offen lds")
    A(f"""
    s_mov_b32 s63, s{s_grp}
    s_mul_i32 s65, s63, {XBUF}
    s_mov_b32 s64, s61
    """)
    for c in range(9):
        wdma(c)
    if early:
        early()
        A(f"""
        s_lshl_b32 s61, s{S_WAVE}, 10
        s_mov_b32 s63, s{s_grp}
        s_mul_i32 s65, s63, {XBUF}
        s_mov_b32 s64, s61
        """)
    pending = [4] * 9
    for c in range(27):
        rest = sum(pending[1:])
        A(f"s_waitcnt vmcnt({rest})")
        pending.pop(0)
        A("s_barrier")
        m = order[c // 9]; kb = c % 9; slot = c % 9
        for ksl in range(4):
            for t in range(2):
                off = slot * 16384 + ksl * 4096 + t * 1024
                A(f"ds_read_b64_tr_b16 {wreg(m*144 + (kb*4+ksl)*4 + 2*t, 2)}, {v(VTR + (off >> 16))} offset:{off & 0xffff}")
        A("s_waitcnt lgkmcnt(0)")
        A("s_barrier")
        pass
        if c + 9 < 27:
            wdma(c + 9); pending.append(4)
        if c == 20 or c == 22:
            for cg in range(9):
                xdma_one(cg, 64, 65)
            pending.append(9)
            A(f"s_add_u32 s64, s64, {XBUF}")
            A(f"s_add_u32 s65, s65, {NG*XBUF}")
    A("s_waitcnt vmcnt(9)")
    A(f"""
    s_mov_b32 s66, 0
    s_mov_b32 s67, -1
    """)
    stamp(A, 1)
    if preloop: preloop()
    A.label(L("loop"))
    A("s_barrier")
    def xread(ks):
        A(f"ds_read_b128 {v(XF[ks%3],4)}, {v(VFR + (ks&3))} offset:{(ks>>2)*4096}")
    xread(0); xread(1)
    for ks in range(36):
        A(f"s_waitcnt lgkmcnt({1 if ks < 35 else 0})")
        x = v(XF[ks % 3], 4)
        def mf(m):
            w = wreg(m*144 + ks*4, 4)
            c = "0" if ks == 0 else v(ACC[m], 16)
            if m == 2:
                A(f"v_mfma_f32_32x32x16_bf16 {v(ACC[m],16)}, {x}, {w}, {c}")
            else:
                A(f"v_mfma_f32_32x32x16_bf16 {v(ACC[m],16)}, {w}, {x}, {c}")
        mf(1)
        if ks + 2 < 36: xread(ks + 2)
        mf(2)
        if 1 <= ks <= 9:
            xdma_one(ks - 1, 64, 65)
        if ks == FLAGKS:
            A("s_waitcnt vmcnt(9)")
            if flags:
                A(f"""
                s_cmp_lt_i32 s67, 0
                s_cbranch_scc1 {L('nofl')}
                s_lshl_b32 s62, s{s_head}, 6
                s_add_u32 s62, s62, s67
                s_lshl_b32 s62, s62, 2
                s_add_u32 s62, s62, {FLAG_KV}
                v_mov_b32 {v(VFL)}, s62
                s_mov_b64 exec, 1
                buffer_atomic_add {v(VONE)}, {v(VFL)}, {srd(SRD_WS)}, 0 offen sc1
                s_mov_b64 exec, -1
                """)
                A.label(L("nofl"))
        mf(0)
    A(f"""
    s_add_u32 s64, s64, {XBUF}
    s_add_u32 s65, s65, {NG*XBUF}
    s_add_u32 s62, s61, {3*XBUF}
    s_cmp_ge_u32 s64, s62
    s_cselect_b32 s64, s61, s64
    s_add_u32 s66, s66, 1
    s_cmp_eq_u32 s66, 3
    s_cselect_b32 s66, 0, s66
    s_mov_b32 s62, {XBUF}
    s_cselect_b32 s62, {(-2*XBUF) & 0xffffffff}, s62
    """)
    for k in range(4):
        A(f"v_add_u32 {v(VFR+k)}, s62, {v(VFR+k)}")
    A(f"""
    s_lshl_b32 s62, s63, 5
    s_add_u32 s62, s62, s{s_head}
    s_lshl_b32 s62, s62, 13
    s_lshr_b32 s71, s62, 1
    s_add_u32 s71, s71, {WS_KM}
    s_add_u32 s68, s62, {WS_KX}
    s_add_u32 s69, s62, {WS_VX}
    s_add_u32 s70, s62, {WS_QX}
    """)
    for m, so in ((1, 68), (2, 69), (0, 70)):
        if m == 0: A("s_nop 3")
        for i in range(8):
            A(f"v_cvt_pk_bf16_f32 {v(ACC[m]+i)}, {v(ACC[m]+2*i)}, {v(ACC[m]+2*i+1)}")
        s_ = sc if m != 0 else sc
        if nost: continue
        A(f"buffer_store_dwordx4 {v(ACC[m],4)}, {v(VST)}, {srd(SRD_WS)}, s{so} offen{s_}")
        A(f"buffer_store_dwordx4 {v(ACC[m]+4,4)}, {v(VST)}, {srd(SRD_WS)}, s{so} offen offset:1024{s_}")
    if flags:
        A(f"s_cmp_lg_u32 s63, 63\ns_cbranch_scc1 {L('narm')}")
        for r in range(4): A(f"v_mov_b32 {v(XF[0]+r)}, -1")
        A(f"buffer_store_dwordx4 {v(XF[0],4)}, {v(VT0)}, {srd(SRD_WS)}, s71 offen sc1\n{L('narm')}:")
    A(f"""
    s_mov_b32 s67, s63
    s_add_u32 s63, s63, {NG}
    s_cmp_lt_u32 s63, 64
    s_cbranch_scc1 {L('loop')}
    """)
    stamp(A, 2)
    A("s_waitcnt vmcnt(0)")
    stamp(A, 3)
    if flags:
        A(f"""
        s_lshl_b32 s62, s{s_head}, 6
        s_add_u32 s62, s62, s67
        s_lshl_b32 s62, s62, 2
        s_add_u32 s62, s62, {FLAG_KV}
        v_mov_b32 {v(VFL)}, s62
        s_mov_b64 exec, 1
        buffer_atomic_add {v(VONE)}, {v(VFL)}, {srd(SRD_WS)}, 0 offen sc1
        s_mov_b64 exec, -1
        """)
    A("s_barrier")
```

```python
from common import *
import math, struct

WSTR = 36864
L_Q = 34816
L_K = 34816 + WSTR
L_O = 34816 + 2 * WSTR
L_MEMF = 145408
L_KX = 145408 + 9216
L_V = L_MEMF + 4096
HI = 98304
PSLOT = 72 * 4096
MSLOT = 9216
SPIN = 200000
CEXP = (128 ** -0.5) * math.log2(math.e)
def f32bits(x): return struct.unpack("<I", struct.pack("<f", x))[0]

def WQ(kk): return wreg(kk * 8, 8)
def WK(kk): return wreg(144 + kk * 8, 8)
def WO(p, ks): return wreg(288 + (p * 4 + ks) * 8, 8)
def WO8(ks): return wreg(288 + 128 + ks * 4, 4)

class LQ:
    def __init__(self, A, name): self.A, self.name, self.q = A, name, []
    def push(self, tag, n=1): self.q += [tag] * n; assert len(self.q) <= (15 if self.name == "lgkmcnt" else 63), self.q
    def wait(self, tag):
        if tag not in self.q: return
        idx = max(i for i, t in enumerate(self.q) if t == tag)
        self.A(f"s_waitcnt {self.name}({len(self.q) - 1 - idx})")
        del self.q[:idx + 1]
    def clear(self): self.q = []

def mod_R(A, s_head, sc="", pfx="R", abort="R_abort", last=63, prof=False, RD_=(0, 0, 0, 1, 2), CD=0, hooks=None, WARMD=2, cnt=False,
          CDN=0, fixseg=False, nokm=False, x_nowv=False, trace=False, RGAP=0, CGAP=0, ld=' sc1', tq=None, merged=False, wbar=False, worder='qk', wnt='', tstart=False, ARMAT=9, HELP=0, HAT=27, MW=3, R1N=4, EL=26, eflag=True, EFAT=13, WAT=14, FAT=16, tstep=False, CDN3=0, nowarm=False, R2AT=1, R3AT=7, B2AT=6, B3AT=13):
    assert R3AT > B2AT and R2AT + 2 < B2AT and eflag
    def TQ(tag):
        if tq and tag in tq: A(f"s_memtime s[{8+2*tq.index(tag)}:{9+2*tq.index(tag)}]")

    def TR(i):
        if trace: A(f"s_memrealtime s[{8+2*i}:{9+2*i}]")

    L = lambda n: f"{pfx}_{n}"
    def TS(i):
        r = 98 if i == 1 else 8 + 2 * i
        if tstart: A(f"s_memrealtime s[{r}:{r+1}]\ns_waitcnt lgkmcnt(0)")
    W = S_WAVE
    hooks = hooks or {}
    def PH(i):
        if not prof: return
        A(f"""
        s_waitcnt lgkmcnt(0)
        s_memtime s[96:97]
        s_waitcnt lgkmcnt(0)
        s_sub_u32 s99, s96, s98
        s_mov_b32 s98, s96
        s_mov_b64 exec, {1 << i}
        v_add_u32 v1, s99, v1
        s_mov_b64 exec, -1
        """)
    TMP = 0
    IDX, SELV, vPST, vRED, vPUB, vCON, vAF, vWV, vQW, vQR, vKX, vOW, vVX, vSP = range(2, 16)
    vC1 = 1
    assert not prof
    WVR = 16
    D0 = 24
    sSTEP, sPW, sPR, sMW, sMR, sMA, sRED, sSEG = 64, 65, 66, 67, 68, 69, 70, 71
    sLO32, sHI32, sEVEN, sN8 = 72, 74, 76, 78
    sB2 = 81
    sKVO = 3
    sWOF = 80
    sC = 82
    sRDLY, sWB, sB1 = 84, 85, 59
    sB3, sM3, sPRG = 66, 57, 4
    sRDLY2 = 96
    sPM = sEVEN
    sSEL = 86
    sT0, sT1, sT2, sSPIN, sT3, sT4 = 60, 61, 62, 63, 94, 95
    T0, T1, T2 = D0, D0 + 1, D0 + 2
    stamp(A, 8, s_id=s_head)
    hstamp(A, 12)
    def bits(dst, terms, add=None):
        first = True
        for (off, n, sh) in terms:
            A(f"v_bfe_u32 {v(T2)}, v1, {off}, {n}")
            if first:
                A(f"v_lshlrev_b32 {v(dst)}, {sh}, {v(T2)}"); first = False
            else:
                A(f"v_lshl_add_u32 {v(dst)}, {v(T2)}, {sh}, {v(dst)}")
        if add is not None:
            A(f"v_add_u32 {v(dst)}, {add}, {v(dst)}")
    vWA, vWB = D0 + 52, D0 + 53
    vTR = [D0 + 44, D0 + 45]
    vTO = [D0 + 46 + k for k in range(4)]
    vTD = [D0 + 28 + k for k in range(4)]
    X0, X1 = D0 + 8, D0 + 9
    sWL = 7
    VS = D0 + 12
    A(f"""
    s_lshl_b32 s{sT0}, s{s_head}, 8
    s_lshr_b32 s{sT1}, s{W}, 1
    s_lshl_b32 s{sT1}, s{sT1}, 7
    s_add_u32 s{sT0}, s{sT0}, s{sT1}
    s_and_b32 s{sT1}, s{W}, 1
    s_lshl_b32 s{sT1}, s{sT1}, 18
    s_add_u32 s{sT0}, s{sT0}, s{sT1}
    s_mul_i32 s{sWL}, s{W}, {WSTR}
    """)
    bits(vWA, [(3, 3, 13), (0, 3, 4)], f"s{sT0}")
    grp = lambda ch: [("o", (p, kb2)) for p in range(5) for kb2 in range(2)] if ch == 'o' else [(ch, kb) for kb in range(9)]
    if len(worder) == 2: worder = worder + 'o'
    if worder == 'mix':
        a_, b_ = grp('k') + grp('q'), grp('o')
        chunks = []
        while a_ or b_:
            if len(b_) * 18 >= len(a_) * 10 and b_ and chunks: chunks.append(b_.pop(0))
            else: chunks.append(a_.pop(0))
        chunks += [("v", kb) for kb in range(9)]
    else:
        chunks = grp(worder[0]) + grp(worder[1]) + grp(worder[2]) + [("v", kb) for kb in range(9)]
    A(f"""
    v_lshrrev_b32 {v(X0)}, 4, v1
    s_lshl_b32 s{sT0}, s{W}, 4
    v_add_u32 {v(X0)}, s{sT0}, {v(X0)}
    v_mul_u32_u24 {v(X0)}, 1152, {v(X0)}
    s_mul_i32 s{sT0}, s{s_head}, 147456
    v_add_u32 {v(X0)}, s{sT0}, {v(X0)}
    """)
    bits(vWB, [(0, 4, 4)], v(X0))
    slot_of = lambda c: (c - 28) % 9
    def wdma(c):
        kind, ix = chunks[c]; sl = slot_of(c)
        for n in range(4):
            A(f"s_add_u32 m0, s{sWL}, {sl*4096 + n*1024}")
            if kind == "o":
                p, kb2 = ix
                A(f"s_mov_b32 s{sT1}, {(kb2*64 + n*4)*1152 + p*256}")
                A(f"buffer_load_dwordx4 {v(vWB)}, {srd(SRD_WO)}, s{sT1} offen{wnt} lds")
            else:
                A(f"s_mov_b32 s{sT1}, {ix*524288 + n*65536}")
                A(f"buffer_load_dwordx4 {v(vWA)}, {srd({'q': SRD_WQ, 'k': SRD_WK, 'v': SRD_WV}[kind])}, s{sT1} offen{wnt} lds")
    for c in range(9): wdma(c)
    TS(1)
    if 'resolve' in hooks: hooks['resolve']()
    TS(2)
    A.c("R setup")
    A(f"""
    s_mov_b32 s{sLO32}, -1
    s_mov_b32 s{sLO32+1}, 0
    s_mov_b32 s{sHI32}, 0
    s_mov_b32 s{sHI32+1}, -1
    s_mov_b32 s{sEVEN}, 0x55555555
    s_mov_b32 s{sEVEN+1}, 0x55555555
    s_mov_b32 s{sN8}, 0xff00ff00
    s_mov_b32 s{sN8+1}, 0xff00ff00
    s_mov_b32 s{sC}, {f32bits(CEXP)}
    s_mov_b32 s{sC+1}, {f32bits(CEXP)}
    s_lshl_b32 s{sWB}, s{W}, 10
    s_cmp_eq_u32 s{W}, 2
    s_mov_b32 s{sB1}, -1024
    s_cselect_b32 s{sB1}, 8192, s{sB1}
    s_lshl_b32 s{sPRG}, s{s_head}, 7
    s_add_u32 s{sPRG}, s{sPRG}, {FLAG_RP}
    """)
    if R1N == 4:
        A(f"s_sub_u32 s{sB3}, 7168, s{sWB}\ns_mov_b32 s{sM3}, {L_MEMF + 8192}\ns_movk_i32 s{sB2}, -1024")
    else:
        A(f"""
        s_and_b32 s{sM3}, s{sWB}, 1024
        s_sub_u32 s{sB3}, s{sM3}, s{sWB}
        s_add_u32 s{sB3}, s{sB3}, 6144
        s_add_u32 s{sM3}, s{sM3}, {L_MEMF + 7168}
        s_movk_i32 s{sB2}, -1024
        s_cmp_eq_u32 s{W}, 3
        s_cselect_b32 s{sB2}, -2048, s{sB2}
        """)
    for r in range(4):
        m = (0x03030303 << (2 * r)) & 0xffffffff
        A(f"s_mov_b32 s{sSEL+2*r}, {m}\ns_mov_b32 s{sSEL+2*r+1}, {m}")
    A(f"""
    v_mov_b32 {v(IDX)}, 0x44444444
    v_mov_b32 {v(T0)}, 0xeeeeeeee
    v_cndmask_b32 {v(IDX)}, {v(IDX)}, {v(T0)}, s[{sN8}:{sN8+1}]
    v_mov_b32 {v(SELV)}, 0x3f800000
    v_mov_b32 {v(T0)}, 0x3f80
    v_cndmask_b32 {v(SELV)}, {v(SELV)}, {v(T0)}, s[{sEVEN}:{sEVEN+1}]
    s_mov_b32 s{sPM}, 0xffff
    s_mov_b32 s{sPM+1}, 0xffff
    v_lshlrev_b32 {v(T0)}, 4, v1
    s_add_u32 s{sT0}, s{sWB}, {HI}
    v_add_u32 {v(vCON)}, s{sT0}, {v(T0)}
    s_mul_i32 s{sT0}, s{W}, {WSTR}
    v_add_u32 {v(vWV)}, s{sT0}, {v(T0)}
    s_lshl_b32 s{sT0}, s{W}, 5
    s_add_u32 s{sT0}, s{sT0}, s{s_head}           ; unit
    s_lshl_b32 s{sT1}, s{sT0}, 12
    s_cmp_lt_u32 s{sT0}, 72
    s_cselect_b32 s{sRED}, 1, 0
    s_cselect_b32 s{sT1}, s{sT1}, 0x40000000
    v_add_u32 {v(vRED)}, s{sT1}, {v(T0)}
    s_lshr_b32 s{sT1}, s{sT0}, 1
    s_lshl_b32 s{sT4}, s{sT1}, 5
    s_lshl_b32 s{sT1}, s{sT1}, 8
    s_and_b32 s{sT2}, s{sT0}, 1
    s_mul_i32 s{sT3}, s{sT2}, {4*1152}
    s_add_u32 s{sT4}, s{sT4}, s{sT3}
    s_lshl_b32 s{sT2}, s{sT2}, 6
    s_add_u32 s{sT1}, s{sT1}, s{sT2}
    s_lshr_b32 s{sT2}, s{sT0}, 4
    s_add_u32 s{sT2}, s{sT2}, 1
    s_cmp_ge_u32 s{sT0}, 64
    s_cselect_b32 s{sT2}, 0, s{sT2}
    s_mov_b32 s{sRDLY}, {RD_[0]}
    """)
    for o in range(1, 5):
        A(f"s_cmp_eq_u32 s{sT2}, {o}\ns_cselect_b32 s{sRDLY}, {RD_[o]}, s{sRDLY}")
    bits(vPUB, [(2, 1, 7), (5, 1, 5), (3, 1, 4), (0, 2, 2)], f"s{sT1}")
    A(f"s_lshl_b32 s{sT1}, s{W}, 1\ns_xor_b32 s{sT2}, s{s_head}, s{sT1}\ns_lshl_b32 s{sT2}, s{sT2}, 7\ns_lshl_b32 s{sT1}, s{W}, 13")
    bits(vPST, [(5, 1, 10), (4, 1, 7)])
    A(f"v_xor_b32 {v(T1)}, s{sT2}, {v(vPST)}\nv_add_u32 {v(T1)}, s{sT1}, {v(T1)}")
    bits(vPST, [(5, 1, 15), (4, 1, 12), (0, 4, 3)], v(T1))
    A(f"s_lshl_b32 s{sT1}, s{W}, 9\ns_add_u32 s{sT2}, s{sT1}, {L_Q}")
    bits(vQW, [(5, 1, 8), (0, 4, 4), (4, 1, 3)], f"s{sT2}")
    bits(vQR, [(5, 1, 8), (4, 1, 6), (2, 2, 4), (0, 1, 3)], L_Q)
    bits(vKX, [(4, 2, 9), (3, 1, 8), (0, 3, 4)], HI)
    bits(vAF, [(4, 2, 7), (0, 3, 4)], HI)
    A(f"s_add_u32 s{sT2}, s{sT1}, {L_O}")
    bits(vOW, [(5, 1, 7), (0, 3, 4), (4, 1, 3)], f"s{sT2}")
    A(f"s_lshl_b32 s{sT1}, s{W}, 11")
    bits(vVX, [(4, 2, 9), (0, 4, 4)], f"s{sT1}")
    ARM = D0 + 4
    X0, X1 = D0 + 8, D0 + 9
    for i in range(4): A(f"v_mov_b32 {v(ARM+i)}, -1")
    A(f"s_cmp_eq_u32 s{sRED}, 0\ns_cbranch_scc1 {L('noarm')}")
    bits(X1, [(5, 1, 1), (3, 1, 0)])
    A(f"v_mul_u32_u24 {v(X1)}, 1152, {v(X1)}")
    bits(X0, [(0, 3, 2)], v(X1))
    A(f"buffer_load_dword {v(vSP)}, {v(X0)}, {srd(SRD_M0)}, s{sT4} offen")
    A(f"s_mov_b32 s{sT0}, {WS_PART}")
    for i in range(4):
        A(f"buffer_store_dwordx4 {v(ARM,4)}, {v(vRED)}, {srd(SRD_WS)}, s{sT0} offen offset:{i*1024} sc1")
    A(f"s_mov_b64 exec, s[{sEVEN}:{sEVEN+1}]")
    for sl in range(3):
        A(f"s_mov_b32 s{sT0}, {WS_MEMB + sl*MSLOT}")
        A(f"buffer_store_dword {v(ARM)}, {v(vPUB)}, {srd(SRD_WS)}, s{sT0} offen sc1")
    A("s_mov_b64 exec, -1")
    A.label(L('noarm'))
    if merged:
        A(f"""
        s_cmp_lg_u32 s{W}, 3
        s_cbranch_scc1 {L('nz')}
        v_lshlrev_b32 {v(X0)}, 2, v1
        v_mov_b32 {v(X1)}, 0
        s_lshl_b32 s{sT0}, s{s_head}, 8
        s_add_u32 s{sT0}, s{sT0}, {FLAG_KV}
        buffer_store_dword {v(X1)}, {v(X0)}, {srd(SRD_WS)}, s{sT0} offen sc1
        v_lshlrev_b32 {v(X0)}, {5 + OXS_LOG}, v1
        s_lshl_b32 s{sT0}, s{s_head}, {OXS_LOG}
        s_add_u32 s{sT0}, s{sT0}, {FLAG_OX}
        buffer_store_dword {v(X1)}, {v(X0)}, {srd(SRD_WS)}, s{sT0} offen sc1
        v_mov_b32 {v(X0)}, s{sPRG}
        buffer_store_dword {v(X1)}, {v(X0)}, {srd(SRD_WS)}, 0 offen sc1
{L('nz')}:
        """)
    A(f"""
    s_and_b32 s{sT0}, s{W}, 2
    s_mul_i32 s{sT0}, s{sT0}, {WSTR}
    s_and_b32 s{sT1}, s{W}, 1
    s_lshl_b32 s{sT1}, s{sT1}, 6
    s_add_u32 s{sT0}, s{sT0}, s{sT1}
    s_lshl_b32 s{sT1}, s{W}, 5
    """)
    bits(vTR[0], [(4, 2, 9), (2, 1, 7), (3, 1, 5), (0, 2, 3)], f"s{sT0}")
    A(f"v_add_u32 {v(vTR[1])}, {WSTR}, {v(vTR[0])}")
    bits(vTO[0], [(4, 2, 10), (2, 1, 8), (3, 1, 7), (0, 2, 3)], f"s{sT1}")
    bits(vTD[0], [(4, 1, 11), (2, 2, 8), (0, 2, 3)], f"s{sT1}")
    A(f"v_bfe_u32 {v(T2)}, v1, 5, 1\nv_mul_u32_u24 {v(T2)}, {WSTR}, {v(T2)}\nv_add_u32 {v(vTD[0])}, {v(vTD[0])}, {v(T2)}")
    for k in range(1, 4): A(f"v_add_u32 {v(vTO[k])}, {k*WSTR}, {v(vTO[0])}")
    A(f"v_add_u32 {v(vTD[1])}, {2*WSTR}, {v(vTD[0])}")
    def trread(dst_fn, h, sl):
        for t, ro in enumerate((0, 2, 16, 18)):
            A(f"ds_read_b64_tr_b16 {dst_fn(t)}, {v(vTR[h])} offset:{sl*4096 + ro*128}")
    def trread_o(dst_fn, h, sl):
        for t, (k, ro) in enumerate(((0, 0), (0, 2), (1, 0), (1, 2))):
            A(f"ds_read_b64_tr_b16 {dst_fn(t)}, {v(vTO[2*h+k])} offset:{sl*4096 + ro*256}")
    sub = lambda base, t: wreg(base + 2 * t, 2)
    NCH = len(chunks)
    NH = (9 - HELP) * 8 // 8 if HELP else 0
    sKV, sMODE, sEARLY, sWARMED = 5, 6, 3, 7
    def warm0():
        A(f"v_lshlrev_b32 {v(X0)}, 7, v1\ns_lshl_b32 s{sT0}, s{s_head}, 13")
        for sg in range(WARMD):
            A(f"s_add_u32 s{sT1}, s{sT0}, {WS_KX + sg*RECSZ}\nbuffer_load_dword {v(X1)}, {v(X0)}, {srd(SRD_WS)}, s{sT1} offen sc1")
            A(f"s_add_u32 s{sT1}, s{sT0}, {WS_VX + sg*RECSZ}\nbuffer_load_dword {v(X1)}, {v(X0)}, {srd(SRD_WS)}, s{sT1} offen sc1")
    for c in range(NCH):
        kind, ix = chunks[c]; sl = slot_of(c)
        A(f"s_waitcnt vmcnt({min(NCH - 1 - c, 8) * 4 + (7 if c > NCH - 10 else 0) + (2 if EL < c <= EL + 9 else 0) + (NH if HAT < c <= HAT + 9 else 0)}) lgkmcnt(0)\ns_barrier")
        if kind in "qk":
            base = 0 if kind == "q" else 144
            for h in range(2): trread(lambda t: sub(base + (2 * ix + h) * 8, t), h, sl)
        elif kind == "o":
            p, kb2 = ix
            for h in range(2):
                if p < 4: trread_o(lambda t: sub(288 + (p * 4 + 2 * kb2 + h) * 8, t), h, sl)
                else:
                    for t in range(2):
                        A(f"ds_read_b64_tr_b16 {wreg(288 + 128 + (2*kb2+h)*4 + 2*t, 2)}, {v(vTD[h])} offset:{sl*4096 + 4*t*256}")
        else:
            trread(lambda t: v(VS + 2 * t, 2), 0, sl)
            if ix < 8: trread(lambda t: v(VS + 8 + 2 * t, 2), 1, sl)
            else: trread(lambda t: v(WVR + 2 * t, 2), 1, sl)
        A("s_waitcnt lgkmcnt(0)\ns_barrier")
        if kind == "v":
            for q in range(4 if ix < 8 else 2):
                A(f"ds_write_b128 {v(vWV)}, {v(VS+4*q,4)} offset:{ix*4096 + q*1024}")
        if c == 0: TS(3)
        if c == 9: TS(4)
        if c == NCH - 1: TS(5)
        if c == ARMAT:
            A(f"""
            s_cmp_lg_u32 s{W}, 0
            s_cbranch_scc1 {L('armed')}
            v_mov_b32 {v(T0)}, 1
            v_mov_b32 {v(T1)}, {DBG_RARM}
            s_mov_b64 exec, 1
            buffer_atomic_add {v(T0)}, {v(T1)}, {srd(SRD_DBG)}, 0 offen sc1
            s_mov_b64 exec, -1
{L('armed')}:
            s_cmp_eq_u32 s{sRED}, 0
            s_cbranch_scc1 {L('nom0')}
            v_min_u32 {v(vSP)}, -2, {v(vSP)}
            s_mov_b32 s{sT0}, {WS_MEMB}
            s_mov_b64 exec, s[{sEVEN}:{sEVEN+1}]
            buffer_store_dword {v(vSP)}, {v(vPUB)}, {srd(SRD_WS)}, s{sT0} offen sc1
            s_mov_b64 exec, -1
            s_nop 0
            v_mov_b32 {v(vSP)}, -1
{L('nom0')}:
            """)
        if c + 9 < NCH: wdma(c + 9)
        if c == HAT and HELP:
            A(f"""
            s_and_b32 s{sT0}, s{W}, 1
            s_add_u32 s{sT0}, s{sT0}, s{s_head}
            s_and_b32 s{sT0}, s{sT0}, 3
            s_lshr_b32 s{sT1}, s{W}, 1
            s_lshl_b32 s{sT1}, s{sT1}, 2
            s_add_u32 s{sT0}, s{sT0}, s{sT1}
            s_lshl_b32 s{sT0}, s{sT0}, 16
            s_lshr_b32 s{sT1}, s{s_head}, 2
            s_lshl_b32 s{sT1}, s{sT1}, 10
            s_add_u32 s{sT0}, s{sT0}, s{sT1}
            s_add_u32 s{sT0}, s{sT0}, {HELP*524288}
            """)
            bits(X0, [(3, 3, 13), (0, 3, 7)])
            for n in range(NH):
                A(f"buffer_load_dword {v(D0+55)}, {v(X0)}, {srd(SRD_WV)}, s{sT0} offen\ns_add_u32 s{sT0}, s{sT0}, 524288")
        if c == EL:
            A(f"""
            v_lshlrev_b32 {v(X1)}, 2, v1
            s_lshl_b32 s{sT1}, s{s_head}, 8
            s_add_u32 s{sT1}, s{sT1}, {FLAG_KV}
            buffer_load_dword {v(D0+50)}, {v(X1)}, {srd(SRD_DBG)}, 0 offen sc1
            buffer_load_dword {v(D0+51)}, {v(X1)}, {srd(SRD_WS)}, s{sT1} offen sc1
            """)
        if c == EL + 10:
            A(f"""
            v_readlane_b32 s{sEARLY}, {v(D0+50)}, {DBG_RARM//4}
            v_readlane_b32 s{sT1}, {v(D0+50)}, {DBG_OVH//4}
            v_cmp_ne_u32 vcc, 4, {v(D0+51)}
            s_cmp_eq_u32 s{sT1}, 0
            s_cselect_b32 s{sMODE}, 0, 1
            s_ff1_i32_b64 s{sKV}, vcc
            s_cmp_lt_i32 s{sKV}, 0
            s_cselect_b32 s{sKV}, 64, s{sKV}
            s_mov_b32 s{sWARMED}, 0
            """)
            if merged:
                A(f"""
                s_cmp_lg_u32 s{W}, 3
                s_cbranch_scc1 {L('nwe')}
                s_cmp_lt_u32 s{sKV}, {WARMD + 1}
                s_cbranch_scc1 {L('nwe')}
                """)
                warm0()
                A(f"s_mov_b32 s{sWARMED}, 1\n{L('nwe')}:")
        if c == NCH - 10:
            A(f"s_mov_b32 s{sT0}, {WS_PART}")
            for i in range(4):
                A(f"buffer_load_dwordx4 {v(D0+28+4*i,4)}, {v(vRED)}, {srd(SRD_WS)}, s{sT0} offen offset:{i*1024} sc1")
            for sl in range(3):
                A(f"s_mov_b32 s{sT0}, {WS_MEMB + sl*MSLOT}")
                A(f"buffer_load_dword {v(D0+46)}, {v(vPUB)}, {srd(SRD_WS)}, s{sT0} offen sc1")
    stamp(A, 9, s_id=s_head)
    hstamp(A, 13)
    AQ, AK, AV = D0, D0 + 4, D0 + 8
    AS = [D0 + 12 + 4 * i for i in range(4)]
    WR = [D0 + 28, D0 + 36, D0 + 44]
    korder = [16, 17] + list(range(16))
    wvl = [kk for kk in korder if kk != 17]
    lg = LQ(A, "lgkmcnt")
    def wvread(f):
        if x_nowv: return
        o = wvl[f] * 2048; d = WR[f % 3]
        A(f"ds_read_b128 {v(d,4)}, {v(vWV)} offset:{o}")
        A(f"ds_read_b128 {v(d+4,4)}, {v(vWV)} offset:{o+1024}")
        lg.push(f"W{f}", 2)
    def zero_acc():
        for i in range(12): A(f"v_mov_b32 {v(AQ+i)}, 0")
    def kv_wait(s_need, lab):
        A(f"""
        s_cmp_ge_u32 s{sKV}, s{s_need}
        s_cbranch_scc1 {lab}_ok
        s_waitcnt vmcnt(0)
        s_lshl_b32 s{sT1}, s{s_head}, 8
        s_add_u32 s{sT1}, s{sT1}, {FLAG_KV}
        v_lshrrev_b32 {v(TMP)}, 2, {v(vCON)}
        v_and_b32 {v(TMP)}, 255, {v(TMP)}
{lab}_p:
        buffer_load_dword {v(D0+40)}, {v(TMP)}, {srd(SRD_WS)}, s{sT1} offen sc1
        s_sub_u32 s{sSPIN}, s{sSPIN}, 1
        s_cbranch_scc1 {abort}
        s_waitcnt vmcnt(0)
        v_cmp_ne_u32 vcc, 4, {v(D0+40)}
        s_ff1_i32_b64 s{sKV}, vcc
        s_cmp_lt_i32 s{sKV}, 0
        s_cselect_b32 s{sKV}, 64, s{sKV}
        s_cmp_ge_u32 s{sKV}, s{s_need}
        s_cbranch_scc1 {lab}_ok
        s_sleep 4
        s_branch {lab}_p
{lab}_ok:
        """)
    A(f"""
    s_mov_b32 s{sSPIN}, {SPIN}
    v_lshlrev_b32 {v(T1)}, 2, v1
    s_cmp_ge_u32 s{sEARLY}, 32
    s_cbranch_scc1 {L('warmok')}
    s_mov_b32 s{sKV}, 0
    s_mov_b32 s{sWARMED}, 0
{L('warm')}:
    buffer_load_dword {v(T0)}, {v(T1)}, {srd(SRD_DBG)}, 0 offen sc1
    s_sub_u32 s{sSPIN}, s{sSPIN}, 1
    s_cbranch_scc1 {abort}
    s_waitcnt vmcnt(0)
    v_readlane_b32 s{sT0}, {v(T0)}, {DBG_RARM//4}
    v_readlane_b32 s{sT1}, {v(T0)}, {DBG_OVH//4}
    s_cmp_lt_u32 s{sT0}, 32
    s_cbranch_scc1 {L('warm')}
    s_cmp_eq_u32 s{sT1}, 0
    s_cselect_b32 s{sMODE}, 0, 1
{L('warmok')}:
    """)
    if merged:
        A(f"""
        s_cmp_lg_u32 s{W}, 3
        s_cbranch_scc1 {L('nkvi')}
        s_cmp_eq_u32 s{sWARMED}, 1
        s_cbranch_scc1 {L('nkvi')}
        s_waitcnt vmcnt(0)
        s_mov_b32 s{sT0}, {WARMD + 1}
        """)
        kv_wait(sT0, L('kvi'))
        warm0()
        A(f"{L('nkvi')}:")
    A(f"""
    s_mov_b32 s{sSTEP}, 0
    s_mov_b32 s{sPW}, {WS_PART}
    s_mov_b32 s{sMA}, {WS_MEMB + 2*MSLOT}
    s_mov_b32 s{sMW}, {WS_MEMB}
    s_mov_b32 s{sMR}, {WS_MEMB + MSLOT}
    s_lshl_b32 s{sSEG}, s{s_head}, 13
    s_mov_b32 s{sWOF}, 0x40000000
    s_cmp_lg_u32 s{W}, 3
    s_cselect_b32 s{sPRG}, s{sWOF}, s{sPRG}
    s_mov_b32 s{sKVO}, s{sWOF}
    s_cbranch_scc1 {L('nw3i')}
    s_lshl_b32 s{sKVO}, s{s_head}, 8
    s_add_u32 s{sKVO}, s{sKVO}, {FLAG_KV}
    v_lshlrev_b32 {v(vPUB)}, 2, v1
    s_mov_b32 s{sWOF}, {WS_KX + WARMD*RECSZ}
    v_lshlrev_b32 {v(vRED)}, 7, v1
    v_mov_b32 {v(vSP)}, 0
{L('nw3i')}:
    s_cmp_eq_u32 s{W}, 3
    s_movk_i32 s{sT0}, 2048
    s_cselect_b32 s{sT0}, 1024, s{sT0}
    v_subrev_u32 v1, s{sT0}, {v(vCON)}
    s_waitcnt vmcnt(0) lgkmcnt(0)
    s_barrier
    """)
    zero_acc()
    if prof: A("v_mov_b32 v1, 0\ns_memtime s[98:99]\ns_waitcnt lgkmcnt(0)")
    TS(6)
    if merged: A(f"s_cmp_eq_u32 s{sMODE}, 1\ns_cbranch_scc1 {L('loopS0')}x")
    if cnt: A("s_mov_b32 s20, 0\ns_mov_b32 s21, 0\ns_memtime s[96:97]\ns_memrealtime s[98:99]\ns_waitcnt lgkmcnt(0)\ns_mov_b32 s99, s96")
    RL = D0 + 52
    def sm(acc, a_, b): A(f"v_smfmac_f32_16x16x64_bf16 {v(acc,4)}, {a_}, {b}, {v(IDX)}")
    def mf(d, a_, b_, first):
        A(f"v_mfma_f32_16x16x32_bf16 {v(d,4)}, {a_}, {b_}, {'0' if first else v(d,4)}")
    def chk(r, br):
        A(f"""
        v_max3_u32 {v(TMP)}, {v(r)}, {v(r+1)}, {v(r+2)}
        v_max_u32 {v(TMP)}, {v(TMP)}, {v(r+3)}
        v_cmp_eq_u32 vcc, -1, {v(TMP)}
        {br}
        """)
    def spin(): A(f"s_sub_u32 s{sSPIN}, s{sSPIN}, 1\ns_cbranch_scc1 {abort}")
    def cload(r, so): A(f"buffer_load_dwordx4 {v(r,4)}, {v(vC1)}, {srd(SRD_WS)}, s{so} offen{ld}")
    def pk2(d, s_):
        A(f"v_cvt_pk_bf16_f32 {v(d)}, {v(s_)}, {v(s_+1)}")
        A(f"v_cvt_pk_bf16_f32 {v(d+1)}, {v(s_+2)}, {v(s_+3)}")
    def step_body(par, sc, md):
        LP = lambda n: L(n + md + str(par))
        nxt_loop = L('loop' + md + str(1 - par))
        A.label(LP('loop'))
        A("s_waitcnt vmcnt(2)")
        A.label(LP('loop') + "x")
        lg.clear()
        A(f"""
        s_mov_b32 s{sT3}, s{sMA}
        s_mov_b32 s{sMA}, s{sMW}
        s_mov_b32 s{sMW}, s{sMR}
        s_mov_b32 s{sMR}, s{sT3}
        s_mov_b32 s{sSPIN}, {SPIN}
        s_sub_u32 s{sT0}, s{sMA}, {HI}
        s_add_u32 s{sT1}, s{sT0}, s{sB1}
        s_add_u32 s{sT2}, s{sT0}, {(R1N-1)*1024}
        s_add_u32 s{sT3}, s{sT0}, s{sB3}
        s_add_u32 s{sT0}, s{sT0}, s{sB2}
        s_add_u32 s{sT4}, s{sSEG}, {WS_KX - HI}
        s_add_u32 m0, s{sWB}, {L_MEMF + R1N*1024}
        """)
        for f in range(3): wvread(f)
        A(f"s_cmp_lt_u32 s{W}, 2\ns_cbranch_scc1 {LP('cdj')}")
        if CD: A(f"s_sleep {CD}")
        TQ("cgo")
        def cload2(r):
            A(f"buffer_load_dwordx4 {v(r,4)}, {v(vC1)}, {srd(SRD_WS)}, s{sT1} offen sc1")
            A(f"buffer_load_dwordx4 {v(r+4,4)}, {v(vC1)}, {srd(SRD_WS)}, s{sT0} offen offset:1024 sc1")
        def cproc(r, y, br):
            A(f"""
            s_waitcnt vmcnt({y+1})
            ds_write_b128 {v(vC1)}, {v(r,4)} offset:{L_MEMF-HI}
            v_max3_u32 {v(TMP)}, {v(r)}, {v(r+1)}, {v(r+2)}
            s_waitcnt vmcnt({y})
            ds_write_b128 {v(vC1)}, {v(r+4,4)} offset:{L_MEMF-HI+1024}
            v_max3_u32 {v(TMP)}, {v(TMP)}, {v(r+3)}, {v(r+4)}
            v_max3_u32 {v(TMP)}, {v(TMP)}, {v(r+5)}, {v(r+6)}
            v_max_u32 {v(TMP)}, {v(TMP)}, {v(r+7)}
            v_cmp_eq_u32 vcc, -1, {v(TMP)}
            {br}
            """)
        if CGAP:
            cload2(AS[0]); A(f"s_sleep {CGAP}" if CGAP > 0 else f"s_nop {-CGAP}"); cload2(AS[2])
            A.label(LP('cp'))
            cproc(AS[0], 2, f"s_cbranch_vccnz {LP('cf')}")
        else:
            A.label(LP('cp'))
            cload2(AS[2]); spin()
            cproc(AS[2], 0, f"s_cbranch_vccnz {LP('cp')}")
        A.label(LP('cdj'))
        TQ("cdj")
        A("s_waitcnt lgkmcnt(0)\ns_barrier")
        if trace: TR(4); A("s_waitcnt lgkmcnt(0)")
        lg.clear()
        if cnt: A(f"s_sub_u32 s96, {SPIN}, s{sSPIN}\ns_add_u32 s20, s20, s96")
        PH(0)
        slot = lambda i: (i & 3) if i < 12 else (i - 12) % 3
        prev_user = lambda j: j - 4 if j < 15 else j - 3
        def aread(i):
            A(f"ds_read_b128 {v(AS[slot(i)],4)}, {v(vAF)} offset:{L_MEMF-HI+i*512}")
            lg.push(f"A{i}")
        def dma(so): A(f"buffer_load_dwordx4 {v(vCON)}, {srd(SRD_WS)}, s{so} offen sc1 lds")
        KXR = [D0 + 44, D0 + 48, D0 + 28, D0 + 32, D0 + 36, D0 + 40, D0 + 28, D0 + 32]
        VXF = [D0 + 52, D0 + 24]
        def kxread(n):
            A(f"ds_read_b128 {v(KXR[n],4)}, {v(vKX)} offset:{L_KX-HI+(n>>1)*2048+(n&1)*128}")
            lg.push(f"X{n}")
        TQ("start")
        aread(0); aread(1)
        if CGAP: A("s_waitcnt vmcnt(0)")
        aread(2); aread(3)
        f = 0
        nxt = 4
        late = []
        slow_n = [0]
        for i, kk in enumerate(korder):
            a_ = v(AS[slot(i)], 4)
            TQ(f"q{i}")
            lg.wait(f"A{i}")
            sm(AQ, a_, WQ(kk))
            if i == FAT and merged: A(f"buffer_store_dword {v(vSP)}, off, {srd(SRD_WS)}, s{sPRG} sc1"); slow_n[0] += 1
            if i == WAT and not nowarm: A(f"buffer_load_dword {v(TMP)}, {v(vRED)}, {srd(SRD_WS)}, s{sT3} offen sc1"); slow_n[0] += 1
            if i == WAT + 1 and not nowarm: A(f"buffer_load_dword {v(TMP)}, {v(vRED)}, {srd(SRD_WS)}, s{sT2} offen sc1"); slow_n[0] += 1
            if i == WAT + 3 and merged: A(f"buffer_load_dword {v(TMP)}, {v(vPUB)}, {srd(SRD_WS)}, s{sKVO} offen sc1"); slow_n[0] += 1
            if i == R2AT: dma(sT2)
            if i in (R2AT + 1, R2AT + 2): dma(sT4)
            if i == R3AT: dma(sT3)
            if i == R3AT + 1: A(f"buffer_load_dwordx4 {v(VXF[0],4)}, {v(vVX)}, {srd(SRD_WS)}, s{sT0} offen sc1")
            sm(AK, a_, WK(kk))
            if i == R2AT: A(f"s_add_u32 m0, s{sWB}, {L_KX}")
            if i == R2AT + 1: A(f"s_add_u32 m0, s{sWB}, {L_KX + 4096}\ns_add_u32 s{sT4}, s{sT4}, 4096")
            if i == R2AT + 2: A(f"s_mov_b32 m0, s{sM3}\ns_add_u32 s{sT0}, s{sSEG}, {WS_VX}")
            if i in (B2AT, B3AT):
                A(f"s_waitcnt vmcnt({2 + slow_n[0]})\ns_barrier")
                while prev_user(nxt) < i: aread(nxt); nxt += 1
            if i == 8: A(f"s_lshr_b32 s{sT2}, s{sSEG}, 1")
            if i == 9: A(f"s_add_u32 s{sT1}, s{sT2}, {0x40000000 if nokm else WS_VM - L_Q}\ns_add_u32 s{sT4}, s{sT2}, {0x40000000 if nokm else WS_KM - L_Q}")
            if i == 10: A(f"s_add_u32 s{sT3}, s{sSEG}, s{sWOF}\ns_add_u32 s{sT2}, s{sT3}, {WS_VX - WS_KX}")
            if kk == 17:
                sm(AV, a_, v(WVR, 8))
            elif i >= 16:
                late.append((a_, f)); f += 1
            else:
                lg.wait(f"W{f}")
                sm(AV, a_, v(WR[f % 3], 8))
                if f + 3 < 17: wvread(f + 3)
                f += 1
            lim = 2*R1N-1 if i < B2AT else (2*R1N+7 if i < B3AT else 17)
            while nxt <= lim and prev_user(nxt) <= i: aread(nxt); nxt += 1
            if i == 11: A(f"buffer_load_dwordx4 {v(VXF[1],4)}, {v(vVX)}, {srd(SRD_WS)}, s{sT0} offen offset:256 sc1")
            if i == 15: kxread(0); kxread(1)
        assert nxt == 18 and WAT + 3 <= 17 and FAT < WAT + 3 and WAT >= 12 and FAT >= 12 and B3AT >= 12 and R3AT + 1 <= 11
        TQ("qend")
        QF = [D0 + 0, D0 + 4]; KF = [D0 + 16, D0 + 20]
        KP, ZP = D0 + 12, D0 + 14
        def latev(n):
            a_, f_ = late[n]
            lg.wait(f"W{f_}")
            sm(AV, a_, v(WR[f_ % 3], 8))
        def qk_write():
            pk2(AQ, AQ)
            A(f"ds_write_b64 {v(vQW)}, {v(AQ,2)}")
            pk2(KP, AK)
            A(f"ds_write_b64 {v(vQW)}, {v(KP,2)} offset:{L_K-L_Q}")
        latev(0)
        kxread(2); kxread(3)
        if MW == 1: A("s_nop 3")
        else: A("s_nop 0")
        TQ("s2a")
        qk_write(); lg.push("qk", 2)
        latev(1)
        kxread(4); kxread(5)
        A(f"""
        v_cmp_u_f32 vcc, {v(AK)}, {v(AK+1)}
        v_cmp_u_f32 s[{sRDLY2}:{sRDLY2+1}], {v(AK+2)}, {v(AK+3)}
        s_or_b64 vcc, vcc, s[{sRDLY2}:{sRDLY2+1}]
        s_cbranch_vccnz {LP('slow')}
        """)
        A.label(LP('slowret'))
        if par == (last & 1):
            A(f"s_cmp_eq_u32 s{sSTEP}, {last}\ns_cbranch_scc1 {L('done')}")
        TQ("s2c")
        lg.wait("qk")
        A("s_barrier")
        TQ("s2end")
        def qk_reads(fb):
            b = fb & 1
            for (dst, base, tg) in ((QF[b], 0, "Q"), (KF[b], L_K - L_Q, "K")):
                A(f"ds_read_b64_tr_b16 {v(dst,2)}, {v(vQR)} offset:{base+fb*512}")
                A(f"ds_read_b64_tr_b16 {v(dst+2,2)}, {v(vQR)} offset:{base+fb*512+128}")
                lg.push(f"{tg}{fb}", 2)
        qk_reads(0); qk_reads(1)
        pk2(ZP, AV)
        ST = [D0 + 8, KXR[0], KXR[1]]
        VMT = D0 + 36; ON1 = D0 + 16; ON2 = D0 + 20
        M0_, M1_ = D0 + 42, D0 + 43
        PX = D0 + 0; PM = PX + 4
        for fb in range(4):
            b = fb & 1
            TQ(f"fb{fb}")
            for kt in range(2):
                n = 2 * fb + kt
                lg.wait(f"Q{fb}"); lg.wait(f"X{n}")
                mf(ST[kt], v(KXR[n], 4), v(QF[b], 4), fb == 0)
                if n in (2, 3): kxread(n + 4)
                if n == 0: A(f"buffer_store_dwordx2 {v(KP,2)}, {v(vQW)}, {srd(SRD_WS)}, s{sT4} offen sc1")
                if n == 3: A(f"buffer_store_dwordx2 {v(ZP,2)}, {v(vQW)}, {srd(SRD_WS)}, s{sT1} offen sc1")
                if n == 4: A(f"v_cndmask_b32 {v(VMT)}, 0, {v(ZP)}, s[{sLO32}:{sLO32+1}]\nv_cndmask_b32 {v(VMT+1)}, 0, {v(ZP+1)}, s[{sLO32}:{sLO32+1}]")
                if n == 5: A(f"v_mov_b32 {v(VMT+2)}, 0\nv_mov_b32 {v(VMT+3)}, 0")
                if n == 6: A(f"v_mov_b32 {v(ON1)}, 0x3f803f80\nv_mov_b32 {v(ON1+1)}, 0x3f803f80")
                if n == 7: A(f"v_mov_b32 {v(ON1+2)}, 0x3f803f80\nv_mov_b32 {v(ON1+3)}, 0x3f803f80")
            lg.wait(f"K{fb}")
            mf(ST[2], v(KF[b], 4), v(QF[b], 4), fb == 0)
            if fb + 2 < 4: qk_reads(fb + 2)
            if fb == 2:
                A(f"v_cndmask_b32 {v(VMT+4)}, 0, {v(ZP)}, s[{sHI32}:{sHI32+1}]\nv_cndmask_b32 {v(VMT+5)}, 0, {v(ZP+1)}, s[{sHI32}:{sHI32+1}]")
        TQ("scend")
        SR = [ST[t] + r for t in range(3) for r in range(4)]
        A(f"v_mov_b32 {v(ON2)}, 0x3f003f00\nv_mov_b32 {v(ON2+1)}, 0x3f003f00\nv_mov_b32 {v(ON2+2)}, 0\nv_mov_b32 {v(ON2+3)}, 0")
        A(f"""
        v_max3_f32 {v(M0_)}, {v(SR[0])}, {v(SR[1])}, {v(SR[2])}
        s_nop 0
        v_max3_f32 {v(M1_)}, {v(SR[3])}, {v(SR[4])}, {v(SR[5])}
        v_max3_f32 {v(M0_)}, {v(M0_)}, {v(SR[6])}, {v(SR[7])}
        v_max3_f32 {v(M1_)}, {v(M1_)}, {v(SR[8])}, {v(SR[9])}
        v_max3_f32 {v(M0_)}, {v(M0_)}, {v(SR[10])}, {v(SR[11])}
        v_max_f32 {v(M0_)}, {v(M0_)}, {v(M1_)}
        v_max_f32 {v(M1_)}, {v(M0_)}, {v(M1_)}
        v_mov_b32 {v(D0+12)}, 0
        v_mov_b32 {v(D0+13)}, 0
        v_permlane32_swap_b32 {v(M0_)}, {v(M1_)}
        v_max_f32 {v(M0_)}, {v(M0_)}, {v(M1_)}
        v_max_f32 {v(M1_)}, {v(M0_)}, {v(M1_)}
        v_mov_b32 {v(D0+14)}, 0
        v_mov_b32 {v(D0+15)}, 0
        v_permlane16_swap_b32 {v(M0_)}, {v(M1_)}
        v_max_f32 {v(M0_)}, {v(M0_)}, {v(M1_)}
        v_mul_f32 {v(M0_)}, s{sC}, {v(M0_)}
        """)
        for i in range(6):
            A(f"v_pk_fma_f32 {v(SR[2*i],2)}, {v(SR[2*i],2)}, s[{sC}:{sC+1}], {v(M0_,2)} op_sel_hi:[1,1,0] neg_lo:[0,0,1] neg_hi:[0,0,1]")
        for i in range(12):
            A(f"v_exp_f32 {v(SR[i])}, {v(SR[i])}")
            if i >= 2 and i % 2 == 0: A(f"v_cvt_pk_bf16_f32 {v(PX+i//2-1)}, {v(SR[i-2])}, {v(SR[i-1])}")
        OT, OT1, LS = D0 + 28, D0 + 32, D0 + 8
        TQ("expend")
        A(f"""
        s_waitcnt vmcnt({2 + slow_n[0]})
        v_cvt_pk_bf16_f32 {v(PX+5)}, {v(SR[10])}, {v(SR[11])}
        v_mfma_f32_16x16x32_bf16 {v(LS,4)}, {v(ON1,4)}, {v(PX,4)}, 0
        v_mfma_f32_16x16x32_bf16 {v(OT,4)}, {v(VXF[0],4)}, {v(PX,4)}, 0
        v_mfma_f32_16x16x32_bf16 {v(LS,4)}, {v(ON2,4)}, {v(PM,4)}, {v(LS,4)}
        v_mfma_f32_16x16x32_bf16 {v(OT,4)}, {v(VMT,4)}, {v(PM,4)}, {v(OT,4)}
        v_mfma_f32_16x16x32_bf16 {v(OT1,4)}, {v(VXF[1],4)}, {v(PX,4)}, 0
        v_mfma_f32_16x16x32_bf16 {v(OT1,4)}, {v(VMT+2,4)}, {v(PX+2,4)}, {v(OT1,4)}
        """)
        WAo = [D0 + 44, D0 + 48, D0 + 12, D0 + 16]
        WA8 = D0 + 20
        OF = [D0 + 0, D0 + 4, D0 + 36, D0 + 40]
        zl = [WAo[p] + i for p in (0, 1, 3) for i in range(4)]
        npre = 5 if MW == 1 else 0
        for r in zl[:npre]: A(f"v_mov_b32 {v(r)}, 0")
        A(f"v_rcp_f32 {v(M0_)}, {v(LS)}")
        A(f"v_mov_b32 {v(zl[npre])}, 0")
        if MW > 1: A(f"v_mov_b32 {v(zl[npre+1])}, 0"); npre += 1
        A(f"v_pk_mul_f32 {v(OT,2)}, {v(OT,2)}, {v(M0_,2)} op_sel_hi:[1,0]")
        A(f"v_pk_mul_f32 {v(OT+2,2)}, {v(OT+2,2)}, {v(M0_,2)} op_sel_hi:[1,0]")
        pk2(OT, OT)
        A(f"ds_write_b64 {v(vOW)}, {v(OT,2)}")
        A(f"v_pk_mul_f32 {v(OT1,2)}, {v(OT1,2)}, {v(M0_,2)} op_sel_hi:[1,0]")
        A(f"v_pk_mul_f32 {v(OT1+2,2)}, {v(OT1+2,2)}, {v(M0_,2)} op_sel_hi:[1,0]")
        pk2(OT1, OT1)
        A(f"ds_write_b64 {v(vOW)}, {v(OT1,2)} offset:256")
        for r in zl[npre+1:]: A(f"v_mov_b32 {v(r)}, 0")
        A(f"""
        s_add_u32 s{sT0}, s{sPW}, {4*65536}
        s_add_u32 s{sT1}, s{sPW}, {65536}
        s_waitcnt lgkmcnt(0)
        """)
        TQ("smend")
        PH(4)
        A("s_barrier")
        if trace: TR(0); A("s_waitcnt lgkmcnt(0)")
        lg.clear()
        for ks in range(4):
            A(f"ds_read_b128 {v(OF[ks],4)}, {v(vAF)} offset:{L_O-HI+ks*512}"); lg.push(f"O{ks}")
        SEL = D0 + 36; RT = D0 + 40; RDd = D0 + 20; RBS = [[D0 + 28, D0 + 32, D0 + 52, D0 + 24], [D0 + 44, D0 + 48, D0 + 12, D0 + 16]]
        A(f"""
        s_add_u32 s{sT2}, s{sPW}, {2*65536}
        s_add_u32 s{sT3}, s{sPW}, {3*65536}
        s_add_u32 s{sSTEP}, s{sSTEP}, 1
        s_add_u32 s{sSEG}, s{sSEG}, {0 if fixseg else RECSZ}
        s_mov_b32 s{sSPIN}, {SPIN}
        """)
        TQ("wostart")
        PH(5)
        tagop = lambda r: (f"v_or_b32 {v(r)}, 1, {v(r)}" if par else f"v_and_b32 {v(r)}, -2, {v(r)}")
        def out_ops(a0, soff, half=False):
            ops = [f"v_cvt_pk_bf16_f32 {v(a0)}, {v(a0)}, {v(a0+1)}", f"v_cvt_pk_bf16_f32 {v(a0+1)}, {v(a0+2)}, {v(a0+3)}",
                   tagop(a0), tagop(a0 + 1)]
            st = f"buffer_store_dwordx2 {v(a0,2)}, {v(vPST)}, {srd(SRD_WS)}, s{soff} offen{sc}"
            if half: st = f"s_mov_b64 exec, s[{sLO32}:{sLO32+1}]\n{st}\ns_mov_b64 exec, -1"
            return ops + [st]
        mfl = [("d", ks) for ks in range(4)] + [(p, ks) for p in range(4) for ks in range(4)]
        groups = [(3, out_ops(WA8, sT0, True))] + [(7 + 4 * p, out_ops(WAo[p], [sPW, sT1, sT2, sT3][p])) for p in range(4)]
        ic = [0]; pos = {}
        def emit(s_):
            A(s_); ic[0] += len([x for x in s_.split("\n") if x.strip()])
        cur = []; gi = 0
        for n, (p, ks) in enumerate(mfl):
            if p == "d":
                n0 = len(A.lines); lg.wait(f"O{ks}"); ic[0] += len(A.lines) - n0
                emit(f"v_mfma_f32_16x16x32_bf16 {v(WA8,4)}, {v(OF[ks],4)}, {WO8(ks)}, {'0' if ks == 0 else v(WA8,4)}")
            else:
                emit(f"v_smfmac_f32_16x16x64_bf16 {v(WAo[p],4)}, {v(OF[ks],4)}, {WO(p,ks)}, {v(IDX)}")
            ic[0] += MW - 1
            pos[n] = ic[0]
            k = 0
            while k < 2:
                if not cur and gi < len(groups) and groups[gi][0] <= n and ic[0] - pos[groups[gi][0]] >= (9 if MW > 1 else 8):
                    cur = list(groups[gi][1]); gi += 1
                if not cur: break
                emit(cur.pop(0)); k += 1
        while cur or gi < len(groups):
            if not cur:
                need = 8 - (ic[0] - pos[groups[gi][0]])
                if need > 0: emit(f"s_nop {need-1}"); ic[0] += need - 1
                cur = list(groups[gi][1]); gi += 1
            emit(cur.pop(0))
        TQ("woend")
        PH(6)
        TR(1)
        A(f"s_cmp_eq_u32 s{sRED}, 0\ns_cbranch_scc1 {LP('nored')}")
        def rload(sidx):
            for i in range(4):
                A(f"buffer_load_dwordx4 {v(RBS[sidx][i],4)}, {v(vRED)}, {srd(SRD_WS)}, s{sPW} offen offset:{i*1024}{ld}")
        def rproc(sidx, br):
            for i in range(4):
                b = RBS[sidx][i]
                A(f"s_waitcnt vmcnt({(7 if RGAP else 3)-i})")
                mf(RDd, v(SEL, 4), v(b, 4), i == 0)
                o3 = (lambda d, x, y, z: f"v_bitop3_b32 {v(d)}, {v(x)}, {v(y)}, {v(z)} bitop3:0x80") if par else (lambda d, x, y, z: f"v_or3_b32 {v(d)}, {v(x)}, {v(y)}, {v(z)}")
                if i == 0:
                    A(o3(RT, b, b + 1, b + 2)); A(o3(RT, RT, b + 3, b + 3))
                else:
                    A(o3(RT, RT, b, b + 1)); A(o3(RT, RT, b + 2, b + 3))
            A(f"v_and_b32 {v(RT)}, 1, {v(RT)}\nv_cmp_ne_u32 vcc, {par}, {v(RT)}\n{br}")
        A(f"""
        s_mov_b32 s{sT0}, s{sRDLY}
    {LP('rdl')}:
        s_cmp_eq_u32 s{sT0}, 0
        s_cbranch_scc1 {LP('rgo')}
        s_sleep 1
        s_sub_u32 s{sT0}, s{sT0}, 1
        s_branch {LP('rdl')}
    {LP('rgo')}:
        """)
        TQ("rgo")
        rload(0)
        zero_acc()
        for r in range(4): A(f"v_cndmask_b32 {v(SEL+r)}, 0, {v(SELV)}, s[{sSEL+2*r}:{sSEL+2*r+1}]")
        if RGAP:
            if RGAP > 0: A(f"s_sleep {RGAP}")
            rload(1)
        A.label(LP('rp0'))
        rproc(0, f"s_cbranch_vccnz {LP('rf0')}")
        A.label(LP('rdone'))
        TQ("rdone")
        A(f"""
        {'s_sub_u32 s96, %d, s%d' % (SPIN, sSPIN) if cnt else 's_nop 0'}
        {'s_add_u32 s21, s21, s96' if cnt else 's_nop 0'}
        s_nop 0
        v_cndmask_b32 {v(RT)}, {v(RDd)}, {v(RDd+2)}, s[{sHI32}:{sHI32+1}]
        v_cndmask_b32 {v(RT+1)}, {v(RDd+1)}, {v(RDd+3)}, s[{sHI32}:{sHI32+1}]
        v_cndmask_b32 {v(RT+3)}, {v(RT+1)}, {v(RT)}, s[{sN8}:{sN8+1}]
        v_cndmask_b32 {v(RT+2)}, {v(RT)}, {v(RT+1)}, s[{sN8}:{sN8+1}]
        s_nop 0
        v_add_f32_dpp {v(RT+2)}, {v(RT+3)}, {v(RT+2)} row_ror:8 row_mask:0xf bank_mask:0xf
        v_mov_b32 {v(RT+3)}, {v(RT+2)}
        s_nop 1
        v_permlane16_swap_b32 {v(RT+2)}, {v(RT+3)}
        v_cvt_pk_bf16_f32 {v(RT+2)}, {v(RT+2)}, {v(RT+3)}
        v_min_u32 {v(TMP)}, -2, {v(RT+2)}
        s_mov_b64 exec, s[{sPM}:{sPM+1}]
        buffer_store_dword {v(TMP)}, {v(vPUB)}, {srd(SRD_WS)}, s{sMW} offen{sc}
        buffer_store_dword {v(vSP)}, {v(vPUB)}, {srd(SRD_WS)}, s{sMA} offen{sc}
        s_mov_b64 exec, -1
        """)
        TQ("pub")
        PH(7)
        TR(2)
        if trace: A("s_waitcnt lgkmcnt(0)")
        A(f"s_branch {nxt_loop}")
        A.label(LP('nored'))
        if trace: A("s_waitcnt vmcnt(0)"); TR(2); A("s_waitcnt lgkmcnt(0)")
        zero_acc()
        if merged:
            A(f"""
            s_cmp_lg_u32 s{W}, 3
            s_cbranch_scc1 {LP('nkv')}
            v_mov_b32 {v(vSP)}, s{sSTEP}
            s_cmp_ge_u32 s{sKV}, 64
            s_cbranch_scc1 {LP('nkv')}
            s_waitcnt vmcnt(7)
            v_cmp_ne_u32 vcc, 4, {v(TMP)}
            s_ff1_i32_b64 s{sKV}, vcc
            s_cmp_lt_i32 s{sKV}, 0
            s_cselect_b32 s{sKV}, 64, s{sKV}
            s_cselect_b32 s{sKVO}, 0x40000000, s{sKVO}
            s_add_u32 s{sT0}, s{sSTEP}, {WARMD + 1}
            s_min_u32 s{sT0}, s{sT0}, 64
            """)
            kv_wait(sT0, LP('kv'))
            A.label(LP('nkv'))
        if tstep:
            A(f"s_cmp_lg_u32 s{W}, 2\ns_cbranch_scc1 {LP('nts')}\ns_memrealtime s[96:97]\ns_waitcnt lgkmcnt(0)\ns_mov_b32 m0, s{sSTEP}\nv_writelane_b32 {v(vSP)}, s96, m0\n{LP('nts')}:")
        if CDN: A(f"s_sleep {CDN}")
        A(f"s_branch {nxt_loop}x")
        A.label(LP('rf0'))
        rload(0); spin()
        if RGAP:
            rproc(1, f"s_cbranch_vccz {LP('rdone')}")
            rload(1); spin()
        A(f"s_branch {LP('rp0')}")
        if CGAP:
            A.label(LP('cf'))
            cload2(AS[0]); spin()
            cproc(AS[2], 2, f"s_cbranch_vccz {LP('cok')}")
            cload2(AS[2]); spin()
            A(f"s_branch {LP('cp')}")
            A(f"{LP('cok')}:\ns_waitcnt vmcnt(0)\ns_branch {LP('cdj')}")
        A.label(LP('slow'))
        A(f"s_sub_u32 s97, s{sMA}, {HI}\ns_waitcnt lgkmcnt(0)\ns_nop 7")
        zero_acc()
        for kp in range(9):
            lab = LP(f'sp{kp}_')
            for h in range(2):
                kk = 2 * kp + h
                if kk != 17:
                    A(f"ds_read_b128 {v(WR[h],4)}, {v(vWV)} offset:{kk*2048}\nds_read_b128 {v(WR[h]+4,4)}, {v(vWV)} offset:{kk*2048+1024}")
            A(f"""
{lab}:
            buffer_load_dwordx4 {v(AS[0],4)}, {v(vAF)}, {srd(SRD_WS)}, s97 offen sc1
            buffer_load_dwordx4 {v(AS[1],4)}, {v(vAF)}, {srd(SRD_WS)}, s97 offen offset:512 sc1
            """)
            spin()
            A(f"""
            s_waitcnt vmcnt(0) lgkmcnt(0)
            v_max3_u32 {v(TMP)}, {v(AS[0])}, {v(AS[0]+1)}, {v(AS[0]+2)}
            v_max3_u32 {v(TMP)}, {v(TMP)}, {v(AS[0]+3)}, {v(AS[1])}
            v_max3_u32 {v(TMP)}, {v(TMP)}, {v(AS[1]+1)}, {v(AS[1]+2)}
            v_max_u32 {v(TMP)}, {v(TMP)}, {v(AS[1]+3)}
            v_cmp_eq_u32 vcc, -1, {v(TMP)}
            s_cbranch_vccnz {lab}
            """)
            for h in range(2):
                kk = 2 * kp + h
                sm(AQ, v(AS[h], 4), WQ(kk)); sm(AK, v(AS[h], 4), WK(kk)); sm(AV, v(AS[h], 4), v(WR[h], 8) if kk != 17 else v(WVR, 8))
            A(f"s_add_u32 s97, s97, 1024")
        if prof: A(f"s_mov_b64 exec, {1 << 10}\nv_add_u32 v1, 63, v1\ns_mov_b64 exec, -1")
        if cnt: A("s_add_u32 s20, s20, 0x10000")
        import common
        if common.HST:
            A(f"v_mov_b32 {v(TMP)}, 1\ns_mov_b64 exec, 1\nbuffer_atomic_add {v(TMP)}, off, {srd(SRD_DBG)}, 32 sc1\ns_mov_b64 exec, -1\ns_waitcnt vmcnt(0)")
        A("s_nop 7")
        qk_write()
        for n in range(2, 6): A(f"ds_read_b128 {v(KXR[n],4)}, {v(vKX)} offset:{L_KX-HI+(n>>1)*2048+(n&1)*128}")
        A(f"s_waitcnt lgkmcnt(0)\ns_branch {LP('slowret')}")
    step_body(0, sc, ''); step_body(1, sc, '')
    if merged:
        step_body(0, ' sc1', 'S'); step_body(1, ' sc1', 'S')
    A.label(L('done'))
    A(f"""
    s_lshr_b32 s{sT2}, s{sSEG}, 1
    s_add_u32 s{sT1}, s{sT2}, {WS_VM - L_Q}
    s_add_u32 s{sT4}, s{sT2}, {WS_KM - L_Q}
    v_min_u32 {v(D0+12)}, -2, {v(D0+12)}
    v_min_u32 {v(D0+13)}, -2, {v(D0+13)}
    buffer_store_dwordx2 {v(D0+12,2)}, {v(vQW)}, {srd(SRD_WS)}, s{sT4} offen sc1
    v_cvt_pk_bf16_f32 {v(D0+14)}, {v(D0+8)}, {v(D0+9)}
    v_cvt_pk_bf16_f32 {v(D0+15)}, {v(D0+10)}, {v(D0+11)}
    v_min_u32 {v(D0+14)}, -2, {v(D0+14)}
    v_min_u32 {v(D0+15)}, -2, {v(D0+15)}
    buffer_store_dwordx2 {v(D0+14,2)}, {v(vQW)}, {srd(SRD_WS)}, s{sT1} offen sc1
    """)
    A("s_waitcnt vmcnt(0) lgkmcnt(0)")
    if merged:
        A(f"""
        s_barrier
        s_cmp_lg_u32 s{W}, 3
        s_cbranch_scc1 {L('nfin')}
        v_mov_b32 {v(TMP)}, 64
        v_mov_b32 {v(D0+52)}, s{sPRG}
        s_mov_b64 exec, 1
        buffer_store_dword {v(TMP)}, {v(D0+52)}, {srd(SRD_WS)}, 0 offen sc1
        s_mov_b64 exec, -1
        s_waitcnt vmcnt(0)
{L('nfin')}:
        """)
    if cnt:
        A(f"v_mov_b32 v1, s20\ns_mov_b64 exec, 2\nv_mov_b32 v1, s21\ns_mov_b64 exec, -1")
        A("s_memtime s[96:97]\ns_memrealtime s[100:101]\ns_waitcnt lgkmcnt(0)\ns_sub_u32 s96, s96, s99\ns_sub_u32 s100, s100, s98")
        A("s_mov_b64 exec, 4\nv_mov_b32 v1, s96\ns_mov_b64 exec, 8\nv_mov_b32 v1, s100\ns_mov_b64 exec, -1")
    if trace:
        for i in range(6): A(f"s_mov_b64 exec, {1 << i}\nv_mov_b32 v1, s{8+2*i}")
        A("s_mov_b64 exec, -1")
    if tq:
        for i in range(len(tq)): A(f"s_mov_b64 exec, {1 << i}\nv_mov_b32 v1, s{8+2*i}")
        A("s_mov_b64 exec, -1")
    if tstart:
        TS(7)
        A("s_mov_b32 s8, s100\ns_mov_b32 s10, s98")
        for i in range(8): A(f"s_mov_b64 exec, {1 << i}\nv_mov_b32 v1, s{8+2*i}")
        A("s_mov_b64 exec, -1")
    if tstep: A(f"v_mov_b32 v1, {v(vSP)}")
    if prof or cnt or trace or tq or tstep or tstart:
        A(f"""
        s_lshl_b32 s96, s{s_head}, 2
        s_add_u32 s96, s96, s{W}
        s_lshl_b32 s96, s96, 8
        s_add_u32 s96, s96, {WS_STAMP + 0x10000}
        v_lshrrev_b32 v28, 2, {v(vCON)}
        v_and_b32 v28, 255, v28
        buffer_store_dword v1, v28, {srd(SRD_WS)}, s96 offen
        s_waitcnt vmcnt(0)
        """)
    stamp(A, 10, s_id=s_head)
    hstamp(A, 14)
```

```python
from common import *
from mod_r4 import f32bits, CEXP, SPIN

NEGBIG = -1.0e9 / (128 ** -0.5)

XV_LANE16, XV_KM, XV_VM, XV_V = 2, 3, 4, 5
def X_setup(A):
    A(f"""
    v_lshlrev_b32 {v(XV_LANE16)}, 4, v1
    v_bfe_u32 {v(XV_KM)}, v1, 2, 2
    v_lshrrev_b32 v6, 5, v1
    v_lshl_add_u32 {v(XV_KM)}, v6, 2, {v(XV_KM)}
    v_lshlrev_b32 {v(XV_KM)}, 4, {v(XV_KM)}
    v_and_b32 v7, 1, v1
    v_lshl_add_u32 {v(XV_KM)}, v7, 3, {v(XV_KM)}
    s_lshl_b32 s60, s{S_WAVE}, 11
    v_add_u32 {v(XV_KM)}, s60, {v(XV_KM)}
    v_and_b32 {v(XV_VM)}, 31, v1
    v_lshlrev_b32 {v(XV_VM)}, 4, {v(XV_VM)}
    v_lshl_add_u32 {v(XV_VM)}, v6, 3, {v(XV_VM)}
    s_lshl_b32 s60, s{S_WAVE}, 9
    v_add_u32 {v(XV_VM)}, s60, {v(XV_VM)}
    s_lshl_b32 s60, s{S_WAVE}, 11
    v_add_u32 {v(XV_V)}, s60, {v(XV_LANE16)}
    """)

XQ, XV_, XSX, XT0 = 184, 216, 224, 240
def X_pre(A, s_rec):
    Q, K, V_, SX, T0, T1 = XQ, 8, XV_, XSX, XT0, 40
    A(f"""
    s_lshl_b32 s60, s{s_rec}, 13
    s_add_u32 s61, s60, {WS_QX}
    s_add_u32 s62, s60, {WS_KX}
    s_add_u32 s63, s60, {WS_VX}
    """)
    for i in range(8):
        if i == 4:
            A("s_add_u32 s61, s61, 4096\ns_add_u32 s62, s62, 4096")
        A(f"buffer_load_dwordx4 {v(Q+4*i,4)}, {v(XV_LANE16)}, {srd(SRD_WS)}, s61 offen offset:{(i&3)*1024} sc1")
        A(f"buffer_load_dwordx4 {v(K+4*i,4)}, {v(XV_LANE16)}, {srd(SRD_WS)}, s62 offen offset:{(i&3)*1024} sc1")
    for j in range(2):
        A(f"buffer_load_dwordx4 {v(V_+4*j,4)}, {v(XV_V)}, {srd(SRD_WS)}, s63 offen offset:{j*1024} sc1")
    for i in range(8):
        A(f"s_waitcnt vmcnt({16 - 2*i})")
        A(f"v_mfma_f32_32x32x16_bf16 {v(SX,16)}, {v(K+4*i,4)}, {v(Q+4*i,4)}, {'0' if i == 0 else v(SX,16)}")
    A(f"v_mov_b32 {v(T1)}, {f32bits(NEGBIG)}\ns_nop 8")
    for i in range(16):
        m = 0
        for l in range(64):
            key = 8 * (i // 4) + 4 * (l >> 5) + i % 4
            if key <= (l & 31): m |= 1 << l
        A(f"s_mov_b32 s60, {m & 0xffffffff}\ns_mov_b32 s61, {m >> 32}")
        A(f"v_cndmask_b32 {v(SX+i)}, {v(T1)}, {v(SX+i)}, s[60:61]")
    A(f"v_max3_f32 {v(T0)}, {v(SX)}, {v(SX+1)}, {v(SX+2)}")
    for i in range(3, 15, 2):
        A(f"v_max3_f32 {v(T0)}, {v(T0)}, {v(SX+i)}, {v(SX+i+1)}")
    A(f"v_max_f32 {v(T0)}, {v(T0)}, {v(SX+15)}\ns_waitcnt vmcnt(0)")

def X_post(A, s_item, s_rec, sc=" sc1"):
    Q, V_, SX, T0 = XQ, XV_, XSX, XT0
    KM, VM, SM, P0, P1, PM, O, T1 = 8, 40, 44, 60, 64, 68, 72, 88
    A(f"""
    s_lshl_b32 s60, s{s_rec}, 12
    s_add_u32 s61, s60, {WS_KM}
    s_add_u32 s62, s60, {WS_VM}
    v_mov_b32 {v(VM+2)}, 0
    v_mov_b32 {v(VM+3)}, 0
    v_mov_b32 {v(PM+2)}, 0
    v_mov_b32 {v(PM+3)}, 0
    s_mov_b32 s63, {SPIN}
X_poll:
    buffer_load_dwordx4 {v(O,4)}, {v(XV_LANE16)}, {srd(SRD_WS)}, s61 offen sc1
    buffer_load_dwordx4 {v(O+4,4)}, {v(XV_LANE16)}, {srd(SRD_WS)}, s61 offen offset:1024 sc1
    buffer_load_dwordx2 {v(VM,2)}, {v(XV_VM)}, {srd(SRD_WS)}, s62 offen sc1
    s_cmp_lt_u32 s{s_item}, {63*32}
    s_waitcnt vmcnt(0)
    s_cbranch_scc1 X_have
    v_max3_u32 {v(T1)}, {v(O)}, {v(O+1)}, {v(O+2)}
    v_max3_u32 {v(T1)}, {v(T1)}, {v(O+3)}, {v(O+4)}
    v_max3_u32 {v(T1)}, {v(T1)}, {v(O+5)}, {v(O+6)}
    v_max3_u32 {v(T1)}, {v(T1)}, {v(O+7)}, {v(VM)}
    v_max_u32 {v(T1)}, {v(T1)}, {v(VM+1)}
    v_cmp_eq_u32 vcc, -1, {v(T1)}
    s_cbranch_vccz X_have
    s_sub_u32 s63, s63, 1
    s_cbranch_scc1 X_have
    s_sleep 5
    s_branch X_poll
X_have:
    ds_write_b128 {v(XV_V)}, {v(O,4)}
    ds_write_b128 {v(XV_V)}, {v(O+4,4)} offset:1024
    """)
    for i in range(8):
        A(f"ds_read_b64_tr_b16 {v(KM+4*i,2)}, {v(XV_KM)} offset:{i*256}")
        A(f"ds_read_b64_tr_b16 {v(KM+4*i+2,2)}, {v(XV_KM)} offset:{i*256+128}")
        if i == 5: A("s_waitcnt lgkmcnt(8)")
    for i in range(8):
        A(f"s_waitcnt lgkmcnt({min(8, 14 - 2*i)})")
        A(f"v_mfma_f32_32x32x16_bf16 {v(SM,16)}, {v(KM+4*i,4)}, {v(Q+4*i,4)}, {'0' if i == 0 else v(SM,16)}")
    A(f"""
    s_mov_b32 s60, {f32bits(CEXP)}
    s_nop 10
    v_max3_f32 {v(T0)}, {v(T0)}, {v(SM)}, {v(SM+1)}
    v_max3_f32 {v(T0)}, {v(T0)}, {v(SM+2)}, {v(SM+3)}
    v_mov_b32 {v(T1)}, {v(T0)}
    s_nop 1
    v_permlane32_swap_b32 {v(T0)}, {v(T1)}
    v_max_f32 {v(T0)}, {v(T0)}, {v(T1)}
    v_mul_f32 {v(T0)}, s60, {v(T0)}
    """)
    regs = [SX + i for i in range(16)] + [SM + i for i in range(4)]
    for r in regs: A(f"v_fma_f32 {v(r)}, {v(r)}, s60, -{v(T0)}")
    for r in regs: A(f"v_exp_f32 {v(r)}, {v(r)}")
    A("s_nop 0")
    A(f"v_add_f32 {v(T0)}, {v(regs[0])}, {v(regs[1])}")
    for r in regs[2:]: A(f"v_add_f32 {v(T0)}, {v(T0)}, {v(r)}")
    A(f"""
    v_mov_b32 {v(T1)}, {v(T0)}
    s_nop 1
    v_permlane32_swap_b32 {v(T0)}, {v(T1)}
    v_add_f32 {v(T0)}, {v(T0)}, {v(T1)}
    v_rcp_f32 {v(T0)}, {v(T0)}
    s_nop 0
    """)
    for r in regs: A(f"v_mul_f32 {v(r)}, {v(r)}, {v(T0)}")
    for i in range(8): A(f"v_cvt_pk_bf16_f32 {v(P0+i)}, {v(SX+2*i)}, {v(SX+2*i+1)}")
    for i in range(2): A(f"v_cvt_pk_bf16_f32 {v(PM+i)}, {v(SM+2*i)}, {v(SM+2*i+1)}")
    A(f"""
    s_waitcnt vmcnt(0)
    s_nop 0
    v_mfma_f32_32x32x16_bf16 {v(O,16)}, {v(V_,4)}, {v(P0,4)}, 0
    v_mfma_f32_32x32x16_bf16 {v(O,16)}, {v(V_+4,4)}, {v(P1,4)}, {v(O,16)}
    v_mfma_f32_32x32x16_bf16 {v(O,16)}, {v(VM,4)}, {v(PM,4)}, {v(O,16)}
    s_lshl_b32 s60, s{s_item}, 13
    s_add_u32 s60, s60, {WS_OX}
    s_nop 10
    """)
    for i in range(8): A(f"v_cvt_pk_bf16_f32 {v(O+i)}, {v(O+2*i)}, {v(O+2*i+1)}")
    A(f"buffer_store_dwordx4 {v(O,4)}, {v(XV_V)}, {srd(SRD_WS)}, s60 offen{sc}")
    A(f"buffer_store_dwordx4 {v(O+4,4)}, {v(XV_V)}, {srd(SRD_WS)}, s60 offen offset:1024{sc}")


OV_L16, OV_RD, OV_ST, OV_A = 160, 161, 162, 163
O_RED = 131072
def O_setup(A, s_cb, keep=False):
    T0, T1, VD, VT = 164, 165, 166, 167
    A(f"""
    v_lshrrev_b32 {v(T0)}, 2, v1
    v_mul_u32_u24 {v(VD)}, 1152, {v(T0)}
    v_and_b32 {v(T0)}, 3, v1
    v_lshl_add_u32 {v(VD)}, {v(T0)}, 4, {v(VD)}
    s_lshl_b32 s60, s{s_cb}, 6
    s_mul_i32 s61, s{S_WAVE}, {1024*1152}
    s_add_u32 s60, s60, s61
    s_lshl_b32 s63, s{S_WAVE}, 15
    v_bfe_u32 {v(T0)}, v1, 2, 2
    v_lshrrev_b32 {v(T1)}, 5, v1
    v_lshl_add_u32 {v(T0)}, {v(T1)}, 2, {v(T0)}
    v_lshlrev_b32 {v(VT)}, 6, {v(T0)}
    v_bfe_u32 {v(T0)}, v1, 4, 1
    v_lshl_add_u32 {v(VT)}, {v(T0)}, 5, {v(VT)}
    v_and_b32 {v(T0)}, 3, v1
    v_lshl_add_u32 {v(VT)}, {v(T0)}, 3, {v(VT)}
    v_add_u32 {v(VT)}, s63, {v(VT)}
    """)
    def dma(hh):
        for n in range(8):
            A(f"s_add_u32 m0, s63, {(hh & 3)*8192 + n*1024}")
            A(f"s_add_u32 s62, s60, {(hh*128 + n*16)*1152}")
            A(f"buffer_load_dwordx4 {v(VD)}, {srd(SRD_WO)}, s62 offen lds")
    for hh in range(4): dma(hh)
    for hh in range(8):
        A(f"s_waitcnt vmcnt({min(3, 7-hh)*8})")
        for ks in range(8):
            for t in range(2):
                off = (hh & 3) * 8192 + (ks * 16 + t * 8) * 64
                A(f"ds_read_b64_tr_b16 {a((hh*8+ks)*4 + 2*t, 2)}, {v(VT)} offset:{off}")
        if hh + 4 < 8:
            A("s_waitcnt lgkmcnt(0)")
            dma(hh + 4)
    A("s_waitcnt lgkmcnt(0)")
    if not keep: O_addr(A, s_cb)

def O_addr(A, s_cb):
    T0 = 164
    A(f"""
    v_lshlrev_b32 {v(OV_A)}, 4, v1
    s_lshl_b32 s60, s{S_WAVE}, 12
    s_add_u32 s60, s60, {O_RED}
    v_add_u32 {v(OV_L16)}, s60, {v(OV_A)}
    s_lshl_b32 s60, s{S_WAVE}, 10
    s_add_u32 s60, s60, {O_RED}
    v_add_u32 {v(OV_RD)}, s60, {v(OV_A)}
    s_lshl_b32 s60, s{S_WAVE}, 16
    v_add_u32 {v(OV_A)}, s60, {v(OV_A)}
    v_and_b32 {v(T0)}, 31, v1
    v_mul_u32_u24 {v(OV_ST)}, 2304, {v(T0)}
    v_lshrrev_b32 {v(T0)}, 5, v1
    v_lshl_add_u32 {v(OV_ST)}, {v(T0)}, 3, {v(OV_ST)}
    s_lshl_b32 s60, s{s_cb}, 6
    s_lshl_b32 s61, s{S_WAVE}, 4
    s_add_u32 s60, s60, s61
    s_add_u32 s60, s60, 1152
    v_add_u32 {v(OV_ST)}, s60, {v(OV_ST)}
    """)

def O_item(A, s_seg, s_par):
    NR = 32
    F = 8
    ACC = 168
    R = 136
    A(f"""
    s_lshl_b32 s60, s{s_seg}, 18
    s_add_u32 s60, s60, {WS_OX}
    """)
    def ld(i):
        if i % 4 == 0 and i > 0:
            A("s_add_u32 s60, s60, 4096")
        A(f"buffer_load_dwordx4 {v(F+4*(i%NR),4)}, {v(OV_A)}, {srd(SRD_WS)}, s60 offen offset:{(i&3)*1024} sc1")
    for i in range(NR): ld(i)
    for i in range(64):
        A(f"s_waitcnt vmcnt({min(NR-1, 63-i)})")
        A(f"v_mfma_f32_32x32x16_bf16 {v(ACC,16)}, {a(4*i,4)}, {v(F+4*(i%NR),4)}, {'0' if i == 0 else v(ACC,16)}")
        if i + NR < 64: ld(i + NR)
    A(f"""
    v_add_u32 {v(R)}, s{s_par}, {v(OV_L16)}
    v_add_u32 {v(R+1)}, s{s_par}, {v(OV_RD)}
    s_xor_b32 s{s_par}, s{s_par}, 16384
    s_mul_i32 s60, s{s_seg}, {32*2304}
    s_nop 8
    """)
    for q in range(4):
        A(f"ds_write_b128 {v(R)}, {v(ACC+4*q,4)} offset:{q*1024}")
    A("s_waitcnt lgkmcnt(0)\ns_barrier")
    for q in range(4):
        A(f"ds_read_b128 {v(ACC+4*q,4)}, {v(R+1)} offset:{q*4096}")
    A("s_waitcnt lgkmcnt(2)")
    A(f"v_pk_add_f32 {v(ACC,2)}, {v(ACC,2)}, {v(ACC+4,2)}\nv_pk_add_f32 {v(ACC+2,2)}, {v(ACC+2,2)}, {v(ACC+6,2)}")
    A("s_waitcnt lgkmcnt(0)")
    A(f"v_pk_add_f32 {v(ACC+8,2)}, {v(ACC+8,2)}, {v(ACC+12,2)}\nv_pk_add_f32 {v(ACC+10,2)}, {v(ACC+10,2)}, {v(ACC+14,2)}")
    A(f"v_pk_add_f32 {v(ACC,2)}, {v(ACC,2)}, {v(ACC+8,2)}\nv_pk_add_f32 {v(ACC+2,2)}, {v(ACC+2,2)}, {v(ACC+10,2)}")
    A(f"""
    v_cvt_pk_bf16_f32 {v(ACC)}, {v(ACC)}, {v(ACC+1)}
    v_cvt_pk_bf16_f32 {v(ACC+1)}, {v(ACC+2)}, {v(ACC+3)}
    buffer_store_dwordx2 {v(ACC,2)}, {v(OV_ST)}, {srd(SRD_OUT)}, s60 offen
    """)
```

```python
from common import *
import math, struct, sys, os

WSTR = 36864
L_Q = 34816
L_K = 34816 + WSTR
L_O = 34816 + 2 * WSTR
L_MEMF = 145408
L_KX = 145408 + 9216
L_V = L_MEMF + 4096
HI = 98304
PSLOT = 72 * 4096
MSLOT = 9216
SPIN = 200000
CEXP = (128 ** -0.5) * math.log2(math.e)
def f32bits(x): return struct.unpack("<I", struct.pack("<f", x))[0]

def WQ(kk): return wreg(kk * 8, 8)
def WK(kk): return wreg(144 + kk * 8, 8)
def WO(p, ks): return wreg(288 + (p * 4 + ks) * 8, 8)
def WO8(ks): return wreg(288 + 128 + ks * 4, 4)

class LQ:
    def __init__(self, A, name): self.A, self.name, self.q = A, name, []
    def push(self, tag, n=1): self.q += [tag] * n; assert len(self.q) <= (15 if self.name == "lgkmcnt" else 63), self.q
    def wait(self, tag):
        if tag not in self.q: return
        idx = max(i for i, t in enumerate(self.q) if t == tag)
        self.A(f"s_waitcnt {self.name}({len(self.q) - 1 - idx})")
        del self.q[:idx + 1]
    def clear(self): self.q = []

def mod_R(A, s_head, sc="", pfx="R", abort="R_abort", last=63, prof=False, RD_=(0, 0, 0, 1, 2), CD=0, hooks=None, WARMD=2, cnt=False,
          CDN=0, fixseg=False, nokm=False, x_nowv=False, trace=False, RGAP=0, CGAP=0, ld=' sc1', tq=None, merged=False, wbar=False, worder='qk', wnt='', tstart=False, ARMAT=9, NVMIX=5, HELP=0, HAT=27, MW=3, HOLD=0, KXE=0, RAL=0, R1N=4, EL=26, eflag=True, EFAT=13, WAT=14, FAT=16, tstep=False, CDN3=0, nowarm=False, R2AT=1, R3AT=7, B2AT=6, B3AT=13):
    assert eflag and (R2AT < R3AT and R3AT + 1 <= B2AT if KXE else R3AT > B2AT and R2AT + 2 < B2AT)
    def TQ(tag):
        if tq and tag in tq: A(f"s_memtime s[{8+2*tq.index(tag)}:{9+2*tq.index(tag)}]")

    def TR(i):
        if trace: A(f"s_memrealtime s[{8+2*i}:{9+2*i}]")

    L = lambda n: f"{pfx}_{n}"
    def TS(i):
        r = 98 if i == 1 else 8 + 2 * i
        if tstart: A(f"s_memrealtime s[{r}:{r+1}]\ns_waitcnt lgkmcnt(0)")
    W = S_WAVE
    hooks = hooks or {}
    def PH(i):
        if not prof: return
        A(f"""
        s_waitcnt lgkmcnt(0)
        s_memtime s[96:97]
        s_waitcnt lgkmcnt(0)
        s_sub_u32 s99, s96, s98
        s_mov_b32 s98, s96
        s_mov_b64 exec, {1 << i}
        v_add_u32 v1, s99, v1
        s_mov_b64 exec, -1
        """)
    TMP = 0
    IDX, SELV, vPST, vRED, vPUB, vCON, vAF, vWV, vQW, vQR, vKX, vOW, vVX, vSP = range(2, 16)
    vC1 = 1
    assert not prof
    WVR = 16
    D0 = 24
    sSTEP, sPW, sPR, sMW, sMR, sMA, sRED, sSEG = 64, 65, 66, 67, 68, 69, 70, 71
    sLO32, sHI32, sEVEN, sN8 = 72, 74, 76, 78
    sB2 = 81
    sKVO = 3
    sWOF = 80
    sC = 82
    sRDLY, sWB, sB1 = 84, 85, 59
    sB3, sM3, sPRG = 66, 57, 4
    sRDLY2 = 96
    sPM = sEVEN
    sSEL = 86
    sT0, sT1, sT2, sSPIN, sT3, sT4 = 60, 61, 62, 63, 94, 95
    T0, T1, T2 = D0, D0 + 1, D0 + 2
    stamp(A, 8, s_id=s_head)
    hstamp(A, 12)
    def bits(dst, terms, add=None):
        first = True
        for (off, n, sh) in terms:
            A(f"v_bfe_u32 {v(T2)}, v1, {off}, {n}")
            if first:
                A(f"v_lshlrev_b32 {v(dst)}, {sh}, {v(T2)}"); first = False
            else:
                A(f"v_lshl_add_u32 {v(dst)}, {v(T2)}, {sh}, {v(dst)}")
        if add is not None:
            A(f"v_add_u32 {v(dst)}, {add}, {v(dst)}")
    vWA, vWB = D0 + 52, D0 + 53
    vTR = [D0 + 44, D0 + 45]
    vTO = [D0 + 46 + k for k in range(4)]
    vTD = [D0 + 28 + k for k in range(4)]
    X0, X1 = D0 + 8, D0 + 9
    sWL = 7
    VS = D0 + 12
    A(f"""
    s_lshl_b32 s{sT0}, s{s_head}, 8
    s_lshr_b32 s{sT1}, s{W}, 1
    s_lshl_b32 s{sT1}, s{sT1}, 7
    s_add_u32 s{sT0}, s{sT0}, s{sT1}
    s_and_b32 s{sT1}, s{W}, 1
    s_lshl_b32 s{sT1}, s{sT1}, 18
    s_add_u32 s{sT0}, s{sT0}, s{sT1}
    s_mul_i32 s{sWL}, s{W}, {WSTR}
    """)
    bits(vWA, [(3, 3, 13), (0, 3, 4)], f"s{sT0}")
    grp = lambda ch: [("o", (p, kb2)) for p in range(5) for kb2 in range(2)] if ch == 'o' else [(ch, kb) for kb in range(9)]
    if len(worder) == 2: worder = worder + 'o'
    if worder == 'mix3':
        a_, b_ = grp('k') + grp('q') + grp('v')[:NVMIX], grp('o')
        na = len(a_); chunks = []
        while a_ or b_:
            if len(b_) * na >= len(a_) * 10 and b_ and chunks: chunks.append(b_.pop(0))
            else: chunks.append(a_.pop(0))
        chunks += grp('v')[NVMIX:]
    elif worder in ('mix', 'mix2'):
        a_, b_ = grp('k') + grp('q'), grp('o')
        if worder == 'mix2': a_ = [x for pr in zip(grp('k'), grp('q')) for x in pr]
        chunks = []
        while a_ or b_:
            if len(b_) * 18 >= len(a_) * 10 and b_ and chunks: chunks.append(b_.pop(0))
            else: chunks.append(a_.pop(0))
        chunks += [("v", kb) for kb in range(9)]
    else:
        chunks = grp(worder[0]) + grp(worder[1]) + grp(worder[2]) + [("v", kb) for kb in range(9)]
    A(f"""
    v_lshrrev_b32 {v(X0)}, 4, v1
    s_lshl_b32 s{sT0}, s{W}, 4
    v_add_u32 {v(X0)}, s{sT0}, {v(X0)}
    v_mul_u32_u24 {v(X0)}, 1152, {v(X0)}
    s_mul_i32 s{sT0}, s{s_head}, 147456
    v_add_u32 {v(X0)}, s{sT0}, {v(X0)}
    """)
    bits(vWB, [(0, 4, 4)], v(X0))
    NCH = len(chunks)
    vpos = {ix: c for c, (k_, ix) in enumerate(chunks) if k_ == 'v'}
    slot_map = {}; issue_after = {}
    nextpos = dict(vpos); prev_in_slot = {}
    for c in range(NCH - 1, -1, -1):
        k_, ix = chunks[c]
        if k_ == 'v': slot_map[c] = ix; continue
        sl = max((x for x in range(9) if nextpos[x] > c), key=lambda x: nextpos[x])
        slot_map[c] = sl; prev_in_slot[nextpos[sl]] = c; nextpos[sl] = c
    run = -1
    for c in range(NCH):
        run = max(run, prev_in_slot.get(c, -1))
        issue_after[c] = run
        assert run < c
    slot_of = lambda c: slot_map[c]
    vq = LQ(A, "vmcnt")
    LASTI = issue_after[NCH - 1]
    def wdma(c):
        kind, ix = chunks[c]; sl = slot_of(c)
        vq.push(f"C{c}", 4)
        for n in range(4):
            A(f"s_add_u32 m0, s{sWL}, {sl*4096 + n*1024}")
            if kind == "o":
                p, kb2 = ix
                A(f"s_mov_b32 s{sT1}, {(kb2*64 + n*4)*1152 + p*256}")
                A(f"buffer_load_dwordx4 {v(vWB)}, {srd(SRD_WO)}, s{sT1} offen{wnt} lds")
            else:
                A(f"s_mov_b32 s{sT1}, {ix*524288 + n*65536}")
                A(f"buffer_load_dwordx4 {v(vWA)}, {srd({'q': SRD_WQ, 'k': SRD_WK, 'v': SRD_WV}[kind])}, s{sT1} offen{wnt} lds")
    for c in range(NCH):
        if issue_after[c] == -1: wdma(c)
    TS(1)
    if 'resolve' in hooks: hooks['resolve']()
    TS(2)
    A.c("R setup")
    A(f"""
    s_mov_b32 s{sLO32}, -1
    s_mov_b32 s{sLO32+1}, 0
    s_mov_b32 s{sHI32}, 0
    s_mov_b32 s{sHI32+1}, -1
    s_mov_b32 s{sEVEN}, 0x55555555
    s_mov_b32 s{sEVEN+1}, 0x55555555
    s_mov_b32 s{sN8}, 0xff00ff00
    s_mov_b32 s{sN8+1}, 0xff00ff00
    s_mov_b32 s{sC}, {f32bits(CEXP)}
    s_mov_b32 s{sC+1}, {f32bits(CEXP)}
    s_lshl_b32 s{sWB}, s{W}, 10
    s_lshl_b32 s{sPRG}, s{s_head}, 7
    s_add_u32 s{sPRG}, s{sPRG}, {FLAG_RP}
    """)
    assert R1N == 4
    A(f"s_sub_u32 s{sB3}, 8192, s{sWB}\ns_mov_b32 s{sM3}, {L_MEMF + 8192}")
    A(f"s_mov_b32 s{sB1}, {WS_PART}\ns_mov_b32 s{sB2}, 0x40000000\ns_cmp_eq_u32 s{W}, 0\ns_cselect_b32 s{sT0}, s{sB2}, s{sB1}\ns_cselect_b32 s{sB2}, s{sB1}, s{sB2}\ns_mov_b32 s{sB1}, s{sT0}")
    for r in range(4):
        m = (0x03030303 << (2 * r)) & 0xffffffff
        A(f"s_mov_b32 s{sSEL+2*r}, {m}\ns_mov_b32 s{sSEL+2*r+1}, {m}")
    A(f"""
    v_mov_b32 {v(IDX)}, 0x44444444
    v_mov_b32 {v(T0)}, 0xeeeeeeee
    v_cndmask_b32 {v(IDX)}, {v(IDX)}, {v(T0)}, s[{sN8}:{sN8+1}]
    v_mov_b32 {v(SELV)}, 0x3f800000
    v_mov_b32 {v(T0)}, 0x3f80
    v_cndmask_b32 {v(SELV)}, {v(SELV)}, {v(T0)}, s[{sEVEN}:{sEVEN+1}]
    s_mov_b32 s{sPM}, 0xffff
    s_mov_b32 s{sPM+1}, 0xffff
    v_lshlrev_b32 {v(T0)}, 4, v1
    s_add_u32 s{sT0}, s{sWB}, {HI}
    v_add_u32 {v(vCON)}, s{sT0}, {v(T0)}
    s_mul_i32 s{sT0}, s{W}, {WSTR}
    v_add_u32 {v(vWV)}, s{sT0}, {v(T0)}
    s_lshl_b32 s{sT0}, s{W}, 5
    s_add_u32 s{sT0}, s{sT0}, s{s_head}           ; unit
    s_lshl_b32 s{sT1}, s{sT0}, 12
    s_cmp_lt_u32 s{sT0}, 72
    s_cselect_b32 s{sRED}, 1, 0
    s_cselect_b32 s{sT1}, s{sT1}, 0x40000000
    v_add_u32 {v(vRED)}, s{sT1}, {v(T0)}
    s_lshr_b32 s{sT1}, s{sT0}, 1
    s_lshl_b32 s{sT4}, s{sT1}, 5
    s_lshl_b32 s{sT1}, s{sT1}, 8
    s_and_b32 s{sT2}, s{sT0}, 1
    s_mul_i32 s{sT3}, s{sT2}, {4*1152}
    s_add_u32 s{sT4}, s{sT4}, s{sT3}
    s_lshl_b32 s{sT2}, s{sT2}, 6
    s_add_u32 s{sT1}, s{sT1}, s{sT2}
    s_lshr_b32 s{sT2}, s{sT0}, 4
    s_mov_b32 s{sRDLY}, {RD_[0]}
    """)
    for o in range(1, 5):
        A(f"s_cmp_eq_u32 s{sT2}, {o}\ns_cselect_b32 s{sRDLY}, {RD_[o]}, s{sRDLY}")
    bits(vPUB, [(2, 1, 7), (5, 1, 5), (3, 1, 4), (0, 2, 2)], f"s{sT1}")
    A(f"s_lshl_b32 s{sT1}, s{W}, 1\ns_xor_b32 s{sT2}, s{s_head}, s{sT1}\ns_lshl_b32 s{sT2}, s{sT2}, 7\ns_lshl_b32 s{sT1}, s{W}, 13")
    bits(vPST, [(5, 1, 10), (4, 1, 7)])
    A(f"v_xor_b32 {v(T1)}, s{sT2}, {v(vPST)}\nv_add_u32 {v(T1)}, s{sT1}, {v(T1)}")
    bits(vPST, [(5, 1, 15), (4, 1, 12), (0, 4, 3)], v(T1))
    A(f"s_lshl_b32 s{sT1}, s{W}, 9\ns_add_u32 s{sT2}, s{sT1}, {L_Q}")
    bits(vQW, [(5, 1, 8), (0, 4, 4), (4, 1, 3)], f"s{sT2}")
    bits(vQR, [(5, 1, 8), (4, 1, 6), (2, 2, 4), (0, 1, 3)], L_Q)
    bits(vKX, [(4, 2, 9), (3, 1, 8), (0, 3, 4)], HI)
    bits(vAF, [(4, 2, 7), (0, 3, 4)], HI)
    A(f"s_add_u32 s{sT2}, s{sT1}, {L_O}")
    bits(vOW, [(5, 1, 7), (0, 3, 4), (4, 1, 3)], f"s{sT2}")
    A(f"s_lshl_b32 s{sT1}, s{W}, 11")
    bits(vVX, [(4, 2, 9), (0, 4, 4)], f"s{sT1}")
    ARM = D0 + 4
    X0, X1 = D0 + 8, D0 + 9
    for i in range(4): A(f"v_mov_b32 {v(ARM+i)}, -1")
    A(f"s_cmp_eq_u32 s{sRED}, 0\ns_cbranch_scc1 {L('noarm')}")
    bits(X1, [(5, 1, 1), (3, 1, 0)])
    A(f"v_mul_u32_u24 {v(X1)}, 1152, {v(X1)}")
    bits(X0, [(0, 3, 2)], v(X1))
    A(f"buffer_load_dword {v(vSP)}, {v(X0)}, {srd(SRD_M0)}, s{sT4} offen")
    A(f"s_mov_b32 s{sT0}, {WS_PART}")
    for i in range(4):
        A(f"buffer_store_dwordx4 {v(ARM,4)}, {v(vRED)}, {srd(SRD_WS)}, s{sT0} offen offset:{i*1024} sc1")
    A(f"s_mov_b64 exec, s[{sEVEN}:{sEVEN+1}]")
    for sl in range(3):
        A(f"s_mov_b32 s{sT0}, {WS_MEMB + sl*MSLOT}")
        A(f"buffer_store_dword {v(ARM)}, {v(vPUB)}, {srd(SRD_WS)}, s{sT0} offen sc1")
    A("s_mov_b64 exec, -1")
    A.label(L('noarm'))
    if merged:
        A(f"""
        s_cmp_lg_u32 s{W}, 3
        s_cbranch_scc1 {L('nz')}
        v_lshlrev_b32 {v(X0)}, 2, v1
        v_mov_b32 {v(X1)}, 0
        s_lshl_b32 s{sT0}, s{s_head}, 8
        s_add_u32 s{sT0}, s{sT0}, {FLAG_KV}
        buffer_store_dword {v(X1)}, {v(X0)}, {srd(SRD_WS)}, s{sT0} offen sc1
        v_lshlrev_b32 {v(X0)}, {5 + OXS_LOG}, v1
        s_lshl_b32 s{sT0}, s{s_head}, {OXS_LOG}
        s_add_u32 s{sT0}, s{sT0}, {FLAG_OX}
        buffer_store_dword {v(X1)}, {v(X0)}, {srd(SRD_WS)}, s{sT0} offen sc1
        v_mov_b32 {v(X0)}, s{sPRG}
        buffer_store_dword {v(X1)}, {v(X0)}, {srd(SRD_WS)}, 0 offen sc1
{L('nz')}:
        """)
    A(f"""
    s_and_b32 s{sT0}, s{W}, 2
    s_mul_i32 s{sT0}, s{sT0}, {WSTR}
    s_and_b32 s{sT1}, s{W}, 1
    s_lshl_b32 s{sT1}, s{sT1}, 6
    s_add_u32 s{sT0}, s{sT0}, s{sT1}
    s_lshl_b32 s{sT1}, s{W}, 5
    """)
    bits(vTR[0], [(4, 2, 9), (2, 1, 7), (3, 1, 5), (0, 2, 3)], f"s{sT0}")
    A(f"v_add_u32 {v(vTR[1])}, {WSTR}, {v(vTR[0])}")
    bits(vTO[0], [(4, 2, 10), (2, 1, 8), (3, 1, 7), (0, 2, 3)], f"s{sT1}")
    bits(vTD[0], [(4, 1, 11), (2, 2, 8), (0, 2, 3)], f"s{sT1}")
    A(f"v_bfe_u32 {v(T2)}, v1, 5, 1\nv_mul_u32_u24 {v(T2)}, {WSTR}, {v(T2)}\nv_add_u32 {v(vTD[0])}, {v(vTD[0])}, {v(T2)}")
    for k in range(1, 4): A(f"v_add_u32 {v(vTO[k])}, {k*WSTR}, {v(vTO[0])}")
    A(f"v_add_u32 {v(vTD[1])}, {2*WSTR}, {v(vTD[0])}")
    def trread(dst_fn, h, sl):
        for t, ro in enumerate((0, 2, 16, 18)):
            A(f"ds_read_b64_tr_b16 {dst_fn(t)}, {v(vTR[h])} offset:{sl*4096 + ro*128}")
    def trread_o(dst_fn, h, sl):
        for t, (k, ro) in enumerate(((0, 0), (0, 2), (1, 0), (1, 2))):
            A(f"ds_read_b64_tr_b16 {dst_fn(t)}, {v(vTO[2*h+k])} offset:{sl*4096 + ro*256}")
    sub = lambda base, t: wreg(base + 2 * t, 2)
    print('weight seq', ''.join(k for k, _ in chunks), 'slots', [slot_map[c] for c in range(NCH)], 'after', [issue_after[c] for c in range(NCH)], file=sys.stderr) if 'WSEQ' in os.environ else None
    assert issue_after[ARMAT] >= 0 and all(chunks[c][0] != 'o' for c in range(LASTI + 1, NCH))
    sKV, sMODE, sEARLY, sWARMED = 5, 6, 3, 7
    def warm0():
        A(f"v_lshlrev_b32 {v(X0)}, 7, v1\ns_lshl_b32 s{sT0}, s{s_head}, 13")
        for sg in range(WARMD):
            A(f"s_add_u32 s{sT1}, s{sT0}, {WS_KX + sg*RECSZ}\nbuffer_load_dword {v(X1)}, {v(X0)}, {srd(SRD_WS)}, s{sT1} offen sc1")
            A(f"s_add_u32 s{sT1}, s{sT0}, {WS_VX + sg*RECSZ}\nbuffer_load_dword {v(X1)}, {v(X0)}, {srd(SRD_WS)}, s{sT1} offen sc1")
    for c in range(NCH):
        kind, ix = chunks[c]; sl = slot_of(c)
        vq.wait(f"C{c}")
        A("s_waitcnt lgkmcnt(0)\ns_barrier")
        if kind in "qk":
            base = 0 if kind == "q" else 144
            for h in range(2): trread(lambda t: sub(base + (2 * ix + h) * 8, t), h, sl)
        elif kind == "o":
            p, kb2 = ix
            for h in range(2):
                if p < 4: trread_o(lambda t: sub(288 + (p * 4 + 2 * kb2 + h) * 8, t), h, sl)
                else:
                    for t in range(2):
                        A(f"ds_read_b64_tr_b16 {wreg(288 + 128 + (2*kb2+h)*4 + 2*t, 2)}, {v(vTD[h])} offset:{sl*4096 + 4*t*256}")
        else:
            trread(lambda t: v(VS + 2 * t, 2), 0, sl)
            if ix < 8: trread(lambda t: v(VS + 8 + 2 * t, 2), 1, sl)
            else: trread(lambda t: v(WVR + 2 * t, 2), 1, sl)
        A("s_waitcnt lgkmcnt(0)\ns_barrier")
        if kind == "v":
            for q in range(4 if ix < 8 else 2):
                A(f"ds_write_b128 {v(vWV)}, {v(VS+4*q,4)} offset:{ix*4096 + q*1024}")
        if c == 0: TS(3)
        if c == 9: TS(4)
        if c == NCH - 1: TS(5)
        if c == ARMAT:
            A(f"""
            s_cmp_lg_u32 s{W}, 0
            s_cbranch_scc1 {L('armed')}
            v_mov_b32 {v(T0)}, 1
            v_mov_b32 {v(T1)}, {DBG_RARM}
            s_mov_b64 exec, 1
            buffer_atomic_add {v(T0)}, {v(T1)}, {srd(SRD_DBG)}, 0 offen sc1
            s_mov_b64 exec, -1
{L('armed')}:
            s_cmp_eq_u32 s{sRED}, 0
            s_cbranch_scc1 {L('nom0')}
            v_min_u32 {v(vSP)}, -2, {v(vSP)}
            s_mov_b32 s{sT0}, {WS_MEMB}
            s_mov_b64 exec, s[{sEVEN}:{sEVEN+1}]
            buffer_store_dword {v(vSP)}, {v(vPUB)}, {srd(SRD_WS)}, s{sT0} offen sc1
            s_mov_b64 exec, -1
            s_nop 0
            v_mov_b32 {v(vSP)}, -1
{L('nom0')}:
            """)
        for c2 in range(NCH):
            if issue_after[c2] == c: wdma(c2)
        if c == LASTI - 1:
            vq.push('E', 2)
            A(f"""
            v_lshlrev_b32 {v(X1)}, 2, v1
            s_lshl_b32 s{sT1}, s{s_head}, 8
            s_add_u32 s{sT1}, s{sT1}, {FLAG_KV}
            buffer_load_dword {v(D0+50)}, {v(X1)}, {srd(SRD_DBG)}, 0 offen sc1
            buffer_load_dword {v(D0+51)}, {v(X1)}, {srd(SRD_WS)}, s{sT1} offen sc1
            """)
        if c == NCH - 1:
            A(f"""
            v_readlane_b32 s{sEARLY}, {v(D0+50)}, {DBG_RARM//4}
            v_readlane_b32 s{sT1}, {v(D0+50)}, {DBG_OVH//4}
            v_cmp_ne_u32 vcc, 4, {v(D0+51)}
            s_cmp_eq_u32 s{sT1}, 0
            s_cselect_b32 s{sMODE}, 0, 1
            s_ff1_i32_b64 s{sKV}, vcc
            s_cmp_lt_i32 s{sKV}, 0
            s_cselect_b32 s{sKV}, 64, s{sKV}
            s_mov_b32 s{sWARMED}, 0
            """)
            if merged:
                A(f"""
                s_cmp_lg_u32 s{W}, 3
                s_cbranch_scc1 {L('nwe')}
                s_cmp_lt_u32 s{sKV}, {WARMD + 1}
                s_cbranch_scc1 {L('nwe')}
                """)
                warm0()
                A(f"s_mov_b32 s{sWARMED}, 1\n{L('nwe')}:")
        if c == LASTI:
            vq.push('P', 7)
            A(f"s_mov_b32 s{sT0}, {WS_PART}")
            for i in range(4):
                A(f"buffer_load_dwordx4 {v(D0+28+4*i,4)}, {v(vRED)}, {srd(SRD_WS)}, s{sT0} offen offset:{i*1024} sc1")
            for sl in range(3):
                A(f"s_mov_b32 s{sT0}, {WS_MEMB + sl*MSLOT}")
                A(f"buffer_load_dword {v(D0+46)}, {v(vPUB)}, {srd(SRD_WS)}, s{sT0} offen sc1")
    stamp(A, 9, s_id=s_head)
    hstamp(A, 13)
    AQ, AK, AV = D0, D0 + 4, D0 + 8
    AS = [D0 + 12 + 4 * i for i in range(4)]
    WR = [D0 + 28, D0 + 36, D0 + 44]
    korder = list(range(18))
    wvl = [kk for kk in korder if kk != 17]
    lg = LQ(A, "lgkmcnt")
    def wvread(f):
        if x_nowv: return
        o = wvl[f] * 2048; d = WR[f % 3]
        A(f"ds_read_b128 {v(d,4)}, {v(vWV)} offset:{o}")
        A(f"ds_read_b128 {v(d+4,4)}, {v(vWV)} offset:{o+1024}")
        lg.push(f"W{f}", 2)
    def kx_early():
        A(f"""
        s_sub_u32 s{sT0}, s{sWB}, 2048
        s_lshl_b32 s{sT0}, s{sT0}, 1
        s_add_u32 m0, s{sT0}, {L_KX}
        s_add_u32 s{sT1}, s{sSEG}, {WS_KX - HI}
        buffer_load_dwordx4 {v(vC1)}, {srd(SRD_WS)}, s{sT1} offen sc1 lds
        buffer_load_dwordx4 {v(vC1)}, {srd(SRD_WS)}, s{sT1} offen offset:1024 sc1 lds
        s_add_u32 m0, s{sT0}, {L_KX + 4096}
        s_add_u32 s{sT1}, s{sT1}, 4096
        buffer_load_dwordx4 {v(vC1)}, {srd(SRD_WS)}, s{sT1} offen sc1 lds
        buffer_load_dwordx4 {v(vC1)}, {srd(SRD_WS)}, s{sT1} offen offset:1024 sc1 lds
        """)
    def zero_acc():
        for i in range(12): A(f"v_mov_b32 {v(AQ+i)}, 0")
    def kv_wait(s_need, lab):
        A(f"""
        s_cmp_ge_u32 s{sKV}, s{s_need}
        s_cbranch_scc1 {lab}_ok
        s_waitcnt vmcnt(0)
        s_lshl_b32 s{sT1}, s{s_head}, 8
        s_add_u32 s{sT1}, s{sT1}, {FLAG_KV}
        v_lshrrev_b32 {v(TMP)}, 2, {v(vCON)}
        v_and_b32 {v(TMP)}, 255, {v(TMP)}
{lab}_p:
        buffer_load_dword {v(D0+40)}, {v(TMP)}, {srd(SRD_WS)}, s{sT1} offen sc1
        s_sub_u32 s{sSPIN}, s{sSPIN}, 1
        s_cbranch_scc1 {abort}
        s_waitcnt vmcnt(0)
        v_cmp_ne_u32 vcc, 4, {v(D0+40)}
        s_ff1_i32_b64 s{sKV}, vcc
        s_cmp_lt_i32 s{sKV}, 0
        s_cselect_b32 s{sKV}, 64, s{sKV}
        s_cmp_ge_u32 s{sKV}, s{s_need}
        s_cbranch_scc1 {lab}_ok
        s_sleep 4
        s_branch {lab}_p
{lab}_ok:
        """)
    A(f"""
    s_mov_b32 s{sSPIN}, {SPIN}
    v_lshlrev_b32 {v(T1)}, 2, v1
    s_cmp_ge_u32 s{sEARLY}, 32
    s_cbranch_scc1 {L('warmok')}
    s_mov_b32 s{sKV}, 0
    s_mov_b32 s{sWARMED}, 0
{L('warm')}:
    buffer_load_dword {v(T0)}, {v(T1)}, {srd(SRD_DBG)}, 0 offen sc1
    s_sub_u32 s{sSPIN}, s{sSPIN}, 1
    s_cbranch_scc1 {abort}
    s_waitcnt vmcnt(0)
    v_readlane_b32 s{sT0}, {v(T0)}, {DBG_RARM//4}
    v_readlane_b32 s{sT1}, {v(T0)}, {DBG_OVH//4}
    s_cmp_lt_u32 s{sT0}, 32
    s_cbranch_scc1 {L('warm')}
    s_cmp_eq_u32 s{sT1}, 0
    s_cselect_b32 s{sMODE}, 0, 1
{L('warmok')}:
    """)
    if merged:
        A(f"""
        s_cmp_lg_u32 s{W}, 3
        s_cbranch_scc1 {L('nkvi')}
        s_cmp_eq_u32 s{sWARMED}, 1
        s_cbranch_scc1 {L('nkvi')}
        s_waitcnt vmcnt(0)
        s_mov_b32 s{sT0}, {WARMD + 1}
        """)
        kv_wait(sT0, L('kvi'))
        warm0()
        A(f"{L('nkvi')}:")
    A(f"""
    s_mov_b32 s{sSTEP}, 0
    s_mov_b32 s{sPW}, {WS_PART}
    s_mov_b32 s{sMA}, {WS_MEMB + 2*MSLOT}
    s_mov_b32 s{sMW}, {WS_MEMB}
    s_mov_b32 s{sMR}, {WS_MEMB + MSLOT}
    s_lshl_b32 s{sSEG}, s{s_head}, 13
    s_mov_b32 s{sWOF}, 0x40000000
    s_cmp_lg_u32 s{W}, 3
    s_cselect_b32 s{sPRG}, s{sWOF}, s{sPRG}
    s_mov_b32 s{sKVO}, s{sWOF}
    s_cbranch_scc1 {L('nw3i')}
    s_lshl_b32 s{sKVO}, s{s_head}, 8
    s_add_u32 s{sKVO}, s{sKVO}, {FLAG_KV}
    v_lshlrev_b32 {v(vPUB)}, 2, v1
    s_mov_b32 s{sWOF}, {WS_KX + WARMD*RECSZ}
    v_lshlrev_b32 {v(vRED)}, 7, v1
    v_mov_b32 {v(vSP)}, 0
{L('nw3i')}:
    s_cmp_eq_u32 s{W}, 3
    s_movk_i32 s{sT0}, 2048
    s_cselect_b32 s{sT0}, 1024, s{sT0}
    v_subrev_u32 v1, s{sT0}, {v(vCON)}
    s_waitcnt vmcnt(0) lgkmcnt(0)
    s_barrier
    """)
    zero_acc()
    if KXE:
        A(f"s_cmp_lt_u32 s{W}, 2\ns_cbranch_scc1 {L('nkxi')}"); kx_early(); A.label(L('nkxi'))
    if prof: A("v_mov_b32 v1, 0\ns_memtime s[98:99]\ns_waitcnt lgkmcnt(0)")
    TS(6)
    if merged: A(f"s_cmp_eq_u32 s{sMODE}, 1\ns_cbranch_scc1 {L('loopS0')}x")
    if cnt: A("s_mov_b32 s20, 0\ns_mov_b32 s21, 0\ns_memtime s[96:97]\ns_memrealtime s[98:99]\ns_waitcnt lgkmcnt(0)\ns_mov_b32 s99, s96")
    RL = D0 + 52
    def sm(acc, a_, b): A(f"v_smfmac_f32_16x16x64_bf16 {v(acc,4)}, {a_}, {b}, {v(IDX)}")
    def mf(d, a_, b_, first):
        A(f"v_mfma_f32_16x16x32_bf16 {v(d,4)}, {a_}, {b_}, {'0' if first else v(d,4)}")
    def chk(r, br):
        A(f"""
        v_max3_u32 {v(TMP)}, {v(r)}, {v(r+1)}, {v(r+2)}
        v_max_u32 {v(TMP)}, {v(TMP)}, {v(r+3)}
        v_cmp_eq_u32 vcc, -1, {v(TMP)}
        {br}
        """)
    def spin(): A(f"s_sub_u32 s{sSPIN}, s{sSPIN}, 1\ns_cbranch_scc1 {abort}")
    def cload(r, so): A(f"buffer_load_dwordx4 {v(r,4)}, {v(vC1)}, {srd(SRD_WS)}, s{so} offen{ld}")
    def pk2(d, s_):
        A(f"v_cvt_pk_bf16_f32 {v(d)}, {v(s_)}, {v(s_+1)}")
        A(f"v_cvt_pk_bf16_f32 {v(d+1)}, {v(s_+2)}, {v(s_+3)}")
    def step_body(par, sc, md):
        LP = lambda n: L(n + md + str(par))
        nxt_loop = L('loop' + md + str(1 - par))
        A.label(LP('loop'))
        if RGAP: A("s_waitcnt vmcnt(2)")
        A.label(LP('loop') + "x")
        lg.clear()
        A(f"""
        s_mov_b32 s{sT3}, s{sMA}
        s_mov_b32 s{sMA}, s{sMW}
        s_mov_b32 s{sMW}, s{sMR}
        s_mov_b32 s{sMR}, s{sT3}
        s_mov_b32 s{sSPIN}, {SPIN}
        s_sub_u32 s{sT0}, s{sMA}, {HI}
        s_mov_b32 s{sT1}, s{sT0}
        s_add_u32 s{sT2}, s{sT0}, 4096
        s_add_u32 s{sT3}, s{sT0}, s{sB3}
        s_add_u32 s{sT4}, s{sSEG}, {WS_KX - HI}
        s_add_u32 m0, s{sWB}, {L_MEMF + R1N*1024}
        """)
        for f in range(3): wvread(f)
        A(f"s_cmp_lt_u32 s{W}, 2\ns_cbranch_scc1 {LP('cdj')}")
        if CD: A(f"s_sleep {CD}")
        TQ("cgo")
        def cload2(r):
            A(f"buffer_load_dwordx4 {v(r,4)}, {v(vC1)}, {srd(SRD_WS)}, s{sT1} offen sc1")
            A(f"buffer_load_dwordx4 {v(r+4,4)}, {v(vC1)}, {srd(SRD_WS)}, s{sT0} offen offset:1024 sc1")
        def cproc(r, y, br):
            A(f"""
            s_waitcnt vmcnt({y+1})
            ds_write_b128 {v(vC1)}, {v(r,4)} offset:{L_MEMF-HI}
            v_max3_u32 {v(TMP)}, {v(r)}, {v(r+1)}, {v(r+2)}
            s_waitcnt vmcnt({y})
            ds_write_b128 {v(vC1)}, {v(r+4,4)} offset:{L_MEMF-HI+1024}
            v_max3_u32 {v(TMP)}, {v(TMP)}, {v(r+3)}, {v(r+4)}
            v_max3_u32 {v(TMP)}, {v(TMP)}, {v(r+5)}, {v(r+6)}
            v_max_u32 {v(TMP)}, {v(TMP)}, {v(r+7)}
            v_cmp_eq_u32 vcc, -1, {v(TMP)}
            {br}
            """)
        if CGAP:
            cload2(AS[0]); A(f"s_sleep {CGAP}" if CGAP > 0 else f"s_nop {-CGAP}"); cload2(AS[2])
            A.label(LP('cp'))
            cproc(AS[0], 2, f"s_cbranch_vccnz {LP('cf')}")
        else:
            A.label(LP('cp'))
            cload2(AS[2]); spin()
            cproc(AS[2], 0, f"s_cbranch_vccnz {LP('cp')}")
        A.label(LP('cdj'))
        TQ("cdj")
        A("s_waitcnt lgkmcnt(0)\ns_barrier")
        if trace: TR(4); A("s_waitcnt lgkmcnt(0)")
        lg.clear()
        if cnt: A(f"s_sub_u32 s96, {SPIN}, s{sSPIN}\ns_add_u32 s20, s20, s96")
        PH(0)
        slot = lambda i: (i & 3) if i < 12 else (i - 12) % 3
        prev_user = lambda j: j - 4 if j < 15 else j - 3
        def aread(i):
            A(f"ds_read_b128 {v(AS[slot(i)],4)}, {v(vAF)} offset:{L_MEMF-HI+i*512}")
            lg.push(f"A{i}")
        def dma(so): A(f"buffer_load_dwordx4 {v(vCON)}, {srd(SRD_WS)}, s{so} offen sc1 lds")
        KXR = [D0 + 44, D0 + 48, D0 + 28, D0 + 32, D0 + 36, D0 + 40, D0 + 28, D0 + 32]
        VXF = [D0 + 52, D0 + 24]
        def kxread(n):
            A(f"ds_read_b128 {v(KXR[n],4)}, {v(vKX)} offset:{L_KX-HI+(n>>1)*2048+(n&1)*128}")
            lg.push(f"X{n}")
        TQ("start")
        aread(0); aread(1)
        if CGAP: A("s_waitcnt vmcnt(0)")
        aread(2); aread(3)
        f = 0
        nxt = 4
        late = []
        slow_n = [0]
        for i, kk in enumerate(korder):
            a_ = v(AS[slot(i)], 4)
            TQ(f"q{i}")
            lg.wait(f"A{i}")
            sm(AQ, a_, WQ(kk))
            if RAL and i == RAL - 1: A(f"s_cmp_eq_u32 s{sRED}, 0\ns_cselect_b32 s97, 0x40000000, s{sMR}")
            if RAL and i == RAL: A(f"buffer_store_dword {v(vSP)}, {v(vPUB)}, {srd(SRD_WS)}, s97 offen{sc}"); slow_n[0] += 1
            if i == FAT and merged: A(f"buffer_store_dword {v(vSP)}, off, {srd(SRD_WS)}, s{sPRG} sc1"); slow_n[0] += 1
            if i == WAT and not nowarm: A(f"buffer_load_dword {v(TMP)}, {v(vRED)}, {srd(SRD_WS)}, s{sT3} offen sc1"); slow_n[0] += 1
            if i == WAT + 1 and not nowarm: A(f"buffer_load_dword {v(TMP)}, {v(vRED)}, {srd(SRD_WS)}, s{sT2} offen sc1"); slow_n[0] += 1
            if i == WAT + 3 and merged: A(f"buffer_load_dword {v(TMP)}, {v(vPUB)}, {srd(SRD_WS)}, s{sKVO} offen sc1"); slow_n[0] += 1
            if i == R2AT: dma(sT2)
            if i in (R2AT + 1, R2AT + 2) and not KXE: dma(sT4)
            if i == R3AT: dma(sT3)
            if i == R3AT + 1: A(f"buffer_load_dwordx4 {v(VXF[0],4)}, {v(vVX)}, {srd(SRD_WS)}, s{sT0} offen sc1")
            sm(AK, a_, WK(kk))
            if KXE:
                if i == R2AT: A(f"s_mov_b32 m0, s{sM3}\ns_add_u32 s{sT0}, s{sSEG}, {WS_VX}")
            else:
                if i == R2AT: A(f"s_add_u32 m0, s{sWB}, {L_KX}")
                if i == R2AT + 1: A(f"s_add_u32 m0, s{sWB}, {L_KX + 4096}\ns_add_u32 s{sT4}, s{sT4}, 4096")
                if i == R2AT + 2: A(f"s_mov_b32 m0, s{sM3}\ns_add_u32 s{sT0}, s{sSEG}, {WS_VX}")
            if i in (B2AT, B3AT) and not (KXE and i == B3AT):
                A(f"s_waitcnt vmcnt({(1 if KXE else 2) + slow_n[0]})\ns_barrier")
                while prev_user(nxt) < i: aread(nxt); nxt += 1
            if i == 8: A(f"s_lshr_b32 s{sT2}, s{sSEG}, 1")
            if i == 9: A(f"s_add_u32 s{sT1}, s{sT2}, {0x40000000 if nokm else WS_VM - L_Q}\ns_add_u32 s{sT4}, s{sT2}, {0x40000000 if nokm else WS_KM - L_Q}")
            if i == 10: A(f"s_add_u32 s{sT3}, s{sSEG}, s{sWOF}\ns_add_u32 s{sT2}, s{sT3}, {WS_VX - WS_KX}")
            if i >= 16:
                late.append((a_, f if kk != 17 else None)); f += 1
            else:
                lg.wait(f"W{f}")
                sm(AV, a_, v(WR[f % 3], 8))
                if f + 3 < 17: wvread(f + 3)
                f += 1
            lim = 2*R1N-1 if i < B2AT else (2*R1N+7 if i < B3AT and not KXE else 17)
            while nxt <= lim and prev_user(nxt) <= i: aread(nxt); nxt += 1
            if i == 11: A(f"buffer_load_dwordx4 {v(VXF[1],4)}, {v(vVX)}, {srd(SRD_WS)}, s{sT0} offen offset:256 sc1")
            if i == 14: kxread(0); kxread(1)
            if i == 15: kxread(2); kxread(3)
        assert nxt == 18 and WAT + 3 <= 17 and FAT < WAT + 3 and WAT >= 12 and FAT >= 12 and B3AT >= 12 and R3AT + 1 <= 11
        TQ("qend")
        QF = [D0 + 0, D0 + 4]; KF = [D0 + 16, D0 + 20]
        KP, ZP = D0 + 12, D0 + 14
        def latev(n):
            a_, f_ = late[n]
            if f_ is None: sm(AV, a_, v(WVR, 8)); return
            lg.wait(f"W{f_}")
            sm(AV, a_, v(WR[f_ % 3], 8))
        def qk_write():
            pk2(AQ, AQ)
            A(f"ds_write_b64 {v(vQW)}, {v(AQ,2)}")
            pk2(KP, AK)
            A(f"ds_write_b64 {v(vQW)}, {v(KP,2)} offset:{L_K-L_Q}")
        latev(0)
        if MW == 1: A("s_nop 5")
        else: A("s_nop 2")
        TQ("s2a")
        qk_write(); lg.push("qk", 2)
        latev(1)
        kxread(4); kxread(5)
        A(f"""
        v_cmp_u_f32 vcc, {v(AK)}, {v(AK+1)}
        v_cmp_u_f32 s[{sRDLY2}:{sRDLY2+1}], {v(AK+2)}, {v(AK+3)}
        s_or_b64 vcc, vcc, s[{sRDLY2}:{sRDLY2+1}]
        s_cbranch_vccnz {LP('slow')}
        """)
        A.label(LP('slowret'))
        if par == (last & 1):
            A(f"s_cmp_eq_u32 s{sSTEP}, {last}\ns_cbranch_scc1 {L('done')}")
        TQ("s2c")
        lg.wait("qk")
        A("s_barrier")
        TQ("s2end")
        def qk_reads(fb):
            b = fb & 1
            for (dst, base, tg) in ((QF[b], 0, "Q"), (KF[b], L_K - L_Q, "K")):
                A(f"ds_read_b64_tr_b16 {v(dst,2)}, {v(vQR)} offset:{base+fb*512}")
                A(f"ds_read_b64_tr_b16 {v(dst+2,2)}, {v(vQR)} offset:{base+fb*512+128}")
                lg.push(f"{tg}{fb}", 2)
        qk_reads(0); qk_reads(1)
        pk2(ZP, AV)
        ST = [D0 + 8, KXR[0], KXR[1]]
        VMT = D0 + 36; ON1 = D0 + 16; ON2 = D0 + 20
        M0_, M1_ = D0 + 42, D0 + 43
        PX = D0 + 0; PM = PX + 4
        for fb in range(4):
            b = fb & 1
            TQ(f"fb{fb}")
            for kt in range(2):
                n = 2 * fb + kt
                lg.wait(f"Q{fb}"); lg.wait(f"X{n}")
                mf(ST[kt], v(KXR[n], 4), v(QF[b], 4), fb == 0)
                if n in (2, 3): kxread(n + 4)
                if n == 0: A(f"buffer_store_dwordx2 {v(KP,2)}, {v(vQW)}, {srd(SRD_WS)}, s{sT4} offen sc1")
                if n == 3: A(f"buffer_store_dwordx2 {v(ZP,2)}, {v(vQW)}, {srd(SRD_WS)}, s{sT1} offen sc1")
                if n == 4: A(f"v_cndmask_b32 {v(VMT)}, 0, {v(ZP)}, s[{sLO32}:{sLO32+1}]\nv_cndmask_b32 {v(VMT+1)}, 0, {v(ZP+1)}, s[{sLO32}:{sLO32+1}]")
                if n == 5: A(f"v_mov_b32 {v(VMT+2)}, 0\nv_mov_b32 {v(VMT+3)}, 0")
                if n == 6: A(f"v_mov_b32 {v(ON1)}, 0x3f803f80\nv_mov_b32 {v(ON1+1)}, 0x3f803f80")
                if n == 7: A(f"v_mov_b32 {v(ON1+2)}, 0x3f803f80\nv_mov_b32 {v(ON1+3)}, 0x3f803f80")
            lg.wait(f"K{fb}")
            mf(ST[2], v(KF[b], 4), v(QF[b], 4), fb == 0)
            if fb + 2 < 4: qk_reads(fb + 2)
            if fb == 2:
                A(f"v_cndmask_b32 {v(VMT+4)}, 0, {v(ZP)}, s[{sHI32}:{sHI32+1}]\nv_cndmask_b32 {v(VMT+5)}, 0, {v(ZP+1)}, s[{sHI32}:{sHI32+1}]")
        TQ("scend")
        SR = [ST[t] + r for t in range(3) for r in range(4)]
        A(f"v_mov_b32 {v(ON2)}, 0x3f003f00\nv_mov_b32 {v(ON2+1)}, 0x3f003f00\nv_mov_b32 {v(ON2+2)}, 0\nv_mov_b32 {v(ON2+3)}, 0")
        A(f"""
        v_max3_f32 {v(M0_)}, {v(SR[0])}, {v(SR[1])}, {v(SR[2])}
        s_nop 0
        v_max3_f32 {v(M1_)}, {v(SR[3])}, {v(SR[4])}, {v(SR[5])}
        v_max3_f32 {v(M0_)}, {v(M0_)}, {v(SR[6])}, {v(SR[7])}
        v_max3_f32 {v(M1_)}, {v(M1_)}, {v(SR[8])}, {v(SR[9])}
        v_max3_f32 {v(M0_)}, {v(M0_)}, {v(SR[10])}, {v(SR[11])}
        v_max_f32 {v(M0_)}, {v(M0_)}, {v(M1_)}
        v_max_f32 {v(M1_)}, {v(M0_)}, {v(M1_)}
        v_mov_b32 {v(D0+12)}, 0
        v_mov_b32 {v(D0+13)}, 0
        v_permlane32_swap_b32 {v(M0_)}, {v(M1_)}
        v_max_f32 {v(M0_)}, {v(M0_)}, {v(M1_)}
        v_max_f32 {v(M1_)}, {v(M0_)}, {v(M1_)}
        v_mov_b32 {v(D0+14)}, 0
        v_mov_b32 {v(D0+15)}, 0
        v_permlane16_swap_b32 {v(M0_)}, {v(M1_)}
        v_max_f32 {v(M0_)}, {v(M0_)}, {v(M1_)}
        v_mul_f32 {v(M0_)}, s{sC}, {v(M0_)}
        """)
        for i in range(6):
            A(f"v_pk_fma_f32 {v(SR[2*i],2)}, {v(SR[2*i],2)}, s[{sC}:{sC+1}], {v(M0_,2)} op_sel_hi:[1,1,0] neg_lo:[0,0,1] neg_hi:[0,0,1]")
        for i in range(12):
            A(f"v_exp_f32 {v(SR[i])}, {v(SR[i])}")
            if i >= 2 and i % 2 == 0: A(f"v_cvt_pk_bf16_f32 {v(PX+i//2-1)}, {v(SR[i-2])}, {v(SR[i-1])}")
        OT, OT1, LS = D0 + 28, D0 + 32, D0 + 8
        TQ("expend")
        A(f"""
        s_waitcnt vmcnt({2 + slow_n[0]})
        v_cvt_pk_bf16_f32 {v(PX+5)}, {v(SR[10])}, {v(SR[11])}
        v_mfma_f32_16x16x32_bf16 {v(LS,4)}, {v(ON1,4)}, {v(PX,4)}, 0
        v_mfma_f32_16x16x32_bf16 {v(OT,4)}, {v(VXF[0],4)}, {v(PX,4)}, 0
        v_mfma_f32_16x16x32_bf16 {v(LS,4)}, {v(ON2,4)}, {v(PM,4)}, {v(LS,4)}
        v_mfma_f32_16x16x32_bf16 {v(OT,4)}, {v(VMT,4)}, {v(PM,4)}, {v(OT,4)}
        v_mfma_f32_16x16x32_bf16 {v(OT1,4)}, {v(VXF[1],4)}, {v(PX,4)}, 0
        v_mfma_f32_16x16x32_bf16 {v(OT1,4)}, {v(VMT+2,4)}, {v(PX+2,4)}, {v(OT1,4)}
        """)
        WAo = [D0 + 44, D0 + 48, D0 + 12, D0 + 16]
        WA8 = D0 + 20
        OF = [D0 + 0, D0 + 4, D0 + 36, D0 + 40]
        zl = [WAo[p] + i for p in (0, 1, 3) for i in range(4)]
        npre = 5 if MW == 1 else 0
        for r in zl[:npre]: A(f"v_mov_b32 {v(r)}, 0")
        A(f"v_rcp_f32 {v(M0_)}, {v(LS)}")
        A(f"v_mov_b32 {v(zl[npre])}, 0")
        if MW > 1: A(f"v_mov_b32 {v(zl[npre+1])}, 0"); npre += 1
        A(f"v_pk_mul_f32 {v(OT,2)}, {v(OT,2)}, {v(M0_,2)} op_sel_hi:[1,0]")
        A(f"v_pk_mul_f32 {v(OT+2,2)}, {v(OT+2,2)}, {v(M0_,2)} op_sel_hi:[1,0]")
        pk2(OT, OT)
        A(f"ds_write_b64 {v(vOW)}, {v(OT,2)}")
        A(f"v_pk_mul_f32 {v(OT1,2)}, {v(OT1,2)}, {v(M0_,2)} op_sel_hi:[1,0]")
        A(f"v_pk_mul_f32 {v(OT1+2,2)}, {v(OT1+2,2)}, {v(M0_,2)} op_sel_hi:[1,0]")
        pk2(OT1, OT1)
        A(f"ds_write_b64 {v(vOW)}, {v(OT1,2)} offset:256")
        for r in zl[npre+1:]: A(f"v_mov_b32 {v(r)}, 0")
        A(f"""
        s_add_u32 s{sT0}, s{sB1 if HOLD >= 1 else sPW}, {4*65536}
        s_add_u32 s{sT1}, s{sPW}, {65536}
        s_waitcnt lgkmcnt(0)
        """)
        TQ("smend")
        PH(4)
        A("s_barrier")
        if trace: TR(0); A("s_waitcnt lgkmcnt(0)")
        lg.clear()
        for ks in range(4):
            A(f"ds_read_b128 {v(OF[ks],4)}, {v(vAF)} offset:{L_O-HI+ks*512}"); lg.push(f"O{ks}")
        SEL = D0 + 36; RT = D0 + 40; RDd = D0 + 16; RBS = [[D0 + 28, D0 + 32, D0 + 52, D0 + 24], [D0 + 44, D0 + 48, D0 + 12, D0 + 20]]
        A(f"""
        s_add_u32 s{sT2}, s{sB1 if HOLD >= 3 else sPW}, {2*65536}
        s_add_u32 s{sT3}, s{sB1 if HOLD >= 2 else sPW}, {3*65536}
        s_add_u32 s{sSTEP}, s{sSTEP}, 1
        s_add_u32 s{sSEG}, s{sSEG}, {0 if fixseg else RECSZ}
        s_mov_b32 s{sSPIN}, {SPIN}
        """)
        TQ("wostart")
        PH(5)
        tagop = lambda r: (f"v_or_b32 {v(r)}, 1, {v(r)}" if par else f"v_and_b32 {v(r)}, -2, {v(r)}")
        def out_ops(a0, soff, half=False):
            ops = [f"v_cvt_pk_bf16_f32 {v(a0)}, {v(a0)}, {v(a0+1)}", f"v_cvt_pk_bf16_f32 {v(a0+1)}, {v(a0+2)}, {v(a0+3)}",
                   tagop(a0), tagop(a0 + 1)]
            st = f"buffer_store_dwordx2 {v(a0,2)}, {v(vPST)}, {srd(SRD_WS)}, s{soff} offen{sc}"
            if half: st = f"s_mov_b64 exec, s[{sLO32}:{sLO32+1}]\n{st}\ns_mov_b64 exec, -1"
            return ops + [st]
        mfl = [(p, ks) for p in range(4) for ks in range(4)] + [("d", ks) for ks in range(4)]
        groups = [(3 + 4 * p, out_ops(WAo[p], [sPW, sT1, sT2, sT3][p])) for p in range(4)] + [(19, out_ops(WA8, sT0, True))]
        ic = [0]; pos = {}
        def emit(s_):
            A(s_); ic[0] += len([x for x in s_.split("\n") if x.strip()])
        cur = []; gi = 0
        for n, (p, ks) in enumerate(mfl):
            if n < 4:
                n0 = len(A.lines); lg.wait(f"O{ks}"); ic[0] += len(A.lines) - n0
            if p == "d":
                emit(f"v_mfma_f32_16x16x32_bf16 {v(WA8,4)}, {v(OF[ks],4)}, {WO8(ks)}, {'0' if ks == 0 else v(WA8,4)}")
            else:
                emit(f"v_smfmac_f32_16x16x64_bf16 {v(WAo[p],4)}, {v(OF[ks],4)}, {WO(p,ks)}, {v(IDX)}")
            ic[0] += MW - 1
            pos[n] = ic[0]
            k = 0
            while k < 2:
                if not cur and gi < len(groups) and groups[gi][0] <= n and ic[0] - pos[groups[gi][0]] >= (9 if MW > 1 else 8):
                    cur = list(groups[gi][1]); gi += 1
                if not cur: break
                emit(cur.pop(0)); k += 1
        while cur or gi < len(groups):
            if not cur:
                need = 8 - (ic[0] - pos[groups[gi][0]])
                if need > 0: emit(f"s_nop {need-1}"); ic[0] += need - 1
                cur = list(groups[gi][1]); gi += 1
            emit(cur.pop(0))
        TQ("woend")
        PH(6)
        TR(1)
        if KXE:
            A(f"s_cmp_lt_u32 s{W}, 2\ns_cbranch_scc1 {LP('nkx')}"); kx_early(); A.label(LP('nkx'))
        A(f"s_cmp_eq_u32 s{sRED}, 0\ns_cbranch_scc1 {LP('nored')}")
        def rload(sidx):
            for i in range(4):
                A(f"buffer_load_dwordx4 {v(RBS[sidx][i],4)}, {v(vRED)}, {srd(SRD_WS)}, s{sPW} offen offset:{i*1024}{ld}")
        def rproc(sidx, br, y=0):
            for i in range(4):
                b = RBS[sidx][i]
                A(f"s_waitcnt vmcnt({(7 if RGAP else 3)-i+y})")
                mf(RDd, v(SEL, 4), v(b, 4), i == 0)
                o3 = (lambda d, x, y, z: f"v_bitop3_b32 {v(d)}, {v(x)}, {v(y)}, {v(z)} bitop3:0x80") if par else (lambda d, x, y, z: f"v_or3_b32 {v(d)}, {v(x)}, {v(y)}, {v(z)}")
                if i == 0:
                    A(o3(RT, b, b + 1, b + 2)); A(o3(RT, RT, b + 3, b + 3))
                else:
                    A(o3(RT, RT, b, b + 1)); A(o3(RT, RT, b + 2, b + 3))
            A(f"v_and_b32 {v(RT)}, 1, {v(RT)}\nv_cmp_ne_u32 vcc, {par}, {v(RT)}\n{br}")
        A(f"""
        s_mov_b32 s{sT0}, s{sRDLY}
    {LP('rdl')}:
        s_cmp_eq_u32 s{sT0}, 0
        s_cbranch_scc1 {LP('rgo')}
        s_sleep 1
        s_sub_u32 s{sT0}, s{sT0}, 1
        s_branch {LP('rdl')}
    {LP('rgo')}:
        """)
        TQ("rgo")
        rload(0)
        if HOLD:
            assert not RGAP
            if HOLD >= 3: A(f"s_add_u32 s{sT2}, s{sB2}, {2*65536}\nbuffer_store_dwordx2 {v(WAo[2],2)}, {v(vPST)}, {srd(SRD_WS)}, s{sT2} offen{sc}")
            if HOLD >= 2: A(f"s_add_u32 s{sT3}, s{sB2}, {3*65536}\nbuffer_store_dwordx2 {v(WAo[3],2)}, {v(vPST)}, {srd(SRD_WS)}, s{sT3} offen{sc}")
            A(f"s_add_u32 s{sT0}, s{sB2}, {4*65536}\ns_mov_b64 exec, s[{sLO32}:{sLO32+1}]\nbuffer_store_dwordx2 {v(WA8,2)}, {v(vPST)}, {srd(SRD_WS)}, s{sT0} offen{sc}\ns_mov_b64 exec, -1")
        zero_acc()
        for r in range(4): A(f"v_cndmask_b32 {v(SEL+r)}, 0, {v(SELV)}, s[{sSEL+2*r}:{sSEL+2*r+1}]")
        if RGAP:
            if RGAP > 0: A(f"s_sleep {RGAP}")
            rload(1)
        A.label(LP('rp0'))
        rproc(0, f"s_cbranch_vccnz {LP('rf0')}", HOLD)
        A.label(LP('rdone'))
        TQ("rdone")
        A(f"""
        {'s_sub_u32 s96, %d, s%d' % (SPIN, sSPIN) if cnt else 's_nop 0'}
        {'s_add_u32 s21, s21, s96' if cnt else 's_nop 0'}
        s_nop 0
        v_cndmask_b32 {v(RT)}, {v(RDd)}, {v(RDd+2)}, s[{sHI32}:{sHI32+1}]
        v_cndmask_b32 {v(RT+1)}, {v(RDd+1)}, {v(RDd+3)}, s[{sHI32}:{sHI32+1}]
        v_cndmask_b32 {v(RT+3)}, {v(RT+1)}, {v(RT)}, s[{sN8}:{sN8+1}]
        v_cndmask_b32 {v(RT+2)}, {v(RT)}, {v(RT+1)}, s[{sN8}:{sN8+1}]
        s_nop 0
        v_add_f32_dpp {v(RT+2)}, {v(RT+3)}, {v(RT+2)} row_ror:8 row_mask:0xf bank_mask:0xf
        v_mov_b32 {v(RT+3)}, {v(RT+2)}
        s_nop 1
        v_permlane16_swap_b32 {v(RT+2)}, {v(RT+3)}
        v_cvt_pk_bf16_f32 {v(RT+2)}, {v(RT+2)}, {v(RT+3)}
        v_min_u32 {v(TMP)}, -2, {v(RT+2)}
        s_mov_b64 exec, s[{sPM}:{sPM+1}]
        buffer_store_dword {v(TMP)}, {v(vPUB)}, {srd(SRD_WS)}, s{sMW} offen{sc}
        """)
        if not RAL: A(f"buffer_store_dword {v(vSP)}, {v(vPUB)}, {srd(SRD_WS)}, s{sMA} offen{sc}")
        A("s_mov_b64 exec, -1")
        TQ("pub")
        PH(7)
        TR(2)
        if trace: A("s_waitcnt lgkmcnt(0)")
        A(f"s_branch {nxt_loop}")
        A.label(LP('nored'))
        if trace: A("s_waitcnt vmcnt(0)"); TR(2); A("s_waitcnt lgkmcnt(0)")
        zero_acc()
        if merged:
            A(f"""
            s_cmp_lg_u32 s{W}, 3
            s_cbranch_scc1 {LP('nkv')}
            v_mov_b32 {v(vSP)}, s{sSTEP}
            s_cmp_ge_u32 s{sKV}, 64
            s_cbranch_scc1 {LP('nkv')}
            s_waitcnt vmcnt({11 if KXE else 7})
            v_cmp_ne_u32 vcc, 4, {v(TMP)}
            s_ff1_i32_b64 s{sKV}, vcc
            s_cmp_lt_i32 s{sKV}, 0
            s_cselect_b32 s{sKV}, 64, s{sKV}
            s_cselect_b32 s{sKVO}, 0x40000000, s{sKVO}
            s_add_u32 s{sT0}, s{sSTEP}, {WARMD + 1}
            s_min_u32 s{sT0}, s{sT0}, 64
            """)
            kv_wait(sT0, LP('kv'))
            A.label(LP('nkv'))
        if tstep:
            A(f"s_cmp_lg_u32 s{W}, 2\ns_cbranch_scc1 {LP('nts')}\ns_memrealtime s[96:97]\ns_waitcnt lgkmcnt(0)\ns_mov_b32 m0, s{sSTEP}\nv_writelane_b32 {v(vSP)}, s96, m0\n{LP('nts')}:")
        if CDN: A(f"s_sleep {CDN}")
        A(f"s_branch {nxt_loop}x")
        A.label(LP('rf0'))
        rload(0); spin()
        if RGAP:
            rproc(1, f"s_cbranch_vccz {LP('rdone')}")
            rload(1); spin()
        if HOLD:
            rproc(0, f"s_cbranch_vccz {LP('rdone')}")
            A(f"s_branch {LP('rf0')}")
        else:
            A(f"s_branch {LP('rp0')}")
        if CGAP:
            A.label(LP('cf'))
            cload2(AS[0]); spin()
            cproc(AS[2], 2, f"s_cbranch_vccz {LP('cok')}")
            cload2(AS[2]); spin()
            A(f"s_branch {LP('cp')}")
            A(f"{LP('cok')}:\ns_waitcnt vmcnt(0)\ns_branch {LP('cdj')}")
        A.label(LP('slow'))
        A(f"s_sub_u32 s97, s{sMA}, {HI}\ns_waitcnt lgkmcnt(0)\ns_nop 7")
        zero_acc()
        for kp in range(9):
            lab = LP(f'sp{kp}_')
            for h in range(2):
                kk = 2 * kp + h
                if kk != 17:
                    A(f"ds_read_b128 {v(WR[h],4)}, {v(vWV)} offset:{kk*2048}\nds_read_b128 {v(WR[h]+4,4)}, {v(vWV)} offset:{kk*2048+1024}")
            A(f"""
{lab}:
            buffer_load_dwordx4 {v(AS[0],4)}, {v(vAF)}, {srd(SRD_WS)}, s97 offen sc1
            buffer_load_dwordx4 {v(AS[1],4)}, {v(vAF)}, {srd(SRD_WS)}, s97 offen offset:512 sc1
            """)
            spin()
            A(f"""
            s_waitcnt vmcnt(0) lgkmcnt(0)
            v_max3_u32 {v(TMP)}, {v(AS[0])}, {v(AS[0]+1)}, {v(AS[0]+2)}
            v_max3_u32 {v(TMP)}, {v(TMP)}, {v(AS[0]+3)}, {v(AS[1])}
            v_max3_u32 {v(TMP)}, {v(TMP)}, {v(AS[1]+1)}, {v(AS[1]+2)}
            v_max_u32 {v(TMP)}, {v(TMP)}, {v(AS[1]+3)}
            v_cmp_eq_u32 vcc, -1, {v(TMP)}
            s_cbranch_vccnz {lab}
            """)
            for h in range(2):
                kk = 2 * kp + h
                sm(AQ, v(AS[h], 4), WQ(kk)); sm(AK, v(AS[h], 4), WK(kk)); sm(AV, v(AS[h], 4), v(WR[h], 8) if kk != 17 else v(WVR, 8))
            A(f"s_add_u32 s97, s97, 1024")
        if prof: A(f"s_mov_b64 exec, {1 << 10}\nv_add_u32 v1, 63, v1\ns_mov_b64 exec, -1")
        if cnt: A("s_add_u32 s20, s20, 0x10000")
        import common
        if common.HST:
            A(f"v_mov_b32 {v(TMP)}, 1\ns_mov_b64 exec, 1\nbuffer_atomic_add {v(TMP)}, off, {srd(SRD_DBG)}, 32 sc1\ns_mov_b64 exec, -1\ns_waitcnt vmcnt(0)")
        A("s_nop 7")
        qk_write()
        for n in range(2, 6): A(f"ds_read_b128 {v(KXR[n],4)}, {v(vKX)} offset:{L_KX-HI+(n>>1)*2048+(n&1)*128}")
        A(f"s_waitcnt lgkmcnt(0)\ns_branch {LP('slowret')}")
    step_body(0, sc, ''); step_body(1, sc, '')
    if merged:
        step_body(0, ' sc1', 'S'); step_body(1, ' sc1', 'S')
    A.label(L('done'))
    A(f"""
    s_lshr_b32 s{sT2}, s{sSEG}, 1
    s_add_u32 s{sT1}, s{sT2}, {WS_VM - L_Q}
    s_add_u32 s{sT4}, s{sT2}, {WS_KM - L_Q}
    v_min_u32 {v(D0+12)}, -2, {v(D0+12)}
    v_min_u32 {v(D0+13)}, -2, {v(D0+13)}
    buffer_store_dwordx2 {v(D0+12,2)}, {v(vQW)}, {srd(SRD_WS)}, s{sT4} offen sc1
    v_cvt_pk_bf16_f32 {v(D0+14)}, {v(D0+8)}, {v(D0+9)}
    v_cvt_pk_bf16_f32 {v(D0+15)}, {v(D0+10)}, {v(D0+11)}
    v_min_u32 {v(D0+14)}, -2, {v(D0+14)}
    v_min_u32 {v(D0+15)}, -2, {v(D0+15)}
    buffer_store_dwordx2 {v(D0+14,2)}, {v(vQW)}, {srd(SRD_WS)}, s{sT1} offen sc1
    """)
    A("s_waitcnt vmcnt(0) lgkmcnt(0)")
    if merged:
        A(f"""
        s_barrier
        s_cmp_lg_u32 s{W}, 3
        s_cbranch_scc1 {L('nfin')}
        v_mov_b32 {v(TMP)}, 64
        v_mov_b32 {v(D0+52)}, s{sPRG}
        s_mov_b64 exec, 1
        buffer_store_dword {v(TMP)}, {v(D0+52)}, {srd(SRD_WS)}, 0 offen sc1
        s_mov_b64 exec, -1
        s_waitcnt vmcnt(0)
{L('nfin')}:
        """)
    if cnt:
        A(f"v_mov_b32 v1, s20\ns_mov_b64 exec, 2\nv_mov_b32 v1, s21\ns_mov_b64 exec, -1")
        A("s_memtime s[96:97]\ns_memrealtime s[100:101]\ns_waitcnt lgkmcnt(0)\ns_sub_u32 s96, s96, s99\ns_sub_u32 s100, s100, s98")
        A("s_mov_b64 exec, 4\nv_mov_b32 v1, s96\ns_mov_b64 exec, 8\nv_mov_b32 v1, s100\ns_mov_b64 exec, -1")
    if trace:
        for i in range(6): A(f"s_mov_b64 exec, {1 << i}\nv_mov_b32 v1, s{8+2*i}")
        A("s_mov_b64 exec, -1")
    if tq:
        for i in range(len(tq)): A(f"s_mov_b64 exec, {1 << i}\nv_mov_b32 v1, s{8+2*i}")
        A("s_mov_b64 exec, -1")
    if tstart:
        TS(7)
        A("s_mov_b32 s8, s100\ns_mov_b32 s10, s98")
        for i in range(8): A(f"s_mov_b64 exec, {1 << i}\nv_mov_b32 v1, s{8+2*i}")
        A("s_mov_b64 exec, -1")
    if tstep: A(f"v_mov_b32 v1, {v(vSP)}")
    if prof or cnt or trace or tq or tstep or tstart:
        A(f"""
        s_lshl_b32 s96, s{s_head}, 2
        s_add_u32 s96, s96, s{W}
        s_lshl_b32 s96, s96, 8
        s_add_u32 s96, s96, {WS_STAMP + 0x10000}
        v_lshrrev_b32 v28, 2, {v(vCON)}
        v_and_b32 v28, 255, v28
        buffer_store_dword v1, v28, {srd(SRD_WS)}, s96 offen
        s_waitcnt vmcnt(0)
        """)
    stamp(A, 10, s_id=s_head)
    hstamp(A, 14)
```

```python
from common import *
import math, struct, sys, os

WSTR = 36864
L_Q = 34816
L_K = 34816 + WSTR
L_O = 34816 + 2 * WSTR
L_MEMF = 145408
L_KX = 145408 + 9216
L_V = L_MEMF + 4096
HI = 98304
PSLOT = 72 * 4096
MSLOT = 9216
SPIN = 200000
CEXP = (128 ** -0.5) * math.log2(math.e)
def f32bits(x): return struct.unpack("<I", struct.pack("<f", x))[0]

def WQ(kk): return wreg(kk * 8, 8)
def WK(kk): return wreg(144 + kk * 8, 8)
def WO(p, ks): return wreg(288 + (p * 4 + ks) * 8, 8)
def WO8(ks): return wreg(288 + 128 + ks * 4, 4)

class LQ:
    def __init__(self, A, name): self.A, self.name, self.q = A, name, []
    def push(self, tag, n=1): self.q += [tag] * n; assert len(self.q) <= (15 if self.name == "lgkmcnt" else 63), self.q
    def wait(self, tag):
        if tag not in self.q: return
        idx = max(i for i, t in enumerate(self.q) if t == tag)
        self.A(f"s_waitcnt {self.name}({len(self.q) - 1 - idx})")
        del self.q[:idx + 1]
    def clear(self): self.q = []

def mod_R(A, s_head, sc="", pfx="R", abort="R_abort", last=63, prof=False, RD_=(0, 0, 0, 1, 2), CD=0, hooks=None, WARMD=2, cnt=False,
          CDN=0, fixseg=False, nokm=False, x_nowv=False, trace=False, RGAP=0, CGAP=0, ld=' sc1', tq=None, merged=False, wbar=False, worder='qk', wnt='', tstart=False, ARMAT=9, NVMIX=5, HELP=0, HAT=27, MW=3, HOLD=0, KXE=0, RAL=0, PVO=0, R1N=4, EL=26, eflag=True, EFAT=13, WAT=14, FAT=16, tstep=False, CDN3=0, nowarm=False, R2AT=1, R3AT=7, B2AT=6, B3AT=13):
    assert eflag and (R2AT < R3AT and R3AT + 1 <= B2AT if KXE else R3AT > B2AT and R2AT + 2 < B2AT)
    def TQ(tag):
        if tq and tag in tq: A(f"s_memtime s[{8+2*tq.index(tag)}:{9+2*tq.index(tag)}]")

    def TR(i):
        if trace: A(f"s_memrealtime s[{8+2*i}:{9+2*i}]")

    L = lambda n: f"{pfx}_{n}"
    def TS(i):
        r = 98 if i == 1 else 8 + 2 * i
        if tstart: A(f"s_memrealtime s[{r}:{r+1}]\ns_waitcnt lgkmcnt(0)")
    W = S_WAVE
    hooks = hooks or {}
    def PH(i):
        if not prof: return
        A(f"""
        s_waitcnt lgkmcnt(0)
        s_memtime s[96:97]
        s_waitcnt lgkmcnt(0)
        s_sub_u32 s99, s96, s98
        s_mov_b32 s98, s96
        s_mov_b64 exec, {1 << i}
        v_add_u32 v1, s99, v1
        s_mov_b64 exec, -1
        """)
    TMP = 0
    IDX, SELV, vPST, vRED, vPUB, vCON, vAF, vWV, vQW, vQR, vKX, vOW, vVX, vSP = range(2, 16)
    vC1 = 1
    assert not prof
    WVR = 16
    D0 = 24
    sSTEP, sPW, sPR, sMW, sMR, sMA, sRED, sSEG = 64, 65, 66, 67, 68, 69, 70, 71
    sLO32, sHI32, sEVEN, sN8 = 72, 74, 76, 78
    sB2 = 81
    sKVO = 3
    sWOF = 80
    sC = 82
    sRDLY, sWB, sB1 = 84, 85, 59
    sB3, sM3, sPRG = 66, 57, 4
    sRDLY2 = 96
    sPM = sEVEN
    sSEL = 86
    sT0, sT1, sT2, sSPIN, sT3, sT4 = 60, 61, 62, 63, 94, 95
    T0, T1, T2 = D0, D0 + 1, D0 + 2
    stamp(A, 8, s_id=s_head)
    hstamp(A, 12)
    def bits(dst, terms, add=None):
        first = True
        for (off, n, sh) in terms:
            A(f"v_bfe_u32 {v(T2)}, v1, {off}, {n}")
            if first:
                A(f"v_lshlrev_b32 {v(dst)}, {sh}, {v(T2)}"); first = False
            else:
                A(f"v_lshl_add_u32 {v(dst)}, {v(T2)}, {sh}, {v(dst)}")
        if add is not None:
            A(f"v_add_u32 {v(dst)}, {add}, {v(dst)}")
    vWA, vWB = D0 + 52, D0 + 53
    vTR = [D0 + 44, D0 + 45]
    vTO = [D0 + 46 + k for k in range(4)]
    vTD = [D0 + 28 + k for k in range(4)]
    X0, X1 = D0 + 8, D0 + 9
    sWL = 7
    VS = D0 + 12
    A(f"""
    s_lshl_b32 s{sT0}, s{s_head}, 8
    s_lshr_b32 s{sT1}, s{W}, 1
    s_lshl_b32 s{sT1}, s{sT1}, 7
    s_add_u32 s{sT0}, s{sT0}, s{sT1}
    s_and_b32 s{sT1}, s{W}, 1
    s_lshl_b32 s{sT1}, s{sT1}, 18
    s_add_u32 s{sT0}, s{sT0}, s{sT1}
    s_mul_i32 s{sWL}, s{W}, {WSTR}
    """)
    bits(vWA, [(3, 3, 13), (0, 3, 4)], f"s{sT0}")
    grp = lambda ch: [("o", (p, kb2)) for p in range(5) for kb2 in range(2)] if ch == 'o' else [(ch, kb) for kb in range(9)]
    if len(worder) == 2: worder = worder + 'o'
    if worder == 'mix3':
        a_, b_ = grp('k') + grp('q') + grp('v')[:NVMIX], grp('o')
        na = len(a_); chunks = []
        while a_ or b_:
            if len(b_) * na >= len(a_) * 10 and b_ and chunks: chunks.append(b_.pop(0))
            else: chunks.append(a_.pop(0))
        chunks += grp('v')[NVMIX:]
    elif worder in ('mix', 'mix2'):
        a_, b_ = grp('k') + grp('q'), grp('o')
        if worder == 'mix2': a_ = [x for pr in zip(grp('k'), grp('q')) for x in pr]
        chunks = []
        while a_ or b_:
            if len(b_) * 18 >= len(a_) * 10 and b_ and chunks: chunks.append(b_.pop(0))
            else: chunks.append(a_.pop(0))
        chunks += [("v", kb) for kb in range(9)]
    else:
        chunks = grp(worder[0]) + grp(worder[1]) + grp(worder[2]) + [("v", kb) for kb in range(9)]
    A(f"""
    v_lshrrev_b32 {v(X0)}, 4, v1
    s_lshl_b32 s{sT0}, s{W}, 4
    v_add_u32 {v(X0)}, s{sT0}, {v(X0)}
    v_mul_u32_u24 {v(X0)}, 1152, {v(X0)}
    s_mul_i32 s{sT0}, s{s_head}, 147456
    v_add_u32 {v(X0)}, s{sT0}, {v(X0)}
    """)
    bits(vWB, [(0, 4, 4)], v(X0))
    NCH = len(chunks)
    vpos = {ix: c for c, (k_, ix) in enumerate(chunks) if k_ == 'v'}
    slot_map = {}; issue_after = {}
    nextpos = dict(vpos); prev_in_slot = {}
    for c in range(NCH - 1, -1, -1):
        k_, ix = chunks[c]
        if k_ == 'v': slot_map[c] = ix; continue
        sl = max((x for x in range(9) if nextpos[x] > c), key=lambda x: nextpos[x])
        slot_map[c] = sl; prev_in_slot[nextpos[sl]] = c; nextpos[sl] = c
    run = -1
    for c in range(NCH):
        run = max(run, prev_in_slot.get(c, -1))
        issue_after[c] = run
        assert run < c
    slot_of = lambda c: slot_map[c]
    vq = LQ(A, "vmcnt")
    LASTI = issue_after[NCH - 1]
    def wdma(c):
        kind, ix = chunks[c]; sl = slot_of(c)
        vq.push(f"C{c}", 4)
        for n in range(4):
            A(f"s_add_u32 m0, s{sWL}, {sl*4096 + n*1024}")
            if kind == "o":
                p, kb2 = ix
                A(f"s_mov_b32 s{sT1}, {(kb2*64 + n*4)*1152 + p*256}")
                A(f"buffer_load_dwordx4 {v(vWB)}, {srd(SRD_WO)}, s{sT1} offen{wnt} lds")
            else:
                A(f"s_mov_b32 s{sT1}, {ix*524288 + n*65536}")
                A(f"buffer_load_dwordx4 {v(vWA)}, {srd({'q': SRD_WQ, 'k': SRD_WK, 'v': SRD_WV}[kind])}, s{sT1} offen{wnt} lds")
    for c in range(NCH):
        if issue_after[c] == -1: wdma(c)
    TS(1)
    if 'resolve' in hooks: hooks['resolve']()
    TS(2)
    A.c("R setup")
    A(f"""
    s_mov_b32 s{sLO32}, -1
    s_mov_b32 s{sLO32+1}, 0
    s_mov_b32 s{sHI32}, 0
    s_mov_b32 s{sHI32+1}, -1
    s_mov_b32 s{sEVEN}, 0x0f0f0f0f
    s_mov_b32 s{sEVEN+1}, 0x0f0f0f0f
    s_mov_b32 s{sN8}, 0xff00ff00
    s_mov_b32 s{sN8+1}, 0xff00ff00
    s_mov_b32 s{sC}, {f32bits(CEXP)}
    s_mov_b32 s{sC+1}, {f32bits(CEXP)}
    s_lshl_b32 s{sWB}, s{W}, 10
    s_lshl_b32 s{sPRG}, s{s_head}, 7
    s_add_u32 s{sPRG}, s{sPRG}, {FLAG_RP}
    """)
    assert R1N == 4
    A(f"s_sub_u32 s{sB3}, 8192, s{sWB}\ns_mov_b32 s{sM3}, {L_MEMF + 8192}")
    A(f"s_mov_b32 s{sB1}, {WS_PART}\ns_mov_b32 s{sB2}, 0x40000000\ns_cmp_eq_u32 s{W}, 0\ns_cselect_b32 s{sT0}, s{sB2}, s{sB1}\ns_cselect_b32 s{sB2}, s{sB1}, s{sB2}\ns_mov_b32 s{sB1}, s{sT0}")
    for r in range(4):
        m16 = sum(1 << i for i in range(16) if 2 * (i & 1) + (i >> 3) == r)
        m = m16 | (m16 << 16)
        A(f"s_mov_b32 s{sSEL+2*r}, {m}\ns_mov_b32 s{sSEL+2*r+1}, {m}")
    A(f"""
    v_mov_b32 {v(IDX)}, 0x44444444
    v_mov_b32 {v(T0)}, 0xeeeeeeee
    v_cndmask_b32 {v(IDX)}, {v(IDX)}, {v(T0)}, s[{sN8}:{sN8+1}]
    v_mov_b32 {v(SELV)}, 0x3f800000
    v_mov_b32 {v(T0)}, 0x3f80
    v_cndmask_b32 {v(SELV)}, {v(SELV)}, {v(T0)}, s[{sEVEN}:{sEVEN+1}]
    s_mov_b32 s{sPM}, -1
    s_mov_b32 s{sPM+1}, -1
    v_lshlrev_b32 {v(T0)}, 4, v1
    s_add_u32 s{sT0}, s{sWB}, {HI}
    v_add_u32 {v(vCON)}, s{sT0}, {v(T0)}
    s_mul_i32 s{sT0}, s{W}, {WSTR}
    v_add_u32 {v(vWV)}, s{sT0}, {v(T0)}
    s_lshl_b32 s{sT0}, s{W}, 5
    s_add_u32 s{sT0}, s{sT0}, s{s_head}           ; unit
    s_lshl_b32 s{sT1}, s{sT0}, 12
    s_cmp_lt_u32 s{sT0}, 72
    s_cselect_b32 s{sRED}, 1, 0
    s_cselect_b32 s{sT1}, s{sT1}, 0x40000000
    v_add_u32 {v(vRED)}, s{sT1}, {v(T0)}
    s_lshr_b32 s{sT1}, s{sT0}, 1
    s_lshl_b32 s{sT4}, s{sT1}, 5
    s_lshl_b32 s{sT1}, s{sT1}, 8
    s_and_b32 s{sT2}, s{sT0}, 1
    s_mul_i32 s{sT3}, s{sT2}, {4*1152}
    s_add_u32 s{sT4}, s{sT4}, s{sT3}
    s_lshl_b32 s{sT2}, s{sT2}, 6
    s_add_u32 s{sT1}, s{sT1}, s{sT2}
    s_lshr_b32 s{sT2}, s{sT0}, 4
    s_mov_b32 s{sRDLY}, {RD_[0]}
    """)
    for o in range(1, 5):
        A(f"s_cmp_eq_u32 s{sT2}, {o}\ns_cselect_b32 s{sRDLY}, {RD_[o]}, s{sRDLY}")
    bits(vPUB, [(2, 1, 7), (4, 2, 4), (0, 2, 2)], f"s{sT1}")
    A(f"s_lshl_b32 s{sT1}, s{W}, 1\ns_xor_b32 s{sT2}, s{s_head}, s{sT1}\ns_lshl_b32 s{sT2}, s{sT2}, 7\ns_lshl_b32 s{sT1}, s{W}, 13")
    bits(vPST, [(5, 1, 10), (4, 1, 7)])
    A(f"v_xor_b32 {v(T1)}, s{sT2}, {v(vPST)}\nv_add_u32 {v(T1)}, s{sT1}, {v(T1)}")
    bits(vPST, [(5, 1, 15), (4, 1, 12), (0, 4, 3)], v(T1))
    A(f"s_lshl_b32 s{sT1}, s{W}, 9\ns_add_u32 s{sT2}, s{sT1}, {L_Q}")
    bits(vQW, [(5, 1, 8), (0, 4, 4), (4, 1, 3)], f"s{sT2}")
    bits(vQR, [(5, 1, 8), (4, 1, 6), (2, 2, 4), (0, 1, 3)], L_Q)
    bits(vKX, [(4, 2, 9), (3, 1, 8), (0, 3, 4)], HI)
    bits(vAF, [(4, 2, 7), (0, 3, 4)], HI)
    A(f"s_add_u32 s{sT2}, s{sT1}, {L_O}")
    bits(vOW, [(5, 1, 7), (0, 3, 4), (4, 1, 3)], f"s{sT2}")
    A(f"s_lshl_b32 s{sT1}, s{W}, 11")
    bits(vVX, [(4, 2, 9), (0, 4, 4)], f"s{sT1}")
    ARM = D0 + 4
    X0, X1 = D0 + 8, D0 + 9
    for i in range(4): A(f"v_mov_b32 {v(ARM+i)}, -1")
    A(f"s_cmp_eq_u32 s{sRED}, 0\ns_cbranch_scc1 {L('noarm')}")
    bits(X1, [(4, 2, 0)])
    A(f"v_mul_u32_u24 {v(X1)}, 1152, {v(X1)}")
    bits(X0, [(0, 3, 2)], v(X1))
    A(f"buffer_load_dword {v(vSP)}, {v(X0)}, {srd(SRD_M0)}, s{sT4} offen")
    A(f"s_mov_b32 s{sT0}, {WS_PART}")
    for i in range(4):
        A(f"buffer_store_dwordx4 {v(ARM,4)}, {v(vRED)}, {srd(SRD_WS)}, s{sT0} offen offset:{i*1024} sc1")
    A(f"s_mov_b64 exec, s[{sEVEN}:{sEVEN+1}]")
    for sl in range(3):
        A(f"s_mov_b32 s{sT0}, {WS_MEMB + sl*MSLOT}")
        A(f"buffer_store_dword {v(ARM)}, {v(vPUB)}, {srd(SRD_WS)}, s{sT0} offen sc1")
    A("s_mov_b64 exec, -1")
    A.label(L('noarm'))
    if merged:
        A(f"""
        s_cmp_lg_u32 s{W}, 3
        s_cbranch_scc1 {L('nz')}
        v_lshlrev_b32 {v(X0)}, 2, v1
        v_mov_b32 {v(X1)}, 0
        s_lshl_b32 s{sT0}, s{s_head}, 8
        s_add_u32 s{sT0}, s{sT0}, {FLAG_KV}
        buffer_store_dword {v(X1)}, {v(X0)}, {srd(SRD_WS)}, s{sT0} offen sc1
        v_lshlrev_b32 {v(X0)}, {5 + OXS_LOG}, v1
        s_lshl_b32 s{sT0}, s{s_head}, {OXS_LOG}
        s_add_u32 s{sT0}, s{sT0}, {FLAG_OX}
        buffer_store_dword {v(X1)}, {v(X0)}, {srd(SRD_WS)}, s{sT0} offen sc1
        v_mov_b32 {v(X0)}, s{sPRG}
        buffer_store_dword {v(X1)}, {v(X0)}, {srd(SRD_WS)}, 0 offen sc1
{L('nz')}:
        """)
    A(f"""
    s_and_b32 s{sT0}, s{W}, 2
    s_mul_i32 s{sT0}, s{sT0}, {WSTR}
    s_and_b32 s{sT1}, s{W}, 1
    s_lshl_b32 s{sT1}, s{sT1}, 6
    s_add_u32 s{sT0}, s{sT0}, s{sT1}
    s_lshl_b32 s{sT1}, s{W}, 5
    """)
    bits(vTR[0], [(4, 2, 9), (2, 1, 7), (3, 1, 5), (0, 2, 3)], f"s{sT0}")
    A(f"v_add_u32 {v(vTR[1])}, {WSTR}, {v(vTR[0])}")
    bits(vTO[0], [(4, 2, 10), (2, 1, 8), (3, 1, 7), (0, 2, 3)], f"s{sT1}")
    bits(vTD[0], [(4, 1, 11), (2, 2, 8), (0, 2, 3)], f"s{sT1}")
    A(f"v_bfe_u32 {v(T2)}, v1, 5, 1\nv_mul_u32_u24 {v(T2)}, {WSTR}, {v(T2)}\nv_add_u32 {v(vTD[0])}, {v(vTD[0])}, {v(T2)}")
    for k in range(1, 4): A(f"v_add_u32 {v(vTO[k])}, {k*WSTR}, {v(vTO[0])}")
    A(f"v_add_u32 {v(vTD[1])}, {2*WSTR}, {v(vTD[0])}")
    def trread(dst_fn, h, sl):
        for t, ro in enumerate((0, 2, 16, 18)):
            A(f"ds_read_b64_tr_b16 {dst_fn(t)}, {v(vTR[h])} offset:{sl*4096 + ro*128}")
    def trread_o(dst_fn, h, sl):
        for t, (k, ro) in enumerate(((0, 0), (0, 2), (1, 0), (1, 2))):
            A(f"ds_read_b64_tr_b16 {dst_fn(t)}, {v(vTO[2*h+k])} offset:{sl*4096 + ro*256}")
    sub = lambda base, t: wreg(base + 2 * t, 2)
    print('weight seq', ''.join(k for k, _ in chunks), 'slots', [slot_map[c] for c in range(NCH)], 'after', [issue_after[c] for c in range(NCH)], file=sys.stderr) if 'WSEQ' in os.environ else None
    assert issue_after[ARMAT] >= 0 and all(chunks[c][0] != 'o' for c in range(LASTI + 1, NCH))
    sKV, sMODE, sEARLY, sWARMED = 5, 6, 3, 7
    def warm0():
        A(f"v_lshlrev_b32 {v(X0)}, 7, v1\ns_lshl_b32 s{sT0}, s{s_head}, 13")
        for sg in range(WARMD):
            A(f"s_add_u32 s{sT1}, s{sT0}, {WS_KX + sg*RECSZ}\nbuffer_load_dword {v(X1)}, {v(X0)}, {srd(SRD_WS)}, s{sT1} offen sc1")
            A(f"s_add_u32 s{sT1}, s{sT0}, {WS_VX + sg*RECSZ}\nbuffer_load_dword {v(X1)}, {v(X0)}, {srd(SRD_WS)}, s{sT1} offen sc1")
    for c in range(NCH):
        kind, ix = chunks[c]; sl = slot_of(c)
        vq.wait(f"C{c}")
        A("s_waitcnt lgkmcnt(0)\ns_barrier")
        if kind in "qk":
            base = 0 if kind == "q" else 144
            for h in range(2): trread(lambda t: sub(base + (2 * ix + h) * 8, t), h, sl)
        elif kind == "o":
            p, kb2 = ix
            for h in range(2):
                if p < 4: trread_o(lambda t: sub(288 + (p * 4 + 2 * kb2 + h) * 8, t), h, sl)
                else:
                    for t in range(2):
                        A(f"ds_read_b64_tr_b16 {wreg(288 + 128 + (2*kb2+h)*4 + 2*t, 2)}, {v(vTD[h])} offset:{sl*4096 + 4*t*256}")
        else:
            trread(lambda t: v(VS + 2 * t, 2), 0, sl)
            if ix < 8: trread(lambda t: v(VS + 8 + 2 * t, 2), 1, sl)
            else: trread(lambda t: v(WVR + 2 * t, 2), 1, sl)
        A("s_waitcnt lgkmcnt(0)\ns_barrier")
        if kind == "v":
            for q in range(4 if ix < 8 else 2):
                A(f"ds_write_b128 {v(vWV)}, {v(VS+4*q,4)} offset:{ix*4096 + q*1024}")
        if c == 0: TS(3)
        if c == 9: TS(4)
        if c == NCH - 1: TS(5)
        if c == ARMAT:
            A(f"""
            s_cmp_lg_u32 s{W}, 0
            s_cbranch_scc1 {L('armed')}
            v_mov_b32 {v(T0)}, 1
            v_mov_b32 {v(T1)}, {DBG_RARM}
            s_mov_b64 exec, 1
            buffer_atomic_add {v(T0)}, {v(T1)}, {srd(SRD_DBG)}, 0 offen sc1
            s_mov_b64 exec, -1
{L('armed')}:
            s_cmp_eq_u32 s{sRED}, 0
            s_cbranch_scc1 {L('nom0')}
            v_min_u32 {v(vSP)}, -2, {v(vSP)}
            s_mov_b32 s{sT0}, {WS_MEMB}
            s_mov_b64 exec, s[{sEVEN}:{sEVEN+1}]
            buffer_store_dword {v(vSP)}, {v(vPUB)}, {srd(SRD_WS)}, s{sT0} offen sc1
            s_mov_b64 exec, -1
            s_nop 0
            v_mov_b32 {v(vSP)}, -1
{L('nom0')}:
            """)
        for c2 in range(NCH):
            if issue_after[c2] == c: wdma(c2)
        if c == LASTI - 1:
            vq.push('E', 2)
            A(f"""
            v_lshlrev_b32 {v(X1)}, 2, v1
            s_lshl_b32 s{sT1}, s{s_head}, 8
            s_add_u32 s{sT1}, s{sT1}, {FLAG_KV}
            buffer_load_dword {v(D0+50)}, {v(X1)}, {srd(SRD_DBG)}, 0 offen sc1
            buffer_load_dword {v(D0+51)}, {v(X1)}, {srd(SRD_WS)}, s{sT1} offen sc1
            """)
        if c == NCH - 1:
            A(f"""
            v_readlane_b32 s{sEARLY}, {v(D0+50)}, {DBG_RARM//4}
            v_readlane_b32 s{sT1}, {v(D0+50)}, {DBG_OVH//4}
            v_cmp_ne_u32 vcc, 4, {v(D0+51)}
            s_cmp_eq_u32 s{sT1}, 0
            s_cselect_b32 s{sMODE}, 0, 1
            s_ff1_i32_b64 s{sKV}, vcc
            s_cmp_lt_i32 s{sKV}, 0
            s_cselect_b32 s{sKV}, 64, s{sKV}
            s_mov_b32 s{sWARMED}, 0
            """)
            if merged:
                A(f"""
                s_cmp_lg_u32 s{W}, 3
                s_cbranch_scc1 {L('nwe')}
                s_cmp_lt_u32 s{sKV}, {WARMD + 1}
                s_cbranch_scc1 {L('nwe')}
                """)
                warm0()
                A(f"s_mov_b32 s{sWARMED}, 1\n{L('nwe')}:")
        if c == LASTI:
            vq.push('P', 7)
            A(f"s_mov_b32 s{sT0}, {WS_PART}")
            for i in range(4):
                A(f"buffer_load_dwordx4 {v(D0+28+4*i,4)}, {v(vRED)}, {srd(SRD_WS)}, s{sT0} offen offset:{i*1024} sc1")
            for sl in range(3):
                A(f"s_mov_b32 s{sT0}, {WS_MEMB + sl*MSLOT}")
                A(f"buffer_load_dword {v(D0+46)}, {v(vPUB)}, {srd(SRD_WS)}, s{sT0} offen sc1")
    stamp(A, 9, s_id=s_head)
    hstamp(A, 13)
    AQ, AK, AV = D0, D0 + 4, D0 + 8
    AS = [D0 + 12 + 4 * i for i in range(4)]
    WR = [D0 + 28, D0 + 36, D0 + 44]
    korder = list(range(18))
    wvl = [kk for kk in korder if kk != 17]
    lg = LQ(A, "lgkmcnt")
    def wvread(f):
        if x_nowv: return
        o = wvl[f] * 2048; d = WR[f % 3]
        A(f"ds_read_b128 {v(d,4)}, {v(vWV)} offset:{o}")
        A(f"ds_read_b128 {v(d+4,4)}, {v(vWV)} offset:{o+1024}")
        lg.push(f"W{f}", 2)
    def kx_early():
        A(f"""
        s_sub_u32 s{sT0}, s{sWB}, 2048
        s_lshl_b32 s{sT0}, s{sT0}, 1
        s_add_u32 m0, s{sT0}, {L_KX}
        s_add_u32 s{sT1}, s{sSEG}, {WS_KX - HI}
        buffer_load_dwordx4 {v(vC1)}, {srd(SRD_WS)}, s{sT1} offen sc1 lds
        buffer_load_dwordx4 {v(vC1)}, {srd(SRD_WS)}, s{sT1} offen offset:1024 sc1 lds
        s_add_u32 m0, s{sT0}, {L_KX + 4096}
        s_add_u32 s{sT1}, s{sT1}, 4096
        buffer_load_dwordx4 {v(vC1)}, {srd(SRD_WS)}, s{sT1} offen sc1 lds
        buffer_load_dwordx4 {v(vC1)}, {srd(SRD_WS)}, s{sT1} offen offset:1024 sc1 lds
        """)
    def zero_acc():
        for i in range(12): A(f"v_mov_b32 {v(AQ+i)}, 0")
    def kv_wait(s_need, lab):
        A(f"""
        s_cmp_ge_u32 s{sKV}, s{s_need}
        s_cbranch_scc1 {lab}_ok
        s_waitcnt vmcnt(0)
        s_lshl_b32 s{sT1}, s{s_head}, 8
        s_add_u32 s{sT1}, s{sT1}, {FLAG_KV}
        v_lshrrev_b32 {v(TMP)}, 2, {v(vCON)}
        v_and_b32 {v(TMP)}, 255, {v(TMP)}
{lab}_p:
        buffer_load_dword {v(D0+40)}, {v(TMP)}, {srd(SRD_WS)}, s{sT1} offen sc1
        s_sub_u32 s{sSPIN}, s{sSPIN}, 1
        s_cbranch_scc1 {abort}
        s_waitcnt vmcnt(0)
        v_cmp_ne_u32 vcc, 4, {v(D0+40)}
        s_ff1_i32_b64 s{sKV}, vcc
        s_cmp_lt_i32 s{sKV}, 0
        s_cselect_b32 s{sKV}, 64, s{sKV}
        s_cmp_ge_u32 s{sKV}, s{s_need}
        s_cbranch_scc1 {lab}_ok
        s_sleep 4
        s_branch {lab}_p
{lab}_ok:
        """)
    A(f"""
    s_mov_b32 s{sSPIN}, {SPIN}
    v_lshlrev_b32 {v(T1)}, 2, v1
    s_cmp_ge_u32 s{sEARLY}, 32
    s_cbranch_scc1 {L('warmok')}
    s_mov_b32 s{sKV}, 0
    s_mov_b32 s{sWARMED}, 0
{L('warm')}:
    buffer_load_dword {v(T0)}, {v(T1)}, {srd(SRD_DBG)}, 0 offen sc1
    s_sub_u32 s{sSPIN}, s{sSPIN}, 1
    s_cbranch_scc1 {abort}
    s_waitcnt vmcnt(0)
    v_readlane_b32 s{sT0}, {v(T0)}, {DBG_RARM//4}
    v_readlane_b32 s{sT1}, {v(T0)}, {DBG_OVH//4}
    s_cmp_lt_u32 s{sT0}, 32
    s_cbranch_scc1 {L('warm')}
    s_cmp_eq_u32 s{sT1}, 0
    s_cselect_b32 s{sMODE}, 0, 1
{L('warmok')}:
    """)
    if merged:
        A(f"""
        s_cmp_lg_u32 s{W}, 3
        s_cbranch_scc1 {L('nkvi')}
        s_cmp_eq_u32 s{sWARMED}, 1
        s_cbranch_scc1 {L('nkvi')}
        s_waitcnt vmcnt(0)
        s_mov_b32 s{sT0}, {WARMD + 1}
        """)
        kv_wait(sT0, L('kvi'))
        warm0()
        A(f"{L('nkvi')}:")
    A(f"""
    s_mov_b32 s{sSTEP}, 0
    s_mov_b32 s{sPW}, {WS_PART}
    s_mov_b32 s{sMA}, {WS_MEMB + 2*MSLOT}
    s_mov_b32 s{sMW}, {WS_MEMB}
    s_mov_b32 s{sMR}, {WS_MEMB + MSLOT}
    s_lshl_b32 s{sSEG}, s{s_head}, 13
    s_mov_b32 s{sWOF}, 0x40000000
    s_cmp_lg_u32 s{W}, 3
    s_cselect_b32 s{sPRG}, s{sWOF}, s{sPRG}
    s_mov_b32 s{sKVO}, s{sWOF}
    s_cbranch_scc1 {L('nw3i')}
    s_lshl_b32 s{sKVO}, s{s_head}, 8
    s_add_u32 s{sKVO}, s{sKVO}, {FLAG_KV}
    v_lshlrev_b32 {v(vPUB)}, 2, v1
    s_mov_b32 s{sWOF}, {WS_KX + WARMD*RECSZ}
    v_lshlrev_b32 {v(vRED)}, 7, v1
    v_mov_b32 {v(vSP)}, 0
{L('nw3i')}:
    s_cmp_eq_u32 s{W}, 3
    s_movk_i32 s{sT0}, 2048
    s_cselect_b32 s{sT0}, 1024, s{sT0}
    v_subrev_u32 v1, s{sT0}, {v(vCON)}
    s_waitcnt vmcnt(0) lgkmcnt(0)
    s_barrier
    """)
    zero_acc()
    if KXE:
        A(f"s_cmp_lt_u32 s{W}, 2\ns_cbranch_scc1 {L('nkxi')}"); kx_early(); A.label(L('nkxi'))
    if prof: A("v_mov_b32 v1, 0\ns_memtime s[98:99]\ns_waitcnt lgkmcnt(0)")
    TS(6)
    if merged: A(f"s_cmp_eq_u32 s{sMODE}, 1\ns_cbranch_scc1 {L('loopS0')}x")
    if cnt: A("s_mov_b32 s20, 0\ns_mov_b32 s21, 0\ns_memtime s[96:97]\ns_memrealtime s[98:99]\ns_waitcnt lgkmcnt(0)\ns_mov_b32 s99, s96")
    RL = D0 + 52
    def sm(acc, a_, b): A(f"v_smfmac_f32_16x16x64_bf16 {v(acc,4)}, {a_}, {b}, {v(IDX)}")
    def mf(d, a_, b_, first):
        A(f"v_mfma_f32_16x16x32_bf16 {v(d,4)}, {a_}, {b_}, {'0' if first else v(d,4)}")
    def chk(r, br):
        A(f"""
        v_max3_u32 {v(TMP)}, {v(r)}, {v(r+1)}, {v(r+2)}
        v_max_u32 {v(TMP)}, {v(TMP)}, {v(r+3)}
        v_cmp_eq_u32 vcc, -1, {v(TMP)}
        {br}
        """)
    def spin(): A(f"s_sub_u32 s{sSPIN}, s{sSPIN}, 1\ns_cbranch_scc1 {abort}")
    def cload(r, so): A(f"buffer_load_dwordx4 {v(r,4)}, {v(vC1)}, {srd(SRD_WS)}, s{so} offen{ld}")
    def pk2(d, s_):
        A(f"v_cvt_pk_bf16_f32 {v(d)}, {v(s_)}, {v(s_+1)}")
        A(f"v_cvt_pk_bf16_f32 {v(d+1)}, {v(s_+2)}, {v(s_+3)}")
    def step_body(par, sc, md):
        LP = lambda n: L(n + md + str(par))
        nxt_loop = L('loop' + md + str(1 - par))
        A.label(LP('loop'))
        if RGAP: A("s_waitcnt vmcnt(2)")
        A.label(LP('loop') + "x")
        lg.clear()
        A(f"""
        s_mov_b32 s{sT3}, s{sMA}
        s_mov_b32 s{sMA}, s{sMW}
        s_mov_b32 s{sMW}, s{sMR}
        s_mov_b32 s{sMR}, s{sT3}
        s_mov_b32 s{sSPIN}, {SPIN}
        s_sub_u32 s{sT0}, s{sMA}, {HI}
        s_mov_b32 s{sT1}, s{sT0}
        s_add_u32 s{sT2}, s{sT0}, 4096
        s_add_u32 s{sT3}, s{sT0}, s{sB3}
        s_add_u32 s{sT4}, s{sSEG}, {WS_KX - HI}
        s_add_u32 m0, s{sWB}, {L_MEMF + R1N*1024}
        """)
        for f in range(3): wvread(f)
        A(f"s_cmp_lt_u32 s{W}, 2\ns_cbranch_scc1 {LP('cdj')}")
        if CD: A(f"s_sleep {CD}")
        TQ("cgo")
        def cload2(r):
            A(f"buffer_load_dwordx4 {v(r,4)}, {v(vC1)}, {srd(SRD_WS)}, s{sT1} offen sc1")
            A(f"buffer_load_dwordx4 {v(r+4,4)}, {v(vC1)}, {srd(SRD_WS)}, s{sT0} offen offset:1024 sc1")
        def cproc(r, y, br):
            A(f"""
            s_waitcnt vmcnt({y+1})
            ds_write_b128 {v(vC1)}, {v(r,4)} offset:{L_MEMF-HI}
            v_max3_u32 {v(TMP)}, {v(r)}, {v(r+1)}, {v(r+2)}
            s_waitcnt vmcnt({y})
            ds_write_b128 {v(vC1)}, {v(r+4,4)} offset:{L_MEMF-HI+1024}
            v_max3_u32 {v(TMP)}, {v(TMP)}, {v(r+3)}, {v(r+4)}
            v_max3_u32 {v(TMP)}, {v(TMP)}, {v(r+5)}, {v(r+6)}
            v_max_u32 {v(TMP)}, {v(TMP)}, {v(r+7)}
            v_cmp_eq_u32 vcc, -1, {v(TMP)}
            {br}
            """)
        if CGAP:
            cload2(AS[0]); A(f"s_sleep {CGAP}" if CGAP > 0 else f"s_nop {-CGAP}"); cload2(AS[2])
            A.label(LP('cp'))
            cproc(AS[0], 2, f"s_cbranch_vccnz {LP('cf')}")
        else:
            A.label(LP('cp'))
            cload2(AS[2]); spin()
            cproc(AS[2], 0, f"s_cbranch_vccnz {LP('cp')}")
        A.label(LP('cdj'))
        TQ("cdj")
        A("s_waitcnt lgkmcnt(0)\ns_barrier")
        if trace: TR(4); A("s_waitcnt lgkmcnt(0)")
        lg.clear()
        if cnt: A(f"s_sub_u32 s96, {SPIN}, s{sSPIN}\ns_add_u32 s20, s20, s96")
        PH(0)
        slot = lambda i: (i & 3) if i < 12 else (i - 12) % 3
        prev_user = lambda j: j - 4 if j < 15 else j - 3
        def aread(i):
            A(f"ds_read_b128 {v(AS[slot(i)],4)}, {v(vAF)} offset:{L_MEMF-HI+i*512}")
            lg.push(f"A{i}")
        def dma(so): A(f"buffer_load_dwordx4 {v(vCON)}, {srd(SRD_WS)}, s{so} offen sc1 lds")
        KXR = [D0 + 44, D0 + 48, D0 + 28, D0 + 32, D0 + 36, D0 + 40, D0 + 28, D0 + 32]
        VXF = [D0 + 52, D0 + 24]
        def kxread(n):
            A(f"ds_read_b128 {v(KXR[n],4)}, {v(vKX)} offset:{L_KX-HI+(n>>1)*2048+(n&1)*128}")
            lg.push(f"X{n}")
        TQ("start")
        aread(0); aread(1)
        if CGAP: A("s_waitcnt vmcnt(0)")
        aread(2); aread(3)
        f = 0
        nxt = 4
        late = []
        slow_n = [0]
        for i, kk in enumerate(korder):
            a_ = v(AS[slot(i)], 4)
            TQ(f"q{i}")
            lg.wait(f"A{i}")
            sm(AQ, a_, WQ(kk))
            if RAL and i == RAL - 1: A(f"s_cmp_eq_u32 s{sRED}, 0\ns_cselect_b32 s97, 0x40000000, s{sMR}")
            if RAL and i == RAL: A(f"buffer_store_dword {v(vSP)}, {v(vPUB)}, {srd(SRD_WS)}, s97 offen{sc}"); slow_n[0] += 1
            if i == FAT and merged: A(f"buffer_store_dword {v(vSP)}, off, {srd(SRD_WS)}, s{sPRG} sc1"); slow_n[0] += 1
            if i == WAT and not nowarm: A(f"buffer_load_dword {v(TMP)}, {v(vRED)}, {srd(SRD_WS)}, s{sT3} offen sc1"); slow_n[0] += 1
            if i == WAT + 1 and not nowarm: A(f"buffer_load_dword {v(TMP)}, {v(vRED)}, {srd(SRD_WS)}, s{sT2} offen sc1"); slow_n[0] += 1
            if i == WAT + 3 and merged: A(f"buffer_load_dword {v(TMP)}, {v(vPUB)}, {srd(SRD_WS)}, s{sKVO} offen sc1"); slow_n[0] += 1
            if i == R2AT: dma(sT2)
            if i in (R2AT + 1, R2AT + 2) and not KXE: dma(sT4)
            if i == R3AT: dma(sT3)
            if i == R3AT + 1: A(f"buffer_load_dwordx4 {v(VXF[0],4)}, {v(vVX)}, {srd(SRD_WS)}, s{sT0} offen sc1")
            sm(AK, a_, WK(kk))
            if KXE:
                if i == R2AT: A(f"s_mov_b32 m0, s{sM3}\ns_add_u32 s{sT0}, s{sSEG}, {WS_VX}")
            else:
                if i == R2AT: A(f"s_add_u32 m0, s{sWB}, {L_KX}")
                if i == R2AT + 1: A(f"s_add_u32 m0, s{sWB}, {L_KX + 4096}\ns_add_u32 s{sT4}, s{sT4}, 4096")
                if i == R2AT + 2: A(f"s_mov_b32 m0, s{sM3}\ns_add_u32 s{sT0}, s{sSEG}, {WS_VX}")
            if i in (B2AT, B3AT) and not (KXE and i == B3AT):
                A(f"s_waitcnt vmcnt({(1 if KXE else 2) + slow_n[0]})\ns_barrier")
                while prev_user(nxt) < i: aread(nxt); nxt += 1
            if i == 8: A(f"s_lshr_b32 s{sT2}, s{sSEG}, 1")
            if i == 9: A(f"s_add_u32 s{sT1}, s{sT2}, {0x40000000 if nokm else WS_VM - L_Q}\ns_add_u32 s{sT4}, s{sT2}, {0x40000000 if nokm else WS_KM - L_Q}")
            if i == 10: A(f"s_add_u32 s{sT3}, s{sSEG}, s{sWOF}\ns_add_u32 s{sT2}, s{sT3}, {WS_VX - WS_KX}")
            if i >= 16:
                late.append((a_, f if kk != 17 else None)); f += 1
            else:
                lg.wait(f"W{f}")
                sm(AV, a_, v(WR[f % 3], 8))
                if f + 3 < 17: wvread(f + 3)
                f += 1
            lim = 2*R1N-1 if i < B2AT else (2*R1N+7 if i < B3AT and not KXE else 17)
            while nxt <= lim and prev_user(nxt) <= i: aread(nxt); nxt += 1
            if i == 11: A(f"buffer_load_dwordx4 {v(VXF[1],4)}, {v(vVX)}, {srd(SRD_WS)}, s{sT0} offen offset:256 sc1")
            if i == 14: kxread(0); kxread(1)
            if i == 15: kxread(2); kxread(3)
        assert nxt == 18 and WAT + 3 <= 17 and FAT < WAT + 3 and WAT >= 12 and FAT >= 12 and B3AT >= 12 and R3AT + 1 <= 11
        TQ("qend")
        QF = [D0 + 0, D0 + 4]; KF = [D0 + 16, D0 + 20]
        KP, ZP = D0 + 12, D0 + 14
        def latev(n):
            a_, f_ = late[n]
            if f_ is None: sm(AV, a_, v(WVR, 8)); return
            lg.wait(f"W{f_}")
            sm(AV, a_, v(WR[f_ % 3], 8))
        def qk_write():
            pk2(AQ, AQ)
            A(f"ds_write_b64 {v(vQW)}, {v(AQ,2)}")
            pk2(KP, AK)
            A(f"ds_write_b64 {v(vQW)}, {v(KP,2)} offset:{L_K-L_Q}")
        latev(0)
        if MW == 1: A("s_nop 5")
        else: A("s_nop 2")
        TQ("s2a")
        qk_write(); lg.push("qk", 2)
        latev(1)
        kxread(4); kxread(5)
        A(f"""
        v_cmp_u_f32 vcc, {v(AK)}, {v(AK+1)}
        v_cmp_u_f32 s[{sRDLY2}:{sRDLY2+1}], {v(AK+2)}, {v(AK+3)}
        s_or_b64 vcc, vcc, s[{sRDLY2}:{sRDLY2+1}]
        s_cbranch_vccnz {LP('slow')}
        """)
        A.label(LP('slowret'))
        if par == (last & 1):
            A(f"s_cmp_eq_u32 s{sSTEP}, {last}\ns_cbranch_scc1 {L('done')}")
        TQ("s2c")
        lg.wait("qk")
        A("s_barrier")
        TQ("s2end")
        def qk_reads(fb):
            b = fb & 1
            for (dst, base, tg) in ((QF[b], 0, "Q"), (KF[b], L_K - L_Q, "K")):
                A(f"ds_read_b64_tr_b16 {v(dst,2)}, {v(vQR)} offset:{base+fb*512}")
                A(f"ds_read_b64_tr_b16 {v(dst+2,2)}, {v(vQR)} offset:{base+fb*512+128}")
                lg.push(f"{tg}{fb}", 2)
        qk_reads(0); qk_reads(1)
        pk2(ZP, AV)
        ST = [D0 + 8, KXR[0], KXR[1]]
        VMT = D0 + 36; ON1 = D0 + 16; ON2 = D0 + 20
        M0_, M1_ = D0 + 42, D0 + 43
        PX = D0 + 0; PM = PX + 4
        for fb in range(4):
            b = fb & 1
            TQ(f"fb{fb}")
            for kt in range(2):
                n = 2 * fb + kt
                lg.wait(f"Q{fb}"); lg.wait(f"X{n}")
                mf(ST[kt], v(KXR[n], 4), v(QF[b], 4), fb == 0)
                if n in (2, 3): kxread(n + 4)
                if n == 0: A(f"buffer_store_dwordx2 {v(KP,2)}, {v(vQW)}, {srd(SRD_WS)}, s{sT4} offen sc1")
                if n == 3: A(f"buffer_store_dwordx2 {v(ZP,2)}, {v(vQW)}, {srd(SRD_WS)}, s{sT1} offen sc1")
                if n == 4: A(f"v_cndmask_b32 {v(VMT)}, 0, {v(ZP)}, s[{sLO32}:{sLO32+1}]\nv_cndmask_b32 {v(VMT+1)}, 0, {v(ZP+1)}, s[{sLO32}:{sLO32+1}]")
                if n == 5: A(f"v_mov_b32 {v(VMT+2)}, 0\nv_mov_b32 {v(VMT+3)}, 0")
                if n == 6: A(f"v_mov_b32 {v(ON1)}, 0x3f803f80\nv_mov_b32 {v(ON1+1)}, 0x3f803f80")
                if n == 7: A(f"v_mov_b32 {v(ON1+2)}, 0x3f803f80\nv_mov_b32 {v(ON1+3)}, 0x3f803f80")
            lg.wait(f"K{fb}")
            mf(ST[2], v(KF[b], 4), v(QF[b], 4), fb == 0)
            if fb + 2 < 4: qk_reads(fb + 2)
            if fb == 2:
                A(f"v_cndmask_b32 {v(VMT+4)}, 0, {v(ZP)}, s[{sHI32}:{sHI32+1}]\nv_cndmask_b32 {v(VMT+5)}, 0, {v(ZP+1)}, s[{sHI32}:{sHI32+1}]")
        TQ("scend")
        SR = [ST[t] + r for t in range(3) for r in range(4)]
        A(f"v_mov_b32 {v(ON2)}, 0x3f003f00\nv_mov_b32 {v(ON2+1)}, 0x3f003f00\nv_mov_b32 {v(ON2+2)}, 0\nv_mov_b32 {v(ON2+3)}, 0")
        A(f"""
        v_max3_f32 {v(M0_)}, {v(SR[0])}, {v(SR[1])}, {v(SR[2])}
        s_nop 0
        v_max3_f32 {v(M1_)}, {v(SR[3])}, {v(SR[4])}, {v(SR[5])}
        v_max3_f32 {v(M0_)}, {v(M0_)}, {v(SR[6])}, {v(SR[7])}
        v_max3_f32 {v(M1_)}, {v(M1_)}, {v(SR[8])}, {v(SR[9])}
        v_max3_f32 {v(M0_)}, {v(M0_)}, {v(SR[10])}, {v(SR[11])}
        v_max_f32 {v(M0_)}, {v(M0_)}, {v(M1_)}
        v_max_f32 {v(M1_)}, {v(M0_)}, {v(M1_)}
        v_mov_b32 {v(D0+12)}, 0
        v_mov_b32 {v(D0+13)}, 0
        v_permlane32_swap_b32 {v(M0_)}, {v(M1_)}
        v_max_f32 {v(M0_)}, {v(M0_)}, {v(M1_)}
        v_max_f32 {v(M1_)}, {v(M0_)}, {v(M1_)}
        v_mov_b32 {v(D0+14)}, 0
        v_mov_b32 {v(D0+15)}, 0
        v_permlane16_swap_b32 {v(M0_)}, {v(M1_)}
        v_max_f32 {v(M0_)}, {v(M0_)}, {v(M1_)}
        v_mul_f32 {v(M0_)}, s{sC}, {v(M0_)}
        """)
        for i in range(6):
            A(f"v_pk_fma_f32 {v(SR[2*i],2)}, {v(SR[2*i],2)}, s[{sC}:{sC+1}], {v(M0_,2)} op_sel_hi:[1,1,0] neg_lo:[0,0,1] neg_hi:[0,0,1]")
        OT, OT1, LS = D0 + 28, D0 + 32, D0 + 8
        if PVO:
            E = lambda i: f"v_exp_f32 {v(SR[i])}, {v(SR[i])}"
            C = lambda j: f"v_cvt_pk_bf16_f32 {v(PX+j)}, {v(SR[2*j])}, {v(SR[2*j+1])}"
            A("\n".join([E(0), E(1), E(2), C(0), E(3), E(4), C(1), E(5), E(6), C(2), E(7), E(8), C(3),
                         f"s_waitcnt vmcnt({2 + slow_n[0]})", E(9)]))
            TQ("expend")
            A(f"""
            v_mfma_f32_16x16x32_bf16 {v(LS,4)}, {v(ON1,4)}, {v(PX,4)}, 0
            {E(10)}
            v_mfma_f32_16x16x32_bf16 {v(OT,4)}, {v(VXF[0],4)}, {v(PX,4)}, 0
            {E(11)}
            {C(4)}
            v_mfma_f32_16x16x32_bf16 {v(OT1,4)}, {v(VXF[1],4)}, {v(PX,4)}, 0
            {C(5)}
            s_nop 1
            v_mfma_f32_16x16x32_bf16 {v(LS,4)}, {v(ON2,4)}, {v(PM,4)}, {v(LS,4)}
            v_mfma_f32_16x16x32_bf16 {v(OT,4)}, {v(VMT,4)}, {v(PM,4)}, {v(OT,4)}
            v_mfma_f32_16x16x32_bf16 {v(OT1,4)}, {v(VMT+2,4)}, {v(PX+2,4)}, {v(OT1,4)}
            v_mov_b32 {v(D0+44)}, 0
            v_mov_b32 {v(D0+45)}, 0
            v_mov_b32 {v(D0+46)}, 0
            """)
        else:
            for i in range(12):
                A(f"v_exp_f32 {v(SR[i])}, {v(SR[i])}")
                if i >= 2 and i % 2 == 0: A(f"v_cvt_pk_bf16_f32 {v(PX+i//2-1)}, {v(SR[i-2])}, {v(SR[i-1])}")
            OT, OT1, LS = D0 + 28, D0 + 32, D0 + 8
            TQ("expend")
            A(f"""
            s_waitcnt vmcnt({2 + slow_n[0]})
            v_cvt_pk_bf16_f32 {v(PX+5)}, {v(SR[10])}, {v(SR[11])}
            v_mfma_f32_16x16x32_bf16 {v(LS,4)}, {v(ON1,4)}, {v(PX,4)}, 0
            v_mfma_f32_16x16x32_bf16 {v(OT,4)}, {v(VXF[0],4)}, {v(PX,4)}, 0
            v_mfma_f32_16x16x32_bf16 {v(LS,4)}, {v(ON2,4)}, {v(PM,4)}, {v(LS,4)}
            v_mfma_f32_16x16x32_bf16 {v(OT,4)}, {v(VMT,4)}, {v(PM,4)}, {v(OT,4)}
            v_mfma_f32_16x16x32_bf16 {v(OT1,4)}, {v(VXF[1],4)}, {v(PX,4)}, 0
            v_mfma_f32_16x16x32_bf16 {v(OT1,4)}, {v(VMT+2,4)}, {v(PX+2,4)}, {v(OT1,4)}
            """)
        WAo = [D0 + 44, D0 + 48, D0 + 12, D0 + 16]
        WA8 = D0 + 20
        OF = [D0 + 0, D0 + 4, D0 + 36, D0 + 40]
        zl = [WAo[p] + i for p in (0, 1, 3) for i in range(4)]
        if PVO: zl = zl[3:]
        npre = 5 if MW == 1 else 0
        for r in zl[:npre]: A(f"v_mov_b32 {v(r)}, 0")
        A(f"v_rcp_f32 {v(M0_)}, {v(LS)}")
        A(f"v_mov_b32 {v(zl[npre])}, 0")
        if MW > 1: A(f"v_mov_b32 {v(zl[npre+1])}, 0"); npre += 1
        A(f"v_pk_mul_f32 {v(OT,2)}, {v(OT,2)}, {v(M0_,2)} op_sel_hi:[1,0]")
        A(f"v_pk_mul_f32 {v(OT+2,2)}, {v(OT+2,2)}, {v(M0_,2)} op_sel_hi:[1,0]")
        pk2(OT, OT)
        A(f"ds_write_b64 {v(vOW)}, {v(OT,2)}")
        A(f"v_pk_mul_f32 {v(OT1,2)}, {v(OT1,2)}, {v(M0_,2)} op_sel_hi:[1,0]")
        A(f"v_pk_mul_f32 {v(OT1+2,2)}, {v(OT1+2,2)}, {v(M0_,2)} op_sel_hi:[1,0]")
        pk2(OT1, OT1)
        A(f"ds_write_b64 {v(vOW)}, {v(OT1,2)} offset:256")
        for r in zl[npre+1:]: A(f"v_mov_b32 {v(r)}, 0")
        A(f"""
        s_add_u32 s{sT0}, s{sB1 if HOLD >= 1 else sPW}, {4*65536}
        s_add_u32 s{sT1}, s{sPW}, {65536}
        s_waitcnt lgkmcnt(0)
        """)
        TQ("smend")
        PH(4)
        A("s_barrier")
        if trace: TR(0); A("s_waitcnt lgkmcnt(0)")
        lg.clear()
        for ks in range(4):
            A(f"ds_read_b128 {v(OF[ks],4)}, {v(vAF)} offset:{L_O-HI+ks*512}"); lg.push(f"O{ks}")
        SEL = D0 + 36; RT = D0 + 40; RDd = D0 + 16; RBS = [[D0 + 28, D0 + 32, D0 + 52, D0 + 24], [D0 + 44, D0 + 48, D0 + 12, D0 + 20]]
        A(f"""
        s_add_u32 s{sT2}, s{sB1 if HOLD >= 3 else sPW}, {2*65536}
        s_add_u32 s{sT3}, s{sB1 if HOLD >= 2 else sPW}, {3*65536}
        s_add_u32 s{sSTEP}, s{sSTEP}, 1
        s_add_u32 s{sSEG}, s{sSEG}, {0 if fixseg else RECSZ}
        s_mov_b32 s{sSPIN}, {SPIN}
        """)
        TQ("wostart")
        PH(5)
        tagop = lambda r: (f"v_or_b32 {v(r)}, 1, {v(r)}" if par else f"v_and_b32 {v(r)}, -2, {v(r)}")
        def out_ops(a0, soff, half=False):
            ops = [f"v_cvt_pk_bf16_f32 {v(a0)}, {v(a0)}, {v(a0+1)}", f"v_cvt_pk_bf16_f32 {v(a0+1)}, {v(a0+2)}, {v(a0+3)}",
                   tagop(a0), tagop(a0 + 1)]
            st = f"buffer_store_dwordx2 {v(a0,2)}, {v(vPST)}, {srd(SRD_WS)}, s{soff} offen{sc}"
            if half: st = f"s_mov_b64 exec, s[{sLO32}:{sLO32+1}]\n{st}\ns_mov_b64 exec, -1"
            return ops + [st]
        mfl = [(p, ks) for p in range(4) for ks in range(4)] + [("d", ks) for ks in range(4)]
        groups = [(3 + 4 * p, out_ops(WAo[p], [sPW, sT1, sT2, sT3][p])) for p in range(4)] + [(19, out_ops(WA8, sT0, True))]
        ic = [0]; pos = {}
        def emit(s_):
            A(s_); ic[0] += len([x for x in s_.split("\n") if x.strip()])
        cur = []; gi = 0
        for n, (p, ks) in enumerate(mfl):
            if n < 4:
                n0 = len(A.lines); lg.wait(f"O{ks}"); ic[0] += len(A.lines) - n0
            if p == "d":
                emit(f"v_mfma_f32_16x16x32_bf16 {v(WA8,4)}, {v(OF[ks],4)}, {WO8(ks)}, {'0' if ks == 0 else v(WA8,4)}")
            else:
                emit(f"v_smfmac_f32_16x16x64_bf16 {v(WAo[p],4)}, {v(OF[ks],4)}, {WO(p,ks)}, {v(IDX)}")
            ic[0] += MW - 1
            pos[n] = ic[0]
            k = 0
            while k < 2:
                if not cur and gi < len(groups) and groups[gi][0] <= n and ic[0] - pos[groups[gi][0]] >= (9 if MW > 1 else 8):
                    cur = list(groups[gi][1]); gi += 1
                if not cur: break
                emit(cur.pop(0)); k += 1
        while cur or gi < len(groups):
            if not cur:
                need = 8 - (ic[0] - pos[groups[gi][0]])
                if need > 0: emit(f"s_nop {need-1}"); ic[0] += need - 1
                cur = list(groups[gi][1]); gi += 1
            emit(cur.pop(0))
        TQ("woend")
        PH(6)
        TR(1)
        if KXE:
            A(f"s_cmp_lt_u32 s{W}, 2\ns_cbranch_scc1 {LP('nkx')}"); kx_early(); A.label(LP('nkx'))
        A(f"s_cmp_eq_u32 s{sRED}, 0\ns_cbranch_scc1 {LP('nored')}")
        def rload(sidx):
            for i in range(4):
                A(f"buffer_load_dwordx4 {v(RBS[sidx][i],4)}, {v(vRED)}, {srd(SRD_WS)}, s{sPW} offen offset:{i*1024}{ld}")
        def rproc(sidx, br, y=0):
            for i in range(4):
                b = RBS[sidx][i]
                A(f"s_waitcnt vmcnt({(7 if RGAP else 3)-i+y})")
                mf(RDd, v(SEL, 4), v(b, 4), i == 0)
                o3 = (lambda d, x, y, z: f"v_bitop3_b32 {v(d)}, {v(x)}, {v(y)}, {v(z)} bitop3:0x80") if par else (lambda d, x, y, z: f"v_or3_b32 {v(d)}, {v(x)}, {v(y)}, {v(z)}")
                if i == 0:
                    A(o3(RT, b, b + 1, b + 2)); A(o3(RT, RT, b + 3, b + 3))
                else:
                    A(o3(RT, RT, b, b + 1)); A(o3(RT, RT, b + 2, b + 3))
            A(f"v_and_b32 {v(RT)}, 1, {v(RT)}\nv_cmp_ne_u32 vcc, {par}, {v(RT)}\n{br}")
        A(f"""
        s_mov_b32 s{sT0}, s{sRDLY}
    {LP('rdl')}:
        s_cmp_eq_u32 s{sT0}, 0
        s_cbranch_scc1 {LP('rgo')}
        s_sleep 1
        s_sub_u32 s{sT0}, s{sT0}, 1
        s_branch {LP('rdl')}
    {LP('rgo')}:
        """)
        TQ("rgo")
        rload(0)
        if HOLD:
            assert not RGAP
            if HOLD >= 3: A(f"s_add_u32 s{sT2}, s{sB2}, {2*65536}\nbuffer_store_dwordx2 {v(WAo[2],2)}, {v(vPST)}, {srd(SRD_WS)}, s{sT2} offen{sc}")
            if HOLD >= 2: A(f"s_add_u32 s{sT3}, s{sB2}, {3*65536}\nbuffer_store_dwordx2 {v(WAo[3],2)}, {v(vPST)}, {srd(SRD_WS)}, s{sT3} offen{sc}")
            A(f"s_add_u32 s{sT0}, s{sB2}, {4*65536}\ns_mov_b64 exec, s[{sLO32}:{sLO32+1}]\nbuffer_store_dwordx2 {v(WA8,2)}, {v(vPST)}, {srd(SRD_WS)}, s{sT0} offen{sc}\ns_mov_b64 exec, -1")
        zero_acc()
        for r in range(4): A(f"v_cndmask_b32 {v(SEL+r)}, 0, {v(SELV)}, s[{sSEL+2*r}:{sSEL+2*r+1}]")
        if RGAP:
            if RGAP > 0: A(f"s_sleep {RGAP}")
            rload(1)
        A.label(LP('rp0'))
        rproc(0, f"s_cbranch_vccnz {LP('rf0')}", HOLD)
        A.label(LP('rdone'))
        TQ("rdone")
        A(f"""
        {'s_sub_u32 s96, %d, s%d' % (SPIN, sSPIN) if cnt else 's_nop 0'}
        {'s_add_u32 s21, s21, s96' if cnt else 's_nop 0'}
        s_nop 0
        v_add_f32_dpp {v(RT)}, {v(RDd)}, {v(RDd)} row_ror:8 row_mask:0xf bank_mask:0xf
        v_add_f32_dpp {v(RT+1)}, {v(RDd+1)}, {v(RDd+1)} row_ror:8 row_mask:0xf bank_mask:0xf
        v_cvt_pk_bf16_f32 {v(RT)}, {v(RT)}, {v(RT+1)}
        v_min_u32 {v(TMP)}, -2, {v(RT)}
        buffer_store_dword {v(TMP)}, {v(vPUB)}, {srd(SRD_WS)}, s{sMW} offen{sc}
        """)
        if not RAL: A(f"buffer_store_dword {v(vSP)}, {v(vPUB)}, {srd(SRD_WS)}, s{sMA} offen{sc}")
        TQ("pub")
        PH(7)
        TR(2)
        if trace: A("s_waitcnt lgkmcnt(0)")
        A(f"s_branch {nxt_loop}")
        A.label(LP('nored'))
        if trace: A("s_waitcnt vmcnt(0)"); TR(2); A("s_waitcnt lgkmcnt(0)")
        zero_acc()
        if merged:
            A(f"""
            s_cmp_lg_u32 s{W}, 3
            s_cbranch_scc1 {LP('nkv')}
            v_mov_b32 {v(vSP)}, s{sSTEP}
            s_cmp_ge_u32 s{sKV}, 64
            s_cbranch_scc1 {LP('nkv')}
            s_waitcnt vmcnt({11 if KXE else 7})
            v_cmp_ne_u32 vcc, 4, {v(TMP)}
            s_ff1_i32_b64 s{sKV}, vcc
            s_cmp_lt_i32 s{sKV}, 0
            s_cselect_b32 s{sKV}, 64, s{sKV}
            s_cselect_b32 s{sKVO}, 0x40000000, s{sKVO}
            s_add_u32 s{sT0}, s{sSTEP}, {WARMD + 1}
            s_min_u32 s{sT0}, s{sT0}, 64
            """)
            kv_wait(sT0, LP('kv'))
            A.label(LP('nkv'))
        if tstep:
            A(f"s_cmp_lg_u32 s{W}, 2\ns_cbranch_scc1 {LP('nts')}\ns_memrealtime s[96:97]\ns_waitcnt lgkmcnt(0)\ns_mov_b32 m0, s{sSTEP}\nv_writelane_b32 {v(vSP)}, s96, m0\n{LP('nts')}:")
        if CDN: A(f"s_sleep {CDN}")
        A(f"s_branch {nxt_loop}x")
        A.label(LP('rf0'))
        rload(0); spin()
        if RGAP:
            rproc(1, f"s_cbranch_vccz {LP('rdone')}")
            rload(1); spin()
        if HOLD:
            rproc(0, f"s_cbranch_vccz {LP('rdone')}")
            A(f"s_branch {LP('rf0')}")
        else:
            A(f"s_branch {LP('rp0')}")
        if CGAP:
            A.label(LP('cf'))
            cload2(AS[0]); spin()
            cproc(AS[2], 2, f"s_cbranch_vccz {LP('cok')}")
            cload2(AS[2]); spin()
            A(f"s_branch {LP('cp')}")
            A(f"{LP('cok')}:\ns_waitcnt vmcnt(0)\ns_branch {LP('cdj')}")
        A.label(LP('slow'))
        A(f"s_sub_u32 s97, s{sMA}, {HI}\ns_waitcnt lgkmcnt(0)\ns_nop 7")
        zero_acc()
        for kp in range(9):
            lab = LP(f'sp{kp}_')
            for h in range(2):
                kk = 2 * kp + h
                if kk != 17:
                    A(f"ds_read_b128 {v(WR[h],4)}, {v(vWV)} offset:{kk*2048}\nds_read_b128 {v(WR[h]+4,4)}, {v(vWV)} offset:{kk*2048+1024}")
            A(f"""
{lab}:
            buffer_load_dwordx4 {v(AS[0],4)}, {v(vAF)}, {srd(SRD_WS)}, s97 offen sc1
            buffer_load_dwordx4 {v(AS[1],4)}, {v(vAF)}, {srd(SRD_WS)}, s97 offen offset:512 sc1
            """)
            spin()
            A(f"""
            s_waitcnt vmcnt(0) lgkmcnt(0)
            v_max3_u32 {v(TMP)}, {v(AS[0])}, {v(AS[0]+1)}, {v(AS[0]+2)}
            v_max3_u32 {v(TMP)}, {v(TMP)}, {v(AS[0]+3)}, {v(AS[1])}
            v_max3_u32 {v(TMP)}, {v(TMP)}, {v(AS[1]+1)}, {v(AS[1]+2)}
            v_max_u32 {v(TMP)}, {v(TMP)}, {v(AS[1]+3)}
            v_cmp_eq_u32 vcc, -1, {v(TMP)}
            s_cbranch_vccnz {lab}
            """)
            for h in range(2):
                kk = 2 * kp + h
                sm(AQ, v(AS[h], 4), WQ(kk)); sm(AK, v(AS[h], 4), WK(kk)); sm(AV, v(AS[h], 4), v(WR[h], 8) if kk != 17 else v(WVR, 8))
            A(f"s_add_u32 s97, s97, 1024")
        if prof: A(f"s_mov_b64 exec, {1 << 10}\nv_add_u32 v1, 63, v1\ns_mov_b64 exec, -1")
        if cnt: A("s_add_u32 s20, s20, 0x10000")
        import common
        if common.HST:
            A(f"v_mov_b32 {v(TMP)}, 1\ns_mov_b64 exec, 1\nbuffer_atomic_add {v(TMP)}, off, {srd(SRD_DBG)}, 32 sc1\ns_mov_b64 exec, -1\ns_waitcnt vmcnt(0)")
        A("s_nop 7")
        qk_write()
        for n in range(2, 6): A(f"ds_read_b128 {v(KXR[n],4)}, {v(vKX)} offset:{L_KX-HI+(n>>1)*2048+(n&1)*128}")
        A(f"s_waitcnt lgkmcnt(0)\ns_branch {LP('slowret')}")
    step_body(0, sc, ''); step_body(1, sc, '')
    if merged:
        step_body(0, ' sc1', 'S'); step_body(1, ' sc1', 'S')
    A.label(L('done'))
    A(f"""
    s_lshr_b32 s{sT2}, s{sSEG}, 1
    s_add_u32 s{sT1}, s{sT2}, {WS_VM - L_Q}
    s_add_u32 s{sT4}, s{sT2}, {WS_KM - L_Q}
    v_min_u32 {v(D0+12)}, -2, {v(D0+12)}
    v_min_u32 {v(D0+13)}, -2, {v(D0+13)}
    buffer_store_dwordx2 {v(D0+12,2)}, {v(vQW)}, {srd(SRD_WS)}, s{sT4} offen sc1
    v_cvt_pk_bf16_f32 {v(D0+14)}, {v(D0+8)}, {v(D0+9)}
    v_cvt_pk_bf16_f32 {v(D0+15)}, {v(D0+10)}, {v(D0+11)}
    v_min_u32 {v(D0+14)}, -2, {v(D0+14)}
    v_min_u32 {v(D0+15)}, -2, {v(D0+15)}
    buffer_store_dwordx2 {v(D0+14,2)}, {v(vQW)}, {srd(SRD_WS)}, s{sT1} offen sc1
    """)
    A("s_waitcnt vmcnt(0) lgkmcnt(0)")
    if merged:
        A(f"""
        s_barrier
        s_cmp_lg_u32 s{W}, 3
        s_cbranch_scc1 {L('nfin')}
        v_mov_b32 {v(TMP)}, 64
        v_mov_b32 {v(D0+52)}, s{sPRG}
        s_mov_b64 exec, 1
        buffer_store_dword {v(TMP)}, {v(D0+52)}, {srd(SRD_WS)}, 0 offen sc1
        s_mov_b64 exec, -1
        s_waitcnt vmcnt(0)
{L('nfin')}:
        """)
    if cnt:
        A(f"v_mov_b32 v1, s20\ns_mov_b64 exec, 2\nv_mov_b32 v1, s21\ns_mov_b64 exec, -1")
        A("s_memtime s[96:97]\ns_memrealtime s[100:101]\ns_waitcnt lgkmcnt(0)\ns_sub_u32 s96, s96, s99\ns_sub_u32 s100, s100, s98")
        A("s_mov_b64 exec, 4\nv_mov_b32 v1, s96\ns_mov_b64 exec, 8\nv_mov_b32 v1, s100\ns_mov_b64 exec, -1")
    if trace:
        for i in range(6): A(f"s_mov_b64 exec, {1 << i}\nv_mov_b32 v1, s{8+2*i}")
        A("s_mov_b64 exec, -1")
    if tq:
        for i in range(len(tq)): A(f"s_mov_b64 exec, {1 << i}\nv_mov_b32 v1, s{8+2*i}")
        A("s_mov_b64 exec, -1")
    if tstart:
        TS(7)
        A("s_mov_b32 s8, s100\ns_mov_b32 s10, s98")
        for i in range(8): A(f"s_mov_b64 exec, {1 << i}\nv_mov_b32 v1, s{8+2*i}")
        A("s_mov_b64 exec, -1")
    if tstep: A(f"v_mov_b32 v1, {v(vSP)}")
    if prof or cnt or trace or tq or tstep or tstart:
        A(f"""
        s_lshl_b32 s96, s{s_head}, 2
        s_add_u32 s96, s96, s{W}
        s_lshl_b32 s96, s96, 8
        s_add_u32 s96, s96, {WS_STAMP + 0x10000}
        v_lshrrev_b32 v28, 2, {v(vCON)}
        v_and_b32 v28, 255, v28
        buffer_store_dword v1, v28, {srd(SRD_WS)}, s96 offen
        s_waitcnt vmcnt(0)
        """)
    stamp(A, 10, s_id=s_head)
    hstamp(A, 14)
```

```python
from common import *
from mod_p import *
from mod_r9 import mod_R
from mod_r4 import SPIN
from mod_xo import *
from mod_f import *

NW = 224
EV_LDS = 16384
sWID, sHEAD, sGRP, sCB, sOG, sXN, sON, sPAR, sITEM, sCG, sTG, sKAP, sSP, sREC = range(76, 90)
sDUE, sIMM, sQT = 94, 95, 59

BC_LDS = 163836
def claim_issue(A, FX=0, JX=0):
    A(f"""
    s_getreg_b32 s59, hwreg(HW_REG_XCC_ID)
    s_and_b32 s59, s59, 15
    """)
    if FX:
        A("s_cmp_ge_u32 s2, 128\ns_cselect_b32 s60, 1, 0\ns_max_u32 s59, s59, s60")
    A(f"""
    s_bfe_u32 s60, s2, 0x50003
    s_xor_b32 s60, s60, {JX}
    s_lshl_b32 s58, s59, 5
    s_add_u32 s58, s58, s60
    v_mov_b32 v30, -1
    v_mov_b32 v31, 0
    s_cmp_lg_u32 s{S_WAVE}, 0
    s_cbranch_scc1 RA_iss
    s_cmp_ge_u32 s59, 8
    s_cbranch_scc1 RA_iss
    s_lshl_b32 s61, 1, s60
    s_mov_b32 s62, {claim_off(0)}
    """)
    for x in range(1, 8):
        A(f"s_cmp_eq_u32 s59, {x}\ns_cselect_b32 s62, {claim_off(x)}, s62")
    A(f"""
    v_mov_b32 v30, s61
    v_mov_b32 v31, s62
    s_mov_b64 exec, 1
    buffer_atomic_or v30, v31, {srd(SRD_DBG)}, 0 offen sc0 sc1
    s_mov_b64 exec, -1
RA_iss:
    """)

def claim_resolve(A, t, younger, abort):
    A(f"""
    s_cmp_lg_u32 s{S_WAVE}, 0
    s_cbranch_scc1 RA{t}_bc
    s_and_b32 s60, s58, 31
    s_waitcnt vmcnt({younger})
RA{t}_try:
    v_readfirstlane_b32 s61, v30
    s_bitcmp0_b32 s61, s60
    s_cbranch_scc1 RA{t}_got
    s_ff0_i32_b32 s60, s61
    s_cmp_lt_i32 s60, 0
    s_cbranch_scc1 RA{t}_ovf
    s_lshl_b32 s61, 1, s60
    v_mov_b32 v30, s61
    s_mov_b64 exec, 1
    buffer_atomic_or v30, v31, {srd(SRD_DBG)}, 0 offen sc0 sc1
    s_mov_b64 exec, -1
    s_waitcnt vmcnt(0)
    s_branch RA{t}_try
RA{t}_got:
    s_lshl_b32 s3, s59, 5
    s_add_u32 s3, s3, s60
    s_branch RA{t}_have
RA{t}_ovf:
    v_mov_b32 v28, 1
    v_mov_b32 v29, {DBG_OVF}
    s_mov_b64 exec, 1
    buffer_atomic_add v28, v29, {srd(SRD_DBG)}, 0 offen sc0 sc1
    s_mov_b64 exec, -1
    s_waitcnt vmcnt(0)
    v_readfirstlane_b32 s61, v28                 ; o
    v_lshlrev_b32 v29, 2, v1
    s_mov_b32 s63, {SPIN}
RA{t}_poll:
    buffer_load_dword v28, v29, {srd(SRD_DBG)}, 0 offen sc1
    s_sub_u32 s63, s63, 1
    s_cbranch_scc1 {abort}
    s_waitcnt vmcnt(0)
    v_readlane_b32 s62, v28, {DBG_OVF//4}
    """)
    for x in range(8):
        A(f"v_readlane_b32 s60, v28, {claim_off(x)//4}\ns_nop 1\nv_writelane_b32 v30, s60, {x}\ns_bcnt1_i32_b32 s60, s60\ns_add_u32 s62, s62, s60")
    A(f"""
    s_cmp_lt_u32 s62, 256
    s_cbranch_scc1 RA{t}_poll
    s_mov_b32 s3, 0
RA{t}_scan:
    s_lshr_b32 s60, s3, 5
    s_nop 3
    v_readlane_b32 s62, v30, s60
    s_and_b32 s60, s3, 31
    s_bitcmp1_b32 s62, s60
    s_cbranch_scc1 RA{t}_nx
    s_cmp_eq_u32 s61, 0
    s_cbranch_scc1 RA{t}_fnd
    s_sub_u32 s61, s61, 1
RA{t}_nx:
    s_add_u32 s3, s3, 1
    s_cmp_lt_u32 s3, 255
    s_cbranch_scc1 RA{t}_scan
RA{t}_fnd:
    s_cmp_ge_u32 s3, 32
    s_cbranch_scc1 RA{t}_have
    v_mov_b32 v28, 1
    v_mov_b32 v29, {DBG_OVH}
    s_mov_b64 exec, 1
    buffer_store_dword v28, v29, {srd(SRD_DBG)}, 0 offen sc1
    s_mov_b64 exec, -1
    s_waitcnt vmcnt(0)
RA{t}_have:
    v_mov_b32 v28, s3
    v_mov_b32 v29, {BC_LDS}
    ds_write_b32 v29, v28
    s_waitcnt lgkmcnt(0)
RA{t}_bc:
    s_barrier
    v_mov_b32 v29, {BC_LDS}
    ds_read_b32 v28, v29
    s_waitcnt lgkmcnt(0)
    v_readfirstlane_b32 s3, v28
    s_barrier
    """)

def wait_ge(A, srd_, off_expr_s, val, abort, vt=250, sleep=8):
    l = A.newlabel("WG")
    A(f"""
    s_mov_b32 s{sSP}, {SPIN}
    v_mov_b32 {v(vt)}, {off_expr_s}
{l}:
    buffer_load_dword {v(vt+1)}, {v(vt)}, {srd(srd_)}, 0 offen sc1
    s_sub_u32 s{sSP}, s{sSP}, 1
    s_cbranch_scc1 {abort}
    s_waitcnt vmcnt(0)
    v_cmp_le_u32 vcc, {val}, {v(vt+1)}
    s_cbranch_vccnz {l}_ok
    s_sleep {sleep}
    s_branch {l}
{l}_ok:
    """)

def signal_wg(A, off, vt=250):
    l = A.newlabel("SG")
    A(f"""
    s_waitcnt vmcnt(0)
    s_barrier
    s_cmp_lg_u32 s{S_WAVE}, 0
    s_cbranch_scc1 {l}
    v_mov_b32 {v(vt)}, {off}
    v_mov_b32 {v(vt+1)}, 1
    s_mov_b64 exec, 1
    buffer_atomic_add {v(vt+1)}, {v(vt)}, {srd(SRD_DBG)}, 0 offen sc1
    s_mov_b64 exec, -1
{l}:
    """)

def acc_t(A, dst):
    import common
    if not common.STAMPS: return
    A(f"s_memrealtime s[96:97]\ns_waitcnt lgkmcnt(0)\ns_sub_u32 s98, s96, s93\ns_add_u32 s{dst}, s{dst}, s98\ns_mov_b32 s93, s96")

def rec_t(A, r):
    import common
    if common.STAMPS: A(f"s_memrealtime s[{r}:{r+1}]\ns_waitcnt lgkmcnt(0)")

def k_merged(A, ropt, EVS=4, PREF=0, FX=0, WDLY=0, TSTEP=170, TMIN=30, QSPLIT=0, IMMD=1, NOEV=0, JX=0, FLAGKS=20, F0FIRST=0):
    AB = "M_abort"
    if ropt.get('tstart'): A("s_memrealtime s[100:101]")
    if PREF:
        A(f"""
        s_getpc_b64 s[60:61]
M_pc:
        v_lshlrev_b32 v254, 7, v0
        v_min_u32 v255, M_codeend - M_pc - 4, v254
        global_load_dword v253, v255, s[60:61]
        """)
        for k in range(1, PREF):
            A(f"""
            v_add_u32 v254, 32768, v254
            v_min_u32 v255, M_codeend - M_pc - 4, v254
            global_load_dword v253, v255, s[60:61]
            """)
    prologue(A, 256, "M_end")
    stamp(A, 13, s_id=2)
    hstamp(A, 11, neg=True)
    claim_issue(A, FX, JX)
    A("s_mov_b32 s57, 0\ns_cmp_eq_u32 s59, 0\ns_cbranch_scc1 M_head")
    claim_resolve(A, "a", 0, AB)
    A.label("M_dispatch")
    A("s_mov_b32 s58, s3\ns_mov_b32 s57, 1\ns_cmp_ge_u32 s58, 32\ns_cbranch_scc1 M_worker")
    A.label("M_head")
    def resolve():
        A("s_cmp_eq_u32 s57, 1\ns_cbranch_scc1 M_resolved")
        claim_resolve(A, "b", 36, AB)
        A("s_cmp_eq_u32 s3, s58\ns_cbranch_scc1 M_resolved\ns_waitcnt vmcnt(0)\ns_barrier\ns_branch M_dispatch")
        A.label("M_resolved")
    mod_R(A, 58, abort=AB, merged=True, hooks=dict(resolve=resolve), **ropt)
    A("s_branch M_end")
    A.label("M_worker")
    A(f"""
    s_sub_u32 s{sWID}, s58, 32
    s_lshr_b32 s60, s{sWID}, 3                      ; unit
    s_mul_hi_u32 s61, s60, {(2**32+6)//7}           ; octet
    s_mul_i32 s62, s61, 7
    s_sub_u32 s{sGRP}, s60, s62
    s_lshl_b32 s61, s61, 3
    s_and_b32 s62, s{sWID}, 7
    s_add_u32 s{sHEAD}, s61, s62
    s_mul_hi_u32 s{sOG}, s{sWID}, {(2**32+17)//18}
    s_mul_i32 s60, s{sOG}, 18
    s_sub_u32 s{sCB}, s{sWID}, s60
    s_and_b32 s60, s{sOG}, 11
    s_cmp_eq_u32 s60, 0
    s_cselect_b32 s60, 4, 0
    s_xor_b32 s{sOG}, s{sOG}, s60
    s_mul_hi_u32 s{sTG}, s{sWID}, {(2**32+4)//5}
    s_mul_i32 s60, s{sTG}, 5
    s_sub_u32 s{sCG}, s{sWID}, s60
    s_mul_i32 s{sKAP}, s{S_WAVE}, {NW}
    s_add_u32 s{sKAP}, s{sKAP}, s{sWID}
    """)
    stamp(A, 0, s_id=58)
    if F0FIRST:
        F0(A, sWID, NW)
        signal_wg(A, DBG_F0, vt=76)
    mod_P(A, sHEAD, sGRP, 7, preloop=lambda: wait_ge(A, SRD_DBG, DBG_RARM, 32, AB, vt=76), FLAGKS=FLAGKS)
    stamp(A, 4, s_id=58)
    def osetup():
        A(f"s_cmp_ge_u32 s{sOG}, 12\ns_cbranch_scc1 M_noos")
        O_setup(A, sCB, keep=True)
        A.label("M_noos")
        A("s_barrier")
        stamp(A, 6, s_id=58)
    if not F0FIRST:
        F0(A, sWID, NW)
        signal_wg(A, DBG_F0, vt=76)
        osetup()
    wait_ge(A, SRD_DBG, DBG_F0, NW, AB)
    A(f"s_cmp_ge_u32 s{sTG}, 44\ns_cbranch_scc1 M_nof1")
    FG(A, 1, sCG, sTG, 44)
    A.label("M_nof1")
    signal_wg(A, DBG_F1)
    stamp(A, 5, s_id=58)
    if F0FIRST: osetup()
    wait_ge(A, SRD_DBG, DBG_F1, NW, AB)
    A(f"s_cmp_gt_u32 s{sKAP}, 288\ns_cbranch_scc1 M_nof2")
    F2(A, sKAP)
    A.label("M_nof2")
    signal_wg(A, DBG_F2)
    stamp(A, 7, s_id=58)
    wait_ge(A, SRD_DBG, DBG_F2, NW, AB)
    A(f"s_cmp_ge_u32 s{sTG}, 44\ns_cbranch_scc1 M_nof3")
    FG(A, 3, sCG, sTG, 44)
    A.label("M_nof3")
    A("s_waitcnt vmcnt(0)\ns_barrier")
    stamp(A, 11, s_id=58)
    hstamp(A, 9)
    if NOEV == 1: A("s_branch M_end")
    X_setup(A)
    O_addr(A, sCB)
    A(f"""
    s_mov_b32 s{sXN}, s{sGRP}
    s_cmp_lt_u32 s{sOG}, 12
    s_cselect_b32 s{sON}, s{sOG}, 64
    {'s_mov_b32 s%d, 64' % sON if NOEV == 2 else ''}
    s_mov_b32 s{sPAR}, 0
    s_mov_b32 s{sQT}, 0
    s_mov_b32 s90, 0
    s_mov_b32 s91, 0
    s_mov_b32 s92, 0
    s_mov_b32 s93, 0
    """)
    acc_t(A, 92)
    A(f"""
    s_mov_b32 s92, 0
M_evx:
    s_cmp_ge_u32 s{sXN}, 64
    s_cbranch_scc1 M_ev
    s_lshl_b32 s{sITEM}, s{sXN}, 5
    s_add_u32 s{sITEM}, s{sITEM}, s{sHEAD}
    s_mov_b32 s{sREC}, s{sITEM}
    """)
    X_pre(A, sREC)
    A(f"s_memrealtime s[60:61]\ns_mov_b32 s{sIMM}, 0\ns_waitcnt lgkmcnt(0)\ns_mov_b32 s{sDUE}, s60")
    acc_t(A, 90)
    A(f"""
M_ev:
    s_min_u32 s60, s{sXN}, s{sON}
    s_cmp_ge_u32 s60, 64
    s_cbranch_scc1 M_fin
    s_cmp_lg_u32 s{S_WAVE}, 0
    s_cbranch_scc1 M_evb
    s_lshl_b32 s64, s{sHEAD}, 7
    s_add_u32 s64, s64, {FLAG_RP}
    s_min_u32 s65, s{sON}, 63
    s_lshl_b32 s65, s65, {5 + OXS_LOG}
    s_add_u32 s65, s65, {FLAG_OX}
    v_mov_b32 v250, s64
    v_and_b32 v251, 31, v1
    v_lshlrev_b32 v251, {OXS_LOG}, v251
    v_add_u32 v251, s65, v251
    s_mov_b32 s{sSP}, {SPIN}
M_evp:
    s_mov_b32 s62, 3
    s_sub_u32 s{sSP}, s{sSP}, 1
    s_cbranch_scc1 M_evd
    s_cmp_ge_u32 s{sXN}, 64
    s_cbranch_scc1 M_evo
    s_memrealtime s[60:61]
    s_waitcnt lgkmcnt(0)
    s_sub_u32 s61, s60, s{sDUE}
    s_cmp_lt_i32 s61, 0
    s_cbranch_scc1 M_evi
    buffer_load_dword v252, v250, {srd(SRD_WS)}, 0 offen sc1
    s_waitcnt vmcnt(0)
    v_readfirstlane_b32 s61, v252
    s_mov_b32 s62, 1
    s_cmp_gt_u32 s61, s{sXN}
    s_cbranch_scc1 M_evd
    s_cmp_eq_u32 s61, 63
    s_cbranch_scc1 M_evd
    s_sub_u32 s61, s{sXN}, s61
    s_cmp_ge_u32 s{sXN}, 62
    s_cselect_b32 s63, 2, {IMMD}
    s_cselect_b32 s64, 1, 0
    s_cmp_le_u32 s61, s63
    s_cselect_b32 s{sIMM}, 1, 0
    s_cselect_b32 s62, s64, s63
    s_min_u32 s62, s62, s61
    s_sub_u32 s61, s61, s62
    s_mul_i32 s61, s61, {TSTEP}
    s_max_u32 s61, s61, {TMIN}
    s_add_u32 s{sDUE}, s60, s61
M_evi:
    s_cmp_eq_u32 s{sIMM}, 1
    s_cbranch_scc1 M_evs
M_evo:
    s_cmp_ge_u32 s{sON}, 64
    s_cbranch_scc1 M_evs
    buffer_load_dword v253, v251, {srd(SRD_WS)}, 0 offen sc1
    s_mov_b32 s62, 2
    s_waitcnt vmcnt(0)
    v_cmp_eq_u32 vcc, 0, v253
    s_cbranch_vccz M_evd
M_evs:
    s_sleep {EVS}
    s_branch M_evp
M_evd:
    v_mov_b32 v252, s62
    v_mov_b32 v253, {EV_LDS}
    ds_write_b32 v253, v252
    s_waitcnt lgkmcnt(0)
M_evb:
    s_barrier
    v_mov_b32 v253, {EV_LDS}
    ds_read_b32 v252, v253
    s_waitcnt lgkmcnt(0)
    v_readfirstlane_b32 s62, v252
    s_barrier
    """)
    acc_t(A, 92)
    A(f"""
    s_cmp_eq_u32 s62, 3
    s_cbranch_scc1 {AB}
    s_cmp_eq_u32 s62, 2
    s_cbranch_scc1 M_evO
    """)
    rec_t(A, 66)
    X_post(A, sITEM, sREC)
    rec_t(A, 74)
    A(f"""
    s_lshl_b32 s60, s{sITEM}, {OXS_LOG}
    s_add_u32 s60, s60, {FLAG_OX}
    v_mov_b32 v251, 1
    s_waitcnt vmcnt(0)
    s_barrier
    s_cmp_lg_u32 s{S_WAVE}, 0
    s_cbranch_scc1 M_xf
    s_mov_b64 exec, 1
    buffer_store_dword v251, off, {srd(SRD_WS)}, s60 sc1
    s_mov_b64 exec, -1
M_xf:
    s_add_u32 s{sXN}, s{sXN}, 7
    """)
    rec_t(A, 68)
    acc_t(A, 90)
    A(f"""
    s_branch M_evx
M_evO:
    s_cmp_lt_u32 s{sON}, {62 if QSPLIT else 64}
    s_cbranch_scc1 M_evO2
    """)
    rec_t(A, 70)
    O_item(A, sON, sPAR, sQT)
    rec_t(A, 72)
    A(f"""
    s_branch M_evO3
M_evO2:
    """)
    rec_t(A, 70)
    O_item(A, sON, sPAR)
    rec_t(A, 72)
    A.label("M_evO3")
    acc_t(A, 91)
    A(f"""
    s_add_u32 s{sON}, s{sON}, 12
    s_cmp_lt_u32 s{sON}, 64
    s_cbranch_scc1 M_ev
    s_sub_u32 s60, s{sOG}, 4
    s_cmp_lt_u32 s60, {6 if QSPLIT else 0}
    s_cbranch_scc0 M_ev
    s_lshr_b32 s{sQT}, s60, 1
    s_add_u32 s{sQT}, s{sQT}, 1
    s_and_b32 s{sON}, s{sOG}, 1
    s_add_u32 s{sON}, s{sON}, 62
    s_mov_b32 s{sOG}, 99
    s_branch M_ev
M_fin:
    """)
    stamp(A, 12, s_id=58)
    hstamp(A, 15)
    import common
    if common.STAMPS:
        A(f"""
        s_lshl_b32 s98, s58, 8
        s_add_u32 s98, s98, {WS_STAMP + 160}
        v_mov_b32 v76, s90
        v_mov_b32 v77, s91
        v_mov_b32 v78, s92
        v_mov_b32 v79, 0
        s_mov_b64 exec, 1
        buffer_store_dwordx3 v[76:78], v79, {srd(SRD_WS)}, s98 offen
        v_mov_b32 v72, s66
        v_mov_b32 v73, s74
        v_mov_b32 v74, s68
        v_mov_b32 v75, s70
        v_mov_b32 v76, s72
        buffer_store_dwordx4 v[72:75], v79, {srd(SRD_WS)}, s98 offen offset:16
        buffer_store_dword v76, v79, {srd(SRD_WS)}, s98 offen offset:32
        s_mov_b64 exec, -1
        """)
    A("s_branch M_end")
    A(f"""
{AB}:
    s_mov_b64 exec, -1
    v_mov_b32 v3, 0xdead
    v_mov_b32 v4, {DBG_ABORT}
    buffer_store_dword v3, v4, {srd(SRD_DBG)}, 0 offen
    s_waitcnt vmcnt(0)
M_end:
    s_endpgm
M_codeend:""")
```

```python
from common import *
import math, struct, sys, os

WSTR = 36864
L_Q = 34816
L_K = 34816 + WSTR
L_O = 34816 + 2 * WSTR
L_MEMF = 145408
L_KX = 145408 + 9216
L_V = L_MEMF + 4096
HI = 98304
PSLOT = 72 * 4096
MSLOT = 9216
SPIN = 200000
CEXP = (128 ** -0.5) * math.log2(math.e)
def f32bits(x): return struct.unpack("<I", struct.pack("<f", x))[0]

def WQ(kk): return wreg(kk * 8, 8)
def WK(kk): return wreg(144 + kk * 8, 8)
def WO(p, ks): return wreg(288 + (p * 4 + ks) * 8, 8)
def WO8(ks): return wreg(288 + 128 + ks * 4, 4)

class LQ:
    def __init__(self, A, name): self.A, self.name, self.q = A, name, []
    def push(self, tag, n=1): self.q += [tag] * n; assert len(self.q) <= (15 if self.name == "lgkmcnt" else 63), self.q
    def wait(self, tag):
        if tag not in self.q: return
        idx = max(i for i, t in enumerate(self.q) if t == tag)
        self.A(f"s_waitcnt {self.name}({len(self.q) - 1 - idx})")
        del self.q[:idx + 1]
    def clear(self): self.q = []

def mod_R(A, s_head, sc="", pfx="R", abort="R_abort", last=63, prof=False, RD_=(0, 0, 0, 1, 2), CD=0, hooks=None, WARMD=2, cnt=False,
          CDN=0, fixseg=False, nokm=False, x_nowv=False, trace=False, RGAP=0, CGAP=0, ld=' sc1', tq=None, merged=False, wbar=False, worder='qk', wnt='', tstart=False, ARMAT=9, NVMIX=5, HELP=0, HAT=27, MW=3, HOLD=0, KXE=0, RAL=0, PVO=0, TAG1=0, X4H=0, QE=0, R1N=4, EL=26, eflag=True, EFAT=13, WAT=14, FAT=16, tstep=False, CDN3=0, nowarm=False, R2AT=1, R3AT=7, B2AT=6, B3AT=13):
    assert eflag and (R2AT < R3AT and R3AT + 1 <= B2AT if KXE else R3AT > B2AT and R2AT + 2 < B2AT)
    def TQ(tag):
        if tq and tag in tq: A(f"s_memtime s[{8+2*tq.index(tag)}:{9+2*tq.index(tag)}]")

    def TR(i):
        if trace: A(f"s_memrealtime s[{8+2*i}:{9+2*i}]")

    L = lambda n: f"{pfx}_{n}"
    def TS(i):
        r = 98 if i == 1 else 8 + 2 * i
        if tstart: A(f"s_memrealtime s[{r}:{r+1}]\ns_waitcnt lgkmcnt(0)")
    W = S_WAVE
    hooks = hooks or {}
    def PH(i):
        if not prof: return
        A(f"""
        s_waitcnt lgkmcnt(0)
        s_memtime s[96:97]
        s_waitcnt lgkmcnt(0)
        s_sub_u32 s99, s96, s98
        s_mov_b32 s98, s96
        s_mov_b64 exec, {1 << i}
        v_add_u32 v1, s99, v1
        s_mov_b64 exec, -1
        """)
    TMP = 0
    IDX, SELV, vPST, vRED, vPUB, vCON, vAF, vWV, vQW, vQR, vKX, vOW, vVX, vSP = range(2, 16)
    vC1 = 1
    assert not prof
    WVR = 16
    D0 = 24
    sSTEP, sPW, sPR, sMW, sMR, sMA, sRED, sSEG = 64, 65, 66, 67, 68, 69, 70, 71
    sLO32, sHI32, sEVEN, sN8 = 72, 74, 76, 78
    sB2 = 81
    sKVO = 3
    sWOF = 80
    sC = 82
    sRDLY, sWB, sB1 = 84, 85, 59
    sB3, sM3, sPRG = 66, 57, 4
    sRDLY2 = 96
    sPM = sEVEN
    sSEL = 86
    sT0, sT1, sT2, sSPIN, sT3, sT4 = 60, 61, 62, 63, 94, 95
    T0, T1, T2 = D0, D0 + 1, D0 + 2
    stamp(A, 8, s_id=s_head)
    hstamp(A, 12)
    def bits(dst, terms, add=None):
        first = True
        for (off, n, sh) in terms:
            A(f"v_bfe_u32 {v(T2)}, v1, {off}, {n}")
            if first:
                A(f"v_lshlrev_b32 {v(dst)}, {sh}, {v(T2)}"); first = False
            else:
                A(f"v_lshl_add_u32 {v(dst)}, {v(T2)}, {sh}, {v(dst)}")
        if add is not None:
            A(f"v_add_u32 {v(dst)}, {add}, {v(dst)}")
    vWA, vWB = D0 + 52, D0 + 53
    vTR = [D0 + 44, D0 + 45]
    vTO = [D0 + 46 + k for k in range(4)]
    vTD = [D0 + 28 + k for k in range(4)]
    X0, X1 = D0 + 8, D0 + 9
    sWL = 7
    VS = D0 + 12
    A(f"""
    s_lshl_b32 s{sT0}, s{s_head}, 8
    s_lshr_b32 s{sT1}, s{W}, 1
    s_lshl_b32 s{sT1}, s{sT1}, 7
    s_add_u32 s{sT0}, s{sT0}, s{sT1}
    s_and_b32 s{sT1}, s{W}, 1
    s_lshl_b32 s{sT1}, s{sT1}, 18
    s_add_u32 s{sT0}, s{sT0}, s{sT1}
    s_mul_i32 s{sWL}, s{W}, {WSTR}
    """)
    bits(vWA, [(3, 3, 13), (0, 3, 4)], f"s{sT0}")
    grp = lambda ch: [("o", (p, kb2)) for p in range(5) for kb2 in range(2)] if ch == 'o' else [(ch, kb) for kb in range(9)]
    if len(worder) == 2: worder = worder + 'o'
    if worder == 'mix3':
        a_, b_ = grp('k') + grp('q') + grp('v')[:NVMIX], grp('o')
        na = len(a_); chunks = []
        while a_ or b_:
            if len(b_) * na >= len(a_) * 10 and b_ and chunks: chunks.append(b_.pop(0))
            else: chunks.append(a_.pop(0))
        chunks += grp('v')[NVMIX:]
    elif worder in ('mix', 'mix2'):
        a_, b_ = grp('k') + grp('q'), grp('o')
        if worder == 'mix2': a_ = [x for pr in zip(grp('k'), grp('q')) for x in pr]
        chunks = []
        while a_ or b_:
            if len(b_) * 18 >= len(a_) * 10 and b_ and chunks: chunks.append(b_.pop(0))
            else: chunks.append(a_.pop(0))
        chunks += [("v", kb) for kb in range(9)]
    else:
        chunks = grp(worder[0]) + grp(worder[1]) + grp(worder[2]) + [("v", kb) for kb in range(9)]
    A(f"""
    v_lshrrev_b32 {v(X0)}, 4, v1
    s_lshl_b32 s{sT0}, s{W}, 4
    v_add_u32 {v(X0)}, s{sT0}, {v(X0)}
    v_mul_u32_u24 {v(X0)}, 1152, {v(X0)}
    s_mul_i32 s{sT0}, s{s_head}, 147456
    v_add_u32 {v(X0)}, s{sT0}, {v(X0)}
    """)
    bits(vWB, [(0, 4, 4)], v(X0))
    NCH = len(chunks)
    vpos = {ix: c for c, (k_, ix) in enumerate(chunks) if k_ == 'v'}
    slot_map = {}; issue_after = {}
    nextpos = dict(vpos); prev_in_slot = {}
    for c in range(NCH - 1, -1, -1):
        k_, ix = chunks[c]
        if k_ == 'v': slot_map[c] = ix; continue
        sl = max((x for x in range(9) if nextpos[x] > c), key=lambda x: nextpos[x])
        slot_map[c] = sl; prev_in_slot[nextpos[sl]] = c; nextpos[sl] = c
    run = -1
    for c in range(NCH):
        run = max(run, prev_in_slot.get(c, -1))
        issue_after[c] = run
        assert run < c
    slot_of = lambda c: slot_map[c]
    vq = LQ(A, "vmcnt")
    LASTI = issue_after[NCH - 1]
    def wdma(c):
        kind, ix = chunks[c]; sl = slot_of(c)
        vq.push(f"C{c}", 4)
        for n in range(4):
            A(f"s_add_u32 m0, s{sWL}, {sl*4096 + n*1024}")
            if kind == "o":
                p, kb2 = ix
                A(f"s_mov_b32 s{sT1}, {(kb2*64 + n*4)*1152 + p*256}")
                A(f"buffer_load_dwordx4 {v(vWB)}, {srd(SRD_WO)}, s{sT1} offen{wnt} lds")
            else:
                A(f"s_mov_b32 s{sT1}, {ix*524288 + n*65536}")
                A(f"buffer_load_dwordx4 {v(vWA)}, {srd({'q': SRD_WQ, 'k': SRD_WK, 'v': SRD_WV}[kind])}, s{sT1} offen{wnt} lds")
    for c in range(NCH):
        if issue_after[c] == -1: wdma(c)
    TS(1)
    if 'resolve' in hooks: hooks['resolve']()
    TS(2)
    A.c("R setup")
    A(f"""
    s_mov_b32 s{sLO32}, -1
    s_mov_b32 s{sLO32+1}, 0
    s_mov_b32 s{sHI32}, 0
    s_mov_b32 s{sHI32+1}, -1
    s_mov_b32 s{sEVEN}, 0x0f0f0f0f
    s_mov_b32 s{sEVEN+1}, 0x0f0f0f0f
    s_mov_b32 s{sN8}, 0xff00ff00
    s_mov_b32 s{sN8+1}, 0xff00ff00
    s_mov_b32 s{sC}, {f32bits(CEXP)}
    s_mov_b32 s{sC+1}, {f32bits(CEXP)}
    s_lshl_b32 s{sWB}, s{W}, 10
    s_lshl_b32 s{sPRG}, s{s_head}, 7
    s_add_u32 s{sPRG}, s{sPRG}, {FLAG_RP}
    """)
    assert R1N == 4
    A(f"s_sub_u32 s{sB3}, 8192, s{sWB}\ns_mov_b32 s{sM3}, {L_MEMF + 8192}")
    A(f"s_mov_b32 s{sB1}, {WS_PART}\ns_mov_b32 s{sB2}, 0x40000000\ns_cmp_eq_u32 s{W}, 0\ns_cselect_b32 s{sT0}, s{sB2}, s{sB1}\ns_cselect_b32 s{sB2}, s{sB1}, s{sB2}\ns_mov_b32 s{sB1}, s{sT0}")
    for r in range(4):
        m16 = sum(1 << i for i in range(16) if 2 * (i & 1) + (i >> 3) == r)
        m = m16 | (m16 << 16)
        A(f"s_mov_b32 s{sSEL+2*r}, {m}\ns_mov_b32 s{sSEL+2*r+1}, {m}")
    A(f"""
    v_mov_b32 {v(IDX)}, 0x44444444
    v_mov_b32 {v(T0)}, 0xeeeeeeee
    v_cndmask_b32 {v(IDX)}, {v(IDX)}, {v(T0)}, s[{sN8}:{sN8+1}]
    v_mov_b32 {v(SELV)}, 0x3f800000
    v_mov_b32 {v(T0)}, 0x3f80
    v_cndmask_b32 {v(SELV)}, {v(SELV)}, {v(T0)}, s[{sEVEN}:{sEVEN+1}]
    s_mov_b32 s{sPM}, -1
    s_mov_b32 s{sPM+1}, -1
    v_lshlrev_b32 {v(T0)}, 4, v1
    s_add_u32 s{sT0}, s{sWB}, {HI}
    v_add_u32 {v(vCON)}, s{sT0}, {v(T0)}
    s_mul_i32 s{sT0}, s{W}, {WSTR}
    v_add_u32 {v(vWV)}, s{sT0}, {v(T0)}
    s_lshl_b32 s{sT0}, s{W}, 5
    s_add_u32 s{sT0}, s{sT0}, s{s_head}           ; unit
    s_lshl_b32 s{sT1}, s{sT0}, 12
    s_cmp_lt_u32 s{sT0}, 72
    s_cselect_b32 s{sRED}, 1, 0
    s_cselect_b32 s{sT1}, s{sT1}, 0x40000000
    v_add_u32 {v(vRED)}, s{sT1}, {v(T0)}
    s_lshr_b32 s{sT1}, s{sT0}, 1
    s_lshl_b32 s{sT4}, s{sT1}, 5
    s_lshl_b32 s{sT1}, s{sT1}, 8
    s_and_b32 s{sT2}, s{sT0}, 1
    s_mul_i32 s{sT3}, s{sT2}, {4*1152}
    s_add_u32 s{sT4}, s{sT4}, s{sT3}
    s_lshl_b32 s{sT2}, s{sT2}, 6
    s_add_u32 s{sT1}, s{sT1}, s{sT2}
    s_lshr_b32 s{sT2}, s{sT0}, 4
    s_mov_b32 s{sRDLY}, {RD_[0]}
    """)
    for o in range(1, 5):
        A(f"s_cmp_eq_u32 s{sT2}, {o}\ns_cselect_b32 s{sRDLY}, {RD_[o]}, s{sRDLY}")
    bits(vPUB, [(2, 1, 7), (4, 2, 4), (0, 2, 2)], f"s{sT1}")
    A(f"s_lshl_b32 s{sT1}, s{W}, 1\ns_xor_b32 s{sT2}, s{s_head}, s{sT1}\ns_lshl_b32 s{sT2}, s{sT2}, 7\ns_lshl_b32 s{sT1}, s{W}, 13")
    bits(vPST, [(5, 1, 10), (4, 1, 7)])
    A(f"v_xor_b32 {v(T1)}, s{sT2}, {v(vPST)}\nv_add_u32 {v(T1)}, s{sT1}, {v(T1)}")
    if X4H:
        A(f"s_lshl_b32 s{sT1}, s{W}, 2\ns_xor_b32 s{sT2}, s{s_head}, s{sT1}\ns_lshl_b32 s{sT2}, s{sT2}, 7\ns_lshl_b32 s{sT1}, s{W}, 14")
        bits(vPST, [(4, 1, 8), (3, 1, 7)])
        A(f"v_xor_b32 {v(T1)}, s{sT2}, {v(vPST)}\nv_add_u32 {v(T1)}, s{sT1}, {v(T1)}")
        bits(vPST, [(5, 1, 16), (4, 1, 13), (3, 1, 12), (0, 3, 4)], v(T1))
        A(f"s_cmp_eq_u32 s{W}, 2\ns_cbranch_scc0 {L('x4h')}\ns_lshl_b32 s{sT1}, s{s_head}, 12\nv_add_u32 {v(vRED)}, s{sT1}, {v(vRED)}\n{L('x4h')}:")
    else:
        bits(vPST, [(5, 1, 15), (4, 1, 12), (0, 4, 3)], v(T1))
    A(f"s_lshl_b32 s{sT1}, s{W}, 9\ns_add_u32 s{sT2}, s{sT1}, {L_Q}")
    bits(vQW, [(5, 1, 8), (0, 4, 4), (4, 1, 3)], f"s{sT2}")
    bits(vQR, [(5, 1, 8), (4, 1, 6), (2, 2, 4), (0, 1, 3)], L_Q)
    bits(vKX, [(4, 2, 9), (3, 1, 8), (0, 3, 4)], HI)
    bits(vAF, [(4, 2, 7), (0, 3, 4)], HI)
    A(f"s_add_u32 s{sT2}, s{sT1}, {L_O}")
    bits(vOW, [(5, 1, 7), (0, 3, 4), (4, 1, 3)], f"s{sT2}")
    A(f"s_lshl_b32 s{sT1}, s{W}, 11")
    bits(vVX, [(4, 2, 9), (0, 4, 4)], f"s{sT1}")
    ARM = D0 + 4
    X0, X1 = D0 + 8, D0 + 9
    for i in range(4): A(f"v_mov_b32 {v(ARM+i)}, -1")
    A(f"s_cmp_eq_u32 s{sRED}, 0\ns_cbranch_scc1 {L('noarm')}")
    bits(X1, [(4, 2, 0)])
    A(f"v_mul_u32_u24 {v(X1)}, 1152, {v(X1)}")
    bits(X0, [(0, 3, 2)], v(X1))
    A(f"buffer_load_dword {v(vSP)}, {v(X0)}, {srd(SRD_M0)}, s{sT4} offen")
    A(f"s_mov_b32 s{sT0}, {WS_PART}")
    for i in range(4):
        A(f"buffer_store_dwordx4 {v(ARM,4)}, {v(vRED)}, {srd(SRD_WS)}, s{sT0} offen offset:{i*1024} sc1")
    A(f"s_mov_b64 exec, s[{sEVEN}:{sEVEN+1}]")
    for sl in range(3):
        A(f"s_mov_b32 s{sT0}, {WS_MEMB + sl*MSLOT}")
        A(f"buffer_store_dword {v(ARM)}, {v(vPUB)}, {srd(SRD_WS)}, s{sT0} offen sc1")
    A("s_mov_b64 exec, -1")
    A.label(L('noarm'))
    if merged:
        A(f"""
        s_cmp_lg_u32 s{W}, 3
        s_cbranch_scc1 {L('nz')}
        v_lshlrev_b32 {v(X0)}, 2, v1
        v_mov_b32 {v(X1)}, 0
        s_lshl_b32 s{sT0}, s{s_head}, 8
        s_add_u32 s{sT0}, s{sT0}, {FLAG_KV}
        buffer_store_dword {v(X1)}, {v(X0)}, {srd(SRD_WS)}, s{sT0} offen sc1
        v_lshlrev_b32 {v(X0)}, {5 + OXS_LOG}, v1
        s_lshl_b32 s{sT0}, s{s_head}, {OXS_LOG}
        s_add_u32 s{sT0}, s{sT0}, {FLAG_OX}
        buffer_store_dword {v(X1)}, {v(X0)}, {srd(SRD_WS)}, s{sT0} offen sc1
        v_mov_b32 {v(X0)}, s{sPRG}
        buffer_store_dword {v(X1)}, {v(X0)}, {srd(SRD_WS)}, 0 offen sc1
{L('nz')}:
        """)
    A(f"""
    s_and_b32 s{sT0}, s{W}, 2
    s_mul_i32 s{sT0}, s{sT0}, {WSTR}
    s_and_b32 s{sT1}, s{W}, 1
    s_lshl_b32 s{sT1}, s{sT1}, 6
    s_add_u32 s{sT0}, s{sT0}, s{sT1}
    s_lshl_b32 s{sT1}, s{W}, 5
    """)
    bits(vTR[0], [(4, 2, 9), (2, 1, 7), (3, 1, 5), (0, 2, 3)], f"s{sT0}")
    A(f"v_add_u32 {v(vTR[1])}, {WSTR}, {v(vTR[0])}")
    bits(vTO[0], [(4, 2, 10), (2, 1, 8), (3, 1, 7), (0, 2, 3)], f"s{sT1}")
    bits(vTD[0], [(4, 1, 11), (2, 2, 8), (0, 2, 3)], f"s{sT1}")
    A(f"v_bfe_u32 {v(T2)}, v1, 5, 1\nv_mul_u32_u24 {v(T2)}, {WSTR}, {v(T2)}\nv_add_u32 {v(vTD[0])}, {v(vTD[0])}, {v(T2)}")
    for k in range(1, 4): A(f"v_add_u32 {v(vTO[k])}, {k*WSTR}, {v(vTO[0])}")
    A(f"v_add_u32 {v(vTD[1])}, {2*WSTR}, {v(vTD[0])}")
    def trread(dst_fn, h, sl):
        for t, ro in enumerate((0, 2, 16, 18)):
            A(f"ds_read_b64_tr_b16 {dst_fn(t)}, {v(vTR[h])} offset:{sl*4096 + ro*128}")
    def trread_o(dst_fn, h, sl):
        for t, (k, ro) in enumerate(((0, 0), (0, 2), (1, 0), (1, 2))):
            A(f"ds_read_b64_tr_b16 {dst_fn(t)}, {v(vTO[2*h+k])} offset:{sl*4096 + ro*256}")
    sub = lambda base, t: wreg(base + 2 * t, 2)
    print('weight seq', ''.join(k for k, _ in chunks), 'slots', [slot_map[c] for c in range(NCH)], 'after', [issue_after[c] for c in range(NCH)], file=sys.stderr) if 'WSEQ' in os.environ else None
    assert issue_after[ARMAT] >= 0 and all(chunks[c][0] != 'o' for c in range(LASTI + 1, NCH))
    sKV, sMODE, sEARLY, sWARMED = 5, 6, 3, 7
    def warm0():
        A(f"v_lshlrev_b32 {v(X0)}, 7, v1\ns_lshl_b32 s{sT0}, s{s_head}, 13")
        for sg in range(WARMD):
            A(f"s_add_u32 s{sT1}, s{sT0}, {WS_KX + sg*RECSZ}\nbuffer_load_dword {v(X1)}, {v(X0)}, {srd(SRD_WS)}, s{sT1} offen sc1")
            A(f"s_add_u32 s{sT1}, s{sT0}, {WS_VX + sg*RECSZ}\nbuffer_load_dword {v(X1)}, {v(X0)}, {srd(SRD_WS)}, s{sT1} offen sc1")
    for c in range(NCH):
        kind, ix = chunks[c]; sl = slot_of(c)
        vq.wait(f"C{c}")
        A("s_waitcnt lgkmcnt(0)\ns_barrier")
        if kind in "qk":
            base = 0 if kind == "q" else 144
            for h in range(2): trread(lambda t: sub(base + (2 * ix + h) * 8, t), h, sl)
        elif kind == "o":
            p, kb2 = ix
            for h in range(2):
                if p < 4: trread_o(lambda t: sub(288 + (p * 4 + 2 * kb2 + h) * 8, t), h, sl)
                else:
                    for t in range(2):
                        A(f"ds_read_b64_tr_b16 {wreg(288 + 128 + (2*kb2+h)*4 + 2*t, 2)}, {v(vTD[h])} offset:{sl*4096 + 4*t*256}")
        else:
            trread(lambda t: v(VS + 2 * t, 2), 0, sl)
            if ix < 8: trread(lambda t: v(VS + 8 + 2 * t, 2), 1, sl)
            else: trread(lambda t: v(WVR + 2 * t, 2), 1, sl)
        A("s_waitcnt lgkmcnt(0)\ns_barrier")
        if kind == "v":
            for q in range(4 if ix < 8 else 2):
                A(f"ds_write_b128 {v(vWV)}, {v(VS+4*q,4)} offset:{ix*4096 + q*1024}")
        if c == 0: TS(3)
        if c == 9: TS(4)
        if c == NCH - 1: TS(5)
        if c == ARMAT:
            A(f"""
            s_cmp_lg_u32 s{W}, 0
            s_cbranch_scc1 {L('armed')}
            v_mov_b32 {v(T0)}, 1
            v_mov_b32 {v(T1)}, {DBG_RARM}
            s_mov_b64 exec, 1
            buffer_atomic_add {v(T0)}, {v(T1)}, {srd(SRD_DBG)}, 0 offen sc1
            s_mov_b64 exec, -1
{L('armed')}:
            s_cmp_eq_u32 s{sRED}, 0
            s_cbranch_scc1 {L('nom0')}
            v_min_u32 {v(vSP)}, -2, {v(vSP)}
            s_mov_b32 s{sT0}, {WS_MEMB}
            s_mov_b64 exec, s[{sEVEN}:{sEVEN+1}]
            buffer_store_dword {v(vSP)}, {v(vPUB)}, {srd(SRD_WS)}, s{sT0} offen sc1
            s_mov_b64 exec, -1
            s_nop 0
            v_mov_b32 {v(vSP)}, -1
{L('nom0')}:
            """)
        for c2 in range(NCH):
            if issue_after[c2] == c: wdma(c2)
        if c == LASTI - 1:
            vq.push('E', 2)
            A(f"""
            v_lshlrev_b32 {v(X1)}, 2, v1
            s_lshl_b32 s{sT1}, s{s_head}, 8
            s_add_u32 s{sT1}, s{sT1}, {FLAG_KV}
            buffer_load_dword {v(D0+50)}, {v(X1)}, {srd(SRD_DBG)}, 0 offen sc1
            buffer_load_dword {v(D0+51)}, {v(X1)}, {srd(SRD_WS)}, s{sT1} offen sc1
            """)
        if c == NCH - 1:
            A(f"""
            v_readlane_b32 s{sEARLY}, {v(D0+50)}, {DBG_RARM//4}
            v_readlane_b32 s{sT1}, {v(D0+50)}, {DBG_OVH//4}
            v_cmp_ne_u32 vcc, 4, {v(D0+51)}
            s_cmp_eq_u32 s{sT1}, 0
            s_cselect_b32 s{sMODE}, 0, 1
            s_ff1_i32_b64 s{sKV}, vcc
            s_cmp_lt_i32 s{sKV}, 0
            s_cselect_b32 s{sKV}, 64, s{sKV}
            s_mov_b32 s{sWARMED}, 0
            """)
            if merged:
                A(f"""
                s_cmp_lg_u32 s{W}, 3
                s_cbranch_scc1 {L('nwe')}
                s_cmp_lt_u32 s{sKV}, {WARMD + 1}
                s_cbranch_scc1 {L('nwe')}
                """)
                warm0()
                A(f"s_mov_b32 s{sWARMED}, 1\n{L('nwe')}:")
        if c == LASTI:
            vq.push('P', 7)
            A(f"s_mov_b32 s{sT0}, {WS_PART}")
            for i in range(4):
                A(f"buffer_load_dwordx4 {v(D0+28+4*i,4)}, {v(vRED)}, {srd(SRD_WS)}, s{sT0} offen offset:{i*1024} sc1")
            for sl in range(3):
                A(f"s_mov_b32 s{sT0}, {WS_MEMB + sl*MSLOT}")
                A(f"buffer_load_dword {v(D0+46)}, {v(vPUB)}, {srd(SRD_WS)}, s{sT0} offen sc1")
    stamp(A, 9, s_id=s_head)
    hstamp(A, 13)
    AQ, AK, AV = D0, D0 + 4, D0 + 8
    AS = [D0 + 12 + 4 * i for i in range(4)]
    WR = [D0 + 28, D0 + 36, D0 + 44]
    korder = list(range(18))
    wvl = [kk for kk in korder if kk != 17]
    lg = LQ(A, "lgkmcnt")
    def wvread(f):
        if x_nowv: return
        o = wvl[f] * 2048; d = WR[f % 3]
        A(f"ds_read_b128 {v(d,4)}, {v(vWV)} offset:{o}")
        A(f"ds_read_b128 {v(d+4,4)}, {v(vWV)} offset:{o+1024}")
        lg.push(f"W{f}", 2)
    def kx_early():
        A(f"""
        s_sub_u32 s{sT0}, s{sWB}, 2048
        s_lshl_b32 s{sT0}, s{sT0}, 1
        s_add_u32 m0, s{sT0}, {L_KX}
        s_add_u32 s{sT1}, s{sSEG}, {WS_KX - HI}
        buffer_load_dwordx4 {v(vC1)}, {srd(SRD_WS)}, s{sT1} offen sc1 lds
        buffer_load_dwordx4 {v(vC1)}, {srd(SRD_WS)}, s{sT1} offen offset:1024 sc1 lds
        s_add_u32 m0, s{sT0}, {L_KX + 4096}
        s_add_u32 s{sT1}, s{sT1}, 4096
        buffer_load_dwordx4 {v(vC1)}, {srd(SRD_WS)}, s{sT1} offen sc1 lds
        buffer_load_dwordx4 {v(vC1)}, {srd(SRD_WS)}, s{sT1} offen offset:1024 sc1 lds
        """)
    def zero_acc():
        for i in range(12): A(f"v_mov_b32 {v(AQ+i)}, 0")
    def kv_wait(s_need, lab):
        A(f"""
        s_cmp_ge_u32 s{sKV}, s{s_need}
        s_cbranch_scc1 {lab}_ok
        s_waitcnt vmcnt(0)
        s_lshl_b32 s{sT1}, s{s_head}, 8
        s_add_u32 s{sT1}, s{sT1}, {FLAG_KV}
        v_lshrrev_b32 {v(TMP)}, 2, {v(vCON)}
        v_and_b32 {v(TMP)}, 255, {v(TMP)}
{lab}_p:
        buffer_load_dword {v(D0+40)}, {v(TMP)}, {srd(SRD_WS)}, s{sT1} offen sc1
        s_sub_u32 s{sSPIN}, s{sSPIN}, 1
        s_cbranch_scc1 {abort}
        s_waitcnt vmcnt(0)
        v_cmp_ne_u32 vcc, 4, {v(D0+40)}
        s_ff1_i32_b64 s{sKV}, vcc
        s_cmp_lt_i32 s{sKV}, 0
        s_cselect_b32 s{sKV}, 64, s{sKV}
        s_cmp_ge_u32 s{sKV}, s{s_need}
        s_cbranch_scc1 {lab}_ok
        s_sleep 4
        s_branch {lab}_p
{lab}_ok:
        """)
    A(f"""
    s_mov_b32 s{sSPIN}, {SPIN}
    v_lshlrev_b32 {v(T1)}, 2, v1
    s_cmp_ge_u32 s{sEARLY}, 32
    s_cbranch_scc1 {L('warmok')}
    s_mov_b32 s{sKV}, 0
    s_mov_b32 s{sWARMED}, 0
{L('warm')}:
    buffer_load_dword {v(T0)}, {v(T1)}, {srd(SRD_DBG)}, 0 offen sc1
    s_sub_u32 s{sSPIN}, s{sSPIN}, 1
    s_cbranch_scc1 {abort}
    s_waitcnt vmcnt(0)
    v_readlane_b32 s{sT0}, {v(T0)}, {DBG_RARM//4}
    v_readlane_b32 s{sT1}, {v(T0)}, {DBG_OVH//4}
    s_cmp_lt_u32 s{sT0}, 32
    s_cbranch_scc1 {L('warm')}
    s_cmp_eq_u32 s{sT1}, 0
    s_cselect_b32 s{sMODE}, 0, 1
{L('warmok')}:
    """)
    if merged:
        A(f"""
        s_cmp_lg_u32 s{W}, 3
        s_cbranch_scc1 {L('nkvi')}
        s_cmp_eq_u32 s{sWARMED}, 1
        s_cbranch_scc1 {L('nkvi')}
        s_waitcnt vmcnt(0)
        s_mov_b32 s{sT0}, {WARMD + 1}
        """)
        kv_wait(sT0, L('kvi'))
        warm0()
        A(f"{L('nkvi')}:")
    A(f"""
    s_mov_b32 s{sSTEP}, 0
    s_mov_b32 s{sPW}, {WS_PART}
    s_mov_b32 s{sMA}, {WS_MEMB + 2*MSLOT}
    s_mov_b32 s{sMW}, {WS_MEMB}
    s_mov_b32 s{sMR}, {WS_MEMB + MSLOT}
    s_lshl_b32 s{sSEG}, s{s_head}, 13
    s_mov_b32 s{sWOF}, 0x40000000
    s_cmp_lg_u32 s{W}, 3
    s_cselect_b32 s{sPRG}, s{sWOF}, s{sPRG}
    s_mov_b32 s{sKVO}, s{sWOF}
    s_cbranch_scc1 {L('nw3i')}
    s_lshl_b32 s{sKVO}, s{s_head}, 8
    s_add_u32 s{sKVO}, s{sKVO}, {FLAG_KV}
    v_lshlrev_b32 {v(vPUB)}, 2, v1
    s_mov_b32 s{sWOF}, {WS_KX + WARMD*RECSZ}
    v_lshlrev_b32 {v(vRED)}, 7, v1
    v_mov_b32 {v(vSP)}, 0
{L('nw3i')}:
    s_cmp_eq_u32 s{W}, 3
    s_movk_i32 s{sT0}, 2048
    s_cselect_b32 s{sT0}, 1024, s{sT0}
    v_subrev_u32 v1, s{sT0}, {v(vCON)}
    s_waitcnt vmcnt(0) lgkmcnt(0)
    s_barrier
    """)
    zero_acc()
    if KXE:
        A(f"s_cmp_lt_u32 s{W}, 2\ns_cbranch_scc1 {L('nkxi')}"); kx_early(); A.label(L('nkxi'))
    if prof: A("v_mov_b32 v1, 0\ns_memtime s[98:99]\ns_waitcnt lgkmcnt(0)")
    TS(6)
    if merged: A(f"s_cmp_eq_u32 s{sMODE}, 1\ns_cbranch_scc1 {L('loopS0')}x")
    if cnt: A("s_mov_b32 s20, 0\ns_mov_b32 s21, 0\ns_memtime s[96:97]\ns_memrealtime s[98:99]\ns_waitcnt lgkmcnt(0)\ns_mov_b32 s99, s96")
    RL = D0 + 52
    def sm(acc, a_, b): A(f"v_smfmac_f32_16x16x64_bf16 {v(acc,4)}, {a_}, {b}, {v(IDX)}")
    def mf(d, a_, b_, first):
        A(f"v_mfma_f32_16x16x32_bf16 {v(d,4)}, {a_}, {b_}, {'0' if first else v(d,4)}")
    def chk(r, br):
        A(f"""
        v_max3_u32 {v(TMP)}, {v(r)}, {v(r+1)}, {v(r+2)}
        v_max_u32 {v(TMP)}, {v(TMP)}, {v(r+3)}
        v_cmp_eq_u32 vcc, -1, {v(TMP)}
        {br}
        """)
    def spin(): A(f"s_sub_u32 s{sSPIN}, s{sSPIN}, 1\ns_cbranch_scc1 {abort}")
    def cload(r, so): A(f"buffer_load_dwordx4 {v(r,4)}, {v(vC1)}, {srd(SRD_WS)}, s{so} offen{ld}")
    def pk2(d, s_):
        A(f"v_cvt_pk_bf16_f32 {v(d)}, {v(s_)}, {v(s_+1)}")
        A(f"v_cvt_pk_bf16_f32 {v(d+1)}, {v(s_+2)}, {v(s_+3)}")
    def step_body(par, sc, md):
        LP = lambda n: L(n + md + str(par))
        nxt_loop = L('loop' + md + str(1 - par))
        A.label(LP('loop'))
        if RGAP: A("s_waitcnt vmcnt(2)")
        A.label(LP('loop') + "x")
        lg.clear()
        A(f"""
        s_mov_b32 s{sT3}, s{sMA}
        s_mov_b32 s{sMA}, s{sMW}
        s_mov_b32 s{sMW}, s{sMR}
        s_mov_b32 s{sMR}, s{sT3}
        s_mov_b32 s{sSPIN}, {SPIN}
        s_sub_u32 s{sT0}, s{sMA}, {HI}
        s_mov_b32 s{sT1}, s{sT0}
        s_add_u32 s{sT2}, s{sT0}, 4096
        s_add_u32 s{sT3}, s{sT0}, s{sB3}
        s_add_u32 s{sT4}, s{sSEG}, {WS_KX - HI}
        s_add_u32 m0, s{sWB}, {L_MEMF + R1N*1024}
        """)
        for f in range(3): wvread(f)
        A(f"s_cmp_lt_u32 s{W}, 2\ns_cbranch_scc1 {LP('cdj')}")
        if CD: A(f"s_sleep {CD}")
        TQ("cgo")
        def cload2(r):
            A(f"buffer_load_dwordx4 {v(r,4)}, {v(vC1)}, {srd(SRD_WS)}, s{sT1} offen sc1")
            A(f"buffer_load_dwordx4 {v(r+4,4)}, {v(vC1)}, {srd(SRD_WS)}, s{sT0} offen offset:1024 sc1")
        def cproc(r, y, br):
            A(f"""
            s_waitcnt vmcnt({y+1})
            ds_write_b128 {v(vC1)}, {v(r,4)} offset:{L_MEMF-HI}
            v_max3_u32 {v(TMP)}, {v(r)}, {v(r+1)}, {v(r+2)}
            s_waitcnt vmcnt({y})
            ds_write_b128 {v(vC1)}, {v(r+4,4)} offset:{L_MEMF-HI+1024}
            v_max3_u32 {v(TMP)}, {v(TMP)}, {v(r+3)}, {v(r+4)}
            v_max3_u32 {v(TMP)}, {v(TMP)}, {v(r+5)}, {v(r+6)}
            v_max_u32 {v(TMP)}, {v(TMP)}, {v(r+7)}
            v_cmp_eq_u32 vcc, -1, {v(TMP)}
            {br}
            """)
        if CGAP:
            cload2(AS[0]); A(f"s_sleep {CGAP}" if CGAP > 0 else f"s_nop {-CGAP}"); cload2(AS[2])
            A.label(LP('cp'))
            cproc(AS[0], 2, f"s_cbranch_vccnz {LP('cf')}")
        else:
            A.label(LP('cp'))
            cload2(AS[2]); spin()
            cproc(AS[2], 0, f"s_cbranch_vccnz {LP('cp')}")
        A.label(LP('cdj'))
        TQ("cdj")
        A("s_waitcnt lgkmcnt(0)\ns_barrier")
        if trace: TR(4); A("s_waitcnt lgkmcnt(0)")
        lg.clear()
        if cnt: A(f"s_sub_u32 s96, {SPIN}, s{sSPIN}\ns_add_u32 s20, s20, s96")
        PH(0)
        slot = lambda i: (i & 3) if i < 12 else (i - 12) % 3
        prev_user = lambda j: j - 4 if j < 15 else j - 3
        def aread(i):
            A(f"ds_read_b128 {v(AS[slot(i)],4)}, {v(vAF)} offset:{L_MEMF-HI+i*512}")
            lg.push(f"A{i}")
        def dma(so): A(f"buffer_load_dwordx4 {v(vCON)}, {srd(SRD_WS)}, s{so} offen sc1 lds")
        KXR = [D0 + 44, D0 + 48, D0 + 28, D0 + 32, D0 + 36, D0 + 40, D0 + 28, D0 + 32]
        VXF = [D0 + 52, D0 + 24]
        def kxread(n):
            A(f"ds_read_b128 {v(KXR[n],4)}, {v(vKX)} offset:{L_KX-HI+(n>>1)*2048+(n&1)*128}")
            lg.push(f"X{n}")
        TQ("start")
        aread(0); aread(1)
        if CGAP: A("s_waitcnt vmcnt(0)")
        aread(2); aread(3)
        f = 0
        nxt = 4
        late = []
        slow_n = [0]
        for i, kk in enumerate(korder):
            a_ = v(AS[slot(i)], 4)
            TQ(f"q{i}")
            if QE and i == 17:
                sm(AK, a_, WK(kk)); late.append((a_, None)); continue
            lg.wait(f"A{i}")
            sm(AQ, a_, WQ(kk))
            if QE and i == 16:
                lg.wait("A17"); sm(AQ, v(AS[slot(17)], 4), WQ(17))
            if RAL and i == RAL - 1: A(f"s_cmp_eq_u32 s{sRED}, 0\ns_cselect_b32 s97, 0x40000000, s{sMR}")
            if RAL and i == RAL: A(f"buffer_store_dword {v(vSP)}, {v(vPUB)}, {srd(SRD_WS)}, s97 offen{sc}"); slow_n[0] += 1
            if i == FAT and merged: A(f"buffer_store_dword {v(vSP)}, off, {srd(SRD_WS)}, s{sPRG} sc1"); slow_n[0] += 1
            if i == WAT and not nowarm: A(f"buffer_load_dword {v(TMP)}, {v(vRED)}, {srd(SRD_WS)}, s{sT3} offen sc1"); slow_n[0] += 1
            if i == WAT + 1 and not nowarm: A(f"buffer_load_dword {v(TMP)}, {v(vRED)}, {srd(SRD_WS)}, s{sT2} offen sc1"); slow_n[0] += 1
            if i == WAT + 3 and merged: A(f"buffer_load_dword {v(TMP)}, {v(vPUB)}, {srd(SRD_WS)}, s{sKVO} offen sc1"); slow_n[0] += 1
            if i == R2AT: dma(sT2)
            if i in (R2AT + 1, R2AT + 2) and not KXE: dma(sT4)
            if i == R3AT: dma(sT3)
            if i == R3AT + 1: A(f"buffer_load_dwordx4 {v(VXF[0],4)}, {v(vVX)}, {srd(SRD_WS)}, s{sT0} offen sc1")
            sm(AK, a_, WK(kk))
            if KXE:
                if i == R2AT: A(f"s_mov_b32 m0, s{sM3}\ns_add_u32 s{sT0}, s{sSEG}, {WS_VX}")
            else:
                if i == R2AT: A(f"s_add_u32 m0, s{sWB}, {L_KX}")
                if i == R2AT + 1: A(f"s_add_u32 m0, s{sWB}, {L_KX + 4096}\ns_add_u32 s{sT4}, s{sT4}, 4096")
                if i == R2AT + 2: A(f"s_mov_b32 m0, s{sM3}\ns_add_u32 s{sT0}, s{sSEG}, {WS_VX}")
            if i in (B2AT, B3AT) and not (KXE and i == B3AT):
                A(f"s_waitcnt vmcnt({(1 if KXE else 2) + slow_n[0]})\ns_barrier")
                while prev_user(nxt) < i: aread(nxt); nxt += 1
            if i == 8: A(f"s_lshr_b32 s{sT2}, s{sSEG}, 1")
            if i == 9: A(f"s_add_u32 s{sT1}, s{sT2}, {0x40000000 if nokm else WS_VM - L_Q}\ns_add_u32 s{sT4}, s{sT2}, {0x40000000 if nokm else WS_KM - L_Q}")
            if i == 10: A(f"s_add_u32 s{sT3}, s{sSEG}, s{sWOF}\ns_add_u32 s{sT2}, s{sT3}, {WS_VX - WS_KX}")
            if i >= 16:
                late.append((a_, f if kk != 17 else None)); f += 1
            else:
                lg.wait(f"W{f}")
                sm(AV, a_, v(WR[f % 3], 8))
                if f + 3 < 17: wvread(f + 3)
                f += 1
            lim = 2*R1N-1 if i < B2AT else (2*R1N+7 if i < B3AT and not KXE else 17)
            while nxt <= lim and prev_user(nxt) <= i: aread(nxt); nxt += 1
            if i == 11: A(f"buffer_load_dwordx4 {v(VXF[1],4)}, {v(vVX)}, {srd(SRD_WS)}, s{sT0} offen offset:256 sc1")
            if i == 14: kxread(0); kxread(1)
            if i == 15: kxread(2); kxread(3)
        assert nxt == 18 and WAT + 3 <= (16 if QE else 17) and FAT < WAT + 3 and WAT >= 12 and FAT >= 12 and B3AT >= 12 and R3AT + 1 <= 11
        TQ("qend")
        QF = [D0 + 0, D0 + 4]; KF = [D0 + 16, D0 + 20]
        KP, ZP = D0 + 12, D0 + 14
        def latev(n):
            a_, f_ = late[n]
            if f_ is None: sm(AV, a_, v(WVR, 8)); return
            lg.wait(f"W{f_}")
            sm(AV, a_, v(WR[f_ % 3], 8))
        def qk_write():
            pk2(AQ, AQ)
            A(f"ds_write_b64 {v(vQW)}, {v(AQ,2)}")
            pk2(KP, AK)
            A(f"ds_write_b64 {v(vQW)}, {v(KP,2)} offset:{L_K-L_Q}")
        if QE:
            A("s_nop 1")
            pk2(AQ, AQ)
            A(f"ds_write_b64 {v(vQW)}, {v(AQ,2)}")
            latev(0)
            A("s_nop 1")
            pk2(KP, AK)
            A(f"ds_write_b64 {v(vQW)}, {v(KP,2)} offset:{L_K-L_Q}")
            lg.push("qk", 2)
        else:
            latev(0)
            if MW == 1: A("s_nop 5")
            else: A("s_nop 2")
            TQ("s2a")
            qk_write(); lg.push("qk", 2)
        latev(1)
        kxread(4); kxread(5)
        A(f"""
        v_cmp_u_f32 vcc, {v(AK)}, {v(AK+1)}
        v_cmp_u_f32 s[{sRDLY2}:{sRDLY2+1}], {v(AK+2)}, {v(AK+3)}
        s_or_b64 vcc, vcc, s[{sRDLY2}:{sRDLY2+1}]
        s_cbranch_vccnz {LP('slow')}
        """)
        A.label(LP('slowret'))
        if par == (last & 1):
            A(f"s_cmp_eq_u32 s{sSTEP}, {last}\ns_cbranch_scc1 {L('done')}")
        TQ("s2c")
        lg.wait("qk")
        A("s_barrier")
        TQ("s2end")
        def qk_reads(fb):
            b = fb & 1
            for (dst, base, tg) in ((QF[b], 0, "Q"), (KF[b], L_K - L_Q, "K")):
                A(f"ds_read_b64_tr_b16 {v(dst,2)}, {v(vQR)} offset:{base+fb*512}")
                A(f"ds_read_b64_tr_b16 {v(dst+2,2)}, {v(vQR)} offset:{base+fb*512+128}")
                lg.push(f"{tg}{fb}", 2)
        qk_reads(0); qk_reads(1)
        pk2(ZP, AV)
        ST = [D0 + 8, KXR[0], KXR[1]]
        VMT = D0 + 36; ON1 = D0 + 16; ON2 = D0 + 20
        M0_, M1_ = D0 + 42, D0 + 43
        PX = D0 + 0; PM = PX + 4
        for fb in range(4):
            b = fb & 1
            TQ(f"fb{fb}")
            for kt in range(2):
                n = 2 * fb + kt
                lg.wait(f"Q{fb}"); lg.wait(f"X{n}")
                mf(ST[kt], v(KXR[n], 4), v(QF[b], 4), fb == 0)
                if n in (2, 3): kxread(n + 4)
                if n == 0: A(f"buffer_store_dwordx2 {v(KP,2)}, {v(vQW)}, {srd(SRD_WS)}, s{sT4} offen sc1")
                if n == 3: A(f"buffer_store_dwordx2 {v(ZP,2)}, {v(vQW)}, {srd(SRD_WS)}, s{sT1} offen sc1")
                if n == 4: A(f"v_cndmask_b32 {v(VMT)}, 0, {v(ZP)}, s[{sLO32}:{sLO32+1}]\nv_cndmask_b32 {v(VMT+1)}, 0, {v(ZP+1)}, s[{sLO32}:{sLO32+1}]")
                if n == 5: A(f"v_mov_b32 {v(VMT+2)}, 0\nv_mov_b32 {v(VMT+3)}, 0")
                if n == 6: A(f"v_mov_b32 {v(ON1)}, 0x3f803f80\nv_mov_b32 {v(ON1+1)}, 0x3f803f80")
                if n == 7: A(f"v_mov_b32 {v(ON1+2)}, 0x3f803f80\nv_mov_b32 {v(ON1+3)}, 0x3f803f80")
            lg.wait(f"K{fb}")
            mf(ST[2], v(KF[b], 4), v(QF[b], 4), fb == 0)
            if fb + 2 < 4: qk_reads(fb + 2)
            if fb == 2:
                A(f"v_cndmask_b32 {v(VMT+4)}, 0, {v(ZP)}, s[{sHI32}:{sHI32+1}]\nv_cndmask_b32 {v(VMT+5)}, 0, {v(ZP+1)}, s[{sHI32}:{sHI32+1}]")
        TQ("scend")
        SR = [ST[t] + r for t in range(3) for r in range(4)]
        A(f"v_mov_b32 {v(ON2)}, 0x3f003f00\nv_mov_b32 {v(ON2+1)}, 0x3f003f00\nv_mov_b32 {v(ON2+2)}, 0\nv_mov_b32 {v(ON2+3)}, 0")
        A(f"""
        v_max3_f32 {v(M0_)}, {v(SR[0])}, {v(SR[1])}, {v(SR[2])}
        s_nop 0
        v_max3_f32 {v(M1_)}, {v(SR[3])}, {v(SR[4])}, {v(SR[5])}
        v_max3_f32 {v(M0_)}, {v(M0_)}, {v(SR[6])}, {v(SR[7])}
        v_max3_f32 {v(M1_)}, {v(M1_)}, {v(SR[8])}, {v(SR[9])}
        v_max3_f32 {v(M0_)}, {v(M0_)}, {v(SR[10])}, {v(SR[11])}
        v_max_f32 {v(M0_)}, {v(M0_)}, {v(M1_)}
        v_max_f32 {v(M1_)}, {v(M0_)}, {v(M1_)}
        v_mov_b32 {v(D0+12)}, 0
        v_mov_b32 {v(D0+13)}, 0
        v_permlane32_swap_b32 {v(M0_)}, {v(M1_)}
        v_max_f32 {v(M0_)}, {v(M0_)}, {v(M1_)}
        v_max_f32 {v(M1_)}, {v(M0_)}, {v(M1_)}
        v_mov_b32 {v(D0+14)}, 0
        v_mov_b32 {v(D0+15)}, 0
        v_permlane16_swap_b32 {v(M0_)}, {v(M1_)}
        v_max_f32 {v(M0_)}, {v(M0_)}, {v(M1_)}
        v_mul_f32 {v(M0_)}, s{sC}, {v(M0_)}
        """)
        for i in range(6):
            A(f"v_pk_fma_f32 {v(SR[2*i],2)}, {v(SR[2*i],2)}, s[{sC}:{sC+1}], {v(M0_,2)} op_sel_hi:[1,1,0] neg_lo:[0,0,1] neg_hi:[0,0,1]")
        OT, OT1, LS = D0 + 28, D0 + 32, D0 + 8
        if PVO:
            E = lambda i: f"v_exp_f32 {v(SR[i])}, {v(SR[i])}"
            C = lambda j: f"v_cvt_pk_bf16_f32 {v(PX+j)}, {v(SR[2*j])}, {v(SR[2*j+1])}"
            A("\n".join([E(0), E(1), E(2), C(0), E(3), E(4), C(1), E(5), E(6), C(2), E(7), E(8), C(3),
                         f"s_waitcnt vmcnt({2 + slow_n[0]})", E(9)]))
            TQ("expend")
            A(f"""
            v_mfma_f32_16x16x32_bf16 {v(LS,4)}, {v(ON1,4)}, {v(PX,4)}, 0
            {E(10)}
            v_mfma_f32_16x16x32_bf16 {v(OT,4)}, {v(VXF[0],4)}, {v(PX,4)}, 0
            {E(11)}
            {C(4)}
            v_mfma_f32_16x16x32_bf16 {v(OT1,4)}, {v(VXF[1],4)}, {v(PX,4)}, 0
            {C(5)}
            s_nop 1
            v_mfma_f32_16x16x32_bf16 {v(LS,4)}, {v(ON2,4)}, {v(PM,4)}, {v(LS,4)}
            v_mfma_f32_16x16x32_bf16 {v(OT,4)}, {v(VMT,4)}, {v(PM,4)}, {v(OT,4)}
            v_mfma_f32_16x16x32_bf16 {v(OT1,4)}, {v(VMT+2,4)}, {v(PX+2,4)}, {v(OT1,4)}
            v_mov_b32 {v(D0+44)}, 0
            v_mov_b32 {v(D0+45)}, 0
            v_mov_b32 {v(D0+46)}, 0
            """)
        else:
            for i in range(12):
                A(f"v_exp_f32 {v(SR[i])}, {v(SR[i])}")
                if i >= 2 and i % 2 == 0: A(f"v_cvt_pk_bf16_f32 {v(PX+i//2-1)}, {v(SR[i-2])}, {v(SR[i-1])}")
            OT, OT1, LS = D0 + 28, D0 + 32, D0 + 8
            TQ("expend")
            A(f"""
            s_waitcnt vmcnt({2 + slow_n[0]})
            v_cvt_pk_bf16_f32 {v(PX+5)}, {v(SR[10])}, {v(SR[11])}
            v_mfma_f32_16x16x32_bf16 {v(LS,4)}, {v(ON1,4)}, {v(PX,4)}, 0
            v_mfma_f32_16x16x32_bf16 {v(OT,4)}, {v(VXF[0],4)}, {v(PX,4)}, 0
            v_mfma_f32_16x16x32_bf16 {v(LS,4)}, {v(ON2,4)}, {v(PM,4)}, {v(LS,4)}
            v_mfma_f32_16x16x32_bf16 {v(OT,4)}, {v(VMT,4)}, {v(PM,4)}, {v(OT,4)}
            v_mfma_f32_16x16x32_bf16 {v(OT1,4)}, {v(VXF[1],4)}, {v(PX,4)}, 0
            v_mfma_f32_16x16x32_bf16 {v(OT1,4)}, {v(VMT+2,4)}, {v(PX+2,4)}, {v(OT1,4)}
            """)
        WAo = [D0 + 44, D0 + 48, D0 + 12, D0 + 16]
        WA8 = D0 + 20
        OF = [D0 + 0, D0 + 4, D0 + 36, D0 + 40]
        zl = [WAo[p] + i for p in (0, 1, 3) for i in range(4)]
        if PVO: zl = zl[3:]
        npre = 5 if MW == 1 else 0
        for r in zl[:npre]: A(f"v_mov_b32 {v(r)}, 0")
        A(f"v_rcp_f32 {v(M0_)}, {v(LS)}")
        A(f"v_mov_b32 {v(zl[npre])}, 0")
        if MW > 1: A(f"v_mov_b32 {v(zl[npre+1])}, 0"); npre += 1
        A(f"v_pk_mul_f32 {v(OT,2)}, {v(OT,2)}, {v(M0_,2)} op_sel_hi:[1,0]")
        A(f"v_pk_mul_f32 {v(OT+2,2)}, {v(OT+2,2)}, {v(M0_,2)} op_sel_hi:[1,0]")
        pk2(OT, OT)
        A(f"ds_write_b64 {v(vOW)}, {v(OT,2)}")
        A(f"v_pk_mul_f32 {v(OT1,2)}, {v(OT1,2)}, {v(M0_,2)} op_sel_hi:[1,0]")
        A(f"v_pk_mul_f32 {v(OT1+2,2)}, {v(OT1+2,2)}, {v(M0_,2)} op_sel_hi:[1,0]")
        pk2(OT1, OT1)
        A(f"ds_write_b64 {v(vOW)}, {v(OT1,2)} offset:256")
        for r in zl[npre+1:]: A(f"v_mov_b32 {v(r)}, 0")
        A(f"""
        s_add_u32 s{sT0}, s{sB1 if HOLD >= 1 else sPW}, {4*65536}
        s_add_u32 s{sT1}, s{sPW}, {65536}
        s_waitcnt lgkmcnt(0)
        """)
        TQ("smend")
        PH(4)
        A("s_barrier")
        if trace: TR(0); A("s_waitcnt lgkmcnt(0)")
        lg.clear()
        for ks in range(4):
            A(f"ds_read_b128 {v(OF[ks],4)}, {v(vAF)} offset:{L_O-HI+ks*512}"); lg.push(f"O{ks}")
        SEL = D0 + 36; RT = D0 + 40; RDd = D0 + 16; RBS = [[D0 + 28, D0 + 32, D0 + 52, D0 + 24], [D0 + 44, D0 + 48, D0 + 12, D0 + 20]]
        A(f"""
        s_add_u32 s{sT2}, s{sB1 if HOLD >= 3 else sPW}, {2*65536}
        s_add_u32 s{sT3}, s{sB1 if HOLD >= 2 else sPW}, {3*65536}
        s_add_u32 s{sSTEP}, s{sSTEP}, 1
        s_add_u32 s{sSEG}, s{sSEG}, {0 if fixseg else RECSZ}
        s_mov_b32 s{sSPIN}, {SPIN}
        """)
        TQ("wostart")
        PH(5)
        tagop = lambda r: (f"v_or_b32 {v(r)}, 1, {v(r)}" if par else f"v_and_b32 {v(r)}, -2, {v(r)}")
        def out_ops(a0, soff, half=False):
            ops = [f"v_cvt_pk_bf16_f32 {v(a0)}, {v(a0)}, {v(a0+1)}", f"v_cvt_pk_bf16_f32 {v(a0+1)}, {v(a0+2)}, {v(a0+3)}",
                   tagop(a0)] + ([] if TAG1 else [tagop(a0 + 1)])
            st = f"buffer_store_dwordx2 {v(a0,2)}, {v(vPST)}, {srd(SRD_WS)}, s{soff} offen{sc}"
            if half: st = f"s_mov_b64 exec, s[{sLO32}:{sLO32+1}]\n{st}\ns_mov_b64 exec, -1"
            return ops + [st]
        mfl = [(p, ks) for p in range(4) for ks in range(4)] + [("d", ks) for ks in range(4)]
        groups = [(3 + 4 * p, out_ops(WAo[p], [sPW, sT1, sT2, sT3][p])) for p in range(4)] + [(19, out_ops(WA8, sT0, True))]
        if X4H:
            def o4(a0, b0, soff):
                return [f"v_cvt_pk_bf16_f32 {v(a0+2)}, {v(b0)}, {v(b0+1)}", f"v_cvt_pk_bf16_f32 {v(a0+3)}, {v(b0+2)}, {v(b0+3)}", tagop(a0 + 2), tagop(a0 + 3),
                        f"buffer_store_dwordx4 {v(a0,4)}, {v(vPST)}, {srd(SRD_WS)}, s{soff} offen{sc}"]
            groups = [(3, out_ops(WAo[0], sPW)[:-1]), (7, o4(WAo[0], WAo[1], sPW)), (11, out_ops(WAo[2], sPW)[:-1]), (15, o4(WAo[2], WAo[3], sT2)),
                      (19, out_ops(WA8, sT0)[:-1] + [f"v_mov_b32 {v(WA8+2)}, {v(WA8)}", f"v_mov_b32 {v(WA8+3)}, {v(WA8)}",
                       f"s_mov_b32 exec_lo, 0x00ff00ff\ns_mov_b32 exec_hi, 0\nbuffer_store_dwordx4 {v(WA8,4)}, {v(vPST)}, {srd(SRD_WS)}, s{sT0} offen{sc}\ns_mov_b64 exec, -1"])]
        ic = [0]; pos = {}
        def emit(s_):
            A(s_); ic[0] += len([x for x in s_.split("\n") if x.strip()])
        cur = []; gi = 0
        for n, (p, ks) in enumerate(mfl):
            if n < 4:
                n0 = len(A.lines); lg.wait(f"O{ks}"); ic[0] += len(A.lines) - n0
            if p == "d":
                emit(f"v_mfma_f32_16x16x32_bf16 {v(WA8,4)}, {v(OF[ks],4)}, {WO8(ks)}, {'0' if ks == 0 else v(WA8,4)}")
            else:
                emit(f"v_smfmac_f32_16x16x64_bf16 {v(WAo[p],4)}, {v(OF[ks],4)}, {WO(p,ks)}, {v(IDX)}")
            ic[0] += MW - 1
            pos[n] = ic[0]
            k = 0
            while k < 2:
                if not cur and gi < len(groups) and groups[gi][0] <= n and ic[0] - pos[groups[gi][0]] >= (9 if MW > 1 else 8):
                    cur = list(groups[gi][1]); gi += 1
                if not cur: break
                emit(cur.pop(0)); k += 1
        while cur or gi < len(groups):
            if not cur:
                need = 8 - (ic[0] - pos[groups[gi][0]])
                if need > 0: emit(f"s_nop {need-1}"); ic[0] += need - 1
                cur = list(groups[gi][1]); gi += 1
            emit(cur.pop(0))
        TQ("woend")
        PH(6)
        TR(1)
        if KXE:
            A(f"s_cmp_lt_u32 s{W}, 2\ns_cbranch_scc1 {LP('nkx')}"); kx_early(); A.label(LP('nkx'))
        A(f"s_cmp_eq_u32 s{sRED}, 0\ns_cbranch_scc1 {LP('nored')}")
        def rload(sidx):
            for i in range(4):
                A(f"buffer_load_dwordx4 {v(RBS[sidx][i],4)}, {v(vRED)}, {srd(SRD_WS)}, s{sPW} offen offset:{i*1024}{ld}")
        def rproc(sidx, br, y=0):
            for i in range(4):
                b = RBS[sidx][i]
                A(f"s_waitcnt vmcnt({(7 if RGAP else 3)-i+y})")
                mf(RDd, v(SEL, 4), v(b, 4), i == 0)
                o3 = (lambda d, x, y, z: f"v_bitop3_b32 {v(d)}, {v(x)}, {v(y)}, {v(z)} bitop3:0x80") if par else (lambda d, x, y, z: f"v_or3_b32 {v(d)}, {v(x)}, {v(y)}, {v(z)}")
                if TAG1:
                    A(o3(RT, RT if i else b, b, b + 2))
                elif i == 0:
                    A(o3(RT, b, b + 1, b + 2)); A(o3(RT, RT, b + 3, b + 3))
                else:
                    A(o3(RT, RT, b, b + 1)); A(o3(RT, RT, b + 2, b + 3))
            A(f"v_and_b32 {v(RT)}, 1, {v(RT)}\nv_cmp_ne_u32 vcc, {par}, {v(RT)}\n{br}")
        A(f"""
        s_mov_b32 s{sT0}, s{sRDLY}
    {LP('rdl')}:
        s_cmp_eq_u32 s{sT0}, 0
        s_cbranch_scc1 {LP('rgo')}
        s_sleep 1
        s_sub_u32 s{sT0}, s{sT0}, 1
        s_branch {LP('rdl')}
    {LP('rgo')}:
        """)
        TQ("rgo")
        rload(0)
        if HOLD:
            assert not RGAP
            if HOLD >= 3: A(f"s_add_u32 s{sT2}, s{sB2}, {2*65536}\nbuffer_store_dwordx2 {v(WAo[2],2)}, {v(vPST)}, {srd(SRD_WS)}, s{sT2} offen{sc}")
            if HOLD >= 2: A(f"s_add_u32 s{sT3}, s{sB2}, {3*65536}\nbuffer_store_dwordx2 {v(WAo[3],2)}, {v(vPST)}, {srd(SRD_WS)}, s{sT3} offen{sc}")
            A(f"s_add_u32 s{sT0}, s{sB2}, {4*65536}\ns_mov_b64 exec, s[{sLO32}:{sLO32+1}]\nbuffer_store_dwordx2 {v(WA8,2)}, {v(vPST)}, {srd(SRD_WS)}, s{sT0} offen{sc}\ns_mov_b64 exec, -1")
        zero_acc()
        for r in range(4): A(f"v_cndmask_b32 {v(SEL+r)}, 0, {v(SELV)}, s[{sSEL+2*r}:{sSEL+2*r+1}]")
        if RGAP:
            if RGAP > 0: A(f"s_sleep {RGAP}")
            rload(1)
        A.label(LP('rp0'))
        rproc(0, f"s_cbranch_vccnz {LP('rf0')}", HOLD)
        A.label(LP('rdone'))
        TQ("rdone")
        A(f"""
        {'s_sub_u32 s96, %d, s%d' % (SPIN, sSPIN) if cnt else 's_nop 0'}
        {'s_add_u32 s21, s21, s96' if cnt else 's_nop 0'}
        s_nop {1 if TAG1 else 0}
        v_add_f32_dpp {v(RT)}, {v(RDd)}, {v(RDd)} row_ror:8 row_mask:0xf bank_mask:0xf
        v_add_f32_dpp {v(RT+1)}, {v(RDd+1)}, {v(RDd+1)} row_ror:8 row_mask:0xf bank_mask:0xf
        v_cvt_pk_bf16_f32 {v(RT)}, {v(RT)}, {v(RT+1)}
        v_min_u32 {v(TMP)}, -2, {v(RT)}
        buffer_store_dword {v(TMP)}, {v(vPUB)}, {srd(SRD_WS)}, s{sMW} offen{sc}
        """)
        if not RAL: A(f"buffer_store_dword {v(vSP)}, {v(vPUB)}, {srd(SRD_WS)}, s{sMA} offen{sc}")
        TQ("pub")
        PH(7)
        TR(2)
        if trace: A("s_waitcnt lgkmcnt(0)")
        A(f"s_branch {nxt_loop}")
        A.label(LP('nored'))
        if trace: A("s_waitcnt vmcnt(0)"); TR(2); A("s_waitcnt lgkmcnt(0)")
        zero_acc()
        if merged:
            A(f"""
            s_cmp_lg_u32 s{W}, 3
            s_cbranch_scc1 {LP('nkv')}
            v_mov_b32 {v(vSP)}, s{sSTEP}
            s_cmp_ge_u32 s{sKV}, 64
            s_cbranch_scc1 {LP('nkv')}
            s_waitcnt vmcnt({11 if KXE else (5 if X4H else 7)})
            v_cmp_ne_u32 vcc, 4, {v(TMP)}
            s_ff1_i32_b64 s{sKV}, vcc
            s_cmp_lt_i32 s{sKV}, 0
            s_cselect_b32 s{sKV}, 64, s{sKV}
            s_cselect_b32 s{sKVO}, 0x40000000, s{sKVO}
            s_add_u32 s{sT0}, s{sSTEP}, {WARMD + 1}
            s_min_u32 s{sT0}, s{sT0}, 64
            """)
            kv_wait(sT0, LP('kv'))
            A.label(LP('nkv'))
        if tstep:
            A(f"s_cmp_lg_u32 s{W}, 2\ns_cbranch_scc1 {LP('nts')}\ns_memrealtime s[96:97]\ns_waitcnt lgkmcnt(0)\ns_mov_b32 m0, s{sSTEP}\nv_writelane_b32 {v(vSP)}, s96, m0\n{LP('nts')}:")
        if CDN: A(f"s_sleep {CDN}")
        A(f"s_branch {nxt_loop}x")
        A.label(LP('rf0'))
        rload(0); spin()
        if RGAP:
            rproc(1, f"s_cbranch_vccz {LP('rdone')}")
            rload(1); spin()
        if HOLD:
            rproc(0, f"s_cbranch_vccz {LP('rdone')}")
            A(f"s_branch {LP('rf0')}")
        else:
            A(f"s_branch {LP('rp0')}")
        if CGAP:
            A.label(LP('cf'))
            cload2(AS[0]); spin()
            cproc(AS[2], 2, f"s_cbranch_vccz {LP('cok')}")
            cload2(AS[2]); spin()
            A(f"s_branch {LP('cp')}")
            A(f"{LP('cok')}:\ns_waitcnt vmcnt(0)\ns_branch {LP('cdj')}")
        A.label(LP('slow'))
        A(f"s_sub_u32 s97, s{sMA}, {HI}\ns_waitcnt lgkmcnt(0)\ns_nop 7")
        zero_acc()
        for kp in range(9):
            lab = LP(f'sp{kp}_')
            for h in range(2):
                kk = 2 * kp + h
                if kk != 17:
                    A(f"ds_read_b128 {v(WR[h],4)}, {v(vWV)} offset:{kk*2048}\nds_read_b128 {v(WR[h]+4,4)}, {v(vWV)} offset:{kk*2048+1024}")
            A(f"""
{lab}:
            buffer_load_dwordx4 {v(AS[0],4)}, {v(vAF)}, {srd(SRD_WS)}, s97 offen sc1
            buffer_load_dwordx4 {v(AS[1],4)}, {v(vAF)}, {srd(SRD_WS)}, s97 offen offset:512 sc1
            """)
            spin()
            A(f"""
            s_waitcnt vmcnt(0) lgkmcnt(0)
            v_max3_u32 {v(TMP)}, {v(AS[0])}, {v(AS[0]+1)}, {v(AS[0]+2)}
            v_max3_u32 {v(TMP)}, {v(TMP)}, {v(AS[0]+3)}, {v(AS[1])}
            v_max3_u32 {v(TMP)}, {v(TMP)}, {v(AS[1]+1)}, {v(AS[1]+2)}
            v_max_u32 {v(TMP)}, {v(TMP)}, {v(AS[1]+3)}
            v_cmp_eq_u32 vcc, -1, {v(TMP)}
            s_cbranch_vccnz {lab}
            """)
            for h in range(2):
                kk = 2 * kp + h
                sm(AQ, v(AS[h], 4), WQ(kk)); sm(AK, v(AS[h], 4), WK(kk)); sm(AV, v(AS[h], 4), v(WR[h], 8) if kk != 17 else v(WVR, 8))
            A(f"s_add_u32 s97, s97, 1024")
        if prof: A(f"s_mov_b64 exec, {1 << 10}\nv_add_u32 v1, 63, v1\ns_mov_b64 exec, -1")
        if cnt: A("s_add_u32 s20, s20, 0x10000")
        import common
        if common.HST:
            A(f"v_mov_b32 {v(TMP)}, 1\ns_mov_b64 exec, 1\nbuffer_atomic_add {v(TMP)}, off, {srd(SRD_DBG)}, 32 sc1\ns_mov_b64 exec, -1\ns_waitcnt vmcnt(0)")
        A("s_nop 7")
        qk_write()
        for n in range(2, 6): A(f"ds_read_b128 {v(KXR[n],4)}, {v(vKX)} offset:{L_KX-HI+(n>>1)*2048+(n&1)*128}")
        A(f"s_waitcnt lgkmcnt(0)\ns_branch {LP('slowret')}")
    step_body(0, sc, ''); step_body(1, sc, '')
    if merged:
        step_body(0, ' sc1', 'S'); step_body(1, ' sc1', 'S')
    A.label(L('done'))
    A(f"""
    s_lshr_b32 s{sT2}, s{sSEG}, 1
    s_add_u32 s{sT1}, s{sT2}, {WS_VM - L_Q}
    s_add_u32 s{sT4}, s{sT2}, {WS_KM - L_Q}
    v_min_u32 {v(D0+12)}, -2, {v(D0+12)}
    v_min_u32 {v(D0+13)}, -2, {v(D0+13)}
    buffer_store_dwordx2 {v(D0+12,2)}, {v(vQW)}, {srd(SRD_WS)}, s{sT4} offen sc1
    v_cvt_pk_bf16_f32 {v(D0+14)}, {v(D0+8)}, {v(D0+9)}
    v_cvt_pk_bf16_f32 {v(D0+15)}, {v(D0+10)}, {v(D0+11)}
    v_min_u32 {v(D0+14)}, -2, {v(D0+14)}
    v_min_u32 {v(D0+15)}, -2, {v(D0+15)}
    buffer_store_dwordx2 {v(D0+14,2)}, {v(vQW)}, {srd(SRD_WS)}, s{sT1} offen sc1
    """)
    A("s_waitcnt vmcnt(0) lgkmcnt(0)")
    if merged:
        A(f"""
        s_barrier
        s_cmp_lg_u32 s{W}, 3
        s_cbranch_scc1 {L('nfin')}
        v_mov_b32 {v(TMP)}, 64
        v_mov_b32 {v(D0+52)}, s{sPRG}
        s_mov_b64 exec, 1
        buffer_store_dword {v(TMP)}, {v(D0+52)}, {srd(SRD_WS)}, 0 offen sc1
        s_mov_b64 exec, -1
        s_waitcnt vmcnt(0)
{L('nfin')}:
        """)
    if cnt:
        A(f"v_mov_b32 v1, s20\ns_mov_b64 exec, 2\nv_mov_b32 v1, s21\ns_mov_b64 exec, -1")
        A("s_memtime s[96:97]\ns_memrealtime s[100:101]\ns_waitcnt lgkmcnt(0)\ns_sub_u32 s96, s96, s99\ns_sub_u32 s100, s100, s98")
        A("s_mov_b64 exec, 4\nv_mov_b32 v1, s96\ns_mov_b64 exec, 8\nv_mov_b32 v1, s100\ns_mov_b64 exec, -1")
    if trace:
        for i in range(6): A(f"s_mov_b64 exec, {1 << i}\nv_mov_b32 v1, s{8+2*i}")
        A("s_mov_b64 exec, -1")
    if tq:
        for i in range(len(tq)): A(f"s_mov_b64 exec, {1 << i}\nv_mov_b32 v1, s{8+2*i}")
        A("s_mov_b64 exec, -1")
    if tstart:
        TS(7)
        A("s_mov_b32 s8, s100\ns_mov_b32 s10, s98")
        for i in range(8): A(f"s_mov_b64 exec, {1 << i}\nv_mov_b32 v1, s{8+2*i}")
        A("s_mov_b64 exec, -1")
    if tstep: A(f"v_mov_b32 v1, {v(vSP)}")
    if prof or cnt or trace or tq or tstep or tstart:
        A(f"""
        s_lshl_b32 s96, s{s_head}, 2
        s_add_u32 s96, s96, s{W}
        s_lshl_b32 s96, s96, 8
        s_add_u32 s96, s96, {WS_STAMP + 0x10000}
        v_lshrrev_b32 v28, 2, {v(vCON)}
        v_and_b32 v28, 255, v28
        buffer_store_dword v1, v28, {srd(SRD_WS)}, s96 offen
        s_waitcnt vmcnt(0)
        """)
    stamp(A, 10, s_id=s_head)
    hstamp(A, 14)
```

```python
from common import *
from mod_r4 import f32bits, CEXP, SPIN

NEGBIG = -1.0e9 / (128 ** -0.5)

XV_LANE16, XV_KM, XV_VM, XV_V = 2, 3, 4, 5
def X_setup(A):
    A(f"""
    v_lshlrev_b32 {v(XV_LANE16)}, 4, v1
    v_bfe_u32 {v(XV_KM)}, v1, 2, 2
    v_lshrrev_b32 v6, 5, v1
    v_lshl_add_u32 {v(XV_KM)}, v6, 2, {v(XV_KM)}
    v_lshlrev_b32 {v(XV_KM)}, 4, {v(XV_KM)}
    v_and_b32 v7, 1, v1
    v_lshl_add_u32 {v(XV_KM)}, v7, 3, {v(XV_KM)}
    s_lshl_b32 s60, s{S_WAVE}, 11
    v_add_u32 {v(XV_KM)}, s60, {v(XV_KM)}
    v_and_b32 {v(XV_VM)}, 31, v1
    v_lshlrev_b32 {v(XV_VM)}, 4, {v(XV_VM)}
    v_lshl_add_u32 {v(XV_VM)}, v6, 3, {v(XV_VM)}
    s_lshl_b32 s60, s{S_WAVE}, 9
    v_add_u32 {v(XV_VM)}, s60, {v(XV_VM)}
    s_lshl_b32 s60, s{S_WAVE}, 11
    v_add_u32 {v(XV_V)}, s60, {v(XV_LANE16)}
    """)

XQ, XV_, XSX, XT0 = 184, 216, 224, 240
def X_pre(A, s_rec):
    Q, K, V_, SX, T0, T1 = XQ, 8, XV_, XSX, XT0, 40
    A(f"""
    s_lshl_b32 s60, s{s_rec}, 13
    s_add_u32 s61, s60, {WS_QX}
    s_add_u32 s62, s60, {WS_KX}
    s_add_u32 s63, s60, {WS_VX}
    """)
    for i in range(8):
        if i == 4:
            A("s_add_u32 s61, s61, 4096\ns_add_u32 s62, s62, 4096")
        A(f"buffer_load_dwordx4 {v(Q+4*i,4)}, {v(XV_LANE16)}, {srd(SRD_WS)}, s61 offen offset:{(i&3)*1024} sc1")
        A(f"buffer_load_dwordx4 {v(K+4*i,4)}, {v(XV_LANE16)}, {srd(SRD_WS)}, s62 offen offset:{(i&3)*1024} sc1")
    for j in range(2):
        A(f"buffer_load_dwordx4 {v(V_+4*j,4)}, {v(XV_V)}, {srd(SRD_WS)}, s63 offen offset:{j*1024} sc1")
    for i in range(8):
        A(f"s_waitcnt vmcnt({16 - 2*i})")
        A(f"v_mfma_f32_32x32x16_bf16 {v(SX,16)}, {v(K+4*i,4)}, {v(Q+4*i,4)}, {'0' if i == 0 else v(SX,16)}")
    A(f"v_mov_b32 {v(T1)}, {f32bits(NEGBIG)}\ns_nop 8")
    for i in range(16):
        m = 0
        for l in range(64):
            key = 8 * (i // 4) + 4 * (l >> 5) + i % 4
            if key <= (l & 31): m |= 1 << l
        A(f"s_mov_b32 s60, {m & 0xffffffff}\ns_mov_b32 s61, {m >> 32}")
        A(f"v_cndmask_b32 {v(SX+i)}, {v(T1)}, {v(SX+i)}, s[60:61]")
    A(f"v_max3_f32 {v(T0)}, {v(SX)}, {v(SX+1)}, {v(SX+2)}")
    for i in range(3, 15, 2):
        A(f"v_max3_f32 {v(T0)}, {v(T0)}, {v(SX+i)}, {v(SX+i+1)}")
    A(f"v_max_f32 {v(T0)}, {v(T0)}, {v(SX+15)}\ns_waitcnt vmcnt(0)")

def X_post(A, s_item, s_rec, sc=" sc1"):
    Q, V_, SX, T0 = XQ, XV_, XSX, XT0
    KM, VM, SM, P0, P1, PM, O, T1 = 8, 40, 44, 60, 64, 68, 72, 88
    A(f"""
    s_lshl_b32 s60, s{s_rec}, 12
    s_add_u32 s61, s60, {WS_KM}
    s_add_u32 s62, s60, {WS_VM}
    v_mov_b32 {v(VM+2)}, 0
    v_mov_b32 {v(VM+3)}, 0
    v_mov_b32 {v(PM+2)}, 0
    v_mov_b32 {v(PM+3)}, 0
    s_mov_b32 s63, {SPIN}
X_poll:
    buffer_load_dwordx4 {v(O,4)}, {v(XV_LANE16)}, {srd(SRD_WS)}, s61 offen sc1
    buffer_load_dwordx4 {v(O+4,4)}, {v(XV_LANE16)}, {srd(SRD_WS)}, s61 offen offset:1024 sc1
    buffer_load_dwordx2 {v(VM,2)}, {v(XV_VM)}, {srd(SRD_WS)}, s62 offen sc1
    s_cmp_lt_u32 s{s_item}, {63*32}
    s_waitcnt vmcnt(0)
    s_cbranch_scc1 X_have
    v_max3_u32 {v(T1)}, {v(O)}, {v(O+1)}, {v(O+2)}
    v_max3_u32 {v(T1)}, {v(T1)}, {v(O+3)}, {v(O+4)}
    v_max3_u32 {v(T1)}, {v(T1)}, {v(O+5)}, {v(O+6)}
    v_max3_u32 {v(T1)}, {v(T1)}, {v(O+7)}, {v(VM)}
    v_max_u32 {v(T1)}, {v(T1)}, {v(VM+1)}
    v_cmp_eq_u32 vcc, -1, {v(T1)}
    s_cbranch_vccz X_have
    s_sub_u32 s63, s63, 1
    s_cbranch_scc1 X_have
    s_sleep 5
    s_branch X_poll
X_have:
    ds_write_b128 {v(XV_V)}, {v(O,4)}
    ds_write_b128 {v(XV_V)}, {v(O+4,4)} offset:1024
    """)
    for i in range(8):
        A(f"ds_read_b64_tr_b16 {v(KM+4*i,2)}, {v(XV_KM)} offset:{i*256}")
        A(f"ds_read_b64_tr_b16 {v(KM+4*i+2,2)}, {v(XV_KM)} offset:{i*256+128}")
        if i == 5: A("s_waitcnt lgkmcnt(8)")
    for i in range(8):
        A(f"s_waitcnt lgkmcnt({min(8, 14 - 2*i)})")
        A(f"v_mfma_f32_32x32x16_bf16 {v(SM,16)}, {v(KM+4*i,4)}, {v(Q+4*i,4)}, {'0' if i == 0 else v(SM,16)}")
    A(f"""
    s_mov_b32 s60, {f32bits(CEXP)}
    s_nop 10
    v_max3_f32 {v(T0)}, {v(T0)}, {v(SM)}, {v(SM+1)}
    v_max3_f32 {v(T0)}, {v(T0)}, {v(SM+2)}, {v(SM+3)}
    v_mov_b32 {v(T1)}, {v(T0)}
    s_nop 1
    v_permlane32_swap_b32 {v(T0)}, {v(T1)}
    v_max_f32 {v(T0)}, {v(T0)}, {v(T1)}
    v_mul_f32 {v(T0)}, s60, {v(T0)}
    """)
    regs = [SX + i for i in range(16)] + [SM + i for i in range(4)]
    for r in regs: A(f"v_fma_f32 {v(r)}, {v(r)}, s60, -{v(T0)}")
    for r in regs: A(f"v_exp_f32 {v(r)}, {v(r)}")
    A("s_nop 0")
    A(f"v_add_f32 {v(T0)}, {v(regs[0])}, {v(regs[1])}")
    for r in regs[2:]: A(f"v_add_f32 {v(T0)}, {v(T0)}, {v(r)}")
    A(f"""
    v_mov_b32 {v(T1)}, {v(T0)}
    s_nop 1
    v_permlane32_swap_b32 {v(T0)}, {v(T1)}
    v_add_f32 {v(T0)}, {v(T0)}, {v(T1)}
    v_rcp_f32 {v(T0)}, {v(T0)}
    s_nop 0
    """)
    for r in regs: A(f"v_mul_f32 {v(r)}, {v(r)}, {v(T0)}")
    for i in range(8): A(f"v_cvt_pk_bf16_f32 {v(P0+i)}, {v(SX+2*i)}, {v(SX+2*i+1)}")
    for i in range(2): A(f"v_cvt_pk_bf16_f32 {v(PM+i)}, {v(SM+2*i)}, {v(SM+2*i+1)}")
    A(f"""
    s_waitcnt vmcnt(0)
    s_nop 0
    v_mfma_f32_32x32x16_bf16 {v(O,16)}, {v(V_,4)}, {v(P0,4)}, 0
    v_mfma_f32_32x32x16_bf16 {v(O,16)}, {v(V_+4,4)}, {v(P1,4)}, {v(O,16)}
    v_mfma_f32_32x32x16_bf16 {v(O,16)}, {v(VM,4)}, {v(PM,4)}, {v(O,16)}
    s_lshl_b32 s60, s{s_item}, 13
    s_add_u32 s60, s60, {WS_OX}
    s_nop 10
    """)
    for i in range(8): A(f"v_cvt_pk_bf16_f32 {v(O+i)}, {v(O+2*i)}, {v(O+2*i+1)}")
    A(f"buffer_store_dwordx4 {v(O,4)}, {v(XV_V)}, {srd(SRD_WS)}, s60 offen{sc}")
    A(f"buffer_store_dwordx4 {v(O+4,4)}, {v(XV_V)}, {srd(SRD_WS)}, s60 offen offset:1024{sc}")


OV_L16, OV_RD, OV_ST, OV_A = 160, 161, 162, 163
O_RED = 131072
def O_setup(A, s_cb, keep=False):
    T0, T1, VD, VT = 164, 165, 166, 167
    A(f"""
    v_lshrrev_b32 {v(T0)}, 2, v1
    v_mul_u32_u24 {v(VD)}, 1152, {v(T0)}
    v_and_b32 {v(T0)}, 3, v1
    v_lshl_add_u32 {v(VD)}, {v(T0)}, 4, {v(VD)}
    s_lshl_b32 s60, s{s_cb}, 6
    s_mul_i32 s61, s{S_WAVE}, {1024*1152}
    s_add_u32 s60, s60, s61
    s_lshl_b32 s63, s{S_WAVE}, 15
    v_bfe_u32 {v(T0)}, v1, 2, 2
    v_lshrrev_b32 {v(T1)}, 5, v1
    v_lshl_add_u32 {v(T0)}, {v(T1)}, 2, {v(T0)}
    v_lshlrev_b32 {v(VT)}, 6, {v(T0)}
    v_bfe_u32 {v(T0)}, v1, 4, 1
    v_lshl_add_u32 {v(VT)}, {v(T0)}, 5, {v(VT)}
    v_and_b32 {v(T0)}, 3, v1
    v_lshl_add_u32 {v(VT)}, {v(T0)}, 3, {v(VT)}
    v_add_u32 {v(VT)}, s63, {v(VT)}
    """)
    def dma(hh):
        for n in range(8):
            A(f"s_add_u32 m0, s63, {(hh & 3)*8192 + n*1024}")
            A(f"s_add_u32 s62, s60, {(hh*128 + n*16)*1152}")
            A(f"buffer_load_dwordx4 {v(VD)}, {srd(SRD_WO)}, s62 offen lds")
    for hh in range(4): dma(hh)
    for hh in range(8):
        A(f"s_waitcnt vmcnt({min(3, 7-hh)*8})")
        for ks in range(8):
            for t in range(2):
                off = (hh & 3) * 8192 + (ks * 16 + t * 8) * 64
                A(f"ds_read_b64_tr_b16 {a((hh*8+ks)*4 + 2*t, 2)}, {v(VT)} offset:{off}")
        if hh + 4 < 8:
            A("s_waitcnt lgkmcnt(0)")
            dma(hh + 4)
    A("s_waitcnt lgkmcnt(0)")
    if not keep: O_addr(A, s_cb)

def O_addr(A, s_cb):
    T0 = 164
    A(f"""
    v_lshlrev_b32 {v(OV_A)}, 4, v1
    s_lshl_b32 s60, s{S_WAVE}, 12
    s_add_u32 s60, s60, {O_RED}
    v_add_u32 {v(OV_L16)}, s60, {v(OV_A)}
    s_lshl_b32 s60, s{S_WAVE}, 10
    s_add_u32 s60, s60, {O_RED}
    v_add_u32 {v(OV_RD)}, s60, {v(OV_A)}
    s_lshl_b32 s60, s{S_WAVE}, 16
    v_add_u32 {v(OV_A)}, s60, {v(OV_A)}
    v_and_b32 {v(T0)}, 31, v1
    v_mul_u32_u24 {v(OV_ST)}, 2304, {v(T0)}
    v_lshrrev_b32 {v(T0)}, 5, v1
    v_lshl_add_u32 {v(OV_ST)}, {v(T0)}, 3, {v(OV_ST)}
    s_lshl_b32 s60, s{s_cb}, 6
    s_lshl_b32 s61, s{S_WAVE}, 4
    s_add_u32 s60, s60, s61
    s_add_u32 s60, s60, 1152
    v_add_u32 {v(OV_ST)}, s60, {v(OV_ST)}
    """)

def O_item(A, s_seg, s_par, s_qt=None):
    NR = 32
    F = 8
    ACC = 168
    R = 136
    A(f"""
    s_lshl_b32 s60, s{s_seg}, 18
    s_add_u32 s60, s60, {WS_OX}
    """)
    if s_qt is None:
        def ld(i):
            if i % 4 == 0 and i > 0:
                A("s_add_u32 s60, s60, 4096")
            A(f"buffer_load_dwordx4 {v(F+4*(i%NR),4)}, {v(OV_A)}, {srd(SRD_WS)}, s60 offen offset:{(i&3)*1024} sc1")
        for i in range(NR): ld(i)
        for i in range(64):
            A(f"s_waitcnt vmcnt({min(NR-1, 63-i)})")
            A(f"v_mfma_f32_32x32x16_bf16 {v(ACC,16)}, {a(4*i,4)}, {v(F+4*(i%NR),4)}, {'0' if i == 0 else v(ACC,16)}")
            if i + NR < 64: ld(i + NR)
    else:
        G, RD, T = 140, 141, 142
        A(f"""
        v_lshrrev_b32 {v(T)}, 3, v1
        v_lshlrev_b32 {v(G)}, 9, {v(T)}
        v_and_b32 {v(T)}, 7, v1
        v_lshl_add_u32 {v(G)}, {v(T)}, 4, {v(G)}
        s_lshl_b32 s61, s{s_qt}, 7
        s_lshl_b32 s62, s{S_WAVE}, 16
        s_add_u32 s61, s61, s62
        s_add_u32 s60, s60, s61
        s_lshl_b32 s62, s{S_WAVE}, 14
        s_add_u32 s62, s62, 32768
        """)
        for n in range(16):
            A(f"s_add_u32 m0, s62, {n*1024}\ns_nop 0\nbuffer_load_dwordx4 {v(G)}, {srd(SRD_WS)}, s60 offen sc1 lds\ns_add_u32 s60, s60, 4096")
        A(f"""
        v_lshrrev_b32 {v(RD)}, 5, v1
        v_lshlrev_b32 {v(RD)}, 7, {v(RD)}
        v_lshl_add_u32 {v(RD)}, {v(T)}, 4, {v(RD)}
        v_add_u32 {v(RD)}, s62, {v(RD)}
        s_mul_i32 s61, s{s_qt}, {8*2304}
        v_add_u32 {v(OV_ST)}, s61, {v(OV_ST)}
        v_bfe_u32 {v(T)}, v1, 3, 2
        v_cmp_eq_u32 vcc, 0, {v(T)}
        v_mov_b32 {v(T)}, 0x40000000
        s_nop 0
        v_cndmask_b32 {v(OV_ST)}, {v(T)}, {v(OV_ST)}, vcc
        """)
        NRD = 8
        def rd(i):
            if i % 4 == 0: A(f"s_waitcnt vmcnt({15 - i // 4})")
            A(f"ds_read_b128 {v(F+4*(i%NRD),4)}, {v(RD)} offset:{i*256}")
        for i in range(NRD): rd(i)
        for i in range(64):
            A(f"s_waitcnt lgkmcnt({min(NRD-1, 63-i)})")
            A(f"v_mfma_f32_32x32x16_bf16 {v(ACC,16)}, {a(4*i,4)}, {v(F+4*(i%NRD),4)}, {'0' if i == 0 else v(ACC,16)}")
            if i + NRD < 64: rd(i + NRD)
    A(f"""
    v_add_u32 {v(R)}, s{s_par}, {v(OV_L16)}
    v_add_u32 {v(R+1)}, s{s_par}, {v(OV_RD)}
    s_xor_b32 s{s_par}, s{s_par}, 16384
    s_mul_i32 s60, s{s_seg}, {32*2304}
    s_nop 8
    """)
    for q in range(4):
        A(f"ds_write_b128 {v(R)}, {v(ACC+4*q,4)} offset:{q*1024}")
    A("s_waitcnt lgkmcnt(0)\ns_barrier")
    for q in range(4):
        A(f"ds_read_b128 {v(ACC+4*q,4)}, {v(R+1)} offset:{q*4096}")
    A("s_waitcnt lgkmcnt(2)")
    A(f"v_pk_add_f32 {v(ACC,2)}, {v(ACC,2)}, {v(ACC+4,2)}\nv_pk_add_f32 {v(ACC+2,2)}, {v(ACC+2,2)}, {v(ACC+6,2)}")
    A("s_waitcnt lgkmcnt(0)")
    A(f"v_pk_add_f32 {v(ACC+8,2)}, {v(ACC+8,2)}, {v(ACC+12,2)}\nv_pk_add_f32 {v(ACC+10,2)}, {v(ACC+10,2)}, {v(ACC+14,2)}")
    A(f"v_pk_add_f32 {v(ACC,2)}, {v(ACC,2)}, {v(ACC+8,2)}\nv_pk_add_f32 {v(ACC+2,2)}, {v(ACC+2,2)}, {v(ACC+10,2)}")
    A(f"""
    v_cvt_pk_bf16_f32 {v(ACC)}, {v(ACC)}, {v(ACC+1)}
    v_cvt_pk_bf16_f32 {v(ACC+1)}, {v(ACC+2)}, {v(ACC+3)}
    buffer_store_dwordx2 {v(ACC,2)}, {v(OV_ST)}, {srd(SRD_OUT)}, s60 offen
    """)
```

```python
from common import *
import math, struct, sys, os

WSTR = 36864
L_Q = 34816
L_K = 34816 + WSTR
L_O = 34816 + 2 * WSTR
L_MEMF = 145408
L_KX = 145408 + 9216
L_V = L_MEMF + 4096
HI = 98304
PSLOT = 72 * 4096
MSLOT = 9216
SPIN = 200000
CEXP = (128 ** -0.5) * math.log2(math.e)
def f32bits(x): return struct.unpack("<I", struct.pack("<f", x))[0]

def WQ(kk): return wreg(kk * 8, 8)
def WK(kk): return wreg(144 + kk * 8, 8)
def WO(p, ks): return wreg(288 + (p * 4 + ks) * 8, 8)
def WO8(ks): return wreg(288 + 128 + ks * 4, 4)

class LQ:
    def __init__(self, A, name): self.A, self.name, self.q = A, name, []
    def push(self, tag, n=1): self.q += [tag] * n; assert len(self.q) <= (15 if self.name == "lgkmcnt" else 63), self.q
    def wait(self, tag):
        if tag not in self.q: return
        idx = max(i for i, t in enumerate(self.q) if t == tag)
        self.A(f"s_waitcnt {self.name}({len(self.q) - 1 - idx})")
        del self.q[:idx + 1]
    def clear(self): self.q = []

def mod_R(A, s_head, sc="", pfx="R", abort="R_abort", last=63, prof=False, RD_=(0, 0, 0, 1, 2), CD=0, hooks=None, WARMD=2, cnt=False,
          CDN=0, fixseg=False, nokm=False, x_nowv=False, trace=False, RGAP=0, CGAP=0, ld=' sc1', tq=None, merged=False, wbar=False, worder='qk', wnt='', tstart=False, ARMAT=9, NVMIX=5, HELP=0, HAT=27, MW=3, HOLD=0, KXE=0, RAL=0, PVO=0, TAG1=0, X4H=0, tavg=False, H1=0, PSW=0, QE=0, R1N=4, EL=26, eflag=True, EFAT=13, WAT=14, FAT=16, tstep=False, CDN3=0, nowarm=False, R2AT=1, R3AT=7, B2AT=6, B3AT=13):
    assert not HOLD and eflag and (R2AT < R3AT and R3AT + 1 <= B2AT if KXE else R3AT > B2AT and R2AT + 2 < B2AT)
    def TQ(tag):
        if tq and tag in tq: A(f"s_memtime s[{8+2*tq.index(tag)}:{9+2*tq.index(tag)}]")

    def TR(i):
        if trace: A(f"s_memrealtime s[{8+2*i}:{9+2*i}]")

    L = lambda n: f"{pfx}_{n}"
    def TS(i):
        r = 98 if i == 1 else 8 + 2 * i
        if tstart: A(f"s_memrealtime s[{r}:{r+1}]\ns_waitcnt lgkmcnt(0)")
    W = S_WAVE
    hooks = hooks or {}
    def PH(i):
        if not prof: return
        A(f"""
        s_waitcnt lgkmcnt(0)
        s_memtime s[96:97]
        s_waitcnt lgkmcnt(0)
        s_sub_u32 s99, s96, s98
        s_mov_b32 s98, s96
        s_mov_b64 exec, {1 << i}
        v_add_u32 v1, s99, v1
        s_mov_b64 exec, -1
        """)
    TMP = 0
    IDX, SELV, vPST, vRED, vPUB, vCON, vAF, vWV, vQW, vQR, vKX, vOW, vVX, vSP = range(2, 16)
    vC1 = 1
    assert not prof
    WVR = 16
    D0 = 24
    sSTEP, sPW, sPR, sMW, sMR, sMA, sRED, sSEG = 64, 65, 66, 67, 68, 69, 70, 71
    sLO32, sHI32, sEVEN, sN8 = 72, 74, 76, 78
    sB2 = 81
    sKVO = 3
    sWOF = 80
    sC = 82
    sRDLY, sWB, sB1 = 84, 85, 59
    sB3, sM3, sPRG = 66, 57, 4
    sRDLY2 = 96
    sPM = sEVEN
    sSEL = 86
    sT0, sT1, sT2, sSPIN, sT3, sT4 = 60, 61, 62, 63, 94, 95
    T0, T1, T2 = D0, D0 + 1, D0 + 2
    stamp(A, 8, s_id=s_head)
    hstamp(A, 12)
    def bits(dst, terms, add=None):
        first = True
        for (off, n, sh) in terms:
            A(f"v_bfe_u32 {v(T2)}, v1, {off}, {n}")
            if first:
                A(f"v_lshlrev_b32 {v(dst)}, {sh}, {v(T2)}"); first = False
            else:
                A(f"v_lshl_add_u32 {v(dst)}, {v(T2)}, {sh}, {v(dst)}")
        if add is not None:
            A(f"v_add_u32 {v(dst)}, {add}, {v(dst)}")
    vWA, vWB = D0 + 52, D0 + 53
    vTR = [D0 + 44, D0 + 45]
    vTO = [D0 + 46 + k for k in range(4)]
    vTD = [D0 + 28 + k for k in range(4)]
    X0, X1 = D0 + 8, D0 + 9
    sWL = 7
    VS = D0 + 12
    A(f"""
    s_lshl_b32 s{sT0}, s{s_head}, 8
    s_lshr_b32 s{sT1}, s{W}, 1
    s_lshl_b32 s{sT1}, s{sT1}, 7
    s_add_u32 s{sT0}, s{sT0}, s{sT1}
    s_and_b32 s{sT1}, s{W}, 1
    s_lshl_b32 s{sT1}, s{sT1}, 18
    s_add_u32 s{sT0}, s{sT0}, s{sT1}
    s_mul_i32 s{sWL}, s{W}, {WSTR}
    """)
    bits(vWA, [(3, 3, 13), (0, 3, 4)], f"s{sT0}")
    grp = lambda ch: [("o", (p, kb2)) for p in range(5) for kb2 in range(2)] if ch == 'o' else [(ch, kb) for kb in range(9)]
    if len(worder) == 2: worder = worder + 'o'
    if worder == 'mix3':
        a_, b_ = grp('k') + grp('q') + grp('v')[:NVMIX], grp('o')
        na = len(a_); chunks = []
        while a_ or b_:
            if len(b_) * na >= len(a_) * 10 and b_ and chunks: chunks.append(b_.pop(0))
            else: chunks.append(a_.pop(0))
        chunks += grp('v')[NVMIX:]
    elif worder in ('mix', 'mix2'):
        a_, b_ = grp('k') + grp('q'), grp('o')
        if worder == 'mix2': a_ = [x for pr in zip(grp('k'), grp('q')) for x in pr]
        chunks = []
        while a_ or b_:
            if len(b_) * 18 >= len(a_) * 10 and b_ and chunks: chunks.append(b_.pop(0))
            else: chunks.append(a_.pop(0))
        chunks += [("v", kb) for kb in range(9)]
    else:
        chunks = grp(worder[0]) + grp(worder[1]) + grp(worder[2]) + [("v", kb) for kb in range(9)]
    A(f"""
    v_lshrrev_b32 {v(X0)}, 4, v1
    s_lshl_b32 s{sT0}, s{W}, 4
    v_add_u32 {v(X0)}, s{sT0}, {v(X0)}
    v_mul_u32_u24 {v(X0)}, 1152, {v(X0)}
    s_mul_i32 s{sT0}, s{s_head}, 147456
    v_add_u32 {v(X0)}, s{sT0}, {v(X0)}
    """)
    bits(vWB, [(0, 4, 4)], v(X0))
    NCH = len(chunks)
    vpos = {ix: c for c, (k_, ix) in enumerate(chunks) if k_ == 'v'}
    slot_map = {}; issue_after = {}
    nextpos = dict(vpos); prev_in_slot = {}
    for c in range(NCH - 1, -1, -1):
        k_, ix = chunks[c]
        if k_ == 'v': slot_map[c] = ix; continue
        sl = max((x for x in range(9) if nextpos[x] > c), key=lambda x: nextpos[x])
        slot_map[c] = sl; prev_in_slot[nextpos[sl]] = c; nextpos[sl] = c
    run = -1
    for c in range(NCH):
        run = max(run, prev_in_slot.get(c, -1))
        issue_after[c] = run
        assert run < c
    slot_of = lambda c: slot_map[c]
    vq = LQ(A, "vmcnt")
    LASTI = issue_after[NCH - 1]
    def wdma(c):
        kind, ix = chunks[c]; sl = slot_of(c)
        vq.push(f"C{c}", 4)
        for n in range(4):
            A(f"s_add_u32 m0, s{sWL}, {sl*4096 + n*1024}")
            if kind == "o":
                p, kb2 = ix
                A(f"s_mov_b32 s{sT1}, {(kb2*64 + n*4)*1152 + p*256}")
                A(f"buffer_load_dwordx4 {v(vWB)}, {srd(SRD_WO)}, s{sT1} offen{wnt} lds")
            else:
                A(f"s_mov_b32 s{sT1}, {ix*524288 + n*65536}")
                A(f"buffer_load_dwordx4 {v(vWA)}, {srd({'q': SRD_WQ, 'k': SRD_WK, 'v': SRD_WV}[kind])}, s{sT1} offen{wnt} lds")
    for c in range(NCH):
        if issue_after[c] == -1: wdma(c)
    TS(1)
    if 'resolve' in hooks: hooks['resolve']()
    TS(2)
    A.c("R setup")
    A(f"""
    s_mov_b32 s{sLO32}, -1
    s_mov_b32 s{sLO32+1}, 0
    s_mov_b32 s{sHI32}, 0
    s_mov_b32 s{sHI32+1}, -1
    s_mov_b32 s{sEVEN}, 0x0f0f0f0f
    s_mov_b32 s{sEVEN+1}, 0x0f0f0f0f
    s_mov_b32 s{sN8}, 0xff00ff00
    s_mov_b32 s{sN8+1}, 0xff00ff00
    s_mov_b32 s{sC}, {f32bits(CEXP)}
    s_mov_b32 s{sC+1}, {f32bits(CEXP)}
    s_lshl_b32 s{sWB}, s{W}, 10
    s_lshl_b32 s{sPRG}, s{s_head}, 7
    s_add_u32 s{sPRG}, s{sPRG}, {FLAG_RP}
    """)
    assert R1N == 4
    A(f"s_sub_u32 s{sB3}, 8192, s{sWB}\ns_mov_b32 s{sM3}, {L_MEMF + 8192}")
    A(f"s_mov_b32 s{sB1}, {WS_PART}\ns_mov_b32 s{sB2}, 0x40000000\ns_cmp_eq_u32 s{W}, 0\ns_cselect_b32 s{sT0}, s{sB2}, s{sB1}\ns_cselect_b32 s{sB2}, s{sB1}, s{sB2}\ns_mov_b32 s{sB1}, s{sT0}")
    for r in range(4):
        m16 = sum(1 << i for i in range(16) if 2 * (i & 1) + (i >> 3) == r)
        m = m16 | (m16 << 16)
        A(f"s_mov_b32 s{sSEL+2*r}, {m}\ns_mov_b32 s{sSEL+2*r+1}, {m}")
    A(f"""
    v_mov_b32 {v(IDX)}, 0x44444444
    v_mov_b32 {v(T0)}, 0xeeeeeeee
    v_cndmask_b32 {v(IDX)}, {v(IDX)}, {v(T0)}, s[{sN8}:{sN8+1}]
    v_mov_b32 {v(SELV)}, 0x3f800000
    v_mov_b32 {v(T0)}, 0x3f80
    v_cndmask_b32 {v(SELV)}, {v(SELV)}, {v(T0)}, s[{sEVEN}:{sEVEN+1}]
    s_mov_b32 s{sPM}, -1
    s_mov_b32 s{sPM+1}, -1
    v_lshlrev_b32 {v(T0)}, 4, v1
    s_add_u32 s{sT0}, s{sWB}, {HI}
    v_add_u32 {v(vCON)}, s{sT0}, {v(T0)}
    s_mul_i32 s{sT0}, s{W}, {WSTR}
    v_add_u32 {v(vWV)}, s{sT0}, {v(T0)}
    s_lshl_b32 s{sT0}, s{W}, 5
    s_add_u32 s{sT0}, s{sT0}, s{s_head}           ; unit
    s_lshl_b32 s{sT1}, s{sT0}, 12
    s_cmp_lt_u32 s{sT0}, 72
    s_cselect_b32 s{sRED}, 1, 0
    s_cselect_b32 s{sT1}, s{sT1}, 0x40000000
    v_add_u32 {v(vRED)}, s{sT1}, {v(T0)}
    s_lshr_b32 s{sT1}, s{sT0}, 1
    s_lshl_b32 s{sT4}, s{sT1}, 5
    s_lshl_b32 s{sT1}, s{sT1}, 8
    s_and_b32 s{sT2}, s{sT0}, 1
    s_mul_i32 s{sT3}, s{sT2}, {4*1152}
    s_add_u32 s{sT4}, s{sT4}, s{sT3}
    s_lshl_b32 s{sT2}, s{sT2}, 6
    s_add_u32 s{sT1}, s{sT1}, s{sT2}
    s_lshr_b32 s{sT2}, s{sT0}, 4
    s_mov_b32 s{sRDLY}, {RD_[0]}
    """)
    for o in range(1, 5):
        A(f"s_cmp_eq_u32 s{sT2}, {o}\ns_cselect_b32 s{sRDLY}, {RD_[o]}, s{sRDLY}")
    bits(vPUB, [(2, 1, 7), (4, 2, 4), (0, 2, 2)], f"s{sT1}")
    A(f"s_lshl_b32 s{sT1}, s{W}, 1\ns_xor_b32 s{sT2}, s{s_head}, s{sT1}\ns_lshl_b32 s{sT2}, s{sT2}, 7\ns_lshl_b32 s{sT1}, s{W}, 13")
    bits(vPST, [(5, 1, 10), (4, 1, 7)])
    A(f"v_xor_b32 {v(T1)}, s{sT2}, {v(vPST)}\nv_add_u32 {v(T1)}, s{sT1}, {v(T1)}")
    if X4H:
        A(f"s_lshl_b32 s{sT1}, s{W}, 2\ns_xor_b32 s{sT2}, s{s_head}, s{sT1}\ns_lshl_b32 s{sT2}, s{sT2}, 7\ns_lshl_b32 s{sT1}, s{W}, 14")
        bits(vPST, [(4, 1, 8), (3, 1, 7)])
        A(f"v_xor_b32 {v(T1)}, s{sT2}, {v(vPST)}\nv_add_u32 {v(T1)}, s{sT1}, {v(T1)}")
        bits(vPST, [(5, 1, 16), (4, 1, 13), (3, 1, 12), (0, 3, 4)], v(T1))
        A(f"s_cmp_eq_u32 s{W}, 2\ns_cbranch_scc0 {L('x4h')}\ns_lshl_b32 s{sT1}, s{s_head}, 12\nv_add_u32 {v(vRED)}, s{sT1}, {v(vRED)}\n{L('x4h')}:")
    else:
        bits(vPST, [(5, 1, 15), (4, 1, 12), (0, 4, 3)], v(T1))
    A(f"s_lshl_b32 s{sT1}, s{W}, 9\ns_add_u32 s{sT2}, s{sT1}, {L_Q}")
    bits(vQW, [(5, 1, 8), (0, 4, 4), (4, 1, 3)], f"s{sT2}")
    bits(vQR, [(5, 1, 8), (4, 1, 6), (2, 2, 4), (0, 1, 3)], L_Q)
    bits(vKX, [(4, 2, 9), (3, 1, 8), (0, 3, 4)], HI)
    bits(vAF, [(4, 2, 7), (0, 3, 4)], HI)
    A(f"s_add_u32 s{sT2}, s{sT1}, {L_O}")
    bits(vOW, [(5, 1, 7), (0, 3, 4), (4, 1, 3)], f"s{sT2}")
    A(f"s_lshl_b32 s{sT1}, s{W}, 11")
    bits(vVX, [(4, 2, 9), (0, 4, 4)], f"s{sT1}")
    ARM = D0 + 4
    X0, X1 = D0 + 8, D0 + 9
    for i in range(4): A(f"v_mov_b32 {v(ARM+i)}, -1")
    A(f"s_cmp_eq_u32 s{sRED}, 0\ns_cbranch_scc1 {L('noarm')}")
    bits(X1, [(4, 2, 0)])
    A(f"v_mul_u32_u24 {v(X1)}, 1152, {v(X1)}")
    bits(X0, [(0, 3, 2)], v(X1))
    A(f"buffer_load_dword {v(vSP)}, {v(X0)}, {srd(SRD_M0)}, s{sT4} offen")
    A(f"s_mov_b32 s{sT0}, {WS_PART}")
    for i in range(4):
        A(f"buffer_store_dwordx4 {v(ARM,4)}, {v(vRED)}, {srd(SRD_WS)}, s{sT0} offen offset:{i*1024} sc1")
    A(f"s_mov_b64 exec, s[{sEVEN}:{sEVEN+1}]")
    for sl in range(3):
        A(f"s_mov_b32 s{sT0}, {WS_MEMB + sl*MSLOT}")
        A(f"buffer_store_dword {v(ARM)}, {v(vPUB)}, {srd(SRD_WS)}, s{sT0} offen sc1")
    A("s_mov_b64 exec, -1")
    A.label(L('noarm'))
    if merged:
        A(f"""
        s_cmp_lg_u32 s{W}, 3
        s_cbranch_scc1 {L('nz')}
        v_lshlrev_b32 {v(X0)}, 2, v1
        v_mov_b32 {v(X1)}, 0
        s_lshl_b32 s{sT0}, s{s_head}, 8
        s_add_u32 s{sT0}, s{sT0}, {FLAG_KV}
        buffer_store_dword {v(X1)}, {v(X0)}, {srd(SRD_WS)}, s{sT0} offen sc1
        v_lshlrev_b32 {v(X0)}, {5 + OXS_LOG}, v1
        s_lshl_b32 s{sT0}, s{s_head}, {OXS_LOG}
        s_add_u32 s{sT0}, s{sT0}, {FLAG_OX}
        buffer_store_dword {v(X1)}, {v(X0)}, {srd(SRD_WS)}, s{sT0} offen sc1
        v_mov_b32 {v(X0)}, s{sPRG}
        buffer_store_dword {v(X1)}, {v(X0)}, {srd(SRD_WS)}, 0 offen sc1
{L('nz')}:
        """)
    A(f"""
    s_and_b32 s{sT0}, s{W}, 2
    s_mul_i32 s{sT0}, s{sT0}, {WSTR}
    s_and_b32 s{sT1}, s{W}, 1
    s_lshl_b32 s{sT1}, s{sT1}, 6
    s_add_u32 s{sT0}, s{sT0}, s{sT1}
    s_lshl_b32 s{sT1}, s{W}, 5
    """)
    bits(vTR[0], [(4, 2, 9), (2, 1, 7), (3, 1, 5), (0, 2, 3)], f"s{sT0}")
    A(f"v_add_u32 {v(vTR[1])}, {WSTR}, {v(vTR[0])}")
    bits(vTO[0], [(4, 2, 10), (2, 1, 8), (3, 1, 7), (0, 2, 3)], f"s{sT1}")
    bits(vTD[0], [(4, 1, 11), (2, 2, 8), (0, 2, 3)], f"s{sT1}")
    A(f"v_bfe_u32 {v(T2)}, v1, 5, 1\nv_mul_u32_u24 {v(T2)}, {WSTR}, {v(T2)}\nv_add_u32 {v(vTD[0])}, {v(vTD[0])}, {v(T2)}")
    for k in range(1, 4): A(f"v_add_u32 {v(vTO[k])}, {k*WSTR}, {v(vTO[0])}")
    A(f"v_add_u32 {v(vTD[1])}, {2*WSTR}, {v(vTD[0])}")
    def trread(dst_fn, h, sl):
        for t, ro in enumerate((0, 2, 16, 18)):
            A(f"ds_read_b64_tr_b16 {dst_fn(t)}, {v(vTR[h])} offset:{sl*4096 + ro*128}")
    def trread_o(dst_fn, h, sl):
        for t, (k, ro) in enumerate(((0, 0), (0, 2), (1, 0), (1, 2))):
            A(f"ds_read_b64_tr_b16 {dst_fn(t)}, {v(vTO[2*h+k])} offset:{sl*4096 + ro*256}")
    sub = lambda base, t: wreg(base + 2 * t, 2)
    print('weight seq', ''.join(k for k, _ in chunks), 'slots', [slot_map[c] for c in range(NCH)], 'after', [issue_after[c] for c in range(NCH)], file=sys.stderr) if 'WSEQ' in os.environ else None
    assert issue_after[ARMAT] >= 0 and all(chunks[c][0] != 'o' for c in range(LASTI + 1, NCH))
    sKV, sMODE, sEARLY, sWARMED = 5, 6, 3, 7
    def warm0():
        A(f"v_lshlrev_b32 {v(X0)}, 7, v1\ns_lshl_b32 s{sT0}, s{s_head}, 13")
        for sg in range(WARMD):
            A(f"s_add_u32 s{sT1}, s{sT0}, {WS_KX + sg*RECSZ}\nbuffer_load_dword {v(X1)}, {v(X0)}, {srd(SRD_WS)}, s{sT1} offen sc1")
            A(f"s_add_u32 s{sT1}, s{sT0}, {WS_VX + sg*RECSZ}\nbuffer_load_dword {v(X1)}, {v(X0)}, {srd(SRD_WS)}, s{sT1} offen sc1")
    for c in range(NCH):
        kind, ix = chunks[c]; sl = slot_of(c)
        vq.wait(f"C{c}")
        A("s_waitcnt lgkmcnt(0)\ns_barrier")
        if kind in "qk":
            base = 0 if kind == "q" else 144
            for h in range(2): trread(lambda t: sub(base + (2 * ix + h) * 8, t), h, sl)
        elif kind == "o":
            p, kb2 = ix
            for h in range(2):
                if p < 4: trread_o(lambda t: sub(288 + (p * 4 + 2 * kb2 + h) * 8, t), h, sl)
                else:
                    for t in range(2):
                        A(f"ds_read_b64_tr_b16 {wreg(288 + 128 + (2*kb2+h)*4 + 2*t, 2)}, {v(vTD[h])} offset:{sl*4096 + 4*t*256}")
        else:
            trread(lambda t: v(VS + 2 * t, 2), 0, sl)
            if ix < 8: trread(lambda t: v(VS + 8 + 2 * t, 2), 1, sl)
            else: trread(lambda t: v(WVR + 2 * t, 2), 1, sl)
        A("s_waitcnt lgkmcnt(0)\ns_barrier")
        if kind == "v":
            for q in range(4 if ix < 8 else 2):
                A(f"ds_write_b128 {v(vWV)}, {v(VS+4*q,4)} offset:{ix*4096 + q*1024}")
        if c == 0: TS(3)
        if c == 9: TS(4)
        if c == NCH - 1: TS(5)
        if c == ARMAT:
            A(f"""
            s_cmp_lg_u32 s{W}, 0
            s_cbranch_scc1 {L('armed')}
            v_mov_b32 {v(T0)}, 1
            v_mov_b32 {v(T1)}, {DBG_RARM}
            s_mov_b64 exec, 1
            buffer_atomic_add {v(T0)}, {v(T1)}, {srd(SRD_DBG)}, 0 offen sc1
            s_mov_b64 exec, -1
{L('armed')}:
            s_cmp_eq_u32 s{sRED}, 0
            s_cbranch_scc1 {L('nom0')}
            v_min_u32 {v(vSP)}, -2, {v(vSP)}
            s_mov_b32 s{sT0}, {WS_MEMB}
            s_mov_b64 exec, s[{sEVEN}:{sEVEN+1}]
            buffer_store_dword {v(vSP)}, {v(vPUB)}, {srd(SRD_WS)}, s{sT0} offen sc1
            s_mov_b64 exec, -1
            s_nop 0
            v_mov_b32 {v(vSP)}, -1
{L('nom0')}:
            """)
        for c2 in range(NCH):
            if issue_after[c2] == c: wdma(c2)
        if c == LASTI - 1:
            vq.push('E', 2)
            A(f"""
            v_lshlrev_b32 {v(X1)}, 2, v1
            s_lshl_b32 s{sT1}, s{s_head}, 8
            s_add_u32 s{sT1}, s{sT1}, {FLAG_KV}
            buffer_load_dword {v(D0+50)}, {v(X1)}, {srd(SRD_DBG)}, 0 offen sc1
            buffer_load_dword {v(D0+51)}, {v(X1)}, {srd(SRD_WS)}, s{sT1} offen sc1
            """)
        if c == NCH - 1:
            A(f"""
            v_readlane_b32 s{sEARLY}, {v(D0+50)}, {DBG_RARM//4}
            v_readlane_b32 s{sT1}, {v(D0+50)}, {DBG_OVH//4}
            v_cmp_ne_u32 vcc, 4, {v(D0+51)}
            s_cmp_eq_u32 s{sT1}, 0
            s_cselect_b32 s{sMODE}, 0, 1
            s_ff1_i32_b64 s{sKV}, vcc
            s_cmp_lt_i32 s{sKV}, 0
            s_cselect_b32 s{sKV}, 64, s{sKV}
            s_mov_b32 s{sWARMED}, 0
            """)
            if merged:
                A(f"""
                s_cmp_lg_u32 s{W}, 3
                s_cbranch_scc1 {L('nwe')}
                s_cmp_lt_u32 s{sKV}, {WARMD + 1}
                s_cbranch_scc1 {L('nwe')}
                """)
                warm0()
                A(f"s_mov_b32 s{sWARMED}, 1\n{L('nwe')}:")
        if c == LASTI:
            vq.push('P', 7)
            A(f"s_mov_b32 s{sT0}, {WS_PART}")
            for i in range(4):
                A(f"buffer_load_dwordx4 {v(D0+28+4*i,4)}, {v(vRED)}, {srd(SRD_WS)}, s{sT0} offen offset:{i*1024} sc1")
            for sl in range(3):
                A(f"s_mov_b32 s{sT0}, {WS_MEMB + sl*MSLOT}")
                A(f"buffer_load_dword {v(D0+46)}, {v(vPUB)}, {srd(SRD_WS)}, s{sT0} offen sc1")
    stamp(A, 9, s_id=s_head)
    hstamp(A, 13)
    AQ, AK, AV = D0, D0 + 4, D0 + 8
    AS = [D0 + 12 + 4 * i for i in range(4)]
    WR = [D0 + 28, D0 + 36, D0 + 44]
    korder = list(range(18))
    wvl = [kk for kk in korder if kk != 17]
    lg = LQ(A, "lgkmcnt")
    def wvread(f):
        if x_nowv: return
        o = wvl[f] * 2048; d = WR[f % 3]
        A(f"ds_read_b128 {v(d,4)}, {v(vWV)} offset:{o}")
        A(f"ds_read_b128 {v(d+4,4)}, {v(vWV)} offset:{o+1024}")
        lg.push(f"W{f}", 2)
    def kx_early():
        A(f"""
        s_sub_u32 s{sT0}, s{sWB}, 2048
        s_lshl_b32 s{sT0}, s{sT0}, 1
        s_add_u32 m0, s{sT0}, {L_KX}
        s_add_u32 s{sT1}, s{sSEG}, {WS_KX - HI}
        buffer_load_dwordx4 {v(vC1)}, {srd(SRD_WS)}, s{sT1} offen sc1 lds
        buffer_load_dwordx4 {v(vC1)}, {srd(SRD_WS)}, s{sT1} offen offset:1024 sc1 lds
        s_add_u32 m0, s{sT0}, {L_KX + 4096}
        s_add_u32 s{sT1}, s{sT1}, 4096
        buffer_load_dwordx4 {v(vC1)}, {srd(SRD_WS)}, s{sT1} offen sc1 lds
        buffer_load_dwordx4 {v(vC1)}, {srd(SRD_WS)}, s{sT1} offen offset:1024 sc1 lds
        """)
    def zero_acc():
        for i in range(12): A(f"v_mov_b32 {v(AQ+i)}, 0")
    def kv_wait(s_need, lab):
        A(f"""
        s_cmp_ge_u32 s{sKV}, s{s_need}
        s_cbranch_scc1 {lab}_ok
        s_waitcnt vmcnt(0)
        s_lshl_b32 s{sT1}, s{s_head}, 8
        s_add_u32 s{sT1}, s{sT1}, {FLAG_KV}
        v_lshrrev_b32 {v(TMP)}, 2, {v(vCON)}
        v_and_b32 {v(TMP)}, 255, {v(TMP)}
{lab}_p:
        buffer_load_dword {v(D0+40)}, {v(TMP)}, {srd(SRD_WS)}, s{sT1} offen sc1
        s_sub_u32 s{sSPIN}, s{sSPIN}, 1
        s_cbranch_scc1 {abort}
        s_waitcnt vmcnt(0)
        v_cmp_ne_u32 vcc, 4, {v(D0+40)}
        s_ff1_i32_b64 s{sKV}, vcc
        s_cmp_lt_i32 s{sKV}, 0
        s_cselect_b32 s{sKV}, 64, s{sKV}
        s_cmp_ge_u32 s{sKV}, s{s_need}
        s_cbranch_scc1 {lab}_ok
        s_sleep 4
        s_branch {lab}_p
{lab}_ok:
        """)
    A(f"""
    s_mov_b32 s{sSPIN}, {SPIN}
    v_lshlrev_b32 {v(T1)}, 2, v1
    s_cmp_ge_u32 s{sEARLY}, 32
    s_cbranch_scc1 {L('warmok')}
    s_mov_b32 s{sKV}, 0
    s_mov_b32 s{sWARMED}, 0
{L('warm')}:
    buffer_load_dword {v(T0)}, {v(T1)}, {srd(SRD_DBG)}, 0 offen sc1
    s_sub_u32 s{sSPIN}, s{sSPIN}, 1
    s_cbranch_scc1 {abort}
    s_waitcnt vmcnt(0)
    v_readlane_b32 s{sT0}, {v(T0)}, {DBG_RARM//4}
    v_readlane_b32 s{sT1}, {v(T0)}, {DBG_OVH//4}
    s_cmp_lt_u32 s{sT0}, 32
    s_cbranch_scc1 {L('warm')}
    s_cmp_eq_u32 s{sT1}, 0
    s_cselect_b32 s{sMODE}, 0, 1
{L('warmok')}:
    """)
    if merged:
        A(f"""
        s_cmp_lg_u32 s{W}, 3
        s_cbranch_scc1 {L('nkvi')}
        s_cmp_eq_u32 s{sWARMED}, 1
        s_cbranch_scc1 {L('nkvi')}
        s_waitcnt vmcnt(0)
        s_mov_b32 s{sT0}, {WARMD + 1}
        """)
        kv_wait(sT0, L('kvi'))
        warm0()
        A(f"{L('nkvi')}:")
    A(f"""
    s_mov_b32 s{sSTEP}, 0
    s_mov_b32 s{sPW}, {WS_PART}
    s_mov_b32 s{sMA}, {WS_MEMB + 2*MSLOT}
    s_mov_b32 s{sMW}, {WS_MEMB}
    s_mov_b32 s{sMR}, {WS_MEMB + MSLOT}
    s_lshl_b32 s{sSEG}, s{s_head}, 13
    s_mov_b32 s{sWOF}, 0x40000000
    s_cmp_lg_u32 s{W}, 3
    s_cselect_b32 s{sPRG}, s{sWOF}, s{sPRG}
    s_mov_b32 s{sKVO}, s{sWOF}
    s_cbranch_scc1 {L('nw3i')}
    s_lshl_b32 s{sKVO}, s{s_head}, 8
    s_add_u32 s{sKVO}, s{sKVO}, {FLAG_KV}
    v_lshlrev_b32 {v(vPUB)}, 2, v1
    s_mov_b32 s{sWOF}, {WS_KX + WARMD*RECSZ}
    v_lshlrev_b32 {v(vRED)}, 7, v1
    v_mov_b32 {v(vSP)}, 0
{L('nw3i')}:
    s_cmp_eq_u32 s{W}, 3
    s_cselect_b32 s{sT0}, 1024, s{sWB}
    v_subrev_u32 v1, s{sT0}, {v(vCON)}
    s_cmp_lt_u32 s{s_head}, {8 if PSW else 0}
    s_cselect_b32 s{sT0}, 0, 2
    s_cmp_eq_u32 s{W}, s{sT0}
    s_cselect_b32 s{sB1}, 1, 0
    s_cmp_eq_u32 s{W}, 3
    s_cselect_b32 s{sB1}, 1, s{sB1}
    s_waitcnt vmcnt(0) lgkmcnt(0)
    s_barrier
    """)
    zero_acc()
    if KXE:
        A(f"s_cmp_lt_u32 s{W}, 2\ns_cbranch_scc1 {L('nkxi')}"); kx_early(); A.label(L('nkxi'))
    if prof: A("v_mov_b32 v1, 0\ns_memtime s[98:99]\ns_waitcnt lgkmcnt(0)")
    TS(6)
    if tavg: A("s_mov_b32 s20, 0")
    if merged: A(f"s_cmp_eq_u32 s{sMODE}, 1\ns_cbranch_scc1 {L('loopS0')}x")
    if cnt: A("s_mov_b32 s20, 0\ns_mov_b32 s21, 0\ns_memtime s[96:97]\ns_memrealtime s[98:99]\ns_waitcnt lgkmcnt(0)\ns_mov_b32 s99, s96")
    RL = D0 + 52
    def sm(acc, a_, b): A(f"v_smfmac_f32_16x16x64_bf16 {v(acc,4)}, {a_}, {b}, {v(IDX)}")
    def mf(d, a_, b_, first):
        A(f"v_mfma_f32_16x16x32_bf16 {v(d,4)}, {a_}, {b_}, {'0' if first else v(d,4)}")
    def chk(r, br):
        A(f"""
        v_max3_u32 {v(TMP)}, {v(r)}, {v(r+1)}, {v(r+2)}
        v_max_u32 {v(TMP)}, {v(TMP)}, {v(r+3)}
        v_cmp_eq_u32 vcc, -1, {v(TMP)}
        {br}
        """)
    def spin(): A(f"s_sub_u32 s{sSPIN}, s{sSPIN}, 1\ns_cbranch_scc1 {abort}")
    def cload(r, so): A(f"buffer_load_dwordx4 {v(r,4)}, {v(vC1)}, {srd(SRD_WS)}, s{so} offen{ld}")
    def pk2(d, s_):
        A(f"v_cvt_pk_bf16_f32 {v(d)}, {v(s_)}, {v(s_+1)}")
        A(f"v_cvt_pk_bf16_f32 {v(d+1)}, {v(s_+2)}, {v(s_+3)}")
    def step_body(par, sc, md):
        LP = lambda n: L(n + md + str(par))
        nxt_loop = L('loop' + md + str(1 - par))
        A.label(LP('loop'))
        if RGAP: A("s_waitcnt vmcnt(2)")
        A.label(LP('loop') + "x")
        lg.clear()
        A(f"""
        s_mov_b32 s{sT3}, s{sMA}
        s_mov_b32 s{sMA}, s{sMW}
        s_mov_b32 s{sMW}, s{sMR}
        s_mov_b32 s{sMR}, s{sT3}
        s_mov_b32 s{sSPIN}, {SPIN}
        s_sub_u32 s{sT0}, s{sMA}, {HI}
        s_mov_b32 s{sT1}, s{sT0}
        s_add_u32 s{sT2}, s{sT0}, 4096
        s_add_u32 s{sT3}, s{sT0}, s{sB3}
        s_add_u32 s{sT4}, s{sSEG}, {WS_KX - HI}
        s_add_u32 m0, s{sWB}, {L_MEMF + R1N*1024}
        """)
        for f in range(3): wvread(f)
        A(f"s_cmp_eq_u32 s{sB1}, 0\ns_cbranch_scc1 {LP('cdj')}")
        if CD: A(f"s_sleep {CD}")
        TQ("cgo")
        def cload2(r):
            A(f"buffer_load_dwordx4 {v(r,4)}, {v(vC1)}, {srd(SRD_WS)}, s{sT1} offen sc1")
            A(f"buffer_load_dwordx4 {v(r+4,4)}, {v(vC1)}, {srd(SRD_WS)}, s{sT0} offen offset:1024 sc1")
        def cproc(r, y, br):
            A(f"""
            s_waitcnt vmcnt({y+1})
            ds_write_b128 {v(vC1)}, {v(r,4)} offset:{L_MEMF-HI}
            v_max3_u32 {v(TMP)}, {v(r)}, {v(r+1)}, {v(r+2)}
            s_waitcnt vmcnt({y})
            ds_write_b128 {v(vC1)}, {v(r+4,4)} offset:{L_MEMF-HI+1024}
            v_max3_u32 {v(TMP)}, {v(TMP)}, {v(r+3)}, {v(r+4)}
            v_max3_u32 {v(TMP)}, {v(TMP)}, {v(r+5)}, {v(r+6)}
            v_max_u32 {v(TMP)}, {v(TMP)}, {v(r+7)}
            v_cmp_eq_u32 vcc, -1, {v(TMP)}
            {br}
            """)
        if CGAP:
            cload2(AS[0]); A(f"s_sleep {CGAP}" if CGAP > 0 else f"s_nop {-CGAP}"); cload2(AS[2])
            A.label(LP('cp'))
            cproc(AS[0], 2, f"s_cbranch_vccnz {LP('cf')}")
        else:
            A.label(LP('cp'))
            cload2(AS[2]); spin()
            cproc(AS[2], 0, f"s_cbranch_vccnz {LP('cp')}")
        A.label(LP('cdj'))
        TQ("cdj")
        A("s_waitcnt lgkmcnt(0)\ns_barrier")
        if trace: TR(4); A("s_waitcnt lgkmcnt(0)")
        lg.clear()
        if cnt: A(f"s_sub_u32 s96, {SPIN}, s{sSPIN}\ns_add_u32 s20, s20, s96")
        PH(0)
        slot = lambda i: (i & 3) if i < 12 else (i - 12) % 3
        prev_user = lambda j: j - 4 if j < 15 else j - 3
        def aread(i):
            A(f"ds_read_b128 {v(AS[slot(i)],4)}, {v(vAF)} offset:{L_MEMF-HI+i*512}")
            lg.push(f"A{i}")
        def dma(so): A(f"buffer_load_dwordx4 {v(vCON)}, {srd(SRD_WS)}, s{so} offen sc1 lds")
        KXR = [D0 + 44, D0 + 48, D0 + 28, D0 + 32, D0 + 36, D0 + 40, D0 + 28, D0 + 32]
        VXF = [D0 + 52, D0 + 24]
        def kxread(n):
            A(f"ds_read_b128 {v(KXR[n],4)}, {v(vKX)} offset:{L_KX-HI+(n>>1)*2048+(n&1)*128}")
            lg.push(f"X{n}")
        TQ("start")
        aread(0); aread(1)
        if CGAP: A("s_waitcnt vmcnt(0)")
        aread(2); aread(3)
        f = 0
        nxt = 4
        late = []
        slow_n = [0]
        for i, kk in enumerate(korder):
            a_ = v(AS[slot(i)], 4)
            TQ(f"q{i}")
            if QE and i == 17:
                sm(AK, a_, WK(kk)); late.append((a_, None)); continue
            lg.wait(f"A{i}")
            sm(AQ, a_, WQ(kk))
            if QE and i == 16:
                lg.wait("A17"); sm(AQ, v(AS[slot(17)], 4), WQ(17))
            if RAL and i == RAL - 1: A(f"s_cmp_eq_u32 s{sRED}, 0\ns_cselect_b32 s97, 0x40000000, s{sMR}")
            if RAL and i == RAL: A(f"buffer_store_dword {v(vSP)}, {v(vPUB)}, {srd(SRD_WS)}, s97 offen{sc}"); slow_n[0] += 1
            if i == FAT and merged: A(f"buffer_store_dword {v(vSP)}, off, {srd(SRD_WS)}, s{sPRG} sc1"); slow_n[0] += 1
            if i == WAT and not nowarm: A(f"buffer_load_dword {v(TMP)}, {v(vRED)}, {srd(SRD_WS)}, s{sT3} offen sc1"); slow_n[0] += 1
            if i == WAT + 1 and not nowarm: A(f"buffer_load_dword {v(TMP)}, {v(vRED)}, {srd(SRD_WS)}, s{sT2} offen sc1"); slow_n[0] += 1
            if i == WAT + 3 and merged: A(f"buffer_load_dword {v(TMP)}, {v(vPUB)}, {srd(SRD_WS)}, s{sKVO} offen sc1"); slow_n[0] += 1
            if i == R2AT: dma(sT2)
            if i in (R2AT + 1, R2AT + 2) and not KXE: dma(sT4)
            if i == R3AT: dma(sT3)
            if i == R3AT + 1: A(f"buffer_load_dwordx4 {v(VXF[0],4)}, {v(vVX)}, {srd(SRD_WS)}, s{sT0} offen sc1")
            sm(AK, a_, WK(kk))
            if KXE:
                if i == R2AT: A(f"s_mov_b32 m0, s{sM3}\ns_add_u32 s{sT0}, s{sSEG}, {WS_VX}")
            else:
                if i == R2AT: A(f"s_add_u32 m0, s{sWB}, {L_KX}")
                if i == R2AT + 1: A(f"s_add_u32 m0, s{sWB}, {L_KX + 4096}\ns_add_u32 s{sT4}, s{sT4}, 4096")
                if i == R2AT + 2: A(f"s_mov_b32 m0, s{sM3}\ns_add_u32 s{sT0}, s{sSEG}, {WS_VX}")
            if i in (B2AT, B3AT) and not (KXE and i == B3AT):
                A(f"s_waitcnt vmcnt({(1 if KXE else 2) + slow_n[0]})\ns_barrier")
                while prev_user(nxt) < i: aread(nxt); nxt += 1
            if i == 8: A(f"s_lshr_b32 s{sT2}, s{sSEG}, 1")
            if i == 9: A(f"s_add_u32 s{sT1}, s{sT2}, {0x40000000 if nokm else WS_VM - L_Q}\ns_add_u32 s{sT4}, s{sT2}, {0x40000000 if nokm else WS_KM - L_Q}")
            if i == 10: A(f"s_add_u32 s{sT3}, s{sSEG}, s{sWOF}\ns_add_u32 s{sT2}, s{sT3}, {WS_VX - WS_KX}")
            if i >= 16:
                late.append((a_, f if kk != 17 else None)); f += 1
            else:
                lg.wait(f"W{f}")
                sm(AV, a_, v(WR[f % 3], 8))
                if f + 3 < 17: wvread(f + 3)
                f += 1
            lim = 2*R1N-1 if i < B2AT else (2*R1N+7 if i < B3AT and not KXE else 17)
            while nxt <= lim and prev_user(nxt) <= i: aread(nxt); nxt += 1
            if i == 11: A(f"buffer_load_dwordx4 {v(VXF[1],4)}, {v(vVX)}, {srd(SRD_WS)}, s{sT0} offen offset:256 sc1")
            if i == 14: kxread(0); kxread(1)
            if i == 15: kxread(2); kxread(3)
        assert nxt == 18 and WAT + 3 <= (16 if QE else 17) and FAT < WAT + 3 and WAT >= 12 and FAT >= 12 and B3AT >= 12 and R3AT + 1 <= 11
        TQ("qend")
        QF = [D0 + 0, D0 + 4]; KF = [D0 + 16, D0 + 20]
        KP, ZP = D0 + 12, D0 + 14
        def latev(n):
            a_, f_ = late[n]
            if f_ is None: sm(AV, a_, v(WVR, 8)); return
            lg.wait(f"W{f_}")
            sm(AV, a_, v(WR[f_ % 3], 8))
        def qk_write():
            pk2(AQ, AQ)
            A(f"ds_write_b64 {v(vQW)}, {v(AQ,2)}")
            pk2(KP, AK)
            A(f"ds_write_b64 {v(vQW)}, {v(KP,2)} offset:{L_K-L_Q}")
        if QE:
            A("s_nop 1")
            pk2(AQ, AQ)
            A(f"ds_write_b64 {v(vQW)}, {v(AQ,2)}")
            latev(0)
            A("s_nop 1")
            pk2(KP, AK)
            A(f"ds_write_b64 {v(vQW)}, {v(KP,2)} offset:{L_K-L_Q}")
            lg.push("qk", 2)
        else:
            latev(0)
            if MW == 1: A("s_nop 5")
            else: A("s_nop 2")
            TQ("s2a")
            qk_write(); lg.push("qk", 2)
        latev(1)
        kxread(4); kxread(5)
        A(f"""
        v_cmp_u_f32 vcc, {v(AK)}, {v(AK+1)}
        v_cmp_u_f32 s[{sRDLY2}:{sRDLY2+1}], {v(AK+2)}, {v(AK+3)}
        s_or_b64 vcc, vcc, s[{sRDLY2}:{sRDLY2+1}]
        s_cbranch_vccnz {LP('slow')}
        """)
        A.label(LP('slowret'))
        if par == (last & 1):
            A(f"s_cmp_eq_u32 s{sSTEP}, {last}\ns_cbranch_scc1 {L('done')}")
        TQ("s2c")
        lg.wait("qk")
        A("s_barrier")
        TQ("s2end")
        def qk_reads(fb):
            b = fb & 1
            for (dst, base, tg) in ((QF[b], 0, "Q"), (KF[b], L_K - L_Q, "K")):
                A(f"ds_read_b64_tr_b16 {v(dst,2)}, {v(vQR)} offset:{base+fb*512}")
                A(f"ds_read_b64_tr_b16 {v(dst+2,2)}, {v(vQR)} offset:{base+fb*512+128}")
                lg.push(f"{tg}{fb}", 2)
        qk_reads(0); qk_reads(1)
        pk2(ZP, AV)
        ST = [D0 + 8, KXR[0], KXR[1]]
        VMT = D0 + 36; ON1 = D0 + 16; ON2 = D0 + 20
        M0_, M1_ = D0 + 42, D0 + 43
        PX = D0 + 0; PM = PX + 4
        for fb in range(4):
            b = fb & 1
            TQ(f"fb{fb}")
            for kt in range(2):
                n = 2 * fb + kt
                lg.wait(f"Q{fb}"); lg.wait(f"X{n}")
                mf(ST[kt], v(KXR[n], 4), v(QF[b], 4), fb == 0)
                if n in (2, 3): kxread(n + 4)
                if n == 0: A(f"buffer_store_dwordx2 {v(KP,2)}, {v(vQW)}, {srd(SRD_WS)}, s{sT4} offen sc1")
                if n == 3: A(f"buffer_store_dwordx2 {v(ZP,2)}, {v(vQW)}, {srd(SRD_WS)}, s{sT1} offen sc1")
                if n == 4: A(f"v_cndmask_b32 {v(VMT)}, 0, {v(ZP)}, s[{sLO32}:{sLO32+1}]\nv_cndmask_b32 {v(VMT+1)}, 0, {v(ZP+1)}, s[{sLO32}:{sLO32+1}]")
                if n == 5: A(f"v_mov_b32 {v(VMT+2)}, 0\nv_mov_b32 {v(VMT+3)}, 0")
                if n == 6: A(f"v_mov_b32 {v(ON1)}, 0x3f803f80\nv_mov_b32 {v(ON1+1)}, 0x3f803f80")
                if n == 7: A(f"v_mov_b32 {v(ON1+2)}, 0x3f803f80\nv_mov_b32 {v(ON1+3)}, 0x3f803f80")
            lg.wait(f"K{fb}")
            mf(ST[2], v(KF[b], 4), v(QF[b], 4), fb == 0)
            if fb + 2 < 4: qk_reads(fb + 2)
            if fb == 2:
                A(f"v_cndmask_b32 {v(VMT+4)}, 0, {v(ZP)}, s[{sHI32}:{sHI32+1}]\nv_cndmask_b32 {v(VMT+5)}, 0, {v(ZP+1)}, s[{sHI32}:{sHI32+1}]")
        TQ("scend")
        SR = [ST[t] + r for t in range(3) for r in range(4)]
        A(f"v_mov_b32 {v(ON2)}, 0x3f003f00\nv_mov_b32 {v(ON2+1)}, 0x3f003f00\nv_mov_b32 {v(ON2+2)}, 0\nv_mov_b32 {v(ON2+3)}, 0")
        A(f"""
        v_max3_f32 {v(M0_)}, {v(SR[0])}, {v(SR[1])}, {v(SR[2])}
        s_nop 0
        v_max3_f32 {v(M1_)}, {v(SR[3])}, {v(SR[4])}, {v(SR[5])}
        v_max3_f32 {v(M0_)}, {v(M0_)}, {v(SR[6])}, {v(SR[7])}
        v_max3_f32 {v(M1_)}, {v(M1_)}, {v(SR[8])}, {v(SR[9])}
        v_max3_f32 {v(M0_)}, {v(M0_)}, {v(SR[10])}, {v(SR[11])}
        v_max_f32 {v(M0_)}, {v(M0_)}, {v(M1_)}
        v_max_f32 {v(M1_)}, {v(M0_)}, {v(M1_)}
        v_mov_b32 {v(D0+12)}, 0
        v_mov_b32 {v(D0+13)}, 0
        v_permlane32_swap_b32 {v(M0_)}, {v(M1_)}
        v_max_f32 {v(M0_)}, {v(M0_)}, {v(M1_)}
        v_max_f32 {v(M1_)}, {v(M0_)}, {v(M1_)}
        v_mov_b32 {v(D0+14)}, 0
        v_mov_b32 {v(D0+15)}, 0
        v_permlane16_swap_b32 {v(M0_)}, {v(M1_)}
        v_max_f32 {v(M0_)}, {v(M0_)}, {v(M1_)}
        v_mul_f32 {v(M0_)}, s{sC}, {v(M0_)}
        """)
        for i in range(6):
            A(f"v_pk_fma_f32 {v(SR[2*i],2)}, {v(SR[2*i],2)}, s[{sC}:{sC+1}], {v(M0_,2)} op_sel_hi:[1,1,0] neg_lo:[0,0,1] neg_hi:[0,0,1]")
        OT, OT1, LS = D0 + 28, D0 + 32, D0 + 8
        if PVO:
            E = lambda i: f"v_exp_f32 {v(SR[i])}, {v(SR[i])}"
            C = lambda j: f"v_cvt_pk_bf16_f32 {v(PX+j)}, {v(SR[2*j])}, {v(SR[2*j+1])}"
            A("\n".join([E(0), E(1), E(2), C(0), E(3), E(4), C(1), E(5), E(6), C(2), E(7), E(8), C(3),
                         f"s_waitcnt vmcnt({2 + slow_n[0]})", E(9)]))
            TQ("expend")
            A(f"""
            v_mfma_f32_16x16x32_bf16 {v(LS,4)}, {v(ON1,4)}, {v(PX,4)}, 0
            {E(10)}
            v_mfma_f32_16x16x32_bf16 {v(OT,4)}, {v(VXF[0],4)}, {v(PX,4)}, 0
            {E(11)}
            {C(4)}
            v_mfma_f32_16x16x32_bf16 {v(OT1,4)}, {v(VXF[1],4)}, {v(PX,4)}, 0
            {C(5)}
            s_nop 1
            v_mfma_f32_16x16x32_bf16 {v(LS,4)}, {v(ON2,4)}, {v(PM,4)}, {v(LS,4)}
            v_mfma_f32_16x16x32_bf16 {v(OT,4)}, {v(VMT,4)}, {v(PM,4)}, {v(OT,4)}
            v_mfma_f32_16x16x32_bf16 {v(OT1,4)}, {v(VMT+2,4)}, {v(PX+2,4)}, {v(OT1,4)}
            v_mov_b32 {v(D0+44)}, 0
            v_mov_b32 {v(D0+45)}, 0
            v_mov_b32 {v(D0+46)}, 0
            """)
        else:
            for i in range(12):
                A(f"v_exp_f32 {v(SR[i])}, {v(SR[i])}")
                if i >= 2 and i % 2 == 0: A(f"v_cvt_pk_bf16_f32 {v(PX+i//2-1)}, {v(SR[i-2])}, {v(SR[i-1])}")
            OT, OT1, LS = D0 + 28, D0 + 32, D0 + 8
            TQ("expend")
            A(f"""
            s_waitcnt vmcnt({2 + slow_n[0]})
            v_cvt_pk_bf16_f32 {v(PX+5)}, {v(SR[10])}, {v(SR[11])}
            v_mfma_f32_16x16x32_bf16 {v(LS,4)}, {v(ON1,4)}, {v(PX,4)}, 0
            v_mfma_f32_16x16x32_bf16 {v(OT,4)}, {v(VXF[0],4)}, {v(PX,4)}, 0
            v_mfma_f32_16x16x32_bf16 {v(LS,4)}, {v(ON2,4)}, {v(PM,4)}, {v(LS,4)}
            v_mfma_f32_16x16x32_bf16 {v(OT,4)}, {v(VMT,4)}, {v(PM,4)}, {v(OT,4)}
            v_mfma_f32_16x16x32_bf16 {v(OT1,4)}, {v(VXF[1],4)}, {v(PX,4)}, 0
            v_mfma_f32_16x16x32_bf16 {v(OT1,4)}, {v(VMT+2,4)}, {v(PX+2,4)}, {v(OT1,4)}
            """)
        WAo = [D0 + 44, D0 + 48, D0 + 12, D0 + 16]
        WA8 = D0 + 20
        OF = [D0 + 0, D0 + 4, D0 + 36, D0 + 40]
        zl = [WAo[p] + i for p in (0, 1, 3) for i in range(4)]
        if PVO: zl = zl[3:]
        npre = 5 if MW == 1 else 0
        for r in zl[:npre]: A(f"v_mov_b32 {v(r)}, 0")
        A(f"v_rcp_f32 {v(M0_)}, {v(LS)}")
        A(f"v_mov_b32 {v(zl[npre])}, 0")
        if MW > 1: A(f"v_mov_b32 {v(zl[npre+1])}, 0"); npre += 1
        A(f"v_pk_mul_f32 {v(OT,2)}, {v(OT,2)}, {v(M0_,2)} op_sel_hi:[1,0]")
        A(f"v_pk_mul_f32 {v(OT+2,2)}, {v(OT+2,2)}, {v(M0_,2)} op_sel_hi:[1,0]")
        pk2(OT, OT)
        A(f"ds_write_b64 {v(vOW)}, {v(OT,2)}")
        A(f"v_pk_mul_f32 {v(OT1,2)}, {v(OT1,2)}, {v(M0_,2)} op_sel_hi:[1,0]")
        A(f"v_pk_mul_f32 {v(OT1+2,2)}, {v(OT1+2,2)}, {v(M0_,2)} op_sel_hi:[1,0]")
        pk2(OT1, OT1)
        A(f"ds_write_b64 {v(vOW)}, {v(OT1,2)} offset:256")
        for r in zl[npre+1:]: A(f"v_mov_b32 {v(r)}, 0")
        A(f"""
        s_add_u32 s{sT0}, s{sB1 if HOLD >= 1 else sPW}, {4*65536}
        s_add_u32 s{sT1}, s{sPW}, {65536}
        s_waitcnt lgkmcnt(0)
        """)
        TQ("smend")
        PH(4)
        A("s_barrier")
        if trace: TR(0); A("s_waitcnt lgkmcnt(0)")
        lg.clear()
        for ks in range(4):
            A(f"ds_read_b128 {v(OF[ks],4)}, {v(vAF)} offset:{L_O-HI+ks*512}"); lg.push(f"O{ks}")
        SEL = D0 + 36; RT = D0 + 40; RDd = D0 + 16; RBS = [[D0 + 28, D0 + 32, D0 + 52, D0 + 24], [D0 + 44, D0 + 48, D0 + 12, D0 + 20]]
        A(f"""
        s_add_u32 s{sT2}, s{sB1 if HOLD >= 3 else sPW}, {2*65536}
        s_add_u32 s{sT3}, s{sB1 if HOLD >= 2 else sPW}, {3*65536}
        s_add_u32 s{sSTEP}, s{sSTEP}, 1
        s_add_u32 s{sSEG}, s{sSEG}, {0 if fixseg else RECSZ}
        s_mov_b32 s{sSPIN}, {SPIN}
        """)
        TQ("wostart")
        PH(5)
        tagop = lambda r: (f"v_or_b32 {v(r)}, 1, {v(r)}" if par else f"v_and_b32 {v(r)}, -2, {v(r)}")
        def out_ops(a0, soff, half=False):
            ops = [f"v_cvt_pk_bf16_f32 {v(a0)}, {v(a0)}, {v(a0+1)}", f"v_cvt_pk_bf16_f32 {v(a0+1)}, {v(a0+2)}, {v(a0+3)}",
                   tagop(a0)] + ([] if TAG1 else [tagop(a0 + 1)])
            st = f"buffer_store_dwordx2 {v(a0,2)}, {v(vPST)}, {srd(SRD_WS)}, s{soff} offen{sc}"
            if half: st = f"s_mov_b64 exec, s[{sLO32}:{sLO32+1}]\n{st}\ns_mov_b64 exec, -1"
            return ops + [st]
        mfl = [(p, ks) for p in range(4) for ks in range(4)] + [("d", ks) for ks in range(4)]
        groups = [(3 + 4 * p, out_ops(WAo[p], [sPW, sT1, sT2, sT3][p])) for p in range(4)] + [(19, out_ops(WA8, sT0, True))]
        if X4H:
            def o4(a0, b0, soff):
                return [f"v_cvt_pk_bf16_f32 {v(a0+2)}, {v(b0)}, {v(b0+1)}", f"v_cvt_pk_bf16_f32 {v(a0+3)}, {v(b0+2)}, {v(b0+3)}", tagop(a0 + 2), tagop(a0 + 3),
                        f"buffer_store_dwordx4 {v(a0,4)}, {v(vPST)}, {srd(SRD_WS)}, s{soff} offen{sc}"]
            groups = [(3, out_ops(WAo[0], sPW)[:-1]), (7, o4(WAo[0], WAo[1], sPW)), (11, out_ops(WAo[2], sPW)[:-1]), (15, o4(WAo[2], WAo[3], sT2)),
                      (19, out_ops(WA8, sT0)[:-1] + [f"v_mov_b32 {v(WA8+2)}, {v(WA8)}", f"v_mov_b32 {v(WA8+3)}, {v(WA8)}",
                       f"s_mov_b32 exec_lo, 0x00ff00ff\ns_mov_b32 exec_hi, 0\nbuffer_store_dwordx4 {v(WA8,4)}, {v(vPST)}, {srd(SRD_WS)}, s{sT0} offen{sc}\ns_mov_b64 exec, -1"])]
        ic = [0]; pos = {}
        def emit(s_):
            A(s_); ic[0] += len([x for x in s_.split("\n") if x.strip()])
        cur = []; gi = 0
        for n, (p, ks) in enumerate(mfl):
            if n < 4:
                n0 = len(A.lines); lg.wait(f"O{ks}"); ic[0] += len(A.lines) - n0
            if p == "d":
                emit(f"v_mfma_f32_16x16x32_bf16 {v(WA8,4)}, {v(OF[ks],4)}, {WO8(ks)}, {'0' if ks == 0 else v(WA8,4)}")
            else:
                emit(f"v_smfmac_f32_16x16x64_bf16 {v(WAo[p],4)}, {v(OF[ks],4)}, {WO(p,ks)}, {v(IDX)}")
            ic[0] += MW - 1
            pos[n] = ic[0]
            k = 0
            while k < 2:
                if not cur and gi < len(groups) and groups[gi][0] <= n and ic[0] - pos[groups[gi][0]] >= (9 if MW > 1 else 8):
                    cur = list(groups[gi][1]); gi += 1
                if not cur: break
                emit(cur.pop(0)); k += 1
        while cur or gi < len(groups):
            if not cur:
                need = 8 - (ic[0] - pos[groups[gi][0]])
                if H1 and gi == len(groups) - 1:
                    emit(f"s_cmp_eq_u32 s{W}, 0"); need -= 1
                if need > 0: emit(f"s_nop {need-1}"); ic[0] += need - 1
                cur = list(groups[gi][1]); gi += 1
            if H1 and gi == len(groups) and len(cur) == 1:
                held = cur[0]
                A(f"s_cbranch_scc1 {LP('w0')}")
            emit(cur.pop(0))
        TQ("woend")
        PH(6)
        TR(1)
        if KXE:
            A(f"s_cmp_lt_u32 s{W}, 2\ns_cbranch_scc1 {LP('nkx')}"); kx_early(); A.label(LP('nkx'))
        A(f"s_cmp_eq_u32 s{sRED}, 0\ns_cbranch_scc1 {LP('nored')}")
        def rload(sidx):
            for i in range(4):
                A(f"buffer_load_dwordx4 {v(RBS[sidx][i],4)}, {v(vRED)}, {srd(SRD_WS)}, s{sPW} offen offset:{i*1024}{ld}")
        def rproc(sidx, br, y=0):
            for i in range(4):
                b = RBS[sidx][i]
                A(f"s_waitcnt vmcnt({(7 if RGAP else 3)-i+y})")
                mf(RDd, v(SEL, 4), v(b, 4), i == 0)
                o3 = (lambda d, x, y, z: f"v_bitop3_b32 {v(d)}, {v(x)}, {v(y)}, {v(z)} bitop3:0x80") if par else (lambda d, x, y, z: f"v_or3_b32 {v(d)}, {v(x)}, {v(y)}, {v(z)}")
                if TAG1:
                    A(o3(RT, RT if i else b, b, b + 2))
                elif i == 0:
                    A(o3(RT, b, b + 1, b + 2)); A(o3(RT, RT, b + 3, b + 3))
                else:
                    A(o3(RT, RT, b, b + 1)); A(o3(RT, RT, b + 2, b + 3))
            A(f"v_and_b32 {v(RT)}, 1, {v(RT)}\nv_cmp_ne_u32 vcc, {par}, {v(RT)}\n{br}")
        A(f"""
        s_mov_b32 s{sT0}, s{sRDLY}
    {LP('rdl')}:
        s_cmp_eq_u32 s{sT0}, 0
        s_cbranch_scc1 {LP('rgo')}
        s_sleep 1
        s_sub_u32 s{sT0}, s{sT0}, 1
        s_branch {LP('rdl')}
    {LP('rgo')}:
        """)
        TQ("rgo")
        rload(0)
        if HOLD:
            assert not RGAP
            if HOLD >= 3: A(f"s_add_u32 s{sT2}, s{sB2}, {2*65536}\nbuffer_store_dwordx2 {v(WAo[2],2)}, {v(vPST)}, {srd(SRD_WS)}, s{sT2} offen{sc}")
            if HOLD >= 2: A(f"s_add_u32 s{sT3}, s{sB2}, {3*65536}\nbuffer_store_dwordx2 {v(WAo[3],2)}, {v(vPST)}, {srd(SRD_WS)}, s{sT3} offen{sc}")
            A(f"s_add_u32 s{sT0}, s{sB2}, {4*65536}\ns_mov_b64 exec, s[{sLO32}:{sLO32+1}]\nbuffer_store_dwordx2 {v(WA8,2)}, {v(vPST)}, {srd(SRD_WS)}, s{sT0} offen{sc}\ns_mov_b64 exec, -1")
        zero_acc()
        for r in range(4): A(f"v_cndmask_b32 {v(SEL+r)}, 0, {v(SELV)}, s[{sSEL+2*r}:{sSEL+2*r+1}]")
        if RGAP:
            if RGAP > 0: A(f"s_sleep {RGAP}")
            rload(1)
        A.label(LP('rp0'))
        rproc(0, f"s_cbranch_vccnz {LP('rf0')}", HOLD)
        A.label(LP('rdone'))
        TQ("rdone")
        A(f"""
        {'s_sub_u32 s96, %d, s%d' % (SPIN, sSPIN) if cnt else 's_nop 0'}
        {'s_add_u32 s21, s21, s96' if cnt else 's_nop 0'}
        s_nop {1 if TAG1 else 0}
        v_add_f32_dpp {v(RT)}, {v(RDd)}, {v(RDd)} row_ror:8 row_mask:0xf bank_mask:0xf
        v_add_f32_dpp {v(RT+1)}, {v(RDd+1)}, {v(RDd+1)} row_ror:8 row_mask:0xf bank_mask:0xf
        v_cvt_pk_bf16_f32 {v(RT)}, {v(RT)}, {v(RT+1)}
        v_min_u32 {v(TMP)}, -2, {v(RT)}
        buffer_store_dword {v(TMP)}, {v(vPUB)}, {srd(SRD_WS)}, s{sMW} offen{sc}
        """)
        if not RAL: A(f"buffer_store_dword {v(vSP)}, {v(vPUB)}, {srd(SRD_WS)}, s{sMA} offen{sc}")
        TQ("pub")
        PH(7)
        TR(2)
        if trace: A("s_waitcnt lgkmcnt(0)")
        A(f"s_branch {nxt_loop}")
        A.label(LP('nored'))
        if trace: A("s_waitcnt vmcnt(0)"); TR(2); A("s_waitcnt lgkmcnt(0)")
        zero_acc()
        if merged:
            A(f"""
            s_cmp_lg_u32 s{W}, 3
            s_cbranch_scc1 {LP('nkv')}
            v_mov_b32 {v(vSP)}, s{sSTEP}
            s_cmp_ge_u32 s{sKV}, 64
            s_cbranch_scc1 {LP('nkv')}
            s_waitcnt vmcnt({11 if KXE else (5 if X4H else 7)})
            v_cmp_ne_u32 vcc, 4, {v(TMP)}
            s_ff1_i32_b64 s{sKV}, vcc
            s_cmp_lt_i32 s{sKV}, 0
            s_cselect_b32 s{sKV}, 64, s{sKV}
            s_cselect_b32 s{sKVO}, 0x40000000, s{sKVO}
            s_add_u32 s{sT0}, s{sSTEP}, {WARMD + 1}
            s_min_u32 s{sT0}, s{sT0}, 64
            """)
            kv_wait(sT0, LP('kv'))
            A.label(LP('nkv'))
        if tavg:
            A(f"s_memrealtime s[96:97]\ns_waitcnt lgkmcnt(0)\ns_cmp_lt_u32 s{sSTEP}, 10\ns_cselect_b32 s96, 0, s96\ns_add_u32 s20, s20, s96")
        if tstep:
            A(f"s_cmp_lg_u32 s{W}, 2\ns_cbranch_scc1 {LP('nts')}\ns_memrealtime s[96:97]\ns_waitcnt lgkmcnt(0)\ns_mov_b32 m0, s{sSTEP}\nv_writelane_b32 {v(vSP)}, s96, m0\n{LP('nts')}:")
        if CDN: A(f"s_sleep {CDN}")
        A(f"s_branch {nxt_loop}x")
        if H1:
            A(f"""
{LP('w0')}:
            s_mov_b32 s{sT1}, s{sRDLY}
{LP('w0d')}:
            s_cmp_eq_u32 s{sT1}, 0
            s_cbranch_scc1 {LP('w0g')}
            s_sleep 1
            s_sub_u32 s{sT1}, s{sT1}, 1
            s_branch {LP('w0d')}
{LP('w0g')}:
            """)
            rload(0)
            A(held)
            zero_acc()
            for r in range(4): A(f"v_cndmask_b32 {v(SEL+r)}, 0, {v(SELV)}, s[{sSEL+2*r}:{sSEL+2*r+1}]")
            rproc(0, f"s_cbranch_vccz {LP('rdone')}", 1)
            A(f"s_branch {LP('rf0')}")
        A.label(LP('rf0'))
        rload(0); spin()
        if RGAP:
            rproc(1, f"s_cbranch_vccz {LP('rdone')}")
            rload(1); spin()
        if HOLD:
            rproc(0, f"s_cbranch_vccz {LP('rdone')}")
            A(f"s_branch {LP('rf0')}")
        else:
            A(f"s_branch {LP('rp0')}")
        if CGAP:
            A.label(LP('cf'))
            cload2(AS[0]); spin()
            cproc(AS[2], 2, f"s_cbranch_vccz {LP('cok')}")
            cload2(AS[2]); spin()
            A(f"s_branch {LP('cp')}")
            A(f"{LP('cok')}:\ns_waitcnt vmcnt(0)\ns_branch {LP('cdj')}")
        A.label(LP('slow'))
        A(f"s_sub_u32 s97, s{sMA}, {HI}\ns_waitcnt lgkmcnt(0)\ns_nop 7")
        zero_acc()
        for kp in range(9):
            lab = LP(f'sp{kp}_')
            for h in range(2):
                kk = 2 * kp + h
                if kk != 17:
                    A(f"ds_read_b128 {v(WR[h],4)}, {v(vWV)} offset:{kk*2048}\nds_read_b128 {v(WR[h]+4,4)}, {v(vWV)} offset:{kk*2048+1024}")
            A(f"""
{lab}:
            buffer_load_dwordx4 {v(AS[0],4)}, {v(vAF)}, {srd(SRD_WS)}, s97 offen sc1
            buffer_load_dwordx4 {v(AS[1],4)}, {v(vAF)}, {srd(SRD_WS)}, s97 offen offset:512 sc1
            """)
            spin()
            A(f"""
            s_waitcnt vmcnt(0) lgkmcnt(0)
            v_max3_u32 {v(TMP)}, {v(AS[0])}, {v(AS[0]+1)}, {v(AS[0]+2)}
            v_max3_u32 {v(TMP)}, {v(TMP)}, {v(AS[0]+3)}, {v(AS[1])}
            v_max3_u32 {v(TMP)}, {v(TMP)}, {v(AS[1]+1)}, {v(AS[1]+2)}
            v_max_u32 {v(TMP)}, {v(TMP)}, {v(AS[1]+3)}
            v_cmp_eq_u32 vcc, -1, {v(TMP)}
            s_cbranch_vccnz {lab}
            """)
            for h in range(2):
                kk = 2 * kp + h
                sm(AQ, v(AS[h], 4), WQ(kk)); sm(AK, v(AS[h], 4), WK(kk)); sm(AV, v(AS[h], 4), v(WR[h], 8) if kk != 17 else v(WVR, 8))
            A(f"s_add_u32 s97, s97, 1024")
        if prof: A(f"s_mov_b64 exec, {1 << 10}\nv_add_u32 v1, 63, v1\ns_mov_b64 exec, -1")
        if cnt: A("s_add_u32 s20, s20, 0x10000")
        import common
        if common.HST:
            A(f"v_mov_b32 {v(TMP)}, 1\ns_mov_b64 exec, 1\nbuffer_atomic_add {v(TMP)}, off, {srd(SRD_DBG)}, 32 sc1\ns_mov_b64 exec, -1\ns_waitcnt vmcnt(0)")
        A("s_nop 7")
        qk_write()
        for n in range(2, 6): A(f"ds_read_b128 {v(KXR[n],4)}, {v(vKX)} offset:{L_KX-HI+(n>>1)*2048+(n&1)*128}")
        A(f"s_waitcnt lgkmcnt(0)\ns_branch {LP('slowret')}")
    step_body(0, sc, ''); step_body(1, sc, '')
    if merged:
        step_body(0, ' sc1', 'S'); step_body(1, ' sc1', 'S')
    A.label(L('done'))
    A(f"""
    s_lshr_b32 s{sT2}, s{sSEG}, 1
    s_add_u32 s{sT1}, s{sT2}, {WS_VM - L_Q}
    s_add_u32 s{sT4}, s{sT2}, {WS_KM - L_Q}
    v_min_u32 {v(D0+12)}, -2, {v(D0+12)}
    v_min_u32 {v(D0+13)}, -2, {v(D0+13)}
    buffer_store_dwordx2 {v(D0+12,2)}, {v(vQW)}, {srd(SRD_WS)}, s{sT4} offen sc1
    v_cvt_pk_bf16_f32 {v(D0+14)}, {v(D0+8)}, {v(D0+9)}
    v_cvt_pk_bf16_f32 {v(D0+15)}, {v(D0+10)}, {v(D0+11)}
    v_min_u32 {v(D0+14)}, -2, {v(D0+14)}
    v_min_u32 {v(D0+15)}, -2, {v(D0+15)}
    buffer_store_dwordx2 {v(D0+14,2)}, {v(vQW)}, {srd(SRD_WS)}, s{sT1} offen sc1
    """)
    A("s_waitcnt vmcnt(0) lgkmcnt(0)")
    if merged:
        A(f"""
        s_barrier
        s_cmp_lg_u32 s{W}, 3
        s_cbranch_scc1 {L('nfin')}
        v_mov_b32 {v(TMP)}, 64
        v_mov_b32 {v(D0+52)}, s{sPRG}
        s_mov_b64 exec, 1
        buffer_store_dword {v(TMP)}, {v(D0+52)}, {srd(SRD_WS)}, 0 offen sc1
        s_mov_b64 exec, -1
        s_waitcnt vmcnt(0)
{L('nfin')}:
        """)
    if cnt:
        A(f"v_mov_b32 v1, s20\ns_mov_b64 exec, 2\nv_mov_b32 v1, s21\ns_mov_b64 exec, -1")
        A("s_memtime s[96:97]\ns_memrealtime s[100:101]\ns_waitcnt lgkmcnt(0)\ns_sub_u32 s96, s96, s99\ns_sub_u32 s100, s100, s98")
        A("s_mov_b64 exec, 4\nv_mov_b32 v1, s96\ns_mov_b64 exec, 8\nv_mov_b32 v1, s100\ns_mov_b64 exec, -1")
    if trace:
        for i in range(6): A(f"s_mov_b64 exec, {1 << i}\nv_mov_b32 v1, s{8+2*i}")
        A("s_mov_b64 exec, -1")
    if tq:
        for i in range(len(tq)): A(f"s_mov_b64 exec, {1 << i}\nv_mov_b32 v1, s{8+2*i}")
        A("s_mov_b64 exec, -1")
    if tstart:
        TS(7)
        A("s_mov_b32 s8, s100\ns_mov_b32 s10, s98")
        for i in range(8): A(f"s_mov_b64 exec, {1 << i}\nv_mov_b32 v1, s{8+2*i}")
        A("s_mov_b64 exec, -1")
    if tavg: A("v_mov_b32 v1, s20")
    if tstep: A(f"v_mov_b32 v1, {v(vSP)}")
    if prof or cnt or trace or tq or tstep or tstart or tavg:
        A(f"""
        s_lshl_b32 s96, s{s_head}, 2
        s_add_u32 s96, s96, s{W}
        s_lshl_b32 s96, s96, 8
        s_add_u32 s96, s96, {WS_STAMP + 0x10000}
        v_lshrrev_b32 v28, 2, {v(vCON)}
        v_and_b32 v28, 255, v28
        buffer_store_dword v1, v28, {srd(SRD_WS)}, s96 offen
        s_waitcnt vmcnt(0)
        """)
    stamp(A, 10, s_id=s_head)
    hstamp(A, 14)
```

```python
import sys
from common import *
from mod_p import *
from mod_r9 import mod_R
from mod_xo import *
from mod_f import *

OPT = {}
def kernel(name, body, vgpr=256, agpr=256):
    A = Asm()
    body(A)
    return kernel_head(name) + A.text(), kernel_desc(name, vgpr, agpr)

def k_P(A):
    prologue(A, 256, "KP_end")
    A("""s_lshr_b32 s58, s2, 3
    s_and_b32 s59, s2, 7""")
    A("""s_and_b32 s58, s2, 3
    s_lshl_b32 s58, s58, 3
    s_bfe_u32 s59, s2, 0x30003
    s_add_u32 s58, s58, s59
    s_lshr_b32 s59, s2, 6
    s_and_b32 s60, s2, 4
    s_add_u32 s59, s59, s60""")
    mod_P(A, 58, 59, 8, flags=False, sc=OPT.get('sc', ' sc1'), nost=OPT.get('nost', 0))
    A("KP_end:")
    A("s_endpgm")

def ticket_xcd0(A, endlabel):
    A(f"""
    s_getreg_b32 s59, hwreg(HW_REG_XCC_ID)
    s_and_b32 s59, s59, 15
    s_cmp_lg_u32 s59, 0
    s_cbranch_scc1 {endlabel}
    s_cmp_lg_u32 s{S_WAVE}, 0
    s_cbranch_scc1 TK_1
    v_mov_b32 v3, 1
    v_mov_b32 v4, 0
    s_mov_b64 exec, 1
    buffer_atomic_add v3, v4, {srd(SRD_DBG)}, 0 offen sc0 sc1
    s_waitcnt vmcnt(0)
    ds_write_b32 v4, v3
    s_waitcnt lgkmcnt(0)
    s_mov_b64 exec, -1
TK_1:
    s_barrier
    v_mov_b32 v4, 0
    ds_read_b32 v3, v4
    s_waitcnt lgkmcnt(0)
    v_readfirstlane_b32 s58, v3
    s_barrier
    s_cmp_ge_u32 s58, 32
    s_cbranch_scc1 {endlabel}
    """)

def k_R(A):
    prologue(A, 256, "KR_end")
    ticket_xcd0(A, "KR_end")
    mod_R(A, 58, **OPT.get('R', {}))
    A("s_branch KR_end")
    A(f"""
R_abort:
    v_mov_b32 v3, 0xdead
    v_mov_b32 v4, 60
    buffer_store_dword v3, v4, {srd(SRD_DBG)}, 0 offen
    s_waitcnt vmcnt(0)
KR_end:
    s_endpgm""")

def k_X(A):
    prologue(A, 256, "KX_end")
    X_setup(A)
    A("""s_mov_b32 s58, s2
KX_loop:""")
    raise NotImplementedError
    A("""s_add_u32 s58, s58, 256
    s_cmp_lt_u32 s58, 2048
    s_cbranch_scc1 KX_loop
KX_end:
    s_endpgm""")

def k_O(A):
    prologue(A, 252, "KO_end")
    A("""s_mul_hi_u32 s59, s2, 238609295
    s_mul_i32 s58, s59, 18
    s_sub_u32 s58, s2, s58
    s_mov_b32 s70, 0""")
    O_setup(A, 58)
    A("KO_loop:")
    O_item(A, 59, 70)
    A("""s_add_u32 s59, s59, 14
    s_cmp_lt_u32 s59, 64
    s_cbranch_scc1 KO_loop
KO_end:
    s_endpgm""")

def k_F0(A):
    prologue(A, 256, "KF0_end")
    F0(A, 2, 256)
    A("KF0_end:\ns_endpgm")
def mk_FG(which):
    def f(A):
        prologue(A, 255, f"KF{which}_end")
        A("""s_mul_hi_u32 s59, s2, 858993460
        s_mul_i32 s58, s59, 5
        s_sub_u32 s58, s2, s58""")
        FG(A, which, 58, 59, 51)
        A(f"KF{which}_end:\ns_endpgm")
    return f
def k_F2(A):
    prologue(A, 73, "KF2_end")
    A(f"""s_lshl_b32 s58, s2, 2
    s_add_u32 s58, s58, s{S_WAVE}
    s_cmp_gt_u32 s58, 288
    s_cbranch_scc1 KF2_end""")
    F2(A, 58)
    A("KF2_end:\ns_endpgm")

HEADER = open("cdna_kernels/" + NAME + ".s.ref").read().split("; Override launch")[0]

def build(kernels):
    txt = HEADER
    for (n, f, g, lds) in kernels:
        txt += f"; @launch kernel={n} grid=({g},1,1) block=(256,1,1) lds={lds}\n"
    txt += '.amdgcn_target "amdgcn-amd-amdhsa--gfx950"\n.text\n'
    descs = []
    seen = set()
    for (n, f, g, lds) in kernels:
        if n in seen: continue
        seen.add(n)
        t, d = kernel(n, f)
        txt += t; descs.append(d)
    txt += '.section .rodata,"a"\n'
    for d in descs:
        txt += ".p2align 6\n" + d
    return txt

if __name__ == "__main__":
    import common
    if "stamps" in sys.argv: common.STAMPS = True
    if "hst" in sys.argv: common.HST = True
    if "nosc" in sys.argv: OPT['sc'] = ''
    if "nt" in sys.argv: OPT['sc'] = ' nt'
    if "rdbg" in sys.argv: OPT['R'] = dict(last=1, dbg_noarm=True)
    if "prof" in sys.argv: OPT['R'] = dict(prof=True)
    for a_ in sys.argv:
        if a_.startswith("M:"):
            OPT.setdefault('M', {}).update(eval("dict(" + a_[2:] + ")"))
        if a_.startswith("R:"):
            OPT.setdefault('R', {}).update(eval("dict(" + a_[2:] + ")"))
    if "nost" in sys.argv: OPT['nost'] = 1
    ks = [("p_kernel", k_P, 256, 163840), ("r_kernel", k_R, 256, 163840), ("x_kernel", k_X, 256, 8192), ("o_kernel", k_O, 252, 163840)]
    ksA = [("f0_kernel", k_F0, 256, 0), ("f1_kernel", mk_FG(1), 255, 131072), ("f2_kernel", k_F2, 73, 0), ("f3_kernel", mk_FG(3), 255, 131072)]
    if "aonly" in sys.argv: ks = ksA
    if "all" in sys.argv: ks = ksA + ks
    if "pr" in sys.argv: ks = ks[0:2]
    if "ronly" in sys.argv: ks = ks[1:2]
    if "merged" in sys.argv:
        from merged import k_merged
        common.STAMP_ID = 58
        ks = [("fused_kernel", lambda A: k_merged(A, OPT.get('R', {}), **OPT.get('M', {})), 256, 163840)]
    txt = build(ks)
    if "final" in sys.argv:
        txt = txt.replace("; @launch kernel=fused_kernel grid", "; @launch grid").replace("fused_kernel", NAME + "_kernel")
    open(sys.argv[1], "w").write(txt)
```
